```python
import torch

def _softmax(x, axis=-1):
    return torch.softmax(x, dim=axis)
def _gelu(x):
    return torch.nn.functional.gelu(x, approximate="tanh")
def _silu(x):
    return torch.nn.functional.silu(x)
def _sigmoid(x):
    return torch.sigmoid(x)
def _layernorm(x, axis=-1, eps=1e-5):
    m = x.mean(dim=axis, keepdim=True)
    v = x.var(dim=axis, keepdim=True, unbiased=False)
    return (x - m) / torch.sqrt(v + eps)
def _scatter_add(tgt, idx, src, axis=0):
    return tgt.clone().index_add_(axis, idx, src)
def _segment_sum(src, seg, n):
    out = torch.zeros((n,) + src.shape[1:], dtype=src.dtype)
    return out.index_add_(0, seg, src)
def _pad(x, pw):
    flat = tuple(v for pair in reversed(pw) for v in pair)
    return torch.nn.functional.pad(x, flat)

kernel_name = 'gated_mix__ssm_conv_h3__glu_gated_bilinear__prompt'

def setup_inputs():

    _w = (lambda a: (lambda t: t.to(torch.bfloat16) if t.is_floating_point() else t)(torch.as_tensor(a)))
    def _A_setup():
        B, S, D = 1, 2048, 640
        ks = 4
        return {
            "q": _w((lambda *s: torch.randn(*s, dtype=torch.bfloat16) * 0.05)(B, S, D)),
            "k": _w((lambda *s: torch.randn(*s, dtype=torch.bfloat16) * 0.05)(B, S, D)),
            "v": _w((lambda *s: torch.randn(*s, dtype=torch.bfloat16) * 0.05)(B, S, D)),
            "shift_k": _w((lambda *s: torch.randn(*s, dtype=torch.bfloat16) * 0.05)(D, ks) * 0.5),
            "ssm_k": _w((lambda *s: torch.randn(*s, dtype=torch.bfloat16) * 0.1)(D, S) * (1.0 / S ** 0.5)),
            "ssm_D": _w((lambda *s: torch.randn(*s, dtype=torch.bfloat16) * 0.05)(D)),
        }
    _A_in = _A_setup()

    def _B_setup():
        B, S, D, F = 1, 2048, 640, 1536
        return {
            "x": _w((lambda *s: torch.randn(*s, dtype=torch.bfloat16) * 0.05)(B, S, D)),
            "w_gate": _w((lambda *s: torch.randn(*s, dtype=torch.bfloat16) * 0.1)(D, F) * (D ** -0.5)),
            "w_up": _w((lambda *s: torch.randn(*s, dtype=torch.bfloat16) * 0.1)(D, F) * (D ** -0.5)),
            "w_down": _w((lambda *s: torch.randn(*s, dtype=torch.bfloat16) * 0.1)(F, D) * (F ** -0.5)),
        }
    _B_in = _B_setup()

    return {
        "A_q": _A_in["q"],
        "A_k": _A_in["k"],
        "A_v": _A_in["v"],
        "A_shift_k": _A_in["shift_k"],
        "A_ssm_k": _A_in["ssm_k"],
        "A_ssm_D": _A_in["ssm_D"],
        "B_x": _B_in["x"],
        "B_w_gate": _B_in["w_gate"],
        "B_w_up": _B_in["w_up"],
        "B_w_down": _B_in["w_down"],
        "gate_w": _w((lambda *s: torch.randn(*s, dtype=torch.bfloat16) * 0.05)(640) * 16.0),
    }

def reference(A_q, A_k, A_v, A_shift_k, A_ssm_k, A_ssm_D, B_x, B_w_gate, B_w_up, B_w_down, gate_w):
    def _A_ref(q, k, v, shift_k, ssm_k, ssm_D):
        B, S, D = q.shape
        ks = shift_k.shape[-1]
        k_pad = _pad(k, ((0, 0), (ks - 1, 0), (0, 0)))
        k_shift = torch.zeros_like(k)
        for t in range(ks):
            k_shift = k_shift + k_pad[:, t:t + S, :] * shift_k[:, ks - 1 - t][None, None, :]
        kv = k_shift * v
        L = 2 * S
        kv_pad = _pad(kv, ((0, 0), (0, S), (0, 0)))
        kf_pad = _pad(ssm_k, ((0, 0), (0, S)))
        kv_f = (lambda x, axes=(-2,-1): torch.fft.rfft2(x.float(), dim=axes))(kv_pad[:, None, :, :], axes=(1, 2))
        kf_f = (lambda x, axes=(-2,-1): torch.fft.rfft2(x.float(), dim=axes))(kf_pad[:, None, :], axes=(1, 2))
        kf_f = (lambda x, *d: x.permute(*d))(kf_f, 1, 2, 0)
        y_f = kv_f * kf_f[None, :, :, :]
        y = (lambda x, s, axes=(-2,-1): torch.fft.irfft2(x, s=s, dim=axes).to(torch.bfloat16))(y_f, (1, L), axes=(1, 2))[:, 0, :S, :]
        y = y + kv * ssm_D[None, None, :]
        return q * y

    def _B_ref(x, w_gate, w_up, w_down):
        g = torch.einsum("bsd,df->bsf", x, w_gate)
        u = torch.einsum("bsd,df->bsf", x, w_up)
        h = g * u
        return torch.einsum("bsf,fd->bsd", h, w_down)

    x = A_q
    g = _sigmoid((x * gate_w).sum(-1, keepdims=True))
    a = _A_ref(x, A_k, A_v, A_shift_k, A_ssm_k, A_ssm_D)
    b = _B_ref(x, B_w_gate, B_w_up, B_w_down)
    return g * a + (1 - g) * b
```

```python
import re

REG_RE = re.compile(r'\b([vsa])\[(\d+):(\d+)\]|\b([vsa])(\d+)\b|\b(vcc|exec|m0|scc)(?:_lo|_hi)?\b')

def regs_of(text):
    out = []
    for m in REG_RE.finditer(text):
        if m.group(1):
            out += [(m.group(1), i) for i in range(int(m.group(2)), int(m.group(3)) + 1)]
        elif m.group(4):
            out.append((m.group(4), int(m.group(5))))
        else:
            out.append((m.group(6), 0))
    return out

TRANS = ('v_exp_f32', 'v_log_f32', 'v_rcp_f32', 'v_rsq_f32', 'v_sqrt_f32', 'v_sin_f32', 'v_cos_f32')

class Ins:
    __slots__ = ('text', 'op', 'kind', 'dst', 'src', 'ws', 'passes', 'srcc', 'dpp', 'wide_store', 'sdata')

def split_ops(s):
    out, depth, cur = [], 0, ''
    for ch in s:
        if ch == '[': depth += 1
        if ch == ']': depth -= 1
        if ch == ',' and depth == 0:
            out.append(cur.strip()); cur = ''
        else:
            cur += ch
    if cur.strip(): out.append(cur.strip())
    return out

def parse(text):
    i = Ins(); i.text = text
    t = text.split(';')[0].strip()
    parts = t.split(None, 1)
    op = parts[0]; rest = parts[1] if len(parts) > 1 else ''
    ops = split_ops(rest)
    i.op = op; i.ws = 1; i.passes = 0; i.srcc = []; i.dpp = False; i.wide_store = False; i.sdata = []
    i.dst = []; i.src = []
    def R(k): return regs_of(ops[k].split(' ')[0] if (k == len(ops) - 1 and not ops[k].startswith(('v[', 's[', 'a['))) else ops[k].split(' ')[0]) if k < len(ops) else []
    if op == 's_nop':
        i.kind = 'nop'; i.ws = int(rest, 0) + 1
    elif op.startswith('v_mfma'):
        i.kind = 'mfma'
        i.passes = 8 if '32x32x16' in op else 4
        i.dst = R(0); i.src = R(1) + R(2) + R(3); i.srcc = R(3)
    elif op.startswith('v_'):
        i.kind = 'valu'
        i.dpp = ('_dpp' in op) or ('wave_' in rest) or ('row_' in rest) or ('quad_perm' in rest)
        if op.startswith('v_cmp'):
            i.dst = R(0); i.src = sum((R(k) for k in range(1, len(ops))), [])
            if op.startswith('v_cmpx'): i.dst = i.dst + [('exec', 0)]
        elif op.startswith(('v_add_co', 'v_sub_co', 'v_addc_co', 'v_subb_co', 'v_subrev_co')):
            i.dst = R(0) + R(1); i.src = sum((R(k) for k in range(2, len(ops))), [])
        elif op.startswith('v_permlane') and 'swap' in op:
            i.dst = R(0) + R(1); i.src = R(0) + R(1)
        else:
            i.dst = R(0); i.src = sum((R(k) for k in range(1, len(ops))), [])
            if op.startswith(('v_fmac', 'v_dot2c', 'v_writelane')) or i.dpp or '_sdwa' in op:
                i.src = i.src + R(0)
            if op.startswith('v_cndmask') and len(ops) == 3:
                i.src.append(('vcc', 0))
    elif op.startswith('ds_'):
        i.kind = 'ds'
        if op.startswith(('ds_read', 'ds_bpermute', 'ds_permute', 'ds_swizzle')) or '_rtn' in op:
            i.dst = R(0); i.src = sum((R(k) for k in range(1, len(ops))), [])
        else:
            i.src = sum((R(k) for k in range(0, len(ops))), [])
    elif op.startswith(('buffer_', 'global_')):
        i.kind = 'vmem'
        allr = sum((R(k) for k in range(0, len(ops))), [])
        lds = bool(re.search(r'\blds\b', rest)) or '_lds_' in op
        if op in ('buffer_wbl2', 'buffer_inv'):
            pass
        elif 'load' in op and not lds:
            i.dst = R(0); i.src = sum((R(k) for k in range(1, len(ops))), [])
        else:
            i.src = allr
            if lds: i.src = i.src + [('m0', 0)]
            if 'store' in op:
                i.sdata = R(0) if op.startswith('buffer_') else R(1)
                i.wide_store = op.endswith(('x3', 'x4'))
    elif op.startswith('s_'):
        i.kind = 'salu'
        if op.startswith(('s_cmp', 's_cbranch', 's_branch', 's_waitcnt', 's_barrier', 's_endpgm', 's_sleep', 's_setprio', 's_bitcmp')):
            i.src = sum((R(k) for k in range(0, len(ops))), [])
        else:
            i.dst = R(0); i.src = sum((R(k) for k in range(1, len(ops))), [])
            if 'saveexec' in op: i.dst = i.dst + [('exec', 0)]
    else:
        raise ValueError('cannot parse ' + text)
    return i

XDL_D_USE = {4: 8, 8: 12}
XDL_D_OVERLAP_C = {4: 6, 8: 10}
XDL_C_WAR = {4: 3, 8: 7}

def need(p, c):
    n = 0
    pd = set(p.dst); cs = set(c.src); cd = set(c.dst)
    if p.kind == 'valu':
        vd = {r for r in pd if r[0] in 'va'}
        sd = {r for r in pd if r[0] == 's' or r[0] == 'vcc'}
        if c.kind == 'mfma' and vd & cs: n = max(n, 2)
        if c.kind == 'valu':
            if c.dpp and vd & cs: n = max(n, 2)
            if c.op.startswith('v_permlane') and vd & cs: n = max(n, 2)
            if c.op.startswith(('v_readlane', 'v_readfirstlane')) and vd & cs: n = max(n, 1)
            if sd & cs: n = max(n, 4 if c.op.startswith(('v_readlane', 'v_writelane')) else 2)
            if p.op.startswith(TRANS) and vd & cs: n = max(n, 1)
            if ('_sdwa' in p.op or 'op_sel' in p.text) and vd & (cs | cd): n = max(n, 1)
            if ('exec', 0) in pd:
                if c.dpp: n = max(n, 5)
                if c.op.startswith(('v_readlane', 'v_readfirstlane', 'v_writelane', 'v_permlane')): n = max(n, 4)
        if c.kind == 'mfma' and ('exec', 0) in pd: n = max(n, 4)
        if c.kind == 'vmem' and sd & cs: n = max(n, 5)
        if c.kind == 'salu' and sd & cs: n = max(n, 1)
    if p.kind == 'salu':
        if ('m0', 0) in pd and ('m0', 0) in cs and c.kind in ('vmem', 'ds'): n = max(n, 1)
    if p.kind == 'mfma':
        if c.kind == 'mfma':
            ab = set(c.src) - set(c.srcc) if set(c.srcc) else set(c.src)
            if pd & ab: n = max(n, XDL_D_USE[p.passes])
            if pd & set(c.srcc):
                if not (p.dst == c.srcc and p.passes == c.passes): n = max(n, XDL_D_OVERLAP_C[p.passes])
            elif pd & cd:
                n = max(n, XDL_D_USE[p.passes])
        elif c.kind in ('valu', 'vmem', 'ds'):
            if pd & (cs | cd): n = max(n, XDL_D_USE[p.passes])
            if c.kind == 'valu' and set(p.srcc) & cd: n = max(n, XDL_C_WAR[p.passes])
    if p.kind == 'vmem' and p.wide_store:
        if set(p.sdata) & cd: n = max(n, 2 if c.kind == 'valu' else 1)
    return n

class Asm:
    def __init__(self):
        self.lines = []
        self.hist = []
        self.vmq = []
        self.lgq = []
        self.tok = 0
        self.nnop = 0
    def raw(self, s): self.lines.append(s)
    def comment(self, s): self.lines.append('    ; ' + s)
    def label(self, name, flush=True):
        self.lines.append(name + ':')
    def __call__(self, text):
        for t in text.strip().split('\n'):
            t = t.strip()
            if not t or t.startswith(';'):
                continue
            self.emit(t)
    def emit(self, text):
        c = parse(text)
        dist = 0; req = 0
        for p in reversed(self.hist):
            n = need(p, c)
            if n - dist > req: req = n - dist
            dist += p.ws
            if dist >= 24: break
        while req > 0:
            k = min(req, 16)
            self._push(parse('s_nop %d' % (k - 1))); self.nnop += 1
            req -= k
        self._push(c)
        if c.kind == 'vmem':
            self.tok += 1; self.vmq.append(self.tok); return self.tok
        if c.kind == 'ds':
            self.tok += 1; self.lgq.append(self.tok); return self.tok
        return None
    def _push(self, c):
        self.lines.append('    ' + c.text)
        self.hist.append(c)
        if len(self.hist) > 64: self.hist = self.hist[-40:]
    def wait_vm(self, tok, extra=''):
        if tok not in self.vmq: return
        idx = self.vmq.index(tok)
        n = len(self.vmq) - 1 - idx
        assert n <= 63, n
        self.emit('s_waitcnt vmcnt(%d)%s' % (n, extra))
        self.vmq = self.vmq[idx + 1:]
    def wait_lg(self, tok):
        if tok not in self.lgq: return
        idx = self.lgq.index(tok)
        n = len(self.lgq) - 1 - idx
        if n > 15: n = 15; idx = len(self.lgq) - 1 - n
        self.emit('s_waitcnt lgkmcnt(%d)' % n)
        self.lgq = self.lgq[idx + 1:]
    def wait_all_vm(self):
        self.emit('s_waitcnt vmcnt(0)'); self.vmq = []
    def wait_all_lg(self):
        self.emit('s_waitcnt lgkmcnt(0)'); self.lgq = []
    def reset_queues(self):
        self.vmq = []; self.lgq = []
    def pad(self, n=24):
        self.hist = []
    def text(self): return '\n'.join(self.lines) + '\n'

def vr(a, n=1):
    return 'v%d' % a if n == 1 else 'v[%d:%d]' % (a, a + n - 1)
def sr(a, n=1):
    return 's%d' % a if n == 1 else 's[%d:%d]' % (a, a + n - 1)
```

```python
import sys
from asmlib import *

NAME = "gated_mix__ssm_conv_h3__glu_gated_bilinear__prompt"
WS_H, SZ_H = 0, 6291456
WS_WD, SZ_WD = 6291456, 1966080
WS_UT, SZ_UT = 8257536, 2621440
WS_Y2, SZ_Y2 = 10878976, 2621440
WS_G, SZ_G = 13500416, 8192
WS_PROF = 16 << 20
SZ_X = 2621440
SZ_W = 1966080

class Cfg:
    prof = False
    h_mimic = True
    out_mimic = True
    nslot = 3

P_Q, P_K, P_V, P_SHK, P_SSMK, P_SSMD, P_BX, P_WG = 16, 18, 20, 22, 24, 26, 28, 30
P_WU, P_WD, P_GW, P_OUT, P_DBG, P_WS = 32, 34, 36, 38, 40, 42

def load_kernargs(a):
    a('s_load_dwordx16 s[16:31], s[0:1], 0')
    a('s_load_dwordx8 s[32:39], s[0:1], 64')
    a('s_load_dwordx4 s[40:43], s[0:1], 96')

def srd(a, d, p, size, off=0):
    if off:
        a('s_add_u32 s%d, s%d, 0x%x' % (d, p, off))
        a('s_addc_u32 s%d, s%d, 0' % (d + 1, p + 1))
    else:
        a('s_mov_b32 s%d, s%d' % (d, p))
        a('s_mov_b32 s%d, s%d' % (d + 1, p + 1))
    a('s_mov_b32 s%d, 0x%x' % (d + 2, size))
    a('s_mov_b32 s%d, 0x00020000' % (d + 3))

PROF_S = 92
class Prof:
    def __init__(self, a, cfg, kidx):
        self.a, self.on, self.kidx, self.n = a, cfg.prof, kidx, 0
    def stamp(self, i):
        if not self.on: return
        a = self.a
        a('s_memrealtime s[100:101]')
        a.emit('s_waitcnt lgkmcnt(0)'); a.lgq = []
        a('s_mov_b32 s%d, s100' % (PROF_S + i))
    def init(self):
        if not self.on: return
        for i in range(7): self.a('s_mov_b32 s%d, 0' % (PROF_S + i))
    def wave(self):
        if self.on: self.a('s_mov_b32 s99, s3')
    def flush(self, s_wave, vt=250):
        if not self.on: return
        a = self.a
        a.wait_all_vm()
        srd(a, 4, P_WS, 1 << 20, WS_PROF)
        a('s_lshl_b32 s8, s2, 9')
        a('s_lshl_b32 s9, s99, 6')
        a('s_add_u32 s8, s8, s9')
        a('s_add_u32 s8, s8, %d' % (self.kidx * 131072))
        a('s_getreg_b32 s9, hwreg(HW_REG_XCC_ID)')
        a('s_getreg_b32 s10, hwreg(HW_REG_HW_ID)')
        a('v_mov_b32 v%d, 0' % vt)
        for i in range(8):
            a('v_mov_b32 v%d, s%d' % (vt + 1, PROF_S + i))
            a('buffer_store_dword v%d, v%d, s[4:7], s8 offen offset:%d' % (vt + 1, vt, 4 * i))
            a.wait_all_vm()
        a('v_mov_b32 v%d, s9' % (vt + 1))
        a('buffer_store_dword v%d, v%d, s[4:7], s8 offen offset:32' % (vt + 1, vt))
        a.wait_all_vm()
        a('v_mov_b32 v%d, s10' % (vt + 1))
        a('buffer_store_dword v%d, v%d, s[4:7], s8 offen offset:36' % (vt + 1, vt))
        a.wait_all_vm()

def kernel_header(a, name):
    a.raw('.globl %s' % name)
    a.raw('.p2align 8')
    a.raw('.type %s,@function' % name)
    a.raw('%s:' % name)
    a.pad(); a.reset_queues()

def kernel_desc(name, vgpr, sgpr=102):
    acc = (vgpr + 3) // 4 * 4
    return '''.section .rodata,"a"
.p2align 6
.amdhsa_kernel %s
  .amdhsa_next_free_vgpr %d
  .amdhsa_next_free_sgpr %d
  .amdhsa_accum_offset %d
  .amdhsa_group_segment_fixed_size 0
  .amdhsa_kernarg_size 112
  .amdhsa_user_sgpr_count 2
  .amdhsa_user_sgpr_kernarg_segment_ptr 1
  .amdhsa_system_sgpr_workgroup_id_x 1
.end_amdhsa_kernel
''' % (name, vgpr, sgpr, acc)

def unpack_lo(a, d, s): a('v_lshlrev_b32 v%d, 16, v%d' % (d, s))
def unpack_hi(a, d, s): a('v_and_b32 v%d, 0xffff0000, v%d' % (d, s))

SLOT = 41088
OFF_GATE, OFF_UP = 16384, 16384 + 12320
NSTAGE = 10

def gen_k1(a, cfg):
    nslot = cfg.nslot
    SCR = nslot * SLOT
    kernel_header(a, 'k1_kernel')
    prof = Prof(a, cfg, 0)
    a('s_cmp_ge_u32 s2, 256')
    a('s_cbranch_scc1 K1_done')
    load_kernargs(a)
    prof.init()
    a('v_lshrrev_b32 v2, 6, v0')
    a('v_and_b32 v1, 63, v0')
    a('v_readfirstlane_b32 s3, v2')
    prof.wave()
    a('s_and_b32 s4, s2, 7')
    a('s_lshr_b32 s5, s2, 3')
    a('s_lshr_b32 s6, s4, 1')
    a('s_and_b32 s7, s5, 3')
    a('s_and_b32 s8, s4, 1')
    a('s_lshl_b32 s8, s8, 3')
    a('s_lshr_b32 s9, s5, 2')
    a('s_add_u32 s8, s8, s9')
    prof.stamp(0)
    a('s_cmp_ge_u32 s3, 4')
    a('s_cbranch_scc1 K1_loader')

    a('s_and_b32 s10, s3, 1')
    a('s_lshr_b32 s11, s3, 1')
    a('v_and_b32 v2, 31, v1')
    a('v_lshrrev_b32 v3, 5, v1')
    a('v_lshrrev_b32 v9, 1, v2')
    a('v_and_b32 v9, 7, v9')
    a('v_xor_b32 v9, v9, v3')
    a('v_lshlrev_b32 v9, 4, v9')
    a('v_lshl_add_u32 v9, v2, 7, v9')
    a('s_lshl_b32 s12, s11, 13')
    a('v_add_u32 v4, s12, v9')
    a('v_xor_b32 v5, 32, v4')
    a('v_xor_b32 v6, 64, v4')
    a('v_xor_b32 v7, 96, v4')
    a('v_bfe_u32 v9, v1, 4, 1')
    a('v_mul_u32_u24 v8, 12320, v9')
    a('v_bfe_u32 v9, v1, 2, 2')
    a('v_lshl_add_u32 v9, v3, 3, v9')
    a('v_mul_u32_u24 v9, 192, v9')
    a('v_add_u32 v8, v8, v9')
    a('v_and_b32 v9, 3, v1')
    a('v_lshl_add_u32 v8, v9, 3, v8')
    a('s_mul_i32 s12, s10, 96')
    a('s_add_u32 s12, s12, %d' % OFF_GATE)
    a('v_add_u32 v8, s12, v8')
    a('v_lshrrev_b32 v9, 4, v2')
    a('v_lshlrev_b32 v10, 10, v9')
    a('v_lshl_add_u32 v10, v3, 8, v10')
    a('v_and_b32 v9, 15, v2')
    a('v_lshl_add_u32 v10, v9, 4, v10')
    a.emit('s_waitcnt lgkmcnt(0)')
    srd(a, 44, P_WS, SZ_H, WS_H)
    a('s_lshl_b32 s12, s6, 2')
    a('s_add_u32 s12, s12, s7')
    a('s_lshl_b32 s12, s12, 1')
    a('s_add_u32 s12, s12, s11')
    a('s_mul_i32 s12, s12, 196608')
    a('s_mul_i32 s13, s8, 6')
    a('s_mul_i32 s14, s10, 3')
    a('s_add_u32 s13, s13, s14')
    for tt in range(3):
        a('s_add_u32 s14, s13, %d' % tt)
        a('s_lshr_b32 s15, s14, 1')
        a('s_lshl_b32 s15, s15, 12')
        a('s_and_b32 s14, s14, 1')
        a('s_lshl_b32 s14, s14, 9')
        a('s_add_u32 s14, s14, s15')
        a('s_add_u32 s%d, s14, s12' % (48 + tt))
    ACC = 64
    FB = [16, 40]
    def acc(tt, b): return ACC + (tt * 2 + b) * 16
    def reads(buf, ks):
        f = FB[buf]
        L = []
        def A(tt):
            return ['ds_read_b64_tr_b16 v[%d:%d], v8 offset:%d' % (f + 4 * tt + 2 * t, f + 4 * tt + 2 * t + 1, ks * 3072 + t * 768 + tt * 32) for t in range(2)]
        def B(b):
            return ['ds_read_b128 v[%d:%d], v%d offset:%d' % (f + 12 + 4 * b, f + 15 + 4 * b, 4 + ks, b * 4096)]
        return A(0) + B(0) + B(1) + A(1) + A(2)
    order = [(0, 0, 2), (0, 1, 3), (1, 0, 5), (1, 1, 5), (2, 0, 7), (2, 1, 7)]
    a('s_barrier')
    prof.stamp(1)
    toks = [a.emit(r) for r in reads(0, 0)]
    cur = 0
    for st in range(NSTAGE):
        for ks in range(4):
            last = (st == NSTAGE - 1 and ks == 3)
            nxt = None
            if not last:
                nxt = reads(1 - cur, (ks + 1) % 4)
            ntoks = []
            f = FB[cur]
            for mi, (tt, b, need_i) in enumerate(order):
                a.wait_lg(toks[need_i])
                c = '0' if (st == 0 and ks == 0) else vr(acc(tt, b), 16)
                a('v_mfma_f32_32x32x16_bf16 %s, %s, %s, %s' % (vr(acc(tt, b), 16), vr(f + 4 * tt, 4), vr(f + 12 + 4 * b, 4), c))
                if nxt is not None:
                    if ks == 3:
                        if mi == 0:
                            a.wait_all_lg()
                            d = SLOT if (st + 1) % nslot else -(nslot - 1) * SLOT
                            for r in (4, 5, 6, 7, 8):
                                a('v_add_u32 v%d, 0x%x, v%d' % (r, d & 0xffffffff, r))
                            a('s_barrier')
                        sched = {1: 3, 2: 2, 3: 2, 4: 1}
                    else:
                        sched = {0: 2, 1: 2, 2: 2, 3: 2}
                    for _ in range(sched.get(mi, 0)):
                        ntoks.append(a.emit(nxt[len(ntoks)]))
            toks = ntoks
            cur = 1 - cur
    prof.stamp(2)
    T = 16
    for tt in range(3):
        for b in range(2):
            x = acc(tt, b)
            o = T + ((tt * 2 + b) % 2) * 4
            w = 24 + ((tt * 2 + b) % 2) * 16
            if cfg.h_mimic:
                for p in range(4):
                    a('v_cvt_pk_bf16_f32 v%d, v%d, v%d' % (w + p, x + 2 * p, x + 2 * p + 1))
                    a('v_cvt_pk_bf16_f32 v%d, v%d, v%d' % (w + 4 + p, x + 8 + 2 * p, x + 8 + 2 * p + 1))
                for p in range(4):
                    unpack_lo(a, x + 2 * p, w + p); unpack_hi(a, x + 2 * p + 1, w + p)
                    unpack_lo(a, x + 8 + 2 * p, w + 4 + p); unpack_hi(a, x + 8 + 2 * p + 1, w + 4 + p)
            for p in range(4):
                a('v_pk_mul_f32 v[%d:%d], v[%d:%d], v[%d:%d]' % (x + 2 * p, x + 2 * p + 1, x + 2 * p, x + 2 * p + 1, x + 8 + 2 * p, x + 9 + 2 * p))
            for p in range(4):
                a('v_cvt_pk_bf16_f32 v%d, v%d, v%d' % (o + p, x + 2 * p, x + 2 * p + 1))
            a('buffer_store_dwordx4 %s, v10, s[44:47], s%d offen offset:%d' % (vr(o, 4), 48 + tt, b * 2048))
    prof.stamp(3)
    prof.flush(3)
    a('s_endpgm')

    a.pad(); a.reset_queues()
    a.label('K1_loader')
    a('s_sub_u32 s3, s3, 4')
    a('v_lshrrev_b32 v9, 3, v1')
    a('v_and_b32 v10, 7, v1')
    a('v_lshrrev_b32 v11, 1, v9')
    a('v_xor_b32 v10, v10, v11')
    a('v_lshlrev_b32 v10, 4, v10')
    a('s_mov_b32 s12, 81920')
    a('v_mul_lo_u32 v9, v9, s12')
    a('v_add_u32 v2, v9, v10')
    a('v_xor_b32 v10, 64, v10')
    a('v_add_u32 v3, v9, v10')
    a('v_add_u32 v3, 256, v3')
    a('v_add_u32 v4, 512, v2')
    a('v_add_u32 v5, 512, v3')
    for i in range(3):
        a('v_add_u32 v9, %d, v1' % (64 * i))
        a('v_mul_u32_u24 v10, 5462, v9')
        a('v_lshrrev_b32 v10, 16, v10')
        a('v_mul_u32_u24 v11, 12, v10')
        a('v_sub_u32 v11, v9, v11')
        a('v_mul_u32_u24 v10, 3072, v10')
        a('v_lshl_add_u32 v10, v11, 4, v10')
        a('v_subrev_u32 v%d, %d, v10' % (6 + i, 1024 * i))
    a('s_lshl_b32 s12, s6, 9')
    a('s_lshl_b32 s13, s7, 4')
    a('s_add_u32 s12, s12, s13')
    a('s_lshl_b32 s13, s3, 2')
    a('s_add_u32 s12, s12, s13')
    a('s_mul_i32 s12, s12, 1280')
    a('s_mul_i32 s13, s3, 49152')
    a('s_mul_i32 s14, s8, 192')
    a('s_add_u32 s13, s13, s14')
    a('s_lshl_b32 s14, s3, 12')
    a('s_mul_i32 s15, s3, 3072')
    a.emit('s_waitcnt lgkmcnt(0)')
    srd(a, 44, P_Q, SZ_X)
    srd(a, 48, P_WG, SZ_W)
    srd(a, 52, P_WU, SZ_W)
    stage_tok = {}
    def issue_stage(st):
        base = (st % nslot) * SLOT
        a('s_add_u32 m0, s14, %d' % base)
        for i in range(4):
            a('buffer_load_dwordx4 v%d, s[44:47], s12 offen offset:%d lds' % (2 + i, 1024 * i))
        a('s_add_u32 m0, s15, %d' % (base + OFF_GATE))
        for i in range(3):
            a('buffer_load_dwordx4 v%d, s[48:51], s13 offen offset:%d lds' % (6 + i, 1024 * i))
        a('s_add_u32 m0, s15, %d' % (base + OFF_UP))
        for i in range(3):
            t = a.emit('buffer_load_dwordx4 v%d, s[52:55], s13 offen offset:%d lds' % (6 + i, 1024 * i))
        stage_tok[st] = t
        a('s_add_u32 s12, s12, 128')
        a('s_add_u32 s13, s13, 196608')
    issue_stage(0)
    srd(a, 80, P_GW, 1280)
    a('s_lshl_b32 s56, s2, 3')
    a('s_lshl_b32 s57, s3, 1')
    a('s_add_u32 s56, s56, s57')
    a('v_lshrrev_b32 v9, 5, v1')
    a('v_add_u32 v9, s56, v9')
    a('v_and_b32 v10, 31, v1')
    a('v_lshlrev_b32 v11, 4, v10')
    a('v_mul_u32_u24 v12, 1280, v9')
    a('v_add_u32 v12, v12, v11')
    a('v_cmp_gt_u32 vcc, 16, v10')
    a('v_mov_b32 v13, 0x80000000')
    a('v_cndmask_b32 v13, v13, v12, vcc')
    GX, GW = 132, 144
    a('buffer_load_dwordx4 %s, v12, s[44:47], 0 offen' % vr(GX, 4))
    a('buffer_load_dwordx4 %s, v12, s[44:47], 0 offen offset:512' % vr(GX + 4, 4))
    a('buffer_load_dwordx4 %s, v13, s[44:47], 0 offen offset:1024' % vr(GX + 8, 4))
    a('buffer_load_dwordx4 %s, v11, s[80:83], 0 offen' % vr(GW, 4))
    a('buffer_load_dwordx4 %s, v11, s[80:83], 0 offen offset:512' % vr(GW + 4, 4))
    g_tok = a.emit('buffer_load_dwordx4 %s, v11, s[80:83], 0 offen offset:1024' % vr(GW + 8, 4))
    a('v_lshlrev_b32 v14, 2, v9')
    a('v_cmp_eq_u32 vcc, 31, v10')
    a('v_mov_b32 v15, 0x80000000')
    a('v_cndmask_b32 v14, v15, v14, vcc')
    a('s_cmp_ge_u32 s5, 20')
    a('s_cbranch_scc1 K1_loaderB')
    saved = (list(a.vmq), dict(stage_tok), list(a.hist))

    def g_compute():
        a.wait_vm(g_tok)
        a('v_mov_b32 v16, 0')
        for i in range(12):
            a('v_dot2_f32_bf16 v16, v%d, v%d, v16' % (GX + i, GW + i))
        a('s_nop 2')
        for sh in (1, 2, 4, 8):
            a('v_add_f32_dpp v16, v16, v16 row_shr:%d row_mask:0xf bank_mask:0xf bound_ctrl:0' % sh)
        a('v_add_f32_dpp v16, v16, v16 row_bcast:15 row_mask:0xa bank_mask:0xf')
        a('v_cvt_pk_bf16_f32 v16, v16, v16')
        a('v_and_b32 v16, 0xffff0000, v16')
        a('v_mul_f32 v16, 0xbfb8aa3b, v16')
        a('v_exp_f32 v16, v16')
        a('v_add_f32 v16, 1.0, v16')
        a('v_rcp_f32 v16, v16')
        a('v_cvt_pk_bf16_f32 v16, v16, v16')
        a('v_and_b32 v16, 0xffff0000, v16')
        srd(a, 84, P_WS, SZ_G, WS_G)
        a('buffer_store_dword v16, v14, s[84:87], 0 offen')
    def sentinel():
        srd(a, 88, P_WS, SZ_Y2, WS_Y2)
        a('s_lshl_b32 s56, s2, 2')
        a('s_add_u32 s56, s56, s3')
        a('s_mul_i32 s56, s56, 3072')
        a('v_lshlrev_b32 v17, 4, v1')
        for i in range(4): a('v_mov_b32 v%d, -1' % (20 + i))
        for i in range(3):
            a('buffer_store_dwordx4 v[20:23], v17, s[88:91], s56 offen offset:%d' % (1024 * i))
    def main_loop(slices):
        for st in range(1, nslot): issue_stage(st)
        for i in range(NSTAGE):
            a.wait_vm(stage_tok[i])
            a('s_barrier')
            if i == 0: prof.stamp(1)
            if i >= 1 and i + nslot - 1 < NSTAGE: issue_stage(i + nslot - 1)
            if i < len(slices): slices[i]()
        prof.stamp(2)
        prof.flush(3)
        a('s_endpgm')

    srd(a, 56, P_K, SZ_X); srd(a, 60, P_V, SZ_X); srd(a, 64, P_SHK, 5120)
    a('s_cmp_ge_u32 s5, 10')
    a('s_cselect_b32 s9, 1, 0')
    a('s_cselect_b32 s10, 10, 0')
    a('s_sub_u32 s10, s5, s10')
    a('s_lshl_b32 s11, s4, 1')
    a('s_add_u32 s9, s9, s11')
    a('s_lshl_b32 s9, s9, 7')
    a('s_lshl_b32 s11, s3, 5')
    a('s_add_u32 s9, s9, s11')
    a('v_lshrrev_b32 v9, 3, v1')
    a('v_lshlrev_b32 v9, 2, v9')
    a('v_add_u32 v9, s9, v9')
    a('v_and_b32 v10, 7, v1')
    a('v_mul_u32_u24 v11, 1280, v9')
    a('v_lshl_add_u32 v11, v10, 4, v11')
    a('s_lshl_b32 s11, s10, 7')
    a('v_add_u32 v11, s11, v11')
    a('v_subrev_u32 v12, 3840, v11')
    a('v_subrev_u32 v13, 2560, v11')
    a('v_subrev_u32 v15, 1280, v11')
    KR, VR_, WR = 32, 60, 76
    a('buffer_load_dwordx4 %s, v12, s[56:59], 0 offen' % vr(KR, 4))
    a('buffer_load_dwordx4 %s, v13, s[56:59], 0 offen' % vr(KR + 4, 4))
    a('buffer_load_dwordx4 %s, v15, s[56:59], 0 offen' % vr(KR + 8, 4))
    for i in range(4):
        a('buffer_load_dwordx4 %s, v11, s[56:59], 0 offen offset:%d' % (vr(KR + 12 + 4 * i, 4), 1280 * i))
    for i in range(4):
        a('buffer_load_dwordx4 %s, v11, s[60:63], 0 offen offset:%d' % (vr(VR_ + 4 * i, 4), 1280 * i))
    a('s_lshl_b32 s11, s10, 9')
    a('v_lshlrev_b32 v12, 6, v10')
    a('v_add_u32 v12, s11, v12')
    for i in range(4):
        kv_tok = a.emit('buffer_load_dwordx4 %s, v12, s[64:67], 0 offen offset:%d' % (vr(WR + 4 * i, 4), 16 * i))
    a('s_lshl_b32 s11, s10, 18')
    a('v_lshlrev_b32 v18, 15, v10')
    a('v_add_u32 v18, s11, v18')
    a('v_lshl_add_u32 v18, v9, 1, v18')
    def kv_part(pairs):
        def f():
            a.wait_vm(kv_tok)
            if pairs[0] == 0:
                srd(a, 68, P_WS, SZ_UT, WS_UT)
                for c in range(8): a('s_mov_b32 s%d, %d' % (72 + c, 4096 * c))
            U = 92
            for cp in pairs:
                for r in range(7):
                    unpack_lo(a, U + 2 * r, KR + 4 * r + cp); unpack_hi(a, U + 2 * r + 1, KR + 4 * r + cp)
                for r in range(4):
                    unpack_lo(a, U + 14 + 2 * r, VR_ + 4 * r + cp); unpack_hi(a, U + 15 + 2 * r, VR_ + 4 * r + cp)
                for h in range(2):
                    unpack_lo(a, U + 22 + h, WR + 4 * cp + 2 * h); unpack_hi(a, U + 24 + h, WR + 4 * cp + 2 * h)
                    unpack_lo(a, U + 26 + h, WR + 4 * cp + 2 * h + 1); unpack_hi(a, U + 28 + h, WR + 4 * cp + 2 * h + 1)
                AC = U + 30
                def P(x): return 'v[%d:%d]' % (x, x + 1)
                for i in range(4):
                    a('v_pk_mul_f32 %s, %s, %s' % (P(AC + 2 * i), P(U + 2 * i), P(U + 28)))
                for tap in (2, 1, 0):
                    for i in range(4):
                        a('v_pk_fma_f32 %s, %s, %s, %s' % (P(AC + 2 * i), P(U + 2 * (i + 3 - tap)), P(U + 22 + 2 * tap), P(AC + 2 * i)))
                for i in range(4):
                    a('v_pk_mul_f32 %s, %s, %s' % (P(AC + 2 * i), P(AC + 2 * i), P(U + 14 + 2 * i)))
                O = 24 + (cp & 1) * 4
                for h in range(2):
                    a('v_cvt_pk_bf16_f32 v%d, v%d, v%d' % (O + 2 * h, AC + h, AC + 2 + h))
                    a('v_cvt_pk_bf16_f32 v%d, v%d, v%d' % (O + 2 * h + 1, AC + 4 + h, AC + 6 + h))
                for h in range(2):
                    a('buffer_store_dwordx2 %s, v18, s[68:71], s%d offen' % (vr(O + 2 * h, 2), 72 + 2 * cp + h))
        return f
    main_loop([kv_part([0, 1]), kv_part([2, 3]), lambda: (g_compute(), sentinel())])

    a.vmq, stage_tok, a.hist = list(saved[0]), dict(saved[1]), list(saved[2])
    a.lgq = []
    a.label('K1_loaderB')
    srd(a, 72, P_WD, SZ_W)
    a('s_mul_i32 s9, s4, 12')
    a('s_add_u32 s9, s9, s5')
    a('s_sub_u32 s9, s9, 20')
    a('s_lshl_b32 s9, s9, 2')
    a('s_add_u32 s9, s9, s3')
    a('s_lshr_b32 s10, s9, 3')
    a('s_and_b32 s9, s9, 7')
    a('s_mul_i32 s11, s10, 40960')
    a('s_mul_i32 s56, s9, 160')
    a('s_add_u32 s11, s11, s56')
    a('s_mul_i32 s57, s3, 5120')
    a('s_add_u32 s57, s57, %d' % SCR)
    for i in range(5):
        a('v_add_u32 v9, %d, v1' % (64 * i))
        a('v_mul_u32_u24 v10, 6554, v9')
        a('v_lshrrev_b32 v10, 16, v10')
        a('v_mul_u32_u24 v11, 10, v10')
        a('v_sub_u32 v11, v9, v11')
        a('v_mul_u32_u24 v10, 1280, v10')
        a('v_lshl_add_u32 v10, v11, 4, v10')
        a('s_add_u32 m0, s57, %d' % (1024 * i))
        wd_tok = a.emit('buffer_load_dwordx4 v10, s[72:75], s11 offen lds')
    def wd_part():
        a('v_lshrrev_b32 v9, 5, v1')
        a('v_lshlrev_b32 v9, 4, v9')
        a('v_bfe_u32 v10, v1, 2, 3')
        a('v_add_u32 v9, v9, v10')
        a('v_mul_u32_u24 v9, 160, v9')
        a('v_and_b32 v10, 3, v1')
        a('v_lshl_add_u32 v9, v10, 3, v9')
        a('v_add_u32 v9, s57, v9')
        srd(a, 76, P_WS, SZ_WD, WS_WD)
        a('s_mul_i32 s56, s9, 245760')
        a('s_mul_i32 s58, s10, 5120')
        a('s_add_u32 s56, s56, s58')
        a('s_add_u32 s58, s56, 4096')
        a('v_lshlrev_b32 v17, 4, v1')
        a.wait_vm(wd_tok)
        tk = []
        for dl in range(5):
            for t in range(2):
                tk.append(a.emit('ds_read_b64_tr_b16 v[%d:%d], v9 offset:%d' % (32 + 4 * dl + 2 * t, 33 + 4 * dl + 2 * t, t * 1280 + dl * 32)))
        for dl in range(5):
            a.wait_lg(tk[2 * dl + 1])
            if dl < 4:
                a('buffer_store_dwordx4 %s, v17, s[76:79], s56 offen offset:%d' % (vr(32 + 4 * dl, 4), 1024 * dl))
            else:
                a('buffer_store_dwordx4 %s, v17, s[76:79], s58 offen' % vr(32 + 4 * dl, 4))
    main_loop([wd_part, lambda: (g_compute(), sentinel())])
    a.label('K1_done')
    a('s_endpgm')
    return SCR + 4 * 5120

CV = 9216
RED = 4 * CV
def gen_k2(a, cfg):
    kernel_header(a, 'k2_kernel')
    prof = Prof(a, cfg, 1)
    a('s_cmp_ge_u32 s2, 256')
    a('s_cbranch_scc1 K2_done')
    load_kernargs(a)
    prof.init()
    a('v_lshrrev_b32 v2, 6, v0')
    a('v_and_b32 v1, 63, v0')
    a('v_readfirstlane_b32 s3, v2')
    prof.wave()
    a('s_and_b32 s4, s2, 7')
    a('s_lshr_b32 s5, s2, 3')
    a('s_lshr_b32 s6, s4, 1')
    a('s_and_b32 s7, s5, 7')
    a('s_and_b32 s8, s4, 1')
    a('s_lshl_b32 s8, s8, 2')
    a('s_lshr_b32 s9, s5, 3')
    a('s_add_u32 s8, s8, s9')
    prof.stamp(0)
    a('s_and_b32 s10, s3, 3')
    a('v_and_b32 v2, 7, v1')
    a('v_lshlrev_b32 v2, 6, v2')
    a('v_bfe_u32 v3, v1, 3, 1')
    a('v_add_u32 v2, v2, v3')
    a('s_lshl_b32 s11, s6, 9')
    a('s_lshl_b32 s12, s7, 3')
    a('s_add_u32 s11, s11, s12')
    a('s_lshl_b32 s12, s10, 1')
    a('s_add_u32 s11, s11, s12')
    a('v_add_u32 v2, s11, v2')
    a('v_mul_u32_u24 v3, 1280, v2')
    a('v_lshrrev_b32 v4, 4, v1')
    a('v_lshl_add_u32 v3, v4, 3, v3')
    a('s_mul_i32 s12, s8, 160')
    a('v_add_u32 v3, s12, v3')
    a('v_lshlrev_b32 v2, 2, v2')
    a('v_lshlrev_b32 v4, 4, v1')
    a('s_cmp_ge_u32 s3, 4')
    a('s_cbranch_scc1 K2_conv')

    a('v_add_u32 v5, 4096, v4')
    a('s_lshl_b32 s11, s6, 3')
    a('s_add_u32 s11, s11, s7')
    a('s_mul_i32 s11, s11, 196608')
    a('s_mul_i32 s12, s3, 49152')
    a('s_add_u32 s11, s11, s12')
    a('s_mul_i32 s12, s8, 245760')
    a('s_mul_i32 s13, s3, 61440')
    a('s_add_u32 s12, s12, s13')
    a.emit('s_waitcnt lgkmcnt(0)')
    srd(a, 44, P_WS, SZ_H, WS_H)
    srd(a, 48, P_WS, SZ_WD, WS_WD)
    DEPTH = 4
    BUF = 8
    ACC = 152
    def acc(dl, sg): return ACC + (sg * 5 + dl) * 4
    toks = {}
    def issue(k):
        b = BUF + (k % DEPTH) * 36
        for dl in range(5):
            if dl < 4:
                a('buffer_load_dwordx4 %s, v4, s[48:51], s12 offen offset:%d' % (vr(b + 4 * dl, 4), 1024 * dl))
            else:
                a('buffer_load_dwordx4 %s, v5, s[48:51], s12 offen' % vr(b + 16, 4))
        for sg in range(4):
            toks[(k, sg)] = a.emit('buffer_load_dwordx4 %s, v4, s[44:47], s11 offen offset:%d' % (vr(b + 20 + 4 * sg, 4), 1024 * sg))
        a('s_add_u32 s11, s11, 4096')
        a('s_add_u32 s12, s12, 5120')
    for k in range(DEPTH): issue(k)
    srd(a, 52, P_WS, SZ_G, WS_G)
    srd(a, 56, P_OUT, SZ_X)
    for k in range(12):
        b = BUF + (k % DEPTH) * 36
        for sg in range(4):
            a.wait_vm(toks[(k, sg)])
            if k == 0 and sg == 0: prof.stamp(1)
            for dl in range(5):
                c = '0' if k == 0 else vr(acc(dl, sg), 4)
                a('v_mfma_f32_16x16x32_bf16 %s, %s, %s, %s' % (vr(acc(dl, sg), 4), vr(b + 4 * dl, 4), vr(b + 20 + 4 * sg, 4), c))
        if k + DEPTH < 12: issue(k + DEPTH)
        if k == 8:
            gt = a.emit('buffer_load_dword v6, v2, s[52:55], 0 offen')
    prof.stamp(2)
    a('s_mul_i32 s13, s3, 20480')
    a('s_add_u32 s13, s13, %d' % RED)
    a('v_add_u32 v7, s13, v4')
    a('s_nop 7')
    for w in range(4):
        a('s_cmp_eq_u32 s3, %d' % w)
        a('s_cbranch_scc1 K2_fin%d' % w)
    hist0 = list(a.hist); vmq0 = list(a.vmq)
    for w in range(4):
        a.hist = list(hist0); a.vmq = list(vmq0); a.lgq = []
        a.label('K2_fin%d' % w)
        for sg in range(4):
            if sg == w: continue
            for dl in range(5):
                a('ds_write_b128 v7, %s offset:%d' % (vr(acc(dl, sg), 4), sg * 5120 + dl * 1024))
        a.wait_vm(gt)
        a('v_sub_f32 v6, 1.0, v6')
        a('v_cvt_pk_bf16_f32 v6, v6, v6')
        a('v_and_b32 v6, 0xffff0000, v6')
        a('v_add_u32 v7, %d, v4' % (RED + w * 5120))
        a.wait_all_lg()
        a('s_barrier')
        prof.stamp(3)
        tk = {}
        srcs = [x for x in range(4) if x != w] + [4]
        a('v_add_u32 v5, %d, v7' % (40960 + 0))
        for dl in range(5):
            for si, x in enumerate(srcs):
                off = x * 20480 + dl * 1024
                base = 'v7'
                if off >= 40960: base = 'v5'; off -= 40960
                tk[(dl, si)] = a.emit('ds_read_b128 %s, %s offset:%d' % (vr(8 + (dl * 4 + si) * 4, 4), base, off))
        for dl in range(5):
            x = acc(dl, w)
            def P(r): return 'v[%d:%d]' % (r, r + 1)
            for si in range(3):
                a.wait_lg(tk[(dl, si)])
                r = 8 + (dl * 4 + si) * 4
                a('v_pk_add_f32 %s, %s, %s' % (P(x), P(x), P(r)))
                a('v_pk_add_f32 %s, %s, %s' % (P(x + 2), P(x + 2), P(r + 2)))
            ga = 8 + (dl * 4 + 3) * 4
            t = 96 + (dl & 1) * 4
            if cfg.out_mimic:
                a('v_cvt_pk_bf16_f32 v%d, v%d, v%d' % (t, x, x + 1))
                a('v_cvt_pk_bf16_f32 v%d, v%d, v%d' % (t + 1, x + 2, x + 3))
                unpack_lo(a, x, t); unpack_hi(a, x + 1, t); unpack_lo(a, x + 2, t + 1); unpack_hi(a, x + 3, t + 1)
                for i in range(4): a('v_mul_f32 v%d, v6, v%d' % (x + i, x + i))
                a('v_cvt_pk_bf16_f32 v%d, v%d, v%d' % (t, x, x + 1))
                a('v_cvt_pk_bf16_f32 v%d, v%d, v%d' % (t + 1, x + 2, x + 3))
                unpack_lo(a, x, t); unpack_hi(a, x + 1, t); unpack_lo(a, x + 2, t + 1); unpack_hi(a, x + 3, t + 1)
                a.wait_lg(tk[(dl, 3)])
                a('v_pk_add_f32 %s, %s, %s' % (P(x), P(x), P(ga)))
                a('v_pk_add_f32 %s, %s, %s' % (P(x + 2), P(x + 2), P(ga + 2)))
            else:
                a.wait_lg(tk[(dl, 3)])
                for i in range(4): a('v_fma_f32 v%d, v6, v%d, v%d' % (x + i, x + i, ga + i))
            a('v_cvt_pk_bf16_f32 v%d, v%d, v%d' % (t + 2, x, x + 1))
            a('v_cvt_pk_bf16_f32 v%d, v%d, v%d' % (t + 3, x + 2, x + 3))
            a('buffer_store_dwordx2 %s, v3, s[56:59], 0 offen offset:%d' % (vr(t + 2, 2), dl * 32))
        prof.stamp(4)
        prof.flush(3)
        a('s_endpgm')

    a.pad(); a.reset_queues()
    a.label('K2_conv')
    a('s_mul_i32 s13, s10, %d' % CV)
    a.emit('s_waitcnt lgkmcnt(0)')
    srd(a, 44, P_WS, SZ_Y2, WS_Y2)
    a('s_cmp_ge_u32 s5, 20')
    a('s_cbranch_scc1 K2_fetch')
    a('s_setprio 1')
    srd(a, 48, P_SSMK, SZ_X)
    srd(a, 52, P_WS, SZ_UT, WS_UT)
    a('s_mul_i32 s11, s4, 20')
    a('s_add_u32 s11, s11, s5')
    a('s_lshl_b32 s11, s11, 2')
    a('s_add_u32 s11, s11, s10')
    a('s_lshl_b32 s12, s11, 12')
    a('v_bfe_u32 v5, v1, 4, 1')
    a('v_lshlrev_b32 v5, 1, v5')
    a('v_xor_b32 v5, v5, v1')
    a('v_lshlrev_b32 v5, 4, v5')
    PD, QD = 512, 4672
    a('s_add_u32 m0, s13, %d' % QD)
    for i in range(4):
        a('buffer_load_dwordx4 v4, s[52:55], s12 offen offset:%d lds' % (1024 * i))
    a('s_add_u32 m0, s13, %d' % PD)
    for i in range(4):
        dma_tok = a.emit('buffer_load_dwordx4 v5, s[48:51], s12 offen offset:%d lds' % (1024 * i))
    a('s_and_b32 s14, s11, 0xfffffffe')
    a('s_lshl_b32 s14, s14, 1')
    a('s_load_dword s15, s[26:27], s14')
    for i in range(4): a('v_mov_b32 v%d, 0' % (8 + i))
    a('v_and_b32 v6, 31, v1')
    a('v_lshlrev_b32 v6, 4, v6')
    a('v_add_u32 v6, s13, v6')
    a('ds_write_b128 v6, v[8:11]')
    a('v_and_b32 v6, 3, v1')
    a('v_lshlrev_b32 v6, 4, v6')
    a('v_add_u32 v6, s13, v6')
    a('ds_write_b128 v6, v[8:11] offset:4608')
    a('v_bfe_u32 v8, v1, 4, 1')
    a('v_bfe_u32 v9, v1, 2, 2')
    a('v_and_b32 v10, 3, v1')
    a('v_lshrrev_b32 v11, 5, v1')
    VQ, VU, VP = 12, 13, 14
    a('v_add_u32 v6, v10, v9')
    a('v_lshlrev_b32 v6, 3, v6')
    a('v_lshl_add_u32 v6, v8, 5, v6')
    a('v_lshl_add_u32 v6, v11, 6, v6')
    a('s_add_u32 s14, s13, %d' % (QD - 56))
    a('v_add_u32 v%d, s14, v6' % VQ)
    a('s_add_u32 s14, s13, %d' % QD)
    a('v_lshlrev_b32 v6, 1, v1')
    a('v_add_u32 v%d, s14, v6' % VU)
    a('v_lshlrev_b32 v6, 7, v8')
    a('v_lshl_add_u32 v6, v10, 5, v6')
    a('v_lshlrev_b32 v7, 5, v11')
    a('v_sub_u32 v6, v6, v7')
    a('v_lshlrev_b32 v7, 2, v9')
    a('v_sub_u32 v6, v6, v7')
    for j in range(4):
        for t in range(2):
            d = VP + 2 * j + t
            a('v_add_u32 v7, %d, v6' % (256 - 64 * j + 28 - 16 * t))
            a('v_bfe_u32 v8, v7, 7, 1')
            a('v_lshlrev_b32 v8, 4, v8')
            a('v_xor_b32 v7, v7, v8')
            a('v_lshlrev_b32 v7, 1, v7')
            a('v_add_u32 v%d, s13, v7' % d)
    QC = 24
    ACCS = [152, 168]
    PR = 184; NP = 6
    CAR = 208
    UR = 212
    TM = 216
    YO = 232
    for i in range(3): a('v_mov_b32 v%d, 0' % (CAR + i))
    for i in range(4): a('v_mov_b32 v%d, 0' % (UR + i))
    a('s_mov_b32 s60, 0')
    a('s_mov_b32 s61, 0x80000000')
    a('v_mov_b32 v%d, 0xfffefffe' % (TM + 15))
    a.emit('s_waitcnt lgkmcnt(0)'); a.lgq = []
    a('s_and_b32 s14, s11, 1')
    a('s_lshl_b32 s14, s14, 4')
    a('s_lshr_b32 s15, s15, s14')
    a('s_lshl_b32 s15, s15, 16')
    a.wait_vm(dma_tok)
    prof.stamp(1)
    ml = []
    for tau in range(8):
        for kap in range(4 * tau + 4):
            ml.append((tau, kap, 4 * tau - kap))
    def p_reads(idx):
        tau, kap, lam = ml[idx]
        j = (-lam) % 4; b = (lam + j) // 4
        r = PR + (idx % NP) * 4
        return ['ds_read_b64_tr_b16 v[%d:%d], v%d offset:%d' % (r + 2 * t, r + 2 * t + 1, VP + 2 * j + t, 512 * b) for t in range(2)]
    def q_reads(kap):
        r = QC + 4 * kap
        return ['ds_read_b64_tr_b16 v[%d:%d], v%d offset:%d' % (r + 2 * t, r + 2 * t + 1, VQ, 128 * kap + 32 * t) for t in range(2)]
    def epi_ops(tau):
        A = ACCS[tau % 2]
        ops = []
        utok = {}
        for qq in range(4):
            G = 4 * tau + qq
            ops.append(('ds', 'ds_read_u16_d16_hi v%d, v%d offset:%d' % (UR + qq, VU, 128 * G), qq))
        for qq in range(4):
            G = 4 * tau + qq
            D0, D1, D2, D3 = (A + 4 * qq + i for i in range(4))
            y = TM + 4 + qq
            ops.append('v_cndmask_b32 v%d, v%d, v%d, s[60:61]' % (TM, D3, CAR))
            ops.append('v_mov_b32 v%d, v%d' % (CAR, D3))
            ops.append('v_add_f32_dpp v%d, v%d, v%d wave_ror:1 row_mask:0xf bank_mask:0xf' % (D2, TM, D2))
            ops.append('v_cndmask_b32 v%d, v%d, v%d, s[60:61]' % (TM + 1, D2, CAR + 1))
            ops.append('v_mov_b32 v%d, v%d' % (CAR + 1, D2))
            ops.append('v_add_f32_dpp v%d, v%d, v%d wave_ror:1 row_mask:0xf bank_mask:0xf' % (D1, TM + 1, D1))
            ops.append('v_cndmask_b32 v%d, v%d, v%d, s[60:61]' % (TM + 2, D1, CAR + 2))
            ops.append('v_mov_b32 v%d, v%d' % (CAR + 2, D1))
            ops.append('v_add_f32_dpp v%d, v%d, v%d wave_ror:1 row_mask:0xf bank_mask:0xf' % (y, TM + 2, D0))
        for pr in range(2):
            y0, y1 = TM + 4 + 2 * pr, TM + 5 + 2 * pr
            u0, u1 = UR + 2 * pr, UR + 2 * pr + 1
            t0, t1, t2 = TM + 8, TM + 9, TM + 10
            o = YO + ((tau // 2) % 2) * 4 + (tau % 2) * 2 + pr
            ops.append('v_cvt_pk_bf16_f32 v%d, v%d, v%d' % (t2, y0, y1))
            ops.append(('waitu', 2 * pr + 1))
            ops.append('v_mul_f32 v%d, s15, v%d' % (t0, u0))
            ops.append('v_mul_f32 v%d, s15, v%d' % (t1, u1))
            ops.append('v_lshlrev_b32 v%d, 16, v%d' % (y0, t2))
            ops.append('v_and_b32 v%d, 0xffff0000, v%d' % (y1, t2))
            ops.append('v_cvt_pk_bf16_f32 v%d, v%d, v%d' % (t2, t0, t1))
            ops.append('v_lshlrev_b32 v%d, 16, v%d' % (t0, t2))
            ops.append('v_and_b32 v%d, 0xffff0000, v%d' % (t1, t2))
            ops.append('v_add_f32 v%d, v%d, v%d' % (y0, y0, t0))
            ops.append('v_add_f32 v%d, v%d, v%d' % (y1, y1, t1))
            ops.append('v_cvt_pk_bf16_f32 v%d, v%d, v%d' % (o, y0, y1))
            ops.append('v_pk_min_u16 v%d, v%d, v%d' % (o, o, TM + 15))
        if tau % 2 == 1:
            o = YO + ((tau // 2) % 2) * 4
            ops.append('buffer_store_dwordx4 %s, v4, s[44:47], s12 offen offset:%d sc1' % (vr(o, 4), 1024 * (tau // 2)))
        return ops
    utok = {}
    def run_epi(ops, n):
        k = 0
        while ops and k < n:
            o = ops.pop(0)
            if isinstance(o, tuple):
                if o[0] == 'ds': utok[o[2]] = a.emit(o[1]); k += 1
                else: a.wait_lg(utok[o[1]])
            else:
                a.emit(o); k += 1
    PD_AHEAD = 4
    ptok = {}; qtok = {}
    def fetch(idx):
        tau, kap, lam = ml[idx]
        if kap not in qtok:
            qtok[kap] = [a.emit(r) for r in q_reads(kap)][-1]
        ptok[idx] = [a.emit(r) for r in p_reads(idx)][-1]
    for i in range(PD_AHEAD): fetch(i)
    pend = []
    since = 0
    for idx, (tau, kap, lam) in enumerate(ml):
        a.wait_lg(max(ptok[idx], qtok[kap]))
        if kap == 0 and tau >= 2:
            run_epi(pend, 10 ** 6)
        A = ACCS[tau % 2]
        c = '0' if kap == 0 else vr(A, 16)
        a('v_mfma_f32_32x32x16_bf16 %s, %s, %s, %s' % (vr(A, 16), vr(PR + (idx % NP) * 4, 4), vr(QC + 4 * kap, 4), c))
        if idx + PD_AHEAD < len(ml): fetch(idx + PD_AHEAD)
        if kap == 0 and tau >= 1:
            pend = epi_ops(tau - 1); since = 0
        since += 1
        if since >= 3: run_epi(pend, 4)
    run_epi(pend, 10 ** 6)
    pend = epi_ops(7)
    run_epi(pend, 10 ** 6)
    a('s_setprio 0')
    prof.stamp(2)
    a.pad()
    a.label('K2_fetch')
    a.reset_queues()
    srd(a, 48, P_Q, SZ_X)
    srd(a, 52, P_WS, SZ_G, WS_G)
    QV = 24
    for dl in range(5):
        a('buffer_load_dwordx2 %s, v3, s[48:51], 0 offen offset:%d' % (vr(QV + 2 * dl, 2), dl * 32))
    gt = a.emit('buffer_load_dword v6, v2, s[52:55], 0 offen')
    a('s_mul_i32 s11, s8, 327680')
    a('s_lshl_b32 s12, s6, 10')
    a('s_add_u32 s11, s11, s12')
    a('s_lshl_b32 s12, s7, 7')
    a('s_add_u32 s11, s11, s12')
    a('s_lshl_b32 s12, s10, 5')
    a('s_add_u32 s11, s11, s12')
    a('v_lshrrev_b32 v8, 1, v1')
    a('v_lshlrev_b32 v8, 12, v8')
    a('v_and_b32 v9, 1, v1')
    a('v_lshl_add_u32 v8, v9, 4, v8')
    a('v_add_u32 v9, 0x20000, v8')
    a('v_add_u32 v10, 0x40000, v8')
    a('v_cmp_gt_u32 vcc, 32, v1')
    a('v_mov_b32 v11, 0x80000000')
    a('v_cndmask_b32 v10, v11, v10, vcc')
    YV = 40
    a.wait_all_vm()
    a('s_mov_b32 s14, 200000')
    a.label('K2_poll')
    for i in range(3):
        a('buffer_load_dwordx4 %s, v%d, s[44:47], s11 offen sc1' % (vr(YV + 4 * i, 4), 8 + i))
    a.wait_all_vm()
    a('v_max3_u32 v11, v%d, v%d, v%d' % (YV, YV + 1, YV + 2))
    for i in range(3, 11, 2):
        a('v_max3_u32 v11, v11, v%d, v%d' % (YV + i, YV + i + 1))
    a('v_max_u32 v11, v11, v%d' % (YV + 11))
    a('v_cmp_eq_u32 vcc, -1, v11')
    a('s_nop 1')
    a('s_cbranch_vccz K2_got')
    a('s_sleep 8')
    a('s_sub_u32 s14, s14, 1')
    a('s_cmp_lg_u32 s14, 0')
    a('s_cbranch_scc1 K2_poll')
    a.label('K2_got')
    prof.stamp(3)
    a('v_add_u32 v8, s13, v4')
    a('ds_write_b128 v8, %s' % vr(YV, 4))
    a('ds_write_b128 v8, %s offset:1024' % vr(YV + 4, 4))
    a('ds_write_b128 v8, %s offset:2048' % vr(YV + 8, 4))
    a('v_lshlrev_b32 v9, 3, v1')
    a('v_add_u32 v9, s13, v9')
    a.wait_all_lg()
    tk = []
    for dl in range(5):
        tk.append(a.emit('ds_read_b64_tr_b16 %s, v9 offset:%d' % (vr(56 + 2 * dl, 2), dl * 512)))
    a('s_mul_i32 s12, s10, 5120')
    a('s_add_u32 s12, s12, %d' % (RED + 4 * 20480))
    a('v_add_u32 v8, s12, v4')
    for dl in range(5):
        a.wait_lg(tk[dl])
        x = 72 + 4 * dl; y = 96; t = 100
        unpack_lo(a, x, QV + 2 * dl); unpack_hi(a, x + 1, QV + 2 * dl); unpack_lo(a, x + 2, QV + 2 * dl + 1); unpack_hi(a, x + 3, QV + 2 * dl + 1)
        unpack_lo(a, y, 56 + 2 * dl); unpack_hi(a, y + 1, 56 + 2 * dl); unpack_lo(a, y + 2, 57 + 2 * dl); unpack_hi(a, y + 3, 57 + 2 * dl)
        for i in range(4): a('v_mul_f32 v%d, v%d, v%d' % (x + i, x + i, y + i))
        for rep in range(2):
            a('v_cvt_pk_bf16_f32 v%d, v%d, v%d' % (t, x, x + 1))
            a('v_cvt_pk_bf16_f32 v%d, v%d, v%d' % (t + 1, x + 2, x + 3))
            unpack_lo(a, x, t); unpack_hi(a, x + 1, t); unpack_lo(a, x + 2, t + 1); unpack_hi(a, x + 3, t + 1)
            if rep == 0:
                for i in range(4): a('v_mul_f32 v%d, v6, v%d' % (x + i, x + i))
        a('ds_write_b128 v8, %s offset:%d' % (vr(x, 4), dl * 1024))
    a.wait_all_lg()
    a('s_barrier')
    prof.stamp(4)
    prof.flush(3)
    a.label('K2_done')
    a('s_endpgm')
    return RED + 5 * 20480

def generate(cfg):
    a = Asm()
    a.raw('.amdgcn_target "amdgcn-amd-amdhsa--gfx950"')
    a.raw('.text')
    lds1 = gen_k1(a, cfg)
    lds2 = gen_k2(a, cfg)
    hdr = open('cdna_kernels/%s.s.ref' % NAME).read().split('; Override launch')[0]
    hdr += '; generated by dev/gen.py (hand-written generator)\n'
    hdr += '; @launch kernel=k1_kernel grid=(256,1,1) block=(512,1,1) lds=%d\n' % lds1
    hdr += '; @launch kernel=k2_kernel grid=(256,1,1) block=(512,1,1) lds=%d\n' % lds2
    v1 = 256 if cfg.prof else 160
    v2 = 256 if cfg.prof else 240
    return hdr + a.text() + kernel_desc('k1_kernel', v1) + kernel_desc('k2_kernel', v2)

if __name__ == '__main__':
    cfg = Cfg()
    out = sys.argv[1]
    for kv in sys.argv[2:]:
        k, v = kv.split('=')
        setattr(cfg, k, type(getattr(cfg, k))(int(v)))
    open(out, 'w').write(generate(cfg))
```

```python
import sys
from asmlib import *

NAME = "gated_mix__ssm_conv_h3__glu_gated_bilinear__prompt"
WS_H, SZ_H = 0, 6291456
WS_WD, SZ_WD = 6291456, 1966080
WS_UT, SZ_UT = 8257536, 2621440
WS_Y2, SZ_Y2 = 10878976, 2621440
WS_G, SZ_G = 13500416, 8192
WS_PROF = 16 << 20
SZ_X = 2621440
SZ_W = 1966080

class Cfg:
    prof = False
    h_mimic = True
    out_mimic = True
    nslot = 3
    k1_noaux = False
    k1_nomfma = False
    k1_noload = False
    k2_noconv = False
    k2_nogemm = False
    nt = False
    wsbase = 0

P_Q, P_K, P_V, P_SHK, P_SSMK, P_SSMD, P_BX, P_WG = 16, 18, 20, 22, 24, 26, 28, 30
P_WU, P_WD, P_GW, P_OUT, P_DBG, P_WS = 32, 34, 36, 38, 40, 42

def load_kernargs(a):
    a('s_load_dwordx16 s[16:31], s[0:1], 0')
    a('s_load_dwordx8 s[32:39], s[0:1], 64')
    a('s_load_dwordx4 s[40:43], s[0:1], 96')

WSBASE = [0]
def srd(a, d, p, size, off=0):
    if p == P_WS and off < WS_PROF: off += WSBASE[0]
    if off:
        a('s_add_u32 s%d, s%d, 0x%x' % (d, p, off))
        a('s_addc_u32 s%d, s%d, 0' % (d + 1, p + 1))
    else:
        a('s_mov_b32 s%d, s%d' % (d, p))
        a('s_mov_b32 s%d, s%d' % (d + 1, p + 1))
    a('s_mov_b32 s%d, 0x%x' % (d + 2, size))
    a('s_mov_b32 s%d, 0x00020000' % (d + 3))

PROF_S = 91
class Prof:
    def __init__(self, a, cfg, kidx):
        self.a, self.on, self.kidx = a, cfg.prof, kidx
    def start(self):
        if not self.on: return
        self.a('s_memrealtime s[98:99]')
        for i in range(1, 7): self.a('s_mov_b32 s%d, 0' % (PROF_S + i))
    def stamp(self, i, op='s_memrealtime'):
        if not self.on: return
        a = self.a
        a('%s s[100:101]' % op)
        a.emit('s_waitcnt lgkmcnt(0)'); a.lgq = []
        a('s_mov_b32 s%d, s100' % (PROF_S + i))
    def cyc(self, i): self.stamp(i, 's_memtime')
    def flush(self, s_wave=None, vt=250):
        if not self.on: return
        a = self.a
        a('v_lshrrev_b32 v%d, 6, v0' % vt)
        a('v_readfirstlane_b32 s9, v%d' % vt)
        srd(a, 4, P_WS, 1 << 20, WS_PROF)
        a('s_lshl_b32 s8, s2, 9')
        a('s_lshl_b32 s9, s9, 6')
        a('s_add_u32 s8, s8, s9')
        a('s_add_u32 s8, s8, %d' % (self.kidx * 131072))
        a('s_getreg_b32 s9, hwreg(HW_REG_XCC_ID)')
        a('s_getreg_b32 s10, hwreg(HW_REG_HW_ID)')
        a('v_mov_b32 v%d, 0' % (vt + 1))
        a('v_writelane_b32 v%d, s98, 0' % (vt + 1))
        for i in range(1, 7):
            a('v_writelane_b32 v%d, s%d, %d' % (vt + 1, PROF_S + i, i))
        a('v_writelane_b32 v%d, s9, 8' % (vt + 1))
        a('v_writelane_b32 v%d, s10, 9' % (vt + 1))
        a('v_and_b32 v%d, 63, v0' % vt)
        a('v_lshlrev_b32 v%d, 2, v%d' % (vt, vt))
        a('v_cmp_gt_u32 vcc, 64, v%d' % vt)
        a('v_mov_b32 v%d, 0x80000000' % (vt + 2))
        a('v_cndmask_b32 v%d, v%d, v%d, vcc' % (vt, vt + 2, vt))
        a('buffer_store_dword v%d, v%d, s[4:7], s8 offen' % (vt + 1, vt))

def kernel_header(a, name):
    a.raw('.globl %s' % name)
    a.raw('.p2align 8')
    a.raw('.type %s,@function' % name)
    a.raw('%s:' % name)
    a.pad(); a.reset_queues()

def kernel_desc(name, vgpr, sgpr=102):
    acc = (vgpr + 3) // 4 * 4
    return '''.section .rodata,"a"
.p2align 6
.amdhsa_kernel %s
  .amdhsa_next_free_vgpr %d
  .amdhsa_next_free_sgpr %d
  .amdhsa_accum_offset %d
  .amdhsa_group_segment_fixed_size 0
  .amdhsa_kernarg_size 112
  .amdhsa_user_sgpr_count 2
  .amdhsa_user_sgpr_kernarg_segment_ptr 1
  .amdhsa_system_sgpr_workgroup_id_x 1
.end_amdhsa_kernel
''' % (name, vgpr, sgpr, acc)

def unpack_lo(a, d, s): a('v_lshlrev_b32 v%d, 16, v%d' % (d, s))
def unpack_hi(a, d, s): a('v_and_b32 v%d, 0xffff0000, v%d' % (d, s))

SLOT = 41088
OFF_GATE, OFF_UP = 16384, 16384 + 12320
NSTAGE = 10

def gen_k1(a, cfg):
    nslot = cfg.nslot
    SCR = nslot * SLOT
    kernel_header(a, 'k1_kernel')
    prof = Prof(a, cfg, 0)
    prof.start()
    a('s_cmp_ge_u32 s2, 256')
    a('s_cbranch_scc1 K1_done')
    load_kernargs(a)
    a('v_lshrrev_b32 v2, 6, v0')
    a('v_and_b32 v1, 63, v0')
    a('v_readfirstlane_b32 s3, v2')
    a('s_and_b32 s4, s2, 7')
    a('s_lshr_b32 s5, s2, 3')
    a('s_lshr_b32 s6, s4, 1')
    a('s_and_b32 s7, s5, 3')
    a('s_and_b32 s8, s4, 1')
    a('s_lshl_b32 s8, s8, 3')
    a('s_lshr_b32 s9, s5, 2')
    a('s_add_u32 s8, s8, s9')
    a('s_cmp_ge_u32 s3, 4')
    a('s_cbranch_scc1 K1_loader')

    a('s_and_b32 s10, s3, 1')
    a('s_lshr_b32 s11, s3, 1')
    a('v_and_b32 v2, 31, v1')
    a('v_lshrrev_b32 v3, 5, v1')
    a('v_lshrrev_b32 v9, 1, v2')
    a('v_and_b32 v9, 7, v9')
    a('v_xor_b32 v9, v9, v3')
    a('v_lshlrev_b32 v9, 4, v9')
    a('v_lshl_add_u32 v9, v2, 7, v9')
    a('s_lshl_b32 s12, s11, 13')
    a('v_add_u32 v4, s12, v9')
    a('v_xor_b32 v5, 32, v4')
    a('v_xor_b32 v6, 64, v4')
    a('v_xor_b32 v7, 96, v4')
    a('v_bfe_u32 v9, v1, 4, 1')
    a('v_mul_u32_u24 v8, 12320, v9')
    a('v_bfe_u32 v9, v1, 2, 2')
    a('v_lshl_add_u32 v9, v3, 3, v9')
    a('v_mul_u32_u24 v9, 192, v9')
    a('v_add_u32 v8, v8, v9')
    a('v_and_b32 v9, 3, v1')
    a('v_lshl_add_u32 v8, v9, 3, v8')
    a('s_mul_i32 s12, s10, 96')
    a('s_add_u32 s12, s12, %d' % OFF_GATE)
    a('v_add_u32 v8, s12, v8')
    a('v_lshrrev_b32 v9, 4, v2')
    a('v_lshlrev_b32 v10, 10, v9')
    a('v_lshl_add_u32 v10, v3, 8, v10')
    a('v_and_b32 v9, 15, v2')
    a('v_lshl_add_u32 v10, v9, 4, v10')
    a.emit('s_waitcnt lgkmcnt(0)')
    srd(a, 44, P_WS, SZ_H, WS_H)
    a('s_lshl_b32 s12, s6, 2')
    a('s_add_u32 s12, s12, s7')
    a('s_lshl_b32 s12, s12, 1')
    a('s_add_u32 s12, s12, s11')
    a('s_mul_i32 s12, s12, 196608')
    a('s_mul_i32 s13, s8, 6')
    a('s_mul_i32 s14, s10, 3')
    a('s_add_u32 s13, s13, s14')
    for tt in range(3):
        a('s_add_u32 s14, s13, %d' % tt)
        a('s_lshr_b32 s15, s14, 1')
        a('s_lshl_b32 s15, s15, 12')
        a('s_and_b32 s14, s14, 1')
        a('s_lshl_b32 s14, s14, 9')
        a('s_add_u32 s14, s14, s15')
        a('s_add_u32 s%d, s14, s12' % (48 + tt))
    ACC = 64
    FB = [16, 40]
    def acc(tt, b): return ACC + (tt * 2 + b) * 16
    def reads(buf, ks):
        f = FB[buf]
        L = []
        def A(tt):
            return ['ds_read_b64_tr_b16 v[%d:%d], v8 offset:%d' % (f + 4 * tt + 2 * t, f + 4 * tt + 2 * t + 1, ks * 3072 + t * 768 + tt * 32) for t in range(2)]
        def B(b):
            return ['ds_read_b128 v[%d:%d], v%d offset:%d' % (f + 12 + 4 * b, f + 15 + 4 * b, 4 + ks, b * 4096)]
        return A(0) + B(0) + B(1) + A(1) + A(2)
    order = [(0, 0, 2), (0, 1, 3), (1, 0, 5), (1, 1, 5), (2, 0, 7), (2, 1, 7)]
    a('s_barrier')
    prof.stamp(1)
    prof.cyc(5)
    toks = [a.emit(r) for r in reads(0, 0)]
    cur = 0
    if cfg.k1_nomfma:
        for st in range(NSTAGE - 1): a('s_barrier')
    for st in range(0 if not cfg.k1_nomfma else NSTAGE, NSTAGE):
        for ks in range(4):
            last = (st == NSTAGE - 1 and ks == 3)
            nxt = None
            if not last:
                nxt = reads(1 - cur, (ks + 1) % 4)
            ntoks = []
            f = FB[cur]
            for mi, (tt, b, need_i) in enumerate(order):
                a.wait_lg(toks[need_i])
                c = '0' if (st == 0 and ks == 0) else vr(acc(tt, b), 16)
                a('v_mfma_f32_32x32x16_bf16 %s, %s, %s, %s' % (vr(acc(tt, b), 16), vr(f + 4 * tt, 4), vr(f + 12 + 4 * b, 4), c))
                if nxt is not None:
                    if ks == 3:
                        if mi == 0:
                            a.wait_all_lg()
                            d = SLOT if (st + 1) % nslot else -(nslot - 1) * SLOT
                            for r in (4, 5, 6, 7, 8):
                                a('v_add_u32 v%d, 0x%x, v%d' % (r, d & 0xffffffff, r))
                            a('s_barrier')
                        sched = {1: 3, 2: 2, 3: 2, 4: 1}
                    else:
                        sched = {0: 2, 1: 2, 2: 2, 3: 2}
                    for _ in range(sched.get(mi, 0)):
                        ntoks.append(a.emit(nxt[len(ntoks)]))
            toks = ntoks
            cur = 1 - cur
    prof.stamp(2)
    prof.cyc(6)
    T = 16
    for tt in range(3):
        for b in range(2):
            x = acc(tt, b)
            o = T + ((tt * 2 + b) % 2) * 4
            w = 24 + ((tt * 2 + b) % 2) * 16
            if cfg.h_mimic:
                for p in range(4):
                    a('v_cvt_pk_bf16_f32 v%d, v%d, v%d' % (w + p, x + 2 * p, x + 2 * p + 1))
                    a('v_cvt_pk_bf16_f32 v%d, v%d, v%d' % (w + 4 + p, x + 8 + 2 * p, x + 8 + 2 * p + 1))
                for p in range(4):
                    unpack_lo(a, x + 2 * p, w + p); unpack_hi(a, x + 2 * p + 1, w + p)
                    unpack_lo(a, x + 8 + 2 * p, w + 4 + p); unpack_hi(a, x + 8 + 2 * p + 1, w + 4 + p)
            for p in range(4):
                a('v_pk_mul_f32 v[%d:%d], v[%d:%d], v[%d:%d]' % (x + 2 * p, x + 2 * p + 1, x + 2 * p, x + 2 * p + 1, x + 8 + 2 * p, x + 9 + 2 * p))
            for p in range(4):
                a('v_cvt_pk_bf16_f32 v%d, v%d, v%d' % (o + p, x + 2 * p, x + 2 * p + 1))
            a('buffer_store_dwordx4 %s, v10, s[44:47], s%d offen offset:%d' % (vr(o, 4), 48 + tt, b * 2048))
    prof.stamp(3)
    prof.flush(3)
    a('s_endpgm')

    a.pad(); a.reset_queues()
    a.label('K1_loader')
    a('s_sub_u32 s3, s3, 4')
    a('v_lshrrev_b32 v9, 3, v1')
    a('v_and_b32 v10, 7, v1')
    a('v_lshrrev_b32 v11, 1, v9')
    a('v_xor_b32 v10, v10, v11')
    a('v_lshlrev_b32 v10, 4, v10')
    a('s_mov_b32 s12, 81920')
    a('v_mul_lo_u32 v9, v9, s12')
    a('v_add_u32 v2, v9, v10')
    a('v_xor_b32 v10, 64, v10')
    a('v_add_u32 v3, v9, v10')
    a('v_add_u32 v3, 256, v3')
    a('v_add_u32 v4, 512, v2')
    a('v_add_u32 v5, 512, v3')
    for i in range(3):
        a('v_add_u32 v9, %d, v1' % (64 * i))
        a('v_mul_u32_u24 v10, 5462, v9')
        a('v_lshrrev_b32 v10, 16, v10')
        a('v_mul_u32_u24 v11, 12, v10')
        a('v_sub_u32 v11, v9, v11')
        a('v_mul_u32_u24 v10, 3072, v10')
        a('v_lshl_add_u32 v10, v11, 4, v10')
        a('v_subrev_u32 v%d, %d, v10' % (6 + i, 1024 * i))
    a('s_lshl_b32 s12, s6, 9')
    a('s_lshl_b32 s13, s7, 4')
    a('s_add_u32 s12, s12, s13')
    a('s_lshl_b32 s13, s3, 2')
    a('s_add_u32 s12, s12, s13')
    a('s_mul_i32 s12, s12, 1280')
    a('s_mul_i32 s13, s3, 49152')
    a('s_mul_i32 s14, s8, 192')
    a('s_add_u32 s13, s13, s14')
    a('s_lshl_b32 s14, s3, 12')
    a('s_mul_i32 s15, s3, 3072')
    a.emit('s_waitcnt lgkmcnt(0)')
    prof.stamp(3)
    srd(a, 44, P_Q, SZ_X)
    srd(a, 48, P_WG, SZ_W)
    srd(a, 52, P_WU, SZ_W)
    stage_tok = {}
    def issue_stage(st):
        base = (st % nslot) * SLOT
        if cfg.k1_noload:
            stage_tok[st] = -1
            return
        a('s_add_u32 m0, s14, %d' % base)
        for i in range(4):
            a('buffer_load_dwordx4 v%d, s[44:47], s12 offen offset:%d lds' % (2 + i, 1024 * i))
        a('s_add_u32 m0, s15, %d' % (base + OFF_GATE))
        for i in range(3):
            a('buffer_load_dwordx4 v%d, s[48:51], s13 offen offset:%d lds' % (6 + i, 1024 * i))
        a('s_add_u32 m0, s15, %d' % (base + OFF_UP))
        for i in range(3):
            t = a.emit('buffer_load_dwordx4 v%d, s[52:55], s13 offen offset:%d lds' % (6 + i, 1024 * i))
        stage_tok[st] = t
        a('s_add_u32 s12, s12, 128')
        a('s_add_u32 s13, s13, 196608')
    issue_stage(0)
    prof.stamp(5)
    srd(a, 80, P_GW, 1280)
    a('s_lshl_b32 s56, s2, 3')
    a('s_lshl_b32 s57, s3, 1')
    a('s_add_u32 s56, s56, s57')
    a('v_lshrrev_b32 v9, 5, v1')
    a('v_add_u32 v9, s56, v9')
    a('v_and_b32 v10, 31, v1')
    a('v_lshlrev_b32 v11, 4, v10')
    a('v_mul_u32_u24 v12, 1280, v9')
    a('v_add_u32 v12, v12, v11')
    a('v_cmp_gt_u32 vcc, 16, v10')
    a('v_mov_b32 v13, 0x80000000')
    a('v_cndmask_b32 v13, v13, v12, vcc')
    GX, GW = 132, 144
    a('buffer_load_dwordx4 %s, v12, s[44:47], 0 offen' % vr(GX, 4))
    a('buffer_load_dwordx4 %s, v12, s[44:47], 0 offen offset:512' % vr(GX + 4, 4))
    a('buffer_load_dwordx4 %s, v13, s[44:47], 0 offen offset:1024' % vr(GX + 8, 4))
    a('buffer_load_dwordx4 %s, v11, s[80:83], 0 offen' % vr(GW, 4))
    a('buffer_load_dwordx4 %s, v11, s[80:83], 0 offen offset:512' % vr(GW + 4, 4))
    g_tok = a.emit('buffer_load_dwordx4 %s, v11, s[80:83], 0 offen offset:1024' % vr(GW + 8, 4))
    a('v_lshlrev_b32 v14, 2, v9')
    a('v_cmp_eq_u32 vcc, 31, v10')
    a('v_mov_b32 v15, 0x80000000')
    a('v_cndmask_b32 v14, v15, v14, vcc')
    a('s_cmp_ge_u32 s5, 20')
    a('s_cbranch_scc1 K1_loaderB')
    saved = (list(a.vmq), dict(stage_tok), list(a.hist))

    def g_compute():
        a.wait_vm(g_tok)
        a('v_mov_b32 v16, 0')
        for i in range(12):
            a('v_dot2_f32_bf16 v16, v%d, v%d, v16' % (GX + i, GW + i))
        a('s_nop 2')
        for sh in (1, 2, 4, 8):
            a('v_add_f32_dpp v16, v16, v16 row_shr:%d row_mask:0xf bank_mask:0xf bound_ctrl:0' % sh)
        a('v_add_f32_dpp v16, v16, v16 row_bcast:15 row_mask:0xa bank_mask:0xf')
        a('v_cvt_pk_bf16_f32 v16, v16, v16')
        a('v_and_b32 v16, 0xffff0000, v16')
        a('v_mul_f32 v16, 0xbfb8aa3b, v16')
        a('v_exp_f32 v16, v16')
        a('v_add_f32 v16, 1.0, v16')
        a('v_rcp_f32 v16, v16')
        a('v_cvt_pk_bf16_f32 v16, v16, v16')
        a('v_and_b32 v16, 0xffff0000, v16')
        srd(a, 84, P_WS, SZ_G, WS_G)
        a('buffer_store_dword v16, v14, s[84:87], 0 offen')
    def sentinel():
        srd(a, 88, P_WS, SZ_Y2, WS_Y2)
        a('s_lshl_b32 s56, s2, 2')
        a('s_add_u32 s56, s56, s3')
        a('s_mul_i32 s56, s56, 3072')
        a('v_lshlrev_b32 v17, 4, v1')
        for i in range(4): a('v_mov_b32 v%d, -1' % (20 + i))
        for i in range(3):
            a('buffer_store_dwordx4 v[20:23], v17, s[88:91], s56 offen offset:%d' % (1024 * i))
    def main_loop(slices):
        for st in range(1, nslot): issue_stage(st)
        prof.stamp(4)
        for i in range(NSTAGE):
            a.wait_vm(stage_tok[i])
            a('s_barrier')
            if i == 0: prof.stamp(1)
            if i >= 1 and i + nslot - 1 < NSTAGE: issue_stage(i + nslot - 1)
            if i < len(slices) and not cfg.k1_noaux: slices[i]()
        prof.stamp(2)
        prof.flush(3)
        a('s_endpgm')

    srd(a, 56, P_K, SZ_X); srd(a, 60, P_V, SZ_X); srd(a, 64, P_SHK, 5120)
    a('s_cmp_ge_u32 s5, 10')
    a('s_cselect_b32 s9, 1, 0')
    a('s_cselect_b32 s10, 10, 0')
    a('s_sub_u32 s10, s5, s10')
    a('s_lshl_b32 s11, s4, 1')
    a('s_add_u32 s9, s9, s11')
    a('s_lshl_b32 s9, s9, 7')
    a('s_lshl_b32 s11, s3, 5')
    a('s_add_u32 s9, s9, s11')
    a('v_lshrrev_b32 v9, 3, v1')
    a('v_lshlrev_b32 v9, 2, v9')
    a('v_add_u32 v9, s9, v9')
    a('v_and_b32 v10, 7, v1')
    a('v_mul_u32_u24 v11, 1280, v9')
    a('v_lshl_add_u32 v11, v10, 4, v11')
    a('s_lshl_b32 s11, s10, 7')
    a('v_add_u32 v11, s11, v11')
    a('v_subrev_u32 v12, 3840, v11')
    a('v_subrev_u32 v13, 2560, v11')
    a('v_subrev_u32 v15, 1280, v11')
    KR, VR_, WR = 32, 60, 76
    NT = ' nt' if cfg.nt else ''
    for i in range(4):
        a('buffer_load_dwordx4 %s, v11, s[56:59], 0 offen offset:%d%s' % (vr(KR + 12 + 4 * i, 4), 1280 * i, NT))
    a('buffer_load_dwordx4 %s, v12, s[56:59], 0 offen%s' % (vr(KR, 4), NT))
    a('buffer_load_dwordx4 %s, v13, s[56:59], 0 offen%s' % (vr(KR + 4, 4), NT))
    a('buffer_load_dwordx4 %s, v15, s[56:59], 0 offen%s' % (vr(KR + 8, 4), NT))
    for i in range(4):
        a('buffer_load_dwordx4 %s, v11, s[60:63], 0 offen offset:%d%s' % (vr(VR_ + 4 * i, 4), 1280 * i, NT))
    a('s_lshl_b32 s11, s10, 9')
    a('v_lshlrev_b32 v12, 6, v10')
    a('v_add_u32 v12, s11, v12')
    for i in range(4):
        kv_tok = a.emit('buffer_load_dwordx4 %s, v12, s[64:67], 0 offen offset:%d' % (vr(WR + 4 * i, 4), 16 * i))
    a('s_lshl_b32 s11, s10, 18')
    a('v_lshlrev_b32 v18, 15, v10')
    a('v_add_u32 v18, s11, v18')
    a('v_lshl_add_u32 v18, v9, 1, v18')
    def kv_part(pairs):
        def f():
            a.wait_vm(kv_tok)
            if pairs[0] == 0:
                srd(a, 68, P_WS, SZ_UT, WS_UT)
                for c in range(8): a('s_mov_b32 s%d, %d' % (72 + c, 4096 * c))
            U = 92
            for cp in pairs:
                for r in range(7):
                    unpack_lo(a, U + 2 * r, KR + 4 * r + cp); unpack_hi(a, U + 2 * r + 1, KR + 4 * r + cp)
                for r in range(4):
                    unpack_lo(a, U + 14 + 2 * r, VR_ + 4 * r + cp); unpack_hi(a, U + 15 + 2 * r, VR_ + 4 * r + cp)
                for h in range(2):
                    unpack_lo(a, U + 22 + h, WR + 4 * cp + 2 * h); unpack_hi(a, U + 24 + h, WR + 4 * cp + 2 * h)
                    unpack_lo(a, U + 26 + h, WR + 4 * cp + 2 * h + 1); unpack_hi(a, U + 28 + h, WR + 4 * cp + 2 * h + 1)
                AC = U + 30
                def P(x): return 'v[%d:%d]' % (x, x + 1)
                for i in range(4):
                    a('v_pk_mul_f32 %s, %s, %s' % (P(AC + 2 * i), P(U + 2 * i), P(U + 28)))
                for tap in (2, 1, 0):
                    for i in range(4):
                        a('v_pk_fma_f32 %s, %s, %s, %s' % (P(AC + 2 * i), P(U + 2 * (i + 3 - tap)), P(U + 22 + 2 * tap), P(AC + 2 * i)))
                for i in range(4):
                    a('v_pk_mul_f32 %s, %s, %s' % (P(AC + 2 * i), P(AC + 2 * i), P(U + 14 + 2 * i)))
                O = 24 + (cp & 1) * 4
                for h in range(2):
                    a('v_cvt_pk_bf16_f32 v%d, v%d, v%d' % (O + 2 * h, AC + h, AC + 2 + h))
                    a('v_cvt_pk_bf16_f32 v%d, v%d, v%d' % (O + 2 * h + 1, AC + 4 + h, AC + 6 + h))
                for h in range(2):
                    a('buffer_store_dwordx2 %s, v18, s[68:71], s%d offen' % (vr(O + 2 * h, 2), 72 + 2 * cp + h))
        return f
    main_loop([kv_part([0, 1]), kv_part([2, 3]), lambda: (g_compute(), sentinel())])

    a.vmq, stage_tok, a.hist = list(saved[0]), dict(saved[1]), list(saved[2])
    a.lgq = []
    a.label('K1_loaderB')
    srd(a, 72, P_WD, SZ_W)
    a('s_mul_i32 s9, s4, 12')
    a('s_add_u32 s9, s9, s5')
    a('s_sub_u32 s9, s9, 20')
    a('s_lshl_b32 s9, s9, 2')
    a('s_add_u32 s9, s9, s3')
    a('s_lshr_b32 s10, s9, 3')
    a('s_and_b32 s9, s9, 7')
    a('s_mul_i32 s11, s10, 40960')
    a('s_mul_i32 s56, s9, 160')
    a('s_add_u32 s11, s11, s56')
    a('s_mul_i32 s57, s3, 5120')
    a('s_add_u32 s57, s57, %d' % SCR)
    for i in range(5):
        a('v_add_u32 v9, %d, v1' % (64 * i))
        a('v_mul_u32_u24 v10, 6554, v9')
        a('v_lshrrev_b32 v10, 16, v10')
        a('v_mul_u32_u24 v11, 10, v10')
        a('v_sub_u32 v11, v9, v11')
        a('v_mul_u32_u24 v10, 1280, v10')
        a('v_lshl_add_u32 v10, v11, 4, v10')
        a('s_add_u32 m0, s57, %d' % (1024 * i))
        wd_tok = a.emit('buffer_load_dwordx4 v10, s[72:75], s11 offen%s lds' % NT)
    def wd_part():
        a('v_lshrrev_b32 v9, 5, v1')
        a('v_lshlrev_b32 v9, 4, v9')
        a('v_bfe_u32 v10, v1, 2, 3')
        a('v_add_u32 v9, v9, v10')
        a('v_mul_u32_u24 v9, 160, v9')
        a('v_and_b32 v10, 3, v1')
        a('v_lshl_add_u32 v9, v10, 3, v9')
        a('v_add_u32 v9, s57, v9')
        srd(a, 76, P_WS, SZ_WD, WS_WD)
        a('s_mul_i32 s56, s9, 245760')
        a('s_mul_i32 s58, s10, 5120')
        a('s_add_u32 s56, s56, s58')
        a('s_add_u32 s58, s56, 4096')
        a('v_lshlrev_b32 v17, 4, v1')
        a.wait_vm(wd_tok)
        tk = []
        for dl in range(5):
            for t in range(2):
                tk.append(a.emit('ds_read_b64_tr_b16 v[%d:%d], v9 offset:%d' % (32 + 4 * dl + 2 * t, 33 + 4 * dl + 2 * t, t * 1280 + dl * 32)))
        for dl in range(5):
            a.wait_lg(tk[2 * dl + 1])
            if dl < 4:
                a('buffer_store_dwordx4 %s, v17, s[76:79], s56 offen offset:%d' % (vr(32 + 4 * dl, 4), 1024 * dl))
            else:
                a('buffer_store_dwordx4 %s, v17, s[76:79], s58 offen' % vr(32 + 4 * dl, 4))
    main_loop([wd_part, lambda: (g_compute(), sentinel())])
    a.label('K1_done')
    a('s_endpgm')
    return SCR + 4 * 5120

CV = 9216
RED = 4 * CV
def gen_k2(a, cfg):
    kernel_header(a, 'k2_kernel')
    prof = Prof(a, cfg, 1)
    prof.start()
    a('s_cmp_ge_u32 s2, 256')
    a('s_cbranch_scc1 K2_done')
    load_kernargs(a)
    a('v_lshrrev_b32 v2, 6, v0')
    a('v_and_b32 v1, 63, v0')
    a('v_readfirstlane_b32 s3, v2')
    a('s_and_b32 s4, s2, 7')
    a('s_lshr_b32 s5, s2, 3')
    a('s_lshr_b32 s6, s4, 1')
    a('s_and_b32 s7, s5, 7')
    a('s_and_b32 s8, s4, 1')
    a('s_lshl_b32 s8, s8, 2')
    a('s_lshr_b32 s9, s5, 3')
    a('s_add_u32 s8, s8, s9')
    a('s_and_b32 s10, s3, 3')
    a('v_and_b32 v2, 7, v1')
    a('v_lshlrev_b32 v2, 6, v2')
    a('v_bfe_u32 v3, v1, 3, 1')
    a('v_add_u32 v2, v2, v3')
    a('s_lshl_b32 s11, s6, 9')
    a('s_lshl_b32 s12, s7, 3')
    a('s_add_u32 s11, s11, s12')
    a('s_lshl_b32 s12, s10, 1')
    a('s_add_u32 s11, s11, s12')
    a('v_add_u32 v2, s11, v2')
    a('v_mul_u32_u24 v3, 1280, v2')
    a('v_lshrrev_b32 v4, 4, v1')
    a('v_lshl_add_u32 v3, v4, 3, v3')
    a('s_mul_i32 s12, s8, 160')
    a('v_add_u32 v3, s12, v3')
    a('v_lshlrev_b32 v2, 2, v2')
    a('v_lshlrev_b32 v4, 4, v1')
    a('s_cmp_ge_u32 s3, 4')
    a('s_cbranch_scc1 K2_conv')

    a('v_add_u32 v5, 4096, v4')
    a('s_lshl_b32 s11, s6, 3')
    a('s_add_u32 s11, s11, s7')
    a('s_mul_i32 s11, s11, 196608')
    a('s_mul_i32 s12, s3, 49152')
    a('s_add_u32 s11, s11, s12')
    a('s_mul_i32 s12, s8, 245760')
    a('s_mul_i32 s13, s3, 61440')
    a('s_add_u32 s12, s12, s13')
    a.emit('s_waitcnt lgkmcnt(0)')
    srd(a, 44, P_WS, SZ_H, WS_H)
    srd(a, 48, P_WS, SZ_WD, WS_WD)
    DEPTH = 4
    BUF = 8
    ACC = 152
    def acc(dl, sg): return ACC + (sg * 5 + dl) * 4
    toks = {}
    def issue(k):
        b = BUF + (k % DEPTH) * 36
        for dl in range(5):
            if dl < 4:
                a('buffer_load_dwordx4 %s, v4, s[48:51], s12 offen offset:%d' % (vr(b + 4 * dl, 4), 1024 * dl))
            else:
                a('buffer_load_dwordx4 %s, v5, s[48:51], s12 offen' % vr(b + 16, 4))
        for sg in range(4):
            toks[(k, sg)] = a.emit('buffer_load_dwordx4 %s, v4, s[44:47], s11 offen offset:%d' % (vr(b + 20 + 4 * sg, 4), 1024 * sg))
        a('s_add_u32 s11, s11, 4096')
        a('s_add_u32 s12, s12, 5120')
    for k in range(DEPTH): issue(k)
    srd(a, 52, P_WS, SZ_G, WS_G)
    srd(a, 56, P_OUT, SZ_X)
    for k in range(12):
        b = BUF + (k % DEPTH) * 36
        for sg in range(4):
            a.wait_vm(toks[(k, sg)])
            if k == 0 and sg == 0: prof.stamp(1)
            for dl in range(5):
                c = '0' if k == 0 else vr(acc(dl, sg), 4)
                a('v_mfma_f32_16x16x32_bf16 %s, %s, %s, %s' % (vr(acc(dl, sg), 4), vr(b + 4 * dl, 4), vr(b + 20 + 4 * sg, 4), c))
        if k + DEPTH < 12: issue(k + DEPTH)
        if k == 8:
            gt = a.emit('buffer_load_dword v6, v2, s[52:55], 0 offen')
    prof.stamp(2)
    a('s_mul_i32 s13, s3, 20480')
    a('s_add_u32 s13, s13, %d' % RED)
    a('v_add_u32 v7, s13, v4')
    a('s_nop 7')
    for w in range(4):
        a('s_cmp_eq_u32 s3, %d' % w)
        a('s_cbranch_scc1 K2_fin%d' % w)
    hist0 = list(a.hist); vmq0 = list(a.vmq)
    for w in range(4):
        a.hist = list(hist0); a.vmq = list(vmq0); a.lgq = []
        a.label('K2_fin%d' % w)
        for sg in range(4):
            if sg == w: continue
            for dl in range(5):
                a('ds_write_b128 v7, %s offset:%d' % (vr(acc(dl, sg), 4), sg * 5120 + dl * 1024))
        a.wait_vm(gt)
        a('v_sub_f32 v6, 1.0, v6')
        a('v_cvt_pk_bf16_f32 v6, v6, v6')
        a('v_and_b32 v6, 0xffff0000, v6')
        a('v_add_u32 v7, %d, v4' % (RED + w * 5120))
        a.wait_all_lg()
        a('s_barrier')
        prof.stamp(3)
        tk = {}
        srcs = [x for x in range(4) if x != w] + [4]
        a('v_add_u32 v5, %d, v7' % (40960 + 0))
        for dl in range(5):
            for si, x in enumerate(srcs):
                off = x * 20480 + dl * 1024
                base = 'v7'
                if off >= 40960: base = 'v5'; off -= 40960
                tk[(dl, si)] = a.emit('ds_read_b128 %s, %s offset:%d' % (vr(8 + (dl * 4 + si) * 4, 4), base, off))
        for dl in range(5):
            x = acc(dl, w)
            def P(r): return 'v[%d:%d]' % (r, r + 1)
            for si in range(3):
                a.wait_lg(tk[(dl, si)])
                r = 8 + (dl * 4 + si) * 4
                a('v_pk_add_f32 %s, %s, %s' % (P(x), P(x), P(r)))
                a('v_pk_add_f32 %s, %s, %s' % (P(x + 2), P(x + 2), P(r + 2)))
            ga = 8 + (dl * 4 + 3) * 4
            t = 96 + (dl & 1) * 4
            if cfg.out_mimic:
                a('v_cvt_pk_bf16_f32 v%d, v%d, v%d' % (t, x, x + 1))
                a('v_cvt_pk_bf16_f32 v%d, v%d, v%d' % (t + 1, x + 2, x + 3))
                unpack_lo(a, x, t); unpack_hi(a, x + 1, t); unpack_lo(a, x + 2, t + 1); unpack_hi(a, x + 3, t + 1)
                for i in range(4): a('v_mul_f32 v%d, v6, v%d' % (x + i, x + i))
                a('v_cvt_pk_bf16_f32 v%d, v%d, v%d' % (t, x, x + 1))
                a('v_cvt_pk_bf16_f32 v%d, v%d, v%d' % (t + 1, x + 2, x + 3))
                unpack_lo(a, x, t); unpack_hi(a, x + 1, t); unpack_lo(a, x + 2, t + 1); unpack_hi(a, x + 3, t + 1)
                a.wait_lg(tk[(dl, 3)])
                a('v_pk_add_f32 %s, %s, %s' % (P(x), P(x), P(ga)))
                a('v_pk_add_f32 %s, %s, %s' % (P(x + 2), P(x + 2), P(ga + 2)))
            else:
                a.wait_lg(tk[(dl, 3)])
                for i in range(4): a('v_fma_f32 v%d, v6, v%d, v%d' % (x + i, x + i, ga + i))
            a('v_cvt_pk_bf16_f32 v%d, v%d, v%d' % (t + 2, x, x + 1))
            a('v_cvt_pk_bf16_f32 v%d, v%d, v%d' % (t + 3, x + 2, x + 3))
            a('buffer_store_dwordx2 %s, v3, s[56:59], 0 offen offset:%d' % (vr(t + 2, 2), dl * 32))
        prof.stamp(4)
        prof.flush(3)
        a('s_endpgm')

    a.pad(); a.reset_queues()
    a.label('K2_conv')
    a('s_mul_i32 s13, s10, %d' % CV)
    a.emit('s_waitcnt lgkmcnt(0)')
    srd(a, 44, P_WS, SZ_Y2, WS_Y2)
    a('s_cmp_ge_u32 s5, 20')
    a('s_cbranch_scc1 K2_fetch')
    a('s_setprio 1')
    srd(a, 48, P_SSMK, SZ_X)
    srd(a, 52, P_WS, SZ_UT, WS_UT)
    a('s_mul_i32 s11, s4, 20')
    a('s_add_u32 s11, s11, s5')
    a('s_lshl_b32 s11, s11, 2')
    a('s_add_u32 s11, s11, s10')
    a('s_lshl_b32 s12, s11, 12')
    a('v_bfe_u32 v5, v1, 4, 1')
    a('v_lshlrev_b32 v5, 1, v5')
    a('v_xor_b32 v5, v5, v1')
    a('v_lshlrev_b32 v5, 4, v5')
    PD, QD = 512, 4672
    a('s_add_u32 m0, s13, %d' % QD)
    for i in range(4):
        a('buffer_load_dwordx4 v4, s[52:55], s12 offen offset:%d lds' % (1024 * i))
    a('s_add_u32 m0, s13, %d' % PD)
    for i in range(4):
        dma_tok = a.emit('buffer_load_dwordx4 v5, s[48:51], s12 offen offset:%d%s lds' % (1024 * i, ' nt' if cfg.nt else ''))
    a('s_and_b32 s14, s11, 0xfffffffe')
    a('s_lshl_b32 s14, s14, 1')
    a('s_load_dword s15, s[26:27], s14')
    for i in range(4): a('v_mov_b32 v%d, 0' % (8 + i))
    a('v_and_b32 v6, 31, v1')
    a('v_lshlrev_b32 v6, 4, v6')
    a('v_add_u32 v6, s13, v6')
    a('ds_write_b128 v6, v[8:11]')
    a('v_and_b32 v6, 3, v1')
    a('v_lshlrev_b32 v6, 4, v6')
    a('v_add_u32 v6, s13, v6')
    a('ds_write_b128 v6, v[8:11] offset:4608')
    a('v_bfe_u32 v8, v1, 4, 1')
    a('v_bfe_u32 v9, v1, 2, 2')
    a('v_and_b32 v10, 3, v1')
    a('v_lshrrev_b32 v11, 5, v1')
    VQ, VU, VP = 12, 13, 14
    a('v_add_u32 v6, v10, v9')
    a('v_lshlrev_b32 v6, 3, v6')
    a('v_lshl_add_u32 v6, v8, 5, v6')
    a('v_lshl_add_u32 v6, v11, 6, v6')
    a('s_add_u32 s14, s13, %d' % (QD - 56))
    a('v_add_u32 v%d, s14, v6' % VQ)
    a('s_add_u32 s14, s13, %d' % QD)
    a('v_lshlrev_b32 v6, 1, v1')
    a('v_add_u32 v%d, s14, v6' % VU)
    a('v_lshlrev_b32 v6, 7, v8')
    a('v_lshl_add_u32 v6, v10, 5, v6')
    a('v_lshlrev_b32 v7, 5, v11')
    a('v_sub_u32 v6, v6, v7')
    a('v_lshlrev_b32 v7, 2, v9')
    a('v_sub_u32 v6, v6, v7')
    for j in range(4):
        for t in range(2):
            d = VP + 2 * j + t
            a('v_add_u32 v7, %d, v6' % (256 - 64 * j + 28 - 16 * t))
            a('v_bfe_u32 v8, v7, 7, 1')
            a('v_lshlrev_b32 v8, 4, v8')
            a('v_xor_b32 v7, v7, v8')
            a('v_lshlrev_b32 v7, 1, v7')
            a('v_add_u32 v%d, s13, v7' % d)
    QC = 24
    ACCS = [152, 168]
    PR = 184; NP = 6
    CAR = 208
    UR = 212
    TM = 216
    YO = 232
    for i in range(3): a('v_mov_b32 v%d, 0' % (CAR + i))
    for i in range(4): a('v_mov_b32 v%d, 0' % (UR + i))
    a('s_mov_b32 s60, 0')
    a('s_mov_b32 s61, 0x80000000')
    a('v_mov_b32 v%d, 0xfffefffe' % (TM + 15))
    a.emit('s_waitcnt lgkmcnt(0)'); a.lgq = []
    a('s_and_b32 s14, s11, 1')
    a('s_lshl_b32 s14, s14, 4')
    a('s_lshr_b32 s15, s15, s14')
    a('s_lshl_b32 s15, s15, 16')
    a.wait_vm(dma_tok)
    prof.stamp(1)
    ml = []
    for tau in range(8):
        for kap in range(4 * tau + 4):
            ml.append((tau, kap, 4 * tau - kap))
    def p_reads(idx):
        tau, kap, lam = ml[idx]
        j = (-lam) % 4; b = (lam + j) // 4
        r = PR + (idx % NP) * 4
        return ['ds_read_b64_tr_b16 v[%d:%d], v%d offset:%d' % (r + 2 * t, r + 2 * t + 1, VP + 2 * j + t, 512 * b) for t in range(2)]
    def q_reads(kap):
        r = QC + 4 * kap
        return ['ds_read_b64_tr_b16 v[%d:%d], v%d offset:%d' % (r + 2 * t, r + 2 * t + 1, VQ, 128 * kap + 32 * t) for t in range(2)]
    def epi_ops(tau):
        A = ACCS[tau % 2]
        ops = []
        utok = {}
        for qq in range(4):
            G = 4 * tau + qq
            ops.append(('ds', 'ds_read_u16_d16_hi v%d, v%d offset:%d' % (UR + qq, VU, 128 * G), qq))
        for qq in range(4):
            G = 4 * tau + qq
            D0, D1, D2, D3 = (A + 4 * qq + i for i in range(4))
            y = TM + 4 + qq
            ops.append('v_cndmask_b32 v%d, v%d, v%d, s[60:61]' % (TM, D3, CAR))
            ops.append('v_mov_b32 v%d, v%d' % (CAR, D3))
            ops.append('v_add_f32_dpp v%d, v%d, v%d wave_ror:1 row_mask:0xf bank_mask:0xf' % (D2, TM, D2))
            ops.append('v_cndmask_b32 v%d, v%d, v%d, s[60:61]' % (TM + 1, D2, CAR + 1))
            ops.append('v_mov_b32 v%d, v%d' % (CAR + 1, D2))
            ops.append('v_add_f32_dpp v%d, v%d, v%d wave_ror:1 row_mask:0xf bank_mask:0xf' % (D1, TM + 1, D1))
            ops.append('v_cndmask_b32 v%d, v%d, v%d, s[60:61]' % (TM + 2, D1, CAR + 2))
            ops.append('v_mov_b32 v%d, v%d' % (CAR + 2, D1))
            ops.append('v_add_f32_dpp v%d, v%d, v%d wave_ror:1 row_mask:0xf bank_mask:0xf' % (y, TM + 2, D0))
        for pr in range(2):
            y0, y1 = TM + 4 + 2 * pr, TM + 5 + 2 * pr
            u0, u1 = UR + 2 * pr, UR + 2 * pr + 1
            t0, t1, t2 = TM + 8, TM + 9, TM + 10
            o = YO + ((tau // 2) % 2) * 4 + (tau % 2) * 2 + pr
            ops.append('v_cvt_pk_bf16_f32 v%d, v%d, v%d' % (t2, y0, y1))
            ops.append(('waitu', 2 * pr + 1))
            ops.append('v_mul_f32 v%d, s15, v%d' % (t0, u0))
            ops.append('v_mul_f32 v%d, s15, v%d' % (t1, u1))
            ops.append('v_lshlrev_b32 v%d, 16, v%d' % (y0, t2))
            ops.append('v_and_b32 v%d, 0xffff0000, v%d' % (y1, t2))
            ops.append('v_cvt_pk_bf16_f32 v%d, v%d, v%d' % (t2, t0, t1))
            ops.append('v_lshlrev_b32 v%d, 16, v%d' % (t0, t2))
            ops.append('v_and_b32 v%d, 0xffff0000, v%d' % (t1, t2))
            ops.append('v_add_f32 v%d, v%d, v%d' % (y0, y0, t0))
            ops.append('v_add_f32 v%d, v%d, v%d' % (y1, y1, t1))
            ops.append('v_cvt_pk_bf16_f32 v%d, v%d, v%d' % (o, y0, y1))
            ops.append('v_pk_min_u16 v%d, v%d, v%d' % (o, o, TM + 15))
        if tau % 2 == 1:
            o = YO + ((tau // 2) % 2) * 4
            ops.append('buffer_store_dwordx4 %s, v4, s[44:47], s12 offen offset:%d sc1' % (vr(o, 4), 1024 * (tau // 2)))
        return ops
    utok = {}
    def run_epi(ops, n):
        k = 0
        while ops and k < n:
            o = ops.pop(0)
            if isinstance(o, tuple):
                if o[0] == 'ds': utok[o[2]] = a.emit(o[1]); k += 1
                else: a.wait_lg(utok[o[1]])
            else:
                a.emit(o); k += 1
    PD_AHEAD = 4
    ptok = {}; qtok = {}
    def fetch(idx):
        tau, kap, lam = ml[idx]
        if kap not in qtok:
            qtok[kap] = [a.emit(r) for r in q_reads(kap)][-1]
        ptok[idx] = [a.emit(r) for r in p_reads(idx)][-1]
    for i in range(PD_AHEAD): fetch(i)
    pend = []
    since = 0
    for idx, (tau, kap, lam) in enumerate(ml):
        a.wait_lg(max(ptok[idx], qtok[kap]))
        if kap == 0 and tau >= 2:
            run_epi(pend, 10 ** 6)
        A = ACCS[tau % 2]
        c = '0' if kap == 0 else vr(A, 16)
        a('v_mfma_f32_32x32x16_bf16 %s, %s, %s, %s' % (vr(A, 16), vr(PR + (idx % NP) * 4, 4), vr(QC + 4 * kap, 4), c))
        if idx + PD_AHEAD < len(ml): fetch(idx + PD_AHEAD)
        if kap == 0 and tau >= 1:
            pend = epi_ops(tau - 1); since = 0
        since += 1
        if since >= 3: run_epi(pend, 4)
    run_epi(pend, 10 ** 6)
    pend = epi_ops(7)
    run_epi(pend, 10 ** 6)
    a('s_setprio 0')
    prof.stamp(2)
    a.pad()
    a.label('K2_fetch')
    a.reset_queues()
    srd(a, 48, P_Q, SZ_X)
    srd(a, 52, P_WS, SZ_G, WS_G)
    QV = 24
    for dl in range(5):
        a('buffer_load_dwordx2 %s, v3, s[48:51], 0 offen offset:%d' % (vr(QV + 2 * dl, 2), dl * 32))
    gt = a.emit('buffer_load_dword v6, v2, s[52:55], 0 offen')
    a('s_mul_i32 s11, s8, 327680')
    a('s_lshl_b32 s12, s6, 10')
    a('s_add_u32 s11, s11, s12')
    a('s_lshl_b32 s12, s7, 7')
    a('s_add_u32 s11, s11, s12')
    a('s_lshl_b32 s12, s10, 5')
    a('s_add_u32 s11, s11, s12')
    a('v_lshrrev_b32 v8, 1, v1')
    a('v_lshlrev_b32 v8, 12, v8')
    a('v_and_b32 v9, 1, v1')
    a('v_lshl_add_u32 v8, v9, 4, v8')
    a('v_add_u32 v9, 0x20000, v8')
    a('v_add_u32 v10, 0x40000, v8')
    a('v_cmp_gt_u32 vcc, 32, v1')
    a('v_mov_b32 v11, 0x80000000')
    a('v_cndmask_b32 v10, v11, v10, vcc')
    YV = 40
    a.wait_all_vm()
    a('s_mov_b32 s14, 200000')
    a.label('K2_poll')
    for i in range(3):
        a('buffer_load_dwordx4 %s, v%d, s[44:47], s11 offen sc1' % (vr(YV + 4 * i, 4), 8 + i))
    a.wait_all_vm()
    a('v_max3_u32 v11, v%d, v%d, v%d' % (YV, YV + 1, YV + 2))
    for i in range(3, 11, 2):
        a('v_max3_u32 v11, v11, v%d, v%d' % (YV + i, YV + i + 1))
    a('v_max_u32 v11, v11, v%d' % (YV + 11))
    a('v_cmp_eq_u32 vcc, -1, v11')
    a('s_nop 1')
    a('s_cbranch_vccz K2_got')
    a('s_sleep 8')
    a('s_sub_u32 s14, s14, 1')
    a('s_cmp_lg_u32 s14, 0')
    a('s_cbranch_scc1 K2_poll')
    a.label('K2_got')
    prof.stamp(3)
    a('v_add_u32 v8, s13, v4')
    a('ds_write_b128 v8, %s' % vr(YV, 4))
    a('ds_write_b128 v8, %s offset:1024' % vr(YV + 4, 4))
    a('ds_write_b128 v8, %s offset:2048' % vr(YV + 8, 4))
    a('v_lshlrev_b32 v9, 3, v1')
    a('v_add_u32 v9, s13, v9')
    a.wait_all_lg()
    tk = []
    for dl in range(5):
        tk.append(a.emit('ds_read_b64_tr_b16 %s, v9 offset:%d' % (vr(56 + 2 * dl, 2), dl * 512)))
    a('s_mul_i32 s12, s10, 5120')
    a('s_add_u32 s12, s12, %d' % (RED + 4 * 20480))
    a('v_add_u32 v8, s12, v4')
    for dl in range(5):
        a.wait_lg(tk[dl])
        x = 72 + 4 * dl; y = 96; t = 100
        unpack_lo(a, x, QV + 2 * dl); unpack_hi(a, x + 1, QV + 2 * dl); unpack_lo(a, x + 2, QV + 2 * dl + 1); unpack_hi(a, x + 3, QV + 2 * dl + 1)
        unpack_lo(a, y, 56 + 2 * dl); unpack_hi(a, y + 1, 56 + 2 * dl); unpack_lo(a, y + 2, 57 + 2 * dl); unpack_hi(a, y + 3, 57 + 2 * dl)
        for i in range(4): a('v_mul_f32 v%d, v%d, v%d' % (x + i, x + i, y + i))
        for rep in range(2):
            a('v_cvt_pk_bf16_f32 v%d, v%d, v%d' % (t, x, x + 1))
            a('v_cvt_pk_bf16_f32 v%d, v%d, v%d' % (t + 1, x + 2, x + 3))
            unpack_lo(a, x, t); unpack_hi(a, x + 1, t); unpack_lo(a, x + 2, t + 1); unpack_hi(a, x + 3, t + 1)
            if rep == 0:
                for i in range(4): a('v_mul_f32 v%d, v6, v%d' % (x + i, x + i))
        a('ds_write_b128 v8, %s offset:%d' % (vr(x, 4), dl * 1024))
    a.wait_all_lg()
    a('s_barrier')
    prof.stamp(4)
    prof.flush(3)
    a.label('K2_done')
    a('s_endpgm')
    return RED + 5 * 20480

def generate(cfg):
    WSBASE[0] = cfg.wsbase << 20
    a = Asm()
    a.raw('.amdgcn_target "amdgcn-amd-amdhsa--gfx950"')
    a.raw('.text')
    lds1 = gen_k1(a, cfg)
    lds2 = gen_k2(a, cfg)
    hdr = open('cdna_kernels/%s.s.ref' % NAME).read().split('; Override launch')[0]
    hdr += '; generated by dev/gen.py (hand-written generator)\n'
    hdr += '; @launch kernel=k1_kernel grid=(256,1,1) block=(512,1,1) lds=%d\n' % lds1
    hdr += '; @launch kernel=k2_kernel grid=(256,1,1) block=(512,1,1) lds=%d\n' % lds2
    v1 = 256 if cfg.prof else 160
    v2 = 256 if cfg.prof else 240
    return hdr + a.text() + kernel_desc('k1_kernel', v1) + kernel_desc('k2_kernel', v2)

if __name__ == '__main__':
    cfg = Cfg()
    out = sys.argv[1]
    for kv in sys.argv[2:]:
        k, v = kv.split('=')
        setattr(cfg, k, type(getattr(cfg, k))(int(v)))
    open(out, 'w').write(generate(cfg))
```

```python
import sys
from asmlib import *

NAME = "gated_mix__ssm_conv_h3__glu_gated_bilinear__prompt"
WS_H, SZ_H = 0, 6291456
WS_WD, SZ_WD = 6291456, 1966080
WS_UT, SZ_UT = 8257536, 2621440
WS_Y2, SZ_Y2 = 10878976, 2621440
WS_G, SZ_G = 13500416, 8192
WS_PROF = 16 << 20
SZ_X = 2621440
SZ_W = 1966080
OOB = 0x80000000

class Cfg:
    prof = 0
    h_mimic = 1
    out_mimic = 1
    rot = 1
    rot2 = 1
    nt = 1
    st_sc1 = 1
    h_sc1 = 1
    aux0 = 7
    smem_pf = 0
    noaux = 0
    nomfma = 0
    only_k1 = 0
    noconv = 0
    depth2 = 4
    noread = 0
    noload = 0
    lstamp = 1
    nwg = 256
    mf16 = 0

P_Q, P_K, P_V, P_SHK, P_SSMK, P_SSMD, P_BX, P_WG = 16, 18, 20, 22, 24, 26, 28, 30
P_WU, P_WD, P_GW, P_OUT, P_DBG, P_WS = 32, 34, 36, 38, 40, 42

def load_kernargs(a):
    a('s_load_dwordx16 s[16:31], s[0:1], 0')
    a('s_load_dwordx8 s[32:39], s[0:1], 64')
    a('s_load_dwordx4 s[40:43], s[0:1], 96')

def srd(a, d, p, size, off=0):
    if off:
        a('s_add_u32 s%d, s%d, 0x%x' % (d, p, off))
        a('s_addc_u32 s%d, s%d, 0' % (d + 1, p + 1))
    else:
        a('s_mov_b32 s%d, s%d' % (d, p))
        a('s_mov_b32 s%d, s%d' % (d + 1, p + 1))
    a('s_mov_b32 s%d, 0x%x' % (d + 2, size))
    a('s_mov_b32 s%d, 0x00020000' % (d + 3))
def S4(d): return 's[%d:%d]' % (d, d + 3)

class Prof:
    def __init__(self, a, cfg, kidx):
        self.a, self.on, self.kidx = a, cfg.prof, kidx
    def start(self):
        if not self.on: return
        self.a('s_memrealtime s[98:99]')
        self.a('v_mov_b32 v255, 0')
    def stamp(self, i, op='s_memrealtime'):
        if not self.on: return
        a = self.a
        a('%s s[100:101]' % op)
        a.emit('s_waitcnt lgkmcnt(0)'); a.lgq = []
        a('v_writelane_b32 v255, s100, %d' % i)
    def cyc(self, i): self.stamp(i, 's_memtime')
    def flush(self, vt=250):
        if not self.on: return
        a = self.a
        a('v_lshrrev_b32 v%d, 6, v0' % vt)
        a('v_readfirstlane_b32 s9, v%d' % vt)
        srd(a, 4, P_WS, 2 << 20, WS_PROF)
        a('s_lshl_b32 s8, s2, 11')
        a('s_lshl_b32 s9, s9, 8')
        a('s_add_u32 s8, s8, s9')
        a('s_add_u32 s8, s8, %d' % (self.kidx * 524288))
        a('s_getreg_b32 s9, hwreg(HW_REG_XCC_ID)')
        a('v_writelane_b32 v255, s98, 0')
        a('v_writelane_b32 v255, s9, 63')
        a('v_and_b32 v%d, 63, v0' % vt)
        a('v_lshlrev_b32 v%d, 2, v%d' % (vt, vt))
        a('buffer_store_dword v255, v%d, s[4:7], s8 offen' % vt)

def kernel_header(a, name):
    a.raw('.globl %s' % name)
    a.raw('.p2align 8')
    a.raw('.type %s,@function' % name)
    a.raw('%s:' % name)
    a.pad(); a.reset_queues()

def kernel_desc(name, vgpr, sgpr=102):
    acc = (vgpr + 3) // 4 * 4
    return '''.section .rodata,"a"
.p2align 6
.amdhsa_kernel %s
  .amdhsa_next_free_vgpr %d
  .amdhsa_next_free_sgpr %d
  .amdhsa_accum_offset %d
  .amdhsa_group_segment_fixed_size 0
  .amdhsa_kernarg_size 112
  .amdhsa_user_sgpr_count 2
  .amdhsa_user_sgpr_kernarg_segment_ptr 1
  .amdhsa_system_sgpr_workgroup_id_x 1
.end_amdhsa_kernel
''' % (name, vgpr, sgpr, acc)

def unpack_lo(a, d, s): a('v_lshlrev_b32 v%d, 16, v%d' % (d, s))
def unpack_hi(a, d, s): a('v_and_b32 v%d, 0xffff0000, v%d' % (d, s))
def P2(x): return 'v[%d:%d]' % (x, x + 1)
def u32(x): return x & 0xffffffff

def prologue(a, prof, done, nwg=256):
    prof.start()
    a('s_cmp_ge_u32 s2, %d' % nwg)
    a('s_cbranch_scc1 %s' % done)
    load_kernargs(a)
    a('v_lshrrev_b32 v2, 6, v0')
    a('v_and_b32 v1, 63, v0')
    a('v_readfirstlane_b32 s3, v2')
    a('s_and_b32 s4, s2, 7')
    a('s_lshr_b32 s5, s2, 3')
    a('s_lshr_b32 s6, s4, 1')

SLOT = 41088
OFF_GATE, OFF_UP = 16384, 16384 + 12320
NSTAGE, NSLOT = 10, 3
SCR = NSLOT * SLOT
LDS1 = SCR + 4 * 5120

def g1_ids(a):
    a('s_and_b32 s7, s5, 3')
    a('s_and_b32 s8, s4, 1')
    a('s_lshl_b32 s8, s8, 3')
    a('s_lshr_b32 s9, s5, 2')
    a('s_add_u32 s8, s8, s9')

def g1_consumer(a, cfg, prof):
    a('s_and_b32 s10, s3, 1')
    a('s_lshr_b32 s11, s3, 1')
    a('v_and_b32 v2, 31, v1')
    a('v_lshrrev_b32 v3, 5, v1')
    a('v_lshrrev_b32 v9, 1, v2')
    a('v_and_b32 v9, 7, v9')
    a('v_xor_b32 v9, v9, v3')
    a('v_lshlrev_b32 v9, 4, v9')
    a('v_lshl_add_u32 v9, v2, 7, v9')
    a('s_lshl_b32 s12, s11, 13')
    a('v_add_u32 v4, s12, v9')
    a('v_xor_b32 v5, 32, v4')
    a('v_xor_b32 v6, 64, v4')
    a('v_xor_b32 v7, 96, v4')
    a('v_bfe_u32 v9, v1, 4, 1')
    a('v_mul_u32_u24 v8, 12320, v9')
    a('v_bfe_u32 v9, v1, 2, 2')
    a('v_lshl_add_u32 v9, v3, 3, v9')
    a('v_mul_u32_u24 v9, 192, v9')
    a('v_add_u32 v8, v8, v9')
    a('v_and_b32 v9, 3, v1')
    a('v_lshl_add_u32 v8, v9, 3, v8')
    a('s_mul_i32 s12, s10, 96')
    a('s_add_u32 s12, s12, %d' % OFF_GATE)
    a('v_add_u32 v8, s12, v8')
    a('v_lshrrev_b32 v9, 4, v2')
    a('v_lshlrev_b32 v10, 10, v9')
    a('v_lshl_add_u32 v10, v3, 8, v10')
    a('v_and_b32 v9, 15, v2')
    a('v_lshl_add_u32 v10, v9, 4, v10')
    a('s_lshl_b32 s12, s6, 2')
    a('s_add_u32 s12, s12, s7')
    a('s_lshl_b32 s12, s12, 1')
    a('s_add_u32 s12, s12, s11')
    a('s_mul_i32 s12, s12, 196608')
    a('s_mul_i32 s13, s8, 6')
    a('s_mul_i32 s14, s10, 3')
    a('s_add_u32 s13, s13, s14')
    for tt in range(3):
        a('s_add_u32 s14, s13, %d' % tt)
        a('s_lshr_b32 s15, s14, 1')
        a('s_lshl_b32 s15, s15, 12')
        a('s_and_b32 s14, s14, 1')
        a('s_lshl_b32 s14, s14, 9')
        a('s_add_u32 s14, s14, s15')
        a('s_add_u32 s%d, s14, s12' % (76 + tt))
    a.emit('s_waitcnt lgkmcnt(0)')
    srd(a, 44, P_WS, SZ_H, WS_H)
    ACC = 64
    FB = [16, 40]
    def acc(tt, b): return ACC + (tt * 2 + b) * 16
    def reads(buf, ks):
        f = FB[buf]
        def A(tt):
            return ['ds_read_b64_tr_b16 v[%d:%d], v8 offset:%d' % (f + 4 * tt + 2 * t, f + 4 * tt + 2 * t + 1, ks * 3072 + t * 768 + tt * 32) for t in range(2)]
        def B(b):
            return ['ds_read_b128 v[%d:%d], v%d offset:%d' % (f + 12 + 4 * b, f + 15 + 4 * b, 4 + ks, b * 4096)]
        if cfg.noread: return ['ds_read_b32 v12, v8'] * 0 + ['s_nop 0'] * 8
        return A(0) + B(0) + B(1) + A(1) + A(2)
    order = [(0, 0, 2), (0, 1, 3), (1, 0, 5), (1, 1, 5), (2, 0, 7), (2, 1, 7)]
    a('s_barrier')
    prof.stamp(1); prof.cyc(5)
    toks = [a.emit(r) for r in reads(0, 0)]
    cur = 0
    if cfg.nomfma:
        for st in range(NSTAGE - 1): a('s_barrier')
    for st in range(NSTAGE if cfg.nomfma else 0, NSTAGE):
        for ks in range(4):
            last = (st == NSTAGE - 1 and ks == 3)
            nxt = None if last else reads(1 - cur, (ks + 1) % 4)
            ntoks = []
            f = FB[cur]
            for mi, (tt, b, need_i) in enumerate(order):
                a.wait_lg(toks[need_i])
                c = '0' if (st == 0 and ks == 0) else vr(acc(tt, b), 16)
                if cfg.mf16:
                    for hh in range(2):
                        x = acc(tt, b) + 4 * (2 * (ks & 1) + hh)
                        a('v_mfma_f32_16x16x32_bf16 %s, %s, %s, %s' % (vr(x, 4), vr(f + 4 * tt, 4), vr(f + 12 + 4 * b, 4), '0' if (st == 0 and ks < 2) else vr(x, 4)))
                else:
                    a('v_mfma_f32_32x32x16_bf16 %s, %s, %s, %s' % (vr(acc(tt, b), 16), vr(f + 4 * tt, 4), vr(f + 12 + 4 * b, 4), c))
                if nxt is not None:
                    if ks == 3:
                        if mi == 0:
                            a.wait_all_lg()
                            d = SLOT if (st + 1) % NSLOT else -(NSLOT - 1) * SLOT
                            for r in (4, 5, 6, 7, 8):
                                a('v_add_u32 v%d, 0x%x, v%d' % (r, u32(d), r))
                            a('s_barrier')
                        sched = {1: 3, 2: 2, 3: 2, 4: 1}
                    else:
                        sched = {0: 2, 1: 2, 2: 2, 3: 2}
                    for _ in range(sched.get(mi, 0)):
                        ntoks.append(a.emit(nxt[len(ntoks)]))
            toks = ntoks
            cur = 1 - cur
    prof.stamp(2); prof.cyc(6)
    for tt in range(3):
        for b in range(2):
            x = acc(tt, b)
            o = 16 + ((tt * 2 + b) % 2) * 4
            w = 24 + ((tt * 2 + b) % 2) * 16
            if cfg.h_mimic:
                for p in range(4):
                    a('v_cvt_pk_bf16_f32 v%d, v%d, v%d' % (w + p, x + 2 * p, x + 2 * p + 1))
                    a('v_cvt_pk_bf16_f32 v%d, v%d, v%d' % (w + 4 + p, x + 8 + 2 * p, x + 8 + 2 * p + 1))
                for p in range(4):
                    unpack_lo(a, x + 2 * p, w + p); unpack_hi(a, x + 2 * p + 1, w + p)
                    unpack_lo(a, x + 8 + 2 * p, w + 4 + p); unpack_hi(a, x + 8 + 2 * p + 1, w + 4 + p)
            for p in range(4):
                a('v_pk_mul_f32 %s, %s, %s' % (P2(x + 2 * p), P2(x + 2 * p), P2(x + 8 + 2 * p)))
            for p in range(4):
                a('v_cvt_pk_bf16_f32 v%d, v%d, v%d' % (o + p, x + 2 * p, x + 2 * p + 1))
            a('buffer_store_dwordx4 %s, v10, s[44:47], s%d offen offset:%d%s' % (vr(o, 4), 76 + tt, b * 2048, ' sc1' if cfg.h_sc1 else ''))
    prof.stamp(3)

def g1_loader(a, cfg, prof, end):
    NT = ' nt' if cfg.nt else ''
    SC = ' sc1' if cfg.st_sc1 else ''
    a('s_and_b32 s10, s3, 3')
    a('v_lshrrev_b32 v9, 3, v1')
    a('v_and_b32 v10, 7, v1')
    a('v_lshrrev_b32 v11, 1, v9')
    a('v_xor_b32 v10, v10, v11')
    a('v_lshlrev_b32 v10, 4, v10')
    a('s_mov_b32 s12, 81920')
    a('v_mul_lo_u32 v9, v9, s12')
    a('v_add_u32 v2, v9, v10')
    a('v_xor_b32 v10, 64, v10')
    a('v_add_u32 v3, v9, v10')
    a('v_add_u32 v3, 256, v3')
    a('v_add_u32 v4, 512, v2')
    a('v_add_u32 v5, 512, v3')
    for i in range(3):
        a('v_add_u32 v9, %d, v1' % (64 * i))
        a('v_mul_u32_u24 v10, 5462, v9')
        a('v_lshrrev_b32 v10, 16, v10')
        a('v_mul_u32_u24 v11, 12, v10')
        a('v_sub_u32 v11, v9, v11')
        a('v_mul_u32_u24 v10, 3072, v10')
        a('v_lshl_add_u32 v10, v11, 4, v10')
        a('v_subrev_u32 v%d, %d, v10' % (6 + i, 1024 * i))
    a('s_lshl_b32 s12, s6, 9')
    a('s_lshl_b32 s13, s7, 4')
    a('s_add_u32 s12, s12, s13')
    a('s_lshl_b32 s13, s10, 2')
    a('s_add_u32 s12, s12, s13')
    a('s_mul_i32 s12, s12, 1280')
    a('s_mul_i32 s13, s10, 49152')
    a('s_mul_i32 s14, s8, 192')
    a('s_add_u32 s13, s13, s14')
    a('s_lshl_b32 s14, s10, 12')
    a('s_mul_i32 s15, s10, 3072')
    if cfg.rot:
        a('s_mul_i32 s96, s7, 10')
        a('s_mul_i32 s97, s9, 5')
        a('s_add_u32 s96, s96, s97')
        a('s_lshr_b32 s96, s96, 2')
        a('s_cmp_ge_u32 s96, 10')
        a('s_cselect_b32 s97, 10, 0')
        a('s_sub_u32 s96, s96, s97')
        a('s_lshl_b32 s97, s96, 7')
        a('s_add_u32 s12, s12, s97')
        a('s_mul_i32 s97, s96, 196608')
        a('s_add_u32 s13, s13, s97')
    a.emit('s_waitcnt lgkmcnt(0)')
    prof.stamp(3)
    srd(a, 44, P_Q, SZ_X)
    srd(a, 48, P_WG, SZ_W)
    srd(a, 52, P_WU, SZ_W)
    stage_tok = {}
    def issue_stage(st):
        base = (st % NSLOT) * SLOT
        if cfg.noload:
            stage_tok[st] = -1
            return
        a('s_add_u32 m0, s14, %d' % base)
        for i in range(4):
            a('buffer_load_dwordx4 v%d, s[44:47], s12 offen offset:%d lds' % (2 + i, 1024 * i))
        a('s_add_u32 m0, s15, %d' % (base + OFF_GATE))
        for i in range(3):
            a('buffer_load_dwordx4 v%d, s[48:51], s13 offen offset:%d lds' % (6 + i, 1024 * i))
        a('s_add_u32 m0, s15, %d' % (base + OFF_UP))
        for i in range(3):
            t = a.emit('buffer_load_dwordx4 v%d, s[52:55], s13 offen offset:%d lds' % (6 + i, 1024 * i))
        stage_tok[st] = t
        if cfg.rot:
            a('s_add_u32 s96, s96, 1')
            a('s_cmp_eq_u32 s96, 10')
            a('s_cselect_b32 s97, 1280, 0')
            a('s_cselect_b32 s95, 1966080, 0')
            a('s_sub_u32 s12, s12, s97')
            a('s_sub_u32 s13, s13, s95')
            a('s_add_u32 s12, s12, 128')
            a('s_add_u32 s13, s13, 196608')
        else:
            a('s_add_u32 s12, s12, 128')
            a('s_add_u32 s13, s13, 196608')
    issue_stage(0)
    issue_stage(1)
    prof.stamp(5)
    GX, GW = 132, 144
    tk = {}
    def g_loads():
        srd(a, 64, P_GW, 1280)
        a('s_and_b32 s76, s4, 1')
        a('s_lshl_b32 s76, s76, 5')
        a('s_add_u32 s76, s76, s5')
        a('s_lshl_b32 s76, s76, 3')
        a('s_lshl_b32 s77, s6, 9')
        a('s_add_u32 s76, s76, s77')
        a('s_lshl_b32 s77, s10, 1')
        a('s_add_u32 s76, s76, s77')
        a('v_lshrrev_b32 v9, 5, v1')
        a('v_add_u32 v9, s76, v9')
        a('v_and_b32 v10, 31, v1')
        a('v_lshlrev_b32 v11, 4, v10')
        a('v_mul_u32_u24 v12, 1280, v9')
        a('v_add_u32 v12, v12, v11')
        a('v_cmp_gt_u32 vcc, 16, v10')
        a('v_mov_b32 v15, 0x%x' % OOB)
        a('v_cndmask_b32 v13, v15, v12, vcc')
        a('buffer_load_dwordx4 %s, v12, s[44:47], 0 offen' % vr(GX, 4))
        a('buffer_load_dwordx4 %s, v12, s[44:47], 0 offen offset:512' % vr(GX + 4, 4))
        a('buffer_load_dwordx4 %s, v13, s[44:47], 0 offen offset:1024' % vr(GX + 8, 4))
        a('buffer_load_dwordx4 %s, v11, s[64:67], 0 offen' % vr(GW, 4))
        a('buffer_load_dwordx4 %s, v11, s[64:67], 0 offen offset:512' % vr(GW + 4, 4))
        tk['g'] = a.emit('buffer_load_dwordx4 %s, v11, s[64:67], 0 offen offset:1024' % vr(GW + 8, 4))
        a('v_lshlrev_b32 v14, 2, v9')
        a('v_cmp_eq_u32 vcc, 31, v10')
        a('v_cndmask_b32 v14, v15, v14, vcc')
    def ssmk_pf():
        if cfg.smem_pf: return
        srd(a, 72, P_SSMK, SZ_X)
        a('s_mul_i32 s76, s4, 128')
        a('s_lshl_b32 s77, s5, 2')
        a('s_add_u32 s76, s76, s77')
        a('s_add_u32 s76, s76, s10')
        a('s_mul_i32 s76, s76, 2560')
        a('v_lshlrev_b32 v9, 7, v1')
        a('v_cmp_gt_u32 vcc, 20, v1')
        a('v_mov_b32 v15, 0x%x' % OOB)
        a('v_cndmask_b32 v9, v15, v9, vcc')
        a('buffer_load_dword v19, v9, s[72:75], s76 offen')
    def g_compute():
        a.wait_vm(tk['g'])
        a('v_mov_b32 v16, 0')
        for i in range(12):
            a('v_dot2_f32_bf16 v16, v%d, v%d, v16' % (GX + i, GW + i))
        a('s_nop 2')
        for sh in (1, 2, 4, 8):
            a('v_add_f32_dpp v16, v16, v16 row_shr:%d row_mask:0xf bank_mask:0xf bound_ctrl:0' % sh)
        a('v_add_f32_dpp v16, v16, v16 row_bcast:15 row_mask:0xa bank_mask:0xf')
        a('v_cvt_pk_bf16_f32 v16, v16, v16')
        a('v_and_b32 v16, 0xffff0000, v16')
        a('v_mul_f32 v16, 0xbfb8aa3b, v16')
        a('v_exp_f32 v16, v16')
        a('v_add_f32 v16, 1.0, v16')
        a('v_rcp_f32 v16, v16')
        a('v_cvt_pk_bf16_f32 v16, v16, v16')
        a('v_and_b32 v16, 0xffff0000, v16')
        srd(a, 64, P_WS, SZ_G, WS_G)
        a('buffer_store_dword v16, v14, s[64:67], 0 offen' + SC)
    def sentinel():
        srd(a, 72, P_WS, SZ_Y2, WS_Y2)
        a('s_lshl_b32 s76, s2, 2')
        a('s_add_u32 s76, s76, s10')
        a('s_mul_i32 s76, s76, 3072')
        a('v_lshlrev_b32 v17, 4, v1')
        for i in range(4): a('v_mov_b32 v%d, -1' % (20 + i))
        for i in range(3):
            a('buffer_store_dwordx4 v[20:23], v17, s[72:75], s76 offen offset:%d%s' % (1024 * i, SC))
    spf = []
    def spf_setup():
        a('s_lshl_b32 s76, s5, 2')
        a('s_add_u32 s76, s76, s10')
        a('s_lshl_b32 s77, s4, 7')
        a('s_add_u32 s76, s76, s77')
        a('s_mul_i32 s77, s76, 2560')
        a('s_add_u32 s80, s%d, s77' % P_K); a('s_addc_u32 s81, s%d, 0' % (P_K + 1))
        a('s_add_u32 s82, s%d, s77' % P_V); a('s_addc_u32 s83, s%d, 0' % (P_V + 1))
        a('s_add_u32 s84, s%d, s77' % P_SSMK); a('s_addc_u32 s85, s%d, 0' % (P_SSMK + 1))
        a('s_mul_i32 s77, s76, 1920')
        a('s_add_u32 s86, s%d, s77' % P_WD); a('s_addc_u32 s87, s%d, 0' % (P_WD + 1))
        for i in range(20):
            spf.append((80, 128 * i)); spf.append((82, 128 * i))
        for i in range(15): spf.append((86, 128 * i))
        for i in range(20): spf.append((84, 128 * i))
    def spf_issue(n):
        for _ in range(n):
            if not spf: return
            b, off = spf.pop(0)
            a('s_load_dword s88, s[%d:%d], %d' % (b, b + 1, off))
    if cfg.smem_pf:
        spf_setup(); spf_issue(12)
    def interval(i, slices):
        a.wait_vm(stage_tok[i])
        if cfg.lstamp and not cfg.smem_pf: prof.stamp(10 + i)
        a('s_barrier')
        if cfg.lstamp and not cfg.smem_pf: prof.stamp(20 + i)
        if i + NSLOT - 1 < NSTAGE: issue_stage(i + NSLOT - 1)
        if cfg.smem_pf: spf_issue(cfg.smem_pf)
        if cfg.lstamp and not cfg.smem_pf: prof.stamp(30 + i)
        if not cfg.noaux:
            for f in slices.get(i, []): f()
    AUX0 = cfg.aux0
    for i in range(AUX0): interval(i, {0: [sentinel]})
    a('s_cmp_ge_u32 s5, 20')
    a('s_cbranch_scc1 L1_typeB')
    saved = (list(a.vmq), dict(stage_tok), list(a.hist), list(spf))

    KR, VR_, WR = 32, 60, 76
    def kv_loads():
        srd(a, 56, P_K, SZ_X); srd(a, 60, P_V, SZ_X); srd(a, 68, P_SHK, 5120)
        a('s_cmp_ge_u32 s5, 10')
        a('s_cselect_b32 s76, 1, 0')
        a('s_cselect_b32 s77, 10, 0')
        a('s_sub_u32 s77, s5, s77')
        a('s_lshl_b32 s78, s4, 1')
        a('s_add_u32 s76, s76, s78')
        a('s_lshl_b32 s76, s76, 7')
        a('s_lshl_b32 s78, s10, 5')
        a('s_add_u32 s76, s76, s78')
        a('v_lshrrev_b32 v9, 3, v1')
        a('v_lshlrev_b32 v9, 2, v9')
        a('v_add_u32 v9, s76, v9')
        a('v_and_b32 v10, 7, v1')
        a('v_mul_u32_u24 v11, 1280, v9')
        a('v_lshl_add_u32 v11, v10, 4, v11')
        a('s_lshl_b32 s78, s77, 7')
        a('v_add_u32 v11, s78, v11')
        a('v_subrev_u32 v12, 3840, v11')
        a('v_subrev_u32 v13, 2560, v11')
        a('v_subrev_u32 v15, 1280, v11')
        KNT = '' if cfg.smem_pf else NT
        for i in range(4):
            a('buffer_load_dwordx4 %s, v11, s[56:59], 0 offen offset:%d%s' % (vr(KR + 12 + 4 * i, 4), 1280 * i, KNT))
        for i in range(4):
            a('buffer_load_dwordx4 %s, v11, s[60:63], 0 offen offset:%d%s' % (vr(VR_ + 4 * i, 4), 1280 * i, KNT))
        a('buffer_load_dwordx4 %s, v12, s[56:59], 0 offen%s' % (vr(KR, 4), KNT))
        a('buffer_load_dwordx4 %s, v13, s[56:59], 0 offen%s' % (vr(KR + 4, 4), KNT))
        a('buffer_load_dwordx4 %s, v15, s[56:59], 0 offen%s' % (vr(KR + 8, 4), KNT))
        a('s_lshl_b32 s78, s77, 9')
        a('v_lshlrev_b32 v12, 6, v10')
        a('v_add_u32 v12, s78, v12')
        for i in range(4):
            tk['kv'] = a.emit('buffer_load_dwordx4 %s, v12, s[68:71], 0 offen offset:%d' % (vr(WR + 4 * i, 4), 16 * i))
        a('s_lshl_b32 s78, s77, 18')
        a('v_lshlrev_b32 v18, 15, v10')
        a('v_add_u32 v18, s78, v18')
        a('v_lshl_add_u32 v18, v9, 1, v18')
    def kv_part(pairs):
        def f():
            a.wait_vm(tk['kv'])
            if pairs[0] == 0:
                srd(a, 68, P_WS, SZ_UT, WS_UT)
            U = 92
            for cp in pairs:
                for r in range(7):
                    unpack_lo(a, U + 2 * r, KR + 4 * r + cp); unpack_hi(a, U + 2 * r + 1, KR + 4 * r + cp)
                for r in range(4):
                    unpack_lo(a, U + 14 + 2 * r, VR_ + 4 * r + cp); unpack_hi(a, U + 15 + 2 * r, VR_ + 4 * r + cp)
                for h in range(2):
                    unpack_lo(a, U + 22 + h, WR + 4 * cp + 2 * h); unpack_hi(a, U + 24 + h, WR + 4 * cp + 2 * h)
                    unpack_lo(a, U + 26 + h, WR + 4 * cp + 2 * h + 1); unpack_hi(a, U + 28 + h, WR + 4 * cp + 2 * h + 1)
                AC = U + 30
                for i in range(4):
                    a('v_pk_mul_f32 %s, %s, %s' % (P2(AC + 2 * i), P2(U + 2 * i), P2(U + 28)))
                for tap in (2, 1, 0):
                    for i in range(4):
                        a('v_pk_fma_f32 %s, %s, %s, %s' % (P2(AC + 2 * i), P2(U + 2 * (i + 3 - tap)), P2(U + 22 + 2 * tap), P2(AC + 2 * i)))
                for i in range(4):
                    a('v_pk_mul_f32 %s, %s, %s' % (P2(AC + 2 * i), P2(AC + 2 * i), P2(U + 14 + 2 * i)))
                O = 24 + (cp & 1) * 4
                for h in range(2):
                    a('v_cvt_pk_bf16_f32 v%d, v%d, v%d' % (O + 2 * h, AC + h, AC + 2 + h))
                    a('v_cvt_pk_bf16_f32 v%d, v%d, v%d' % (O + 2 * h + 1, AC + 4 + h, AC + 6 + h))
                for h in range(2):
                    a('s_mov_b32 s76, %d' % (4096 * (2 * cp + h)))
                    a('buffer_store_dwordx2 %s, v18, s[68:71], s76 offen%s' % (vr(O + 2 * h, 2), SC))
        return f
    def sched(loads, comps):
        sl = {}
        for i, f in enumerate(loads): sl.setdefault(min(AUX0 + i // 2, 9), []).append(f)
        c0 = min(AUX0 + 2, 9)
        for i, f in enumerate(comps): sl.setdefault(min(c0 + i, 9), []).append(f)
        return sl
    slA = sched([kv_loads, g_loads, ssmk_pf], [kv_part([0]), kv_part([1]), kv_part([2]), kv_part([3]), g_compute])
    for i in range(AUX0, NSTAGE): interval(i, slA)
    prof.stamp(4)
    end(a, 'A')

    a.vmq, stage_tok, a.hist = list(saved[0]), dict(saved[1]), list(saved[2])
    spf[:] = saved[3]
    a.lgq = []
    a.label('L1_typeB')
    def wd_loads():
        srd(a, 56, P_WD, SZ_W)
        a('s_mul_i32 s78, s4, 12')
        a('s_add_u32 s78, s78, s5')
        a('s_sub_u32 s78, s78, 20')
        a('s_lshl_b32 s78, s78, 2')
        a('s_add_u32 s78, s78, s10')
        a('s_lshr_b32 s79, s78, 3')
        a('s_and_b32 s78, s78, 7')
        a('s_mul_i32 s76, s79, 40960')
        a('s_mul_i32 s77, s78, 160')
        a('s_add_u32 s76, s76, s77')
        a('s_mul_i32 s89, s10, 5120')
        a('s_add_u32 s89, s89, %d' % SCR)
        for i in range(5):
            a('v_add_u32 v9, %d, v1' % (64 * i))
            a('v_mul_u32_u24 v10, 6554, v9')
            a('v_lshrrev_b32 v10, 16, v10')
            a('v_mul_u32_u24 v11, 10, v10')
            a('v_sub_u32 v11, v9, v11')
            a('v_mul_u32_u24 v10, 1280, v10')
            a('v_lshl_add_u32 v10, v11, 4, v10')
            a('s_add_u32 m0, s89, %d' % (1024 * i))
            tk['wd'] = a.emit('buffer_load_dwordx4 v10, s[56:59], s76 offen%s lds' % ('' if cfg.smem_pf else NT))
    def wd_part():
        a('v_lshrrev_b32 v9, 5, v1')
        a('v_lshlrev_b32 v9, 4, v9')
        a('v_bfe_u32 v10, v1, 2, 3')
        a('v_add_u32 v9, v9, v10')
        a('v_mul_u32_u24 v9, 160, v9')
        a('v_and_b32 v10, 3, v1')
        a('v_lshl_add_u32 v9, v10, 3, v9')
        a('v_add_u32 v9, s89, v9')
        srd(a, 60, P_WS, SZ_WD, WS_WD)
        a('s_mul_i32 s76, s78, 245760')
        a('s_mul_i32 s77, s79, 5120')
        a('s_add_u32 s76, s76, s77')
        a('s_add_u32 s77, s76, 4096')
        a('v_lshlrev_b32 v17, 4, v1')
        a.wait_vm(tk['wd'])
        for dl in range(5):
            for t in range(2):
                a('ds_read_b64_tr_b16 v[%d:%d], v9 offset:%d' % (32 + 4 * dl + 2 * t, 33 + 4 * dl + 2 * t, t * 1280 + dl * 32))
        a.wait_all_lg()
        for dl in range(5):
            if dl < 4:
                a('buffer_store_dwordx4 %s, v17, s[60:63], s76 offen offset:%d%s' % (vr(32 + 4 * dl, 4), 1024 * dl, SC))
            else:
                a('buffer_store_dwordx4 %s, v17, s[60:63], s77 offen%s' % (vr(32 + 4 * dl, 4), SC))
    slB = sched([wd_loads, g_loads, ssmk_pf], [wd_part, g_compute])
    for i in range(AUX0, NSTAGE): interval(i, slB)
    prof.stamp(4)
    end(a, 'B')

CV = 9216
def g2_ids(a):
    a('s_and_b32 s7, s5, 7')
    a('s_and_b32 s8, s4, 1')
    a('s_lshl_b32 s8, s8, 2')
    a('s_lshr_b32 s9, s5, 3')
    a('s_add_u32 s8, s8, s9')
    a('s_and_b32 s10, s3, 3')
    a('v_and_b32 v2, 7, v1')
    a('v_lshlrev_b32 v2, 6, v2')
    a('v_bfe_u32 v3, v1, 3, 1')
    a('v_add_u32 v2, v2, v3')
    a('s_lshl_b32 s11, s6, 9')
    a('s_lshl_b32 s12, s7, 3')
    a('s_add_u32 s11, s11, s12')
    a('s_lshl_b32 s12, s10, 1')
    a('s_add_u32 s11, s11, s12')
    a('v_add_u32 v2, s11, v2')
    a('v_mul_u32_u24 v3, 1280, v2')
    a('v_lshrrev_b32 v4, 4, v1')
    a('v_lshl_add_u32 v3, v4, 3, v3')
    a('s_mul_i32 s12, s8, 160')
    a('v_add_u32 v3, s12, v3')
    a('v_lshlrev_b32 v2, 2, v2')
    a('v_lshlrev_b32 v4, 4, v1')

def g2_gemm(a, cfg, prof, RED, kernarg_wait=True):
    a('v_add_u32 v5, 4096, v4')
    a('s_lshl_b32 s11, s6, 3')
    a('s_add_u32 s11, s11, s7')
    a('s_mul_i32 s11, s11, 196608')
    a('s_mul_i32 s12, s10, 49152')
    a('s_add_u32 s11, s11, s12')
    a('s_mul_i32 s12, s8, 245760')
    a('s_mul_i32 s13, s10, 61440')
    a('s_add_u32 s12, s12, s13')
    if cfg.rot2:
        a('s_mul_i32 s96, s9, 6')
        a('s_mul_i32 s97, s7, 3')
        a('s_add_u32 s96, s96, s97')
        a('s_lshr_b32 s96, s96, 1')
        a('s_cmp_ge_u32 s96, 12')
        a('s_cselect_b32 s97, 12, 0')
        a('s_sub_u32 s96, s96, s97')
        a('s_lshl_b32 s97, s96, 12')
        a('s_add_u32 s11, s11, s97')
        a('s_mul_i32 s97, s96, 5120')
        a('s_add_u32 s12, s12, s97')
    if kernarg_wait: a.emit('s_waitcnt lgkmcnt(0)')
    srd(a, 44, P_WS, SZ_H, WS_H)
    srd(a, 48, P_WS, SZ_WD, WS_WD)
    DEPTH = cfg.depth2
    BUF, ACC = 8, 152
    def acc(dl, sg): return ACC + (sg * 5 + dl) * 4
    toks = {}
    def issue(k):
        b = BUF + (k % DEPTH) * 36
        for dl in range(5):
            if dl < 4:
                a('buffer_load_dwordx4 %s, v4, s[48:51], s12 offen offset:%d' % (vr(b + 4 * dl, 4), 1024 * dl))
            else:
                a('buffer_load_dwordx4 %s, v5, s[48:51], s12 offen' % vr(b + 16, 4))
        for sg in range(4):
            toks[(k, sg)] = a.emit('buffer_load_dwordx4 %s, v4, s[44:47], s11 offen offset:%d' % (vr(b + 20 + 4 * sg, 4), 1024 * sg))
        a('s_add_u32 s11, s11, 4096')
        a('s_add_u32 s12, s12, 5120')
        if cfg.rot2:
            a('s_add_u32 s96, s96, 1')
            a('s_cmp_eq_u32 s96, 12')
            a('s_cselect_b32 s97, 49152, 0')
            a('s_cselect_b32 s95, 61440, 0')
            a('s_sub_u32 s11, s11, s97')
            a('s_sub_u32 s12, s12, s95')
    for k in range(DEPTH): issue(k)
    srd(a, 52, P_WS, SZ_G, WS_G)
    srd(a, 56, P_OUT, SZ_X)
    for k in range(12):
        b = BUF + (k % DEPTH) * 36
        for sg in range(4):
            a.wait_vm(toks[(k, sg)])
            if sg == 0: prof.stamp(10 + k if k < 10 else 10 + k)
            for dl in range(5):
                c = '0' if k == 0 else vr(acc(dl, sg), 4)
                a('v_mfma_f32_16x16x32_bf16 %s, %s, %s, %s' % (vr(acc(dl, sg), 4), vr(b + 4 * dl, 4), vr(b + 20 + 4 * sg, 4), c))
        if k + DEPTH < 12: issue(k + DEPTH)
        if k == 8:
            gt = a.emit('buffer_load_dword v6, v2, s[52:55], 0 offen')
    prof.stamp(2)
    a('s_mul_i32 s13, s10, 20480')
    a('s_add_u32 s13, s13, %d' % RED)
    a('v_add_u32 v7, s13, v4')
    a('s_nop 7')
    for w in range(4):
        a('s_cmp_eq_u32 s10, %d' % w)
        a('s_cbranch_scc1 L2_fin%d' % w)
    hist0 = list(a.hist); vmq0 = list(a.vmq)
    for w in range(4):
        a.hist = list(hist0); a.vmq = list(vmq0); a.lgq = []
        a.label('L2_fin%d' % w)
        for sg in range(4):
            if sg == w: continue
            for dl in range(5):
                a('ds_write_b128 v7, %s offset:%d' % (vr(acc(dl, sg), 4), sg * 5120 + dl * 1024))
        a.wait_vm(gt)
        a('v_sub_f32 v6, 1.0, v6')
        a('v_cvt_pk_bf16_f32 v6, v6, v6')
        a('v_and_b32 v6, 0xffff0000, v6')
        a('v_add_u32 v7, %d, v4' % (RED + w * 5120))
        a('v_add_u32 v5, 40960, v7')
        a.wait_all_lg()
        a('s_barrier')
        prof.stamp(3)
        tk = {}
        srcs = [x for x in range(4) if x != w] + [4]
        for dl in range(5):
            for si, x in enumerate(srcs):
                off = x * 20480 + dl * 1024
                base = 'v7'
                if off >= 40960: base = 'v5'; off -= 40960
                tk[(dl, si)] = a.emit('ds_read_b128 %s, %s offset:%d' % (vr(8 + (dl * 4 + si) * 4, 4), base, off))
        for dl in range(5):
            x = acc(dl, w)
            for si in range(3):
                a.wait_lg(tk[(dl, si)])
                r = 8 + (dl * 4 + si) * 4
                a('v_pk_add_f32 %s, %s, %s' % (P2(x), P2(x), P2(r)))
                a('v_pk_add_f32 %s, %s, %s' % (P2(x + 2), P2(x + 2), P2(r + 2)))
            ga = 8 + (dl * 4 + 3) * 4
            t = 96 + (dl & 1) * 4
            if cfg.out_mimic:
                a('v_cvt_pk_bf16_f32 v%d, v%d, v%d' % (t, x, x + 1))
                a('v_cvt_pk_bf16_f32 v%d, v%d, v%d' % (t + 1, x + 2, x + 3))
                unpack_lo(a, x, t); unpack_hi(a, x + 1, t); unpack_lo(a, x + 2, t + 1); unpack_hi(a, x + 3, t + 1)
                for i in range(4): a('v_mul_f32 v%d, v6, v%d' % (x + i, x + i))
                a('v_cvt_pk_bf16_f32 v%d, v%d, v%d' % (t, x, x + 1))
                a('v_cvt_pk_bf16_f32 v%d, v%d, v%d' % (t + 1, x + 2, x + 3))
                unpack_lo(a, x, t); unpack_hi(a, x + 1, t); unpack_lo(a, x + 2, t + 1); unpack_hi(a, x + 3, t + 1)
                a.wait_lg(tk[(dl, 3)])
                a('v_pk_add_f32 %s, %s, %s' % (P2(x), P2(x), P2(ga)))
                a('v_pk_add_f32 %s, %s, %s' % (P2(x + 2), P2(x + 2), P2(ga + 2)))
            else:
                a.wait_lg(tk[(dl, 3)])
                for i in range(4): a('v_fma_f32 v%d, v6, v%d, v%d' % (x + i, x + i, ga + i))
            a('v_cvt_pk_bf16_f32 v%d, v%d, v%d' % (t + 2, x, x + 1))
            a('v_cvt_pk_bf16_f32 v%d, v%d, v%d' % (t + 3, x + 2, x + 3))
            a('buffer_store_dwordx2 %s, v3, s[56:59], 0 offen offset:%d' % (vr(t + 2, 2), dl * 32))
        prof.stamp(4)
        prof.flush()
        a('s_endpgm')

def conv_body(a, cfg, prof):
    a('s_setprio 1')
    srd(a, 48, P_SSMK, SZ_X)
    srd(a, 52, P_WS, SZ_UT, WS_UT)
    a('s_mul_i32 s11, s4, 20')
    a('s_add_u32 s11, s11, s5')
    a('s_lshl_b32 s11, s11, 2')
    a('s_add_u32 s11, s11, s10')
    a('s_lshl_b32 s12, s11, 12')
    a('v_bfe_u32 v5, v1, 4, 1')
    a('v_lshlrev_b32 v5, 1, v5')
    a('v_xor_b32 v5, v5, v1')
    a('v_lshlrev_b32 v5, 4, v5')
    PD, QD = 512, 4672
    a('s_add_u32 m0, s13, %d' % QD)
    for i in range(4):
        a('buffer_load_dwordx4 v4, s[52:55], s12 offen offset:%d lds' % (1024 * i))
    a('s_add_u32 m0, s13, %d' % PD)
    for i in range(4):
        dma_tok = a.emit('buffer_load_dwordx4 v5, s[48:51], s12 offen offset:%d lds' % (1024 * i))
    a('s_and_b32 s14, s11, 0xfffffffe')
    a('s_lshl_b32 s14, s14, 1')
    a('s_load_dword s15, s[26:27], s14')
    for i in range(4): a('v_mov_b32 v%d, 0' % (8 + i))
    a('v_and_b32 v6, 31, v1')
    a('v_lshlrev_b32 v6, 4, v6')
    a('v_add_u32 v6, s13, v6')
    a('ds_write_b128 v6, v[8:11]')
    a('v_and_b32 v6, 3, v1')
    a('v_lshlrev_b32 v6, 4, v6')
    a('v_add_u32 v6, s13, v6')
    a('ds_write_b128 v6, v[8:11] offset:4608')
    a('v_bfe_u32 v8, v1, 4, 1')
    a('v_bfe_u32 v9, v1, 2, 2')
    a('v_and_b32 v10, 3, v1')
    a('v_lshrrev_b32 v11, 5, v1')
    VQ, VU, VP = 12, 13, 14
    a('v_add_u32 v6, v10, v9')
    a('v_lshlrev_b32 v6, 3, v6')
    a('v_lshl_add_u32 v6, v8, 5, v6')
    a('v_lshl_add_u32 v6, v11, 6, v6')
    a('s_add_u32 s14, s13, %d' % (QD - 56))
    a('v_add_u32 v%d, s14, v6' % VQ)
    a('s_add_u32 s14, s13, %d' % QD)
    a('v_lshlrev_b32 v6, 1, v1')
    a('v_add_u32 v%d, s14, v6' % VU)
    a('v_lshlrev_b32 v6, 7, v8')
    a('v_lshl_add_u32 v6, v10, 5, v6')
    a('v_lshlrev_b32 v7, 5, v11')
    a('v_sub_u32 v6, v6, v7')
    a('v_lshlrev_b32 v7, 2, v9')
    a('v_sub_u32 v6, v6, v7')
    for j in range(4):
        for t in range(2):
            d = VP + 2 * j + t
            a('v_add_u32 v7, %d, v6' % (256 - 64 * j + 28 - 16 * t))
            a('v_bfe_u32 v8, v7, 7, 1')
            a('v_lshlrev_b32 v8, 4, v8')
            a('v_xor_b32 v7, v7, v8')
            a('v_lshlrev_b32 v7, 1, v7')
            a('v_add_u32 v%d, s13, v7' % d)
    QC = 24
    ACCS = [152, 168]
    PR = 184; NP = 6
    CAR = 208; UR = 212; TM = 216; YO = 232
    for i in range(3): a('v_mov_b32 v%d, 0' % (CAR + i))
    for i in range(4): a('v_mov_b32 v%d, 0' % (UR + i))
    a('s_mov_b32 s60, 0')
    a('s_mov_b32 s61, 0x80000000')
    a('v_mov_b32 v%d, 0xfffefffe' % (TM + 15))
    a.emit('s_waitcnt lgkmcnt(0)'); a.lgq = []
    a('s_and_b32 s14, s11, 1')
    a('s_lshl_b32 s14, s14, 4')
    a('s_lshr_b32 s15, s15, s14')
    a('s_lshl_b32 s15, s15, 16')
    a.wait_vm(dma_tok)
    prof.stamp(1)
    ml = [(tau, kap, 4 * tau - kap) for tau in range(8) for kap in range(4 * tau + 4)]
    def p_reads(idx):
        tau, kap, lam = ml[idx]
        j = (-lam) % 4; b = (lam + j) // 4
        r = PR + (idx % NP) * 4
        return ['ds_read_b64_tr_b16 v[%d:%d], v%d offset:%d' % (r + 2 * t, r + 2 * t + 1, VP + 2 * j + t, 512 * b) for t in range(2)]
    def q_reads(kap):
        r = QC + 4 * kap
        return ['ds_read_b64_tr_b16 v[%d:%d], v%d offset:%d' % (r + 2 * t, r + 2 * t + 1, VQ, 128 * kap + 32 * t) for t in range(2)]
    ROR = 'wave_ror:1 row_mask:0xf bank_mask:0xf'
    def epi_ops(tau):
        A = ACCS[tau % 2]
        ops = []
        for qq in range(4):
            ops.append(('ds', 'ds_read_u16_d16_hi v%d, v%d offset:%d' % (UR + qq, VU, 128 * (4 * tau + qq)), qq))
        def prev(qq, rho):
            return CAR + (3 - rho) if qq == 0 else A + 4 * (qq - 1) + rho
        for rho in (3, 2, 1):
            for qq in range(4):
                ops.append('v_cndmask_b32 v%d, v%d, v%d, s[60:61]' % (TM + qq, A + 4 * qq + rho, prev(qq, rho)))
            ops.append('v_mov_b32 v%d, v%d' % (CAR + (3 - rho), A + 12 + rho))
            for qq in range(4):
                dst = A + 4 * qq + rho - 1
                ops.append('v_add_f32_dpp v%d, v%d, v%d %s' % (dst, TM + qq, dst, ROR))
        for pr in range(2):
            y0, y1 = A + 8 * pr, A + 8 * pr + 4
            u0, u1 = UR + 2 * pr, UR + 2 * pr + 1
            t0, t1, t2 = TM + 8, TM + 9, TM + 10
            o = YO + ((tau // 2) % 2) * 4 + (tau % 2) * 2 + pr
            ops.append('v_cvt_pk_bf16_f32 v%d, v%d, v%d' % (t2, y0, y1))
            ops.append(('waitu', 2 * pr + 1))
            ops.append('v_mul_f32 v%d, s15, v%d' % (t0, u0))
            ops.append('v_mul_f32 v%d, s15, v%d' % (t1, u1))
            ops.append('v_lshlrev_b32 v%d, 16, v%d' % (y0, t2))
            ops.append('v_and_b32 v%d, 0xffff0000, v%d' % (y1, t2))
            ops.append('v_cvt_pk_bf16_f32 v%d, v%d, v%d' % (t2, t0, t1))
            ops.append('v_lshlrev_b32 v%d, 16, v%d' % (t0, t2))
            ops.append('v_and_b32 v%d, 0xffff0000, v%d' % (t1, t2))
            ops.append('v_add_f32 v%d, v%d, v%d' % (y0, y0, t0))
            ops.append('v_add_f32 v%d, v%d, v%d' % (y1, y1, t1))
            ops.append('v_cvt_pk_bf16_f32 v%d, v%d, v%d' % (o, y0, y1))
            ops.append('v_pk_min_u16 v%d, v%d, v%d' % (o, o, TM + 15))
        if tau % 2 == 1:
            o = YO + ((tau // 2) % 2) * 4
            ops.append('buffer_store_dwordx4 %s, v4, s[44:47], s12 offen offset:%d sc1' % (vr(o, 4), 1024 * (tau // 2)))
        return ops
    utok = {}
    def run_epi(ops, n):
        k = 0
        while ops and k < n:
            o = ops.pop(0)
            if isinstance(o, tuple):
                if o[0] == 'ds': utok[o[2]] = a.emit(o[1]); k += 1
                else: a.wait_lg(utok[o[1]])
            else:
                a.emit(o); k += 1
    AHEAD = 4
    ptok = {}; qtok = {}
    def fetch(idx):
        tau, kap, lam = ml[idx]
        if kap not in qtok:
            qtok[kap] = [a.emit(r) for r in q_reads(kap)][-1]
        ptok[idx] = [a.emit(r) for r in p_reads(idx)][-1]
    for i in range(AHEAD): fetch(i)
    pend = []; since = 0
    for idx, (tau, kap, lam) in enumerate(ml):
        a.wait_lg(max(ptok[idx], qtok[kap]))
        if kap == 0 and tau >= 2: run_epi(pend, 10 ** 6)
        A = ACCS[tau % 2]
        c = '0' if kap == 0 else vr(A, 16)
        a('v_mfma_f32_32x32x16_bf16 %s, %s, %s, %s' % (vr(A, 16), vr(PR + (idx % NP) * 4, 4), vr(QC + 4 * kap, 4), c))
        if idx + AHEAD < len(ml): fetch(idx + AHEAD)
        if kap == 0 and tau >= 1:
            pend = epi_ops(tau - 1); since = 0
        since += 1
        if since >= 3: run_epi(pend, 3)
    run_epi(pend, 10 ** 6)
    run_epi(epi_ops(7), 10 ** 6)
    a('s_setprio 0')
    prof.stamp(2)

def y2_fetch(a, cfg, prof, RED):
    srd(a, 48, P_Q, SZ_X)
    srd(a, 52, P_WS, SZ_G, WS_G)
    QV = 24
    for dl in range(5):
        a('buffer_load_dwordx2 %s, v3, s[48:51], 0 offen offset:%d' % (vr(QV + 2 * dl, 2), dl * 32))
    a('buffer_load_dword v6, v2, s[52:55], 0 offen')
    a('s_mul_i32 s11, s8, 327680')
    a('s_lshl_b32 s12, s6, 10')
    a('s_add_u32 s11, s11, s12')
    a('s_lshl_b32 s12, s7, 7')
    a('s_add_u32 s11, s11, s12')
    a('s_lshl_b32 s12, s10, 5')
    a('s_add_u32 s11, s11, s12')
    a('v_lshrrev_b32 v8, 1, v1')
    a('v_lshlrev_b32 v8, 12, v8')
    a('v_and_b32 v9, 1, v1')
    a('v_lshl_add_u32 v8, v9, 4, v8')
    a('v_add_u32 v9, 0x20000, v8')
    a('v_add_u32 v10, 0x40000, v8')
    a('v_cmp_gt_u32 vcc, 32, v1')
    a('v_mov_b32 v11, 0x%x' % OOB)
    a('v_cndmask_b32 v10, v11, v10, vcc')
    YV = 40
    a('s_mov_b32 s14, 200000')
    a.label('L2_poll')
    for i in range(3):
        a('buffer_load_dwordx4 %s, v%d, s[44:47], s11 offen sc1' % (vr(YV + 4 * i, 4), 8 + i))
    a.wait_all_vm()
    a('v_max3_u32 v11, v%d, v%d, v%d' % (YV, YV + 1, YV + 2))
    for i in range(3, 11, 2):
        a('v_max3_u32 v11, v11, v%d, v%d' % (YV + i, YV + i + 1))
    a('v_max_u32 v11, v11, v%d' % (YV + 11))
    a('v_cmp_eq_u32 vcc, -1, v11')
    a('s_nop 1')
    a('s_cbranch_vccz L2_got')
    a('s_sleep 8')
    a('s_sub_u32 s14, s14, 1')
    a('s_cmp_lg_u32 s14, 0')
    a('s_cbranch_scc1 L2_poll')
    a.label('L2_got')
    prof.stamp(3)
    a('v_add_u32 v8, s13, v4')
    a('ds_write_b128 v8, %s' % vr(YV, 4))
    a('ds_write_b128 v8, %s offset:1024' % vr(YV + 4, 4))
    a('ds_write_b128 v8, %s offset:2048' % vr(YV + 8, 4))
    a('v_lshlrev_b32 v9, 3, v1')
    a('v_add_u32 v9, s13, v9')
    a.wait_all_lg()
    tk = [a.emit('ds_read_b64_tr_b16 %s, v9 offset:%d' % (vr(56 + 2 * dl, 2), dl * 512)) for dl in range(5)]
    a('s_mul_i32 s12, s10, 5120')
    a('s_add_u32 s12, s12, %d' % (RED + 4 * 20480))
    a('v_add_u32 v8, s12, v4')
    for dl in range(5):
        a.wait_lg(tk[dl])
        x = 72 + 4 * dl; y = 96; t = 100
        unpack_lo(a, x, QV + 2 * dl); unpack_hi(a, x + 1, QV + 2 * dl); unpack_lo(a, x + 2, QV + 2 * dl + 1); unpack_hi(a, x + 3, QV + 2 * dl + 1)
        unpack_lo(a, y, 56 + 2 * dl); unpack_hi(a, y + 1, 56 + 2 * dl); unpack_lo(a, y + 2, 57 + 2 * dl); unpack_hi(a, y + 3, 57 + 2 * dl)
        for i in range(4): a('v_mul_f32 v%d, v%d, v%d' % (x + i, x + i, y + i))
        for rep in range(2):
            a('v_cvt_pk_bf16_f32 v%d, v%d, v%d' % (t, x, x + 1))
            a('v_cvt_pk_bf16_f32 v%d, v%d, v%d' % (t + 1, x + 2, x + 3))
            unpack_lo(a, x, t); unpack_hi(a, x + 1, t); unpack_lo(a, x + 2, t + 1); unpack_hi(a, x + 3, t + 1)
            if rep == 0:
                for i in range(4): a('v_mul_f32 v%d, v6, v%d' % (x + i, x + i))
        a('ds_write_b128 v8, %s offset:%d' % (vr(x, 4), dl * 1024))
    a.wait_all_lg()
    a('s_barrier')
    prof.stamp(4)

def gen_two(cfg):
    a = Asm()
    a.raw('.amdgcn_target "amdgcn-amd-amdhsa--gfx950"')
    a.raw('.text')
    kernel_header(a, 'k1_kernel')
    prof = Prof(a, cfg, 0)
    prologue(a, prof, 'K1_done', cfg.nwg)
    g1_ids(a)
    a('s_cmp_ge_u32 s3, 4')
    a('s_cbranch_scc1 K1_loader')
    g1_consumer(a, cfg, prof)
    prof.flush()
    a('s_endpgm')
    a.pad(); a.reset_queues()
    a.label('K1_loader')
    def end(a, tag):
        prof.flush(); a('s_endpgm')
    g1_loader(a, cfg, prof, end)
    a.label('K1_done')
    a('s_endpgm')
    RED = 4 * CV
    kernel_header(a, 'k2_kernel')
    prof = Prof(a, cfg, 1)
    prologue(a, prof, 'K2_done')
    g2_ids(a)
    a('s_cmp_ge_u32 s3, 4')
    a('s_cbranch_scc1 K2_conv')
    g2_gemm(a, cfg, prof, RED)
    a.pad(); a.reset_queues()
    a.label('K2_conv')
    a('s_mul_i32 s13, s10, %d' % CV)
    a.emit('s_waitcnt lgkmcnt(0)')
    srd(a, 44, P_WS, SZ_Y2, WS_Y2)
    a('s_cmp_ge_u32 s5, %d' % (0 if cfg.noconv else 20))
    a('s_cbranch_scc1 K2_fetch')
    conv_body(a, cfg, prof)
    a.pad()
    a.label('K2_fetch')
    a.reset_queues()
    y2_fetch(a, cfg, prof, RED)
    prof.flush()
    a.label('K2_done')
    a('s_endpgm')
    lds2 = RED + 5 * 20480
    hdr = open('cdna_kernels/%s.s.ref' % NAME).read().split('; Override launch')[0]
    hdr += '; generated by dev/gen2.py (hand-written generator)\n'
    hdr += '; @launch kernel=k1_kernel grid=(256,1,1) block=(512,1,1) lds=%d\n' % LDS1
    if not cfg.only_k1:
        hdr += '; @launch kernel=k2_kernel grid=(256,1,1) block=(512,1,1) lds=%d\n' % lds2
    v1 = 256 if cfg.prof else 160
    v2 = 256 if cfg.prof else 240
    return hdr + a.text() + kernel_desc('k1_kernel', v1) + kernel_desc('k2_kernel', v2)

if __name__ == '__main__':
    cfg = Cfg()
    out = sys.argv[1]
    for kv in sys.argv[2:]:
        k, v = kv.split('=')
        assert hasattr(cfg, k), k
        setattr(cfg, k, int(v))
    open(out, 'w').write(gen_two(cfg))
```

```python
import gen2 as G
from asmlib import *
main = open('f.s').read()
kn = G.NAME + '_kernel'
ll = [l for l in main.splitlines() if l.startswith('; @launch grid')][0]
l_main = ll.replace('; @launch grid', '; @launch kernel=%s grid' % kn)
def probe(aux, n):
    a = Asm()
    a.raw('.text')
    G.kernel_header(a, 'probe_kernel')
    a('s_cmp_ge_u32 s2, 256')
    a('s_cbranch_scc1 Lp_done')
    a('s_load_dwordx2 s[4:5], s[0:1], 48')
    a('v_lshlrev_b32 v1, 4, v0')
    a('s_waitcnt lgkmcnt(0)')
    G.srd(a, 8, 4, G.SZ_X)
    a('s_mul_i32 s6, s2, 10240')
    for i in range(n):
        a('buffer_load_dwordx4 v[4:7], v1, s[8:11], s6 offen %s' % aux)
        a('s_add_u32 s6, s6, 4096')
    a('s_waitcnt vmcnt(0)')
    a.label('Lp_done')
    a('s_endpgm')
    return a.text() + G.kernel_desc('probe_kernel', 8)
lp = '; @launch kernel=probe_kernel grid=(256,1,1) block=(256,1,1) lds=0'
for name, aux, n in (('pr_def', '', 3), ('pr_nt', 'nt', 3), ('pr_none', '', 0)):
    t = main.replace(ll, l_main + '\n' + lp) + probe(aux, n)
    open(name + '.s', 'w').write(t)
```

```python
import sys
from asmlib import *
from gen2 import (NAME, WS_H, SZ_H, WS_WD, SZ_WD, WS_UT, SZ_UT, WS_Y2, SZ_Y2, WS_G, SZ_G, WS_PROF, SZ_X, SZ_W, OOB,
                  P_Q, P_K, P_V, P_SHK, P_SSMK, P_SSMD, P_BX, P_WG, P_WU, P_WD, P_GW, P_OUT, P_DBG, P_WS,
                  load_kernargs, srd, Prof, kernel_header, kernel_desc, unpack_lo, unpack_hi, P2, u32)

WS_F = 13508608
F_UT, F_H, F_WD, F_G, F_Y2 = 0, 5120, 13312, 16384, 24576
SZ_F = 29696

class Cfg:
    prof = 0
    h_mimic = 0
    out_mimic = 0
    rot = 0
    rot2 = 0
    nt = 0
    depth2 = 4
    lstamp = 1
    spin = 100000
    cprio = 2
    vprio = 1
    qlate = 1
    na = 4
    nb = 4
    wdlds = 4
    wdtouch = 0
    cotouch = 1
    hsent = 0
    yclr_at = 7
    hsleep = 4
    psc1 = 1
    g2map = 0
    early = 4
    cstart = 9
    cchunk = 0
    g1prio = 1
    csync = 1
    ysleep = 8
    pollfirst = 1
    ydefer = 1
    y_mimic = 0

SLOT = 41088
OFF_GATE, OFF_UP = 16384, 16384 + 12320
NSTAGE, NSLOT = 10, 3
PA = NSLOT * SLOT
QA = PA + 4 * 5120
QSZ = 4224
CNT = QA + 4 * QSZ
LDS = CNT + 64
RED = SLOT
SRD_F = 72
NONCE = 92
VZ = 248

def wave_common(a):
    srd(a, SRD_F, P_WS, SZ_F, WS_F)
    a('v_cmp_eq_u32 vcc, 0, v1')
    a('v_mov_b32 v%d, 0x%x' % (VZ, OOB))
    a('v_cndmask_b32 v%d, v%d, 0, vcc' % (VZ, VZ))

_lbl = [0]
def newlabel(p):
    _lbl[0] += 1
    return '%s_%d' % (p, _lbl[0])

def nonce_issue(a):
    srd(a, 68, P_DBG, 256)
    a('v_mov_b32 v249, 0')
    return a.emit('buffer_load_dwordx2 v[250:251], v249, s[68:71], 0 offen sc1')

def nonce_get(a, cfg, tok):
    a.wait_vm(tok)
    lo, ok = newlabel('Lnonce'), newlabel('Lnonce_ok')
    a('s_mov_b32 s94, %d' % cfg.spin)
    a.label(lo)
    a('v_readfirstlane_b32 s%d, v250' % NONCE)
    a('v_readfirstlane_b32 s%d, v251' % (NONCE + 1))
    a('s_cmp_lg_u32 s%d, 0' % NONCE)
    a('s_cbranch_scc1 %s' % ok)
    a('s_sleep 4')
    a('buffer_load_dwordx2 v[250:251], v249, s[68:71], 0 offen sc1')
    a.emit('s_waitcnt vmcnt(0)')
    a.vmq.pop()
    a('s_sub_u32 s94, s94, 1')
    a('s_cmp_lg_u32 s94, 0')
    a('s_cbranch_scc1 %s' % lo)
    a.label(ok)
    a('s_nop 1')

def flag_store(a, soff):
    a('buffer_store_dwordx2 v[250:251], v%d, s[%d:%d], %s offen sc1' % (VZ, SRD_F, SRD_F + 3, soff))

def poll_issue(a, voff, soff, t):
    return a.emit('buffer_load_dwordx2 v[%d:%d], v%d, s[%d:%d], %s offen sc1' % (t, t + 1, voff, SRD_F, SRD_F + 3, soff))

def poll_wait(a, cfg, tok, voff, soff, t, sleep=4):
    a.wait_vm(tok)
    lo, ok = newlabel('Lpoll'), newlabel('Lpoll_ok')
    a('s_mov_b32 s94, %d' % cfg.spin)
    a.label(lo)
    a('v_cmp_ne_u64 vcc, s[%d:%d], v[%d:%d]' % (NONCE, NONCE + 1, t, t + 1))
    a('s_nop 1')
    a('s_cbranch_vccz %s' % ok)
    a('s_sleep %d' % sleep)
    a('buffer_load_dwordx2 v[%d:%d], v%d, s[%d:%d], %s offen sc1' % (t, t + 1, voff, SRD_F, SRD_F + 3, soff))
    a.emit('s_waitcnt vmcnt(0)')
    a.vmq.pop()
    a('s_sub_u32 s94, s94, 1')
    a('s_cmp_lg_u32 s94, 0')
    a('s_cbranch_scc1 %s' % lo)
    a.label(ok)

def lane_min(a, d, n, shift):
    a('v_min_u32 v%d, %d, v1' % (d, n - 1))
    a('v_lshlrev_b32 v%d, %d, v%d' % (d, shift, d))

G2MAP = [1]
def g2_scalars(a, st, dt):
    if G2MAP[0]:
        a('s_lshl_b32 s%d, s4, 2' % st)
        a('s_and_b32 s%d, s5, 3' % dt)
        a('s_add_u32 s%d, s%d, s%d' % (st, st, dt))
        a('s_lshr_b32 s%d, s5, 2' % dt)
    else:
        a('s_lshl_b32 s%d, s6, 3' % st)
        a('s_and_b32 s%d, s5, 7' % dt)
        a('s_add_u32 s%d, s%d, s%d' % (st, st, dt))
        a('s_and_b32 s%d, s4, 1' % dt)
        a('s_lshl_b32 s%d, s%d, 5' % (dt, dt))
        a('s_add_u32 s%d, s%d, s5' % (dt, dt))
        a('s_lshr_b32 s%d, s%d, 3' % (dt, dt))

def g2_ids(a):
    g2_scalars(a, 11, 8)
    a('s_and_b32 s7, s11, 7')
    a('s_and_b32 s10, s3, 3')
    a('v_and_b32 v2, 7, v1')
    a('v_lshlrev_b32 v2, 6, v2')
    a('v_bfe_u32 v3, v1, 3, 1')
    a('v_add_u32 v2, v2, v3')
    a('s_lshl_b32 s13, s6, 9')
    a('s_lshl_b32 s12, s7, 3')
    a('s_add_u32 s13, s13, s12')
    a('s_lshl_b32 s12, s10, 1')
    a('s_add_u32 s13, s13, s12')
    a('v_add_u32 v2, s13, v2')
    a('v_mul_u32_u24 v3, 1280, v2')
    a('v_lshrrev_b32 v4, 4, v1')
    a('v_lshl_add_u32 v3, v4, 3, v3')
    a('s_mul_i32 s12, s8, 160')
    a('v_add_u32 v3, s12, v3')
    a('s_lshl_b32 s12, s11, 6')
    a('s_lshl_b32 s13, s10, 4')
    a('s_add_u32 s12, s12, s13')
    a('v_and_b32 v2, 15, v1')
    a('v_add_u32 v2, s12, v2')
    a('v_lshlrev_b32 v2, 2, v2')
    a('v_lshlrev_b32 v4, 4, v1')

def c_wave(a, cfg, prof):
    a('s_and_b32 s10, s3, 1')
    a('s_lshr_b32 s11, s3, 1')
    a('v_and_b32 v2, 31, v1')
    a('v_lshrrev_b32 v3, 5, v1')
    a('v_lshrrev_b32 v9, 1, v2')
    a('v_and_b32 v9, 7, v9')
    a('v_xor_b32 v9, v9, v3')
    a('v_lshlrev_b32 v9, 4, v9')
    a('v_lshl_add_u32 v9, v2, 7, v9')
    a('s_lshl_b32 s12, s11, 13')
    a('v_add_u32 v4, s12, v9')
    a('v_xor_b32 v5, 32, v4')
    a('v_xor_b32 v6, 64, v4')
    a('v_xor_b32 v7, 96, v4')
    a('v_bfe_u32 v9, v1, 4, 1')
    a('v_mul_u32_u24 v8, 12320, v9')
    a('v_bfe_u32 v9, v1, 2, 2')
    a('v_lshl_add_u32 v9, v3, 3, v9')
    a('v_mul_u32_u24 v9, 192, v9')
    a('v_add_u32 v8, v8, v9')
    a('v_and_b32 v9, 3, v1')
    a('v_lshl_add_u32 v8, v9, 3, v8')
    a('s_mul_i32 s12, s10, 96')
    a('s_add_u32 s12, s12, %d' % OFF_GATE)
    a('v_add_u32 v8, s12, v8')
    a('v_lshrrev_b32 v9, 4, v2')
    a('v_lshlrev_b32 v10, 10, v9')
    a('v_lshl_add_u32 v10, v3, 8, v10')
    a('v_and_b32 v9, 15, v2')
    a('v_lshl_add_u32 v10, v9, 4, v10')
    a('s_lshl_b32 s12, s6, 2')
    a('s_add_u32 s12, s12, s7')
    a('s_lshl_b32 s12, s12, 1')
    a('s_add_u32 s12, s12, s11')
    a('s_lshl_b32 s79, s12, 4')
    a('s_add_u32 s79, s79, s8')
    a('s_lshl_b32 s79, s79, 1')
    a('s_add_u32 s79, s79, s10')
    a('s_lshl_b32 s79, s79, 3')
    a('s_add_u32 s79, s79, %d' % F_H)
    a('s_mul_i32 s12, s12, 196608')
    a('s_mul_i32 s13, s8, 6')
    a('s_mul_i32 s14, s10, 3')
    a('s_add_u32 s13, s13, s14')
    for tt in range(3):
        a('s_add_u32 s14, s13, %d' % tt)
        a('s_lshr_b32 s15, s14, 1')
        a('s_lshl_b32 s15, s15, 12')
        a('s_and_b32 s14, s14, 1')
        a('s_lshl_b32 s14, s14, 9')
        a('s_add_u32 s14, s14, s15')
        a('s_add_u32 s%d, s14, s12' % (76 + tt))
    a.emit('s_waitcnt lgkmcnt(0)')
    srd(a, 44, P_WS, SZ_H, WS_H)
    srd(a, 48, P_WS, SZ_WD, WS_WD)
    srd(a, 56, P_OUT, SZ_X)
    wave_common(a)
    ACC = 64
    FB = [16, 40]
    def acc(tt, b): return ACC + (tt * 2 + b) * 16
    def reads(buf, ks):
        f = FB[buf]
        def A(tt):
            return ['ds_read_b64_tr_b16 v[%d:%d], v8 offset:%d' % (f + 4 * tt + 2 * t, f + 4 * tt + 2 * t + 1, ks * 3072 + t * 768 + tt * 32) for t in range(2)]
        def B(b):
            return ['ds_read_b128 v[%d:%d], v%d offset:%d' % (f + 12 + 4 * b, f + 15 + 4 * b, 4 + ks, b * 4096)]
        return A(0) + B(0) + B(1) + A(1) + A(2)
    order = [(0, 0, 2), (0, 1, 3), (1, 0, 5), (1, 1, 5), (2, 0, 7), (2, 1, 7)]
    tk = {}
    PS = ' sc1' if cfg.psc1 else ''
    NA, NB, NL = cfg.na, cfg.nb, cfg.wdlds
    BB, ACC2, AB = 8, 72, 160
    assert BB + 16 * NB <= ACC2 and AB + 20 * NA <= 240
    lds_steps = list(range(12 - NL, 12))
    gtok = {}
    SK = 16
    def g2_setup():
        g2_scalars(a, 84, 85)
        a('s_mul_i32 s80, s85, 48')
        a('s_mul_i32 s81, s3, 12')
        a('s_add_u32 s80, s80, s81')
        a('s_lshl_b32 s80, s80, 3')
        a('s_add_u32 s80, s80, %d' % F_WD)
        lane_min(a, 11, 12, 3)
        tk['wdf'] = poll_issue(a, 11, 's80', 12)
        a('s_lshl_b32 s83, s84, 4')
        a('s_lshl_b32 s81, s3, 2')
        a('s_add_u32 s83, s83, s81')
        a('s_lshl_b32 s83, s83, 4')
        a('s_add_u32 s83, s83, %d' % F_H)
        lane_min(a, 246, 8, 3)
        if cfg.hsent: tk['hcf'] = poll_issue(a, 246, 's83', 14)
        a('s_mul_i32 s86, s85, 245760')
        a('s_mul_i32 s81, s3, 61440')
        a('s_add_u32 s86, s86, s81')
        a('s_mul_i32 s87, s84, 196608')
        a('s_mul_i32 s81, s3, 49152')
        a('s_add_u32 s87, s87, s81')
        a('s_mul_i32 s88, s3, 20544')
        a('s_add_u32 s88, s88, %d' % RED)
        a('v_lshlrev_b32 v240, 4, v1')
        a('v_add_u32 v241, 4096, v240')
        if cfg.rot2:
            if cfg.g2map:
                a('s_mul_i32 s81, s85, 3')
                a('s_lshr_b32 s81, s81, 1')
            else:
                a('s_and_b32 s81, s85, 3')
                a('s_mul_i32 s81, s81, 3')
        else:
            a('s_mov_b32 s81, 0')
        for k in range(12):
            a('s_add_u32 s%d, s81, %d' % (SK + k, k))
            a('s_cmp_ge_u32 s%d, 12' % (SK + k))
            a('s_cselect_b32 s82, 12, 0')
            a('s_sub_u32 s%d, s%d, s82' % (SK + k, SK + k))
    def wd_off(k):
        a('s_mul_i32 s14, s%d, 5120' % (SK + k))
        a('s_add_u32 s14, s14, s86')
    def a_load(k, dl):
        b = AB + (k % NA) * 20
        if dl == 0: wd_off(k)
        if dl < 4:
            a('buffer_load_dwordx4 %s, v240, s[48:51], s14 offen offset:%d%s' % (vr(b + 4 * dl, 4), 1024 * dl, PS))
        else:
            gtok[(k, 'a')] = a.emit('buffer_load_dwordx4 %s, v241, s[48:51], s14 offen%s' % (vr(b + 16, 4), PS))
    def a_dma(k, dl):
        o = (k - lds_steps[0]) * 5120
        if dl == 0:
            wd_off(k)
            a('s_add_u32 m0, s88, %d' % o)
        if dl < 4:
            a('buffer_load_dwordx4 v240, s[48:51], s14 offen offset:%d%s lds' % (1024 * dl, PS))
        else:
            a('s_add_u32 m0, s88, %d' % (o + 4096))
            gtok['dma'] = a.emit('buffer_load_dwordx4 v241, s[48:51], s14 offen%s lds' % PS)
    hooks = {}
    def hook(st, ks, mi, f): hooks.setdefault((st, ks, mi), []).append(f)
    hook(6, 0, 5, lambda: tk.__setitem__('nonce', nonce_issue(a)))
    hook(7, 0, 4, g2_setup)
    hook(8, 0, 4, lambda: (nonce_get(a, cfg, tk['nonce']), poll_wait(a, cfg, tk['wdf'], 11, 's80', 12), poll_wait(a, cfg, tk['hcf'], 246, 's83', 14) if cfg.hsent else None))
    slots = [(st, ks, mi) for st in (8, 9) for ks in range(4) for mi in range(6)][6:]
    work = [(a_load, k, dl) for k in range(NA) for dl in range(5)]
    dwork = [(a_dma, k, dl) for k in lds_steps for dl in range(5)]
    ne = 5 * cfg.early
    for i, (fn, k, dl) in enumerate(work[:ne]):
        hook(*slots[i], (lambda fn=fn, k=k, dl=dl: fn(k, dl)))
    post = work[ne:] + dwork
    if cfg.csync:
        a('v_mov_b32 v9, %d' % CNT)
        a('v_mov_b32 v11, 0')
        a('ds_write_b32 v9, v11')
        a.wait_all_lg()
    a('s_setprio %d' % cfg.g1prio)
    a('s_barrier')
    prof.stamp(1); prof.cyc(5)
    toks = [a.emit(r) for r in reads(0, 0)]
    cur = 0
    for st in range(NSTAGE):
        for ks in range(4):
            last = (st == NSTAGE - 1 and ks == 3)
            nxt = None if last else reads(1 - cur, (ks + 1) % 4)
            ntoks = []
            f = FB[cur]
            for mi, (tt, b, need_i) in enumerate(order):
                a.wait_lg(toks[need_i])
                c = '0' if (st == 0 and ks == 0) else vr(acc(tt, b), 16)
                a('v_mfma_f32_32x32x16_bf16 %s, %s, %s, %s' % (vr(acc(tt, b), 16), vr(f + 4 * tt, 4), vr(f + 12 + 4 * b, 4), c))
                if nxt is not None:
                    if ks == 3:
                        if mi == 0:
                            a.wait_all_lg()
                            d = SLOT if (st + 1) % NSLOT else -(NSLOT - 1) * SLOT
                            for r in (4, 5, 6, 7, 8):
                                a('v_add_u32 v%d, 0x%x, v%d' % (r, u32(d), r))
                            a('s_barrier')
                        sched = {1: 3, 2: 2, 3: 2, 4: 1}
                    else:
                        sched = {0: 2, 1: 2, 2: 2, 3: 2}
                    for _ in range(sched.get(mi, 0)):
                        ntoks.append(a.emit(nxt[len(ntoks)]))
                for hk in hooks.pop((st, ks, mi), []): hk()
            toks = ntoks
            cur = 1 - cur
    assert not hooks
    prof.stamp(2); prof.cyc(6)
    a('s_setprio %d' % cfg.cprio)
    for tt in range(3):
        for b in range(2):
            x = acc(tt, b)
            o = 16 + ((tt * 2 + b) % 2) * 4
            w = 24 + ((tt * 2 + b) % 2) * 16
            if cfg.h_mimic:
                for p in range(4):
                    a('v_cvt_pk_bf16_f32 v%d, v%d, v%d' % (w + p, x + 2 * p, x + 2 * p + 1))
                    a('v_cvt_pk_bf16_f32 v%d, v%d, v%d' % (w + 4 + p, x + 8 + 2 * p, x + 8 + 2 * p + 1))
                for p in range(4):
                    unpack_lo(a, x + 2 * p, w + p); unpack_hi(a, x + 2 * p + 1, w + p)
                    unpack_lo(a, x + 8 + 2 * p, w + 4 + p); unpack_hi(a, x + 8 + 2 * p + 1, w + 4 + p)
            for p in range(8):
                a('v_mul_f32 v%d, v%d, v%d' % (x + p, x + p, x + 8 + p))
            for p in range(4):
                a('v_cvt_pk_bf16_f32 v%d, v%d, v%d' % (o + p, x + 2 * p, x + 2 * p + 1))
            for p in range(4 if cfg.hsent else 0):
                a('v_min_u32 v%d, -2, v%d' % (o + p, o + p))
            tk['h'] = a.emit('buffer_store_dwordx4 %s, v10, s[44:47], s%d offen offset:%d sc1' % (vr(o, 4), 76 + tt, b * 2048))
    prof.stamp(3)
    g2_ids(a)
    a('v_add_u32 v7, s88, v4')
    if not cfg.hsent:
        a.wait_vm(tk['h'])
        flag_store(a, 's79')
    a('s_setprio 0')
    prof.stamp(7)
    if cfg.csync:
        a('v_mov_b32 v9, %d' % CNT)
        a('v_mov_b32 v8, 1')
        a('v_cmp_eq_u32 vcc, 0, v1')
        a('s_and_saveexec_b64 s[90:91], vcc')
        a('ds_add_u32 v9, v8')
        a('s_mov_b64 exec, s[90:91]')
        a('s_mov_b32 s94, %d' % cfg.spin)
        a.label('Lcsync')
        a('ds_read_b32 v8, v9')
        a.wait_all_lg()
        a('v_readfirstlane_b32 s82, v8')
        a('s_cmp_ge_u32 s82, 4')
        a('s_cbranch_scc1 Lcsync_ok')
        a('s_sleep 1')
        a('s_sub_u32 s94, s94, 1')
        a('s_cmp_lg_u32 s94, 0')
        a('s_cbranch_scc1 Lcsync')
        a.label('Lcsync_ok')
    for f, k, dl in post: f(k, dl)
    if cfg.wdtouch:
        a('v_lshlrev_b32 v242, 7, v1')
        a('v_cmp_gt_u32 vcc, 40, v1')
        a('v_mov_b32 v243, 0x%x' % OOB)
        a('v_cndmask_b32 v242, v243, v242, vcc')
        for k in range(NA, 12 - NL):
            wd_off(k)
            a('buffer_load_dword v243, v242, s[48:51], s14 offen%s' % PS)
    def acc2(dl, sg): return ACC2 + (sg * 5 + dl) * 4
    def issueA(k):
        b = AB + (k % NA) * 20
        if k in lds_steps:
            a.wait_vm(gtok.get('dma', -1))
            for dl in range(5):
                gtok[(k, 'a')] = a.emit('ds_read_b128 %s, v7 offset:%d' % (vr(b + 4 * dl, 4), (k - lds_steps[0]) * 5120 + dl * 1024))
        else:
            for dl in range(5): a_load(k, dl)
    def issueB(k):
        b = BB + (k % NB) * 16
        a('s_lshl_b32 s15, s%d, 12' % (SK + k))
        a('s_add_u32 s15, s15, s87')
        for sg in range(4):
            gtok[(k, sg)] = a.emit('buffer_load_dwordx4 %s, v4, s[44:47], s15 offen offset:%d%s' % (vr(b + 4 * sg, 4), 1024 * sg, PS))
    if not cfg.hsent:
        t = poll_issue(a, 246, 's83', 244)
        poll_wait(a, cfg, t, 246, 's83', 244, sleep=1)
    prof.stamp(8)
    for k in range(NB): issueB(k)
    for k in range(12):
        ab_, bb_ = AB + (k % NA) * 20, BB + (k % NB) * 16
        if k in lds_steps: a.wait_lg(gtok[(k, 'a')])
        else: a.wait_vm(gtok[(k, 'a')])
        if not cfg.hsent:
            for sg in range(4):
                a.wait_vm(gtok[(k, sg)])
                if sg == 0: prof.stamp(10 + k)
                for dl in range(5):
                    c = '0' if k == 0 else vr(acc2(dl, sg), 4)
                    a('v_mfma_f32_16x16x32_bf16 %s, %s, %s, %s' % (vr(acc2(dl, sg), 4), vr(ab_ + 4 * dl, 4), vr(bb_ + 4 * sg, 4), c))
            if k + NB < 12: issueB(k + NB)
            if k + NA < 12: issueA(k + NA)
            continue
        a.wait_vm(gtok[(k, 3)])
        lo, ok = newlabel('Lh'), newlabel('Lh_ok')
        a('s_mov_b32 s94, %d' % cfg.spin)
        a.label(lo)
        a('v_max3_u32 v5, v%d, v%d, v%d' % (bb_, bb_ + 1, bb_ + 2))
        a('v_max3_u32 v6, v%d, v%d, v%d' % (bb_ + 3, bb_ + 4, bb_ + 5))
        for i in range(6, 14, 4):
            a('v_max3_u32 v5, v5, v%d, v%d' % (bb_ + i, bb_ + i + 1))
            a('v_max3_u32 v6, v6, v%d, v%d' % (bb_ + i + 2, bb_ + i + 3))
        a('v_max3_u32 v5, v5, v%d, v%d' % (bb_ + 14, bb_ + 15))
        a('v_max_u32 v5, v5, v6')
        a('v_cmp_eq_u32 vcc, -1, v5')
        a('s_nop 1')
        a('s_cbranch_vccz %s' % ok)
        a('s_sleep %d' % cfg.hsleep)
        q0 = list(a.vmq); g0 = dict(gtok)
        issueB(k)
        a.emit('s_waitcnt vmcnt(0)')
        a.vmq = q0; gtok.clear(); gtok.update(g0)
        a('s_sub_u32 s94, s94, 1')
        a('s_cmp_lg_u32 s94, 0')
        a('s_cbranch_scc1 %s' % lo)
        a.label(ok)
        prof.stamp(10 + k)
        for sg in range(4):
            for dl in range(5):
                c = '0' if k == 0 else vr(acc2(dl, sg), 4)
                a('v_mfma_f32_16x16x32_bf16 %s, %s, %s, %s' % (vr(acc2(dl, sg), 4), vr(ab_ + 4 * dl, 4), vr(bb_ + 4 * sg, 4), c))
        if k + NB < 12: issueB(k + NB)
        if k + NA < 12: issueA(k + NA)
    prof.stamp(9)
    def blk(w, sg): return w * 20544 + (sg if sg < w else sg - 1) * 5120
    a('v_add_u32 v7, %d, v4' % RED)
    a('v_add_u32 v5, %d, v4' % (RED + 41088))
    a('s_nop 7')
    for w in range(4):
        a('s_cmp_eq_u32 s10, %d' % w)
        a('s_cbranch_scc1 Lfin%d' % w)
    hist0 = list(a.hist); vmq0 = list(a.vmq)
    def ab(off): return ('v7', off) if off < 41088 else ('v5', off - 41088)
    for w in range(4):
        a.hist = list(hist0); a.vmq = list(vmq0); a.lgq = []
        a.label('Lfin%d' % w)
        for sg in range(4):
            if sg == w: continue
            for dl in range(5):
                r, o = ab(blk(w, sg) + dl * 1024)
                a('ds_write_b128 %s, %s offset:%d' % (r, vr(acc2(dl, sg), 4), o))
        a('v_add_u32 v8, %d, v4' % (PA + w * 5120))
        a('v_lshlrev_b32 v9, 2, v1')
        a('v_add_u32 v9, %d, v9' % (QA + w * QSZ + 3072))
        a.wait_all_lg()
        a('s_barrier')
        prof.stamp(30)
        tl = {}
        tl['omg'] = a.emit('ds_read_b32 v6, v9')
        srcs = [x for x in range(4) if x != w]
        for dl in range(5):
            for si, x in enumerate(srcs):
                r, o = ab(blk(x, w) + dl * 1024)
                tl[(dl, si)] = a.emit('ds_read_b128 %s, %s offset:%d' % (vr(160 + (dl * 4 + si) * 4, 4), r, o))
            tl[(dl, 3)] = a.emit('ds_read_b128 %s, v8 offset:%d' % (vr(160 + (dl * 4 + 3) * 4, 4), dl * 1024))
        for dl in range(5):
            x = acc2(dl, w)
            for si in range(3):
                a.wait_lg(tl[(dl, si)])
                r = 160 + (dl * 4 + si) * 4
                a('v_pk_add_f32 %s, %s, %s' % (P2(x), P2(x), P2(r)))
                a('v_pk_add_f32 %s, %s, %s' % (P2(x + 2), P2(x + 2), P2(r + 2)))
            ga = 160 + (dl * 4 + 3) * 4
            t = 12 + (dl & 1) * 4
            if cfg.out_mimic:
                a('v_cvt_pk_bf16_f32 v%d, v%d, v%d' % (t, x, x + 1))
                a('v_cvt_pk_bf16_f32 v%d, v%d, v%d' % (t + 1, x + 2, x + 3))
                unpack_lo(a, x, t); unpack_hi(a, x + 1, t); unpack_lo(a, x + 2, t + 1); unpack_hi(a, x + 3, t + 1)
                for i in range(4): a('v_mul_f32 v%d, v6, v%d' % (x + i, x + i))
                a('v_cvt_pk_bf16_f32 v%d, v%d, v%d' % (t, x, x + 1))
                a('v_cvt_pk_bf16_f32 v%d, v%d, v%d' % (t + 1, x + 2, x + 3))
                unpack_lo(a, x, t); unpack_hi(a, x + 1, t); unpack_lo(a, x + 2, t + 1); unpack_hi(a, x + 3, t + 1)
                a.wait_lg(tl[(dl, 3)])
                a('v_pk_add_f32 %s, %s, %s' % (P2(x), P2(x), P2(ga)))
                a('v_pk_add_f32 %s, %s, %s' % (P2(x + 2), P2(x + 2), P2(ga + 2)))
            else:
                a.wait_lg(tl[(dl, 3)])
                for i in range(4): a('v_fma_f32 v%d, v6, v%d, v%d' % (x + i, x + i, ga + i))
            a('v_cvt_pk_bf16_f32 v%d, v%d, v%d' % (t + 2, x, x + 1))
            a('v_cvt_pk_bf16_f32 v%d, v%d, v%d' % (t + 3, x + 2, x + 3))
            a('buffer_store_dwordx2 %s, v3, s[56:59], 0 offen offset:%d' % (vr(t + 2, 2), dl * 32))
        prof.stamp(4)
        prof.flush(247)
        a('s_endpgm')

def l_wave(a, cfg, prof):
    NT = ' nt' if cfg.nt else ''
    a('s_and_b32 s10, s3, 3')
    a('v_lshrrev_b32 v9, 3, v1')
    a('v_and_b32 v10, 7, v1')
    a('v_lshrrev_b32 v11, 1, v9')
    a('v_xor_b32 v10, v10, v11')
    a('v_lshlrev_b32 v10, 4, v10')
    a('s_mov_b32 s12, 81920')
    a('v_mul_lo_u32 v9, v9, s12')
    a('v_add_u32 v2, v9, v10')
    a('v_xor_b32 v10, 64, v10')
    a('v_add_u32 v3, v9, v10')
    a('v_add_u32 v3, 256, v3')
    a('v_add_u32 v4, 512, v2')
    a('v_add_u32 v5, 512, v3')
    for i in range(3):
        a('v_add_u32 v9, %d, v1' % (64 * i))
        a('v_mul_u32_u24 v10, 5462, v9')
        a('v_lshrrev_b32 v10, 16, v10')
        a('v_mul_u32_u24 v11, 12, v10')
        a('v_sub_u32 v11, v9, v11')
        a('v_mul_u32_u24 v10, 3072, v10')
        a('v_lshl_add_u32 v10, v11, 4, v10')
        a('v_subrev_u32 v%d, %d, v10' % (6 + i, 1024 * i))
    a('s_lshl_b32 s12, s6, 9')
    a('s_lshl_b32 s13, s7, 4')
    a('s_add_u32 s12, s12, s13')
    a('s_add_u32 s90, s12, 0')
    a('s_lshl_b32 s13, s10, 2')
    a('s_add_u32 s12, s12, s13')
    a('s_mul_i32 s12, s12, 1280')
    a('s_mul_i32 s13, s10, 49152')
    a('s_mul_i32 s14, s8, 192')
    a('s_add_u32 s13, s13, s14')
    a('s_lshl_b32 s14, s10, 12')
    a('s_mul_i32 s15, s10, 3072')
    if cfg.rot:
        if cfg.rot == 1:
            a('s_mul_i32 s96, s7, 10')
            a('s_mul_i32 s97, s9, 5')
            a('s_add_u32 s96, s96, s97')
            a('s_lshr_b32 s96, s96, 2')
        elif cfg.rot == 2:
            a('s_xor_b32 s96, s7, s9')
            a('s_and_b32 s96, s96, 1')
            a('s_mul_i32 s96, s96, 5')
        elif cfg.rot == 3:
            a('s_add_u32 s96, s7, s9')
            a('s_and_b32 s96, s96, 3')
            a('s_mul_i32 s96, s96, 5')
            a('s_lshr_b32 s96, s96, 1')
        a('s_cmp_ge_u32 s96, 10')
        a('s_cselect_b32 s97, 10, 0')
        a('s_sub_u32 s96, s96, s97')
        a('s_lshl_b32 s97, s96, 7')
        a('s_add_u32 s12, s12, s97')
        a('s_mul_i32 s97, s96, 196608')
        a('s_add_u32 s13, s13, s97')
    a.emit('s_waitcnt lgkmcnt(0)')
    prof.stamp(3)
    srd(a, 44, P_Q, SZ_X)
    srd(a, 48, P_WG, SZ_W)
    srd(a, 52, P_WU, SZ_W)
    stage_tok = {}
    def issue_stage(st):
        base = (st % NSLOT) * SLOT
        a('s_add_u32 m0, s14, %d' % base)
        for i in range(4):
            a('buffer_load_dwordx4 v%d, s[44:47], s12 offen offset:%d lds' % (2 + i, 1024 * i))
        a('s_add_u32 m0, s15, %d' % (base + OFF_GATE))
        for i in range(3):
            a('buffer_load_dwordx4 v%d, s[48:51], s13 offen offset:%d lds' % (6 + i, 1024 * i))
        a('s_add_u32 m0, s15, %d' % (base + OFF_UP))
        for i in range(3):
            t = a.emit('buffer_load_dwordx4 v%d, s[52:55], s13 offen offset:%d lds' % (6 + i, 1024 * i))
        stage_tok[st] = t
        if cfg.rot:
            a('s_add_u32 s96, s96, 1')
            a('s_cmp_eq_u32 s96, 10')
            a('s_cselect_b32 s97, 1280, 0')
            a('s_cselect_b32 s95, 1966080, 0')
            a('s_sub_u32 s12, s12, s97')
            a('s_sub_u32 s13, s13, s95')
        a('s_add_u32 s12, s12, 128')
        a('s_add_u32 s13, s13, 196608')
    issue_stage(0)
    wave_common(a)
    a('s_lshl_b32 s76, s2, 2')
    a('s_add_u32 s76, s76, s10')
    a('s_cmp_lg_u32 s76, 0')
    a('s_cbranch_scc1 Lno_nonce')
    a('s_memrealtime s[76:77]')
    srd(a, 68, P_DBG, 256)
    a.emit('s_waitcnt lgkmcnt(0)')
    a('s_or_b32 s76, s76, 1')
    a('v_mov_b32 v20, s76')
    a('v_mov_b32 v21, s77')
    a('buffer_store_dwordx2 v[20:21], v%d, s[68:71], 0 offen sc1' % VZ)
    a.emit('s_waitcnt vmcnt(0)')
    a.vmq.pop()
    a.label('Lno_nonce')
    a('s_mul_i32 s82, s10, 5120')
    a('s_add_u32 s82, s82, %d' % PA)
    a('s_mul_i32 s83, s10, %d' % QSZ)
    a('s_add_u32 s83, s83, %d' % QA)
    a('s_cmp_ge_u32 s5, 20')
    a('s_cbranch_scc1 LtypeB')
    saved = (list(a.vmq), dict(stage_tok), list(a.hist))
    tk = {}
    def n_issue(): tk['nonce'] = nonce_issue(a)
    def n_get(): nonce_get(a, cfg, tk['nonce'])
    def interval(i, slices, pre={}, drain=True):
        a.wait_vm(stage_tok[i])
        if a.lgq and drain: a.wait_all_lg()
        if cfg.lstamp: prof.stamp(10 + i)
        a('s_barrier')
        if cfg.lstamp: prof.stamp(20 + i)
        for f in pre.get(i, []): f()
        if i + NSLOT - 1 < NSTAGE: issue_stage(i + NSLOT - 1)
        for f in slices.get(i, []): f()
    def h_clear():
        if not cfg.hsent: return
        srd(a, 68, P_WS, SZ_H, WS_H)
        a('s_lshl_b32 s76, s6, 2')
        a('s_add_u32 s76, s76, s7')
        a('s_lshl_b32 s76, s76, 1')
        a('s_lshr_b32 s77, s10, 1')
        a('s_add_u32 s76, s76, s77')
        a('s_and_b32 s77, s10, 1')
        a('s_lshl_b32 s87, s76, 4')
        a('s_add_u32 s87, s87, s8')
        a('s_lshl_b32 s87, s87, 1')
        a('s_add_u32 s87, s87, s77')
        a('s_lshl_b32 s87, s87, 3')
        a('s_add_u32 s87, s87, %d' % F_H)
        a('s_mul_i32 s76, s76, 196608')
        a('s_mul_i32 s77, s77, 6144')
        a('s_add_u32 s76, s76, s77')
        a('s_mul_i32 s77, s8, 12288')
        a('s_add_u32 s76, s76, s77')
        a('s_add_u32 s77, s76, 3072')
        a('v_lshlrev_b32 v241, 4, v1')
        for i in range(4): a('v_mov_b32 v%d, -1' % (232 + i))
        for i in range(6):
            tk['clr'] = a.emit('buffer_store_dwordx4 v[232:235], v241, s[68:71], s%d offen offset:%d sc1' % (76 + i // 3, 1024 * (i % 3)))
    def y_clear():
        srd(a, 64, P_WS, SZ_Y2, WS_Y2)
        a('v_lshlrev_b32 v241, 4, v1')
        for i in range(4): a('v_mov_b32 v%d, -1' % (232 + i))
        for i in range(4):
            tk['clr'] = a.emit('buffer_store_dwordx4 v[232:235], v241, s[64:67], s81 offen offset:%d sc1' % (1024 * i))
    def clr_flag(with_y):
        def f():
            if not (cfg.hsent or with_y): return
            a.wait_vm(tk['clr'])
            if cfg.hsent: flag_store(a, 's87')
            if with_y:
                a('s_lshl_b32 s76, s11, 3')
                a('s_add_u32 s76, s76, %d' % F_Y2)
                flag_store(a, 's76')
        return f
    def aux_flag():
        a.wait_vm(tk['st'])
        flag_store(a, 's89')

    KR, VR_, WR = 32, 60, 76
    srd(a, 56, P_K, SZ_X); srd(a, 60, P_V, SZ_X); srd(a, 64, P_SHK, 5120)
    a('s_cmp_ge_u32 s5, 10')
    a('s_cselect_b32 s76, 1, 0')
    a('s_cselect_b32 s77, 10, 0')
    a('s_sub_u32 s77, s5, s77')
    a('s_lshl_b32 s78, s4, 1')
    a('s_add_u32 s76, s76, s78')
    a('s_lshl_b32 s89, s77, 2')
    a('s_add_u32 s89, s89, s10')
    a('s_lshl_b32 s89, s89, 4')
    a('s_add_u32 s89, s89, s76')
    a('s_lshl_b32 s89, s89, 3')
    a('s_lshl_b32 s88, s77, 2')
    a('s_add_u32 s88, s88, s10')
    a('s_lshl_b32 s88, s88, 16')
    a('s_lshl_b32 s78, s76, 8')
    a('s_add_u32 s88, s88, s78')
    a('s_lshl_b32 s76, s76, 7')
    a('s_lshl_b32 s78, s10, 5')
    a('s_add_u32 s76, s76, s78')
    a('v_lshrrev_b32 v9, 3, v1')
    a('v_and_b32 v10, 7, v1')
    a('s_lshl_b32 s78, s10, 3')
    a('v_add_u32 v18, s78, v9')
    a('v_lshlrev_b32 v11, 1, v10')
    a('v_xor_b32 v18, v18, v11')
    a('v_lshlrev_b32 v18, 3, v18')
    a('v_lshl_add_u32 v18, v10, 11, v18')
    a('v_add_u32 v18, %d, v18' % PA)
    a('v_lshlrev_b32 v9, 2, v9')
    a('v_add_u32 v9, s76, v9')
    a('v_mul_u32_u24 v11, 1280, v9')
    a('v_lshl_add_u32 v11, v10, 4, v11')
    a('s_lshl_b32 s78, s77, 7')
    a('v_add_u32 v11, s78, v11')
    a('v_subrev_u32 v12, 3840, v11')
    a('v_subrev_u32 v13, 2560, v11')
    a('v_subrev_u32 v15, 1280, v11')
    a('s_lshl_b32 s78, s77, 9')
    a('v_lshlrev_b32 v14, 6, v10')
    a('v_add_u32 v14, s78, v14')
    def kv_loads():
        for i in range(4):
            a('buffer_load_dwordx4 %s, v11, s[56:59], 0 offen offset:%d%s' % (vr(KR + 12 + 4 * i, 4), 1280 * i, NT))
        for i in range(4):
            a('buffer_load_dwordx4 %s, v11, s[60:63], 0 offen offset:%d%s' % (vr(VR_ + 4 * i, 4), 1280 * i, NT))
        a('buffer_load_dwordx4 %s, v12, s[56:59], 0 offen%s' % (vr(KR, 4), NT))
        a('buffer_load_dwordx4 %s, v13, s[56:59], 0 offen%s' % (vr(KR + 4, 4), NT))
        a('buffer_load_dwordx4 %s, v15, s[56:59], 0 offen%s' % (vr(KR + 8, 4), NT))
        for i in range(4):
            tk['kv'] = a.emit('buffer_load_dwordx4 %s, v14, s[64:67], 0 offen offset:%d' % (vr(WR + 4 * i, 4), 16 * i))
    kv_loads()
    issue_stage(1)
    def kv_part(pairs):
        def f():
            a.wait_vm(tk['kv'])
            U = 92
            for cp in pairs:
                for r in range(7):
                    unpack_lo(a, U + 2 * r, KR + 4 * r + cp); unpack_hi(a, U + 2 * r + 1, KR + 4 * r + cp)
                for r in range(4):
                    unpack_lo(a, U + 14 + 2 * r, VR_ + 4 * r + cp); unpack_hi(a, U + 15 + 2 * r, VR_ + 4 * r + cp)
                for h in range(2):
                    unpack_lo(a, U + 22 + h, WR + 4 * cp + 2 * h); unpack_hi(a, U + 24 + h, WR + 4 * cp + 2 * h)
                    unpack_lo(a, U + 26 + h, WR + 4 * cp + 2 * h + 1); unpack_hi(a, U + 28 + h, WR + 4 * cp + 2 * h + 1)
                AC = U + 30
                for i in range(8):
                    a('v_mul_f32 v%d, v%d, v%d' % (AC + i, U + i, U + 28 + (i & 1)))
                for tap in (2, 1, 0):
                    for i in range(8):
                        a('v_fmac_f32 v%d, v%d, v%d' % (AC + i, U + 2 * (3 - tap) + i, U + 22 + 2 * tap + (i & 1)))
                for i in range(8):
                    a('v_mul_f32 v%d, v%d, v%d' % (AC + i, AC + i, U + 14 + i))
                O = 24 + (cp & 1) * 4
                for h in range(2):
                    a('v_cvt_pk_bf16_f32 v%d, v%d, v%d' % (O + 2 * h, AC + h, AC + 2 + h))
                    a('v_cvt_pk_bf16_f32 v%d, v%d, v%d' % (O + 2 * h + 1, AC + 4 + h, AC + 6 + h))
                for h in range(2):
                    a('ds_write_b64 v18, %s offset:%d' % (vr(O + 2 * h, 2), 256 * (2 * cp + h)))
        return f
    def ut_store():
        srd(a, 56, P_WS, SZ_UT, WS_UT)
        a('v_lshrrev_b32 v9, 4, v1')
        a('v_and_b32 v10, 15, v1')
        a('v_lshlrev_b32 v11, 12, v9')
        a('v_lshl_add_u32 v11, v10, 4, v11')
        a('s_lshl_b32 s76, s10, 1')
        a('s_lshl_b32 s77, s10, 12')
        a('s_add_u32 s77, s77, %d' % PA)
        for hh in range(2):
            a('s_add_u32 s78, s76, %d' % hh)
            a('v_xor_b32 v12, s78, v10')
            a('v_lshlrev_b32 v12, 4, v12')
            a('v_lshl_add_u32 v12, v9, 8, v12')
            a('v_add_u32 v%d, s77, v12' % (13 + hh))
        tl = [a.emit('ds_read_b128 %s, v%d offset:%d' % (vr(32 + 4 * i, 4), 13 + (i >> 1), 1024 * i)) for i in range(4)]
        for i in range(4):
            a.wait_lg(tl[i])
            a('s_add_u32 s76, s88, %d' % (16384 * i))
            tk['st'] = a.emit('buffer_store_dwordx4 %s, v11, s[56:59], s76 offen sc1' % vr(32 + 4 * i, 4))
    cv = {}
    def conv_ids():
        a('s_mul_i32 s11, s4, 20')
        a('s_add_u32 s11, s11, s5')
        a('s_lshl_b32 s11, s11, 2')
        a('s_add_u32 s11, s11, s10')
        a('s_lshr_b32 s80, s11, 4')
        a('s_lshl_b32 s80, s80, 7')
        a('s_lshl_b32 s81, s11, 12')
        lane_min(a, 240, 16, 3)
    def conv_poll_issue():
        cv['p'] = poll_issue(a, 240, 's80', 242)
    def conv_dma_p():
        srd(a, 60, P_SSMK, SZ_X)
        a('v_bfe_u32 v9, v1, 4, 1')
        a('v_lshlrev_b32 v9, 1, v9')
        a('v_xor_b32 v9, v9, v1')
        a('v_lshlrev_b32 v9, 4, v9')
        a('s_add_u32 m0, s82, 512')
        for i in range(4):
            a('buffer_load_dwordx4 v9, s[60:63], s81 offen offset:%d%s lds' % (1024 * i, NT))
    CS = cfg.cstart
    def conv_q_wait():
        a('v_lshlrev_b32 v241, 4, v1')
        poll_wait(a, cfg, cv['p'], 240, 's80', 242)
        a('s_add_u32 m0, s83, 64')
        for i in range(4):
            cv['dma'] = a.emit('buffer_load_dwordx4 v241, s[56:59], s81 offen offset:%d sc1 lds' % (1024 * i))
    gen = {}
    def conv_chunk(n):
        def f():
            if 'g' not in gen:
                a.wait_vm(cv['dma'])
                gen['g'] = conv_main(a, cfg, prof)
            for _ in range(n):
                try: next(gen['g'])
                except StopIteration: return
        return f
    slA = {0: [kv_part([0, 1])], 1: [n_issue, kv_part([2, 3])], 2: [ut_store], 3: [n_get, aux_flag, conv_ids, h_clear], 7: [conv_dma_p]}
    slA.setdefault(cfg.yclr_at, []).append(y_clear)
    slA.setdefault(min(cfg.yclr_at + 2, 8), []).insert(0, clr_flag(True))
    slA.setdefault(CS - 1, []).extend([lambda: conv_setup(a, cfg), conv_q_wait])
    for i in range(CS, NSTAGE - 1): slA.setdefault(i, []).append(conv_chunk(cfg.cchunk))
    assert CS == 9
    slA.setdefault(NSTAGE - 2, []).append(lambda: cv.__setitem__('fp', fetch_pre(a, cfg)))
    slA.setdefault(NSTAGE - 1, []).extend([lambda: fetch_pre2(a, cfg, cv['fp']), lambda: a('s_setprio %d' % cfg.vprio), conv_chunk(10 ** 6), lambda: a('s_setprio 0')])
    for i in range(NSTAGE): interval(i, slA, pre={CS - 1: [conv_poll_issue]}, drain=(i <= 2))
    a('s_branch Lfetch')

    a.vmq, stage_tok, a.hist = list(saved[0]), dict(saved[1]), list(saved[2])
    a.lgq = []
    a.label('LtypeB')
    srd(a, 56, P_WD, SZ_W)
    a('s_mul_i32 s78, s4, 12')
    a('s_add_u32 s78, s78, s5')
    a('s_sub_u32 s78, s78, 20')
    a('s_lshl_b32 s78, s78, 2')
    a('s_add_u32 s78, s78, s10')
    a('s_lshr_b32 s79, s78, 3')
    a('s_and_b32 s78, s78, 7')
    a('s_mul_i32 s89, s78, 48')
    a('s_add_u32 s89, s89, s79')
    a('s_lshl_b32 s89, s89, 3')
    a('s_add_u32 s89, s89, %d' % F_WD)
    def wd_loads():
        a('s_mul_i32 s76, s79, 40960')
        a('s_mul_i32 s77, s78, 160')
        a('s_add_u32 s76, s76, s77')
        for i in range(5):
            a('v_add_u32 v9, %d, v1' % (64 * i))
            a('v_mul_u32_u24 v10, 6554, v9')
            a('v_lshrrev_b32 v10, 16, v10')
            a('v_mul_u32_u24 v11, 10, v10')
            a('v_sub_u32 v11, v9, v11')
            a('v_mul_u32_u24 v10, 1280, v10')
            a('v_lshl_add_u32 v10, v11, 4, v10')
            a('s_add_u32 m0, s82, %d' % (1024 * i))
            tk['wd'] = a.emit('buffer_load_dwordx4 v10, s[56:59], s76 offen%s lds' % NT)
    issue_stage(1)
    def wd_part():
        a('v_lshrrev_b32 v9, 5, v1')
        a('v_lshlrev_b32 v9, 4, v9')
        a('v_bfe_u32 v10, v1, 2, 3')
        a('v_add_u32 v9, v9, v10')
        a('v_mul_u32_u24 v9, 160, v9')
        a('v_and_b32 v10, 3, v1')
        a('v_lshl_add_u32 v9, v10, 3, v9')
        a('v_add_u32 v9, s82, v9')
        srd(a, 60, P_WS, SZ_WD, WS_WD)
        a('s_mul_i32 s76, s78, 245760')
        a('s_mul_i32 s77, s79, 5120')
        a('s_add_u32 s76, s76, s77')
        a('s_add_u32 s77, s76, 4096')
        a('v_lshlrev_b32 v17, 4, v1')
        a.wait_vm(tk['wd'])
        for dl in range(5):
            for t in range(2):
                a('ds_read_b64_tr_b16 v[%d:%d], v9 offset:%d' % (32 + 4 * dl + 2 * t, 33 + 4 * dl + 2 * t, t * 1280 + dl * 32))
        a.wait_all_lg()
        for dl in range(5):
            if dl < 4:
                a('buffer_store_dwordx4 %s, v17, s[60:63], s76 offen offset:%d sc1' % (vr(32 + 4 * dl, 4), 1024 * dl))
            else:
                tk['st'] = a.emit('buffer_store_dwordx4 %s, v17, s[60:63], s77 offen sc1' % vr(32 + 4 * dl, 4))
    GX, GW = 56, 104
    gtk = []
    def g_loads():
        srd(a, 64, P_GW, 1280)
        a('s_sub_u32 s76, s5, 20')
        a('s_lshl_b32 s76, s76, 2')
        a('s_add_u32 s76, s76, s10')
        a('s_cmp_ge_u32 s76, 32')
        a('s_cselect_b32 s86, 0x40000000, 0')
        a('s_and_b32 s77, s4, 1')
        a('s_lshl_b32 s77, s77, 2')
        a('s_lshr_b32 s78, s76, 3')
        a('s_add_u32 s77, s77, s78')
        a('s_and_b32 s76, s76, 7')
        a('s_lshl_b32 s78, s6, 9')
        a('s_lshl_b32 s79, s77, 3')
        a('s_add_u32 s78, s78, s79')
        a('s_add_u32 s78, s78, s76')
        a('s_mul_i32 s78, s78, 1280')
        a('s_or_b32 s78, s78, s86')
        a('v_lshrrev_b32 v9, 5, v1')
        a('v_and_b32 v10, 31, v1')
        a('v_lshlrev_b32 v11, 4, v10')
        a('s_mov_b32 s79, 81920')
        a('v_mul_lo_u32 v12, v9, s79')
        a('v_add_u32 v12, v12, v11')
        a('v_cmp_gt_u32 vcc, 16, v10')
        a('v_mov_b32 v15, 0x%x' % OOB)
        a('v_cndmask_b32 v13, v15, v12, vcc')
        for i in range(3):
            a('buffer_load_dwordx4 %s, v11, s[64:67], 0 offen offset:%d' % (vr(GW + 4 * i, 4), 512 * i))
        for p in range(4):
            a('buffer_load_dwordx4 %s, v12, s[44:47], s78 offen' % vr(GX + 12 * p, 4))
            a('buffer_load_dwordx4 %s, v12, s[44:47], s78 offen offset:512' % vr(GX + 12 * p + 4, 4))
            gtk.append(a.emit('buffer_load_dwordx4 %s, v13, s[44:47], s78 offen offset:1024' % vr(GX + 12 * p + 8, 4)))
            a('s_add_u32 s78, s78, 163840')
        a('s_lshl_b32 s78, s6, 3')
        a('s_add_u32 s78, s78, s77')
        a('s_lshl_b32 s78, s78, 3')
        a('s_add_u32 s78, s78, s76')
        a('s_lshl_b32 s84, s78, 5')
        a('s_or_b32 s84, s84, s86')
        a('s_lshl_b32 s85, s78, 3')
        a('s_add_u32 s85, s85, %d' % F_G)
        a('s_or_b32 s85, s85, s86')
        a('v_lshlrev_b32 v14, 2, v9')
        a('v_cmp_eq_u32 vcc, 31, v10')
        a('v_cndmask_b32 v14, v15, v14, vcc')
    def g_compute():
        srd(a, 64, P_WS, SZ_G, WS_G)
        for p in range(4):
            a.wait_vm(gtk[p])
            a('v_mov_b32 v%d, 0' % (16 + p))
            for i in range(12):
                a('v_dot2_f32_bf16 v%d, v%d, v%d, v%d' % (16 + p, GX + 12 * p + i, GW + i, 16 + p))
        a('s_nop 2')
        for sh in (1, 2, 4, 8):
            for p in range(4):
                a('v_add_f32_dpp v%d, v%d, v%d row_shr:%d row_mask:0xf bank_mask:0xf bound_ctrl:0' % (16 + p, 16 + p, 16 + p, sh))
        for p in range(4):
            a('v_add_f32_dpp v%d, v%d, v%d row_bcast:15 row_mask:0xa bank_mask:0xf' % (16 + p, 16 + p, 16 + p))
        for p in range(4):
            r = 16 + p
            a('v_cvt_pk_bf16_f32 v%d, v%d, v%d' % (r, r, r))
            a('v_and_b32 v%d, 0xffff0000, v%d' % (r, r))
            a('v_mul_f32 v%d, 0xbfb8aa3b, v%d' % (r, r))
            a('v_exp_f32 v%d, v%d' % (r, r))
            a('v_add_f32 v%d, 1.0, v%d' % (r, r))
            a('v_rcp_f32 v%d, v%d' % (r, r))
            a('v_cvt_pk_bf16_f32 v%d, v%d, v%d' % (r, r, r))
            a('v_and_b32 v%d, 0xffff0000, v%d' % (r, r))
            tk['gst'] = a.emit('buffer_store_dword v%d, v14, s[64:67], s84 offen offset:%d sc1' % (r, 8 * p))
    def g_flag():
        a.wait_vm(tk['gst'])
        flag_store(a, 's85')
    def wd_touch():
        if not cfg.cotouch: return
        assert cfg.g2map == 0
        a('s_and_b32 s76, s4, 1')
        a('s_mul_i32 s80, s76, 1536')
        a('s_add_u32 s80, s80, %d' % F_WD)
        a('v_lshlrev_b32 v9, 3, v1')
        a('v_add_u32 v10, 512, v9')
        a('v_add_u32 v11, 1024, v9')
        ts = [poll_issue(a, 9 + i, 's80', 12 + 2 * i) for i in range(3)]
        for i in range(3): poll_wait(a, cfg, ts[i], 9 + i, 's80', 12 + 2 * i)
        a('s_sub_u32 s77, s5, 20')
        a('s_lshl_b32 s77, s77, 2')
        a('s_add_u32 s77, s77, s10')
        a('s_mul_i32 s77, s77, 20480')
        a('s_mul_i32 s76, s76, 983040')
        a('s_add_u32 s76, s76, s77')
        a('v_lshlrev_b32 v9, 7, v1')
        a('v_add_u32 v10, 8192, v9')
        a('v_add_u32 v11, 16384, v9')
        a('v_cmp_gt_u32 vcc, 32, v1')
        a('v_mov_b32 v12, 0x%x' % OOB)
        a('v_cndmask_b32 v11, v12, v11, vcc')
        for i in range(3):
            a('buffer_load_dword v12, v%d, s[60:63], s76 offen sc1' % (9 + i))
    slB = {0: [wd_loads], 1: [n_issue], 2: [wd_part], 3: [n_get, h_clear, g_loads], 4: [aux_flag], 5: [clr_flag(False), g_compute], 6: [g_flag], 7: [wd_touch]}
    for i in range(NSTAGE): interval(i, slB)
    prof.stamp(4)
    fetch_pre2(a, cfg, fetch_pre(a, cfg))
    a.pad()
    a.label('Lfetch')
    a.reset_queues()
    y2_fetch(a, cfg, prof)
    prof.flush(244)

VQ, VU, VP = 12, 13, 14
QC, ACCS, PR, NP_ = 24, [152, 168], 184, 6
CAR, UR, TM, YO = 208, 212, 216, 220
def conv_setup(a, cfg):
    a('s_and_b32 s85, s11, 0xfffffffe')
    a('s_lshl_b32 s85, s85, 1')
    a('s_load_dword s86, s[26:27], s85')
    srd(a, 64, P_WS, SZ_Y2, WS_Y2)
    T0, T1, G1, R, C, G = 24, 25, 26, 27, 28, 29
    for i in range(4): a('v_mov_b32 v%d, 0' % (32 + i))
    a('v_and_b32 v%d, 31, v1' % T0)
    a('v_lshlrev_b32 v%d, 4, v%d' % (T0, T0))
    a('v_add_u32 v%d, s82, v%d' % (T0, T0))
    a('ds_write_b128 v%d, v[32:35]' % T0)
    a('v_and_b32 v%d, 3, v1' % T1)
    a('v_lshlrev_b32 v%d, 4, v%d' % (T1, T1))
    a('v_add_u32 v%d, s83, v%d' % (T1, T1))
    a('ds_write_b128 v%d, v[32:35]' % T1)
    a('v_bfe_u32 v%d, v1, 4, 1' % G1)
    a('v_bfe_u32 v%d, v1, 2, 2' % R)
    a('v_and_b32 v%d, 3, v1' % C)
    a('v_lshrrev_b32 v%d, 5, v1' % G)
    T0, T1, T2 = 30, 31, 36
    a('v_add_u32 v%d, v%d, v%d' % (T0, C, R))
    a('v_lshlrev_b32 v%d, 3, v%d' % (T0, T0))
    a('v_lshl_add_u32 v%d, v%d, 5, v%d' % (T0, G1, T0))
    a('v_lshl_add_u32 v%d, v%d, 6, v%d' % (T0, G, T0))
    a('s_add_u32 s85, s83, 8')
    a('v_add_u32 v%d, s85, v%d' % (VQ, T0))
    a('s_add_u32 s85, s83, 64')
    a('v_lshlrev_b32 v%d, 1, v1' % T0)
    a('v_add_u32 v%d, s85, v%d' % (VU, T0))
    a('v_lshlrev_b32 v%d, 7, v%d' % (T0, G1))
    a('v_lshl_add_u32 v%d, v%d, 5, v%d' % (T0, C, T0))
    a('v_lshlrev_b32 v%d, 5, v%d' % (T1, G))
    a('v_sub_u32 v%d, v%d, v%d' % (T0, T0, T1))
    a('v_lshlrev_b32 v%d, 2, v%d' % (T1, R))
    a('v_sub_u32 v%d, v%d, v%d' % (T0, T0, T1))
    for j in range(4):
        for t in range(2):
            d = VP + 2 * j + t
            a('v_add_u32 v%d, %d, v%d' % (T1, 256 - 64 * j + 28 - 16 * t, T0))
            a('v_bfe_u32 v%d, v%d, 7, 1' % (T2, T1))
            a('v_lshlrev_b32 v%d, 4, v%d' % (T2, T2))
            a('v_xor_b32 v%d, v%d, v%d' % (T1, T1, T2))
            a('v_lshlrev_b32 v%d, 1, v%d' % (T1, T1))
            a('v_add_u32 v%d, s82, v%d' % (d, T1))
    for i in range(3): a('v_mov_b32 v%d, 0' % (CAR + i))
    for i in range(4): a('v_mov_b32 v%d, 0' % (UR + i))
    a('s_mov_b32 s60, 0')
    a('s_mov_b32 s61, 0x80000000')
    a.emit('s_waitcnt lgkmcnt(0)'); a.lgq = []
    a('s_and_b32 s85, s11, 1')
    a('s_lshl_b32 s85, s85, 4')
    a('s_lshr_b32 s86, s86, s85')
    a('s_lshl_b32 s86, s86, 16')

def conv_main(a, cfg, prof):
    prof.stamp(1)
    ml = [(tau, kap, 4 * tau - kap) for tau in range(8) for kap in range(4 * tau + 4)]
    def p_reads(idx):
        tau, kap, lam = ml[idx]
        j = (-lam) % 4; b = (lam + j) // 4
        r = PR + (idx % NP_) * 4
        return ['ds_read_b64_tr_b16 v[%d:%d], v%d offset:%d' % (r + 2 * t, r + 2 * t + 1, VP + 2 * j + t, 512 * b) for t in range(2)]
    def q_reads(kap):
        r = QC + 4 * kap
        return ['ds_read_b64_tr_b16 v[%d:%d], v%d offset:%d' % (r + 2 * t, r + 2 * t + 1, VQ, 128 * kap + 32 * t) for t in range(2)]
    ROR = 'wave_ror:1 row_mask:0xf bank_mask:0xf'
    def ystore(i): return 'buffer_store_dwordx4 %s, v241, s[64:67], s81 offen offset:%d sc1' % (vr(YO + 4 * i, 4), 1024 * i)
    def epi_ops(tau):
        A = ACCS[tau % 2]
        ops = []
        for qq in range(4):
            ops.append(('ds', 'ds_read_u16_d16_hi v%d, v%d offset:%d' % (UR + qq, VU, 128 * (4 * tau + qq)), qq))
        def prev(qq, rho): return CAR + (3 - rho) if qq == 0 else A + 4 * (qq - 1) + rho
        for rho in (3, 2, 1):
            for qq in range(4):
                ops.append('v_cndmask_b32 v%d, v%d, v%d, s[60:61]' % (TM + qq, A + 4 * qq + rho, prev(qq, rho)))
            ops.append('v_mov_b32 v%d, v%d' % (CAR + (3 - rho), A + 12 + rho))
            for qq in range(4):
                dst = A + 4 * qq + rho - 1
                ops.append('v_add_f32_dpp v%d, v%d, v%d %s' % (dst, TM + qq, dst, ROR))
        for pr in range(2):
            y0, y1 = A + 8 * pr, A + 8 * pr + 4
            u0, u1 = UR + 2 * pr, UR + 2 * pr + 1
            o = YO + (tau // 2) * 4 + (tau % 2) * 2 + pr
            ops.append(('waitu', 2 * pr + 1))
            ops.append('v_fma_f32 v%d, s86, v%d, v%d' % (y0, u0, y0))
            ops.append('v_fma_f32 v%d, s86, v%d, v%d' % (y1, u1, y1))
            ops.append('v_cvt_pk_bf16_f32 v%d, v%d, v%d' % (o, y0, y1))
            ops.append('v_min_u32 v%d, -2, v%d' % (o, o))
        if tau % 2 == 1 and not cfg.ydefer:
            ops.append(ystore(tau // 2))
        if tau == 5 and cfg.ydefer:
            pass
        if tau == 7 and cfg.ydefer:
            ops.extend(ystore(i) for i in range(4))
        return ops
    utok = {}
    def run_epi(ops, n):
        k = 0
        while ops and k < n:
            o = ops.pop(0)
            if isinstance(o, tuple):
                if o[0] == 'ds': utok[o[2]] = a.emit(o[1]); k += 1
                else: a.wait_lg(utok[o[1]])
            else:
                a.emit(o); k += 1
    AHEAD = 4
    ptok = {}; qtok = {}
    def fetch(idx):
        tau, kap, lam = ml[idx]
        if kap not in qtok:
            qtok[kap] = [a.emit(r) for r in q_reads(kap)][-1]
        ptok[idx] = [a.emit(r) for r in p_reads(idx)][-1]
    for i in range(AHEAD): fetch(i)
    pend = []; since = 0
    for idx, (tau, kap, lam) in enumerate(ml):
        a.wait_lg(max(ptok[idx], qtok[kap]))
        if kap == 0 and tau >= 2: run_epi(pend, 10 ** 6)
        A = ACCS[tau % 2]
        c = '0' if kap == 0 else vr(A, 16)
        a('v_mfma_f32_32x32x16_bf16 %s, %s, %s, %s' % (vr(A, 16), vr(PR + (idx % NP_) * 4, 4), vr(QC + 4 * kap, 4), c))
        if idx + AHEAD < len(ml): fetch(idx + AHEAD)
        if kap == 0 and tau >= 1:
            pend = epi_ops(tau - 1); since = 0
        since += 1
        if since >= 3: run_epi(pend, 3)
        yield
    run_epi(pend, 10 ** 6)
    run_epi(epi_ops(7), 10 ** 6)
    prof.stamp(2)

QV, GV = 2, 22
def fetch_pre(a, cfg):
    g2_ids(a)
    srd(a, 44, P_WS, SZ_Y2, WS_Y2)
    srd(a, 48, P_Q, SZ_X)
    srd(a, 52, P_WS, SZ_G, WS_G)
    a('v_mov_b32 v25, v2')
    a('v_mov_b32 v26, v3')
    a('s_lshl_b32 s80, s11, 6')
    a('s_add_u32 s80, s80, %d' % F_G)
    a('s_mul_i32 s12, s8, 640')
    a('s_add_u32 s12, s12, %d' % F_Y2)
    lane_min(a, 27, 8, 3)
    a('v_lshlrev_b32 v28, 3, v1')
    lane_min(a, 29, 16, 3)
    a('v_add_u32 v29, 512, v29')
    t0 = poll_issue(a, 27, 's80', 30)
    t1 = poll_issue(a, 28, 's12', 32)
    t2 = poll_issue(a, 29, 's12', 34)
    for dl in range(5):
        a('buffer_load_dwordx2 %s, v26, s[48:51], 0 offen offset:%d' % (vr(QV + 2 * dl, 2), dl * 32))
    return t0, t1, t2

def fetch_pre2(a, cfg, toks):
    t0, t1, t2 = toks
    poll_wait(a, cfg, t0, 27, 's80', 30)
    a('buffer_load_dword v%d, v25, s[52:55], 0 offen sc1' % GV)
    poll_wait(a, cfg, t1, 28, 's12', 32)
    poll_wait(a, cfg, t2, 29, 's12', 34)
    a('s_mul_i32 s11, s8, 327680')
    a('s_lshl_b32 s12, s6, 10')
    a('s_add_u32 s11, s11, s12')
    a('s_lshl_b32 s12, s7, 7')
    a('s_add_u32 s11, s11, s12')
    a('s_lshl_b32 s12, s10, 5')
    a('s_add_u32 s11, s11, s12')

def y2_fetch(a, cfg, prof):
    a('v_lshrrev_b32 v24, 1, v1')
    a('v_lshlrev_b32 v24, 12, v24')
    a('v_and_b32 v25, 1, v1')
    a('v_lshl_add_u32 v24, v25, 4, v24')
    a('v_add_u32 v25, 0x20000, v24')
    a('v_add_u32 v26, 0x40000, v24')
    a('v_cmp_gt_u32 vcc, 32, v1')
    a('v_mov_b32 v27, 0x%x' % OOB)
    a('v_cndmask_b32 v26, v27, v26, vcc')
    prof.stamp(6)
    YV = 40
    lo, ok = newlabel('Ly'), newlabel('Ly_ok')
    a('s_mov_b32 s94, %d' % cfg.spin)
    a.label(lo)
    for i in range(3):
        a('buffer_load_dwordx4 %s, v%d, s[44:47], s11 offen sc1' % (vr(YV + 4 * i, 4), 24 + i))
    a.wait_all_vm()
    a('v_max3_u32 v27, v%d, v%d, v%d' % (YV, YV + 1, YV + 2))
    for i in range(3, 11, 2):
        a('v_max3_u32 v27, v27, v%d, v%d' % (YV + i, YV + i + 1))
    a('v_max_u32 v27, v27, v%d' % (YV + 11))
    a('v_cmp_eq_u32 vcc, -1, v27')
    a('s_nop 1')
    a('s_cbranch_vccz %s' % ok)
    a('s_sleep %d' % cfg.ysleep)
    a('s_sub_u32 s94, s94, 1')
    a('s_cmp_lg_u32 s94, 0')
    a('s_cbranch_scc1 %s' % lo)
    a.label(ok)
    a('v_lshlrev_b32 v28, 2, v1')
    a('s_add_u32 s12, s83, 3072')
    a('v_add_u32 v28, s12, v28')
    a('v_lshlrev_b32 v31, 4, v1')
    a('v_add_u32 v29, s83, v31')
    a('v_lshlrev_b32 v30, 3, v1')
    a('v_add_u32 v30, s83, v30')
    prof.stamp(7)
    a('ds_write_b128 v29, %s' % vr(YV, 4))
    a('ds_write_b128 v29, %s offset:1024' % vr(YV + 4, 4))
    a('ds_write_b128 v29, %s offset:2048' % vr(YV + 8, 4))
    a('v_sub_f32 v32, 1.0, v22')
    a('v_cvt_pk_bf16_f32 v32, v32, v32')
    a('v_and_b32 v32, 0xffff0000, v32')
    a('ds_write_b32 v28, v32')
    a.wait_all_lg()
    tk = [a.emit('ds_read_b64_tr_b16 %s, v30 offset:%d' % (vr(56 + 2 * dl, 2), dl * 512)) for dl in range(5)]
    a('v_add_u32 v29, s82, v31')
    for dl in range(5):
        a.wait_lg(tk[dl])
        x = 72 + 4 * dl; y = 96; t = 100
        unpack_lo(a, x, QV + 2 * dl); unpack_hi(a, x + 1, QV + 2 * dl); unpack_lo(a, x + 2, QV + 2 * dl + 1); unpack_hi(a, x + 3, QV + 2 * dl + 1)
        unpack_lo(a, y, 56 + 2 * dl); unpack_hi(a, y + 1, 56 + 2 * dl); unpack_lo(a, y + 2, 57 + 2 * dl); unpack_hi(a, y + 3, 57 + 2 * dl)
        for i in range(4): a('v_mul_f32 v%d, v%d, v%d' % (x + i, x + i, y + i))
        for rep in range(2):
            a('v_cvt_pk_bf16_f32 v%d, v%d, v%d' % (t, x, x + 1))
            a('v_cvt_pk_bf16_f32 v%d, v%d, v%d' % (t + 1, x + 2, x + 3))
            unpack_lo(a, x, t); unpack_hi(a, x + 1, t); unpack_lo(a, x + 2, t + 1); unpack_hi(a, x + 3, t + 1)
            if rep == 0:
                for i in range(4): a('v_mul_f32 v%d, v22, v%d' % (x + i, x + i))
        a('ds_write_b128 v29, %s offset:%d' % (vr(x, 4), dl * 1024))
    a.wait_all_lg()
    a('s_barrier')
    prof.stamp(8)

def generate(cfg):
    G2MAP[0] = cfg.g2map
    a = Asm()
    a.raw('.amdgcn_target "amdgcn-amd-amdhsa--gfx950"')
    a.raw('.text')
    kn = NAME + '_kernel'
    kernel_header(a, kn)
    prof = Prof(a, cfg, 0)
    prof.start()
    a('s_cmp_ge_u32 s2, 256')
    a('s_cbranch_scc1 Ldone')
    load_kernargs(a)
    a('v_lshrrev_b32 v2, 6, v0')
    a('v_and_b32 v1, 63, v0')
    a('v_readfirstlane_b32 s3, v2')
    a('s_and_b32 s4, s2, 7')
    a('s_lshr_b32 s5, s2, 3')
    a('s_lshr_b32 s6, s4, 1')
    a('s_and_b32 s7, s5, 3')
    a('s_and_b32 s8, s4, 1')
    a('s_lshl_b32 s8, s8, 3')
    a('s_lshr_b32 s9, s5, 2')
    a('s_add_u32 s8, s8, s9')
    a('s_cmp_lt_u32 s3, 4')
    a('s_cbranch_scc1 Lcwave')
    h0 = list(a.hist)
    l_wave(a, cfg, prof)
    a.label('Ldone')
    a('s_endpgm')
    a.hist = h0; a.reset_queues()
    a.label('Lcwave')
    c_wave(a, cfg, prof)
    hdr = open('cdna_kernels/%s.s.ref' % NAME).read().split('; Override launch')[0]
    hdr += '; generated by dev/gen5.py (hand-written generator)\n'
    hdr += '; @launch grid=(256,1,1) block=(512,1,1) lds=%d\n' % LDS
    return hdr + a.text() + kernel_desc(kn, 256 if cfg.prof else 252)

if __name__ == '__main__':
    cfg = Cfg()
    out = sys.argv[1]
    for kv in sys.argv[2:]:
        k, v = kv.split('=')
        assert hasattr(cfg, k), k
        setattr(cfg, k, int(v))
    open(out, 'w').write(generate(cfg))
```

```python
import sys
from asmlib import *

NAME = "gated_mix__ssm_conv_h3__glu_gated_bilinear__prompt"
WS_H, SZ_H = 0, 6291456
WS_WD, SZ_WD = 6291456, 1966080
WS_UT, SZ_UT = 8257536, 2621440
WS_Y2, SZ_Y2 = 10878976, 2621440
WS_G, SZ_G = 13500416, 8192
WS_PROF = 16 << 20
SZ_X = 2621440
SZ_W = 1966080
OOB = 0x80000000

class Cfg:
    prof = 0
    h_mimic = 1
    out_mimic = 1
    rot = 1
    rot2 = 1
    nt = 1
    st_sc1 = 1
    h_sc1 = 1
    aux0 = 7
    smem_pf = 0
    noaux = 0
    nomfma = 0
    only_k1 = 0
    noconv = 0
    depth2 = 4
    noread = 0
    noload = 0
    lstamp = 1
    nwg = 256
    mf16 = 0
    helper = 0
    hmode = 0

P_Q, P_K, P_V, P_SHK, P_SSMK, P_SSMD, P_BX, P_WG = 16, 18, 20, 22, 24, 26, 28, 30
P_WU, P_WD, P_GW, P_OUT, P_DBG, P_WS = 32, 34, 36, 38, 40, 42

def load_kernargs(a):
    a('s_load_dwordx16 s[16:31], s[0:1], 0')
    a('s_load_dwordx8 s[32:39], s[0:1], 64')
    a('s_load_dwordx4 s[40:43], s[0:1], 96')

def srd(a, d, p, size, off=0):
    if off:
        a('s_add_u32 s%d, s%d, 0x%x' % (d, p, off))
        a('s_addc_u32 s%d, s%d, 0' % (d + 1, p + 1))
    else:
        a('s_mov_b32 s%d, s%d' % (d, p))
        a('s_mov_b32 s%d, s%d' % (d + 1, p + 1))
    a('s_mov_b32 s%d, 0x%x' % (d + 2, size))
    a('s_mov_b32 s%d, 0x00020000' % (d + 3))
def S4(d): return 's[%d:%d]' % (d, d + 3)

class Prof:
    def __init__(self, a, cfg, kidx):
        self.a, self.on, self.kidx = a, cfg.prof, kidx
    def start(self):
        if not self.on: return
        self.a('s_memrealtime s[98:99]')
        self.a('v_mov_b32 v255, 0')
    def stamp(self, i, op='s_memrealtime'):
        if not self.on: return
        a = self.a
        a('%s s[100:101]' % op)
        a.emit('s_waitcnt lgkmcnt(0)'); a.lgq = []
        a('v_writelane_b32 v255, s100, %d' % i)
    def cyc(self, i): self.stamp(i, 's_memtime')
    def flush(self, vt=250):
        if not self.on: return
        a = self.a
        a('v_lshrrev_b32 v%d, 6, v0' % vt)
        a('v_readfirstlane_b32 s9, v%d' % vt)
        srd(a, 4, P_WS, 2 << 20, WS_PROF)
        a('s_lshl_b32 s8, s2, 11')
        a('s_lshl_b32 s9, s9, 8')
        a('s_add_u32 s8, s8, s9')
        a('s_add_u32 s8, s8, %d' % (self.kidx * 524288))
        a('s_getreg_b32 s9, hwreg(HW_REG_XCC_ID)')
        a('v_writelane_b32 v255, s98, 0')
        a('v_writelane_b32 v255, s9, 63')
        a('v_and_b32 v%d, 63, v0' % vt)
        a('v_lshlrev_b32 v%d, 2, v%d' % (vt, vt))
        a('buffer_store_dword v255, v%d, s[4:7], s8 offen' % vt)

def kernel_header(a, name):
    a.raw('.globl %s' % name)
    a.raw('.p2align 8')
    a.raw('.type %s,@function' % name)
    a.raw('%s:' % name)
    a.pad(); a.reset_queues()

def kernel_desc(name, vgpr, sgpr=102):
    acc = (vgpr + 3) // 4 * 4
    return '''.section .rodata,"a"
.p2align 6
.amdhsa_kernel %s
  .amdhsa_next_free_vgpr %d
  .amdhsa_next_free_sgpr %d
  .amdhsa_accum_offset %d
  .amdhsa_group_segment_fixed_size 0
  .amdhsa_kernarg_size 112
  .amdhsa_user_sgpr_count 2
  .amdhsa_user_sgpr_kernarg_segment_ptr 1
  .amdhsa_system_sgpr_workgroup_id_x 1
.end_amdhsa_kernel
''' % (name, vgpr, sgpr, acc)

def unpack_lo(a, d, s): a('v_lshlrev_b32 v%d, 16, v%d' % (d, s))
def unpack_hi(a, d, s): a('v_and_b32 v%d, 0xffff0000, v%d' % (d, s))
def P2(x): return 'v[%d:%d]' % (x, x + 1)
def u32(x): return x & 0xffffffff

def prologue(a, prof, done, nwg=256):
    prof.start()
    a('s_cmp_ge_u32 s2, %d' % nwg)
    a('s_cbranch_scc1 %s' % done)
    load_kernargs(a)
    a('v_lshrrev_b32 v2, 6, v0')
    a('v_and_b32 v1, 63, v0')
    a('v_readfirstlane_b32 s3, v2')
    a('s_and_b32 s4, s2, 7')
    a('s_lshr_b32 s5, s2, 3')
    a('s_lshr_b32 s6, s4, 1')

SLOT = 41088
OFF_GATE, OFF_UP = 16384, 16384 + 12320
NSTAGE, NSLOT = 10, 3
SCR = NSLOT * SLOT
LDS1 = SCR + 4 * 5120

def g1_ids(a):
    a('s_and_b32 s7, s5, 3')
    a('s_and_b32 s8, s4, 1')
    a('s_lshl_b32 s8, s8, 3')
    a('s_lshr_b32 s9, s5, 2')
    a('s_add_u32 s8, s8, s9')

def g1_consumer(a, cfg, prof):
    a('s_and_b32 s10, s3, 1')
    a('s_lshr_b32 s11, s3, 1')
    a('v_and_b32 v2, 31, v1')
    a('v_lshrrev_b32 v3, 5, v1')
    a('v_lshrrev_b32 v9, 1, v2')
    a('v_and_b32 v9, 7, v9')
    a('v_xor_b32 v9, v9, v3')
    a('v_lshlrev_b32 v9, 4, v9')
    a('v_lshl_add_u32 v9, v2, 7, v9')
    a('s_lshl_b32 s12, s11, 13')
    a('v_add_u32 v4, s12, v9')
    a('v_xor_b32 v5, 32, v4')
    a('v_xor_b32 v6, 64, v4')
    a('v_xor_b32 v7, 96, v4')
    a('v_bfe_u32 v9, v1, 4, 1')
    a('v_mul_u32_u24 v8, 12320, v9')
    a('v_bfe_u32 v9, v1, 2, 2')
    a('v_lshl_add_u32 v9, v3, 3, v9')
    a('v_mul_u32_u24 v9, 192, v9')
    a('v_add_u32 v8, v8, v9')
    a('v_and_b32 v9, 3, v1')
    a('v_lshl_add_u32 v8, v9, 3, v8')
    a('s_mul_i32 s12, s10, 96')
    a('s_add_u32 s12, s12, %d' % OFF_GATE)
    a('v_add_u32 v8, s12, v8')
    a('v_lshrrev_b32 v9, 4, v2')
    a('v_lshlrev_b32 v10, 10, v9')
    a('v_lshl_add_u32 v10, v3, 8, v10')
    a('v_and_b32 v9, 15, v2')
    a('v_lshl_add_u32 v10, v9, 4, v10')
    a('s_lshl_b32 s12, s6, 2')
    a('s_add_u32 s12, s12, s7')
    a('s_lshl_b32 s12, s12, 1')
    a('s_add_u32 s12, s12, s11')
    a('s_mul_i32 s12, s12, 196608')
    a('s_mul_i32 s13, s8, 6')
    a('s_mul_i32 s14, s10, 3')
    a('s_add_u32 s13, s13, s14')
    for tt in range(3):
        a('s_add_u32 s14, s13, %d' % tt)
        a('s_lshr_b32 s15, s14, 1')
        a('s_lshl_b32 s15, s15, 12')
        a('s_and_b32 s14, s14, 1')
        a('s_lshl_b32 s14, s14, 9')
        a('s_add_u32 s14, s14, s15')
        a('s_add_u32 s%d, s14, s12' % (76 + tt))
    a.emit('s_waitcnt lgkmcnt(0)')
    srd(a, 44, P_WS, SZ_H, WS_H)
    ACC = 64
    FB = [16, 40]
    def acc(tt, b): return ACC + (tt * 2 + b) * 16
    def reads(buf, ks):
        f = FB[buf]
        def A(tt):
            return ['ds_read_b64_tr_b16 v[%d:%d], v8 offset:%d' % (f + 4 * tt + 2 * t, f + 4 * tt + 2 * t + 1, ks * 3072 + t * 768 + tt * 32) for t in range(2)]
        def B(b):
            return ['ds_read_b128 v[%d:%d], v%d offset:%d' % (f + 12 + 4 * b, f + 15 + 4 * b, 4 + ks, b * 4096)]
        if cfg.noread: return ['ds_read_b32 v12, v8'] * 0 + ['s_nop 0'] * 8
        return A(0) + B(0) + B(1) + A(1) + A(2)
    order = [(0, 0, 2), (0, 1, 3), (1, 0, 5), (1, 1, 5), (2, 0, 7), (2, 1, 7)]
    a('s_barrier')
    prof.stamp(1); prof.cyc(5)
    toks = [a.emit(r) for r in reads(0, 0)]
    cur = 0
    if cfg.nomfma:
        for st in range(NSTAGE - 1): a('s_barrier')
    for st in range(NSTAGE if cfg.nomfma else 0, NSTAGE):
        for ks in range(4):
            last = (st == NSTAGE - 1 and ks == 3)
            nxt = None if last else reads(1 - cur, (ks + 1) % 4)
            ntoks = []
            f = FB[cur]
            for mi, (tt, b, need_i) in enumerate(order):
                a.wait_lg(toks[need_i])
                c = '0' if (st == 0 and ks == 0) else vr(acc(tt, b), 16)
                if cfg.mf16:
                    for hh in range(2):
                        x = acc(tt, b) + 4 * (2 * (ks & 1) + hh)
                        a('v_mfma_f32_16x16x32_bf16 %s, %s, %s, %s' % (vr(x, 4), vr(f + 4 * tt, 4), vr(f + 12 + 4 * b, 4), '0' if (st == 0 and ks < 2) else vr(x, 4)))
                else:
                    a('v_mfma_f32_32x32x16_bf16 %s, %s, %s, %s' % (vr(acc(tt, b), 16), vr(f + 4 * tt, 4), vr(f + 12 + 4 * b, 4), c))
                if nxt is not None:
                    if ks == 3:
                        if mi == 0:
                            a.wait_all_lg()
                            d = SLOT if (st + 1) % NSLOT else -(NSLOT - 1) * SLOT
                            for r in (4, 5, 6, 7, 8):
                                a('v_add_u32 v%d, 0x%x, v%d' % (r, u32(d), r))
                            a('s_barrier')
                        sched = {1: 3, 2: 2, 3: 2, 4: 1}
                    else:
                        sched = {0: 2, 1: 2, 2: 2, 3: 2}
                    for _ in range(sched.get(mi, 0)):
                        ntoks.append(a.emit(nxt[len(ntoks)]))
            toks = ntoks
            cur = 1 - cur
    prof.stamp(2); prof.cyc(6)
    for tt in range(3):
        for b in range(2):
            x = acc(tt, b)
            o = 16 + ((tt * 2 + b) % 2) * 4
            w = 24 + ((tt * 2 + b) % 2) * 16
            if cfg.h_mimic:
                for p in range(4):
                    a('v_cvt_pk_bf16_f32 v%d, v%d, v%d' % (w + p, x + 2 * p, x + 2 * p + 1))
                    a('v_cvt_pk_bf16_f32 v%d, v%d, v%d' % (w + 4 + p, x + 8 + 2 * p, x + 8 + 2 * p + 1))
                for p in range(4):
                    unpack_lo(a, x + 2 * p, w + p); unpack_hi(a, x + 2 * p + 1, w + p)
                    unpack_lo(a, x + 8 + 2 * p, w + 4 + p); unpack_hi(a, x + 8 + 2 * p + 1, w + 4 + p)
            for p in range(4):
                a('v_pk_mul_f32 %s, %s, %s' % (P2(x + 2 * p), P2(x + 2 * p), P2(x + 8 + 2 * p)))
            for p in range(4):
                a('v_cvt_pk_bf16_f32 v%d, v%d, v%d' % (o + p, x + 2 * p, x + 2 * p + 1))
            a('buffer_store_dwordx4 %s, v10, s[44:47], s%d offen offset:%d%s' % (vr(o, 4), 76 + tt, b * 2048, ' sc1' if cfg.h_sc1 else ''))
    prof.stamp(3)

def g1_loader(a, cfg, prof, end):
    NT = ' nt' if cfg.nt else ''
    SC = ' sc1' if cfg.st_sc1 else ''
    a('s_and_b32 s10, s3, 3')
    a('v_lshrrev_b32 v9, 3, v1')
    a('v_and_b32 v10, 7, v1')
    a('v_lshrrev_b32 v11, 1, v9')
    a('v_xor_b32 v10, v10, v11')
    a('v_lshlrev_b32 v10, 4, v10')
    a('s_mov_b32 s12, 81920')
    a('v_mul_lo_u32 v9, v9, s12')
    a('v_add_u32 v2, v9, v10')
    a('v_xor_b32 v10, 64, v10')
    a('v_add_u32 v3, v9, v10')
    a('v_add_u32 v3, 256, v3')
    a('v_add_u32 v4, 512, v2')
    a('v_add_u32 v5, 512, v3')
    for i in range(3):
        a('v_add_u32 v9, %d, v1' % (64 * i))
        a('v_mul_u32_u24 v10, 5462, v9')
        a('v_lshrrev_b32 v10, 16, v10')
        a('v_mul_u32_u24 v11, 12, v10')
        a('v_sub_u32 v11, v9, v11')
        a('v_mul_u32_u24 v10, 3072, v10')
        a('v_lshl_add_u32 v10, v11, 4, v10')
        a('v_subrev_u32 v%d, %d, v10' % (6 + i, 1024 * i))
    a('s_lshl_b32 s12, s6, 9')
    a('s_lshl_b32 s13, s7, 4')
    a('s_add_u32 s12, s12, s13')
    a('s_lshl_b32 s13, s10, 2')
    a('s_add_u32 s12, s12, s13')
    a('s_mul_i32 s12, s12, 1280')
    a('s_mul_i32 s13, s10, 49152')
    a('s_mul_i32 s14, s8, 192')
    a('s_add_u32 s13, s13, s14')
    a('s_lshl_b32 s14, s10, 12')
    a('s_mul_i32 s15, s10, 3072')
    if cfg.rot:
        a('s_mul_i32 s96, s7, 10')
        a('s_mul_i32 s97, s9, 5')
        a('s_add_u32 s96, s96, s97')
        a('s_lshr_b32 s96, s96, 2')
        a('s_cmp_ge_u32 s96, 10')
        a('s_cselect_b32 s97, 10, 0')
        a('s_sub_u32 s96, s96, s97')
        a('s_lshl_b32 s97, s96, 7')
        a('s_add_u32 s12, s12, s97')
        a('s_mul_i32 s97, s96, 196608')
        a('s_add_u32 s13, s13, s97')
    a.emit('s_waitcnt lgkmcnt(0)')
    prof.stamp(3)
    srd(a, 44, P_Q, SZ_X)
    srd(a, 48, P_WG, SZ_W)
    srd(a, 52, P_WU, SZ_W)
    stage_tok = {}
    def issue_stage(st):
        base = (st % NSLOT) * SLOT
        if cfg.noload:
            stage_tok[st] = -1
            return
        a('s_add_u32 m0, s14, %d' % base)
        for i in range(4):
            a('buffer_load_dwordx4 v%d, s[44:47], s12 offen offset:%d lds' % (2 + i, 1024 * i))
        a('s_add_u32 m0, s15, %d' % (base + OFF_GATE))
        for i in range(3):
            a('buffer_load_dwordx4 v%d, s[48:51], s13 offen offset:%d lds' % (6 + i, 1024 * i))
        a('s_add_u32 m0, s15, %d' % (base + OFF_UP))
        for i in range(3):
            t = a.emit('buffer_load_dwordx4 v%d, s[52:55], s13 offen offset:%d lds' % (6 + i, 1024 * i))
        stage_tok[st] = t
        if cfg.rot:
            a('s_add_u32 s96, s96, 1')
            a('s_cmp_eq_u32 s96, 10')
            a('s_cselect_b32 s97, 1280, 0')
            a('s_cselect_b32 s95, 1966080, 0')
            a('s_sub_u32 s12, s12, s97')
            a('s_sub_u32 s13, s13, s95')
            a('s_add_u32 s12, s12, 128')
            a('s_add_u32 s13, s13, 196608')
        else:
            a('s_add_u32 s12, s12, 128')
            a('s_add_u32 s13, s13, 196608')
    issue_stage(0)
    issue_stage(1)
    prof.stamp(5)
    GX, GW = 132, 144
    tk = {}
    def g_loads():
        srd(a, 64, P_GW, 1280)
        a('s_and_b32 s76, s4, 1')
        a('s_lshl_b32 s76, s76, 5')
        a('s_add_u32 s76, s76, s5')
        a('s_lshl_b32 s76, s76, 3')
        a('s_lshl_b32 s77, s6, 9')
        a('s_add_u32 s76, s76, s77')
        a('s_lshl_b32 s77, s10, 1')
        a('s_add_u32 s76, s76, s77')
        a('v_lshrrev_b32 v9, 5, v1')
        a('v_add_u32 v9, s76, v9')
        a('v_and_b32 v10, 31, v1')
        a('v_lshlrev_b32 v11, 4, v10')
        a('v_mul_u32_u24 v12, 1280, v9')
        a('v_add_u32 v12, v12, v11')
        a('v_cmp_gt_u32 vcc, 16, v10')
        a('v_mov_b32 v15, 0x%x' % OOB)
        a('v_cndmask_b32 v13, v15, v12, vcc')
        a('buffer_load_dwordx4 %s, v12, s[44:47], 0 offen' % vr(GX, 4))
        a('buffer_load_dwordx4 %s, v12, s[44:47], 0 offen offset:512' % vr(GX + 4, 4))
        a('buffer_load_dwordx4 %s, v13, s[44:47], 0 offen offset:1024' % vr(GX + 8, 4))
        a('buffer_load_dwordx4 %s, v11, s[64:67], 0 offen' % vr(GW, 4))
        a('buffer_load_dwordx4 %s, v11, s[64:67], 0 offen offset:512' % vr(GW + 4, 4))
        tk['g'] = a.emit('buffer_load_dwordx4 %s, v11, s[64:67], 0 offen offset:1024' % vr(GW + 8, 4))
        a('v_lshlrev_b32 v14, 2, v9')
        a('v_cmp_eq_u32 vcc, 31, v10')
        a('v_cndmask_b32 v14, v15, v14, vcc')
    def ssmk_pf():
        if cfg.smem_pf: return
        srd(a, 72, P_SSMK, SZ_X)
        a('s_mul_i32 s76, s4, 128')
        a('s_lshl_b32 s77, s5, 2')
        a('s_add_u32 s76, s76, s77')
        a('s_add_u32 s76, s76, s10')
        a('s_mul_i32 s76, s76, 2560')
        a('v_lshlrev_b32 v9, 7, v1')
        a('v_cmp_gt_u32 vcc, 20, v1')
        a('v_mov_b32 v15, 0x%x' % OOB)
        a('v_cndmask_b32 v9, v15, v9, vcc')
        a('buffer_load_dword v19, v9, s[72:75], s76 offen')
    def g_compute():
        a.wait_vm(tk['g'])
        a('v_mov_b32 v16, 0')
        for i in range(12):
            a('v_dot2_f32_bf16 v16, v%d, v%d, v16' % (GX + i, GW + i))
        a('s_nop 2')
        for sh in (1, 2, 4, 8):
            a('v_add_f32_dpp v16, v16, v16 row_shr:%d row_mask:0xf bank_mask:0xf bound_ctrl:0' % sh)
        a('v_add_f32_dpp v16, v16, v16 row_bcast:15 row_mask:0xa bank_mask:0xf')
        a('v_cvt_pk_bf16_f32 v16, v16, v16')
        a('v_and_b32 v16, 0xffff0000, v16')
        a('v_mul_f32 v16, 0xbfb8aa3b, v16')
        a('v_exp_f32 v16, v16')
        a('v_add_f32 v16, 1.0, v16')
        a('v_rcp_f32 v16, v16')
        a('v_cvt_pk_bf16_f32 v16, v16, v16')
        a('v_and_b32 v16, 0xffff0000, v16')
        srd(a, 64, P_WS, SZ_G, WS_G)
        a('buffer_store_dword v16, v14, s[64:67], 0 offen' + SC)
    def sentinel():
        srd(a, 72, P_WS, SZ_Y2, WS_Y2)
        a('s_lshl_b32 s76, s2, 2')
        a('s_add_u32 s76, s76, s10')
        a('s_mul_i32 s76, s76, 3072')
        a('v_lshlrev_b32 v17, 4, v1')
        for i in range(4): a('v_mov_b32 v%d, -1' % (20 + i))
        for i in range(3):
            a('buffer_store_dwordx4 v[20:23], v17, s[72:75], s76 offen offset:%d%s' % (1024 * i, SC))
    spf = []
    def spf_setup():
        a('s_lshl_b32 s76, s5, 2')
        a('s_add_u32 s76, s76, s10')
        a('s_lshl_b32 s77, s4, 7')
        a('s_add_u32 s76, s76, s77')
        a('s_mul_i32 s77, s76, 2560')
        a('s_add_u32 s80, s%d, s77' % P_K); a('s_addc_u32 s81, s%d, 0' % (P_K + 1))
        a('s_add_u32 s82, s%d, s77' % P_V); a('s_addc_u32 s83, s%d, 0' % (P_V + 1))
        a('s_add_u32 s84, s%d, s77' % P_SSMK); a('s_addc_u32 s85, s%d, 0' % (P_SSMK + 1))
        a('s_mul_i32 s77, s76, 1920')
        a('s_add_u32 s86, s%d, s77' % P_WD); a('s_addc_u32 s87, s%d, 0' % (P_WD + 1))
        for i in range(20):
            spf.append((80, 128 * i)); spf.append((82, 128 * i))
        for i in range(15): spf.append((86, 128 * i))
        for i in range(20): spf.append((84, 128 * i))
    def spf_issue(n):
        for _ in range(n):
            if not spf: return
            b, off = spf.pop(0)
            a('s_load_dword s88, s[%d:%d], %d' % (b, b + 1, off))
    if cfg.smem_pf:
        spf_setup(); spf_issue(12)
    def interval(i, slices):
        a.wait_vm(stage_tok[i])
        if cfg.lstamp and not cfg.smem_pf: prof.stamp(10 + i)
        a('s_barrier')
        if cfg.lstamp and not cfg.smem_pf: prof.stamp(20 + i)
        if i + NSLOT - 1 < NSTAGE: issue_stage(i + NSLOT - 1)
        if cfg.smem_pf: spf_issue(cfg.smem_pf)
        if cfg.lstamp and not cfg.smem_pf: prof.stamp(30 + i)
        if not cfg.noaux:
            for f in slices.get(i, []): f()
    AUX0 = cfg.aux0
    for i in range(AUX0): interval(i, {0: [sentinel]})
    a('s_cmp_ge_u32 s5, 20')
    a('s_cbranch_scc1 L1_typeB')
    saved = (list(a.vmq), dict(stage_tok), list(a.hist), list(spf))

    KR, VR_, WR = 32, 60, 76
    def kv_loads():
        srd(a, 56, P_K, SZ_X); srd(a, 60, P_V, SZ_X); srd(a, 68, P_SHK, 5120)
        a('s_cmp_ge_u32 s5, 10')
        a('s_cselect_b32 s76, 1, 0')
        a('s_cselect_b32 s77, 10, 0')
        a('s_sub_u32 s77, s5, s77')
        a('s_lshl_b32 s78, s4, 1')
        a('s_add_u32 s76, s76, s78')
        a('s_lshl_b32 s76, s76, 7')
        a('s_lshl_b32 s78, s10, 5')
        a('s_add_u32 s76, s76, s78')
        a('v_lshrrev_b32 v9, 3, v1')
        a('v_lshlrev_b32 v9, 2, v9')
        a('v_add_u32 v9, s76, v9')
        a('v_and_b32 v10, 7, v1')
        a('v_mul_u32_u24 v11, 1280, v9')
        a('v_lshl_add_u32 v11, v10, 4, v11')
        a('s_lshl_b32 s78, s77, 7')
        a('v_add_u32 v11, s78, v11')
        a('v_subrev_u32 v12, 3840, v11')
        a('v_subrev_u32 v13, 2560, v11')
        a('v_subrev_u32 v15, 1280, v11')
        KNT = '' if cfg.smem_pf else NT
        for i in range(4):
            a('buffer_load_dwordx4 %s, v11, s[56:59], 0 offen offset:%d%s' % (vr(KR + 12 + 4 * i, 4), 1280 * i, KNT))
        for i in range(4):
            a('buffer_load_dwordx4 %s, v11, s[60:63], 0 offen offset:%d%s' % (vr(VR_ + 4 * i, 4), 1280 * i, KNT))
        a('buffer_load_dwordx4 %s, v12, s[56:59], 0 offen%s' % (vr(KR, 4), KNT))
        a('buffer_load_dwordx4 %s, v13, s[56:59], 0 offen%s' % (vr(KR + 4, 4), KNT))
        a('buffer_load_dwordx4 %s, v15, s[56:59], 0 offen%s' % (vr(KR + 8, 4), KNT))
        a('s_lshl_b32 s78, s77, 9')
        a('v_lshlrev_b32 v12, 6, v10')
        a('v_add_u32 v12, s78, v12')
        for i in range(4):
            tk['kv'] = a.emit('buffer_load_dwordx4 %s, v12, s[68:71], 0 offen offset:%d' % (vr(WR + 4 * i, 4), 16 * i))
        a('s_lshl_b32 s78, s77, 18')
        a('v_lshlrev_b32 v18, 15, v10')
        a('v_add_u32 v18, s78, v18')
        a('v_lshl_add_u32 v18, v9, 1, v18')
    def kv_part(pairs):
        def f():
            a.wait_vm(tk['kv'])
            if pairs[0] == 0:
                srd(a, 68, P_WS, SZ_UT, WS_UT)
            U = 92
            for cp in pairs:
                for r in range(7):
                    unpack_lo(a, U + 2 * r, KR + 4 * r + cp); unpack_hi(a, U + 2 * r + 1, KR + 4 * r + cp)
                for r in range(4):
                    unpack_lo(a, U + 14 + 2 * r, VR_ + 4 * r + cp); unpack_hi(a, U + 15 + 2 * r, VR_ + 4 * r + cp)
                for h in range(2):
                    unpack_lo(a, U + 22 + h, WR + 4 * cp + 2 * h); unpack_hi(a, U + 24 + h, WR + 4 * cp + 2 * h)
                    unpack_lo(a, U + 26 + h, WR + 4 * cp + 2 * h + 1); unpack_hi(a, U + 28 + h, WR + 4 * cp + 2 * h + 1)
                AC = U + 30
                for i in range(4):
                    a('v_pk_mul_f32 %s, %s, %s' % (P2(AC + 2 * i), P2(U + 2 * i), P2(U + 28)))
                for tap in (2, 1, 0):
                    for i in range(4):
                        a('v_pk_fma_f32 %s, %s, %s, %s' % (P2(AC + 2 * i), P2(U + 2 * (i + 3 - tap)), P2(U + 22 + 2 * tap), P2(AC + 2 * i)))
                for i in range(4):
                    a('v_pk_mul_f32 %s, %s, %s' % (P2(AC + 2 * i), P2(AC + 2 * i), P2(U + 14 + 2 * i)))
                O = 24 + (cp & 1) * 4
                for h in range(2):
                    a('v_cvt_pk_bf16_f32 v%d, v%d, v%d' % (O + 2 * h, AC + h, AC + 2 + h))
                    a('v_cvt_pk_bf16_f32 v%d, v%d, v%d' % (O + 2 * h + 1, AC + 4 + h, AC + 6 + h))
                for h in range(2):
                    a('s_mov_b32 s76, %d' % (4096 * (2 * cp + h)))
                    a('buffer_store_dwordx2 %s, v18, s[68:71], s76 offen%s' % (vr(O + 2 * h, 2), SC))
        return f
    def sched(loads, comps):
        sl = {}
        for i, f in enumerate(loads): sl.setdefault(min(AUX0 + i // 2, 9), []).append(f)
        c0 = min(AUX0 + 2, 9)
        for i, f in enumerate(comps): sl.setdefault(min(c0 + i, 9), []).append(f)
        return sl
    slA = sched([kv_loads, g_loads, ssmk_pf], [kv_part([0]), kv_part([1]), kv_part([2]), kv_part([3]), g_compute])
    for i in range(AUX0, NSTAGE): interval(i, slA)
    prof.stamp(4)
    end(a, 'A')

    a.vmq, stage_tok, a.hist = list(saved[0]), dict(saved[1]), list(saved[2])
    spf[:] = saved[3]
    a.lgq = []
    a.label('L1_typeB')
    def wd_loads():
        srd(a, 56, P_WD, SZ_W)
        a('s_mul_i32 s78, s4, 12')
        a('s_add_u32 s78, s78, s5')
        a('s_sub_u32 s78, s78, 20')
        a('s_lshl_b32 s78, s78, 2')
        a('s_add_u32 s78, s78, s10')
        a('s_lshr_b32 s79, s78, 3')
        a('s_and_b32 s78, s78, 7')
        a('s_mul_i32 s76, s79, 40960')
        a('s_mul_i32 s77, s78, 160')
        a('s_add_u32 s76, s76, s77')
        a('s_mul_i32 s89, s10, 5120')
        a('s_add_u32 s89, s89, %d' % SCR)
        for i in range(5):
            a('v_add_u32 v9, %d, v1' % (64 * i))
            a('v_mul_u32_u24 v10, 6554, v9')
            a('v_lshrrev_b32 v10, 16, v10')
            a('v_mul_u32_u24 v11, 10, v10')
            a('v_sub_u32 v11, v9, v11')
            a('v_mul_u32_u24 v10, 1280, v10')
            a('v_lshl_add_u32 v10, v11, 4, v10')
            a('s_add_u32 m0, s89, %d' % (1024 * i))
            tk['wd'] = a.emit('buffer_load_dwordx4 v10, s[56:59], s76 offen%s lds' % ('' if cfg.smem_pf else NT))
    def wd_part():
        a('v_lshrrev_b32 v9, 5, v1')
        a('v_lshlrev_b32 v9, 4, v9')
        a('v_bfe_u32 v10, v1, 2, 3')
        a('v_add_u32 v9, v9, v10')
        a('v_mul_u32_u24 v9, 160, v9')
        a('v_and_b32 v10, 3, v1')
        a('v_lshl_add_u32 v9, v10, 3, v9')
        a('v_add_u32 v9, s89, v9')
        srd(a, 60, P_WS, SZ_WD, WS_WD)
        a('s_mul_i32 s76, s78, 245760')
        a('s_mul_i32 s77, s79, 5120')
        a('s_add_u32 s76, s76, s77')
        a('s_add_u32 s77, s76, 4096')
        a('v_lshlrev_b32 v17, 4, v1')
        a.wait_vm(tk['wd'])
        for dl in range(5):
            for t in range(2):
                a('ds_read_b64_tr_b16 v[%d:%d], v9 offset:%d' % (32 + 4 * dl + 2 * t, 33 + 4 * dl + 2 * t, t * 1280 + dl * 32))
        a.wait_all_lg()
        for dl in range(5):
            if dl < 4:
                a('buffer_store_dwordx4 %s, v17, s[60:63], s76 offen offset:%d%s' % (vr(32 + 4 * dl, 4), 1024 * dl, SC))
            else:
                a('buffer_store_dwordx4 %s, v17, s[60:63], s77 offen%s' % (vr(32 + 4 * dl, 4), SC))
    slB = sched([wd_loads, g_loads, ssmk_pf], [wd_part, g_compute])
    for i in range(AUX0, NSTAGE): interval(i, slB)
    prof.stamp(4)
    end(a, 'B')

CV = 9216
def g2_ids(a):
    a('s_and_b32 s7, s5, 7')
    a('s_and_b32 s8, s4, 1')
    a('s_lshl_b32 s8, s8, 2')
    a('s_lshr_b32 s9, s5, 3')
    a('s_add_u32 s8, s8, s9')
    a('s_and_b32 s10, s3, 3')
    a('v_and_b32 v2, 7, v1')
    a('v_lshlrev_b32 v2, 6, v2')
    a('v_bfe_u32 v3, v1, 3, 1')
    a('v_add_u32 v2, v2, v3')
    a('s_lshl_b32 s11, s6, 9')
    a('s_lshl_b32 s12, s7, 3')
    a('s_add_u32 s11, s11, s12')
    a('s_lshl_b32 s12, s10, 1')
    a('s_add_u32 s11, s11, s12')
    a('v_add_u32 v2, s11, v2')
    a('v_mul_u32_u24 v3, 1280, v2')
    a('v_lshrrev_b32 v4, 4, v1')
    a('v_lshl_add_u32 v3, v4, 3, v3')
    a('s_mul_i32 s12, s8, 160')
    a('v_add_u32 v3, s12, v3')
    a('v_lshlrev_b32 v2, 2, v2')
    a('v_lshlrev_b32 v4, 4, v1')

def g2_gemm(a, cfg, prof, RED, kernarg_wait=True):
    a('v_add_u32 v5, 4096, v4')
    a('s_lshl_b32 s11, s6, 3')
    a('s_add_u32 s11, s11, s7')
    a('s_mul_i32 s11, s11, 196608')
    a('s_mul_i32 s12, s10, 49152')
    a('s_add_u32 s11, s11, s12')
    a('s_mul_i32 s12, s8, 245760')
    a('s_mul_i32 s13, s10, 61440')
    a('s_add_u32 s12, s12, s13')
    if cfg.rot2:
        a('s_mul_i32 s96, s9, 6')
        a('s_mul_i32 s97, s7, 3')
        a('s_add_u32 s96, s96, s97')
        a('s_lshr_b32 s96, s96, 1')
        a('s_cmp_ge_u32 s96, 12')
        a('s_cselect_b32 s97, 12, 0')
        a('s_sub_u32 s96, s96, s97')
        a('s_lshl_b32 s97, s96, 12')
        a('s_add_u32 s11, s11, s97')
        a('s_mul_i32 s97, s96, 5120')
        a('s_add_u32 s12, s12, s97')
    if kernarg_wait: a.emit('s_waitcnt lgkmcnt(0)')
    srd(a, 44, P_WS, SZ_H, WS_H)
    srd(a, 48, P_WS, SZ_WD, WS_WD)
    DEPTH = cfg.depth2
    BUF, ACC = 8, 152
    def acc(dl, sg): return ACC + (sg * 5 + dl) * 4
    toks = {}
    def issue(k):
        b = BUF + (k % DEPTH) * 36
        for dl in range(5):
            if dl < 4:
                a('buffer_load_dwordx4 %s, v4, s[48:51], s12 offen offset:%d' % (vr(b + 4 * dl, 4), 1024 * dl))
            else:
                a('buffer_load_dwordx4 %s, v5, s[48:51], s12 offen' % vr(b + 16, 4))
        for sg in range(4):
            toks[(k, sg)] = a.emit('buffer_load_dwordx4 %s, v4, s[44:47], s11 offen offset:%d' % (vr(b + 20 + 4 * sg, 4), 1024 * sg))
        a('s_add_u32 s11, s11, 4096')
        a('s_add_u32 s12, s12, 5120')
        if cfg.rot2:
            a('s_add_u32 s96, s96, 1')
            a('s_cmp_eq_u32 s96, 12')
            a('s_cselect_b32 s97, 49152, 0')
            a('s_cselect_b32 s95, 61440, 0')
            a('s_sub_u32 s11, s11, s97')
            a('s_sub_u32 s12, s12, s95')
    for k in range(DEPTH): issue(k)
    srd(a, 52, P_WS, SZ_G, WS_G)
    srd(a, 56, P_OUT, SZ_X)
    for k in range(12):
        b = BUF + (k % DEPTH) * 36
        for sg in range(4):
            a.wait_vm(toks[(k, sg)])
            if sg == 0: prof.stamp(10 + k if k < 10 else 10 + k)
            for dl in range(5):
                c = '0' if k == 0 else vr(acc(dl, sg), 4)
                a('v_mfma_f32_16x16x32_bf16 %s, %s, %s, %s' % (vr(acc(dl, sg), 4), vr(b + 4 * dl, 4), vr(b + 20 + 4 * sg, 4), c))
        if k + DEPTH < 12: issue(k + DEPTH)
        if k == 8:
            gt = a.emit('buffer_load_dword v6, v2, s[52:55], 0 offen')
    prof.stamp(2)
    a('s_mul_i32 s13, s10, 20480')
    a('s_add_u32 s13, s13, %d' % RED)
    a('v_add_u32 v7, s13, v4')
    a('s_nop 7')
    for w in range(4):
        a('s_cmp_eq_u32 s10, %d' % w)
        a('s_cbranch_scc1 L2_fin%d' % w)
    hist0 = list(a.hist); vmq0 = list(a.vmq)
    for w in range(4):
        a.hist = list(hist0); a.vmq = list(vmq0); a.lgq = []
        a.label('L2_fin%d' % w)
        for sg in range(4):
            if sg == w: continue
            for dl in range(5):
                a('ds_write_b128 v7, %s offset:%d' % (vr(acc(dl, sg), 4), sg * 5120 + dl * 1024))
        a.wait_vm(gt)
        a('v_sub_f32 v6, 1.0, v6')
        a('v_cvt_pk_bf16_f32 v6, v6, v6')
        a('v_and_b32 v6, 0xffff0000, v6')
        a('v_add_u32 v7, %d, v4' % (RED + w * 5120))
        a('v_add_u32 v5, 40960, v7')
        a.wait_all_lg()
        a('s_barrier')
        prof.stamp(3)
        tk = {}
        srcs = [x for x in range(4) if x != w] + [4]
        for dl in range(5):
            for si, x in enumerate(srcs):
                off = x * 20480 + dl * 1024
                base = 'v7'
                if off >= 40960: base = 'v5'; off -= 40960
                tk[(dl, si)] = a.emit('ds_read_b128 %s, %s offset:%d' % (vr(8 + (dl * 4 + si) * 4, 4), base, off))
        for dl in range(5):
            x = acc(dl, w)
            for si in range(3):
                a.wait_lg(tk[(dl, si)])
                r = 8 + (dl * 4 + si) * 4
                a('v_pk_add_f32 %s, %s, %s' % (P2(x), P2(x), P2(r)))
                a('v_pk_add_f32 %s, %s, %s' % (P2(x + 2), P2(x + 2), P2(r + 2)))
            ga = 8 + (dl * 4 + 3) * 4
            t = 96 + (dl & 1) * 4
            if cfg.out_mimic:
                a('v_cvt_pk_bf16_f32 v%d, v%d, v%d' % (t, x, x + 1))
                a('v_cvt_pk_bf16_f32 v%d, v%d, v%d' % (t + 1, x + 2, x + 3))
                unpack_lo(a, x, t); unpack_hi(a, x + 1, t); unpack_lo(a, x + 2, t + 1); unpack_hi(a, x + 3, t + 1)
                for i in range(4): a('v_mul_f32 v%d, v6, v%d' % (x + i, x + i))
                a('v_cvt_pk_bf16_f32 v%d, v%d, v%d' % (t, x, x + 1))
                a('v_cvt_pk_bf16_f32 v%d, v%d, v%d' % (t + 1, x + 2, x + 3))
                unpack_lo(a, x, t); unpack_hi(a, x + 1, t); unpack_lo(a, x + 2, t + 1); unpack_hi(a, x + 3, t + 1)
                a.wait_lg(tk[(dl, 3)])
                a('v_pk_add_f32 %s, %s, %s' % (P2(x), P2(x), P2(ga)))
                a('v_pk_add_f32 %s, %s, %s' % (P2(x + 2), P2(x + 2), P2(ga + 2)))
            else:
                a.wait_lg(tk[(dl, 3)])
                for i in range(4): a('v_fma_f32 v%d, v6, v%d, v%d' % (x + i, x + i, ga + i))
            a('v_cvt_pk_bf16_f32 v%d, v%d, v%d' % (t + 2, x, x + 1))
            a('v_cvt_pk_bf16_f32 v%d, v%d, v%d' % (t + 3, x + 2, x + 3))
            a('buffer_store_dwordx2 %s, v3, s[56:59], 0 offen offset:%d' % (vr(t + 2, 2), dl * 32))
        prof.stamp(4)
        prof.flush()
        a('s_endpgm')

def conv_body(a, cfg, prof):
    a('s_setprio 1')
    srd(a, 48, P_SSMK, SZ_X)
    srd(a, 52, P_WS, SZ_UT, WS_UT)
    a('s_mul_i32 s11, s4, 20')
    a('s_add_u32 s11, s11, s5')
    a('s_lshl_b32 s11, s11, 2')
    a('s_add_u32 s11, s11, s10')
    a('s_lshl_b32 s12, s11, 12')
    a('v_bfe_u32 v5, v1, 4, 1')
    a('v_lshlrev_b32 v5, 1, v5')
    a('v_xor_b32 v5, v5, v1')
    a('v_lshlrev_b32 v5, 4, v5')
    PD, QD = 512, 4672
    a('s_add_u32 m0, s13, %d' % QD)
    for i in range(4):
        a('buffer_load_dwordx4 v4, s[52:55], s12 offen offset:%d lds' % (1024 * i))
    a('s_add_u32 m0, s13, %d' % PD)
    for i in range(4):
        dma_tok = a.emit('buffer_load_dwordx4 v5, s[48:51], s12 offen offset:%d lds' % (1024 * i))
    a('s_and_b32 s14, s11, 0xfffffffe')
    a('s_lshl_b32 s14, s14, 1')
    a('s_load_dword s15, s[26:27], s14')
    for i in range(4): a('v_mov_b32 v%d, 0' % (8 + i))
    a('v_and_b32 v6, 31, v1')
    a('v_lshlrev_b32 v6, 4, v6')
    a('v_add_u32 v6, s13, v6')
    a('ds_write_b128 v6, v[8:11]')
    a('v_and_b32 v6, 3, v1')
    a('v_lshlrev_b32 v6, 4, v6')
    a('v_add_u32 v6, s13, v6')
    a('ds_write_b128 v6, v[8:11] offset:4608')
    a('v_bfe_u32 v8, v1, 4, 1')
    a('v_bfe_u32 v9, v1, 2, 2')
    a('v_and_b32 v10, 3, v1')
    a('v_lshrrev_b32 v11, 5, v1')
    VQ, VU, VP = 12, 13, 14
    a('v_add_u32 v6, v10, v9')
    a('v_lshlrev_b32 v6, 3, v6')
    a('v_lshl_add_u32 v6, v8, 5, v6')
    a('v_lshl_add_u32 v6, v11, 6, v6')
    a('s_add_u32 s14, s13, %d' % (QD - 56))
    a('v_add_u32 v%d, s14, v6' % VQ)
    a('s_add_u32 s14, s13, %d' % QD)
    a('v_lshlrev_b32 v6, 1, v1')
    a('v_add_u32 v%d, s14, v6' % VU)
    a('v_lshlrev_b32 v6, 7, v8')
    a('v_lshl_add_u32 v6, v10, 5, v6')
    a('v_lshlrev_b32 v7, 5, v11')
    a('v_sub_u32 v6, v6, v7')
    a('v_lshlrev_b32 v7, 2, v9')
    a('v_sub_u32 v6, v6, v7')
    for j in range(4):
        for t in range(2):
            d = VP + 2 * j + t
            a('v_add_u32 v7, %d, v6' % (256 - 64 * j + 28 - 16 * t))
            a('v_bfe_u32 v8, v7, 7, 1')
            a('v_lshlrev_b32 v8, 4, v8')
            a('v_xor_b32 v7, v7, v8')
            a('v_lshlrev_b32 v7, 1, v7')
            a('v_add_u32 v%d, s13, v7' % d)
    QC = 24
    ACCS = [152, 168]
    PR = 184; NP = 6
    CAR = 208; UR = 212; TM = 216; YO = 232
    for i in range(3): a('v_mov_b32 v%d, 0' % (CAR + i))
    for i in range(4): a('v_mov_b32 v%d, 0' % (UR + i))
    a('s_mov_b32 s60, 0')
    a('s_mov_b32 s61, 0x80000000')
    a('v_mov_b32 v%d, 0xfffefffe' % (TM + 15))
    a.emit('s_waitcnt lgkmcnt(0)'); a.lgq = []
    a('s_and_b32 s14, s11, 1')
    a('s_lshl_b32 s14, s14, 4')
    a('s_lshr_b32 s15, s15, s14')
    a('s_lshl_b32 s15, s15, 16')
    a.wait_vm(dma_tok)
    prof.stamp(1)
    ml = [(tau, kap, 4 * tau - kap) for tau in range(8) for kap in range(4 * tau + 4)]
    def p_reads(idx):
        tau, kap, lam = ml[idx]
        j = (-lam) % 4; b = (lam + j) // 4
        r = PR + (idx % NP) * 4
        return ['ds_read_b64_tr_b16 v[%d:%d], v%d offset:%d' % (r + 2 * t, r + 2 * t + 1, VP + 2 * j + t, 512 * b) for t in range(2)]
    def q_reads(kap):
        r = QC + 4 * kap
        return ['ds_read_b64_tr_b16 v[%d:%d], v%d offset:%d' % (r + 2 * t, r + 2 * t + 1, VQ, 128 * kap + 32 * t) for t in range(2)]
    ROR = 'wave_ror:1 row_mask:0xf bank_mask:0xf'
    def epi_ops(tau):
        A = ACCS[tau % 2]
        ops = []
        for qq in range(4):
            ops.append(('ds', 'ds_read_u16_d16_hi v%d, v%d offset:%d' % (UR + qq, VU, 128 * (4 * tau + qq)), qq))
        def prev(qq, rho):
            return CAR + (3 - rho) if qq == 0 else A + 4 * (qq - 1) + rho
        for rho in (3, 2, 1):
            for qq in range(4):
                ops.append('v_cndmask_b32 v%d, v%d, v%d, s[60:61]' % (TM + qq, A + 4 * qq + rho, prev(qq, rho)))
            ops.append('v_mov_b32 v%d, v%d' % (CAR + (3 - rho), A + 12 + rho))
            for qq in range(4):
                dst = A + 4 * qq + rho - 1
                ops.append('v_add_f32_dpp v%d, v%d, v%d %s' % (dst, TM + qq, dst, ROR))
        for pr in range(2):
            y0, y1 = A + 8 * pr, A + 8 * pr + 4
            u0, u1 = UR + 2 * pr, UR + 2 * pr + 1
            t0, t1, t2 = TM + 8, TM + 9, TM + 10
            o = YO + ((tau // 2) % 2) * 4 + (tau % 2) * 2 + pr
            ops.append('v_cvt_pk_bf16_f32 v%d, v%d, v%d' % (t2, y0, y1))
            ops.append(('waitu', 2 * pr + 1))
            ops.append('v_mul_f32 v%d, s15, v%d' % (t0, u0))
            ops.append('v_mul_f32 v%d, s15, v%d' % (t1, u1))
            ops.append('v_lshlrev_b32 v%d, 16, v%d' % (y0, t2))
            ops.append('v_and_b32 v%d, 0xffff0000, v%d' % (y1, t2))
            ops.append('v_cvt_pk_bf16_f32 v%d, v%d, v%d' % (t2, t0, t1))
            ops.append('v_lshlrev_b32 v%d, 16, v%d' % (t0, t2))
            ops.append('v_and_b32 v%d, 0xffff0000, v%d' % (t1, t2))
            ops.append('v_add_f32 v%d, v%d, v%d' % (y0, y0, t0))
            ops.append('v_add_f32 v%d, v%d, v%d' % (y1, y1, t1))
            ops.append('v_cvt_pk_bf16_f32 v%d, v%d, v%d' % (o, y0, y1))
            ops.append('v_pk_min_u16 v%d, v%d, v%d' % (o, o, TM + 15))
        if tau % 2 == 1:
            o = YO + ((tau // 2) % 2) * 4
            ops.append('buffer_store_dwordx4 %s, v4, s[44:47], s12 offen offset:%d sc1' % (vr(o, 4), 1024 * (tau // 2)))
        return ops
    utok = {}
    def run_epi(ops, n):
        k = 0
        while ops and k < n:
            o = ops.pop(0)
            if isinstance(o, tuple):
                if o[0] == 'ds': utok[o[2]] = a.emit(o[1]); k += 1
                else: a.wait_lg(utok[o[1]])
            else:
                a.emit(o); k += 1
    AHEAD = 4
    ptok = {}; qtok = {}
    def fetch(idx):
        tau, kap, lam = ml[idx]
        if kap not in qtok:
            qtok[kap] = [a.emit(r) for r in q_reads(kap)][-1]
        ptok[idx] = [a.emit(r) for r in p_reads(idx)][-1]
    for i in range(AHEAD): fetch(i)
    pend = []; since = 0
    for idx, (tau, kap, lam) in enumerate(ml):
        a.wait_lg(max(ptok[idx], qtok[kap]))
        if kap == 0 and tau >= 2: run_epi(pend, 10 ** 6)
        A = ACCS[tau % 2]
        c = '0' if kap == 0 else vr(A, 16)
        a('v_mfma_f32_32x32x16_bf16 %s, %s, %s, %s' % (vr(A, 16), vr(PR + (idx % NP) * 4, 4), vr(QC + 4 * kap, 4), c))
        if idx + AHEAD < len(ml): fetch(idx + AHEAD)
        if kap == 0 and tau >= 1:
            pend = epi_ops(tau - 1); since = 0
        since += 1
        if since >= 3: run_epi(pend, 3)
    run_epi(pend, 10 ** 6)
    run_epi(epi_ops(7), 10 ** 6)
    a('s_setprio 0')
    prof.stamp(2)

def y2_fetch(a, cfg, prof, RED):
    srd(a, 48, P_Q, SZ_X)
    srd(a, 52, P_WS, SZ_G, WS_G)
    QV = 24
    for dl in range(5):
        a('buffer_load_dwordx2 %s, v3, s[48:51], 0 offen offset:%d' % (vr(QV + 2 * dl, 2), dl * 32))
    a('buffer_load_dword v6, v2, s[52:55], 0 offen')
    a('s_mul_i32 s11, s8, 327680')
    a('s_lshl_b32 s12, s6, 10')
    a('s_add_u32 s11, s11, s12')
    a('s_lshl_b32 s12, s7, 7')
    a('s_add_u32 s11, s11, s12')
    a('s_lshl_b32 s12, s10, 5')
    a('s_add_u32 s11, s11, s12')
    a('v_lshrrev_b32 v8, 1, v1')
    a('v_lshlrev_b32 v8, 12, v8')
    a('v_and_b32 v9, 1, v1')
    a('v_lshl_add_u32 v8, v9, 4, v8')
    a('v_add_u32 v9, 0x20000, v8')
    a('v_add_u32 v10, 0x40000, v8')
    a('v_cmp_gt_u32 vcc, 32, v1')
    a('v_mov_b32 v11, 0x%x' % OOB)
    a('v_cndmask_b32 v10, v11, v10, vcc')
    YV = 40
    a('s_mov_b32 s14, 200000')
    a.label('L2_poll')
    for i in range(3):
        a('buffer_load_dwordx4 %s, v%d, s[44:47], s11 offen sc1' % (vr(YV + 4 * i, 4), 8 + i))
    a.wait_all_vm()
    a('v_max3_u32 v11, v%d, v%d, v%d' % (YV, YV + 1, YV + 2))
    for i in range(3, 11, 2):
        a('v_max3_u32 v11, v11, v%d, v%d' % (YV + i, YV + i + 1))
    a('v_max_u32 v11, v11, v%d' % (YV + 11))
    a('v_cmp_eq_u32 vcc, -1, v11')
    a('s_nop 1')
    a('s_cbranch_vccz L2_got')
    a('s_sleep 8')
    a('s_sub_u32 s14, s14, 1')
    a('s_cmp_lg_u32 s14, 0')
    a('s_cbranch_scc1 L2_poll')
    a.label('L2_got')
    prof.stamp(3)
    a('v_add_u32 v8, s13, v4')
    a('ds_write_b128 v8, %s' % vr(YV, 4))
    a('ds_write_b128 v8, %s offset:1024' % vr(YV + 4, 4))
    a('ds_write_b128 v8, %s offset:2048' % vr(YV + 8, 4))
    a('v_lshlrev_b32 v9, 3, v1')
    a('v_add_u32 v9, s13, v9')
    a.wait_all_lg()
    tk = [a.emit('ds_read_b64_tr_b16 %s, v9 offset:%d' % (vr(56 + 2 * dl, 2), dl * 512)) for dl in range(5)]
    a('s_mul_i32 s12, s10, 5120')
    a('s_add_u32 s12, s12, %d' % (RED + 4 * 20480))
    a('v_add_u32 v8, s12, v4')
    for dl in range(5):
        a.wait_lg(tk[dl])
        x = 72 + 4 * dl; y = 96; t = 100
        unpack_lo(a, x, QV + 2 * dl); unpack_hi(a, x + 1, QV + 2 * dl); unpack_lo(a, x + 2, QV + 2 * dl + 1); unpack_hi(a, x + 3, QV + 2 * dl + 1)
        unpack_lo(a, y, 56 + 2 * dl); unpack_hi(a, y + 1, 56 + 2 * dl); unpack_lo(a, y + 2, 57 + 2 * dl); unpack_hi(a, y + 3, 57 + 2 * dl)
        for i in range(4): a('v_mul_f32 v%d, v%d, v%d' % (x + i, x + i, y + i))
        for rep in range(2):
            a('v_cvt_pk_bf16_f32 v%d, v%d, v%d' % (t, x, x + 1))
            a('v_cvt_pk_bf16_f32 v%d, v%d, v%d' % (t + 1, x + 2, x + 3))
            unpack_lo(a, x, t); unpack_hi(a, x + 1, t); unpack_lo(a, x + 2, t + 1); unpack_hi(a, x + 3, t + 1)
            if rep == 0:
                for i in range(4): a('v_mul_f32 v%d, v6, v%d' % (x + i, x + i))
        a('ds_write_b128 v8, %s offset:%d' % (vr(x, 4), dl * 1024))
    a.wait_all_lg()
    a('s_barrier')
    prof.stamp(4)

def gen_two(cfg):
    a = Asm()
    a.raw('.amdgcn_target "amdgcn-amd-amdhsa--gfx950"')
    a.raw('.text')
    kernel_header(a, 'k1_kernel')
    prof = Prof(a, cfg, 0)
    prologue(a, prof, 'K1_done', cfg.nwg)
    g1_ids(a)
    if cfg.helper:
        a('s_cmp_ge_u32 s5, 24')
        a('s_cbranch_scc1 K1_helper')
    a('s_cmp_ge_u32 s3, 4')
    a('s_cbranch_scc1 K1_loader')
    g1_consumer(a, cfg, prof)
    prof.flush()
    a('s_endpgm')
    a.pad(); a.reset_queues()
    a.label('K1_loader')
    def end(a, tag):
        prof.flush(); a('s_endpgm')
    g1_loader(a, cfg, prof, end)
    if cfg.helper:
        a.pad(); a.reset_queues()
        a.label('K1_helper')
        a('s_sub_u32 s10, s5, 24')
        a('s_lshl_b32 s10, s10, 3')
        a('s_add_u32 s10, s10, s3')
        if cfg.hmode == 0:
            a('s_cmp_ge_u32 s10, 32')
            a('s_cbranch_scc1 K1_done')
            a('s_mov_b32 s11, 0')
        else:
            a('s_and_b32 s11, s10, 1')
            a('s_lshl_b32 s11, s11, 5')
            a('s_lshr_b32 s10, s10, 1')
        a.emit('s_waitcnt lgkmcnt(0)')
        a('s_cmp_lt_u32 s10, 20')
        a('s_cselect_b32 s76, s%d, s%d' % (P_WG, P_WU))
        a('s_cselect_b32 s77, s%d, s%d' % (P_WG + 1, P_WU + 1))
        a('s_cselect_b32 s56, 8, 20')
        a('s_sub_u32 s56, s10, s56')
        a('s_lshl_b32 s56, s56, 7')
        a('s_and_b32 s57, s4, 1')
        a('s_mul_i32 s57, s57, 1536')
        a('s_add_u32 s0, s56, s57')
        a('s_mov_b32 s1, 196608')
        a('s_mov_b32 s57, 3072')
        a('s_mov_b32 s78, 0x%x' % SZ_W)
        a('s_cmp_lt_u32 s10, 8')
        a('s_cbranch_scc0 K1_hgo')
        a('s_mov_b32 s76, s%d' % P_Q)
        a('s_mov_b32 s77, s%d' % (P_Q + 1))
        a('s_mov_b32 s78, 0x%x' % SZ_X)
        a('s_lshl_b32 s0, s6, 9')
        a('s_lshl_b32 s1, s10, 6')
        a('s_add_u32 s0, s0, s1')
        a('s_mul_i32 s0, s0, 1280')
        a('s_mov_b32 s1, 128')
        a('s_mov_b32 s57, 1280')
        a.label('K1_hgo')
        a('s_mov_b32 s79, 0x00020000')
        a('v_add_u32 v12, s11, v1')
        a('v_mul_lo_u32 v12, v12, s57')
        if cfg.hmode == 1:
            a('v_cmp_gt_u32 vcc, 32, v1')
            a('v_mov_b32 v13, 0x%x' % OOB)
            a('v_cndmask_b32 v12, v13, v12, vcc')
        for st in range(NSTAGE):
            a('buffer_load_dword v14, v12, s[76:79], s0 offen')
            a('s_add_u32 s0, s0, s1')
        a.wait_all_vm()
        prof.stamp(4)
        prof.flush()
        a('s_endpgm')
    a.label('K1_done')
    a('s_endpgm')
    RED = 4 * CV
    kernel_header(a, 'k2_kernel')
    prof = Prof(a, cfg, 1)
    prologue(a, prof, 'K2_done')
    g2_ids(a)
    a('s_cmp_ge_u32 s3, 4')
    a('s_cbranch_scc1 K2_conv')
    g2_gemm(a, cfg, prof, RED)
    a.pad(); a.reset_queues()
    a.label('K2_conv')
    a('s_mul_i32 s13, s10, %d' % CV)
    a.emit('s_waitcnt lgkmcnt(0)')
    srd(a, 44, P_WS, SZ_Y2, WS_Y2)
    a('s_cmp_ge_u32 s5, %d' % (0 if cfg.noconv else 20))
    a('s_cbranch_scc1 K2_fetch')
    conv_body(a, cfg, prof)
    a.pad()
    a.label('K2_fetch')
    a.reset_queues()
    y2_fetch(a, cfg, prof, RED)
    prof.flush()
    a.label('K2_done')
    a('s_endpgm')
    lds2 = RED + 5 * 20480
    hdr = open('cdna_kernels/%s.s.ref' % NAME).read().split('; Override launch')[0]
    hdr += '; generated by dev/gen2.py (hand-written generator)\n'
    hdr += '; @launch kernel=k1_kernel grid=(256,1,1) block=(512,1,1) lds=%d\n' % LDS1
    if not cfg.only_k1:
        hdr += '; @launch kernel=k2_kernel grid=(256,1,1) block=(512,1,1) lds=%d\n' % lds2
    v1 = 256 if cfg.prof else 160
    v2 = 256 if cfg.prof else 240
    return hdr + a.text() + kernel_desc('k1_kernel', v1) + kernel_desc('k2_kernel', v2)

if __name__ == '__main__':
    cfg = Cfg()
    out = sys.argv[1]
    for kv in sys.argv[2:]:
        k, v = kv.split('=')
        assert hasattr(cfg, k), k
        setattr(cfg, k, int(v))
    open(out, 'w').write(gen_two(cfg))
```

```python
import sys
from asmlib import *
from gen2 import (NAME, WS_H, SZ_H, WS_WD, SZ_WD, WS_UT, SZ_UT, WS_Y2, SZ_Y2, WS_G, SZ_G, WS_PROF, SZ_X, SZ_W, OOB,
                  P_Q, P_K, P_V, P_SHK, P_SSMK, P_SSMD, P_BX, P_WG, P_WU, P_WD, P_GW, P_OUT, P_DBG, P_WS,
                  load_kernargs, srd, Prof, kernel_header, kernel_desc, unpack_lo, unpack_hi, P2, u32)

WS_F = 13508608
F_UT, F_H, F_WD, F_G, F_YC = 0, 2048, 14336, 15872, 17920
SZ_F = 19968
FAR = 0x40000000

class Cfg:
    prof = 0
    lstamp = 1
    spin = 200000
    g1prio = 1
    cprio = 2
    lprio = 2
    vprio = 1
    ysleep = 8
    hsleep = 2
    nb = 4
    pub_at = 20
    wdpf = 1
    pf0 = 10
    rot = 0
    pflate = 0

SLOT = 49152
OFF_GATE, OFF_UP = 16384, 32768
NSTAGE, NSLOT = 10, 3
CNT = NSLOT * SLOT
LDS = CNT + 64
CVA, CVSZ = SLOT, 9216
def wblk(i): return (2 * SLOT if i < 2 else 0) + (i & 1) * 5120
SF = 72
NONCE = 92
VZ, VN = 248, 250

_lbl = [0]
def newlabel(p):
    _lbl[0] += 1
    return '%s_%d' % (p, _lbl[0])

def wave_common(a):
    srd(a, SF, P_WS, SZ_F, WS_F)
    a('v_cmp_eq_u32 vcc, 0, v1')
    a('v_mov_b32 v%d, 0x%x' % (VZ, OOB))
    a('v_cndmask_b32 v%d, v%d, 0, vcc' % (VZ, VZ))

def flag_store(a, soff, voff=VZ):
    a('buffer_store_dword v%d, v%d, s[%d:%d], %s offen sc1' % (VN, voff, SF, SF + 3, soff))

def poll_issue(a, voff, soff, t):
    return a.emit('buffer_load_dword v%d, v%d, s[%d:%d], %s offen sc1' % (t, voff, SF, SF + 3, soff))

def poll_wait(a, cfg, tok, voff, soff, t, sleep=4):
    a.wait_vm(tok)
    lo, ok = newlabel('Lp'), newlabel('Lp_ok')
    a('s_mov_b32 s94, %d' % cfg.spin)
    a.label(lo)
    a('v_cmp_ne_u32 vcc, s%d, v%d' % (NONCE, t))
    a('s_nop 1')
    a('s_cbranch_vccz %s' % ok)
    a('s_sleep %d' % sleep)
    poll_issue(a, voff, soff, t)
    a.emit('s_waitcnt vmcnt(0)')
    a.vmq.pop()
    a('s_sub_u32 s94, s94, 1')
    a('s_cmp_lg_u32 s94, 0')
    a('s_cbranch_scc1 %s' % lo)
    a.label(ok)

def nonce_issue(a):
    srd(a, 68, P_DBG, 256)
    a('v_mov_b32 v249, 0')
    return a.emit('buffer_load_dword v%d, v249, s[68:71], 0 offen sc1' % VN)

def nonce_get(a, cfg, tok):
    a.wait_vm(tok)
    lo, ok = newlabel('Ln'), newlabel('Ln_ok')
    a('s_mov_b32 s94, %d' % cfg.spin)
    a.label(lo)
    a('v_readfirstlane_b32 s%d, v%d' % (NONCE, VN))
    a('s_cmp_lg_u32 s%d, 0' % NONCE)
    a('s_cbranch_scc1 %s' % ok)
    a('s_sleep 8')
    a('buffer_load_dword v%d, v249, s[68:71], 0 offen sc1' % VN)
    a.emit('s_waitcnt vmcnt(0)')
    a.vmq.pop()
    a('s_sub_u32 s94, s94, 1')
    a('s_cmp_lg_u32 s94, 0')
    a('s_cbranch_scc1 %s' % lo)
    a.label(ok)
    a('s_nop 1')

def lane_min(a, d, n, shift=2):
    a('v_min_u32 v%d, %d, v1' % (d, n - 1))
    a('v_lshlrev_b32 v%d, %d, v%d' % (d, shift, d))

def lds_spin(a, cfg, vaddr, vt, st, cmp, val, name, sleep=1):
    a('s_mov_b32 s94, %d' % cfg.spin)
    a.label(name)
    a('ds_read_b32 v%d, v%d' % (vt, vaddr))
    a.wait_all_lg()
    a('v_readfirstlane_b32 s%d, v%d' % (st, vt))
    a('s_cmp_%s_u32 s%d, %d' % (cmp, st, val))
    a('s_cbranch_scc1 %s_ok' % name)
    a('s_sleep %d' % sleep)
    a('s_sub_u32 s94, s94, 1')
    a('s_cmp_lg_u32 s94, 0')
    a('s_cbranch_scc1 %s' % name)
    a.label(name + '_ok')

def g2_scalars(a, st, dt):
    a('s_lshl_b32 s%d, s6, 3' % st)
    a('s_and_b32 s%d, s5, 7' % dt)
    a('s_add_u32 s%d, s%d, s%d' % (st, st, dt))
    a('s_and_b32 s%d, s4, 1' % dt)
    a('s_lshl_b32 s%d, s%d, 5' % (dt, dt))
    a('s_add_u32 s%d, s%d, s5' % (dt, dt))
    a('s_lshr_b32 s%d, s%d, 3' % (dt, dt))

def row_off(a, d, t, st, dt, sig):
    a('v_and_b32 v%d, 7, v1' % d)
    a('v_lshlrev_b32 v%d, 6, v%d' % (d, d))
    a('v_bfe_u32 v%d, v1, 3, 1' % t)
    a('v_add_u32 v%d, v%d, v%d' % (d, d, t))
    a('s_lshr_b32 s97, s%d, 3' % st)
    a('s_lshl_b32 s97, s97, 9')
    a('s_and_b32 s96, s%d, 7' % st)
    a('s_lshl_b32 s96, s96, 3')
    a('s_add_u32 s97, s97, s96')
    a('s_lshl_b32 s96, s%d, 1' % sig)
    a('s_add_u32 s97, s97, s96')
    a('v_add_u32 v%d, s97, v%d' % (d, d))
    a('v_mul_u32_u24 v%d, 1280, v%d' % (d, d))
    a('v_lshrrev_b32 v%d, 4, v1' % t)
    a('v_lshl_add_u32 v%d, v%d, 3, v%d' % (d, t, d))
    a('s_mul_i32 s96, s%d, 160' % dt)
    a('v_add_u32 v%d, s96, v%d' % (d, d))

def zero_counters(a, t0, t1):
    a('v_and_b32 v%d, 15, v1' % t0)
    a('v_lshlrev_b32 v%d, 2, v%d' % (t0, t0))
    a('v_add_u32 v%d, %d, v%d' % (t0, CNT, t0))
    a('v_mov_b32 v%d, 0' % t1)
    a('ds_write_b32 v%d, v%d' % (t0, t1))

def c2_setup(a):
    g2_scalars(a, 84, 85)
    a('s_mul_i32 s86, s85, 245760')
    a('s_mul_i32 s96, s3, 61440')
    a('s_add_u32 s86, s86, s96')
    a('s_mul_i32 s87, s84, 196608')
    a('s_mul_i32 s96, s3, 49152')
    a('s_add_u32 s87, s87, s96')
    a('s_mul_i32 s88, s3, 10240')
    a('s_mul_i32 s83, s84, 384')
    a('s_mul_i32 s96, s3, 96')
    a('s_add_u32 s83, s83, s96')
    a('s_add_u32 s83, s83, %d' % F_H)
    row_off(a, 244, 245, 84, 85, 3)
    a('v_lshlrev_b32 v240, 4, v1')
    a('v_add_u32 v241, 4096, v240')
    lane_min(a, 246, 24)
def c2_srds(a):
    srd(a, 44, P_WS, SZ_H, WS_H)
    srd(a, 48, P_WS, SZ_WD, WS_WD)
    srd(a, 56, P_OUT, SZ_X)

def l2_setup(a):
    g2_scalars(a, 84, 85)
    a('s_mul_i32 s82, s10, %d' % CVSZ)
    a('s_add_u32 s82, s82, %d' % CVA)
    a('s_add_u32 s83, s82, 4608')
    a('s_mul_i32 s88, s85, 48')
    a('s_mul_i32 s96, s10, 12')
    a('s_add_u32 s88, s88, s96')
    a('s_add_u32 s0, s88, 8')
    a('s_mul_i32 s0, s0, 5120')
    a('s_lshl_b32 s88, s88, 2')
    a('s_add_u32 s88, s88, %d' % F_WD)
    a('s_mul_i32 s1, s10, 10240')
    a('v_lshlrev_b32 v241, 4, v1')
    a('v_add_u32 v245, 4096, v241')
def l2_srds(a):
    srd(a, 48, P_WS, SZ_WD, WS_WD)
    srd(a, 52, P_WS, SZ_G, WS_G)
    srd(a, 56, P_WS, SZ_UT, WS_UT)
    srd(a, 64, P_WS, SZ_Y2, WS_Y2)
def wd_ok(a):
    a('s_lshl_b32 s96, s10, 2')
    a('s_add_u32 s96, s96, %d' % (CNT + 48))
    a('v_mov_b32 v236, s96')
    a('v_mov_b32 v237, 1')
    a('ds_write_b32 v236, v237')
def wdl_dma(a, tk):
    for i in range(2):
        a('s_add_u32 s96, s0, %d' % (5120 * i))
        a('s_add_u32 m0, s1, %d' % wblk(i))
        for dl in range(4):
            a('buffer_load_dwordx4 v241, s[48:51], s96 offen offset:%d sc1 lds' % (1024 * dl))
        a('s_add_u32 m0, s1, %d' % (wblk(i) + 4096))
        tk['wdl'] = a.emit('buffer_load_dwordx4 v245, s[48:51], s96 offen sc1 lds')
def wdl_publish(a, tk):
    a.wait_vm(tk['wdl'])
    a('s_lshl_b32 s96, s10, 2')
    a('s_add_u32 s96, s96, %d' % (CNT + 16))
    a('v_mov_b32 v236, s96')
    a('v_mov_b32 v237, 1')
    a('ds_write_b32 v236, v237')
QV, GV = 2, 22
def tail_loads(a, tk):
    row_off(a, 238, 239, 84, 85, 10)
    for dl in range(5):
        a('buffer_load_dwordx2 %s, v238, s[44:47], 0 offen offset:%d' % (vr(QV + 2 * dl, 2), dl * 32))
    a('s_lshl_b32 s87, s84, 6')
    a('s_add_u32 s87, s87, %d' % F_G)
    a('s_lshl_b32 s89, s85, 8')
    a('s_add_u32 s89, s89, %d' % F_YC)
    lane_min(a, 246, 16)
    a('v_lshlrev_b32 v247, 2, v1')
    tk['gf'] = poll_issue(a, 246, 's87', 238)
    tk['yf'] = poll_issue(a, 247, 's89', 239)
def tail_check(a, cfg, tk):
    poll_wait(a, cfg, tk['yf'], 247, 's89', 239)
    poll_wait(a, cfg, tk['gf'], 246, 's87', 238)
    a('s_lshl_b32 s96, s84, 6')
    a('s_lshl_b32 s97, s10, 4')
    a('s_add_u32 s96, s96, s97')
    a('v_and_b32 v237, 15, v1')
    a('v_add_u32 v237, s96, v237')
    a('v_lshlrev_b32 v237, 2, v237')
    a('buffer_load_dword v%d, v237, s[52:55], 0 offen sc1' % GV)

def c_wave(a, cfg, prof):
    a('s_and_b32 s10, s3, 1')
    a('s_lshr_b32 s11, s3, 1')
    a('v_and_b32 v2, 31, v1')
    a('v_lshrrev_b32 v3, 5, v1')
    a('v_lshrrev_b32 v13, 1, v2')
    a('v_and_b32 v13, 7, v13')
    a('v_xor_b32 v13, v13, v3')
    a('v_lshlrev_b32 v13, 4, v13')
    a('v_lshl_add_u32 v13, v2, 7, v13')
    a('s_lshl_b32 s12, s11, 13')
    a('v_add_u32 v4, s12, v13')
    a('v_xor_b32 v5, 32, v4')
    a('v_xor_b32 v6, 64, v4')
    a('v_xor_b32 v7, 96, v4')
    a('v_bfe_u32 v13, v1, 4, 1')
    a('v_bfe_u32 v14, v1, 2, 2')
    a('v_lshl_add_u32 v15, v3, 3, v14')
    a('v_lshlrev_b32 v15, 8, v15')
    a('v_lshl_add_u32 v15, v13, 14, v15')
    a('v_xor_b32 v13, s10, v13')
    a('v_lshl_add_u32 v15, v13, 7, v15')
    a('v_and_b32 v13, 3, v1')
    a('v_lshl_add_u32 v15, v13, 3, v15')
    a('v_add_u32 v15, %d, v15' % OFF_GATE)
    for tt in range(4):
        a('v_xor_b32 v13, %d, v14' % tt)
        a('v_lshl_add_u32 v%d, v13, 5, v15' % (8 + tt))
    a('v_lshrrev_b32 v13, 4, v2')
    a('v_lshlrev_b32 v12, 10, v13')
    a('v_lshl_add_u32 v12, v3, 8, v12')
    a('v_and_b32 v13, 15, v2')
    a('v_lshl_add_u32 v12, v13, 4, v12')
    a('s_lshl_b32 s12, s6, 2')
    a('s_add_u32 s12, s12, s7')
    a('s_lshl_b32 s12, s12, 1')
    a('s_add_u32 s12, s12, s11')
    a('s_lshl_b32 s13, s8, 3')
    a('s_lshl_b32 s14, s10, 2')
    a('s_add_u32 s13, s13, s14')
    a('s_mul_i32 s79, s12, 96')
    a('s_add_u32 s79, s79, s13')
    a('s_lshl_b32 s79, s79, 2')
    a('s_add_u32 s79, s79, %d' % F_H)
    a('s_mul_i32 s76, s12, 196608')
    a('s_lshl_b32 s13, s13, 11')
    a('s_add_u32 s76, s76, s13')
    a('s_add_u32 s77, s76, 4096')
    c2_setup(a)
    a('v_lshlrev_b32 v249, 2, v1')
    a('v_cmp_gt_u32 vcc, 4, v1')
    a('v_mov_b32 v13, 0x%x' % OOB)
    a('v_cndmask_b32 v249, v13, v249, vcc')
    zero_counters(a, 13, 14)
    a.emit('s_waitcnt lgkmcnt(0)'); a.lgq = []
    c2_srds(a)
    wave_common(a)
    ACC = 64
    FB = [16, 40]
    def acc(tt, b): return ACC + (tt * 2 + b) * 16
    def reads(buf, ks):
        f = FB[buf]
        def A(tt):
            return ['ds_read_b64_tr_b16 v[%d:%d], v%d offset:%d' % (f + 4 * tt + 2 * t, f + 4 * tt + 2 * t + 1, 8 + tt, ks * 4096 + t * 1024) for t in range(2)]
        def B(b):
            return ['ds_read_b128 v[%d:%d], v%d offset:%d' % (f + 16 + 4 * b, f + 19 + 4 * b, 4 + ks, b * 4096)]
        return A(0) + B(0) + B(1) + A(1) + A(2) + A(3)
    order = [(0, 0, 2), (0, 1, 3), (1, 0, 5), (1, 1, 5), (2, 0, 7), (2, 1, 7), (3, 0, 9), (3, 1, 9)]
    a('s_setprio %d' % cfg.g1prio)
    a('s_barrier')
    prof.stamp(1); prof.cyc(5)
    toks = [a.emit(r) for r in reads(0, 0)]
    cur = 0
    for st in range(NSTAGE):
        for ks in range(4):
            last = (st == NSTAGE - 1 and ks == 3)
            nxt = None if last else reads(1 - cur, (ks + 1) % 4)
            ntoks = []
            f = FB[cur]
            for mi, (tt, b, need_i) in enumerate(order):
                a.wait_lg(toks[need_i])
                c = '0' if (st == 0 and ks == 0) else vr(acc(tt, b), 16)
                a('v_mfma_f32_32x32x16_bf16 %s, %s, %s, %s' % (vr(acc(tt, b), 16), vr(f + 4 * tt, 4), vr(f + 16 + 4 * b, 4), c))
                if nxt is not None:
                    if ks == 3:
                        if mi == 1:
                            a.wait_all_lg()
                            d = SLOT if (st + 1) % NSLOT else -(NSLOT - 1) * SLOT
                            for r in range(4, 12):
                                a('v_add_u32 v%d, 0x%x, v%d' % (r, u32(d), r))
                            a('s_barrier')
                            if st == NSTAGE - 2: a('s_setprio %d' % cfg.cprio)
                        sched = {2: 3, 3: 2, 4: 2, 5: 2, 6: 1}
                    else:
                        sched = {0: 2, 1: 2, 2: 2, 3: 2, 4: 2}
                    for _ in range(sched.get(mi, 0)):
                        ntoks.append(a.emit(nxt[len(ntoks)]))
                if (st, ks, mi) == (9, 1, 7):
                    a('v_mov_b32 v13, %d' % (CNT + 32))
                    a('ds_read_b32 v%d, v13' % VN)
            toks = ntoks
            cur = 1 - cur
    prof.stamp(2); prof.cyc(6)
    for tt in range(4):
        for b in range(2):
            x = acc(tt, b)
            o = 16 + ((tt * 2 + b) % 2) * 4
            for p in range(8):
                a('v_mul_f32 v%d, v%d, v%d' % (x + p, x + p, x + 8 + p))
            for p in range(4):
                a('v_cvt_pk_bf16_f32 v%d, v%d, v%d' % (o + p, x + 2 * p, x + 2 * p + 1))
            a('buffer_store_dwordx4 %s, v12, s[44:47], s%d offen offset:%d sc1' % (vr(o, 4), 76 + (tt >> 1), b * 2048 + (tt & 1) * 512))
    prof.stamp(3)
    a('v_readfirstlane_b32 s%d, v%d' % (NONCE, VN))
    a.wait_all_vm()
    flag_store(a, 's79', 249)
    a('s_setprio 0')
    prof.stamp(7)
    a.pad(); a.reset_queues()
    a.label('LC2')
    NA, NB = 4, cfg.nb
    BB, ACC2, AB = 8, 72, 160
    gtok = {}
    def acc2(dl, sg): return ACC2 + (sg * 5 + dl) * 4
    def issueA(k):
        b = AB + (k % NA) * 20
        if k >= 8:
            if k == 8:
                a('s_lshl_b32 s82, s3, 2')
                a('s_add_u32 s82, s82, %d' % (CNT + 16))
                a('v_mov_b32 v5, s82')
                lds_spin(a, cfg, 5, 6, 82, 'eq', 1, 'Lwf')
            base, off = ('v7', wblk(k - 8) - 2 * SLOT) if k < 10 else ('v4', wblk(k - 8))
            for dl in range(5):
                gtok[(k, 'a')] = a.emit('ds_read_b128 %s, %s offset:%d' % (vr(b + 4 * dl, 4), base, off + dl * 1024))
            return
        a('s_add_u32 s14, s86, %d' % (5120 * k))
        for dl in range(4):
            a('buffer_load_dwordx4 %s, v240, s[48:51], s14 offen offset:%d sc1' % (vr(b + 4 * dl, 4), 1024 * dl))
        gtok[(k, 'a')] = a.emit('buffer_load_dwordx4 %s, v241, s[48:51], s14 offen sc1' % vr(b + 16, 4))
    def issueB(k):
        b = BB + (k % NB) * 16
        a('s_add_u32 s15, s87, %d' % (4096 * k))
        for sg in range(4):
            gtok[(k, sg)] = a.emit('buffer_load_dwordx4 %s, v240, s[44:47], s15 offen offset:%d sc1' % (vr(b + 4 * sg, 4), 1024 * sg))
    a('v_add_u32 v4, s88, v240')
    a('v_add_u32 v7, %d, v4' % (2 * SLOT))
    a('v_mov_b32 v5, %d' % CNT)
    a('v_mov_b32 v6, 1')
    a('v_cmp_eq_u32 vcc, 0, v1')
    a('s_and_saveexec_b64 s[90:91], vcc')
    a('ds_add_u32 v5, v6')
    a('s_mov_b64 exec, s[90:91]')
    lds_spin(a, cfg, 5, 6, 82, 'ge', 4, 'Lcsync')
    t_early = poll_issue(a, 246, 's83', 247)
    a('s_lshl_b32 s82, s3, 2')
    a('s_add_u32 s82, s82, %d' % (CNT + 48))
    a('v_mov_b32 v5, s82')
    lds_spin(a, cfg, 5, 6, 82, 'eq', 1, 'Lwok')
    for k in range(NA): issueA(k)
    for i in (2, 3):
        a('s_add_u32 s14, s86, %d' % (5120 * (8 + i)))
        a('s_add_u32 m0, s88, %d' % wblk(i))
        for dl in range(4):
            a('buffer_load_dwordx4 v240, s[48:51], s14 offen offset:%d sc1 lds' % (1024 * dl))
        a('s_add_u32 m0, s88, %d' % (wblk(i) + 4096))
        a('buffer_load_dwordx4 v241, s[48:51], s14 offen sc1 lds')
    poll_wait(a, cfg, t_early, 246, 's83', 247, sleep=cfg.hsleep)
    prof.stamp(8)
    for k in range(NB): issueB(k)
    for k in range(12):
        ab_, bb_ = AB + (k % NA) * 20, BB + (k % NB) * 16
        if k >= 8: a.wait_lg(gtok[(k, 'a')])
        else: a.wait_vm(gtok[(k, 'a')])
        for sg in range(4):
            a.wait_vm(gtok[(k, sg)])
            if sg == 0: prof.stamp(10 + k)
            for dl in range(5):
                c = '0' if k == 0 else vr(acc2(dl, sg), 4)
                a('v_mfma_f32_16x16x32_bf16 %s, %s, %s, %s' % (vr(acc2(dl, sg), 4), vr(ab_ + 4 * dl, 4), vr(bb_ + 4 * sg, 4), c))
        if k + NB < 12: issueB(k + NB)
        if k + NA < 12: issueA(k + NA)
    prof.stamp(9)
    def blk(w, sg): return w * 10240 + wblk(sg if sg < w else sg - 1)
    a('v_add_u32 v7, %d, v240' % (2 * SLOT))
    a('s_nop 7')
    for w in range(3):
        a('s_cmp_eq_u32 s3, %d' % (w + 1))
        a('s_cbranch_scc1 Lfin%d' % (w + 1))
    hist0 = list(a.hist)
    def ab(off): return ('v240', off) if off < SLOT else ('v7', off - 2 * SLOT)
    for w in range(4):
        a.hist = list(hist0); a.vmq = []; a.lgq = []
        a.label('Lfin%d' % w)
        for sg in range(4):
            if sg == w: continue
            for dl in range(5):
                r, o = ab(blk(w, sg) + dl * 1024)
                a('ds_write_b128 %s, %s offset:%d' % (r, vr(acc2(dl, sg), 4), o))
        a('v_add_u32 v8, %d, v240' % (CVA + w * CVSZ + 3584))
        a('v_lshlrev_b32 v9, 2, v1')
        a('v_add_u32 v9, %d, v9' % (CVA + w * CVSZ + 3072))
        a.wait_all_lg()
        a('s_barrier')
        prof.stamp(30)
        tl = {}
        tl['omg'] = a.emit('ds_read_b32 v6, v9')
        srcs = [x for x in range(4) if x != w]
        for dl in range(5):
            for si, x in enumerate(srcs):
                r, o = ab(blk(x, w) + dl * 1024)
                tl[(dl, si)] = a.emit('ds_read_b128 %s, %s offset:%d' % (vr(160 + (dl * 4 + si) * 4, 4), r, o))
            tl[(dl, 3)] = a.emit('ds_read_b128 %s, v8 offset:%d' % (vr(160 + (dl * 4 + 3) * 4, 4), dl * 1024))
        for dl in range(5):
            x = acc2(dl, w)
            for si in range(3):
                a.wait_lg(tl[(dl, si)])
                r = 160 + (dl * 4 + si) * 4
                a('v_pk_add_f32 %s, %s, %s' % (P2(x), P2(x), P2(r)))
                a('v_pk_add_f32 %s, %s, %s' % (P2(x + 2), P2(x + 2), P2(r + 2)))
            ga = 160 + (dl * 4 + 3) * 4
            t = 12 + (dl & 1) * 4
            a.wait_lg(tl[(dl, 3)])
            for i in range(4): a('v_fma_f32 v%d, v6, v%d, v%d' % (x + i, x + i, ga + i))
            a('v_cvt_pk_bf16_f32 v%d, v%d, v%d' % (t, x, x + 1))
            a('v_cvt_pk_bf16_f32 v%d, v%d, v%d' % (t + 1, x + 2, x + 3))
            a('buffer_store_dwordx2 %s, v244, s[56:59], 0 offen offset:%d' % (vr(t, 2), dl * 32))
        prof.stamp(4)
        prof.flush(243)
        a('s_endpgm')

VQ, VU, VP = 23, 242, 14
QC, ACCB, PR, NP_ = 24, [120, 152], 184, 5
CAR, UR, TM, YO = 204, 208, 216, 220

def l_wave(a, cfg, prof):
    a('s_setprio %d' % cfg.lprio)
    a('s_and_b32 s10, s3, 3')
    a('v_lshrrev_b32 v14, 3, v1')
    a('v_and_b32 v15, 7, v1')
    a('v_lshrrev_b32 v16, 1, v14')
    a('v_xor_b32 v15, v15, v16')
    a('v_lshlrev_b32 v15, 4, v15')
    a('s_mov_b32 s12, 81920')
    a('v_mul_lo_u32 v14, v14, s12')
    a('v_add_u32 v2, v14, v15')
    a('v_xor_b32 v15, 64, v15')
    a('v_add_u32 v3, v14, v15')
    a('v_add_u32 v3, 256, v3')
    a('v_add_u32 v4, 512, v2')
    a('v_add_u32 v5, 512, v3')
    a('v_lshrrev_b32 v14, 4, v1')
    a('v_and_b32 v15, 15, v1')
    a('v_lshlrev_b32 v16, 1, v14')
    a('v_xor_b32 v15, v15, v16')
    a('v_mul_u32_u24 v14, 3072, v14')
    a('v_lshl_add_u32 v6, v15, 4, v14')
    for i in range(1, 4): a('v_add_u32 v%d, %d, v6' % (6 + i, 11264 * i))
    for i in range(4): a('v_xor_b32 v%d, 0x80, v%d' % (10 + i, 6 + i))
    a('s_lshl_b32 s12, s6, 9')
    a('s_lshl_b32 s13, s7, 4')
    a('s_add_u32 s12, s12, s13')
    a('s_lshl_b32 s13, s10, 2')
    a('s_add_u32 s12, s12, s13')
    a('s_mul_i32 s12, s12, 1280')
    a('s_mul_i32 s13, s10, 49152')
    a('s_lshl_b32 s14, s8, 8')
    a('s_add_u32 s13, s13, s14')
    a('s_lshl_b32 s14, s10, 12')
    if cfg.rot:
        a('s_mul_i32 s15, s7, 15')
        a('s_mul_i32 s96, s9, 10')
        a('s_add_u32 s15, s15, s96')
        a('s_mul_i32 s15, s15, 10923')
        a('s_lshr_b32 s15, s15, 16')
        a('s_cmp_ge_u32 s15, 10')
        a('s_cselect_b32 s96, 10, 0')
        a('s_sub_u32 s15, s15, s96')
        a('s_lshl_b32 s96, s15, 7')
        a('s_add_u32 s12, s12, s96')
        a('s_mul_i32 s96, s15, 196608')
        a('s_add_u32 s13, s13, s96')
    a.emit('s_waitcnt lgkmcnt(0)')
    prof.stamp(3)
    srd(a, 44, P_Q, SZ_X)
    srd(a, 48, P_WG, SZ_W)
    srd(a, 52, P_WU, SZ_W)
    stage_tok = {}
    def issue_stage(st):
        base = (st % NSLOT) * SLOT
        for (off, r0, sd, so) in ((0, 2, 44, 12), (OFF_GATE, 6, 48, 13), (OFF_UP, 10, 52, 13)):
            a('s_add_u32 m0, s14, %d' % (base + off))
            for i in range(4):
                t = a.emit('buffer_load_dwordx4 v%d, s[%d:%d], s%d offen offset:%d lds' % (r0 + i, sd, sd + 3, so, 1024 * i))
        stage_tok[st] = t
        if cfg.rot:
            a('s_add_u32 s15, s15, 1')
            a('s_cmp_eq_u32 s15, 10')
            a('s_cselect_b32 s96, 1280, 0')
            a('s_cselect_b32 s97, 1966080, 0')
            a('s_sub_u32 s12, s12, s96')
            a('s_sub_u32 s13, s13, s97')
        a('s_add_u32 s12, s12, 128')
        a('s_add_u32 s13, s13, 196608')
    issue_stage(0)
    issue_stage(1)
    wave_common(a)
    l2_setup(a)
    a('s_min_u32 s11, s5, 19')
    a('s_lshl_b32 s11, s11, 2')
    a('s_add_u32 s11, s11, s10')
    a('s_mul_i32 s96, s11, 6554')
    a('s_lshr_b32 s96, s96, 16')
    a('s_lshl_b32 s96, s96, 5')
    a('s_lshl_b32 s97, s4, 8')
    a('s_add_u32 s78, s96, s97')
    a('s_add_u32 s78, s78, %d' % (F_YC - 176))
    a('s_mul_i32 s96, s4, 80')
    a('s_add_u32 s11, s11, s96')
    a('s_mul_i32 s96, s11, 1639')
    a('s_lshr_b32 s96, s96, 16')
    a('s_lshl_b32 s76, s96, 7')
    a('s_sub_u32 s77, s88, 128')
    a('s_lshl_b32 s81, s11, 12')
    a('s_and_b32 s86, s11, 0xfffffffe')
    a('s_lshl_b32 s86, s86, 1')
    a('s_load_dword s86, s[26:27], s86')
    a('v_min_u32 v240, 51, v1')
    a('v_lshlrev_b32 v240, 2, v240')
    a('v_mov_b32 v14, s76')
    a('v_mov_b32 v15, s77')
    a('v_mov_b32 v16, s78')
    a('v_cmp_gt_u32 vcc, 44, v1')
    a('v_cndmask_b32 v15, v16, v15, vcc')
    a('v_cmp_gt_u32 vcc, 32, v1')
    a('v_cndmask_b32 v15, v15, v14, vcc')
    a('v_add_u32 v240, v240, v15')
    a.emit('s_waitcnt lgkmcnt(0)')
    conv_setup(a, cfg)
    tk = {}
    def interval(i, pre=(), post=()):
        a.wait_vm(stage_tok[i])
        if a.lgq: a.wait_all_lg()
        if cfg.lstamp: prof.stamp(10 + i)
        a('s_barrier')
        if cfg.lstamp: prof.stamp(20 + i)
        for f in pre: f()
        if i + NSLOT - 1 < NSTAGE: issue_stage(i + NSLOT - 1)
        for f in post: f()
    for i in range(7): interval(i)
    def late7():
        tk['n'] = nonce_issue(a)
        l2_srds(a)
        srd(a, 60, P_SSMK, SZ_X)
        a('v_bfe_u32 v9, v1, 4, 1')
        a('v_lshlrev_b32 v9, 1, v9')
        a('v_xor_b32 v9, v9, v1')
        a('v_lshlrev_b32 v9, 4, v9')
    interval(7, post=[late7])
    def late8():
        a('s_add_u32 m0, s82, 512')
        for i in range(4):
            a('buffer_load_dwordx4 v9, s[60:63], s81 offen offset:%d lds' % (1024 * i))
        tk['f'] = poll_issue(a, 240, '0', 243)
        nonce_get(a, cfg, tk['n'])
        a('v_mov_b32 v10, %d' % (CNT + 32))
        a('ds_write_b32 v10, v%d' % VN)
        for i in range(4): a('v_mov_b32 v%d, 0' % (32 + i))
        a('v_and_b32 v10, 31, v1')
        a('v_lshlrev_b32 v10, 4, v10')
        a('v_add_u32 v10, s82, v10')
        a('ds_write_b128 v10, v[32:35]')
        a('v_and_b32 v10, 3, v1')
        a('v_lshlrev_b32 v10, 4, v10')
        a('v_add_u32 v10, s83, v10')
        a('ds_write_b128 v10, v[32:35]')
    interval(8, post=[late8])
    interval(9)
    poll_wait(a, cfg, tk['f'], 240, '0', 243)
    a('s_add_u32 m0, s83, 64')
    for i in range(4):
        tk['q'] = a.emit('buffer_load_dwordx4 v241, s[56:59], s81 offen offset:%d sc1 lds' % (1024 * i))
    wd_ok(a)
    wdl_dma(a, tk)
    tail_loads(a, tk)
    a('s_cmp_ge_u32 s5, 20')
    a('s_cbranch_scc1 Lnoconv')
    sv = (list(a.vmq), list(a.hist))
    a('s_setprio %d' % cfg.vprio)
    a.wait_vm(tk['q'])
    gen = conv_main(a, cfg, prof)
    for _ in range(cfg.pub_at): next(gen)
    wdl_publish(a, tk)
    tail_check(a, cfg, tk)
    for _ in gen: pass
    a('s_setprio 0')
    a('s_branch Lfetch')
    a.vmq, a.hist = sv; a.lgq = []
    a.label('Lnoconv')
    a('s_setprio 0')
    a.label('LL2')
    wdl_publish(a, tk)
    tail_check(a, cfg, tk)
    a.pad()
    a.label('Lfetch')
    a.reset_queues()
    a('s_mul_i32 s11, s85, 327680')
    a('s_lshr_b32 s12, s84, 3')
    a('s_lshl_b32 s12, s12, 10')
    a('s_add_u32 s11, s11, s12')
    a('s_and_b32 s12, s84, 7')
    a('s_lshl_b32 s12, s12, 7')
    a('s_add_u32 s11, s11, s12')
    a('s_lshl_b32 s12, s10, 5')
    a('s_add_u32 s11, s11, s12')
    a('v_lshrrev_b32 v24, 1, v1')
    a('v_lshlrev_b32 v24, 12, v24')
    a('v_and_b32 v25, 1, v1')
    a('v_lshl_add_u32 v24, v25, 4, v24')
    a('v_add_u32 v25, 0x20000, v24')
    a('v_add_u32 v26, 0x40000, v24')
    a('v_cmp_gt_u32 vcc, 32, v1')
    a('v_mov_b32 v27, 0x%x' % OOB)
    a('v_cndmask_b32 v26, v27, v26, vcc')
    a('v_lshlrev_b32 v28, 2, v1')
    a('s_add_u32 s12, s82, 3072')
    a('v_add_u32 v28, s12, v28')
    a('v_add_u32 v29, s82, v241')
    a('v_lshlrev_b32 v30, 3, v1')
    a('v_add_u32 v30, s82, v30')
    a('v_add_u32 v31, 3584, v29')
    prof.stamp(6)
    YV = 40
    lo, ok = newlabel('Ly'), newlabel('Ly_ok')
    a('s_mov_b32 s94, %d' % cfg.spin)
    a.label(lo)
    for i in range(3):
        a('buffer_load_dwordx4 %s, v%d, s[64:67], s11 offen sc1' % (vr(YV + 4 * i, 4), 24 + i))
    a.wait_all_vm()
    a('v_max3_u32 v27, v%d, v%d, v%d' % (YV, YV + 1, YV + 2))
    for i in range(3, 11, 2):
        a('v_max3_u32 v27, v27, v%d, v%d' % (YV + i, YV + i + 1))
    a('v_max_u32 v27, v27, v%d' % (YV + 11))
    a('v_cmp_eq_u32 vcc, -1, v27')
    a('s_nop 1')
    a('s_cbranch_vccz %s' % ok)
    a('s_sleep %d' % cfg.ysleep)
    a('s_sub_u32 s94, s94, 1')
    a('s_cmp_lg_u32 s94, 0')
    a('s_cbranch_scc1 %s' % lo)
    a.label(ok)
    prof.stamp(7)
    a('ds_write_b128 v29, %s' % vr(YV, 4))
    a('ds_write_b128 v29, %s offset:1024' % vr(YV + 4, 4))
    a('ds_write_b128 v29, %s offset:2048' % vr(YV + 8, 4))
    a('v_sub_f32 v32, 1.0, v%d' % GV)
    a('v_cvt_pk_bf16_f32 v32, v32, v32')
    a('v_and_b32 v32, 0xffff0000, v32')
    a('ds_write_b32 v28, v32')
    for dl in range(5):
        x = 72 + 4 * dl
        unpack_lo(a, x, QV + 2 * dl); unpack_hi(a, x + 1, QV + 2 * dl); unpack_lo(a, x + 2, QV + 2 * dl + 1); unpack_hi(a, x + 3, QV + 2 * dl + 1)
        for i in range(4): a('v_mul_f32 v%d, v%d, v%d' % (x + i, GV, x + i))
    a.wait_all_lg()
    tl = [a.emit('ds_read_b64_tr_b16 %s, v30 offset:%d' % (vr(56 + 2 * dl, 2), dl * 512)) for dl in range(5)]
    for dl in range(5):
        a.wait_lg(tl[dl])
        x = 72 + 4 * dl; y = 96
        unpack_lo(a, y, 56 + 2 * dl); unpack_hi(a, y + 1, 56 + 2 * dl); unpack_lo(a, y + 2, 57 + 2 * dl); unpack_hi(a, y + 3, 57 + 2 * dl)
        for i in range(4): a('v_mul_f32 v%d, v%d, v%d' % (x + i, x + i, y + i))
        a('ds_write_b128 v31, %s offset:%d' % (vr(x, 4), dl * 1024))
    a.wait_all_lg()
    a('s_barrier')
    prof.stamp(8)
    prof.flush(243)
    return tk

def conv_setup(a, cfg):
    G1, R, C, G, T0, T1, T2 = 26, 27, 28, 29, 30, 31, 36
    a('v_bfe_u32 v%d, v1, 4, 1' % G1)
    a('v_bfe_u32 v%d, v1, 2, 2' % R)
    a('v_and_b32 v%d, 3, v1' % C)
    a('v_lshrrev_b32 v%d, 5, v1' % G)
    a('v_add_u32 v%d, v%d, v%d' % (T0, C, R))
    a('v_lshlrev_b32 v%d, 3, v%d' % (T0, T0))
    a('v_lshl_add_u32 v%d, v%d, 5, v%d' % (T0, G1, T0))
    a('v_lshl_add_u32 v%d, v%d, 6, v%d' % (T0, G, T0))
    a('s_add_u32 s96, s83, 8')
    a('v_add_u32 v%d, s96, v%d' % (VQ, T0))
    a('s_add_u32 s96, s83, 64')
    a('v_lshlrev_b32 v%d, 1, v1' % T0)
    a('v_add_u32 v%d, s96, v%d' % (VU, T0))
    a('v_lshlrev_b32 v%d, 7, v%d' % (T0, G1))
    a('v_lshl_add_u32 v%d, v%d, 5, v%d' % (T0, C, T0))
    a('v_lshlrev_b32 v%d, 5, v%d' % (T1, G))
    a('v_sub_u32 v%d, v%d, v%d' % (T0, T0, T1))
    a('v_lshlrev_b32 v%d, 2, v%d' % (T1, R))
    a('v_sub_u32 v%d, v%d, v%d' % (T0, T0, T1))
    for j in range(4):
        for t in range(2):
            d = VP + 2 * j + t
            a('v_add_u32 v%d, %d, v%d' % (T1, 256 - 64 * j + 28 - 16 * t, T0))
            a('v_bfe_u32 v%d, v%d, 7, 1' % (T2, T1))
            a('v_lshlrev_b32 v%d, 4, v%d' % (T2, T2))
            a('v_xor_b32 v%d, v%d, v%d' % (T1, T1, T2))
            a('v_lshlrev_b32 v%d, 1, v%d' % (T1, T1))
            a('v_add_u32 v%d, s82, v%d' % (d, T1))
    for i in range(3): a('v_mov_b32 v%d, 0' % (CAR + i))
    for i in range(8): a('v_mov_b32 v%d, 0' % (UR + i))
    a('s_mov_b32 s90, 0')
    a('s_mov_b32 s91, 0x80000000')
    a('s_and_b32 s96, s11, 1')
    a('s_lshl_b32 s96, s96, 4')
    a('s_lshr_b32 s86, s86, s96')
    a('s_lshl_b32 s86, s86, 16')

def conv_main(a, cfg, prof):
    prof.stamp(1)
    steps = [(p, lam) for p in range(4) for lam in range(8 * p + 4, -4, -1)]
    def qreg(kap): return QC + 4 * kap if kap < 24 else ACCB[0] + 4 * (kap - 24)
    def p_reads(idx):
        p, lam = steps[idx]
        j = (-lam) % 4; b = (lam + j) // 4
        r = PR + (idx % NP_) * 4
        return ['ds_read_b64_tr_b16 v[%d:%d], v%d offset:%d' % (r + 2 * t, r + 2 * t + 1, VP + 2 * j + t, 512 * b) for t in range(2)]
    def q_reads(kap):
        r = qreg(kap)
        return ['ds_read_b64_tr_b16 v[%d:%d], v%d offset:%d' % (r + 2 * t, r + 2 * t + 1, VQ, 128 * kap + 32 * t) for t in range(2)]
    ROR = 'wave_ror:1 row_mask:0xf bank_mask:0xf'
    def epi_ops(p):
        ops = []
        for g8 in range(8):
            ops.append(('ds', 'ds_read_u16_d16_hi v%d, v%d offset:%d' % (UR + g8, VU, 128 * (8 * p + g8)), g8))
        for hi in range(2):
            A = ACCB[p % 2] + 16 * hi
            def prev(qq, rho):
                if qq: return A + 4 * (qq - 1) + rho
                return CAR + (3 - rho) if hi == 0 else A - 4 + rho
            for rho in (3, 2, 1):
                for qq in range(4):
                    ops.append('v_cndmask_b32 v%d, v%d, v%d, s[90:91]' % (TM + qq, A + 4 * qq + rho, prev(qq, rho)))
                if hi == 1: ops.append('v_mov_b32 v%d, v%d' % (CAR + (3 - rho), A + 12 + rho))
                for qq in range(4):
                    dst = A + 4 * qq + rho - 1
                    ops.append('v_add_f32_dpp v%d, v%d, v%d %s' % (dst, TM + qq, dst, ROR))
        for pr in range(4):
            A = ACCB[p % 2]
            y0, y1 = A + 8 * pr, A + 8 * pr + 4
            o = YO + 4 * p + pr
            ops.append(('waitu', 2 * pr + 1))
            ops.append('v_fma_f32 v%d, s86, v%d, v%d' % (y0, UR + 2 * pr, y0))
            ops.append('v_fma_f32 v%d, s86, v%d, v%d' % (y1, UR + 2 * pr + 1, y1))
            ops.append('v_cvt_pk_bf16_f32 v%d, v%d, v%d' % (o, y0, y1))
            ops.append('v_min_u32 v%d, -2, v%d' % (o, o))
        return ops
    def ystore(i): a('buffer_store_dwordx4 %s, v241, s[64:67], s81 offen offset:%d sc1' % (vr(YO + 4 * i, 4), 1024 * i))
    utok = {}
    def run_epi(ops, n):
        k = 0
        while ops and k < n:
            o = ops.pop(0)
            if isinstance(o, tuple):
                if o[0] == 'ds': utok[o[2]] = a.emit(o[1]); k += 1
                else: a.wait_lg(utok[o[1]])
            else:
                a.emit(o); k += 1
    AHEAD = 3
    ptok = {}; qtok = {}
    pend = []
    def fetch(idx):
        p, lam = steps[idx]
        kap = 8 * p + 4 - lam
        if kap not in qtok:
            if kap == 24: run_epi(pend, 10 ** 6)
            qtok[kap] = [a.emit(r) for r in q_reads(kap)][-1]
        ptok[idx] = [a.emit(r) for r in p_reads(idx)][-1]
    for i in range(AHEAD): fetch(i)
    since = 0
    for idx, (p, lam) in enumerate(steps):
        khi, klo = 8 * p + 4 - lam, 8 * p - lam
        a.wait_lg(max(ptok[idx], qtok[khi]))
        if khi == 0 and p >= 2: run_epi(pend, 10 ** 6)
        A = ACCB[p % 2]
        P_ = vr(PR + (idx % NP_) * 4, 4)
        a('v_mfma_f32_32x32x16_bf16 %s, %s, %s, %s' % (vr(A + 16, 16), P_, vr(qreg(khi), 4), '0' if khi == 0 else vr(A + 16, 16)))
        if idx + AHEAD < len(steps): fetch(idx + AHEAD)
        if khi == 0 and p >= 1:
            pend[:] = epi_ops(p - 1); since = 0
        since += 1
        if since >= 3: run_epi(pend, 3)
        if klo >= 0:
            a('v_mfma_f32_32x32x16_bf16 %s, %s, %s, %s' % (vr(A, 16), P_, vr(qreg(klo), 4), '0' if klo == 0 else vr(A, 16)))
            if since >= 3: run_epi(pend, 4)
        yield
    run_epi(pend, 10 ** 6)
    for i in range(3): ystore(i)
    run_epi(epi_ops(3), 10 ** 6)
    ystore(3)
    prof.stamp(2)

HT = 0
HS = 40960
def helper(a, cfg, prof, ltk):
    a('s_sub_u32 s9, s5, 24')
    a('s_lshl_b32 s10, s9, 3')
    a('s_add_u32 s10, s10, s3')
    a('s_and_b32 s11, s10, 1')
    a('s_lshl_b32 s11, s11, 5')
    a('s_lshr_b32 s12, s10, 1')
    a('s_cmp_lt_u32 s12, 20')
    a('s_cselect_b32 s13, 8, 20')
    a('s_sub_u32 s13, s12, s13')
    a('s_lshl_b32 s13, s13, 7')
    a('s_and_b32 s14, s4, 1')
    a('s_mul_i32 s14, s14, 1536')
    a('s_add_u32 s13, s13, s14')
    a('s_lshl_b32 s14, s6, 9')
    a('s_lshl_b32 s15, s12, 6')
    a('s_add_u32 s14, s14, s15')
    a('s_mul_i32 s14, s14, 1280')
    a('s_cmp_lt_u32 s12, 8')
    a('s_cselect_b32 s13, s14, s13')
    a('s_cselect_b32 s14, 128, 0')
    a('s_cselect_b32 s15, 0, 196608')
    a('s_or_b32 s14, s14, s15')
    a('s_cmp_lt_u32 s12, 8')
    a('s_cselect_b32 s15, 1280, 0')
    a('s_cselect_b32 s76, 0, 3072')
    a('s_or_b32 s15, s15, s76')
    a('v_add_u32 v2, s11, v1')
    a('v_mul_lo_u32 v2, v2, s15')
    a('v_cmp_gt_u32 vcc, 32, v1')
    a('v_mov_b32 v3, 0x%x' % OOB)
    a('v_cndmask_b32 v2, v3, v2, vcc')
    a.emit('s_waitcnt lgkmcnt(0)')
    a('s_cmp_lt_u32 s12, 20')
    a('s_cselect_b32 s44, s%d, s%d' % (P_WG, P_WU))
    a('s_cselect_b32 s45, s%d, s%d' % (P_WG + 1, P_WU + 1))
    a('s_cmp_lt_u32 s12, 8')
    a('s_cselect_b32 s44, s%d, s44' % P_Q)
    a('s_cselect_b32 s45, s%d, s45' % (P_Q + 1))
    a('s_cselect_b32 s46, 0x%x, 0' % SZ_X)
    a('s_cselect_b32 s47, 0, 0x%x' % SZ_W)
    a('s_or_b32 s46, s46, s47')
    a('s_mov_b32 s47, 0x00020000')
    for i in range(4): a('s_mov_b32 s%d, s%d' % (28 + i, 44 + i)) if i < 3 else a('s_mov_b32 s31, 0x00020000')
    def xw_prefetch():
        for st in range(NSTAGE):
            if st >= cfg.pf0: a('buffer_load_dword v252, v2, s[28:31], s13 offen')
            a('s_add_u32 s13, s13, s14')
    if not cfg.pflate: xw_prefetch()
    wave_common(a)
    a('s_lshl_b32 s76, s4, 6')
    a('s_add_u32 s76, s76, s10')
    a('s_cmp_lg_u32 s76, 0')
    a('s_cbranch_scc1 Lno_nonce')
    a('s_memrealtime s[76:77]')
    srd(a, 68, P_DBG, 256)
    a.emit('s_waitcnt lgkmcnt(0)')
    a('s_or_b32 s76, s76, 1')
    a('v_mov_b32 v20, s76')
    a('buffer_store_dword v20, v%d, s[68:71], 0 offen sc1' % VZ)
    a.vmq.pop()
    a.label('Lno_nonce')
    zero_counters(a, 5, 6)
    srd(a, 44, P_Q, SZ_X)
    srd(a, 48, P_K, SZ_X); srd(a, 52, P_V, SZ_X); srd(a, 56, P_SHK, 5120); srd(a, 60, P_WD, SZ_W); srd(a, 64, P_GW, 1280)
    KR, VR_, WR, U = 32, 60, 76, 92
    def kv_addr(su):
        a('s_and_b32 s76, s%d, 1' % su)
        a('s_lshr_b32 s77, s%d, 1' % su)
        a('s_lshl_b32 s78, s4, 8')
        a('s_lshr_b32 s79, s9, 1')
        a('s_lshl_b32 s79, s79, 6')
        a('s_add_u32 s78, s78, s79')
        a('s_lshl_b32 s79, s76, 5')
        a('s_add_u32 s78, s78, s79')
        a('s_and_b32 s79, s9, 1')
        a('s_mul_i32 s79, s79, 5')
        a('s_add_u32 s79, s79, s77')
        a('v_lshrrev_b32 v9, 3, v1')
        a('v_and_b32 v10, 7, v1')
        a('s_lshl_b32 s76, s76, 3')
        a('v_add_u32 v18, s76, v9')
        a('v_lshlrev_b32 v11, 1, v10')
        a('v_xor_b32 v18, v18, v11')
        a('v_lshlrev_b32 v18, 3, v18')
        a('v_lshl_add_u32 v18, v10, 10, v18')
        a('s_lshl_b32 s77, s77, 13')
        a('v_add_u32 v18, s77, v18')
        a('v_lshlrev_b32 v9, 2, v9')
        a('v_add_u32 v9, s78, v9')
        a('v_mul_u32_u24 v11, 1280, v9')
        a('v_lshl_add_u32 v11, v10, 4, v11')
        a('s_lshl_b32 s78, s79, 7')
        a('v_add_u32 v11, s78, v11')
        a('v_subrev_u32 v12, 3840, v11')
        a('v_subrev_u32 v13, 2560, v11')
        a('v_subrev_u32 v15, 1280, v11')
        a('s_lshl_b32 s78, s79, 9')
        a('v_lshlrev_b32 v14, 6, v10')
        a('v_add_u32 v14, s78, v14')
    def kv_loads(o):
        for i in range(4):
            a('buffer_load_dwordx4 %s, v11, s[48:51], 0 offen offset:%d' % (vr(o + KR + 12 + 4 * i, 4), 1280 * i))
        for i in range(4):
            a('buffer_load_dwordx4 %s, v11, s[52:55], 0 offen offset:%d' % (vr(o + VR_ + 4 * i, 4), 1280 * i))
        a('buffer_load_dwordx4 %s, v12, s[48:51], 0 offen' % vr(o + KR, 4))
        a('buffer_load_dwordx4 %s, v13, s[48:51], 0 offen' % vr(o + KR + 4, 4))
        a('buffer_load_dwordx4 %s, v15, s[48:51], 0 offen' % vr(o + KR + 8, 4))
        for i in range(4):
            t = a.emit('buffer_load_dwordx4 %s, v14, s[56:59], 0 offen offset:%d' % (vr(o + WR + 4 * i, 4), 16 * i))
        return t
    def kv_compute(o, va):
        for cp in range(4):
            for r in range(7):
                unpack_lo(a, U + 2 * r, o + KR + 4 * r + cp); unpack_hi(a, U + 2 * r + 1, o + KR + 4 * r + cp)
            for r in range(4):
                unpack_lo(a, U + 14 + 2 * r, o + VR_ + 4 * r + cp); unpack_hi(a, U + 15 + 2 * r, o + VR_ + 4 * r + cp)
            for h in range(2):
                unpack_lo(a, U + 22 + h, o + WR + 4 * cp + 2 * h); unpack_hi(a, U + 24 + h, o + WR + 4 * cp + 2 * h)
                unpack_lo(a, U + 26 + h, o + WR + 4 * cp + 2 * h + 1); unpack_hi(a, U + 28 + h, o + WR + 4 * cp + 2 * h + 1)
            AC = U + 30
            for i in range(4):
                a('v_pk_mul_f32 %s, %s, %s' % (P2(AC + 2 * i), P2(U + 2 * i), P2(U + 28)))
            for tap in (2, 1, 0):
                for i in range(4):
                    a('v_pk_fma_f32 %s, %s, %s, %s' % (P2(AC + 2 * i), P2(U + 2 * (i + 3 - tap)), P2(U + 22 + 2 * tap), P2(AC + 2 * i)))
            for i in range(4):
                a('v_pk_mul_f32 %s, %s, %s' % (P2(AC + 2 * i), P2(AC + 2 * i), P2(U + 14 + 2 * i)))
            O = 24 + (cp & 1) * 4
            for h in range(2):
                a('v_cvt_pk_bf16_f32 v%d, v%d, v%d' % (O + 2 * h, AC + h, AC + 2 + h))
                a('v_cvt_pk_bf16_f32 v%d, v%d, v%d' % (O + 2 * h + 1, AC + 4 + h, AC + 6 + h))
            for h in range(2):
                a('ds_write_b64 v%d, %s offset:%d' % (va, vr(O + 2 * h, 2), HT + 128 * (2 * cp + h)))
    kv_addr(3)
    kv_loads(0)
    a('v_mov_b32 v19, v18')
    a('s_cmp_ge_u32 s3, 2')
    a('s_cbranch_scc1 LHwd')
    a('s_add_u32 s80, s3, 8')
    kv_addr(80)
    kv_loads(100)
    a('s_mov_b32 s89, 0x%x' % FAR)
    a('s_branch LHwd_done')
    a.label('LHwd')
    a('s_lshl_b32 s78, s4, 3')
    a('s_add_u32 s78, s78, s9')
    a('s_mul_i32 s78, s78, 6')
    a('s_add_u32 s78, s78, s3')
    a('s_sub_u32 s78, s78, 2')
    a('s_lshr_b32 s79, s78, 3')
    a('s_and_b32 s78, s78, 7')
    a('s_mul_i32 s89, s78, 48')
    a('s_add_u32 s89, s89, s79')
    a('s_lshl_b32 s89, s89, 2')
    a('s_add_u32 s89, s89, %d' % F_WD)
    a('s_mul_i32 s80, s79, 40960')
    a('s_mul_i32 s77, s78, 160')
    a('s_add_u32 s80, s80, s77')
    a('s_mul_i32 s81, s78, 245760')
    a('s_mul_i32 s77, s79, 5120')
    a('s_add_u32 s81, s81, s77')
    a('s_mul_i32 s82, s3, 5120')
    a('s_add_u32 s82, s82, %d' % HS)
    for i in range(5):
        a('v_add_u32 v9, %d, v1' % (64 * i))
        a('v_mul_u32_u24 v10, 6554, v9')
        a('v_lshrrev_b32 v10, 16, v10')
        a('v_mul_u32_u24 v11, 10, v10')
        a('v_sub_u32 v11, v9, v11')
        a('v_mul_u32_u24 v10, 1280, v10')
        a('v_lshl_add_u32 v10, v11, 4, v10')
        a('s_add_u32 m0, s82, %d' % (1024 * i))
        a('buffer_load_dwordx4 v10, s[60:63], s80 offen lds')
    a.label('LHwd_done')
    a.vmq = []
    NPF = (NSTAGE - cfg.pf0) if cfg.pflate else 0
    if cfg.pflate: xw_prefetch()
    GX, GW = 192, 216
    a('s_lshr_b32 s76, s9, 1')
    a('s_lshl_b32 s77, s4, 2')
    a('s_add_u32 s76, s76, s77')
    a('s_and_b32 s77, s9, 1')
    a('s_lshl_b32 s77, s77, 3')
    a('s_add_u32 s77, s77, s3')
    a('s_lshl_b32 s78, s76, 4')
    a('s_add_u32 s78, s78, s77')
    a('s_lshl_b32 s0, s78, 4')
    a('s_lshl_b32 s1, s78, 2')
    a('s_add_u32 s1, s1, %d' % F_G)
    a('s_lshr_b32 s78, s77, 1')
    a('s_and_b32 s77, s77, 1')
    a('s_lshl_b32 s77, s77, 8')
    a('s_add_u32 s78, s78, s77')
    a('s_and_b32 s77, s76, 7')
    a('s_lshl_b32 s77, s77, 3')
    a('s_add_u32 s78, s78, s77')
    a('s_lshl_b32 s77, s6, 9')
    a('s_add_u32 s78, s78, s77')
    a('s_mul_i32 s78, s78, 1280')
    a('v_lshrrev_b32 v9, 5, v1')
    a('v_and_b32 v10, 31, v1')
    a('v_lshlrev_b32 v13, 4, v10')
    a('s_mov_b32 s79, 81920')
    a('v_mul_lo_u32 v12, v9, s79')
    a('v_add_u32 v12, v12, v13')
    a('v_cmp_gt_u32 vcc, 16, v10')
    a('v_mov_b32 v8, 0x%x' % OOB)
    a('v_cndmask_b32 v16, v8, v12, vcc')
    for i in range(3):
        a('buffer_load_dwordx4 %s, v13, s[64:67], 0 offen offset:%d' % (vr(GW + 4 * i, 4), 512 * i))
    for p in range(2):
        a('buffer_load_dwordx4 %s, v12, s[44:47], s78 offen' % vr(GX + 12 * p, 4))
        a('buffer_load_dwordx4 %s, v12, s[44:47], s78 offen offset:512' % vr(GX + 12 * p + 4, 4))
        a('buffer_load_dwordx4 %s, v16, s[44:47], s78 offen offset:1024' % vr(GX + 12 * p + 8, 4))
        a('s_add_u32 s78, s78, 163840')
    a('v_lshlrev_b32 v7, 2, v9')
    a('v_cmp_eq_u32 vcc, 31, v10')
    a('v_cndmask_b32 v7, v8, v7, vcc')
    srd(a, 48, P_WS, SZ_Y2, WS_Y2)
    a('s_lshl_b32 s76, s4, 6')
    a('s_add_u32 s76, s76, s10')
    a('s_lshl_b32 s87, s76, 2')
    a('s_add_u32 s87, s87, %d' % F_YC)
    a('s_mul_i32 s76, s76, 5120')
    a('s_add_u32 s77, s76, 4096')
    a('v_lshlrev_b32 v241, 4, v1')
    for i in range(4): a('v_mov_b32 v%d, -1' % (232 + i))
    for i in range(4):
        a('buffer_store_dwordx4 v[232:235], v241, s[48:51], s76 offen offset:%d sc1' % (1024 * i))
    a('buffer_store_dwordx4 v[232:235], v241, s[48:51], s77 offen sc1')
    tn = nonce_issue(a)
    a.emit('s_waitcnt vmcnt(%d)' % (20 + NPF))
    prof.stamp(10)
    kv_compute(0, 19)
    a.emit('s_waitcnt vmcnt(%d)' % (15 + NPF))
    a('s_cmp_ge_u32 s3, 2')
    a('s_cbranch_scc1 LHwd2')
    kv_compute(100, 18)
    a.emit('s_waitcnt vmcnt(6)')
    a('s_branch LHwd2_done')
    a.label('LHwd2')
    a('v_lshrrev_b32 v9, 5, v1')
    a('v_lshlrev_b32 v9, 4, v9')
    a('v_bfe_u32 v10, v1, 2, 3')
    a('v_add_u32 v9, v9, v10')
    a('v_mul_u32_u24 v9, 160, v9')
    a('v_and_b32 v10, 3, v1')
    a('v_lshl_add_u32 v9, v10, 3, v9')
    a('v_add_u32 v9, s82, v9')
    srd(a, 60, P_WS, SZ_WD, WS_WD)
    for dl in range(5):
        for t in range(2):
            a('ds_read_b64_tr_b16 v[%d:%d], v9 offset:%d' % (32 + 4 * dl + 2 * t, 33 + 4 * dl + 2 * t, t * 1280 + dl * 32))
    a('s_add_u32 s80, s81, 4096')
    a.wait_all_lg()
    a.emit('s_waitcnt vmcnt(6)')
    for dl in range(4):
        a('buffer_store_dwordx4 %s, v241, s[60:63], s81 offen offset:%d sc1' % (vr(32 + 4 * dl, 4), 1024 * dl))
    a('buffer_store_dwordx4 %s, v241, s[60:63], s80 offen sc1' % vr(48, 4))
    a.label('LHwd2_done')
    a.vmq = []
    srd(a, 64, P_WS, SZ_G, WS_G)
    for p in range(2):
        a('v_mov_b32 v%d, 0' % (20 + p))
        for i in range(12):
            a('v_dot2_f32_bf16 v%d, v%d, v%d, v%d' % (20 + p, GX + 12 * p + i, GW + i, 20 + p))
    a('s_nop 2')
    for sh in (1, 2, 4, 8):
        for p in range(2):
            a('v_add_f32_dpp v%d, v%d, v%d row_shr:%d row_mask:0xf bank_mask:0xf bound_ctrl:0' % (20 + p, 20 + p, 20 + p, sh))
    for p in range(2):
        a('v_add_f32_dpp v%d, v%d, v%d row_bcast:15 row_mask:0xa bank_mask:0xf' % (20 + p, 20 + p, 20 + p))
    for p in range(2):
        r = 20 + p
        a('v_cvt_pk_bf16_f32 v%d, v%d, v%d' % (r, r, r))
        a('v_and_b32 v%d, 0xffff0000, v%d' % (r, r))
        a('v_mul_f32 v%d, 0xbfb8aa3b, v%d' % (r, r))
        a('v_exp_f32 v%d, v%d' % (r, r))
        a('v_add_f32 v%d, 1.0, v%d' % (r, r))
        a('v_rcp_f32 v%d, v%d' % (r, r))
        a('v_cvt_pk_bf16_f32 v%d, v%d, v%d' % (r, r, r))
        a('v_and_b32 v%d, 0xffff0000, v%d' % (r, r))
        a('buffer_store_dword v%d, v7, s[64:67], s0 offen offset:%d sc1' % (r, 8 * p))
    a.wait_all_lg()
    a('s_barrier')
    prof.stamp(11)
    srd(a, 52, P_WS, SZ_UT, WS_UT)
    a('v_lshrrev_b32 v9, 3, v1')
    a('v_and_b32 v10, 7, v1')
    a('v_lshlrev_b32 v11, 12, v9')
    a('v_lshl_add_u32 v11, v10, 4, v11')
    a('s_mul_i32 s76, s3, 5')
    for i in range(5):
        a('s_add_u32 s77, s76, %d' % i)
        a('s_and_b32 s78, s77, 7')
        a('v_xor_b32 v12, s78, v10')
        a('v_lshlrev_b32 v12, 4, v12')
        a('v_lshl_add_u32 v12, v9, 7, v12')
        a('s_lshl_b32 s77, s77, 10')
        a('v_add_u32 v12, s77, v12')
        a('ds_read_b128 %s, v12 offset:%d' % (vr(56 + 4 * i, 4), HT))
    a('s_and_b32 s77, s9, 1')
    a('s_lshl_b32 s77, s77, 3')
    a('s_add_u32 s77, s77, s3')
    a('s_lshl_b32 s78, s4, 2')
    a('s_lshr_b32 s79, s9, 1')
    a('s_add_u32 s78, s78, s79')
    a('s_lshl_b32 s86, s77, 5')
    a('s_add_u32 s86, s86, s78')
    a('s_lshl_b32 s86, s86, 2')
    a('s_mul_i32 s77, s77, 163840')
    a('s_lshl_b32 s78, s78, 7')
    a('s_add_u32 s77, s77, s78')
    a.wait_all_lg()
    for i in range(5):
        a('buffer_store_dwordx4 %s, v11, s[52:55], s77 offen sc1' % vr(56 + 4 * i, 4))
        a('s_add_u32 s77, s77, 32768')
    srd(a, 56, P_SSMK, SZ_X)
    a('s_lshl_b32 s76, s4, 6')
    a('s_add_u32 s76, s76, s10')
    a('s_mul_i32 s76, s76, 5120')
    a('v_lshlrev_b32 v17, 7, v1')
    a('v_cmp_gt_u32 vcc, 40, v1')
    a('v_cndmask_b32 v17, v8, v17, vcc')
    a('buffer_load_dword v252, v17, s[56:59], s76 offen')
    a.emit('s_waitcnt vmcnt(1)'); a.vmq = []
    nonce_get(a, cfg, -1)
    flag_store(a, 's86'); flag_store(a, 's89'); flag_store(a, 's87'); flag_store(a, 's1')
    prof.stamp(12)
    srd(a, 48, P_WS, SZ_WD, WS_WD)
    a('s_and_b32 s76, s4, 1')
    a('s_mul_i32 s80, s76, 768')
    a('s_add_u32 s80, s80, %d' % F_WD)
    a('v_lshlrev_b32 v9, 2, v1')
    a('v_add_u32 v10, 256, v9')
    a('v_add_u32 v11, 512, v9')
    ts = [poll_issue(a, 9 + i, 's80', 12 + i) for i in range(3)]
    for i in range(3): poll_wait(a, cfg, ts[i], 9 + i, 's80', 12 + i, sleep=8)
    if cfg.wdpf:
        a('s_mul_i32 s76, s76, 983040')
        a('s_mul_i32 s77, s10, 15360')
        a('s_add_u32 s76, s76, s77')
        a('v_lshlrev_b32 v9, 7, v1')
        a('v_add_u32 v10, 8192, v9')
        a('v_cmp_gt_u32 vcc, 56, v1')
        a('v_cndmask_b32 v10, v8, v10, vcc')
        a('buffer_load_dword v252, v9, s[48:51], s76 offen sc1')
        a('buffer_load_dword v252, v10, s[48:51], s76 offen sc1')
    a('s_barrier')
    prof.stamp(14)
    a('s_cmp_ge_u32 s3, 4')
    a('s_cbranch_scc1 LHL')
    c2_setup(a)
    c2_srds(a)
    a('s_nop 4')
    a('s_branch LC2')
    a.label('LHL')
    a('s_and_b32 s10, s3, 3')
    l2_setup(a)
    l2_srds(a)
    a.vmq = []
    tk = {}
    wd_ok(a)
    wdl_dma(a, tk)
    tail_loads(a, tk)
    a('s_nop 4')
    a('s_branch LL2')

def generate(cfg):
    a = Asm()
    a.raw('.amdgcn_target "amdgcn-amd-amdhsa--gfx950"')
    a.raw('.text')
    kn = NAME + '_kernel'
    kernel_header(a, kn)
    prof = Prof(a, cfg, 0)
    prof.start()
    a('s_cmp_ge_u32 s2, 256')
    a('s_cbranch_scc1 Ldone')
    load_kernargs(a)
    a('v_lshrrev_b32 v2, 6, v0')
    a('v_and_b32 v1, 63, v0')
    a('v_readfirstlane_b32 s3, v2')
    a('s_and_b32 s4, s2, 7')
    a('s_lshr_b32 s5, s2, 3')
    a('s_lshr_b32 s6, s4, 1')
    a('s_cmp_ge_u32 s5, 24')
    a('s_cbranch_scc1 Lhelper')
    a('s_and_b32 s7, s5, 3')
    a('s_and_b32 s8, s4, 1')
    a('s_mul_i32 s8, s8, 6')
    a('s_lshr_b32 s9, s5, 2')
    a('s_add_u32 s8, s8, s9')
    a('s_cmp_lt_u32 s3, 4')
    a('s_cbranch_scc1 Lcwave')
    h0 = list(a.hist)
    ltk = l_wave(a, cfg, prof)
    a.label('Ldone')
    a('s_endpgm')
    a.hist = list(h0); a.reset_queues()
    a.label('Lhelper')
    helper(a, cfg, prof, ltk)
    a.hist = list(h0); a.reset_queues()
    a.label('Lcwave')
    c_wave(a, cfg, prof)
    hdr = open('cdna_kernels/%s.s.ref' % NAME).read().split('; Override launch')[0]
    hdr += '; generated by dev/gen8.py (hand-written generator)\n'
    hdr += '; @launch grid=(256,1,1) block=(512,1,1) lds=%d\n' % LDS
    return hdr + a.text() + kernel_desc(kn, 256)

if __name__ == '__main__':
    cfg = Cfg()
    out = sys.argv[1]
    for kv in sys.argv[2:]:
        k, v = kv.split('=')
        assert hasattr(cfg, k), k
        setattr(cfg, k, int(v))
    open(out, 'w').write(generate(cfg))
```

```python
import sys
from asmlib import *
from gen2 import (NAME, WS_H, SZ_H, WS_WD, SZ_WD, WS_UT, SZ_UT, WS_Y2, SZ_Y2, WS_G, SZ_G, WS_PROF, SZ_X, SZ_W, OOB,
                  P_Q, P_K, P_V, P_SHK, P_SSMK, P_SSMD, P_BX, P_WG, P_WU, P_WD, P_GW, P_OUT, P_DBG, P_WS,
                  load_kernargs, srd, Prof, kernel_header, kernel_desc, unpack_lo, unpack_hi, P2, u32)
import gen8
from gen8 import (newlabel, row_off, conv_setup, conv_main, FAR, QV, GV, SF, NONCE, VZ, VN, flag_store, poll_issue, poll_wait,
                  lane_min, lds_spin)

SZ_G = 16384
WS_F = WS_G + SZ_G
F_UT, F_H, F_WD, F_G, F_YC = 0, 2560, 14848, 16384, 17408
SZ_F = 19968

class Cfg:
    prof = 0
    lstamp = 1
    spin = 200000
    g1prio = 1
    cprio = 2
    lprio = 2
    vprio = 1
    ysleep = 8
    hsleep = 2
    nb = 4
    pub_at = 24
    local = 0
    dstore = 0
    ygate = 3
    late = 5
    kvfirst = 0
    lsteps = 2
    c0 = 1

SLOT = 41088
OFF_GATE, OFF_UP = 16384, 16384 + 12320
NSTAGE, NSLOT = 10, 3
PA = NSLOT * SLOT
QA = PA + 4 * 5120
QSZ = 4224
CNT = QA + 4 * QSZ
LDS = CNT + 128
def wblk(i): return [SLOT, SLOT + 5120, 2 * SLOT, 2 * SLOT + 5120, 0, 5120][i]

def wave_common(a):
    srd(a, SF, P_WS, SZ_F, WS_F)
    a('v_cmp_eq_u32 vcc, 0, v1')
    a('v_mov_b32 v%d, 0x%x' % (VZ, OOB))
    a('v_cndmask_b32 v%d, v%d, 0, vcc' % (VZ, VZ))

LOCAL = [0]
def g2_scalars(a, st, dt):
    if not LOCAL[0]: return gen8.g2_scalars(a, st, dt)
    a('s_lshl_b32 s%d, s4, 2' % st)
    a('s_and_b32 s%d, s5, 3' % dt)
    a('s_add_u32 s%d, s%d, s%d' % (st, st, dt))
    a('s_lshr_b32 s%d, s5, 2' % dt)

def lds_word(a, sw, off, t0, t1):
    a('s_lshl_b32 s96, s%d, 2' % sw)
    a('s_add_u32 s96, s96, %d' % (CNT + off))
    a('v_mov_b32 v%d, s96' % t0)
    a('v_mov_b32 v%d, 1' % t1)
    a('ds_write_b32 v%d, v%d' % (t0, t1))
def lds_word_wait(a, cfg, sw, off, t0, t1, name):
    a('s_lshl_b32 s96, s%d, 2' % sw)
    a('s_add_u32 s96, s96, %d' % (CNT + off))
    a('v_mov_b32 v%d, s96' % t0)
    lds_spin(a, cfg, t0, t1, 96, 'eq', 1, name)

def c_wave(a, cfg, prof):
    a('s_and_b32 s10, s3, 1')
    a('s_lshr_b32 s11, s3, 1')
    a('v_and_b32 v2, 31, v1')
    a('v_lshrrev_b32 v3, 5, v1')
    a('v_lshrrev_b32 v9, 1, v2')
    a('v_and_b32 v9, 7, v9')
    a('v_xor_b32 v9, v9, v3')
    a('v_lshlrev_b32 v9, 4, v9')
    a('v_lshl_add_u32 v9, v2, 7, v9')
    a('s_lshl_b32 s12, s11, 13')
    a('v_add_u32 v4, s12, v9')
    a('v_xor_b32 v5, 32, v4')
    a('v_xor_b32 v6, 64, v4')
    a('v_xor_b32 v7, 96, v4')
    a('v_bfe_u32 v9, v1, 4, 1')
    a('v_mul_u32_u24 v8, 12320, v9')
    a('v_bfe_u32 v9, v1, 2, 2')
    a('v_lshl_add_u32 v9, v3, 3, v9')
    a('v_mul_u32_u24 v9, 192, v9')
    a('v_add_u32 v8, v8, v9')
    a('v_and_b32 v9, 3, v1')
    a('v_lshl_add_u32 v8, v9, 3, v8')
    a('s_mul_i32 s12, s10, 96')
    a('s_add_u32 s12, s12, %d' % OFF_GATE)
    a('v_add_u32 v8, s12, v8')
    a('v_lshrrev_b32 v9, 4, v2')
    a('v_lshlrev_b32 v10, 10, v9')
    a('v_lshl_add_u32 v10, v3, 8, v10')
    a('v_and_b32 v9, 15, v2')
    a('v_lshl_add_u32 v10, v9, 4, v10')
    a('s_lshl_b32 s12, s6, 2')
    a('s_add_u32 s12, s12, s7')
    a('s_lshl_b32 s12, s12, 1')
    a('s_add_u32 s12, s12, s11')
    a('s_mul_i32 s13, s8, 6')
    a('s_mul_i32 s14, s10, 3')
    a('s_add_u32 s13, s13, s14')
    a('s_mul_i32 s79, s12, 96')
    a('s_add_u32 s79, s79, s13')
    a('s_lshl_b32 s79, s79, 2')
    a('s_add_u32 s79, s79, %d' % F_H)
    a('s_mul_i32 s12, s12, 196608')
    for tt in range(3):
        a('s_add_u32 s14, s13, %d' % tt)
        a('s_lshr_b32 s15, s14, 1')
        a('s_lshl_b32 s15, s15, 12')
        a('s_and_b32 s14, s14, 1')
        a('s_lshl_b32 s14, s14, 9')
        a('s_add_u32 s14, s14, s15')
        a('s_add_u32 s%d, s14, s12' % (76 + tt))
    g2_scalars(a, 84, 85)
    a('s_mul_i32 s86, s85, 245760')
    a('s_mul_i32 s96, s3, 61440')
    a('s_add_u32 s86, s86, s96')
    a('s_mul_i32 s87, s84, 196608')
    a('s_mul_i32 s96, s3, 49152')
    a('s_add_u32 s87, s87, s96')
    a('s_mul_i32 s88, s3, 10240')
    a('s_mul_i32 s83, s84, 384')
    a('s_mul_i32 s96, s3, 96')
    a('s_add_u32 s83, s83, s96')
    a('s_add_u32 s83, s83, %d' % F_H)
    row_off(a, 244, 245, 84, 85, 3)
    a('v_lshlrev_b32 v240, 4, v1')
    a('v_add_u32 v241, 4096, v240')
    lane_min(a, 246, 24)
    a('v_lshlrev_b32 v249, 2, v1')
    a('v_cmp_gt_u32 vcc, 3, v1')
    a('v_mov_b32 v9, 0x%x' % OOB)
    a('v_cndmask_b32 v249, v9, v249, vcc')
    a('v_and_b32 v9, 31, v1')
    a('v_lshlrev_b32 v9, 2, v9')
    a('v_add_u32 v9, %d, v9' % CNT)
    a('v_mov_b32 v11, 0')
    a('ds_write_b32 v9, v11')
    a.emit('s_waitcnt lgkmcnt(0)'); a.lgq = []
    srd(a, 44, P_WS, SZ_H, WS_H)
    srd(a, 48, P_WS, SZ_WD, WS_WD)
    srd(a, 56, P_OUT, SZ_X)
    wave_common(a)
    ACC = 64
    FB = [16, 40]
    def acc(tt, b): return ACC + (tt * 2 + b) * 16
    def reads(buf, ks):
        f = FB[buf]
        def A(tt):
            return ['ds_read_b64_tr_b16 v[%d:%d], v8 offset:%d' % (f + 4 * tt + 2 * t, f + 4 * tt + 2 * t + 1, ks * 3072 + t * 768 + tt * 32) for t in range(2)]
        def B(b):
            return ['ds_read_b128 v[%d:%d], v%d offset:%d' % (f + 12 + 4 * b, f + 15 + 4 * b, 4 + ks, b * 4096)]
        return A(0) + B(0) + B(1) + A(1) + A(2)
    order = [(0, 0, 2), (0, 1, 3), (1, 0, 5), (1, 1, 5), (2, 0, 7), (2, 1, 7)]
    a('s_setprio %d' % cfg.g1prio)
    a('s_barrier')
    prof.stamp(1); prof.cyc(5)
    toks = [a.emit(r) for r in reads(0, 0)]
    cur = 0
    for st in range(NSTAGE):
        for ks in range(4):
            last = (st == NSTAGE - 1 and ks == 3)
            nxt = None if last else reads(1 - cur, (ks + 1) % 4)
            ntoks = []
            f = FB[cur]
            for mi, (tt, b, need_i) in enumerate(order):
                a.wait_lg(toks[need_i])
                c = '0' if (st == 0 and ks == 0) else vr(acc(tt, b), 16)
                a('v_mfma_f32_32x32x16_bf16 %s, %s, %s, %s' % (vr(acc(tt, b), 16), vr(f + 4 * tt, 4), vr(f + 12 + 4 * b, 4), c))
                if nxt is not None:
                    if ks == 3:
                        if mi == 0:
                            a.wait_all_lg()
                            d = SLOT if (st + 1) % NSLOT else -(NSLOT - 1) * SLOT
                            for r in (4, 5, 6, 7, 8):
                                a('v_add_u32 v%d, 0x%x, v%d' % (r, u32(d), r))
                            a('s_barrier')
                            if st == NSTAGE - 2: a('s_setprio %d' % cfg.cprio)
                        sched = {1: 3, 2: 2, 3: 2, 4: 1}
                    else:
                        sched = {0: 2, 1: 2, 2: 2, 3: 2}
                    for _ in range(sched.get(mi, 0)):
                        ntoks.append(a.emit(nxt[len(ntoks)]))
                if (st, ks, mi) == (9, 1, 5):
                    a('v_mov_b32 v9, %d' % (CNT + 32))
                    a('ds_read_b32 v%d, v9' % VN)
            toks = ntoks
            cur = 1 - cur
    prof.stamp(2); prof.cyc(6)
    for tt in range(3):
        for b in range(2):
            x = acc(tt, b)
            o = 16 + (tt * 2 + b) * 4
            for p in range(8):
                a('v_mul_f32 v%d, v%d, v%d' % (x + p, x + p, x + 8 + p))
            for p in range(4):
                a('v_cvt_pk_bf16_f32 v%d, v%d, v%d' % (o + p, x + 2 * p, x + 2 * p + 1))
            a('buffer_store_dwordx4 %s, v10, s[44:47], s%d offen offset:%d sc1' % (vr(o, 4), 76 + tt, b * 2048))
    prof.stamp(3)
    a('v_readfirstlane_b32 s%d, v%d' % (NONCE, VN))
    a.wait_all_vm()
    if cfg.dstore:
        for tt in range(3):
            for b in range(2):
                a('buffer_store_dwordx4 %s, v10, s[44:47], s%d offen offset:%d' % (vr(16 + (tt * 2 + b) * 4, 4), 76 + tt, b * 2048))
        if cfg.dstore == 2: a.wait_all_vm()
    flag_store(a, 's79', 249)
    a('s_setprio 0')
    prof.stamp(7)
    NA, NB = 4, cfg.nb
    NL = 6 if cfg.c0 else 4
    L0 = 12 - NL
    LS = cfg.lsteps
    cblocks = ([4, 5] if cfg.c0 else []) + list(range(LS, 4))
    border = cblocks + list(range(LS))
    BB, ACC2, AB = 8, 72, 160
    gtok = {}
    def acc2(dl, sg): return ACC2 + (sg * 5 + dl) * 4
    def lbase(off): return ('v4', off) if off < SLOT else ('v7', off - SLOT)
    def issueA(k):
        b = AB + (k % NA) * 20
        if k >= L0:
            i = border[k - L0]
            if i == 0: lds_word_wait(a, cfg, 3, 16, 5, 6, 'Lwf')
            base, off = lbase(wblk(i))
            for dl in range(5):
                gtok[(k, 'a')] = a.emit('ds_read_b128 %s, %s offset:%d' % (vr(b + 4 * dl, 4), base, off + dl * 1024))
            return
        a('s_add_u32 s14, s86, %d' % (5120 * k))
        for dl in range(4):
            a('buffer_load_dwordx4 %s, v240, s[48:51], s14 offen offset:%d sc1' % (vr(b + 4 * dl, 4), 1024 * dl))
        gtok[(k, 'a')] = a.emit('buffer_load_dwordx4 %s, v241, s[48:51], s14 offen sc1' % vr(b + 16, 4))
    def issueB(k):
        b = BB + (k % NB) * 16
        a('s_add_u32 s15, s87, %d' % (4096 * k))
        for sg in range(4):
            gtok[(k, sg)] = a.emit('buffer_load_dwordx4 %s, v240, s[44:47], s15 offen offset:%d sc1' % (vr(b + 4 * sg, 4), 1024 * sg))
    a('v_add_u32 v4, s88, v240')
    a('v_add_u32 v7, %d, v4' % SLOT)
    a('v_mov_b32 v5, %d' % CNT)
    a('v_mov_b32 v6, 1')
    a('v_cmp_eq_u32 vcc, 0, v1')
    a('s_and_saveexec_b64 s[90:91], vcc')
    a('ds_add_u32 v5, v6')
    a('s_mov_b64 exec, s[90:91]')
    lds_spin(a, cfg, 5, 6, 82, 'ge', 4, 'Lcsync')
    lds_word_wait(a, cfg, 3, 48, 5, 6, 'Lwok')
    for k in range(NA): issueA(k)
    for n, i in enumerate(cblocks):
        a('s_add_u32 s14, s86, %d' % (5120 * (L0 + n)))
        a('s_add_u32 m0, s88, %d' % wblk(i))
        for dl in range(4):
            a('buffer_load_dwordx4 v240, s[48:51], s14 offen offset:%d sc1 lds' % (1024 * dl))
        a('s_add_u32 m0, s88, %d' % (wblk(i) + 4096))
        a('buffer_load_dwordx4 v241, s[48:51], s14 offen sc1 lds')
    t = poll_issue(a, 246, 's83', 247)
    poll_wait(a, cfg, t, 246, 's83', 247, sleep=cfg.hsleep)
    prof.stamp(8)
    for k in range(NB): issueB(k)
    for k in range(12):
        ab_, bb_ = AB + (k % NA) * 20, BB + (k % NB) * 16
        if k >= L0: a.wait_lg(gtok[(k, 'a')])
        else: a.wait_vm(gtok[(k, 'a')])
        for sg in range(4):
            a.wait_vm(gtok[(k, sg)])
            if sg == 0: prof.stamp(10 + k)
            for dl in range(5):
                c = '0' if k == 0 else vr(acc2(dl, sg), 4)
                a('v_mfma_f32_16x16x32_bf16 %s, %s, %s, %s' % (vr(acc2(dl, sg), 4), vr(ab_ + 4 * dl, 4), vr(bb_ + 4 * sg, 4), c))
        if k + NB < 12: issueB(k + NB)
        if k + NA < 12: issueA(k + NA)
        if k == cfg.ygate: lds_word(a, 3, 64, 5, 6)
    prof.stamp(9)
    def blk(w, sg): return w * 10240 + wblk(sg if sg < w else sg - 1)
    a('v_add_u32 v7, %d, v240' % SLOT)
    a('s_nop 7')
    for w in range(3):
        a('s_cmp_eq_u32 s3, %d' % (w + 1))
        a('s_cbranch_scc1 Lfin%d' % (w + 1))
    hist0 = list(a.hist)
    for w in range(4):
        a.hist = list(hist0); a.vmq = []; a.lgq = []
        a.label('Lfin%d' % w)
        a('v_add_u32 v4, %d, v7' % SLOT)
        def ab(off): return ('v7', off - SLOT) if off < 2 * SLOT else ('v4', off - 2 * SLOT)
        for sg in range(4):
            if sg == w: continue
            for dl in range(5):
                r, o = ab(blk(w, sg) + dl * 1024)
                a('ds_write_b128 %s, %s offset:%d' % (r, vr(acc2(dl, sg), 4), o))
        a('v_add_u32 v8, %d, v240' % (PA + w * 5120))
        a('v_lshlrev_b32 v9, 2, v1')
        a('v_add_u32 v9, %d, v9' % (QA + w * QSZ + 3072))
        a.wait_all_lg()
        a('s_barrier')
        prof.stamp(30)
        tl = {}
        tl['omg'] = a.emit('ds_read_b32 v6, v9')
        srcs = [x for x in range(4) if x != w]
        for dl in range(5):
            for si, x in enumerate(srcs):
                r, o = ab(blk(x, w) + dl * 1024)
                tl[(dl, si)] = a.emit('ds_read_b128 %s, %s offset:%d' % (vr(160 + (dl * 4 + si) * 4, 4), r, o))
            tl[(dl, 3)] = a.emit('ds_read_b128 %s, v8 offset:%d' % (vr(160 + (dl * 4 + 3) * 4, 4), dl * 1024))
        for dl in range(5):
            x = acc2(dl, w)
            for si in range(3):
                a.wait_lg(tl[(dl, si)])
                r = 160 + (dl * 4 + si) * 4
                a('v_pk_add_f32 %s, %s, %s' % (P2(x), P2(x), P2(r)))
                a('v_pk_add_f32 %s, %s, %s' % (P2(x + 2), P2(x + 2), P2(r + 2)))
            ga = 160 + (dl * 4 + 3) * 4
            t = 12 + (dl & 1) * 4
            a.wait_lg(tl[(dl, 3)])
            for i in range(4): a('v_fma_f32 v%d, v6, v%d, v%d' % (x + i, x + i, ga + i))
            a('v_cvt_pk_bf16_f32 v%d, v%d, v%d' % (t, x, x + 1))
            a('v_cvt_pk_bf16_f32 v%d, v%d, v%d' % (t + 1, x + 2, x + 3))
            a('buffer_store_dwordx2 %s, v244, s[56:59], 0 offen offset:%d' % (vr(t, 2), dl * 32))
        prof.stamp(4)
        prof.flush(243)
        a('s_endpgm')

def l_wave(a, cfg, prof):
    a('s_setprio %d' % cfg.lprio)
    a('s_and_b32 s10, s3, 3')
    a('v_lshrrev_b32 v9, 3, v1')
    a('v_and_b32 v10, 7, v1')
    a('v_lshrrev_b32 v11, 1, v9')
    a('v_xor_b32 v10, v10, v11')
    a('v_lshlrev_b32 v10, 4, v10')
    a('s_mov_b32 s12, 81920')
    a('v_mul_lo_u32 v9, v9, s12')
    a('v_add_u32 v2, v9, v10')
    a('v_xor_b32 v10, 64, v10')
    a('v_add_u32 v3, v9, v10')
    a('v_add_u32 v3, 256, v3')
    a('v_add_u32 v4, 512, v2')
    a('v_add_u32 v5, 512, v3')
    for i in range(3):
        a('v_add_u32 v9, %d, v1' % (64 * i))
        a('v_mul_u32_u24 v10, 5462, v9')
        a('v_lshrrev_b32 v10, 16, v10')
        a('v_mul_u32_u24 v11, 12, v10')
        a('v_sub_u32 v11, v9, v11')
        a('v_mul_u32_u24 v10, 3072, v10')
        a('v_lshl_add_u32 v10, v11, 4, v10')
        a('v_subrev_u32 v%d, %d, v10' % (6 + i, 1024 * i))
    a('s_lshl_b32 s12, s6, 9')
    a('s_lshl_b32 s13, s7, 4')
    a('s_add_u32 s12, s12, s13')
    a('s_lshl_b32 s13, s10, 2')
    a('s_add_u32 s12, s12, s13')
    a('s_mul_i32 s12, s12, 1280')
    a('s_mul_i32 s13, s10, 49152')
    a('s_mul_i32 s14, s8, 192')
    a('s_add_u32 s13, s13, s14')
    a('s_lshl_b32 s14, s10, 12')
    a('s_mul_i32 s15, s10, 3072')
    a.emit('s_waitcnt lgkmcnt(0)')
    prof.stamp(3)
    srd(a, 44, P_Q, SZ_X)
    srd(a, 48, P_WG, SZ_W)
    srd(a, 52, P_WU, SZ_W)
    stage_tok = {}
    def issue_stage(st):
        base = (st % NSLOT) * SLOT
        a('s_add_u32 m0, s14, %d' % base)
        for i in range(4):
            a('buffer_load_dwordx4 v%d, s[44:47], s12 offen offset:%d lds' % (2 + i, 1024 * i))
        a('s_add_u32 m0, s15, %d' % (base + OFF_GATE))
        for i in range(3):
            a('buffer_load_dwordx4 v%d, s[48:51], s13 offen offset:%d lds' % (6 + i, 1024 * i))
        a('s_add_u32 m0, s15, %d' % (base + OFF_UP))
        for i in range(3):
            t = a.emit('buffer_load_dwordx4 v%d, s[52:55], s13 offen offset:%d lds' % (6 + i, 1024 * i))
        stage_tok[st] = t
        a('s_add_u32 s12, s12, 128')
        a('s_add_u32 s13, s13, 196608')
    issue_stage(0)
    wave_common(a)
    a('s_lshl_b32 s76, s2, 2')
    a('s_add_u32 s76, s76, s10')
    a('s_cmp_lg_u32 s76, 0')
    a('s_cbranch_scc1 Lno_nonce')
    a('s_memrealtime s[76:77]')
    srd(a, 68, P_DBG, 256)
    a.emit('s_waitcnt lgkmcnt(0)')
    a('s_or_b32 s76, s76, 1')
    a('v_mov_b32 v20, s76')
    a('buffer_store_dword v20, v%d, s[68:71], 0 offen sc1' % VZ)
    a.emit('s_waitcnt vmcnt(0)')
    a.vmq.pop()
    a.label('Lno_nonce')
    issue_stage(1)
    g2_scalars(a, 84, 85)
    a('s_mul_i32 s82, s10, 5120')
    a('s_add_u32 s82, s82, %d' % PA)
    a('s_mul_i32 s83, s10, %d' % QSZ)
    a('s_add_u32 s83, s83, %d' % QA)
    a('s_mul_i32 s88, s85, 48')
    a('s_mul_i32 s96, s10, 12')
    a('s_add_u32 s88, s88, s96')
    a('s_add_u32 s0, s88, %d' % (12 - cfg.lsteps))
    a('s_mul_i32 s0, s0, 5120')
    a('s_lshl_b32 s88, s88, 2')
    a('s_add_u32 s88, s88, %d' % F_WD)
    a('s_mul_i32 s1, s10, 10240')
    a('v_lshlrev_b32 v241, 4, v1')
    a('v_add_u32 v245, 4096, v241')
    a('s_cmp_ge_u32 s5, 20')
    a('s_cbranch_scc1 LtypeB')
    saved = (list(a.vmq), dict(stage_tok), list(a.hist))
    tk = {}
    def interval(i, slices, pre={}):
        a.wait_vm(stage_tok[i])
        if a.lgq: a.wait_all_lg()
        if cfg.lstamp: prof.stamp(10 + i)
        a('s_barrier')
        if cfg.lstamp: prof.stamp(20 + i)
        for f in pre.get(i, []): f()
        if i + NSLOT - 1 < NSTAGE: issue_stage(i + NSLOT - 1)
        for f in slices.get(i, []): f()
    def n_issue():
        a('s_load_dword s%d, s[%d:%d], 0' % (NONCE, P_DBG, P_DBG + 1))
    def n_get():
        lo, ok = newlabel('Ln'), newlabel('Ln_ok')
        a.emit('s_waitcnt lgkmcnt(0)'); a.lgq = []
        a('s_cmp_lg_u32 s%d, 0' % NONCE)
        a('s_cbranch_scc1 %s' % ok)
        a('s_mov_b32 s94, %d' % cfg.spin)
        srd(a, 68, P_DBG, 256)
        a('v_mov_b32 v249, 0')
        a.label(lo)
        a('buffer_load_dword v%d, v249, s[68:71], 0 offen sc1' % VN)
        a.emit('s_waitcnt vmcnt(0)')
        a.vmq.pop()
        a('v_readfirstlane_b32 s%d, v%d' % (NONCE, VN))
        a('s_cmp_lg_u32 s%d, 0' % NONCE)
        a('s_cbranch_scc1 %s' % ok)
        a('s_sleep 8')
        a('s_sub_u32 s94, s94, 1')
        a('s_cmp_lg_u32 s94, 0')
        a('s_cbranch_scc1 %s' % lo)
        a.label(ok)
        a('s_nop 1')
        a('v_mov_b32 v%d, s%d' % (VN, NONCE))
        a('v_mov_b32 v9, %d' % (CNT + 32))
        a('ds_write_b32 v9, v%d' % VN)
    def flag_after(key, sreg):
        def f():
            a.wait_vm(tk[key])
            flag_store(a, sreg)
        return f
    def late_srds():
        srd(a, 48, P_WS, SZ_WD, WS_WD)
        srd(a, 52, P_WS, SZ_G, WS_G)
        srd(a, 64, P_WS, SZ_Y2, WS_Y2)
    def wdl_dma():
        for i in range(cfg.lsteps):
            a('s_add_u32 s96, s0, %d' % (5120 * i))
            a('s_add_u32 m0, s1, %d' % wblk(i))
            for dl in range(4):
                a('buffer_load_dwordx4 v241, s[48:51], s96 offen offset:%d sc1 lds' % (1024 * dl))
            a('s_add_u32 m0, s1, %d' % (wblk(i) + 4096))
            tk['wdl'] = a.emit('buffer_load_dwordx4 v245, s[48:51], s96 offen sc1 lds')
    def wdl_publish():
        a.wait_vm(tk['wdl'])
        lds_word(a, 10, 16, 236, 237)
    def q_loads():
        row_off(a, 238, 239, 84, 85, 10)
        for dl in range(5):
            a('buffer_load_dwordx2 %s, v238, s[44:47], 0 offen offset:%d' % (vr(QV + 2 * dl, 2), dl * 32))
    def tail_issue():
        a('s_mul_i32 s89, s85, 320')
        a('s_add_u32 s89, s89, %d' % F_YC)
        a('v_lshlrev_b32 v247, 2, v1')
        lane_min(a, 240, 16)
        a('v_add_u32 v240, 256, v240')
        tk['y1'] = poll_issue(a, 247, 's89', 239)
        tk['y2'] = poll_issue(a, 240, 's89', 243)
    def tail_check():
        poll_wait(a, cfg, tk['y2'], 240, 's89', 243)
        poll_wait(a, cfg, tk['y1'], 247, 's89', 239)

    KR, VR_, WR = 32, 60, 76
    srd(a, 56, P_K, SZ_X); srd(a, 60, P_V, SZ_X); srd(a, 64, P_SHK, 5120)
    a('s_cmp_ge_u32 s5, 10')
    a('s_cselect_b32 s76, 1, 0')
    a('s_cselect_b32 s77, 10, 0')
    a('s_sub_u32 s77, s5, s77')
    a('s_lshl_b32 s78, s4, 1')
    a('s_add_u32 s76, s76, s78')
    a('s_lshl_b32 s87, s77, 2')
    a('s_add_u32 s87, s87, s10')
    a('s_lshl_b32 s89, s87, 4')
    a('s_add_u32 s89, s89, s76')
    a('s_lshl_b32 s89, s89, 2')
    a('s_lshl_b32 s87, s87, 16')
    a('s_lshl_b32 s78, s76, 8')
    a('s_add_u32 s87, s87, s78')
    a('s_lshl_b32 s76, s76, 7')
    a('s_lshl_b32 s78, s10, 5')
    a('s_add_u32 s76, s76, s78')
    a('v_lshrrev_b32 v9, 3, v1')
    a('v_and_b32 v10, 7, v1')
    a('s_lshl_b32 s78, s10, 3')
    a('v_add_u32 v22, s78, v9')
    a('v_lshlrev_b32 v11, 1, v10')
    a('v_xor_b32 v22, v22, v11')
    a('v_lshlrev_b32 v22, 3, v22')
    a('v_lshl_add_u32 v22, v10, 11, v22')
    a('v_add_u32 v22, %d, v22' % PA)
    a('v_lshlrev_b32 v9, 2, v9')
    a('v_add_u32 v9, s76, v9')
    a('v_mul_u32_u24 v11, 1280, v9')
    a('v_lshl_add_u32 v11, v10, 4, v11')
    a('s_lshl_b32 s78, s77, 7')
    a('v_add_u32 v11, s78, v11')
    a('v_subrev_u32 v12, 3840, v11')
    a('v_subrev_u32 v13, 2560, v11')
    a('v_subrev_u32 v15, 1280, v11')
    a('s_lshl_b32 s78, s77, 9')
    a('v_lshlrev_b32 v14, 6, v10')
    a('v_add_u32 v14, s78, v14')
    a('s_mul_i32 s11, s4, 20')
    a('s_add_u32 s11, s11, s5')
    a('s_lshl_b32 s11, s11, 2')
    a('s_add_u32 s11, s11, s10')
    a('s_lshl_b32 s81, s11, 12')
    a('s_lshl_b32 s80, s11, 2')
    a('s_add_u32 s80, s80, %d' % F_YC)
    a('s_lshr_b32 s76, s11, 4')
    a('s_lshl_b32 s76, s76, 6')
    a('s_sub_u32 s77, s88, 64')
    a('v_min_u32 v240, 27, v1')
    a('v_lshlrev_b32 v240, 2, v240')
    a('v_mov_b32 v9, s76')
    a('v_mov_b32 v10, s77')
    a('v_cmp_gt_u32 vcc, 16, v1')
    a('v_cndmask_b32 v9, v10, v9, vcc')
    a('v_add_u32 v240, v240, v9')
    def kv_loads():
        for i in range(4):
            a('buffer_load_dwordx4 %s, v11, s[56:59], 0 offen offset:%d' % (vr(KR + 12 + 4 * i, 4), 1280 * i))
        for i in range(4):
            a('buffer_load_dwordx4 %s, v11, s[60:63], 0 offen offset:%d' % (vr(VR_ + 4 * i, 4), 1280 * i))
        a('buffer_load_dwordx4 %s, v12, s[56:59], 0 offen' % vr(KR, 4))
        a('buffer_load_dwordx4 %s, v13, s[56:59], 0 offen' % vr(KR + 4, 4))
        a('buffer_load_dwordx4 %s, v15, s[56:59], 0 offen' % vr(KR + 8, 4))
        for i in range(4):
            tk['kv'] = a.emit('buffer_load_dwordx4 %s, v14, s[64:67], 0 offen offset:%d' % (vr(WR + 4 * i, 4), 16 * i))
    def kv_part(cp):
        def f():
            a.wait_vm(tk['kv'])
            U = 92
            for r in range(7):
                unpack_lo(a, U + 2 * r, KR + 4 * r + cp); unpack_hi(a, U + 2 * r + 1, KR + 4 * r + cp)
            for r in range(4):
                unpack_lo(a, U + 14 + 2 * r, VR_ + 4 * r + cp); unpack_hi(a, U + 15 + 2 * r, VR_ + 4 * r + cp)
            for h in range(2):
                unpack_lo(a, U + 22 + h, WR + 4 * cp + 2 * h); unpack_hi(a, U + 24 + h, WR + 4 * cp + 2 * h)
                unpack_lo(a, U + 26 + h, WR + 4 * cp + 2 * h + 1); unpack_hi(a, U + 28 + h, WR + 4 * cp + 2 * h + 1)
            AC = U + 30
            for i in range(8):
                a('v_mul_f32 v%d, v%d, v%d' % (AC + i, U + i, U + 28 + (i & 1)))
            for tap in (2, 1, 0):
                for i in range(8):
                    a('v_fmac_f32 v%d, v%d, v%d' % (AC + i, U + 2 * (3 - tap) + i, U + 22 + 2 * tap + (i & 1)))
            for i in range(8):
                a('v_mul_f32 v%d, v%d, v%d' % (AC + i, AC + i, U + 14 + i))
            O = 24 + (cp & 1) * 4
            for h in range(2):
                a('v_cvt_pk_bf16_f32 v%d, v%d, v%d' % (O + 2 * h, AC + h, AC + 2 + h))
                a('v_cvt_pk_bf16_f32 v%d, v%d, v%d' % (O + 2 * h + 1, AC + 4 + h, AC + 6 + h))
            for h in range(2):
                a('ds_write_b64 v22, %s offset:%d' % (vr(O + 2 * h, 2), 256 * (2 * cp + h)))
        return f
    def ut_store():
        srd(a, 56, P_WS, SZ_UT, WS_UT)
        a('v_lshrrev_b32 v9, 4, v1')
        a('v_and_b32 v10, 15, v1')
        a('v_lshlrev_b32 v11, 12, v9')
        a('v_lshl_add_u32 v11, v10, 4, v11')
        a('s_lshl_b32 s76, s10, 1')
        a('s_lshl_b32 s77, s10, 12')
        a('s_add_u32 s77, s77, %d' % PA)
        for hh in range(2):
            a('s_add_u32 s78, s76, %d' % hh)
            a('v_xor_b32 v12, s78, v10')
            a('v_lshlrev_b32 v12, 4, v12')
            a('v_lshl_add_u32 v12, v9, 8, v12')
            a('v_add_u32 v%d, s77, v12' % (24 + hh))
        tl = [a.emit('ds_read_b128 %s, v%d offset:%d' % (vr(40 + 4 * i, 4), 24 + (i >> 1), 1024 * i)) for i in range(4)]
        for i in range(4):
            a.wait_lg(tl[i])
            a('s_add_u32 s76, s87, %d' % (16384 * i))
            tk['ut'] = a.emit('buffer_store_dwordx4 %s, v11, s[56:59], s76 offen sc1' % vr(40 + 4 * i, 4))
    def d_issue():
        a('s_and_b32 s86, s11, 0xfffffffe')
        a('s_lshl_b32 s86, s86, 1')
        a('s_load_dword s86, s[26:27], s86')
    def y_clear():
        srd(a, 64, P_WS, SZ_Y2, WS_Y2)
        for i in range(4): a('v_mov_b32 v%d, -1' % (232 + i))
        for i in range(4):
            tk['yc'] = a.emit('buffer_store_dwordx4 v[232:235], v241, s[64:67], s81 offen offset:%d sc1' % (1024 * i))
    def p_dma():
        srd(a, 60, P_SSMK, SZ_X)
        a('v_bfe_u32 v9, v1, 4, 1')
        a('v_lshlrev_b32 v9, 1, v9')
        a('v_xor_b32 v9, v9, v1')
        a('v_lshlrev_b32 v9, 4, v9')
        a('s_add_u32 m0, s82, 512')
        for i in range(4):
            a('buffer_load_dwordx4 v9, s[60:63], s81 offen offset:%d lds' % (1024 * i))
    def pads():
        for i in range(4): a('v_mov_b32 v%d, 0' % (32 + i))
        a('v_and_b32 v10, 31, v1')
        a('v_lshlrev_b32 v10, 4, v10')
        a('v_add_u32 v10, s82, v10')
        a('ds_write_b128 v10, v[32:35]')
        a('v_and_b32 v10, 3, v1')
        a('v_lshlrev_b32 v10, 4, v10')
        a('v_add_u32 v10, s83, v10')
        a('ds_write_b128 v10, v[32:35]')
    slA = {0: [kv_loads], 2: [kv_part(1)], 3: [kv_part(3), n_issue, d_issue], 4: [ut_store], 6: [flag_after('ut', 's89')],
           7: [late_srds, lambda: tk.__setitem__('f', poll_issue(a, 240, '0', 243))]}
    def q_dma():
        poll_wait(a, cfg, tk['f'], 240, '0', 243)
        a('s_add_u32 m0, s83, 64')
        for i in range(4):
            tk['q'] = a.emit('buffer_load_dwordx4 v241, s[56:59], s81 offen offset:%d sc1 lds' % (1024 * i))
        lds_word(a, 10, 48, 236, 237)
    slA[8] = [p_dma, q_dma]
    slA.setdefault(cfg.late, []).append(y_clear)
    assert cfg.late <= 5
    slA[cfg.late + 2].insert(0, flag_after('yc', 's80'))
    if cfg.kvfirst:
        kv_loads(); slA[0] = []
    prA = {2: [kv_part(0)], 3: [kv_part(2)], 5: [n_get], 6: [lambda: conv_setup(a, cfg), pads]}
    for i in range(NSTAGE): interval(i, slA, prA)
    wdl_dma()
    q_loads()
    tail_issue()
    a('s_setprio %d' % cfg.vprio)
    a.wait_vm(tk['q'])
    gen = conv_main(a, cfg, prof)
    for _ in range(cfg.pub_at): next(gen)
    wdl_publish()
    for _ in gen: pass
    tail_check()
    a('s_setprio 0')
    a('s_branch Lfetch')

    a.vmq, stage_tok, a.hist = list(saved[0]), dict(saved[1]), list(saved[2])
    a.lgq = []
    a.label('LtypeB')
    srd(a, 56, P_WD, SZ_W)
    srd(a, 68, P_GW, 1280)
    a('s_mul_i32 s78, s4, 12')
    a('s_add_u32 s78, s78, s5')
    a('s_sub_u32 s78, s78, 20')
    a('s_lshl_b32 s78, s78, 2')
    a('s_add_u32 s78, s78, s10')
    a('s_lshr_b32 s79, s78, 3')
    a('s_and_b32 s78, s78, 7')
    a('s_mul_i32 s89, s78, 48')
    a('s_add_u32 s89, s89, s79')
    a('s_lshl_b32 s89, s89, 2')
    a('s_add_u32 s89, s89, %d' % F_WD)
    a('s_mul_i32 s80, s79, 40960')
    a('s_mul_i32 s77, s78, 160')
    a('s_add_u32 s80, s80, s77')
    a('s_mul_i32 s81, s78, 245760')
    a('s_mul_i32 s77, s79, 5120')
    a('s_add_u32 s81, s81, s77')
    lane_min(a, 240, 12)
    def wd_loads():
        for i in range(5):
            a('v_add_u32 v9, %d, v1' % (64 * i))
            a('v_mul_u32_u24 v10, 6554, v9')
            a('v_lshrrev_b32 v10, 16, v10')
            a('v_mul_u32_u24 v11, 10, v10')
            a('v_sub_u32 v11, v9, v11')
            a('v_mul_u32_u24 v10, 1280, v10')
            a('v_lshl_add_u32 v10, v11, 4, v10')
            a('s_add_u32 m0, s82, %d' % (1024 * i))
            tk['wd'] = a.emit('buffer_load_dwordx4 v10, s[56:59], s80 offen lds')
    def wd_part():
        a('v_lshrrev_b32 v9, 5, v1')
        a('v_lshlrev_b32 v9, 4, v9')
        a('v_bfe_u32 v10, v1, 2, 3')
        a('v_add_u32 v9, v9, v10')
        a('v_mul_u32_u24 v9, 160, v9')
        a('v_and_b32 v10, 3, v1')
        a('v_lshl_add_u32 v9, v10, 3, v9')
        a('v_add_u32 v9, s82, v9')
        srd(a, 60, P_WS, SZ_WD, WS_WD)
        a('s_add_u32 s80, s81, 4096')
        a.wait_vm(tk['wd'])
        for dl in range(5):
            for t in range(2):
                a('ds_read_b64_tr_b16 v[%d:%d], v9 offset:%d' % (32 + 4 * dl + 2 * t, 33 + 4 * dl + 2 * t, t * 1280 + dl * 32))
        a.wait_all_lg()
        for dl in range(4):
            a('buffer_store_dwordx4 %s, v241, s[60:63], s81 offen offset:%d sc1' % (vr(32 + 4 * dl, 4), 1024 * dl))
        tk['wds'] = a.emit('buffer_store_dwordx4 %s, v241, s[60:63], s80 offen sc1' % vr(48, 4))
    GX, GW = 56, 104
    gtk = []
    def g_loads():
        srd(a, 56, P_GW, 1280)
        a('s_sub_u32 s76, s5, 20')
        a('s_lshl_b32 s76, s76, 2')
        a('s_add_u32 s76, s76, s10')
        a('s_cmp_ge_u32 s76, 32')
        a('s_cselect_b32 s86, 0x%x, 0' % FAR)
        a('s_and_b32 s77, s4, 1')
        a('s_lshl_b32 s77, s77, 2')
        a('s_lshr_b32 s78, s76, 3')
        a('s_add_u32 s77, s77, s78')
        a('s_and_b32 s76, s76, 7')
        a('s_lshl_b32 s78, s6, 9')
        a('s_lshl_b32 s79, s77, 3')
        a('s_add_u32 s78, s78, s79')
        a('s_add_u32 s78, s78, s76')
        a('s_mul_i32 s78, s78, 1280')
        a('s_or_b32 s78, s78, s86')
        a('v_lshrrev_b32 v9, 5, v1')
        a('v_and_b32 v10, 31, v1')
        a('v_lshlrev_b32 v11, 4, v10')
        a('s_mov_b32 s79, 81920')
        a('v_mul_lo_u32 v12, v9, s79')
        a('v_add_u32 v12, v12, v11')
        a('v_cmp_gt_u32 vcc, 16, v10')
        a('v_mov_b32 v15, 0x%x' % OOB)
        a('v_cndmask_b32 v13, v15, v12, vcc')
        for i in range(3):
            a('buffer_load_dwordx4 %s, v11, s[56:59], 0 offen offset:%d' % (vr(GW + 4 * i, 4), 512 * i))
        for p in range(4):
            a('buffer_load_dwordx4 %s, v12, s[44:47], s78 offen' % vr(GX + 12 * p, 4))
            a('buffer_load_dwordx4 %s, v12, s[44:47], s78 offen offset:512' % vr(GX + 12 * p + 4, 4))
            gtk.append(a.emit('buffer_load_dwordx4 %s, v13, s[44:47], s78 offen offset:1024' % vr(GX + 12 * p + 8, 4)))
            a('s_add_u32 s78, s78, 163840')
        a('s_lshl_b32 s78, s6, 3')
        a('s_add_u32 s78, s78, s77')
        a('s_lshl_b32 s78, s78, 3')
        a('s_add_u32 s78, s78, s76')
        a('s_lshl_b32 s80, s78, 6')
        a('s_or_b32 s80, s80, s86')
        a('v_lshlrev_b32 v14, 3, v9')
        a('v_cmp_eq_u32 vcc, 31, v10')
        a('v_cndmask_b32 v14, v15, v14, vcc')
    def g_compute():
        for p in range(4):
            a.wait_vm(gtk[p])
            a('v_mov_b32 v%d, 0' % (24 + p))
            for i in range(12):
                a('v_dot2_f32_bf16 v%d, v%d, v%d, v%d' % (24 + p, GX + 12 * p + i, GW + i, 24 + p))
        a('s_nop 2')
        for sh in (1, 2, 4, 8):
            for p in range(4):
                a('v_add_f32_dpp v%d, v%d, v%d row_shr:%d row_mask:0xf bank_mask:0xf bound_ctrl:0' % (24 + p, 24 + p, 24 + p, sh))
        for p in range(4):
            a('v_add_f32_dpp v%d, v%d, v%d row_bcast:15 row_mask:0xa bank_mask:0xf' % (24 + p, 24 + p, 24 + p))
        for p in range(4):
            r = 24 + p
            a('v_cvt_pk_bf16_f32 v%d, v%d, v%d' % (r, r, r))
            a('v_and_b32 v%d, 0xffff0000, v%d' % (r, r))
            a('v_mul_f32 v%d, 0xbfb8aa3b, v%d' % (r, r))
            a('v_exp_f32 v%d, v%d' % (r, r))
            a('v_add_f32 v%d, 1.0, v%d' % (r, r))
            a('v_rcp_f32 v%d, v%d' % (r, r))
            a('v_cvt_pk_bf16_f32 v%d, v%d, v%d' % (r, r, r))
            a('v_and_b32 v%d, 0xffff0000, v%d' % (29 + 2 * p, r))
            a('v_mov_b32 v%d, v%d' % (28 + 2 * p, VN))
            a('buffer_store_dwordx2 v[%d:%d], v14, s[52:55], s80 offen offset:%d sc1' % (28 + 2 * p, 29 + 2 * p, 16 * p))
    slB = {0: [wd_loads], 2: [wd_part], 3: [n_issue], 5: [flag_after('wds', 's89')], 7: [late_srds, lambda: tk.__setitem__('f', poll_issue(a, 240, 's88', 243))],
           8: [g_loads, lambda: (poll_wait(a, cfg, tk['f'], 240, 's88', 243), lds_word(a, 10, 48, 236, 237))]}
    for i in range(NSTAGE): interval(i, slB, {4: [n_get]})
    wdl_dma()
    g_compute()
    q_loads()
    tail_issue()
    a('s_setprio 0')
    wdl_publish()
    lds_word_wait(a, cfg, 10, 0, 236, 237, 'Ldummy') if False else None
    tail_check()
    a.pad()
    a.label('Lfetch')
    a.reset_queues()
    a('s_mul_i32 s11, s85, 327680')
    a('s_lshr_b32 s12, s84, 3')
    a('s_lshl_b32 s12, s12, 10')
    a('s_add_u32 s11, s11, s12')
    a('s_and_b32 s12, s84, 7')
    a('s_lshl_b32 s12, s12, 7')
    a('s_add_u32 s11, s11, s12')
    a('s_lshl_b32 s12, s10, 5')
    a('s_add_u32 s11, s11, s12')
    a('v_lshrrev_b32 v24, 1, v1')
    a('v_lshlrev_b32 v24, 12, v24')
    a('v_and_b32 v25, 1, v1')
    a('v_lshl_add_u32 v24, v25, 4, v24')
    a('v_add_u32 v25, 0x20000, v24')
    a('v_add_u32 v26, 0x40000, v24')
    a('v_cmp_gt_u32 vcc, 32, v1')
    a('v_mov_b32 v27, 0x%x' % OOB)
    a('v_cndmask_b32 v26, v27, v26, vcc')
    a('v_lshlrev_b32 v28, 2, v1')
    a('s_add_u32 s12, s83, 3072')
    a('v_add_u32 v28, s12, v28')
    a('v_add_u32 v29, s83, v241')
    a('v_lshlrev_b32 v30, 3, v1')
    a('v_add_u32 v30, s83, v30')
    a('v_add_u32 v31, s82, v241')
    a('s_lshl_b32 s96, s84, 6')
    a('s_lshl_b32 s97, s10, 4')
    a('s_add_u32 s96, s96, s97')
    a('v_and_b32 v33, 15, v1')
    a('v_add_u32 v33, s96, v33')
    a('v_lshlrev_b32 v33, 3, v33')
    lds_word_wait(a, cfg, 10, 64, 236, 237, 'Lgate2')
    prof.stamp(6)
    YV = 40
    lo, ok = newlabel('Ly'), newlabel('Ly_ok')
    a('s_mov_b32 s94, %d' % cfg.spin)
    a.label(lo)
    for i in range(3):
        a('buffer_load_dwordx4 %s, v%d, s[64:67], s11 offen sc1' % (vr(YV + 4 * i, 4), 24 + i))
    a('buffer_load_dwordx2 v[34:35], v33, s[52:55], 0 offen sc1')
    a.wait_all_vm()
    a('v_max3_u32 v27, v%d, v%d, v%d' % (YV, YV + 1, YV + 2))
    for i in range(3, 11, 2):
        a('v_max3_u32 v27, v27, v%d, v%d' % (YV + i, YV + i + 1))
    a('v_max_u32 v27, v27, v%d' % (YV + 11))
    a('v_cmp_eq_u32 vcc, -1, v27')
    a('v_cmp_ne_u32 s[96:97], s%d, v34' % NONCE)
    a('s_or_b64 vcc, vcc, s[96:97]')
    a('s_cbranch_scc0 %s' % ok)
    a('s_sleep %d' % cfg.ysleep)
    a('s_sub_u32 s94, s94, 1')
    a('s_cmp_lg_u32 s94, 0')
    a('s_cbranch_scc1 %s' % lo)
    a.label(ok)
    prof.stamp(7)
    a('v_mov_b32 v%d, v35' % GV)
    a('ds_write_b128 v29, %s' % vr(YV, 4))
    a('ds_write_b128 v29, %s offset:1024' % vr(YV + 4, 4))
    a('ds_write_b128 v29, %s offset:2048' % vr(YV + 8, 4))
    a('v_sub_f32 v32, 1.0, v%d' % GV)
    a('v_cvt_pk_bf16_f32 v32, v32, v32')
    a('v_and_b32 v32, 0xffff0000, v32')
    a('ds_write_b32 v28, v32')
    for dl in range(5):
        x = 72 + 4 * dl
        unpack_lo(a, x, QV + 2 * dl); unpack_hi(a, x + 1, QV + 2 * dl); unpack_lo(a, x + 2, QV + 2 * dl + 1); unpack_hi(a, x + 3, QV + 2 * dl + 1)
        for i in range(4): a('v_mul_f32 v%d, v%d, v%d' % (x + i, GV, x + i))
    a.wait_all_lg()
    tl = [a.emit('ds_read_b64_tr_b16 %s, v30 offset:%d' % (vr(56 + 2 * dl, 2), dl * 512)) for dl in range(5)]
    for dl in range(5):
        a.wait_lg(tl[dl])
        x = 72 + 4 * dl; y = 96
        unpack_lo(a, y, 56 + 2 * dl); unpack_hi(a, y + 1, 56 + 2 * dl); unpack_lo(a, y + 2, 57 + 2 * dl); unpack_hi(a, y + 3, 57 + 2 * dl)
        for i in range(4): a('v_mul_f32 v%d, v%d, v%d' % (x + i, x + i, y + i))
        a('ds_write_b128 v31, %s offset:%d' % (vr(x, 4), dl * 1024))
    a.wait_all_lg()
    a('s_barrier')
    prof.stamp(8)
    prof.flush(243)

def generate(cfg):
    LOCAL[0] = cfg.local
    a = Asm()
    a.raw('.amdgcn_target "amdgcn-amd-amdhsa--gfx950"')
    a.raw('.text')
    kn = NAME + '_kernel'
    kernel_header(a, kn)
    prof = Prof(a, cfg, 0)
    prof.start()
    a('s_cmp_ge_u32 s2, 256')
    a('s_cbranch_scc1 Ldone')
    load_kernargs(a)
    a('v_lshrrev_b32 v2, 6, v0')
    a('v_and_b32 v1, 63, v0')
    a('v_readfirstlane_b32 s3, v2')
    a('s_and_b32 s4, s2, 7')
    a('s_lshr_b32 s5, s2, 3')
    a('s_lshr_b32 s6, s4, 1')
    if cfg.local:
        a('s_and_b32 s7, s4, 1')
        a('s_lshl_b32 s7, s7, 1')
        a('s_and_b32 s8, s5, 1')
        a('s_add_u32 s7, s7, s8')
        a('s_lshr_b32 s8, s5, 1')
    else:
        a('s_and_b32 s7, s5, 3')
        a('s_and_b32 s8, s4, 1')
        a('s_lshl_b32 s8, s8, 3')
        a('s_lshr_b32 s9, s5, 2')
        a('s_add_u32 s8, s8, s9')
    a('s_cmp_lt_u32 s3, 4')
    a('s_cbranch_scc1 Lcwave')
    h0 = list(a.hist)
    l_wave(a, cfg, prof)
    a.label('Ldone')
    a('s_endpgm')
    a.hist = h0; a.reset_queues()
    a.label('Lcwave')
    c_wave(a, cfg, prof)
    hdr = open('cdna_kernels/%s.s.ref' % NAME).read().split('; Override launch')[0]
    hdr += '; generated by dev/gen10.py (hand-written generator)\n'
    hdr += '; @launch grid=(256,1,1) block=(512,1,1) lds=%d\n' % LDS
    return hdr + a.text() + kernel_desc(kn, 252 if not cfg.prof else 256)

if __name__ == '__main__':
    cfg = Cfg()
    out = sys.argv[1]
    for kv in sys.argv[2:]:
        k, v = kv.split('=')
        assert hasattr(cfg, k), k
        setattr(cfg, k, int(v))
    open(out, 'w').write(generate(cfg))
```

```python
import sys
from asmlib import *
from gen2 import (NAME, WS_H, SZ_H, WS_WD, SZ_WD, WS_UT, SZ_UT, WS_Y2, SZ_Y2, WS_G, SZ_G, WS_PROF, SZ_X, SZ_W, OOB,
                  P_Q, P_K, P_V, P_SHK, P_SSMK, P_SSMD, P_BX, P_WG, P_WU, P_WD, P_GW, P_OUT, P_DBG, P_WS,
                  load_kernargs, srd, Prof, kernel_header, kernel_desc, unpack_lo, unpack_hi, P2, u32)
import gen8
from gen8 import (newlabel, row_off, conv_setup, conv_main, FAR, QV, GV, SF, NONCE, VZ, VN, flag_store, poll_issue, poll_wait,
                  lane_min, lds_spin)

SZ_G = 16384
WS_F = WS_G + SZ_G
F_UT, F_H, F_WD, F_G, F_YC = 0, 2560, 14848, 16384, 17408
SZ_F = 19968

class Cfg:
    prof = 0
    lstamp = 1
    spin = 200000
    g1prio = 1
    cprio = 2
    lprio = 2
    vprio = 1
    ysleep = 8
    hsleep = 2
    nb = 4
    pub_at = 24
    local = 0
    dstore = 0
    ygate = 5
    late = 5
    kvfirst = 0
    rot2 = 0
    ungate = 0
    areg = 0
    nine = 0
    early = 0
    bclear = 1
    xrot = 1
    kv_at = 0
    wd_at = 1
    cclear = 0
    drop = 0
    lsteps = 2
    c0 = 1

SLOT = 41088
OFF_GATE, OFF_UP = 16384, 16384 + 12320
NSTAGE, NSLOT = 10, 3
PA = NSLOT * SLOT
QA = PA + 4 * 5120
QSZ = 4224
CNT = QA + 4 * QSZ
LDS = CNT + 128
def wblk(i): return [SLOT, SLOT + 5120, 2 * SLOT, 2 * SLOT + 5120, 0, 5120][i]

def wave_common(a):
    srd(a, SF, P_WS, SZ_F, WS_F)
    a('v_cmp_eq_u32 vcc, 0, v1')
    a('v_mov_b32 v%d, 0x%x' % (VZ, OOB))
    a('v_cndmask_b32 v%d, v%d, 0, vcc' % (VZ, VZ))

LOCAL = [0]
def g2_scalars(a, st, dt):
    if not LOCAL[0]: return gen8.g2_scalars(a, st, dt)
    a('s_lshl_b32 s%d, s4, 2' % st)
    a('s_and_b32 s%d, s5, 3' % dt)
    a('s_add_u32 s%d, s%d, s%d' % (st, st, dt))
    a('s_lshr_b32 s%d, s5, 2' % dt)

def rot_off(a, cfg, d):
    if cfg.rot2 == 1:
        a('s_and_b32 s%d, s85, 3' % d)
        a('s_mul_i32 s%d, s%d, 6' % (d, d))
        a('s_and_b32 s96, s84, 7')
        a('s_mul_i32 s96, s96, 3')
        a('s_add_u32 s%d, s%d, s96' % (d, d))
        a('s_lshr_b32 s%d, s%d, 1' % (d, d))
    else:
        a('s_and_b32 s%d, s85, 3' % d)
        a('s_mul_i32 s%d, s%d, 3' % (d, d))
    a('s_cmp_ge_u32 s%d, 12' % d)
    a('s_cselect_b32 s96, 12, 0')
    a('s_sub_u32 s%d, s%d, s96' % (d, d))
def kap(a, d, off, k):
    a('s_add_u32 s%d, s%d, %d' % (d, off, k))
    a('s_cmp_ge_u32 s%d, 12' % d)
    a('s_cselect_b32 s96, 12, 0')
    a('s_sub_u32 s%d, s%d, s96' % (d, d))

def lds_word(a, sw, off, t0, t1):
    a('s_lshl_b32 s96, s%d, 2' % sw)
    a('s_add_u32 s96, s96, %d' % (CNT + off))
    a('v_mov_b32 v%d, s96' % t0)
    a('v_mov_b32 v%d, 1' % t1)
    a('ds_write_b32 v%d, v%d' % (t0, t1))
def lds_word_wait(a, cfg, sw, off, t0, t1, name):
    a('s_lshl_b32 s96, s%d, 2' % sw)
    a('s_add_u32 s96, s96, %d' % (CNT + off))
    a('v_mov_b32 v%d, s96' % t0)
    lds_spin(a, cfg, t0, t1, 96, 'eq', 1, name)

def c_setup_odd(a):
    a('s_and_b32 s10, s3, 1')
    a('s_lshr_b32 s11, s3, 1')
    a('v_and_b32 v2, 31, v1')
    a('v_lshrrev_b32 v3, 5, v1')
    a('v_lshrrev_b32 v9, 1, v2')
    a('v_and_b32 v9, 7, v9')
    a('v_xor_b32 v9, v9, v3')
    a('v_lshlrev_b32 v9, 4, v9')
    a('v_lshl_add_u32 v9, v2, 7, v9')
    a('s_lshl_b32 s12, s11, 13')
    a('v_add_u32 v4, s12, v9')
    a('v_xor_b32 v5, 32, v4')
    a('v_xor_b32 v6, 64, v4')
    a('v_xor_b32 v7, 96, v4')
    a('v_bfe_u32 v9, v1, 4, 1')
    a('v_mul_u32_u24 v8, 12320, v9')
    a('v_bfe_u32 v9, v1, 2, 2')
    a('v_lshl_add_u32 v9, v3, 3, v9')
    a('v_mul_u32_u24 v9, 192, v9')
    a('v_add_u32 v8, v8, v9')
    a('v_and_b32 v9, 3, v1')
    a('v_lshl_add_u32 v8, v9, 3, v8')
    a('s_mul_i32 s12, s10, 96')
    a('s_add_u32 s12, s12, %d' % OFF_GATE)
    a('v_add_u32 v8, s12, v8')
    a('v_lshrrev_b32 v9, 4, v2')
    a('v_lshlrev_b32 v10, 10, v9')
    a('v_lshl_add_u32 v10, v3, 8, v10')
    a('v_and_b32 v9, 15, v2')
    a('v_lshl_add_u32 v10, v9, 4, v10')
    a('s_lshl_b32 s12, s7, 1')
    a('s_add_u32 s12, s12, s11')
    a('s_mul_i32 s13, s8, 6')
    a('s_mul_i32 s14, s10, 3')
    a('s_add_u32 s13, s13, s14')
    a('s_mul_i32 s79, s12, 96')
    a('s_add_u32 s79, s79, s13')
    a('s_lshl_b32 s79, s79, 2')
    a('s_add_u32 s79, s79, %d' % F_H)
    a('s_mul_i32 s12, s12, 196608')
    for tt in range(3):
        a('s_add_u32 s14, s13, %d' % tt)
        a('s_lshr_b32 s15, s14, 1')
        a('s_lshl_b32 s15, s15, 12')
        a('s_and_b32 s14, s14, 1')
        a('s_lshl_b32 s14, s14, 9')
        a('s_add_u32 s14, s14, s15')
        a('s_add_u32 s%d, s14, s12' % (76 + tt))
    a('v_lshlrev_b32 v249, 2, v1')
    a('v_add_u32 v249, s79, v249')
    a('v_cmp_gt_u32 vcc, 3, v1')
    a('v_mov_b32 v9, 0x%x' % OOB)
    a('v_cndmask_b32 v249, v9, v249, vcc')

def c_setup_main(a):
    a('s_and_b32 s10, s3, 1')
    a('s_lshr_b32 s11, s3, 1')
    a('v_and_b32 v2, 31, v1')
    a('v_lshrrev_b32 v3, 5, v1')
    a('v_lshrrev_b32 v9, 1, v2')
    a('v_and_b32 v9, 7, v9')
    a('v_xor_b32 v9, v9, v3')
    a('v_lshlrev_b32 v9, 4, v9')
    a('v_lshl_add_u32 v9, v2, 7, v9')
    a('s_mul_i32 s12, s11, 12288')
    a('v_add_u32 v4, s12, v9')
    a('v_xor_b32 v5, 32, v4')
    a('v_xor_b32 v6, 64, v4')
    a('v_xor_b32 v7, 96, v4')
    a('v_bfe_u32 v9, v1, 4, 1')
    a('v_bfe_u32 v11, v1, 2, 2')
    a('v_lshl_add_u32 v8, v3, 3, v11')
    a('v_lshlrev_b32 v8, 7, v8')
    a('v_lshl_add_u32 v8, v9, 13, v8')
    a('v_xor_b32 v9, s10, v9')
    a('v_lshl_add_u32 v8, v9, 6, v8')
    a('v_lshrrev_b32 v11, 1, v11')
    a('v_lshl_add_u32 v8, v11, 5, v8')
    a('v_and_b32 v9, 3, v1')
    a('v_lshl_add_u32 v8, v9, 3, v8')
    a('v_add_u32 v8, 24576, v8')
    a('v_xor_b32 v11, 32, v8')
    a('v_lshrrev_b32 v9, 4, v2')
    a('v_lshlrev_b32 v10, 10, v9')
    a('v_lshl_add_u32 v10, v3, 8, v10')
    a('v_and_b32 v9, 15, v2')
    a('v_lshl_add_u32 v10, v9, 4, v10')
    a('s_lshl_b32 s13, s8, 1')
    a('s_add_u32 s13, s13, s10')
    a('v_mov_b32 v249, 0x%x' % OOB)
    for b in range(3):
        a('s_mul_i32 s12, s11, 3')
        a('s_add_u32 s12, s12, %d' % b)
        a('s_and_b32 s14, s12, 1')
        a('s_lshr_b32 s12, s12, 1')
        a('s_mul_i32 s15, s7, 3')
        a('s_add_u32 s12, s12, s15')
        a('s_mul_i32 s15, s12, 96')
        a('s_add_u32 s15, s15, s14')
        a('s_lshl_b32 s79, s13, 1')
        a('s_add_u32 s15, s15, s79')
        a('s_lshl_b32 s15, s15, 2')
        a('s_add_u32 s15, s15, %d' % F_H)
        a('v_writelane_b32 v249, s15, %d' % b)
        a('s_mul_i32 s12, s12, 196608')
        a('s_lshl_b32 s14, s14, 11')
        a('s_add_u32 s12, s12, s14')
        a('s_lshl_b32 s14, s13, 12')
        a('s_add_u32 s%d, s12, s14' % (76 + b))

def c_gemm1(a, cfg, prof, odd):
    ACC = 64
    FB = [16, 40]
    if odd:
        NT_, NBT = 3, 2
        def reads(buf, ks):
            f = FB[buf]
            A = lambda tt: ['ds_read_b64_tr_b16 v[%d:%d], v8 offset:%d' % (f + 4 * tt + 2 * t, f + 4 * tt + 2 * t + 1, ks * 3072 + t * 768 + tt * 32) for t in range(2)]
            B = lambda b: ['ds_read_b128 v[%d:%d], v%d offset:%d' % (f + 12 + 4 * b, f + 15 + 4 * b, 4 + ks, b * 4096)]
            return A(0) + B(0) + B(1) + A(1) + A(2)
        order = [(0, 0, 2), (0, 1, 3), (1, 0, 5), (1, 1, 5), (2, 0, 7), (2, 1, 7)]
        s3_, sn = {1: 3, 2: 2, 3: 2, 4: 1}, {0: 2, 1: 2, 2: 2, 3: 2}
        addr = (4, 5, 6, 7, 8)
        store = lambda tt, b: (76 + tt, b * 2048)
    else:
        NT_, NBT = 2, 3
        def reads(buf, ks):
            f = FB[buf]
            A = lambda tt: ['ds_read_b64_tr_b16 v[%d:%d], v%d offset:%d' % (f + 4 * tt + 2 * t, f + 4 * tt + 2 * t + 1, (8, 11)[tt], ks * 2048 + t * 512) for t in range(2)]
            B = lambda b: ['ds_read_b128 v[%d:%d], v%d offset:%d' % (f + 8 + 4 * b, f + 11 + 4 * b, 4 + ks, b * 4096)]
            return A(0) + B(0) + B(1) + B(2) + A(1)
        order = [(0, 0, 2), (0, 1, 3), (0, 2, 4), (1, 0, 6), (1, 1, 6), (1, 2, 6)]
        s3_, sn = {1: 3, 2: 2, 3: 2}, {0: 2, 1: 2, 2: 2, 3: 1}
        addr = (4, 5, 6, 7, 8, 11)
        store = lambda tt, b: (76 + b, tt * 512)
    def acc(tt, b): return ACC + (tt * NBT + b) * 16
    a('s_setprio %d' % cfg.g1prio)
    a('s_barrier')
    prof.stamp(1); prof.cyc(5)
    toks = [a.emit(r) for r in reads(0, 0)]
    cur = 0
    for st in range(NSTAGE):
        for ks in range(4):
            last = (st == NSTAGE - 1 and ks == 3)
            nxt = None if last else reads(1 - cur, (ks + 1) % 4)
            ntoks = []
            f = FB[cur]
            for mi, (tt, b, need_i) in enumerate(order):
                a.wait_lg(toks[need_i])
                c = '0' if (st == 0 and ks == 0) else vr(acc(tt, b), 16)
                a('v_mfma_f32_32x32x16_bf16 %s, %s, %s, %s' % (vr(acc(tt, b), 16), vr(f + 4 * tt, 4), vr(f + 4 * NT_ + 4 * b, 4), c))
                if nxt is not None:
                    if ks == 3:
                        if mi == 0:
                            skip = cfg.nine and st == NSTAGE - 2
                            if not skip: a.wait_all_lg()
                            d = SLOT if (st + 1) % NSLOT else -(NSLOT - 1) * SLOT
                            for r in addr:
                                a('v_add_u32 v%d, 0x%x, v%d' % (r, u32(d), r))
                            if not skip: a('s_barrier')
                            if st == NSTAGE - 2: a('s_setprio %d' % cfg.cprio)
                        sched = s3_
                    else:
                        sched = sn
                    for _ in range(sched.get(mi, 0)):
                        ntoks.append(a.emit(nxt[len(ntoks)]))
                if st == 9 and cfg.areg:
                    n = ks * 6 + mi - 1
                    if 0 <= n < 5 * cfg.areg:
                        k, dl = n // 5, n % 5
                        if dl == 0: a('s_add_u32 s14, s86, %d' % (5120 * k))
                        b_ = 160 + k * 20 + 4 * dl
                        if dl < 4: a('buffer_load_dwordx4 %s, v240, s[48:51], s14 offen offset:%d sc1' % (vr(b_, 4), 1024 * dl))
                        else: a('buffer_load_dwordx4 %s, v241, s[48:51], s14 offen sc1' % vr(b_, 4))
                if (st, ks, mi) == (6, 1, 5):
                    a('v_mov_b32 v9, %d' % (CNT + 32))
                    a('ds_read_b32 v%d, v9' % VN)
                if (st, ks, mi) == (7, 0, 5) and cfg.cclear and not odd:
                    a.emit('s_waitcnt vmcnt(0)')
                    flag_store(a, 's80')
            toks = ntoks
            cur = 1 - cur
    prof.stamp(2); prof.cyc(6)
    for tt in range(NT_):
        for b in range(NBT):
            x = acc(tt, b)
            o = 16 + (tt * NBT + b) * 4
            for p in range(8):
                a('v_mul_f32 v%d, v%d, v%d' % (x + p, x + p, x + 8 + p))
            for p in range(4):
                a('v_cvt_pk_bf16_f32 v%d, v%d, v%d' % (o + p, x + 2 * p, x + 2 * p + 1))
            a('buffer_store_dwordx4 %s, v10, s[44:47], s%d offen offset:%d sc1' % ((vr(o, 4),) + store(tt, b)))

def c_common(a, cfg):
    g2_scalars(a, 84, 85)
    a('s_mul_i32 s86, s85, 245760')
    a('s_mul_i32 s96, s3, 61440')
    a('s_add_u32 s86, s86, s96')
    a('s_mul_i32 s87, s84, 196608')
    a('s_mul_i32 s96, s3, 49152')
    a('s_add_u32 s87, s87, s96')
    a('s_mul_i32 s88, s3, 10240')
    a('s_mul_i32 s83, s84, 384')
    a('s_mul_i32 s96, s3, 96')
    a('s_add_u32 s83, s83, s96')
    a('s_add_u32 s83, s83, %d' % F_H)
    row_off(a, 244, 245, 84, 85, 3)
    a('v_lshlrev_b32 v240, 4, v1')
    a('v_add_u32 v241, 4096, v240')
    lane_min(a, 246, 24)
    a('v_and_b32 v9, 31, v1')
    a('v_lshlrev_b32 v9, 2, v9')
    a('v_add_u32 v9, %d, v9' % CNT)
    a('v_mov_b32 v12, 0')
    a('ds_write_b32 v9, v12')
    a.emit('s_waitcnt lgkmcnt(0)'); a.lgq = []
    srd(a, 44, P_WS, SZ_H, WS_H)
    srd(a, 48, P_WS, SZ_WD, WS_WD)
    srd(a, 56, P_OUT, SZ_X)
    wave_common(a)
    if cfg.rot2:
        rot_off(a, cfg, 95)
        for k in range(12): kap(a, 16 + k, 95, k)
    if cfg.cclear:
        srd(a, 60, P_WS, SZ_Y2, WS_Y2)
        a('s_mul_i32 s80, s4, 20')
        a('s_add_u32 s80, s80, s5')
        a('s_lshl_b32 s80, s80, 2')
        a('s_add_u32 s80, s80, s3')
        a('s_lshl_b32 s81, s80, 12')
        a('s_lshl_b32 s80, s80, 2')
        a('s_add_u32 s80, s80, %d' % F_YC)
        a('s_cmp_ge_u32 s5, 20')
        a('s_cselect_b32 s96, 0x%x, 0' % FAR)
        a('s_or_b32 s80, s80, s96')
        a('s_or_b32 s81, s81, s96')
        for i in range(4): a('v_mov_b32 v%d, -1' % (160 + i))
        for i in range(4):
            a('buffer_store_dwordx4 v[160:163], v240, s[60:63], s81 offen offset:%d sc1' % (1024 * i))

def c_wave(a, cfg, prof):
    h0 = list(a.hist)
    a('s_cmp_ge_u32 s5, 30')
    a('s_cbranch_scc1 LCodd')
    c_setup_main(a)
    c_common(a, cfg)
    c_gemm1(a, cfg, prof, False)
    a('s_branch LCjoin')
    a.hist = h0; a.reset_queues()
    a.label('LCodd')
    c_setup_odd(a)
    c_common(a, cfg)
    c_gemm1(a, cfg, prof, True)
    a.label('LCjoin')
    prof.stamp(3)
    a('v_readfirstlane_b32 s%d, v%d' % (NONCE, VN))
    a.wait_all_vm()
    flag_store(a, '0', 249)
    a('s_setprio 0')
    prof.stamp(7)
    NA, NB = 4, cfg.nb
    NL = 6 if cfg.c0 else 4
    L0 = 12 - NL
    LS = cfg.lsteps
    cblocks = ([4, 5] if cfg.c0 else []) + list(range(LS, 4))
    border = cblocks + list(range(LS))
    BB, ACC2, AB = 8, 72, 160
    gtok = {}
    def acc2(dl, sg): return ACC2 + (sg * 5 + dl) * 4
    def wdoff(k):
        if cfg.rot2:
            a('s_mul_i32 s14, s%d, 5120' % (16 + k))
            a('s_add_u32 s14, s14, s86')
        else: a('s_add_u32 s14, s86, %d' % (5120 * k))
    def lbase(off): return ('v4', off) if off < SLOT else ('v7', off - SLOT)
    def issueA(k):
        b = AB + (k % NA) * 20
        if k >= L0:
            i = border[k - L0]
            if i == 0: lds_word_wait(a, cfg, 3, 16, 5, 6, 'Lwf')
            base, off = lbase(wblk(i))
            for dl in range(5):
                gtok[(k, 'a')] = a.emit('ds_read_b128 %s, %s offset:%d' % (vr(b + 4 * dl, 4), base, off + dl * 1024))
            return
        wdoff(k)
        for dl in range(4):
            a('buffer_load_dwordx4 %s, v240, s[48:51], s14 offen offset:%d sc1' % (vr(b + 4 * dl, 4), 1024 * dl))
        gtok[(k, 'a')] = a.emit('buffer_load_dwordx4 %s, v241, s[48:51], s14 offen sc1' % vr(b + 16, 4))
    def issueB(k):
        b = BB + (k % NB) * 16
        if cfg.rot2:
            a('s_lshl_b32 s15, s%d, 12' % (16 + k))
            a('s_add_u32 s15, s15, s87')
        else: a('s_add_u32 s15, s87, %d' % (4096 * k))
        for sg in range(4):
            gtok[(k, sg)] = a.emit('buffer_load_dwordx4 %s, v240, s[44:47], s15 offen offset:%d sc1' % (vr(b + 4 * sg, 4), 1024 * sg))
    a('v_add_u32 v4, s88, v240')
    a('v_add_u32 v7, %d, v4' % SLOT)
    a('v_mov_b32 v5, %d' % CNT)
    a('v_mov_b32 v6, 1')
    a('v_cmp_eq_u32 vcc, 0, v1')
    a('s_and_saveexec_b64 s[90:91], vcc')
    a('ds_add_u32 v5, v6')
    a('s_mov_b64 exec, s[90:91]')
    lds_spin(a, cfg, 5, 6, 82, 'ge', 4, 'Lcsync')
    lds_word_wait(a, cfg, 3, 48, 5, 6, 'Lwok')
    assert not (cfg.areg and (cfg.ungate or cfg.nine or cfg.rot2))
    for k in range(cfg.areg): gtok[(k, 'a')] = -1
    for k in range(cfg.areg, NA): issueA(k)
    for n, i in enumerate(cblocks):
        wdoff(L0 + n)
        a('s_add_u32 m0, s88, %d' % wblk(i))
        for dl in range(4):
            a('buffer_load_dwordx4 v240, s[48:51], s14 offen offset:%d sc1 lds' % (1024 * dl))
        a('s_add_u32 m0, s88, %d' % (wblk(i) + 4096))
        a('buffer_load_dwordx4 v241, s[48:51], s14 offen sc1 lds')
    t = poll_issue(a, 246, 's83', 247)
    poll_wait(a, cfg, t, 246, 's83', 247, sleep=cfg.hsleep)
    prof.stamp(8)
    for k in range(NB): issueB(k)
    for k in range(12):
        ab_, bb_ = AB + (k % NA) * 20, BB + (k % NB) * 16
        if k >= L0: a.wait_lg(gtok[(k, 'a')])
        else: a.wait_vm(gtok[(k, 'a')])
        for sg in range(4):
            a.wait_vm(gtok[(k, sg)])
            if sg == 0: prof.stamp(10 + k)
            for dl in range(5):
                c = '0' if k == 0 else vr(acc2(dl, sg), 4)
                a('v_mfma_f32_16x16x32_bf16 %s, %s, %s, %s' % (vr(acc2(dl, sg), 4), vr(ab_ + 4 * dl, 4), vr(bb_ + 4 * sg, 4), c))
        if k + NB < 12: issueB(k + NB)
        if k + NA < 12: issueA(k + NA)
        if k == cfg.ygate: lds_word(a, 3, 64, 5, 6)
    prof.stamp(9)
    def blk(w, sg): return w * 10240 + wblk(sg if sg < w else sg - 1)
    a('v_add_u32 v7, %d, v240' % SLOT)
    a('s_nop 7')
    for w in range(3):
        a('s_cmp_eq_u32 s3, %d' % (w + 1))
        a('s_cbranch_scc1 Lfin%d' % (w + 1))
    hist0 = list(a.hist)
    for w in range(4):
        a.hist = list(hist0); a.vmq = []; a.lgq = []
        a.label('Lfin%d' % w)
        a('v_add_u32 v4, %d, v7' % SLOT)
        def ab(off): return ('v7', off - SLOT) if off < 2 * SLOT else ('v4', off - 2 * SLOT)
        for sg in range(4):
            if sg == w: continue
            for dl in range(5):
                r, o = ab(blk(w, sg) + dl * 1024)
                a('ds_write_b128 %s, %s offset:%d' % (r, vr(acc2(dl, sg), 4), o))
        a('v_add_u32 v8, %d, v240' % (PA + w * 5120))
        a('v_lshlrev_b32 v9, 2, v1')
        a('v_add_u32 v9, %d, v9' % (QA + w * QSZ + 3072))
        a.wait_all_lg()
        a('s_barrier')
        prof.stamp(30)
        tl = {}
        tl['omg'] = a.emit('ds_read_b32 v6, v9')
        srcs = [x for x in range(4) if x != w]
        for dl in range(5):
            for si, x in enumerate(srcs):
                r, o = ab(blk(x, w) + dl * 1024)
                tl[(dl, si)] = a.emit('ds_read_b128 %s, %s offset:%d' % (vr(160 + (dl * 4 + si) * 4, 4), r, o))
            tl[(dl, 3)] = a.emit('ds_read_b128 %s, v8 offset:%d' % (vr(160 + (dl * 4 + 3) * 4, 4), dl * 1024))
        for dl in range(5):
            x = acc2(dl, w)
            for si in range(3):
                a.wait_lg(tl[(dl, si)])
                r = 160 + (dl * 4 + si) * 4
                a('v_pk_add_f32 %s, %s, %s' % (P2(x), P2(x), P2(r)))
                a('v_pk_add_f32 %s, %s, %s' % (P2(x + 2), P2(x + 2), P2(r + 2)))
            ga = 160 + (dl * 4 + 3) * 4
            t = 12 + (dl & 1) * 4
            a.wait_lg(tl[(dl, 3)])
            for i in range(4): a('v_fma_f32 v%d, v6, v%d, v%d' % (x + i, x + i, ga + i))
            a('v_cvt_pk_bf16_f32 v%d, v%d, v%d' % (t, x, x + 1))
            a('v_cvt_pk_bf16_f32 v%d, v%d, v%d' % (t + 1, x + 2, x + 3))
            a('buffer_store_dwordx2 %s, v244, s[56:59], 0 offen offset:%d' % (vr(t, 2), dl * 32))
        prof.stamp(4)
        prof.flush(243)
        a('s_endpgm')

class Loader:
    def __init__(self, a, cfg, prof, odd):
        self.a, self.odd, self.tok = a, odd, {}
        if odd:
            a('v_lshrrev_b32 v9, 3, v1')
            a('v_and_b32 v10, 7, v1')
            a('v_lshrrev_b32 v11, 1, v9')
            a('v_xor_b32 v10, v10, v11')
            a('v_lshlrev_b32 v10, 4, v10')
            a('s_mov_b32 s12, 81920')
            a('v_mul_lo_u32 v9, v9, s12')
            a('v_add_u32 v2, v9, v10')
            a('v_xor_b32 v10, 64, v10')
            a('v_add_u32 v3, v9, v10')
            a('v_add_u32 v3, 256, v3')
            a('v_add_u32 v4, 512, v2')
            a('v_add_u32 v5, 512, v3')
            for i in range(3):
                a('v_add_u32 v9, %d, v1' % (64 * i))
                a('v_mul_u32_u24 v10, 5462, v9')
                a('v_lshrrev_b32 v10, 16, v10')
                a('v_mul_u32_u24 v11, 12, v10')
                a('v_sub_u32 v11, v9, v11')
                a('v_mul_u32_u24 v10, 3072, v10')
                a('v_lshl_add_u32 v10, v11, 4, v10')
                a('v_subrev_u32 v%d, %d, v10' % (6 + i, 1024 * i))
            a('s_mov_b32 s12, %d' % (512 * 3 + 16 * 3))
            a('s_lshl_b32 s13, s10, 2')
            a('s_add_u32 s12, s12, s13')
            a('s_mul_i32 s12, s12, 1280')
            a('s_mul_i32 s13, s10, 49152')
            a('s_mul_i32 s14, s8, 192')
            a('s_add_u32 s13, s13, s14')
            a('s_lshl_b32 s14, s10, 12')
            a('s_mul_i32 s15, s10, 3072')
        else:
            a('v_lshrrev_b32 v9, 3, v1')
            a('v_and_b32 v10, 7, v1')
            a('v_lshrrev_b32 v11, 1, v9')
            a('v_xor_b32 v4, v10, v11')
            a('v_lshlrev_b32 v4, 4, v4')
            a('s_mov_b32 s12, 81920')
            a('v_mul_lo_u32 v3, v9, s12')
            a('v_add_u32 v2, v3, v4')
            a('v_xor_b32 v4, 64, v4')
            a('v_add_u32 v3, v3, v4')
            a('v_and_b32 v11, 1, v11')
            a('v_lshlrev_b32 v11, 1, v11')
            a('v_xor_b32 v10, v10, v11')
            a('v_mul_u32_u24 v9, 3072, v9')
            a('v_lshl_add_u32 v4, v10, 4, v9')
            a('v_add_u32 v5, 23552, v4')
            a('v_xor_b32 v6, 64, v4')
            a('v_xor_b32 v7, 64, v5')
            for i in range(6):
                a('s_mul_i32 s12, s10, 6')
                a('s_add_u32 s12, s12, %d' % i)
                a('s_lshr_b32 s13, s12, 3')
                a('s_mul_i32 s14, s7, 3')
                a('s_add_u32 s13, s13, s14')
                a('s_and_b32 s12, s12, 7')
                a('s_lshr_b32 s14, s13, 3')
                a('s_lshl_b32 s14, s14, 9')
                a('s_add_u32 s12, s12, s14')
                a('s_and_b32 s13, s13, 7')
                a('s_lshl_b32 s13, s13, 3')
                a('s_add_u32 s12, s12, s13')
                a('s_mul_i32 s12, s12, 1280')
                a('s_sub_u32 s%d, s12, %d' % (58 + i, 1024 * (i % 3)))
            a('s_mul_i32 s13, s10, 49152')
            a('s_lshl_b32 s14, s8, 7')
            a('s_add_u32 s13, s13, s14')
            a('s_mul_i32 s14, s10, 6144')
            a('s_lshl_b32 s15, s10, 11')
        self.rot = cfg.xrot
        if cfg.xrot:
            a('s_and_b32 s9, s4, 1')
            a('s_mul_i32 s9, s9, 10')
            a('s_mul_i32 s96, s6, 5')
            a('s_add_u32 s9, s9, s96')
            if cfg.xrot == 2:
                a('s_mul_i32 s96, s5, 3')
                a('s_add_u32 s9, s9, s96')
                a('s_and_b32 s9, s9, 31')
            a('s_lshr_b32 s9, s9, 1')
            a('s_cmp_ge_u32 s9, 10')
            a('s_cselect_b32 s96, 10, 0')
            a('s_sub_u32 s9, s9, s96')
            a('s_lshl_b32 s96, s9, 7')
            if odd: a('s_add_u32 s12, s12, s96')
            else:
                a('v_add_u32 v2, s96, v2')
                a('v_add_u32 v3, s96, v3')
            a('s_mul_i32 s96, s9, 196608')
            a('s_add_u32 s13, s13, s96')
        a.emit('s_waitcnt lgkmcnt(0)')
        prof.stamp(3)
        srd(a, 44, P_Q, SZ_X)
        srd(a, 48, P_WG, SZ_W)
        srd(a, 52, P_WU, SZ_W)
        if not odd:
            for i in range(6): a('s_mov_b32 s%d, s%d' % (28 + i, 58 + i))
    def issue(self, st):
        a = self.a
        base = (st % NSLOT) * SLOT
        if self.odd:
            a('s_add_u32 m0, s14, %d' % base)
            for i in range(4):
                a('buffer_load_dwordx4 v%d, s[44:47], s12 offen offset:%d lds' % (2 + i, 1024 * i))
            a('s_add_u32 m0, s15, %d' % (base + OFF_GATE))
            for i in range(3):
                a('buffer_load_dwordx4 v%d, s[48:51], s13 offen offset:%d lds' % (6 + i, 1024 * i))
            a('s_add_u32 m0, s15, %d' % (base + OFF_UP))
            for i in range(3):
                t = a.emit('buffer_load_dwordx4 v%d, s[52:55], s13 offen offset:%d lds' % (6 + i, 1024 * i))
            a('s_add_u32 s12, s12, 128')
        else:
            for i in range(6):
                if i % 3 == 0: a('s_add_u32 m0, s14, %d' % (base + 1024 * i))
                a('buffer_load_dwordx4 v%d, s[44:47], s%d offen offset:%d lds' % (2 + (i & 1), 28 + i, 1024 * (i % 3)))
            a('s_add_u32 m0, s15, %d' % (base + 24576))
            for i in range(2):
                a('buffer_load_dwordx4 v%d, s[48:51], s13 offen offset:%d lds' % (4 + i, 1024 * i))
            a('s_add_u32 m0, s15, %d' % (base + 32768))
            for i in range(2):
                t = a.emit('buffer_load_dwordx4 v%d, s[52:55], s13 offen offset:%d lds' % (6 + i, 1024 * i))
            a('v_add_u32 v2, 0x80, v2')
            a('v_add_u32 v3, 0x80, v3')
        a('s_add_u32 s13, s13, 196608')
        if self.rot:
            a('s_add_u32 s9, s9, 1')
            a('s_cmp_eq_u32 s9, 10')
            a('s_cselect_b32 s96, 1280, 0')
            a('s_cselect_b32 s97, 1966080, 0')
            a('s_sub_u32 s13, s13, s97')
            if self.odd: a('s_sub_u32 s12, s12, s96')
            else:
                a('v_subrev_u32 v2, s96, v2')
                a('v_subrev_u32 v3, s96, v3')
        self.tok[st] = t

def l_wave(a, cfg, prof):
    a('s_setprio %d' % cfg.lprio)
    a('s_and_b32 s10, s3, 3')
    h0 = list(a.hist)
    a('s_cmp_ge_u32 s5, 30')
    a('s_cbranch_scc1 LLodd')
    l_body(a, cfg, prof, False)
    a.hist = h0; a.reset_queues()
    a.label('LLodd')
    l_body(a, cfg, prof, True)

def l_body(a, cfg, prof, odd):
    ld = Loader(a, cfg, prof, odd)
    stage_tok = ld.tok
    issue_stage = ld.issue
    issue_stage(0)
    wave_common(a)
    if cfg.drop:
        a('s_mov_b32 s92, 1'); a('v_mov_b32 v250, 1'); a('s_mov_b32 s86, 0')
    if not odd:
        a('s_lshl_b32 s76, s2, 2')
        a('s_add_u32 s76, s76, s10')
        a('s_cmp_lg_u32 s76, 0')
        a('s_cbranch_scc1 Lno_nonce')
        a('s_memrealtime s[76:77]')
        srd(a, 68, P_DBG, 256)
        a.emit('s_waitcnt lgkmcnt(0)')
        a('s_or_b32 s76, s76, 1')
        a('v_mov_b32 v20, s76')
        a('buffer_store_dword v20, v%d, s[68:71], 0 offen sc1' % VZ)
        a.emit('s_waitcnt vmcnt(0)')
        a.vmq.pop()
        a.label('Lno_nonce')
    issue_stage(1)
    g2_scalars(a, 84, 85)
    a('s_mul_i32 s82, s10, 5120')
    a('s_add_u32 s82, s82, %d' % PA)
    a('s_mul_i32 s83, s10, %d' % QSZ)
    a('s_add_u32 s83, s83, %d' % QA)
    a('s_mul_i32 s88, s85, 48')
    a('s_mul_i32 s96, s10, 12')
    a('s_add_u32 s88, s88, s96')
    a('s_mul_i32 s0, s88, 5120')
    if cfg.rot2: rot_off(a, cfg, 95)
    else: a('s_mov_b32 s95, 0')
    a('s_lshl_b32 s88, s88, 2')
    a('s_add_u32 s88, s88, %d' % F_WD)
    a('s_mul_i32 s1, s10, 10240')
    a('v_lshlrev_b32 v241, 4, v1')
    a('v_add_u32 v245, 4096, v241')
    if not odd:
        a('s_cmp_ge_u32 s5, 20')
        a('s_cbranch_scc1 LtypeB')
    saved = (list(a.vmq), dict(stage_tok), list(a.hist))
    tk = {}
    DROP = {1: ('kv_loads', 'wd_loads'), 2: ('f',), 4: ('ut_store', 'wd_part'), 8: ('y_clear',), 16: ('n_issue', 'n_get', 'd_issue')}
    dn = [n for b, ns in DROP.items() if cfg.drop & b for n in ns]
    class _T(dict):
        def __missing__(self, k): return -1
    tk = _T()
    def interval(i, slices, pre={}):
        slices = {k: [f for f in v if f.__name__ not in dn] for k, v in slices.items()}
        pre = {k: [f for f in v if f.__name__ not in dn] for k, v in pre.items()}
        if cfg.nine and i == 8: a.wait_vm(stage_tok[9])
        a.wait_vm(stage_tok[i])
        if a.lgq: a.wait_all_lg()
        if cfg.lstamp: prof.stamp(10 + i)
        if not (cfg.nine and i == 9): a('s_barrier')
        if cfg.lstamp: prof.stamp(20 + i)
        for f in pre.get(i, []): f()
        if i + NSLOT - 1 < NSTAGE: issue_stage(i + NSLOT - 1)
        for f in slices.get(i, []): f()
    def n_issue():
        a('s_load_dword s%d, s[%d:%d], 0' % (NONCE, P_DBG, P_DBG + 1))
    def n_get():
        lo, ok = newlabel('Ln'), newlabel('Ln_ok')
        a.emit('s_waitcnt lgkmcnt(0)'); a.lgq = []
        a('s_cmp_lg_u32 s%d, 0' % NONCE)
        a('s_cbranch_scc1 %s' % ok)
        a('s_mov_b32 s94, %d' % cfg.spin)
        srd(a, 68, P_DBG, 256)
        a('v_mov_b32 v249, 0')
        a.label(lo)
        a('buffer_load_dword v%d, v249, s[68:71], 0 offen sc1' % VN)
        a.emit('s_waitcnt vmcnt(0)')
        a.vmq.pop()
        a('v_readfirstlane_b32 s%d, v%d' % (NONCE, VN))
        a('s_cmp_lg_u32 s%d, 0' % NONCE)
        a('s_cbranch_scc1 %s' % ok)
        a('s_sleep 8')
        a('s_sub_u32 s94, s94, 1')
        a('s_cmp_lg_u32 s94, 0')
        a('s_cbranch_scc1 %s' % lo)
        a.label(ok)
        a('s_nop 1')
        a('v_mov_b32 v%d, s%d' % (VN, NONCE))
        a('v_mov_b32 v9, %d' % (CNT + 32))
        a('ds_write_b32 v9, v%d' % VN)
    def flag_after(key, sreg):
        def f():
            a.wait_vm(tk[key])
            flag_store(a, sreg)
        return f
    def late_srds():
        srd(a, 48, P_WS, SZ_WD, WS_WD)
        srd(a, 52, P_WS, SZ_G, WS_G)
        srd(a, 64, P_WS, SZ_Y2, WS_Y2)
    def wdl_dma():
        for i in range(cfg.lsteps):
            kap(a, 97, 95, 12 - cfg.lsteps + i)
            a('s_mul_i32 s97, s97, 5120')
            a('s_add_u32 s97, s97, s0')
            a('s_add_u32 m0, s1, %d' % wblk(i))
            for dl in range(4):
                a('buffer_load_dwordx4 v241, s[48:51], s97 offen offset:%d sc1 lds' % (1024 * dl))
            a('s_add_u32 m0, s1, %d' % (wblk(i) + 4096))
            tk['wdl'] = a.emit('buffer_load_dwordx4 v245, s[48:51], s97 offen sc1 lds')
    def wdl_publish():
        a.wait_vm(tk['wdl'])
        lds_word(a, 10, 16, 236, 237)
    def q_loads():
        row_off(a, 238, 239, 84, 85, 10)
        for dl in range(5):
            a('buffer_load_dwordx2 %s, v238, s[44:47], 0 offen offset:%d' % (vr(QV + 2 * dl, 2), dl * 32))
    def tail_issue():
        if cfg.bclear:
            a('s_lshl_b32 s89, s85, 8')
            a('s_add_u32 s89, s89, %d' % F_YC)
            lane_min(a, 247, 48)
            tk['y1'] = poll_issue(a, 247, 's89', 239)
            return
        a('s_mul_i32 s89, s85, 320')
        a('s_add_u32 s89, s89, %d' % F_YC)
        a('v_lshlrev_b32 v247, 2, v1')
        lane_min(a, 240, 16)
        a('v_add_u32 v240, 256, v240')
        tk['y1'] = poll_issue(a, 247, 's89', 239)
        tk['y2'] = poll_issue(a, 240, 's89', 243)
    def tail_check():
        if not cfg.bclear: poll_wait(a, cfg, tk['y2'], 240, 's89', 243)
        poll_wait(a, cfg, tk['y1'], 247, 's89', 239)

    def type_a():
        KR, VR_, WR = 32, 60, 76
        srd(a, 56, P_K, SZ_X); srd(a, 60, P_V, SZ_X); srd(a, 64, P_SHK, 5120)
        a('s_cmp_ge_u32 s5, 10')
        a('s_cselect_b32 s76, 1, 0')
        a('s_cselect_b32 s77, 10, 0')
        a('s_sub_u32 s77, s5, s77')
        a('s_lshl_b32 s78, s4, 1')
        a('s_add_u32 s76, s76, s78')
        a('s_lshl_b32 s87, s77, 2')
        a('s_add_u32 s87, s87, s10')
        a('s_lshl_b32 s89, s87, 4')
        a('s_add_u32 s89, s89, s76')
        a('s_lshl_b32 s89, s89, 2')
        a('s_lshl_b32 s87, s87, 16')
        a('s_lshl_b32 s78, s76, 8')
        a('s_add_u32 s87, s87, s78')
        a('s_lshl_b32 s76, s76, 7')
        a('s_lshl_b32 s78, s10, 5')
        a('s_add_u32 s76, s76, s78')
        a('v_lshrrev_b32 v9, 3, v1')
        a('v_and_b32 v10, 7, v1')
        a('s_lshl_b32 s78, s10, 3')
        a('v_add_u32 v22, s78, v9')
        a('v_lshlrev_b32 v11, 1, v10')
        a('v_xor_b32 v22, v22, v11')
        a('v_lshlrev_b32 v22, 3, v22')
        a('v_lshl_add_u32 v22, v10, 11, v22')
        a('v_add_u32 v22, %d, v22' % PA)
        a('v_lshlrev_b32 v9, 2, v9')
        a('v_add_u32 v9, s76, v9')
        a('v_mul_u32_u24 v232, 1280, v9')
        a('v_lshl_add_u32 v232, v10, 4, v232')
        a('s_lshl_b32 s78, s77, 7')
        a('v_add_u32 v232, s78, v232')
        a('v_subrev_u32 v233, 3840, v232')
        a('v_subrev_u32 v234, 2560, v232')
        a('v_subrev_u32 v235, 1280, v232')
        a('s_lshl_b32 s78, s77, 9')
        a('v_lshlrev_b32 v236, 6, v10')
        a('v_add_u32 v236, s78, v236')
        a('s_mul_i32 s11, s4, 20')
        a('s_add_u32 s11, s11, s5')
        a('s_lshl_b32 s11, s11, 2')
        a('s_add_u32 s11, s11, s10')
        a('s_lshl_b32 s81, s11, 12')
        a('s_lshl_b32 s80, s11, 2')
        a('s_add_u32 s80, s80, %d' % F_YC)
        a('s_lshr_b32 s76, s11, 4')
        a('s_lshl_b32 s76, s76, 6')
        a('s_sub_u32 s77, s88, 64')
        a('v_min_u32 v240, %d, v1' % (31 if cfg.bclear else 27))
        a('v_lshlrev_b32 v240, 2, v240')
        a('v_mov_b32 v9, s76')
        a('v_mov_b32 v10, s77')
        if cfg.bclear:
            a('s_lshl_b32 s78, s5, 2')
            a('s_add_u32 s78, s78, s10')
            a('s_lshl_b32 s78, s78, 2')
            a('s_mul_i32 s78, s78, 9363')
            a('s_lshr_b32 s78, s78, 16')
            a('s_lshl_b32 s79, s4, 6')
            a('s_add_u32 s78, s78, s79')
            a('s_lshl_b32 s78, s78, 2')
            a('s_add_u32 s78, s78, %d' % (F_YC - 112))
            a('v_min_u32 v240, 29, v1')
            a('v_lshlrev_b32 v240, 2, v240')
            a('v_mov_b32 v11, s78')
            a('v_cmp_gt_u32 vcc, 28, v1')
            a('v_cndmask_b32 v10, v11, v10, vcc')
        a('v_cmp_gt_u32 vcc, 16, v1')
        a('v_cndmask_b32 v9, v10, v9, vcc')
        a('v_add_u32 v240, v240, v9')
        a('s_and_b32 s86, s11, 0xfffffffe')
        a('s_lshl_b32 s86, s86, 1')
        a('s_load_dword s86, s[26:27], s86')
        a.emit('s_waitcnt lgkmcnt(0)')
        conv_setup(a, cfg)
        def kv_loads():
            for i in range(4):
                a('buffer_load_dwordx4 %s, v232, s[56:59], 0 offen offset:%d' % (vr(KR + 12 + 4 * i, 4), 1280 * i))
            for i in range(4):
                a('buffer_load_dwordx4 %s, v232, s[60:63], 0 offen offset:%d' % (vr(VR_ + 4 * i, 4), 1280 * i))
            a('buffer_load_dwordx4 %s, v233, s[56:59], 0 offen' % vr(KR, 4))
            a('buffer_load_dwordx4 %s, v234, s[56:59], 0 offen' % vr(KR + 4, 4))
            a('buffer_load_dwordx4 %s, v235, s[56:59], 0 offen' % vr(KR + 8, 4))
            for i in range(4):
                tk['kv'] = a.emit('buffer_load_dwordx4 %s, v236, s[64:67], 0 offen offset:%d' % (vr(WR + 4 * i, 4), 16 * i))
        def ut_srd(): srd(a, 56, P_WS, SZ_UT, WS_UT)
        def kv_part(cp):
            def f():
                a.wait_vm(tk['kv'])
                U = 92
                for r in range(7):
                    unpack_lo(a, U + 2 * r, KR + 4 * r + cp); unpack_hi(a, U + 2 * r + 1, KR + 4 * r + cp)
                for r in range(4):
                    unpack_lo(a, U + 14 + 2 * r, VR_ + 4 * r + cp); unpack_hi(a, U + 15 + 2 * r, VR_ + 4 * r + cp)
                for h in range(2):
                    unpack_lo(a, U + 22 + h, WR + 4 * cp + 2 * h); unpack_hi(a, U + 24 + h, WR + 4 * cp + 2 * h)
                    unpack_lo(a, U + 26 + h, WR + 4 * cp + 2 * h + 1); unpack_hi(a, U + 28 + h, WR + 4 * cp + 2 * h + 1)
                AC = U + 30
                for i in range(8):
                    a('v_mul_f32 v%d, v%d, v%d' % (AC + i, U + i, U + 28 + (i & 1)))
                for tap in (2, 1, 0):
                    for i in range(8):
                        a('v_fmac_f32 v%d, v%d, v%d' % (AC + i, U + 2 * (3 - tap) + i, U + 22 + 2 * tap + (i & 1)))
                for i in range(8):
                    a('v_mul_f32 v%d, v%d, v%d' % (AC + i, AC + i, U + 14 + i))
                O = 24 + (cp & 1) * 4
                for h in range(2):
                    a('v_cvt_pk_bf16_f32 v%d, v%d, v%d' % (O + 2 * h, AC + h, AC + 2 + h))
                    a('v_cvt_pk_bf16_f32 v%d, v%d, v%d' % (O + 2 * h + 1, AC + 4 + h, AC + 6 + h))
                for h in range(2):
                    a('ds_write_b64 v22, %s offset:%d' % (vr(O + 2 * h, 2), 256 * (2 * cp + h)))
            return f
        def ut_store():
            a('v_lshrrev_b32 v9, 4, v1')
            a('v_and_b32 v10, 15, v1')
            a('v_lshlrev_b32 v11, 12, v9')
            a('v_lshl_add_u32 v11, v10, 4, v11')
            a('s_lshl_b32 s76, s10, 1')
            a('s_lshl_b32 s77, s10, 12')
            a('s_add_u32 s77, s77, %d' % PA)
            for hh in range(2):
                a('s_add_u32 s78, s76, %d' % hh)
                a('v_xor_b32 v12, s78, v10')
                a('v_lshlrev_b32 v12, 4, v12')
                a('v_lshl_add_u32 v12, v9, 8, v12')
                a('v_add_u32 v%d, s77, v12' % (24 + hh))
            tl = [a.emit('ds_read_b128 %s, v%d offset:%d' % (vr(40 + 4 * i, 4), 24 + (i >> 1), 1024 * i)) for i in range(4)]
            for i in range(4):
                a.wait_lg(tl[i])
                a('s_add_u32 s76, s87, %d' % (16384 * i))
                tk['ut'] = a.emit('buffer_store_dwordx4 %s, v11, s[56:59], s76 offen sc1' % vr(40 + 4 * i, 4))
        def d_issue():
            a('s_and_b32 s86, s11, 0xfffffffe')
            a('s_lshl_b32 s86, s86, 1')
            a('s_load_dword s86, s[26:27], s86')
        def y_clear():
            srd(a, 64, P_WS, SZ_Y2, WS_Y2)
            for i in range(4): a('v_mov_b32 v%d, -1' % (232 + i))
            for i in range(4):
                tk['yc'] = a.emit('buffer_store_dwordx4 v[232:235], v241, s[64:67], s81 offen offset:%d sc1' % (1024 * i))
        def p_dma():
            srd(a, 60, P_SSMK, SZ_X)
            a('v_bfe_u32 v9, v1, 4, 1')
            a('v_lshlrev_b32 v9, 1, v9')
            a('v_xor_b32 v9, v9, v1')
            a('v_lshlrev_b32 v9, 4, v9')
            a('s_add_u32 m0, s82, 512')
            for i in range(4):
                a('buffer_load_dwordx4 v9, s[60:63], s81 offen offset:%d lds' % (1024 * i))
        def pads():
            for i in range(4): a('v_mov_b32 v%d, 0' % (32 + i))
            a('v_and_b32 v10, 31, v1')
            a('v_lshlrev_b32 v10, 4, v10')
            a('v_add_u32 v10, s82, v10')
            a('ds_write_b128 v10, v[32:35]')
            a('v_and_b32 v10, 3, v1')
            a('v_lshlrev_b32 v10, 4, v10')
            a('v_add_u32 v10, s83, v10')
            a('ds_write_b128 v10, v[32:35]')
        K = cfg.kv_at
        if cfg.early:
            slA = {1: [kv_part(1)], 2: [kv_part(3), n_issue], 3: [ut_srd, ut_store], 5: [flag_after('ut', 's89')], 7: [late_srds]}
        else:
            slA = {K: [kv_loads], K + 2: [kv_part(1)], K + 3: [kv_part(3), n_issue], K + 4: [ut_srd, ut_store], 6: [flag_after('ut', 's89')],
                   7: [late_srds]}
        slA.setdefault(8 if cfg.ungate else 7, [])
        fpoll = lambda: tk.__setitem__('f', poll_issue(a, 240, '0', 243))
        def q_dma():
            poll_wait(a, cfg, tk['f'], 240, '0', 243)
            a('s_add_u32 m0, s83, 64')
            for i in range(4):
                tk['q'] = a.emit('buffer_load_dwordx4 v241, s[56:59], s81 offen offset:%d sc1 lds' % (1024 * i))
            lds_word(a, 10, 48, 236, 237)
        slA[8] = [p_dma] + ([fpoll] if cfg.ungate else [q_dma])
        if not cfg.ungate: slA[7].append(fpoll)
        if not (cfg.cclear or cfg.bclear):
            slA.setdefault(cfg.late, []).append(y_clear)
            slA[cfg.late + 2].insert(0, flag_after('yc', 's80'))
        if cfg.kvfirst:
            kv_loads(); slA[0] = []
        prA = {K + 2: [kv_part(0)], K + 3: [kv_part(2)], 5: [n_get], 6 + K: [pads]}
        if cfg.early:
            kv_loads()
            prA = {1: [kv_part(0)], 2: [kv_part(2)], 4: [n_get], 6: [pads]}
        assert K <= 1
        for i in range(NSTAGE): interval(i, slA, prA)
        if cfg.ungate: q_dma()
        wdl_dma()
        q_loads()
        tail_issue()
        a('s_setprio %d' % cfg.vprio)
        a.wait_vm(tk['q'])
        gen = conv_main(a, cfg, prof)
        for _ in range(cfg.pub_at): next(gen)
        wdl_publish()
        for _ in gen: pass
        tail_check()
        a('s_setprio 0')
        a('s_branch Lfetch')

    if not odd: type_a()

    a.vmq, a.hist = list(saved[0]), list(saved[2])
    stage_tok.clear(); stage_tok.update(saved[1])
    a.lgq = []
    if not odd: a.label('LtypeB')
    srd(a, 56, P_WD, SZ_W)
    srd(a, 68, P_GW, 1280)
    a('s_mul_i32 s78, s4, 12')
    a('s_add_u32 s78, s78, s5')
    a('s_sub_u32 s78, s78, 20')
    a('s_lshl_b32 s78, s78, 2')
    a('s_add_u32 s78, s78, s10')
    a('s_lshr_b32 s79, s78, 3')
    a('s_and_b32 s78, s78, 7')
    a('s_mul_i32 s89, s78, 48')
    a('s_add_u32 s89, s89, s79')
    a('s_lshl_b32 s89, s89, 2')
    a('s_add_u32 s89, s89, %d' % F_WD)
    a('s_mul_i32 s80, s79, 40960')
    a('s_mul_i32 s77, s78, 160')
    a('s_add_u32 s80, s80, s77')
    a('s_mul_i32 s81, s78, 245760')
    a('s_mul_i32 s77, s79, 5120')
    a('s_add_u32 s81, s81, s77')
    lane_min(a, 240, 12)
    def wd_loads():
        for i in range(5):
            a('v_add_u32 v9, %d, v1' % (64 * i))
            a('v_mul_u32_u24 v10, 6554, v9')
            a('v_lshrrev_b32 v10, 16, v10')
            a('v_mul_u32_u24 v11, 10, v10')
            a('v_sub_u32 v11, v9, v11')
            a('v_mul_u32_u24 v10, 1280, v10')
            a('v_lshl_add_u32 v10, v11, 4, v10')
            a('s_add_u32 m0, s82, %d' % (1024 * i))
            tk['wd'] = a.emit('buffer_load_dwordx4 v10, s[56:59], s80 offen lds')
    def wd_part():
        a('v_lshrrev_b32 v9, 5, v1')
        a('v_lshlrev_b32 v9, 4, v9')
        a('v_bfe_u32 v10, v1, 2, 3')
        a('v_add_u32 v9, v9, v10')
        a('v_mul_u32_u24 v9, 160, v9')
        a('v_and_b32 v10, 3, v1')
        a('v_lshl_add_u32 v9, v10, 3, v9')
        a('v_add_u32 v9, s82, v9')
        srd(a, 60, P_WS, SZ_WD, WS_WD)
        a('s_add_u32 s80, s81, 4096')
        a.wait_vm(tk['wd'])
        for dl in range(5):
            for t in range(2):
                a('ds_read_b64_tr_b16 v[%d:%d], v9 offset:%d' % (32 + 4 * dl + 2 * t, 33 + 4 * dl + 2 * t, t * 1280 + dl * 32))
        a.wait_all_lg()
        for dl in range(4):
            a('buffer_store_dwordx4 %s, v241, s[60:63], s81 offen offset:%d sc1' % (vr(32 + 4 * dl, 4), 1024 * dl))
        tk['wds'] = a.emit('buffer_store_dwordx4 %s, v241, s[60:63], s80 offen sc1' % vr(48, 4))
    GX, GW = 56, 104
    gtk = []
    def g_loads():
        srd(a, 56, P_GW, 1280)
        a('s_sub_u32 s76, s5, 20')
        a('s_lshl_b32 s76, s76, 2')
        a('s_add_u32 s76, s76, s10')
        a('s_cmp_ge_u32 s76, 32')
        a('s_cselect_b32 s86, 0x%x, 0' % FAR)
        a('s_and_b32 s77, s4, 1')
        a('s_lshl_b32 s77, s77, 2')
        a('s_lshr_b32 s78, s76, 3')
        a('s_add_u32 s77, s77, s78')
        a('s_and_b32 s76, s76, 7')
        a('s_lshl_b32 s78, s6, 9')
        a('s_lshl_b32 s79, s77, 3')
        a('s_add_u32 s78, s78, s79')
        a('s_add_u32 s78, s78, s76')
        a('s_mul_i32 s78, s78, 1280')
        a('s_or_b32 s78, s78, s86')
        a('v_lshrrev_b32 v9, 5, v1')
        a('v_and_b32 v10, 31, v1')
        a('v_lshlrev_b32 v11, 4, v10')
        a('s_mov_b32 s79, 81920')
        a('v_mul_lo_u32 v12, v9, s79')
        a('v_add_u32 v12, v12, v11')
        a('v_cmp_gt_u32 vcc, 16, v10')
        a('v_mov_b32 v15, 0x%x' % OOB)
        a('v_cndmask_b32 v13, v15, v12, vcc')
        for i in range(3):
            a('buffer_load_dwordx4 %s, v11, s[56:59], 0 offen offset:%d' % (vr(GW + 4 * i, 4), 512 * i))
        for p in range(4):
            a('buffer_load_dwordx4 %s, v12, s[44:47], s78 offen' % vr(GX + 12 * p, 4))
            a('buffer_load_dwordx4 %s, v12, s[44:47], s78 offen offset:512' % vr(GX + 12 * p + 4, 4))
            gtk.append(a.emit('buffer_load_dwordx4 %s, v13, s[44:47], s78 offen offset:1024' % vr(GX + 12 * p + 8, 4)))
            a('s_add_u32 s78, s78, 163840')
        a('s_lshl_b32 s78, s6, 3')
        a('s_add_u32 s78, s78, s77')
        a('s_lshl_b32 s78, s78, 3')
        a('s_add_u32 s78, s78, s76')
        a('s_lshl_b32 s80, s78, 6')
        a('s_or_b32 s80, s80, s86')
        a('v_lshlrev_b32 v14, 3, v9')
        a('v_cmp_eq_u32 vcc, 31, v10')
        a('v_cndmask_b32 v14, v15, v14, vcc')
    def g_compute():
        for p in range(4):
            a.wait_vm(gtk[p])
            a('v_mov_b32 v%d, 0' % (24 + p))
            for i in range(12):
                a('v_dot2_f32_bf16 v%d, v%d, v%d, v%d' % (24 + p, GX + 12 * p + i, GW + i, 24 + p))
        a('s_nop 2')
        for sh in (1, 2, 4, 8):
            for p in range(4):
                a('v_add_f32_dpp v%d, v%d, v%d row_shr:%d row_mask:0xf bank_mask:0xf bound_ctrl:0' % (24 + p, 24 + p, 24 + p, sh))
        for p in range(4):
            a('v_add_f32_dpp v%d, v%d, v%d row_bcast:15 row_mask:0xa bank_mask:0xf' % (24 + p, 24 + p, 24 + p))
        for p in range(4):
            r = 24 + p
            a('v_cvt_pk_bf16_f32 v%d, v%d, v%d' % (r, r, r))
            a('v_and_b32 v%d, 0xffff0000, v%d' % (r, r))
            a('v_mul_f32 v%d, 0xbfb8aa3b, v%d' % (r, r))
            a('v_exp_f32 v%d, v%d' % (r, r))
            a('v_add_f32 v%d, 1.0, v%d' % (r, r))
            a('v_rcp_f32 v%d, v%d' % (r, r))
            a('v_cvt_pk_bf16_f32 v%d, v%d, v%d' % (r, r, r))
            a('v_and_b32 v%d, 0xffff0000, v%d' % (29 + 2 * p, r))
            a('v_mov_b32 v%d, v%d' % (28 + 2 * p, VN))
            a('buffer_store_dwordx2 v[%d:%d], v14, s[52:55], s80 offen offset:%d sc1' % (28 + 2 * p, 29 + 2 * p, 16 * p))
    def b_clear():
        srd(a, 64, P_WS, SZ_Y2, WS_Y2)
        a('s_sub_u32 s76, s5, 20')
        a('s_lshl_b32 s76, s76, 2')
        a('s_add_u32 s76, s76, s10')
        a('s_lshl_b32 s77, s4, 6')
        a('s_add_u32 s87, s76, s77')
        a('s_lshl_b32 s87, s87, 2')
        a('s_add_u32 s87, s87, %d' % F_YC)
        a('s_mul_i32 s76, s76, 7')
        for i in range(4): a('v_mov_b32 v%d, -1' % (232 + i))
        for i in range(7):
            a('s_add_u32 s77, s76, %d' % i)
            a('s_cmp_ge_u32 s77, 320')
            a('s_cselect_b32 s78, 0x%x, 0' % FAR)
            a('s_lshl_b32 s77, s77, 10')
            a('s_mul_i32 s79, s4, 327680')
            a('s_add_u32 s77, s77, s79')
            a('s_or_b32 s77, s77, s78')
            tk['yc'] = a.emit('buffer_store_dwordx4 v[232:235], v241, s[64:67], s77 offen sc1')
    W = cfg.wd_at
    slB = {}
    for i, f in ((W, wd_loads), (W + 2, wd_part), (1, n_issue), (W + 4, flag_after('wds', 's89')), (7, late_srds)):
        slB.setdefault(i, []).append(f)
    fpollB = lambda: tk.__setitem__('f', poll_issue(a, 240, 's88', 243))
    fwaitB = lambda: (poll_wait(a, cfg, tk['f'], 240, 's88', 243), lds_word(a, 10, 48, 236, 237))
    if cfg.ungate: slB[8] = [fpollB]
    else: slB[7].append(fpollB); slB[8] = [g_loads, fwaitB]
    if cfg.bclear:
        slB.setdefault(0, []).append(b_clear)
        slB.setdefault(3, []).append(flag_after('yc', 's87'))
    for i in range(NSTAGE): interval(i, slB, {3: [n_get]})
    if cfg.ungate:
        fwaitB(); g_loads()
    wdl_dma()
    g_compute()
    q_loads()
    tail_issue()
    a('s_setprio 0')
    wdl_publish()
    lds_word_wait(a, cfg, 10, 0, 236, 237, 'Ldummy') if False else None
    tail_check()
    if not odd:
        a('s_branch Lfetch')
        return
    a.pad()
    a.label('Lfetch')
    a.reset_queues()
    a('s_mul_i32 s11, s85, 327680')
    a('s_lshr_b32 s12, s84, 3')
    a('s_lshl_b32 s12, s12, 10')
    a('s_add_u32 s11, s11, s12')
    a('s_and_b32 s12, s84, 7')
    a('s_lshl_b32 s12, s12, 7')
    a('s_add_u32 s11, s11, s12')
    a('s_lshl_b32 s12, s10, 5')
    a('s_add_u32 s11, s11, s12')
    a('v_lshrrev_b32 v24, 1, v1')
    a('v_lshlrev_b32 v24, 12, v24')
    a('v_and_b32 v25, 1, v1')
    a('v_lshl_add_u32 v24, v25, 4, v24')
    a('v_add_u32 v25, 0x20000, v24')
    a('v_add_u32 v26, 0x40000, v24')
    a('v_cmp_gt_u32 vcc, 32, v1')
    a('v_mov_b32 v27, 0x%x' % OOB)
    a('v_cndmask_b32 v26, v27, v26, vcc')
    a('v_lshlrev_b32 v28, 2, v1')
    a('s_add_u32 s12, s83, 3072')
    a('v_add_u32 v28, s12, v28')
    a('v_add_u32 v29, s83, v241')
    a('v_lshlrev_b32 v30, 3, v1')
    a('v_add_u32 v30, s83, v30')
    a('v_add_u32 v31, s82, v241')
    a('s_lshl_b32 s96, s84, 6')
    a('s_lshl_b32 s97, s10, 4')
    a('s_add_u32 s96, s96, s97')
    a('v_and_b32 v33, 15, v1')
    a('v_add_u32 v33, s96, v33')
    a('v_lshlrev_b32 v33, 3, v33')
    lds_word_wait(a, cfg, 10, 64, 236, 237, 'Lgate2')
    prof.stamp(6)
    YV = 40
    lo, ok = newlabel('Ly'), newlabel('Ly_ok')
    a('s_mov_b32 s94, %d' % cfg.spin)
    a.label(lo)
    for i in range(3):
        a('buffer_load_dwordx4 %s, v%d, s[64:67], s11 offen sc1' % (vr(YV + 4 * i, 4), 24 + i))
    a('buffer_load_dwordx2 v[34:35], v33, s[52:55], 0 offen sc1')
    a.wait_all_vm()
    a('v_max3_u32 v27, v%d, v%d, v%d' % (YV, YV + 1, YV + 2))
    for i in range(3, 11, 2):
        a('v_max3_u32 v27, v27, v%d, v%d' % (YV + i, YV + i + 1))
    a('v_max_u32 v27, v27, v%d' % (YV + 11))
    a('v_cmp_eq_u32 vcc, -1, v27')
    a('v_cmp_ne_u32 s[96:97], s%d, v34' % NONCE)
    a('s_or_b64 vcc, vcc, s[96:97]')
    a('s_cbranch_scc0 %s' % ok)
    a('s_sleep %d' % cfg.ysleep)
    a('s_sub_u32 s94, s94, 1')
    a('s_cmp_lg_u32 s94, 0')
    a('s_cbranch_scc1 %s' % lo)
    a.label(ok)
    prof.stamp(7)
    a('v_mov_b32 v%d, v35' % GV)
    a('ds_write_b128 v29, %s' % vr(YV, 4))
    a('ds_write_b128 v29, %s offset:1024' % vr(YV + 4, 4))
    a('ds_write_b128 v29, %s offset:2048' % vr(YV + 8, 4))
    a('v_sub_f32 v32, 1.0, v%d' % GV)
    a('v_cvt_pk_bf16_f32 v32, v32, v32')
    a('v_and_b32 v32, 0xffff0000, v32')
    a('ds_write_b32 v28, v32')
    for dl in range(5):
        x = 72 + 4 * dl
        unpack_lo(a, x, QV + 2 * dl); unpack_hi(a, x + 1, QV + 2 * dl); unpack_lo(a, x + 2, QV + 2 * dl + 1); unpack_hi(a, x + 3, QV + 2 * dl + 1)
        for i in range(4): a('v_mul_f32 v%d, v%d, v%d' % (x + i, GV, x + i))
    a.wait_all_lg()
    tl = [a.emit('ds_read_b64_tr_b16 %s, v30 offset:%d' % (vr(56 + 2 * dl, 2), dl * 512)) for dl in range(5)]
    for dl in range(5):
        a.wait_lg(tl[dl])
        x = 72 + 4 * dl; y = 96
        unpack_lo(a, y, 56 + 2 * dl); unpack_hi(a, y + 1, 56 + 2 * dl); unpack_lo(a, y + 2, 57 + 2 * dl); unpack_hi(a, y + 3, 57 + 2 * dl)
        for i in range(4): a('v_mul_f32 v%d, v%d, v%d' % (x + i, x + i, y + i))
        a('ds_write_b128 v31, %s offset:%d' % (vr(x, 4), dl * 1024))
    a.wait_all_lg()
    a('s_barrier')
    prof.stamp(8)
    prof.flush(243)

def generate(cfg):
    LOCAL[0] = cfg.local
    a = Asm()
    a.raw('.amdgcn_target "amdgcn-amd-amdhsa--gfx950"')
    a.raw('.text')
    kn = NAME + '_kernel'
    kernel_header(a, kn)
    prof = Prof(a, cfg, 0)
    prof.start()
    a('s_cmp_ge_u32 s2, 256')
    a('s_cbranch_scc1 Ldone')
    load_kernargs(a)
    a('v_lshrrev_b32 v2, 6, v0')
    a('v_and_b32 v1, 63, v0')
    a('v_readfirstlane_b32 s3, v2')
    a('s_and_b32 s4, s2, 7')
    a('s_lshr_b32 s5, s2, 3')
    a('s_lshr_b32 s6, s4, 1')
    a('s_mul_i32 s9, s5, 13108')
    a('s_lshr_b32 s9, s9, 16')
    a('s_mul_i32 s7, s9, 5')
    a('s_sub_u32 s7, s5, s7')
    a('s_and_b32 s8, s4, 1')
    a('s_mul_i32 s10, s8, 5')
    a('s_add_u32 s7, s7, s10')
    a('s_lshl_b32 s10, s8, 1')
    a('s_mul_i32 s8, s6, 6')
    a('s_add_u32 s8, s8, s9')
    a('s_lshl_b32 s11, s6, 2')
    a('s_add_u32 s10, s10, s11')
    a('s_add_u32 s10, s10, s5')
    a('s_sub_u32 s10, s10, 30')
    a('s_cmp_ge_u32 s5, 30')
    a('s_cselect_b32 s8, s10, s8')
    a('s_cselect_b32 s7, 15, s7')
    a('s_cmp_lt_u32 s3, 4')
    a('s_cbranch_scc1 Lcwave')
    h0 = list(a.hist)
    l_wave(a, cfg, prof)
    a.label('Ldone')
    a('s_endpgm')
    a.hist = h0; a.reset_queues()
    a.label('Lcwave')
    c_wave(a, cfg, prof)
    hdr = open('cdna_kernels/%s.s.ref' % NAME).read().split('; Override launch')[0]
    hdr += '; generated by dev/gen11.py (hand-written generator)\n'
    hdr += '; @launch grid=(256,1,1) block=(512,1,1) lds=%d\n' % LDS
    return hdr + a.text() + kernel_desc(kn, 252 if not cfg.prof else 256)

if __name__ == '__main__':
    cfg = Cfg()
    out = sys.argv[1]
    for kv in sys.argv[2:]:
        k, v = kv.split('=')
        assert hasattr(cfg, k), k
        setattr(cfg, k, int(v))
    open(out, 'w').write(generate(cfg))
```

```python
import sys
from asmlib import *
from gen2 import (NAME, WS_H, SZ_H, WS_WD, SZ_WD, WS_UT, SZ_UT, WS_Y2, SZ_Y2, WS_G, SZ_G, WS_PROF, SZ_X, SZ_W, OOB,
                  P_Q, P_K, P_V, P_SHK, P_SSMK, P_SSMD, P_BX, P_WG, P_WU, P_WD, P_GW, P_OUT, P_DBG, P_WS,
                  load_kernargs, srd, Prof, kernel_header, kernel_desc, unpack_lo, unpack_hi, P2, u32)
import gen8
from gen8 import (newlabel, row_off, conv_setup, conv_main, FAR, QV, GV, SF, NONCE, VZ, VN, flag_store, poll_issue, poll_wait,
                  lane_min, lds_spin)

SZ_G = 16384
WS_F = WS_G + SZ_G
F_UT, F_H, F_WD, F_G, F_YC = 0, 2560, 14848, 16384, 17408
SZ_F = 19968

class Cfg:
    prof = 0
    lstamp = 1
    spin = 200000
    g1prio = 1
    cprio = 2
    lprio = 2
    vprio = 1
    ysleep = 8
    hsleep = 2
    nb = 4
    pub_at = 24
    local = 0
    dstore = 0
    ygate = 5
    late = 5
    kvfirst = 0
    rot2 = 0
    ungate = 0
    na = 4
    clr_at = 0
    cotouch = 0
    pollat = 99
    quiet = 1
    fin = 1
    areg = 0
    nine = 0
    early = 0
    bclear = 1
    xrot = 1
    kv_at = 0
    wd_at = 1
    cclear = 0
    drop = 0
    lsteps = 0
    c0 = 1

SLOT = 41088
OFF_GATE, OFF_UP = 16384, 16384 + 12320
NSTAGE, NSLOT = 10, 3
PA = NSLOT * SLOT
QA = PA + 4 * 5120
QSZ = 4224
CNT = QA + 4 * QSZ
LDS = CNT + 128
def wblk(i): return [SLOT, SLOT + 5120, 2 * SLOT, 2 * SLOT + 5120, 0, 5120][i]

def wave_common(a):
    srd(a, SF, P_WS, SZ_F, WS_F)
    a('v_cmp_eq_u32 vcc, 0, v1')
    a('v_mov_b32 v%d, 0x%x' % (VZ, OOB))
    a('v_cndmask_b32 v%d, v%d, 0, vcc' % (VZ, VZ))

LOCAL = [0]
def g2_scalars(a, st, dt):
    if not LOCAL[0]: return gen8.g2_scalars(a, st, dt)
    a('s_lshl_b32 s%d, s4, 2' % st)
    a('s_and_b32 s%d, s5, 3' % dt)
    a('s_add_u32 s%d, s%d, s%d' % (st, st, dt))
    a('s_lshr_b32 s%d, s5, 2' % dt)

def rot_off(a, cfg, d):
    if cfg.rot2 == 1:
        a('s_and_b32 s%d, s85, 3' % d)
        a('s_mul_i32 s%d, s%d, 6' % (d, d))
        a('s_and_b32 s96, s84, 7')
        a('s_mul_i32 s96, s96, 3')
        a('s_add_u32 s%d, s%d, s96' % (d, d))
        a('s_lshr_b32 s%d, s%d, 1' % (d, d))
    else:
        a('s_and_b32 s%d, s85, 3' % d)
        a('s_mul_i32 s%d, s%d, 3' % (d, d))
    a('s_cmp_ge_u32 s%d, 12' % d)
    a('s_cselect_b32 s96, 12, 0')
    a('s_sub_u32 s%d, s%d, s96' % (d, d))
def kap(a, d, off, k):
    a('s_add_u32 s%d, s%d, %d' % (d, off, k))
    a('s_cmp_ge_u32 s%d, 12' % d)
    a('s_cselect_b32 s96, 12, 0')
    a('s_sub_u32 s%d, s%d, s96' % (d, d))

def lds_word(a, sw, off, t0, t1):
    a('s_lshl_b32 s96, s%d, 2' % sw)
    a('s_add_u32 s96, s96, %d' % (CNT + off))
    a('v_mov_b32 v%d, s96' % t0)
    a('v_mov_b32 v%d, 1' % t1)
    a('ds_write_b32 v%d, v%d' % (t0, t1))
def lds_word_wait(a, cfg, sw, off, t0, t1, name):
    a('s_lshl_b32 s96, s%d, 2' % sw)
    a('s_add_u32 s96, s96, %d' % (CNT + off))
    a('v_mov_b32 v%d, s96' % t0)
    lds_spin(a, cfg, t0, t1, 96, 'eq', 1, name)

def c_setup_odd(a):
    a('s_and_b32 s10, s3, 1')
    a('s_lshr_b32 s11, s3, 1')
    a('v_and_b32 v2, 31, v1')
    a('v_lshrrev_b32 v3, 5, v1')
    a('v_lshrrev_b32 v9, 1, v2')
    a('v_and_b32 v9, 7, v9')
    a('v_xor_b32 v9, v9, v3')
    a('v_lshlrev_b32 v9, 4, v9')
    a('v_lshl_add_u32 v9, v2, 7, v9')
    a('s_lshl_b32 s12, s11, 13')
    a('v_add_u32 v4, s12, v9')
    a('v_xor_b32 v5, 32, v4')
    a('v_xor_b32 v6, 64, v4')
    a('v_xor_b32 v7, 96, v4')
    a('v_bfe_u32 v9, v1, 4, 1')
    a('v_mul_u32_u24 v8, 12320, v9')
    a('v_bfe_u32 v9, v1, 2, 2')
    a('v_lshl_add_u32 v9, v3, 3, v9')
    a('v_mul_u32_u24 v9, 192, v9')
    a('v_add_u32 v8, v8, v9')
    a('v_and_b32 v9, 3, v1')
    a('v_lshl_add_u32 v8, v9, 3, v8')
    a('s_mul_i32 s12, s10, 96')
    a('s_add_u32 s12, s12, %d' % OFF_GATE)
    a('v_add_u32 v8, s12, v8')
    a('v_lshrrev_b32 v9, 4, v2')
    a('v_lshlrev_b32 v10, 10, v9')
    a('v_lshl_add_u32 v10, v3, 8, v10')
    a('v_and_b32 v9, 15, v2')
    a('v_lshl_add_u32 v10, v9, 4, v10')
    a('s_lshl_b32 s12, s7, 1')
    a('s_add_u32 s12, s12, s11')
    a('s_mul_i32 s13, s8, 6')
    a('s_mul_i32 s14, s10, 3')
    a('s_add_u32 s13, s13, s14')
    a('s_mul_i32 s79, s12, 96')
    a('s_add_u32 s79, s79, s13')
    a('s_lshl_b32 s79, s79, 2')
    a('s_add_u32 s79, s79, %d' % F_H)
    a('s_mul_i32 s12, s12, 196608')
    for tt in range(3):
        a('s_add_u32 s14, s13, %d' % tt)
        a('s_lshr_b32 s15, s14, 1')
        a('s_lshl_b32 s15, s15, 12')
        a('s_and_b32 s14, s14, 1')
        a('s_lshl_b32 s14, s14, 9')
        a('s_add_u32 s14, s14, s15')
        a('s_add_u32 s%d, s14, s12' % (76 + tt))
    a('v_lshlrev_b32 v249, 2, v1')
    a('v_add_u32 v249, s79, v249')
    a('v_cmp_gt_u32 vcc, 3, v1')
    a('v_mov_b32 v9, 0x%x' % OOB)
    a('v_cndmask_b32 v249, v9, v249, vcc')

def c_setup_main(a):
    a('s_and_b32 s10, s3, 1')
    a('s_lshr_b32 s11, s3, 1')
    a('v_and_b32 v2, 31, v1')
    a('v_lshrrev_b32 v3, 5, v1')
    a('v_lshrrev_b32 v9, 1, v2')
    a('v_and_b32 v9, 7, v9')
    a('v_xor_b32 v9, v9, v3')
    a('v_lshlrev_b32 v9, 4, v9')
    a('v_lshl_add_u32 v9, v2, 7, v9')
    a('s_mul_i32 s12, s11, 12288')
    a('v_add_u32 v4, s12, v9')
    a('v_xor_b32 v5, 32, v4')
    a('v_xor_b32 v6, 64, v4')
    a('v_xor_b32 v7, 96, v4')
    a('v_bfe_u32 v9, v1, 4, 1')
    a('v_bfe_u32 v11, v1, 2, 2')
    a('v_lshl_add_u32 v8, v3, 3, v11')
    a('v_lshlrev_b32 v8, 7, v8')
    a('v_lshl_add_u32 v8, v9, 13, v8')
    a('v_xor_b32 v9, s10, v9')
    a('v_lshl_add_u32 v8, v9, 6, v8')
    a('v_lshrrev_b32 v11, 1, v11')
    a('v_lshl_add_u32 v8, v11, 5, v8')
    a('v_and_b32 v9, 3, v1')
    a('v_lshl_add_u32 v8, v9, 3, v8')
    a('v_add_u32 v8, 24576, v8')
    a('v_xor_b32 v11, 32, v8')
    a('v_lshrrev_b32 v9, 4, v2')
    a('v_lshlrev_b32 v10, 10, v9')
    a('v_lshl_add_u32 v10, v3, 8, v10')
    a('v_and_b32 v9, 15, v2')
    a('v_lshl_add_u32 v10, v9, 4, v10')
    a('s_lshl_b32 s13, s8, 1')
    a('s_add_u32 s13, s13, s10')
    a('v_mov_b32 v249, 0x%x' % OOB)
    for b in range(3):
        a('s_mul_i32 s12, s11, 3')
        a('s_add_u32 s12, s12, %d' % b)
        a('s_and_b32 s14, s12, 1')
        a('s_lshr_b32 s12, s12, 1')
        a('s_mul_i32 s15, s7, 3')
        a('s_add_u32 s12, s12, s15')
        a('s_mul_i32 s15, s12, 96')
        a('s_add_u32 s15, s15, s14')
        a('s_lshl_b32 s79, s13, 1')
        a('s_add_u32 s15, s15, s79')
        a('s_lshl_b32 s15, s15, 2')
        a('s_add_u32 s15, s15, %d' % F_H)
        a('v_writelane_b32 v249, s15, %d' % b)
        a('s_mul_i32 s12, s12, 196608')
        a('s_lshl_b32 s14, s14, 11')
        a('s_add_u32 s12, s12, s14')
        a('s_lshl_b32 s14, s13, 12')
        a('s_add_u32 s%d, s12, s14' % (76 + b))

def c_gemm1(a, cfg, prof, odd):
    ACC = 64
    FB = [16, 40]
    if odd:
        NT_, NBT = 3, 2
        def reads(buf, ks):
            f = FB[buf]
            A = lambda tt: ['ds_read_b64_tr_b16 v[%d:%d], v8 offset:%d' % (f + 4 * tt + 2 * t, f + 4 * tt + 2 * t + 1, ks * 3072 + t * 768 + tt * 32) for t in range(2)]
            B = lambda b: ['ds_read_b128 v[%d:%d], v%d offset:%d' % (f + 12 + 4 * b, f + 15 + 4 * b, 4 + ks, b * 4096)]
            return A(0) + B(0) + B(1) + A(1) + A(2)
        order = [(0, 0, 2), (0, 1, 3), (1, 0, 5), (1, 1, 5), (2, 0, 7), (2, 1, 7)]
        s3_, sn = {1: 3, 2: 2, 3: 2, 4: 1}, {0: 2, 1: 2, 2: 2, 3: 2}
        addr = (4, 5, 6, 7, 8)
        store = lambda tt, b: (76 + tt, b * 2048)
    else:
        NT_, NBT = 2, 3
        def reads(buf, ks):
            f = FB[buf]
            A = lambda tt: ['ds_read_b64_tr_b16 v[%d:%d], v%d offset:%d' % (f + 4 * tt + 2 * t, f + 4 * tt + 2 * t + 1, (8, 11)[tt], ks * 2048 + t * 512) for t in range(2)]
            B = lambda b: ['ds_read_b128 v[%d:%d], v%d offset:%d' % (f + 8 + 4 * b, f + 11 + 4 * b, 4 + ks, b * 4096)]
            return A(0) + B(0) + B(1) + B(2) + A(1)
        order = [(0, 0, 2), (0, 1, 3), (0, 2, 4), (1, 0, 6), (1, 1, 6), (1, 2, 6)]
        s3_, sn = {1: 3, 2: 2, 3: 2}, {0: 2, 1: 2, 2: 2, 3: 1}
        addr = (4, 5, 6, 7, 8, 11)
        store = lambda tt, b: (76 + b, tt * 512)
    def acc(tt, b): return ACC + (tt * NBT + b) * 16
    a('s_setprio %d' % cfg.g1prio)
    a('s_barrier')
    prof.stamp(1); prof.cyc(5)
    toks = [a.emit(r) for r in reads(0, 0)]
    cur = 0
    for st in range(NSTAGE):
        for ks in range(4):
            last = (st == NSTAGE - 1 and ks == 3)
            nxt = None if last else reads(1 - cur, (ks + 1) % 4)
            ntoks = []
            f = FB[cur]
            for mi, (tt, b, need_i) in enumerate(order):
                a.wait_lg(toks[need_i])
                c = '0' if (st == 0 and ks == 0) else vr(acc(tt, b), 16)
                a('v_mfma_f32_32x32x16_bf16 %s, %s, %s, %s' % (vr(acc(tt, b), 16), vr(f + 4 * tt, 4), vr(f + 4 * NT_ + 4 * b, 4), c))
                if nxt is not None:
                    if ks == 3:
                        if mi == 0:
                            skip = cfg.nine and st == NSTAGE - 2
                            if not skip: a.wait_all_lg()
                            d = SLOT if (st + 1) % NSLOT else -(NSLOT - 1) * SLOT
                            for r in addr:
                                a('v_add_u32 v%d, 0x%x, v%d' % (r, u32(d), r))
                            if not skip: a('s_barrier')
                            if st == NSTAGE - 2: a('s_setprio %d' % cfg.cprio)
                        sched = s3_
                    else:
                        sched = sn
                    for _ in range(sched.get(mi, 0)):
                        ntoks.append(a.emit(nxt[len(ntoks)]))
                if st == 9 and cfg.areg:
                    n = ks * 6 + mi - 1
                    if 0 <= n < 5 * cfg.areg:
                        k, dl = n // 5, n % 5
                        if dl == 0: a('s_add_u32 s14, s86, %d' % (5120 * k))
                        b_ = 160 + k * 20 + 4 * dl
                        if dl < 4: a('buffer_load_dwordx4 %s, v240, s[48:51], s14 offen offset:%d sc1' % (vr(b_, 4), 1024 * dl))
                        else: a('buffer_load_dwordx4 %s, v241, s[48:51], s14 offen sc1' % vr(b_, 4))
                if (st, ks, mi) == (6, 1, 5):
                    a('v_mov_b32 v9, %d' % (CNT + 32))
                    a('ds_read_b32 v%d, v9' % VN)
                if (st, ks, mi) == (7, 0, 5) and cfg.cclear and not odd:
                    a.emit('s_waitcnt vmcnt(0)')
                    flag_store(a, 's80')
            toks = ntoks
            cur = 1 - cur
    prof.stamp(2); prof.cyc(6)
    for tt in range(NT_):
        for b in range(NBT):
            x = acc(tt, b)
            o = 16 + (tt * NBT + b) * 4
            for p in range(8):
                a('v_mul_f32 v%d, v%d, v%d' % (x + p, x + p, x + 8 + p))
            for p in range(4):
                a('v_cvt_pk_bf16_f32 v%d, v%d, v%d' % (o + p, x + 2 * p, x + 2 * p + 1))
            a('buffer_store_dwordx4 %s, v10, s[44:47], s%d offen offset:%d sc1' % ((vr(o, 4),) + store(tt, b)))

def c_common(a, cfg):
    g2_scalars(a, 84, 85)
    a('s_mul_i32 s86, s85, 245760')
    a('s_mul_i32 s96, s3, 61440')
    a('s_add_u32 s86, s86, s96')
    a('s_mul_i32 s87, s84, 196608')
    a('s_mul_i32 s96, s3, 49152')
    a('s_add_u32 s87, s87, s96')
    a('s_mul_i32 s88, s3, 10240')
    a('s_mul_i32 s83, s84, 384')
    a('s_mul_i32 s96, s3, 96')
    a('s_add_u32 s83, s83, s96')
    a('s_add_u32 s83, s83, %d' % F_H)
    row_off(a, 244, 245, 84, 85, 3)
    a('v_lshlrev_b32 v240, 4, v1')
    a('v_add_u32 v241, 4096, v240')
    lane_min(a, 246, 24)
    a('v_and_b32 v9, 31, v1')
    a('v_lshlrev_b32 v9, 2, v9')
    a('v_add_u32 v9, %d, v9' % CNT)
    a('v_mov_b32 v12, 0')
    a('ds_write_b32 v9, v12')
    a.emit('s_waitcnt lgkmcnt(0)'); a.lgq = []
    srd(a, 44, P_WS, SZ_H, WS_H)
    srd(a, 48, P_WS, SZ_WD, WS_WD)
    srd(a, 56, P_OUT, SZ_X)
    wave_common(a)
    if cfg.rot2:
        rot_off(a, cfg, 95)
        for k in range(12): kap(a, 16 + k, 95, k)
    if cfg.cclear:
        srd(a, 60, P_WS, SZ_Y2, WS_Y2)
        a('s_mul_i32 s80, s4, 20')
        a('s_add_u32 s80, s80, s5')
        a('s_lshl_b32 s80, s80, 2')
        a('s_add_u32 s80, s80, s3')
        a('s_lshl_b32 s81, s80, 12')
        a('s_lshl_b32 s80, s80, 2')
        a('s_add_u32 s80, s80, %d' % F_YC)
        a('s_cmp_ge_u32 s5, 20')
        a('s_cselect_b32 s96, 0x%x, 0' % FAR)
        a('s_or_b32 s80, s80, s96')
        a('s_or_b32 s81, s81, s96')
        for i in range(4): a('v_mov_b32 v%d, -1' % (160 + i))
        for i in range(4):
            a('buffer_store_dwordx4 v[160:163], v240, s[60:63], s81 offen offset:%d sc1' % (1024 * i))

def c_wave(a, cfg, prof):
    h0 = list(a.hist)
    a('s_cmp_ge_u32 s5, 30')
    a('s_cbranch_scc1 LCodd')
    c_setup_main(a)
    c_common(a, cfg)
    c_gemm1(a, cfg, prof, False)
    a('s_branch LCjoin')
    a.hist = h0; a.reset_queues()
    a.label('LCodd')
    c_setup_odd(a)
    c_common(a, cfg)
    c_gemm1(a, cfg, prof, True)
    a.label('LCjoin')
    prof.stamp(3)
    a('v_readfirstlane_b32 s%d, v%d' % (NONCE, VN))
    a.wait_all_vm()
    flag_store(a, '0', 249)
    a('s_setprio 0')
    prof.stamp(7)
    NA, NB = cfg.na, cfg.nb
    NL = 6 if cfg.c0 else 4
    L0 = 12 - NL
    LS = cfg.lsteps
    assert not cfg.quiet or LS == 0
    cblocks = ([4, 5] if cfg.c0 else []) + list(range(LS, 4))
    border = cblocks + list(range(LS))
    AB = 240 - 20 * NA; ACC2 = AB - 80 - (8 if NA == 4 else 0); BB = 8
    assert BB + 16 * NB <= ACC2 and not (cfg.areg and NA != 4)
    RD = 160 if NA == 4 else 12
    gtok = {}
    def acc2(dl, sg): return ACC2 + (sg * 5 + dl) * 4
    def wdoff(k):
        if cfg.rot2:
            a('s_mul_i32 s14, s%d, 5120' % (16 + k))
            a('s_add_u32 s14, s14, s86')
        else: a('s_add_u32 s14, s86, %d' % (5120 * k))
    def lbase(off): return ('v4', off) if off < SLOT else ('v7', off - SLOT)
    def issueA(k):
        b = AB + (k % NA) * 20
        if k >= L0:
            i = border[k - L0]
            if i == 0 and LS: lds_word_wait(a, cfg, 3, 16, 5, 6, 'Lwf')
            base, off = lbase(wblk(i))
            for dl in range(5):
                gtok[(k, 'a')] = a.emit('ds_read_b128 %s, %s offset:%d' % (vr(b + 4 * dl, 4), base, off + dl * 1024))
            return
        wdoff(k)
        for dl in range(4):
            a('buffer_load_dwordx4 %s, v240, s[48:51], s14 offen offset:%d sc1' % (vr(b + 4 * dl, 4), 1024 * dl))
        gtok[(k, 'a')] = a.emit('buffer_load_dwordx4 %s, v241, s[48:51], s14 offen sc1' % vr(b + 16, 4))
    def issueB(k):
        b = BB + (k % NB) * 16
        if cfg.rot2:
            a('s_lshl_b32 s15, s%d, 12' % (16 + k))
            a('s_add_u32 s15, s15, s87')
        else: a('s_add_u32 s15, s87, %d' % (4096 * k))
        for sg in range(4):
            gtok[(k, sg)] = a.emit('buffer_load_dwordx4 %s, v240, s[44:47], s15 offen offset:%d sc1' % (vr(b + 4 * sg, 4), 1024 * sg))
    a('v_add_u32 v4, s88, v240')
    a('v_add_u32 v7, %d, v4' % SLOT)
    a('v_mov_b32 v5, %d' % CNT)
    a('v_mov_b32 v6, 1')
    a('v_cmp_eq_u32 vcc, 0, v1')
    a('s_and_saveexec_b64 s[90:91], vcc')
    a('ds_add_u32 v5, v6')
    a('s_mov_b64 exec, s[90:91]')
    lds_spin(a, cfg, 5, 6, 82, 'ge', 4, 'Lcsync')
    lds_word_wait(a, cfg, 3, 48, 5, 6, 'Lwok')
    assert not (cfg.areg and (cfg.ungate or cfg.nine or cfg.rot2))
    for k in range(cfg.areg): gtok[(k, 'a')] = -1
    for k in range(cfg.areg, NA): issueA(k)
    t = None
    for n, i in enumerate(cblocks):
        if n == cfg.pollat: t = poll_issue(a, 246, 's83', 247)
        wdoff(L0 + n)
        a('s_add_u32 m0, s88, %d' % wblk(i))
        for dl in range(4):
            a('buffer_load_dwordx4 v240, s[48:51], s14 offen offset:%d sc1 lds' % (1024 * dl))
        a('s_add_u32 m0, s88, %d' % (wblk(i) + 4096))
        a('buffer_load_dwordx4 v241, s[48:51], s14 offen sc1 lds')
    if t is None: t = poll_issue(a, 246, 's83', 247)
    poll_wait(a, cfg, t, 246, 's83', 247, sleep=cfg.hsleep)
    prof.stamp(8)
    for k in range(NB): issueB(k)
    def step(k, sgs, after=None):
        ab_, bb_ = AB + (k % NA) * 20, BB + (k % NB) * 16
        if k >= L0: a.wait_lg(gtok[(k, 'a')])
        else: a.wait_vm(gtok[(k, 'a')])
        for n, sg in enumerate(sgs):
            a.wait_vm(gtok[(k, sg)])
            if n == 0: prof.stamp(10 + k)
            for dl in range(5):
                c = '0' if k == 0 else vr(acc2(dl, sg), 4)
                a('v_mfma_f32_16x16x32_bf16 %s, %s, %s, %s' % (vr(acc2(dl, sg), 4), vr(ab_ + 4 * dl, 4), vr(bb_ + 4 * sg, 4), c))
                if after: after(n, dl)
    NK = 11 if cfg.fin else 12
    for k in range(NK):
        step(k, range(4))
        if k + NB < 12: issueB(k + NB)
        if k + NA < 12: issueA(k + NA)
        if k == cfg.ygate: lds_word(a, 3, 64, 5, 6)
    def blk(w, sg): return w * 10240 + wblk(sg if sg < w else sg - 1)
    a('v_add_u32 v7, %d, v240' % SLOT)
    a('v_add_u32 v4, %d, v7' % SLOT)
    if not cfg.fin: a('s_nop 7')
    else:
        a.wait_lg(gtok[(11, 'a')])
        a.wait_all_vm()
    for w in range(3):
        a('s_cmp_eq_u32 s3, %d' % (w + 1))
        a('s_cbranch_scc1 Lfin%d' % (w + 1))
    hist0 = [] if cfg.fin else list(a.hist)
    def ab(off): return ('v7', off - SLOT) if off < 2 * SLOT else ('v4', off - 2 * SLOT)
    for w in range(4):
        a.hist = list(hist0); a.vmq = []; a.lgq = []
        a.label('Lfin%d' % w)
        others = [x for x in range(4) if x != w]
        def wr(sg, dl):
            r, o = ab(blk(w, sg) + dl * 1024)
            a('ds_write_b128 %s, %s offset:%d' % (r, vr(acc2(dl, sg), 4), o))
        if cfg.fin:
            pend = []
            def after(n, dl):
                if n < 3: pend.append((others[n], dl))
                if len(pend) > 6 or (n == 3 and pend): wr(*pend.pop(0))
            step(11, others + [w], after=after)
            while pend: wr(*pend.pop(0))
        else:
            for sg in others:
                for dl in range(5): wr(sg, dl)
        prof.stamp(9)
        a('v_add_u32 v5, %d, v240' % (PA + w * 5120))
        a('v_lshlrev_b32 v3, 2, v1')
        a('v_add_u32 v3, %d, v3' % (QA + w * QSZ + 3072))
        a.wait_all_lg()
        a('s_barrier')
        prof.stamp(30)
        tl = {}
        tl['omg'] = a.emit('ds_read_b32 v6, v3')
        for dl in range(5):
            for si, x in enumerate(others):
                r, o = ab(blk(x, w) + dl * 1024)
                tl[(dl, si)] = a.emit('ds_read_b128 %s, %s offset:%d' % (vr(RD + (dl * 4 + si) * 4, 4), r, o))
            tl[(dl, 3)] = a.emit('ds_read_b128 %s, v5 offset:%d' % (vr(RD + (dl * 4 + 3) * 4, 4), dl * 1024))
        for dl in range(5):
            x = acc2(dl, w)
            for si in range(3):
                a.wait_lg(tl[(dl, si)])
                r = RD + (dl * 4 + si) * 4
                a('v_pk_add_f32 %s, %s, %s' % (P2(x), P2(x), P2(r)))
                a('v_pk_add_f32 %s, %s, %s' % (P2(x + 2), P2(x + 2), P2(r + 2)))
            ga = RD + (dl * 4 + 3) * 4
            t = 8 + (dl & 1) * 2 if NA != 4 else 12 + (dl & 1) * 4
            a.wait_lg(tl[(dl, 3)])
            for i in range(4): a('v_fma_f32 v%d, v6, v%d, v%d' % (x + i, x + i, ga + i))
            a('v_cvt_pk_bf16_f32 v%d, v%d, v%d' % (t, x, x + 1))
            a('v_cvt_pk_bf16_f32 v%d, v%d, v%d' % (t + 1, x + 2, x + 3))
            a('buffer_store_dwordx2 %s, v244, s[56:59], 0 offen offset:%d' % (vr(t, 2), dl * 32))
        prof.stamp(4)
        prof.flush(243)
        a('s_endpgm')

class Loader:
    def __init__(self, a, cfg, prof, odd):
        self.a, self.odd, self.tok = a, odd, {}
        if odd:
            a('v_lshrrev_b32 v9, 3, v1')
            a('v_and_b32 v10, 7, v1')
            a('v_lshrrev_b32 v11, 1, v9')
            a('v_xor_b32 v10, v10, v11')
            a('v_lshlrev_b32 v10, 4, v10')
            a('s_mov_b32 s12, 81920')
            a('v_mul_lo_u32 v9, v9, s12')
            a('v_add_u32 v2, v9, v10')
            a('v_xor_b32 v10, 64, v10')
            a('v_add_u32 v3, v9, v10')
            a('v_add_u32 v3, 256, v3')
            a('v_add_u32 v4, 512, v2')
            a('v_add_u32 v5, 512, v3')
            for i in range(3):
                a('v_add_u32 v9, %d, v1' % (64 * i))
                a('v_mul_u32_u24 v10, 5462, v9')
                a('v_lshrrev_b32 v10, 16, v10')
                a('v_mul_u32_u24 v11, 12, v10')
                a('v_sub_u32 v11, v9, v11')
                a('v_mul_u32_u24 v10, 3072, v10')
                a('v_lshl_add_u32 v10, v11, 4, v10')
                a('v_subrev_u32 v%d, %d, v10' % (6 + i, 1024 * i))
            a('s_mov_b32 s12, %d' % (512 * 3 + 16 * 3))
            a('s_lshl_b32 s13, s10, 2')
            a('s_add_u32 s12, s12, s13')
            a('s_mul_i32 s12, s12, 1280')
            a('s_mul_i32 s13, s10, 49152')
            a('s_mul_i32 s14, s8, 192')
            a('s_add_u32 s13, s13, s14')
            a('s_lshl_b32 s14, s10, 12')
            a('s_mul_i32 s15, s10, 3072')
        else:
            a('v_lshrrev_b32 v9, 3, v1')
            a('v_and_b32 v10, 7, v1')
            a('v_lshrrev_b32 v11, 1, v9')
            a('v_xor_b32 v4, v10, v11')
            a('v_lshlrev_b32 v4, 4, v4')
            a('s_mov_b32 s12, 81920')
            a('v_mul_lo_u32 v3, v9, s12')
            a('v_add_u32 v2, v3, v4')
            a('v_xor_b32 v4, 64, v4')
            a('v_add_u32 v3, v3, v4')
            a('v_and_b32 v11, 1, v11')
            a('v_lshlrev_b32 v11, 1, v11')
            a('v_xor_b32 v10, v10, v11')
            a('v_mul_u32_u24 v9, 3072, v9')
            a('v_lshl_add_u32 v4, v10, 4, v9')
            a('v_add_u32 v5, 23552, v4')
            a('v_xor_b32 v6, 64, v4')
            a('v_xor_b32 v7, 64, v5')
            for i in range(6):
                a('s_mul_i32 s12, s10, 6')
                a('s_add_u32 s12, s12, %d' % i)
                a('s_lshr_b32 s13, s12, 3')
                a('s_mul_i32 s14, s7, 3')
                a('s_add_u32 s13, s13, s14')
                a('s_and_b32 s12, s12, 7')
                a('s_lshr_b32 s14, s13, 3')
                a('s_lshl_b32 s14, s14, 9')
                a('s_add_u32 s12, s12, s14')
                a('s_and_b32 s13, s13, 7')
                a('s_lshl_b32 s13, s13, 3')
                a('s_add_u32 s12, s12, s13')
                a('s_mul_i32 s12, s12, 1280')
                a('s_sub_u32 s%d, s12, %d' % (58 + i, 1024 * (i % 3)))
            a('s_mul_i32 s13, s10, 49152')
            a('s_lshl_b32 s14, s8, 7')
            a('s_add_u32 s13, s13, s14')
            a('s_mul_i32 s14, s10, 6144')
            a('s_lshl_b32 s15, s10, 11')
        self.rot = cfg.xrot
        if cfg.xrot:
            a('s_and_b32 s9, s4, 1')
            a('s_mul_i32 s9, s9, 10')
            a('s_mul_i32 s96, s6, 5')
            a('s_add_u32 s9, s9, s96')
            if cfg.xrot == 2:
                a('s_mul_i32 s96, s5, 3')
                a('s_add_u32 s9, s9, s96')
                a('s_and_b32 s9, s9, 31')
            a('s_lshr_b32 s9, s9, 1')
            a('s_cmp_ge_u32 s9, 10')
            a('s_cselect_b32 s96, 10, 0')
            a('s_sub_u32 s9, s9, s96')
            a('s_lshl_b32 s96, s9, 7')
            if odd: a('s_add_u32 s12, s12, s96')
            else:
                a('v_add_u32 v2, s96, v2')
                a('v_add_u32 v3, s96, v3')
            a('s_mul_i32 s96, s9, 196608')
            a('s_add_u32 s13, s13, s96')
        a.emit('s_waitcnt lgkmcnt(0)')
        prof.stamp(3)
        srd(a, 44, P_Q, SZ_X)
        srd(a, 48, P_WG, SZ_W)
        srd(a, 52, P_WU, SZ_W)
        if not odd:
            for i in range(6): a('s_mov_b32 s%d, s%d' % (28 + i, 58 + i))
    def issue(self, st):
        a = self.a
        base = (st % NSLOT) * SLOT
        if self.odd:
            a('s_add_u32 m0, s14, %d' % base)
            for i in range(4):
                a('buffer_load_dwordx4 v%d, s[44:47], s12 offen offset:%d lds' % (2 + i, 1024 * i))
            a('s_add_u32 m0, s15, %d' % (base + OFF_GATE))
            for i in range(3):
                a('buffer_load_dwordx4 v%d, s[48:51], s13 offen offset:%d lds' % (6 + i, 1024 * i))
            a('s_add_u32 m0, s15, %d' % (base + OFF_UP))
            for i in range(3):
                t = a.emit('buffer_load_dwordx4 v%d, s[52:55], s13 offen offset:%d lds' % (6 + i, 1024 * i))
            a('s_add_u32 s12, s12, 128')
        else:
            for i in range(6):
                if i % 3 == 0: a('s_add_u32 m0, s14, %d' % (base + 1024 * i))
                a('buffer_load_dwordx4 v%d, s[44:47], s%d offen offset:%d lds' % (2 + (i & 1), 28 + i, 1024 * (i % 3)))
            a('s_add_u32 m0, s15, %d' % (base + 24576))
            for i in range(2):
                a('buffer_load_dwordx4 v%d, s[48:51], s13 offen offset:%d lds' % (4 + i, 1024 * i))
            a('s_add_u32 m0, s15, %d' % (base + 32768))
            for i in range(2):
                t = a.emit('buffer_load_dwordx4 v%d, s[52:55], s13 offen offset:%d lds' % (6 + i, 1024 * i))
            a('v_add_u32 v2, 0x80, v2')
            a('v_add_u32 v3, 0x80, v3')
        a('s_add_u32 s13, s13, 196608')
        if self.rot:
            a('s_add_u32 s9, s9, 1')
            a('s_cmp_eq_u32 s9, 10')
            a('s_cselect_b32 s96, 1280, 0')
            a('s_cselect_b32 s97, 1966080, 0')
            a('s_sub_u32 s13, s13, s97')
            if self.odd: a('s_sub_u32 s12, s12, s96')
            else:
                a('v_subrev_u32 v2, s96, v2')
                a('v_subrev_u32 v3, s96, v3')
        self.tok[st] = t

def l_wave(a, cfg, prof):
    a('s_setprio %d' % cfg.lprio)
    a('s_and_b32 s10, s3, 3')
    h0 = list(a.hist)
    a('s_cmp_ge_u32 s5, 30')
    a('s_cbranch_scc1 LLodd')
    l_body(a, cfg, prof, False)
    a.hist = h0; a.reset_queues()
    a.label('LLodd')
    l_body(a, cfg, prof, True)

def l_body(a, cfg, prof, odd):
    ld = Loader(a, cfg, prof, odd)
    stage_tok = ld.tok
    issue_stage = ld.issue
    issue_stage(0)
    wave_common(a)
    if cfg.drop:
        a('s_mov_b32 s92, 1'); a('v_mov_b32 v250, 1'); a('s_mov_b32 s86, 0')
    if not odd:
        a('s_lshl_b32 s76, s2, 2')
        a('s_add_u32 s76, s76, s10')
        a('s_cmp_lg_u32 s76, 0')
        a('s_cbranch_scc1 Lno_nonce')
        a('s_memrealtime s[76:77]')
        srd(a, 68, P_DBG, 256)
        a.emit('s_waitcnt lgkmcnt(0)')
        a('s_or_b32 s76, s76, 1')
        a('v_mov_b32 v20, s76')
        a('buffer_store_dword v20, v%d, s[68:71], 0 offen sc1' % VZ)
        a.emit('s_waitcnt vmcnt(0)')
        a.vmq.pop()
        a.label('Lno_nonce')
    issue_stage(1)
    g2_scalars(a, 84, 85)
    a('s_mul_i32 s82, s10, 5120')
    a('s_add_u32 s82, s82, %d' % PA)
    a('s_mul_i32 s83, s10, %d' % QSZ)
    a('s_add_u32 s83, s83, %d' % QA)
    a('s_mul_i32 s88, s85, 48')
    a('s_mul_i32 s96, s10, 12')
    a('s_add_u32 s88, s88, s96')
    a('s_mul_i32 s0, s88, 5120')
    if cfg.rot2: rot_off(a, cfg, 95)
    else: a('s_mov_b32 s95, 0')
    a('s_lshl_b32 s88, s88, 2')
    a('s_add_u32 s88, s88, %d' % F_WD)
    a('s_mul_i32 s1, s10, 10240')
    a('v_lshlrev_b32 v241, 4, v1')
    a('v_add_u32 v245, 4096, v241')
    if not odd:
        a('s_cmp_ge_u32 s5, 20')
        a('s_cbranch_scc1 LtypeB')
    saved = (list(a.vmq), dict(stage_tok), list(a.hist))
    tk = {}
    DROP = {1: ('kv_loads', 'wd_loads'), 2: ('f',), 4: ('ut_store', 'wd_part'), 8: ('y_clear',), 16: ('n_issue', 'n_get', 'd_issue')}
    dn = [n for b, ns in DROP.items() if cfg.drop & b for n in ns]
    class _T(dict):
        def __missing__(self, k): return -1
    tk = _T()
    def interval(i, slices, pre={}):
        slices = {k: [f for f in v if f.__name__ not in dn] for k, v in slices.items()}
        pre = {k: [f for f in v if f.__name__ not in dn] for k, v in pre.items()}
        if cfg.nine and i == 8: a.wait_vm(stage_tok[9])
        a.wait_vm(stage_tok[i])
        if a.lgq: a.wait_all_lg()
        if cfg.lstamp: prof.stamp(10 + i)
        if not (cfg.nine and i == 9): a('s_barrier')
        if cfg.lstamp: prof.stamp(20 + i)
        for f in pre.get(i, []): f()
        if i + NSLOT - 1 < NSTAGE: issue_stage(i + NSLOT - 1)
        for f in slices.get(i, []): f()
    def n_issue():
        a('s_load_dword s%d, s[%d:%d], 0' % (NONCE, P_DBG, P_DBG + 1))
    def n_get():
        lo, ok = newlabel('Ln'), newlabel('Ln_ok')
        a.emit('s_waitcnt lgkmcnt(0)'); a.lgq = []
        a('s_cmp_lg_u32 s%d, 0' % NONCE)
        a('s_cbranch_scc1 %s' % ok)
        a('s_mov_b32 s94, %d' % cfg.spin)
        srd(a, 68, P_DBG, 256)
        a('v_mov_b32 v249, 0')
        a.label(lo)
        a('buffer_load_dword v%d, v249, s[68:71], 0 offen sc1' % VN)
        a.emit('s_waitcnt vmcnt(0)')
        a.vmq.pop()
        a('v_readfirstlane_b32 s%d, v%d' % (NONCE, VN))
        a('s_cmp_lg_u32 s%d, 0' % NONCE)
        a('s_cbranch_scc1 %s' % ok)
        a('s_sleep 8')
        a('s_sub_u32 s94, s94, 1')
        a('s_cmp_lg_u32 s94, 0')
        a('s_cbranch_scc1 %s' % lo)
        a.label(ok)
        a('s_nop 1')
        a('v_mov_b32 v%d, s%d' % (VN, NONCE))
        a('v_mov_b32 v9, %d' % (CNT + 32))
        a('ds_write_b32 v9, v%d' % VN)
    def flag_after(key, sreg):
        def f():
            a.wait_vm(tk[key])
            flag_store(a, sreg)
        return f
    def late_srds():
        srd(a, 48, P_WS, SZ_WD, WS_WD)
        srd(a, 52, P_WS, SZ_G, WS_G)
        srd(a, 64, P_WS, SZ_Y2, WS_Y2)
    def wdl_dma():
        for i in range(cfg.lsteps):
            kap(a, 97, 95, 12 - cfg.lsteps + i)
            a('s_mul_i32 s97, s97, 5120')
            a('s_add_u32 s97, s97, s0')
            a('s_add_u32 m0, s1, %d' % wblk(i))
            for dl in range(4):
                a('buffer_load_dwordx4 v241, s[48:51], s97 offen offset:%d sc1 lds' % (1024 * dl))
            a('s_add_u32 m0, s1, %d' % (wblk(i) + 4096))
            tk['wdl'] = a.emit('buffer_load_dwordx4 v245, s[48:51], s97 offen sc1 lds')
    def wdl_publish():
        if not cfg.lsteps: return
        a.wait_vm(tk['wdl'])
        lds_word(a, 10, 16, 236, 237)
    def q_loads():
        row_off(a, 238, 239, 84, 85, 10)
        for dl in range(5):
            a('buffer_load_dwordx2 %s, v238, s[44:47], 0 offen offset:%d' % (vr(QV + 2 * dl, 2), dl * 32))
    def tail_issue():
        if cfg.bclear:
            a('s_lshl_b32 s89, s85, 8')
            a('s_add_u32 s89, s89, %d' % F_YC)
            lane_min(a, 247, 48)
            tk['y1'] = poll_issue(a, 247, 's89', 239)
            return
        a('s_mul_i32 s89, s85, 320')
        a('s_add_u32 s89, s89, %d' % F_YC)
        a('v_lshlrev_b32 v247, 2, v1')
        lane_min(a, 240, 16)
        a('v_add_u32 v240, 256, v240')
        tk['y1'] = poll_issue(a, 247, 's89', 239)
        tk['y2'] = poll_issue(a, 240, 's89', 243)
    def tail_check():
        if not cfg.bclear: poll_wait(a, cfg, tk['y2'], 240, 's89', 243)
        poll_wait(a, cfg, tk['y1'], 247, 's89', 239)

    def type_a():
        KR, VR_, WR = 32, 60, 76
        srd(a, 56, P_K, SZ_X); srd(a, 60, P_V, SZ_X); srd(a, 64, P_SHK, 5120)
        a('s_cmp_ge_u32 s5, 10')
        a('s_cselect_b32 s76, 1, 0')
        a('s_cselect_b32 s77, 10, 0')
        a('s_sub_u32 s77, s5, s77')
        a('s_lshl_b32 s78, s4, 1')
        a('s_add_u32 s76, s76, s78')
        a('s_lshl_b32 s87, s77, 2')
        a('s_add_u32 s87, s87, s10')
        a('s_lshl_b32 s89, s87, 4')
        a('s_add_u32 s89, s89, s76')
        a('s_lshl_b32 s89, s89, 2')
        a('s_lshl_b32 s87, s87, 16')
        a('s_lshl_b32 s78, s76, 8')
        a('s_add_u32 s87, s87, s78')
        a('s_lshl_b32 s76, s76, 7')
        a('s_lshl_b32 s78, s10, 5')
        a('s_add_u32 s76, s76, s78')
        a('v_lshrrev_b32 v9, 3, v1')
        a('v_and_b32 v10, 7, v1')
        a('s_lshl_b32 s78, s10, 3')
        a('v_add_u32 v22, s78, v9')
        a('v_lshlrev_b32 v11, 1, v10')
        a('v_xor_b32 v22, v22, v11')
        a('v_lshlrev_b32 v22, 3, v22')
        a('v_lshl_add_u32 v22, v10, 11, v22')
        a('v_add_u32 v22, %d, v22' % PA)
        a('v_lshlrev_b32 v9, 2, v9')
        a('v_add_u32 v9, s76, v9')
        a('v_mul_u32_u24 v232, 1280, v9')
        a('v_lshl_add_u32 v232, v10, 4, v232')
        a('s_lshl_b32 s78, s77, 7')
        a('v_add_u32 v232, s78, v232')
        a('v_subrev_u32 v233, 3840, v232')
        a('v_subrev_u32 v234, 2560, v232')
        a('v_subrev_u32 v235, 1280, v232')
        a('s_lshl_b32 s78, s77, 9')
        a('v_lshlrev_b32 v236, 6, v10')
        a('v_add_u32 v236, s78, v236')
        a('s_mul_i32 s11, s4, 20')
        a('s_add_u32 s11, s11, s5')
        a('s_lshl_b32 s11, s11, 2')
        a('s_add_u32 s11, s11, s10')
        a('s_lshl_b32 s81, s11, 12')
        a('s_lshl_b32 s80, s11, 2')
        a('s_add_u32 s80, s80, %d' % F_YC)
        a('s_lshr_b32 s76, s11, 4')
        a('s_lshl_b32 s76, s76, 6')
        a('s_sub_u32 s77, s88, 64')
        a('v_min_u32 v240, %d, v1' % (31 if cfg.bclear else 27))
        a('v_lshlrev_b32 v240, 2, v240')
        a('v_mov_b32 v9, s76')
        a('v_mov_b32 v10, s77')
        if cfg.bclear:
            a('s_lshl_b32 s78, s5, 2')
            a('s_add_u32 s78, s78, s10')
            a('s_lshl_b32 s78, s78, 2')
            a('s_mul_i32 s78, s78, 9363')
            a('s_lshr_b32 s78, s78, 16')
            a('s_lshl_b32 s79, s4, 6')
            a('s_add_u32 s78, s78, s79')
            a('s_lshl_b32 s78, s78, 2')
            a('s_add_u32 s78, s78, %d' % (F_YC - 112))
            a('v_min_u32 v240, 29, v1')
            a('v_lshlrev_b32 v240, 2, v240')
            a('v_mov_b32 v11, s78')
            a('v_cmp_gt_u32 vcc, 28, v1')
            a('v_cndmask_b32 v10, v11, v10, vcc')
        a('v_cmp_gt_u32 vcc, 16, v1')
        a('v_cndmask_b32 v9, v10, v9, vcc')
        a('v_add_u32 v240, v240, v9')
        a('s_and_b32 s86, s11, 0xfffffffe')
        a('s_lshl_b32 s86, s86, 1')
        a('s_load_dword s86, s[26:27], s86')
        a('s_mov_b32 s87, s87')
        class _A:
            def __init__(self): self.l = []
            def __call__(self, t): self.l.append(t)
        rec = _A(); conv_setup(rec, cfg)
        for t in rec.l[:-4]: a(t)
        def d_fin():
            for t in rec.l[-4:]: a(t)
        def kv_loads():
            for i in range(4):
                a('buffer_load_dwordx4 %s, v232, s[56:59], 0 offen offset:%d' % (vr(KR + 12 + 4 * i, 4), 1280 * i))
            for i in range(4):
                a('buffer_load_dwordx4 %s, v232, s[60:63], 0 offen offset:%d' % (vr(VR_ + 4 * i, 4), 1280 * i))
            a('buffer_load_dwordx4 %s, v233, s[56:59], 0 offen' % vr(KR, 4))
            a('buffer_load_dwordx4 %s, v234, s[56:59], 0 offen' % vr(KR + 4, 4))
            a('buffer_load_dwordx4 %s, v235, s[56:59], 0 offen' % vr(KR + 8, 4))
            for i in range(4):
                tk['kv'] = a.emit('buffer_load_dwordx4 %s, v236, s[64:67], 0 offen offset:%d' % (vr(WR + 4 * i, 4), 16 * i))
        def ut_srd(): srd(a, 56, P_WS, SZ_UT, WS_UT)
        def kv_part(cp):
            def f():
                a.wait_vm(tk['kv'])
                U = 92
                for r in range(7):
                    unpack_lo(a, U + 2 * r, KR + 4 * r + cp); unpack_hi(a, U + 2 * r + 1, KR + 4 * r + cp)
                for r in range(4):
                    unpack_lo(a, U + 14 + 2 * r, VR_ + 4 * r + cp); unpack_hi(a, U + 15 + 2 * r, VR_ + 4 * r + cp)
                for h in range(2):
                    unpack_lo(a, U + 22 + h, WR + 4 * cp + 2 * h); unpack_hi(a, U + 24 + h, WR + 4 * cp + 2 * h)
                    unpack_lo(a, U + 26 + h, WR + 4 * cp + 2 * h + 1); unpack_hi(a, U + 28 + h, WR + 4 * cp + 2 * h + 1)
                AC = U + 30
                for i in range(8):
                    a('v_mul_f32 v%d, v%d, v%d' % (AC + i, U + i, U + 28 + (i & 1)))
                for tap in (2, 1, 0):
                    for i in range(8):
                        a('v_fmac_f32 v%d, v%d, v%d' % (AC + i, U + 2 * (3 - tap) + i, U + 22 + 2 * tap + (i & 1)))
                for i in range(8):
                    a('v_mul_f32 v%d, v%d, v%d' % (AC + i, AC + i, U + 14 + i))
                O = 24 + (cp & 1) * 4
                for h in range(2):
                    a('v_cvt_pk_bf16_f32 v%d, v%d, v%d' % (O + 2 * h, AC + h, AC + 2 + h))
                    a('v_cvt_pk_bf16_f32 v%d, v%d, v%d' % (O + 2 * h + 1, AC + 4 + h, AC + 6 + h))
                for h in range(2):
                    a('ds_write_b64 v22, %s offset:%d' % (vr(O + 2 * h, 2), 256 * (2 * cp + h)))
            return f
        def ut_store():
            a('v_lshrrev_b32 v9, 4, v1')
            a('v_and_b32 v10, 15, v1')
            a('v_lshlrev_b32 v11, 12, v9')
            a('v_lshl_add_u32 v11, v10, 4, v11')
            a('s_lshl_b32 s76, s10, 1')
            a('s_lshl_b32 s77, s10, 12')
            a('s_add_u32 s77, s77, %d' % PA)
            for hh in range(2):
                a('s_add_u32 s78, s76, %d' % hh)
                a('v_xor_b32 v12, s78, v10')
                a('v_lshlrev_b32 v12, 4, v12')
                a('v_lshl_add_u32 v12, v9, 8, v12')
                a('v_add_u32 v%d, s77, v12' % (24 + hh))
            tl = [a.emit('ds_read_b128 %s, v%d offset:%d' % (vr(40 + 4 * i, 4), 24 + (i >> 1), 1024 * i)) for i in range(4)]
            for i in range(4):
                a.wait_lg(tl[i])
                a('s_add_u32 s76, s87, %d' % (16384 * i))
                tk['ut'] = a.emit('buffer_store_dwordx4 %s, v11, s[56:59], s76 offen sc1' % vr(40 + 4 * i, 4))
        def d_issue():
            a('s_and_b32 s86, s11, 0xfffffffe')
            a('s_lshl_b32 s86, s86, 1')
            a('s_load_dword s86, s[26:27], s86')
        def y_clear():
            srd(a, 64, P_WS, SZ_Y2, WS_Y2)
            for i in range(4): a('v_mov_b32 v%d, -1' % (232 + i))
            for i in range(4):
                tk['yc'] = a.emit('buffer_store_dwordx4 v[232:235], v241, s[64:67], s81 offen offset:%d sc1' % (1024 * i))
        def p_dma():
            srd(a, 60, P_SSMK, SZ_X)
            a('v_bfe_u32 v9, v1, 4, 1')
            a('v_lshlrev_b32 v9, 1, v9')
            a('v_xor_b32 v9, v9, v1')
            a('v_lshlrev_b32 v9, 4, v9')
            a('s_add_u32 m0, s82, 512')
            for i in range(4):
                a('buffer_load_dwordx4 v9, s[60:63], s81 offen offset:%d lds' % (1024 * i))
        def pads():
            for i in range(4): a('v_mov_b32 v%d, 0' % (32 + i))
            a('v_and_b32 v10, 31, v1')
            a('v_lshlrev_b32 v10, 4, v10')
            a('v_add_u32 v10, s82, v10')
            a('ds_write_b128 v10, v[32:35]')
            a('v_and_b32 v10, 3, v1')
            a('v_lshlrev_b32 v10, 4, v10')
            a('v_add_u32 v10, s83, v10')
            a('ds_write_b128 v10, v[32:35]')
        K = cfg.kv_at
        if cfg.early:
            slA = {1: [kv_part(1)], 2: [kv_part(3), n_issue], 3: [ut_srd, ut_store], 5: [flag_after('ut', 's89')], 7: [late_srds]}
        else:
            slA = {K: [kv_loads], K + 2: [kv_part(1)], K + 3: [kv_part(3), n_issue], K + 4: [ut_srd, ut_store], 6: [flag_after('ut', 's89')],
                   7: [late_srds]}
        slA.setdefault(8 if cfg.ungate else 7, [])
        fpoll = lambda: tk.__setitem__('f', poll_issue(a, 240, '0', 243))
        def q_dma():
            poll_wait(a, cfg, tk['f'], 240, '0', 243)
            a('s_add_u32 m0, s83, 64')
            for i in range(4):
                tk['q'] = a.emit('buffer_load_dwordx4 v241, s[56:59], s81 offen offset:%d sc1 lds' % (1024 * i))
            lds_word(a, 10, 48, 236, 237)
        slA[8] = [p_dma] + ([fpoll] if cfg.ungate else [q_dma])
        if not cfg.ungate: slA[7].append(fpoll)
        if not (cfg.cclear or cfg.bclear):
            slA.setdefault(cfg.late, []).append(y_clear)
            slA[cfg.late + 2].insert(0, flag_after('yc', 's80'))
        if cfg.kvfirst:
            kv_loads(); slA[0] = []
        prA = {K + 2: [kv_part(0)], K + 3: [kv_part(2)], 5: [n_get, d_fin], 6 + K: [pads]}
        if cfg.early:
            kv_loads()
            prA = {1: [kv_part(0)], 2: [kv_part(2)], 4: [n_get, d_fin], 6: [pads]}
        assert K <= 1
        for i in range(NSTAGE): interval(i, slA, prA)
        if cfg.ungate: q_dma()
        if not cfg.quiet:
            wdl_dma()
            q_loads()
            tail_issue()
        a('s_setprio %d' % cfg.vprio)
        a.wait_vm(tk['q'])
        gen = conv_main(a, cfg, prof)
        if not cfg.quiet:
            for _ in range(cfg.pub_at): next(gen)
            wdl_publish()
        for _ in gen: pass
        if cfg.quiet:
            q_loads()
            tail_issue()
        tail_check()
        a('s_setprio 0')
        a('s_branch Lfetch')

    if not odd: type_a()

    a.vmq, a.hist = list(saved[0]), list(saved[2])
    stage_tok.clear(); stage_tok.update(saved[1])
    a.lgq = []
    if not odd: a.label('LtypeB')
    srd(a, 56, P_WD, SZ_W)
    srd(a, 68, P_GW, 1280)
    a('s_mul_i32 s78, s4, 12')
    a('s_add_u32 s78, s78, s5')
    a('s_sub_u32 s78, s78, 20')
    a('s_lshl_b32 s78, s78, 2')
    a('s_add_u32 s78, s78, s10')
    a('s_lshr_b32 s79, s78, 3')
    a('s_and_b32 s78, s78, 7')
    a('s_mul_i32 s89, s78, 48')
    a('s_add_u32 s89, s89, s79')
    a('s_lshl_b32 s89, s89, 2')
    a('s_add_u32 s89, s89, %d' % F_WD)
    a('s_mul_i32 s80, s79, 40960')
    a('s_mul_i32 s77, s78, 160')
    a('s_add_u32 s80, s80, s77')
    a('s_mul_i32 s81, s78, 245760')
    a('s_mul_i32 s77, s79, 5120')
    a('s_add_u32 s81, s81, s77')
    lane_min(a, 240, 12)
    def wd_loads():
        for i in range(5):
            a('v_add_u32 v9, %d, v1' % (64 * i))
            a('v_mul_u32_u24 v10, 6554, v9')
            a('v_lshrrev_b32 v10, 16, v10')
            a('v_mul_u32_u24 v11, 10, v10')
            a('v_sub_u32 v11, v9, v11')
            a('v_mul_u32_u24 v10, 1280, v10')
            a('v_lshl_add_u32 v10, v11, 4, v10')
            a('s_add_u32 m0, s82, %d' % (1024 * i))
            tk['wd'] = a.emit('buffer_load_dwordx4 v10, s[56:59], s80 offen lds')
    def wd_part():
        a('v_lshrrev_b32 v9, 5, v1')
        a('v_lshlrev_b32 v9, 4, v9')
        a('v_bfe_u32 v10, v1, 2, 3')
        a('v_add_u32 v9, v9, v10')
        a('v_mul_u32_u24 v9, 160, v9')
        a('v_and_b32 v10, 3, v1')
        a('v_lshl_add_u32 v9, v10, 3, v9')
        a('v_add_u32 v9, s82, v9')
        srd(a, 60, P_WS, SZ_WD, WS_WD)
        a('s_add_u32 s80, s81, 4096')
        a.wait_vm(tk['wd'])
        for dl in range(5):
            for t in range(2):
                a('ds_read_b64_tr_b16 v[%d:%d], v9 offset:%d' % (32 + 4 * dl + 2 * t, 33 + 4 * dl + 2 * t, t * 1280 + dl * 32))
        a.wait_all_lg()
        for dl in range(4):
            a('buffer_store_dwordx4 %s, v241, s[60:63], s81 offen offset:%d sc1' % (vr(32 + 4 * dl, 4), 1024 * dl))
        tk['wds'] = a.emit('buffer_store_dwordx4 %s, v241, s[60:63], s80 offen sc1' % vr(48, 4))
    GX, GW = 56, 104
    gtk = []
    def g_loads():
        srd(a, 56, P_GW, 1280)
        a('s_sub_u32 s76, s5, 20')
        a('s_lshl_b32 s76, s76, 2')
        a('s_add_u32 s76, s76, s10')
        a('s_cmp_ge_u32 s76, 32')
        a('s_cselect_b32 s86, 0x%x, 0' % FAR)
        a('s_and_b32 s77, s4, 1')
        a('s_lshl_b32 s77, s77, 2')
        a('s_lshr_b32 s78, s76, 3')
        a('s_add_u32 s77, s77, s78')
        a('s_and_b32 s76, s76, 7')
        a('s_lshl_b32 s78, s6, 9')
        a('s_lshl_b32 s79, s77, 3')
        a('s_add_u32 s78, s78, s79')
        a('s_add_u32 s78, s78, s76')
        a('s_mul_i32 s78, s78, 1280')
        a('s_or_b32 s78, s78, s86')
        a('v_lshrrev_b32 v9, 5, v1')
        a('v_and_b32 v10, 31, v1')
        a('v_lshlrev_b32 v11, 4, v10')
        a('s_mov_b32 s79, 81920')
        a('v_mul_lo_u32 v12, v9, s79')
        a('v_add_u32 v12, v12, v11')
        a('v_cmp_gt_u32 vcc, 16, v10')
        a('v_mov_b32 v15, 0x%x' % OOB)
        a('v_cndmask_b32 v13, v15, v12, vcc')
        for i in range(3):
            a('buffer_load_dwordx4 %s, v11, s[56:59], 0 offen offset:%d' % (vr(GW + 4 * i, 4), 512 * i))
        for p in range(4):
            a('buffer_load_dwordx4 %s, v12, s[44:47], s78 offen' % vr(GX + 12 * p, 4))
            a('buffer_load_dwordx4 %s, v12, s[44:47], s78 offen offset:512' % vr(GX + 12 * p + 4, 4))
            gtk.append(a.emit('buffer_load_dwordx4 %s, v13, s[44:47], s78 offen offset:1024' % vr(GX + 12 * p + 8, 4)))
            a('s_add_u32 s78, s78, 163840')
        a('s_lshl_b32 s78, s6, 3')
        a('s_add_u32 s78, s78, s77')
        a('s_lshl_b32 s78, s78, 3')
        a('s_add_u32 s78, s78, s76')
        a('s_lshl_b32 s80, s78, 6')
        a('s_or_b32 s80, s80, s86')
        a('v_lshlrev_b32 v14, 3, v9')
        a('v_cmp_eq_u32 vcc, 31, v10')
        a('v_cndmask_b32 v14, v15, v14, vcc')
    def g_compute():
        for p in range(4):
            a.wait_vm(gtk[p])
            a('v_mov_b32 v%d, 0' % (24 + p))
            for i in range(12):
                a('v_dot2_f32_bf16 v%d, v%d, v%d, v%d' % (24 + p, GX + 12 * p + i, GW + i, 24 + p))
        a('s_nop 2')
        for sh in (1, 2, 4, 8):
            for p in range(4):
                a('v_add_f32_dpp v%d, v%d, v%d row_shr:%d row_mask:0xf bank_mask:0xf bound_ctrl:0' % (24 + p, 24 + p, 24 + p, sh))
        for p in range(4):
            a('v_add_f32_dpp v%d, v%d, v%d row_bcast:15 row_mask:0xa bank_mask:0xf' % (24 + p, 24 + p, 24 + p))
        for p in range(4):
            r = 24 + p
            a('v_cvt_pk_bf16_f32 v%d, v%d, v%d' % (r, r, r))
            a('v_and_b32 v%d, 0xffff0000, v%d' % (r, r))
            a('v_mul_f32 v%d, 0xbfb8aa3b, v%d' % (r, r))
            a('v_exp_f32 v%d, v%d' % (r, r))
            a('v_add_f32 v%d, 1.0, v%d' % (r, r))
            a('v_rcp_f32 v%d, v%d' % (r, r))
            a('v_cvt_pk_bf16_f32 v%d, v%d, v%d' % (r, r, r))
            a('v_and_b32 v%d, 0xffff0000, v%d' % (29 + 2 * p, r))
            a('v_mov_b32 v%d, v%d' % (28 + 2 * p, VN))
            a('buffer_store_dwordx2 v[%d:%d], v14, s[52:55], s80 offen offset:%d sc1' % (28 + 2 * p, 29 + 2 * p, 16 * p))
    def b_clear():
        srd(a, 64, P_WS, SZ_Y2, WS_Y2)
        a('s_sub_u32 s76, s5, 20')
        a('s_lshl_b32 s76, s76, 2')
        a('s_add_u32 s76, s76, s10')
        a('s_lshl_b32 s77, s4, 6')
        a('s_add_u32 s87, s76, s77')
        a('s_lshl_b32 s87, s87, 2')
        a('s_add_u32 s87, s87, %d' % F_YC)
        a('s_mul_i32 s76, s76, 7')
        for i in range(4): a('v_mov_b32 v%d, -1' % (232 + i))
        for i in range(7):
            a('s_add_u32 s77, s76, %d' % i)
            a('s_cmp_ge_u32 s77, 320')
            a('s_cselect_b32 s78, 0x%x, 0' % FAR)
            a('s_lshl_b32 s77, s77, 10')
            a('s_mul_i32 s79, s4, 327680')
            a('s_add_u32 s77, s77, s79')
            a('s_or_b32 s77, s77, s78')
            tk['yc'] = a.emit('buffer_store_dwordx4 v[232:235], v241, s[64:67], s77 offen sc1')
    W = cfg.wd_at
    slB = {}
    for i, f in ((W, wd_loads), (W + 2, wd_part), (1, n_issue), (W + 4, flag_after('wds', 's89')), (7, late_srds)):
        slB.setdefault(i, []).append(f)
    def wd_touch_issue():
        a('s_and_b32 s76, s4, 1')
        a('s_mul_i32 s79, s76, 768')
        a('s_add_u32 s79, s79, %d' % F_WD)
        a('v_lshlrev_b32 v16, 2, v1')
        a('v_add_u32 v17, 256, v16')
        a('v_add_u32 v18, 512, v16')
        tk['wt'] = [poll_issue(a, 16 + i, 's79', 19 + i) for i in range(3)]
    def wd_touch():
        for i in range(3): poll_wait(a, cfg, tk['wt'][i], 16 + i, 's79', 19 + i)
        a('s_sub_u32 s77, s5, 20')
        a('s_lshl_b32 s77, s77, 2')
        a('s_add_u32 s77, s77, s10')
        a('s_mul_i32 s77, s77, 20480')
        a('s_and_b32 s76, s4, 1')
        a('s_mul_i32 s76, s76, 983040')
        a('s_add_u32 s76, s76, s77')
        a('v_lshlrev_b32 v16, 7, v1')
        a('v_add_u32 v17, 8192, v16')
        a('v_add_u32 v18, 16384, v16')
        a('v_cmp_gt_u32 vcc, 32, v1')
        a('v_mov_b32 v19, 0x%x' % OOB)
        a('v_cndmask_b32 v18, v19, v18, vcc')
        for i in range(3):
            a('buffer_load_dword v252, v%d, s[48:51], s76 offen sc1' % (16 + i))
    fpollB = lambda: tk.__setitem__('f', poll_issue(a, 240, 's88', 243))
    fwaitB = lambda: (poll_wait(a, cfg, tk['f'], 240, 's88', 243), lds_word(a, 10, 48, 236, 237))
    if cfg.ungate: slB[8] = [fpollB]
    else: slB[7].append(fpollB); slB[8] = [g_loads, fwaitB]
    if cfg.cotouch:
        slB[7].append(wd_touch_issue); slB[8].insert(0, wd_touch)
    if cfg.bclear:
        slB.setdefault(cfg.clr_at, []).append(b_clear)
        slB.setdefault(max(cfg.clr_at + 2, 3), []).append(flag_after('yc', 's87'))
    for i in range(NSTAGE): interval(i, slB, {3: [n_get]})
    if cfg.ungate:
        fwaitB(); g_loads()
    wdl_dma()
    g_compute()
    q_loads()
    tail_issue()
    a('s_setprio 0')
    wdl_publish()
    lds_word_wait(a, cfg, 10, 0, 236, 237, 'Ldummy') if False else None
    tail_check()
    if not odd:
        a('s_branch Lfetch')
        return
    a.pad()
    a.label('Lfetch')
    a.reset_queues()
    a('s_mul_i32 s11, s85, 327680')
    a('s_lshr_b32 s12, s84, 3')
    a('s_lshl_b32 s12, s12, 10')
    a('s_add_u32 s11, s11, s12')
    a('s_and_b32 s12, s84, 7')
    a('s_lshl_b32 s12, s12, 7')
    a('s_add_u32 s11, s11, s12')
    a('s_lshl_b32 s12, s10, 5')
    a('s_add_u32 s11, s11, s12')
    a('v_lshrrev_b32 v24, 1, v1')
    a('v_lshlrev_b32 v24, 12, v24')
    a('v_and_b32 v25, 1, v1')
    a('v_lshl_add_u32 v24, v25, 4, v24')
    a('v_add_u32 v25, 0x20000, v24')
    a('v_add_u32 v26, 0x40000, v24')
    a('v_cmp_gt_u32 vcc, 32, v1')
    a('v_mov_b32 v27, 0x%x' % OOB)
    a('v_cndmask_b32 v26, v27, v26, vcc')
    a('v_lshlrev_b32 v28, 2, v1')
    a('s_add_u32 s12, s83, 3072')
    a('v_add_u32 v28, s12, v28')
    a('v_add_u32 v29, s83, v241')
    a('v_lshlrev_b32 v30, 3, v1')
    a('v_add_u32 v30, s83, v30')
    a('v_add_u32 v31, s82, v241')
    a('s_lshl_b32 s96, s84, 6')
    a('s_lshl_b32 s97, s10, 4')
    a('s_add_u32 s96, s96, s97')
    a('v_and_b32 v33, 15, v1')
    a('v_add_u32 v33, s96, v33')
    a('v_lshlrev_b32 v33, 3, v33')
    lds_word_wait(a, cfg, 10, 64, 236, 237, 'Lgate2')
    prof.stamp(6)
    YV = 40
    lo, ok = newlabel('Ly'), newlabel('Ly_ok')
    a('s_mov_b32 s94, %d' % cfg.spin)
    a.label(lo)
    for i in range(3):
        a('buffer_load_dwordx4 %s, v%d, s[64:67], s11 offen sc1' % (vr(YV + 4 * i, 4), 24 + i))
    a('buffer_load_dwordx2 v[34:35], v33, s[52:55], 0 offen sc1')
    a.wait_all_vm()
    a('v_max3_u32 v27, v%d, v%d, v%d' % (YV, YV + 1, YV + 2))
    for i in range(3, 11, 2):
        a('v_max3_u32 v27, v27, v%d, v%d' % (YV + i, YV + i + 1))
    a('v_max_u32 v27, v27, v%d' % (YV + 11))
    a('v_cmp_eq_u32 vcc, -1, v27')
    a('v_cmp_ne_u32 s[96:97], s%d, v34' % NONCE)
    a('s_or_b64 vcc, vcc, s[96:97]')
    a('s_cbranch_scc0 %s' % ok)
    a('s_sleep %d' % cfg.ysleep)
    a('s_sub_u32 s94, s94, 1')
    a('s_cmp_lg_u32 s94, 0')
    a('s_cbranch_scc1 %s' % lo)
    a.label(ok)
    prof.stamp(7)
    a('v_mov_b32 v%d, v35' % GV)
    a('ds_write_b128 v29, %s' % vr(YV, 4))
    a('ds_write_b128 v29, %s offset:1024' % vr(YV + 4, 4))
    a('ds_write_b128 v29, %s offset:2048' % vr(YV + 8, 4))
    a('v_sub_f32 v32, 1.0, v%d' % GV)
    a('v_cvt_pk_bf16_f32 v32, v32, v32')
    a('v_and_b32 v32, 0xffff0000, v32')
    a('ds_write_b32 v28, v32')
    for dl in range(5):
        x = 72 + 4 * dl
        unpack_lo(a, x, QV + 2 * dl); unpack_hi(a, x + 1, QV + 2 * dl); unpack_lo(a, x + 2, QV + 2 * dl + 1); unpack_hi(a, x + 3, QV + 2 * dl + 1)
        for i in range(4): a('v_mul_f32 v%d, v%d, v%d' % (x + i, GV, x + i))
    a.wait_all_lg()
    tl = [a.emit('ds_read_b64_tr_b16 %s, v30 offset:%d' % (vr(56 + 2 * dl, 2), dl * 512)) for dl in range(5)]
    for dl in range(5):
        a.wait_lg(tl[dl])
        x = 72 + 4 * dl; y = 96
        unpack_lo(a, y, 56 + 2 * dl); unpack_hi(a, y + 1, 56 + 2 * dl); unpack_lo(a, y + 2, 57 + 2 * dl); unpack_hi(a, y + 3, 57 + 2 * dl)
        for i in range(4): a('v_mul_f32 v%d, v%d, v%d' % (x + i, x + i, y + i))
        a('ds_write_b128 v31, %s offset:%d' % (vr(x, 4), dl * 1024))
    a.wait_all_lg()
    a('s_barrier')
    prof.stamp(8)
    prof.flush(243)

def generate(cfg):
    LOCAL[0] = cfg.local
    a = Asm()
    a.raw('.amdgcn_target "amdgcn-amd-amdhsa--gfx950"')
    a.raw('.text')
    kn = NAME + '_kernel'
    kernel_header(a, kn)
    prof = Prof(a, cfg, 0)
    prof.start()
    a('s_cmp_ge_u32 s2, 256')
    a('s_cbranch_scc1 Ldone')
    load_kernargs(a)
    a('v_lshrrev_b32 v2, 6, v0')
    a('v_and_b32 v1, 63, v0')
    a('v_readfirstlane_b32 s3, v2')
    a('s_and_b32 s4, s2, 7')
    a('s_lshr_b32 s5, s2, 3')
    a('s_lshr_b32 s6, s4, 1')
    a('s_mul_i32 s9, s5, 13108')
    a('s_lshr_b32 s9, s9, 16')
    a('s_mul_i32 s7, s9, 5')
    a('s_sub_u32 s7, s5, s7')
    a('s_and_b32 s8, s4, 1')
    a('s_mul_i32 s10, s8, 5')
    a('s_add_u32 s7, s7, s10')
    a('s_lshl_b32 s10, s8, 1')
    a('s_mul_i32 s8, s6, 6')
    a('s_add_u32 s8, s8, s9')
    a('s_lshl_b32 s11, s6, 2')
    a('s_add_u32 s10, s10, s11')
    a('s_add_u32 s10, s10, s5')
    a('s_sub_u32 s10, s10, 30')
    a('s_cmp_ge_u32 s5, 30')
    a('s_cselect_b32 s8, s10, s8')
    a('s_cselect_b32 s7, 15, s7')
    a('s_cmp_lt_u32 s3, 4')
    a('s_cbranch_scc1 Lcwave')
    h0 = list(a.hist)
    l_wave(a, cfg, prof)
    a.label('Ldone')
    a('s_endpgm')
    a.hist = h0; a.reset_queues()
    a.label('Lcwave')
    c_wave(a, cfg, prof)
    hdr = open('cdna_kernels/%s.s.ref' % NAME).read().split('; Override launch')[0]
    hdr += '; generated by dev/gen11.py (hand-written generator)\n'
    hdr += '; @launch grid=(256,1,1) block=(512,1,1) lds=%d\n' % LDS
    return hdr + a.text() + kernel_desc(kn, 256)

if __name__ == '__main__':
    cfg = Cfg()
    out = sys.argv[1]
    for kv in sys.argv[2:]:
        k, v = kv.split('=')
        assert hasattr(cfg, k), k
        setattr(cfg, k, int(v))
    open(out, 'w').write(generate(cfg))
```

```python
import sys
from asmlib import *
from gen2 import (NAME, WS_H, SZ_H, WS_WD, SZ_WD, WS_UT, SZ_UT, WS_Y2, SZ_Y2, WS_G, SZ_G, WS_PROF, SZ_X, SZ_W, OOB,
                  P_Q, P_K, P_V, P_SHK, P_SSMK, P_SSMD, P_BX, P_WG, P_WU, P_WD, P_GW, P_OUT, P_DBG, P_WS,
                  load_kernargs, srd, Prof, kernel_header, kernel_desc, unpack_lo, unpack_hi, P2, u32)
import gen8
from gen8 import (newlabel, row_off, conv_setup, conv_main, FAR, QV, GV, SF, NONCE, VZ, VN, flag_store, poll_issue, poll_wait,
                  lane_min, lds_spin)

SZ_G = 16384
WS_F = WS_G + SZ_G
F_UT, F_H, F_WD, F_G, F_YC = 0, 2560, 14848, 16384, 17408
SZ_F = 19968

class Cfg:
    prof = 0
    lstamp = 1
    spin = 200000
    g1prio = 0
    cprio = 2
    lprio = 2
    vprio = 1
    ysleep = 8
    hsleep = 2
    nb = 4
    pub_at = 24
    local = 0
    dstore = 0
    ygate = 3
    late = 5
    kvfirst = 0
    rot2 = 0
    ungate = 0
    na = 4
    clr_at = 0
    gsleep = 6
    utf_at = 5
    wdf_d = 3
    fsleep = 4
    pollpre8 = 1
    alt = 0
    yflag = 0
    grp = 0
    spf = 0
    spfx = 8
    cotouch = 0
    pollat = 99
    quiet = 1
    fin = 1
    areg = 0
    nine = 0
    early = 0
    bclear = 1
    xrot = 1
    kv_at = 0
    wd_at = 1
    cclear = 0
    drop = 0
    lsteps = 0
    c0 = 1

SLOT = 41088
OFF_GATE, OFF_UP = 16384, 16384 + 12320
NSTAGE, NSLOT = 10, 3
PA = NSLOT * SLOT
QA = PA + 4 * 5120
QSZ = 4224
CNT = QA + 4 * QSZ
LDS = CNT + 128
def wblk(i): return [SLOT, SLOT + 5120, 2 * SLOT, 2 * SLOT + 5120, 0, 5120][i]

def wave_common(a):
    srd(a, SF, P_WS, SZ_F, WS_F)
    a('v_cmp_eq_u32 vcc, 0, v1')
    a('v_mov_b32 v%d, 0x%x' % (VZ, OOB))
    a('v_cndmask_b32 v%d, v%d, 0, vcc' % (VZ, VZ))

LOCAL = [0]
def g2_scalars(a, st, dt):
    if not LOCAL[0]: return gen8.g2_scalars(a, st, dt)
    a('s_lshl_b32 s%d, s4, 2' % st)
    a('s_and_b32 s%d, s5, 3' % dt)
    a('s_add_u32 s%d, s%d, s%d' % (st, st, dt))
    a('s_lshr_b32 s%d, s5, 2' % dt)

def rot_off(a, cfg, d):
    if cfg.rot2 == 1:
        a('s_and_b32 s%d, s85, 3' % d)
        a('s_mul_i32 s%d, s%d, 6' % (d, d))
        a('s_and_b32 s96, s84, 7')
        a('s_mul_i32 s96, s96, 3')
        a('s_add_u32 s%d, s%d, s96' % (d, d))
        a('s_lshr_b32 s%d, s%d, 1' % (d, d))
    elif cfg.rot2 == 3:
        a('s_and_b32 s%d, s84, 7' % d)
        a('s_mul_i32 s%d, s%d, 3' % (d, d))
        a('s_lshr_b32 s%d, s%d, 1' % (d, d))
    else:
        a('s_and_b32 s%d, s85, 3' % d)
        a('s_mul_i32 s%d, s%d, 3' % (d, d))
    a('s_cmp_ge_u32 s%d, 12' % d)
    a('s_cselect_b32 s96, 12, 0')
    a('s_sub_u32 s%d, s%d, s96' % (d, d))
def kap(a, d, off, k):
    a('s_add_u32 s%d, s%d, %d' % (d, off, k))
    a('s_cmp_ge_u32 s%d, 12' % d)
    a('s_cselect_b32 s96, 12, 0')
    a('s_sub_u32 s%d, s%d, s96' % (d, d))

def lds_word(a, sw, off, t0, t1):
    a('s_lshl_b32 s96, s%d, 2' % sw)
    a('s_add_u32 s96, s96, %d' % (CNT + off))
    a('v_mov_b32 v%d, s96' % t0)
    a('v_mov_b32 v%d, 1' % t1)
    a('ds_write_b32 v%d, v%d' % (t0, t1))
def lds_word_wait(a, cfg, sw, off, t0, t1, name, sleep=1):
    a('s_lshl_b32 s96, s%d, 2' % sw)
    a('s_add_u32 s96, s96, %d' % (CNT + off))
    a('v_mov_b32 v%d, s96' % t0)
    lds_spin(a, cfg, t0, t1, 96, 'eq', 1, name, sleep)

def c_setup_odd(a):
    a('s_and_b32 s10, s3, 1')
    a('s_lshr_b32 s11, s3, 1')
    a('v_and_b32 v2, 31, v1')
    a('v_lshrrev_b32 v3, 5, v1')
    a('v_lshrrev_b32 v9, 1, v2')
    a('v_and_b32 v9, 7, v9')
    a('v_xor_b32 v9, v9, v3')
    a('v_lshlrev_b32 v9, 4, v9')
    a('v_lshl_add_u32 v9, v2, 7, v9')
    a('s_lshl_b32 s12, s11, 13')
    a('v_add_u32 v4, s12, v9')
    a('v_xor_b32 v5, 32, v4')
    a('v_xor_b32 v6, 64, v4')
    a('v_xor_b32 v7, 96, v4')
    a('v_bfe_u32 v9, v1, 4, 1')
    a('v_mul_u32_u24 v8, 12320, v9')
    a('v_bfe_u32 v9, v1, 2, 2')
    a('v_lshl_add_u32 v9, v3, 3, v9')
    a('v_mul_u32_u24 v9, 192, v9')
    a('v_add_u32 v8, v8, v9')
    a('v_and_b32 v9, 3, v1')
    a('v_lshl_add_u32 v8, v9, 3, v8')
    a('s_mul_i32 s12, s10, 96')
    a('s_add_u32 s12, s12, %d' % OFF_GATE)
    a('v_add_u32 v8, s12, v8')
    a('v_lshrrev_b32 v9, 4, v2')
    a('v_lshlrev_b32 v10, 10, v9')
    a('v_lshl_add_u32 v10, v3, 8, v10')
    a('v_and_b32 v9, 15, v2')
    a('v_lshl_add_u32 v10, v9, 4, v10')
    a('s_lshl_b32 s12, s7, 1')
    a('s_add_u32 s12, s12, s11')
    a('s_mul_i32 s13, s8, 6')
    a('s_mul_i32 s14, s10, 3')
    a('s_add_u32 s13, s13, s14')
    a('s_mul_i32 s79, s12, 96')
    a('s_add_u32 s79, s79, s13')
    a('s_lshl_b32 s79, s79, 2')
    a('s_add_u32 s79, s79, %d' % F_H)
    a('s_mul_i32 s12, s12, 196608')
    for tt in range(3):
        a('s_add_u32 s14, s13, %d' % tt)
        a('s_lshr_b32 s15, s14, 1')
        a('s_lshl_b32 s15, s15, 12')
        a('s_and_b32 s14, s14, 1')
        a('s_lshl_b32 s14, s14, 9')
        a('s_add_u32 s14, s14, s15')
        a('s_add_u32 s%d, s14, s12' % (76 + tt))
    a('v_lshlrev_b32 v249, 2, v1')
    a('v_add_u32 v249, s79, v249')
    a('v_cmp_gt_u32 vcc, 3, v1')
    a('v_mov_b32 v9, 0x%x' % OOB)
    a('v_cndmask_b32 v249, v9, v249, vcc')

def c_setup_main(a):
    a('s_and_b32 s10, s3, 1')
    a('s_lshr_b32 s11, s3, 1')
    a('v_and_b32 v2, 31, v1')
    a('v_lshrrev_b32 v3, 5, v1')
    a('v_lshrrev_b32 v9, 1, v2')
    a('v_and_b32 v9, 7, v9')
    a('v_xor_b32 v9, v9, v3')
    a('v_lshlrev_b32 v9, 4, v9')
    a('v_lshl_add_u32 v9, v2, 7, v9')
    a('s_mul_i32 s12, s11, 12288')
    a('v_add_u32 v4, s12, v9')
    a('v_xor_b32 v5, 32, v4')
    a('v_xor_b32 v6, 64, v4')
    a('v_xor_b32 v7, 96, v4')
    a('v_bfe_u32 v9, v1, 4, 1')
    a('v_bfe_u32 v11, v1, 2, 2')
    a('v_lshl_add_u32 v8, v3, 3, v11')
    a('v_lshlrev_b32 v8, 7, v8')
    a('v_lshl_add_u32 v8, v9, 13, v8')
    a('v_xor_b32 v9, s10, v9')
    a('v_lshl_add_u32 v8, v9, 6, v8')
    a('v_lshrrev_b32 v11, 1, v11')
    a('v_lshl_add_u32 v8, v11, 5, v8')
    a('v_and_b32 v9, 3, v1')
    a('v_lshl_add_u32 v8, v9, 3, v8')
    a('v_add_u32 v8, 24576, v8')
    a('v_xor_b32 v11, 32, v8')
    a('v_lshrrev_b32 v9, 4, v2')
    a('v_lshlrev_b32 v10, 10, v9')
    a('v_lshl_add_u32 v10, v3, 8, v10')
    a('v_and_b32 v9, 15, v2')
    a('v_lshl_add_u32 v10, v9, 4, v10')
    a('s_lshl_b32 s13, s8, 1')
    a('s_add_u32 s13, s13, s10')
    a('v_mov_b32 v249, 0x%x' % OOB)
    for b in range(3):
        a('s_mul_i32 s12, s11, 3')
        a('s_add_u32 s12, s12, %d' % b)
        a('s_and_b32 s14, s12, 1')
        a('s_lshr_b32 s12, s12, 1')
        a('s_mul_i32 s15, s7, 3')
        a('s_add_u32 s12, s12, s15')
        a('s_mul_i32 s15, s12, 96')
        a('s_add_u32 s15, s15, s14')
        a('s_lshl_b32 s79, s13, 1')
        a('s_add_u32 s15, s15, s79')
        a('s_lshl_b32 s15, s15, 2')
        a('s_add_u32 s15, s15, %d' % F_H)
        a('v_writelane_b32 v249, s15, %d' % b)
        a('s_mul_i32 s12, s12, 196608')
        a('s_lshl_b32 s14, s14, 11')
        a('s_add_u32 s12, s12, s14')
        a('s_lshl_b32 s14, s13, 12')
        a('s_add_u32 s%d, s12, s14' % (76 + b))

def c_gemm1(a, cfg, prof, odd):
    ACC = 64
    FB = [16, 40]
    if odd:
        NT_, NBT = 3, 2
        def reads(buf, ks):
            f = FB[buf]
            A = lambda tt: ['ds_read_b64_tr_b16 v[%d:%d], v8 offset:%d' % (f + 4 * tt + 2 * t, f + 4 * tt + 2 * t + 1, ks * 3072 + t * 768 + tt * 32) for t in range(2)]
            B = lambda b: ['ds_read_b128 v[%d:%d], v%d offset:%d' % (f + 12 + 4 * b, f + 15 + 4 * b, 4 + ks, b * 4096)]
            return A(0) + B(0) + B(1) + A(1) + A(2)
        order = [(0, 0, 2), (0, 1, 3), (1, 0, 5), (1, 1, 5), (2, 0, 7), (2, 1, 7)]
        s3_, sn = {1: 3, 2: 2, 3: 2, 4: 1}, {0: 2, 1: 2, 2: 2, 3: 2}
        addr = (4, 5, 6, 7, 8)
        store = lambda tt, b: (76 + tt, b * 2048)
    else:
        NT_, NBT = 2, 3
        def reads(buf, ks):
            f = FB[buf]
            A = lambda tt: ['ds_read_b64_tr_b16 v[%d:%d], v%d offset:%d' % (f + 4 * tt + 2 * t, f + 4 * tt + 2 * t + 1, (8, 11)[tt], ks * 2048 + t * 512) for t in range(2)]
            B = lambda b: ['ds_read_b128 v[%d:%d], v%d offset:%d' % (f + 8 + 4 * b, f + 11 + 4 * b, 4 + ks, b * 4096)]
            return A(0) + B(0) + B(1) + B(2) + A(1)
        order = [(0, 0, 2), (0, 1, 3), (0, 2, 4), (1, 0, 6), (1, 1, 6), (1, 2, 6)]
        s3_, sn = {1: 3, 2: 2, 3: 2}, {0: 2, 1: 2, 2: 2, 3: 1}
        addr = (4, 5, 6, 7, 8, 11)
        store = lambda tt, b: (76 + b, tt * 512)
    def acc(tt, b): return ACC + (tt * NBT + b) * 16
    a('s_setprio %d' % cfg.g1prio)
    a('s_barrier')
    prof.stamp(1); prof.cyc(5)
    toks = [a.emit(r) for r in reads(0, 0)]
    cur = 0
    for st in range(NSTAGE):
        for ks in range(4):
            last = (st == NSTAGE - 1 and ks == 3)
            nxt = None if last else reads(1 - cur, (ks + 1) % 4)
            ntoks = []
            f = FB[cur]
            for mi, (tt, b, need_i) in enumerate(order):
                a.wait_lg(toks[need_i])
                c = '0' if (st == 0 and ks == 0) else vr(acc(tt, b), 16)
                a('v_mfma_f32_32x32x16_bf16 %s, %s, %s, %s' % (vr(acc(tt, b), 16), vr(f + 4 * tt, 4), vr(f + 4 * NT_ + 4 * b, 4), c))
                if nxt is not None:
                    if ks == 3:
                        if mi == 0:
                            skip = cfg.nine and st == NSTAGE - 2
                            if not skip: a.wait_all_lg()
                            d = SLOT if (st + 1) % NSLOT else -(NSLOT - 1) * SLOT
                            for r in addr:
                                a('v_add_u32 v%d, 0x%x, v%d' % (r, u32(d), r))
                            if not skip: a('s_barrier')
                            if st == NSTAGE - 2: a('s_setprio %d' % cfg.cprio)
                        sched = s3_
                    else:
                        sched = sn
                    for _ in range(sched.get(mi, 0)):
                        ntoks.append(a.emit(nxt[len(ntoks)]))
                if st == 9 and cfg.areg:
                    n = ks * 6 + mi - 1
                    if 0 <= n < 5 * cfg.areg:
                        k, dl = n // 5, n % 5
                        if dl == 0: a('s_add_u32 s14, s86, %d' % (5120 * k))
                        b_ = 160 + k * 20 + 4 * dl
                        if dl < 4: a('buffer_load_dwordx4 %s, v240, s[48:51], s14 offen offset:%d sc1' % (vr(b_, 4), 1024 * dl))
                        else: a('buffer_load_dwordx4 %s, v241, s[48:51], s14 offen sc1' % vr(b_, 4))
                if (st, ks, mi) == (6, 1, 5):
                    a('v_mov_b32 v9, %d' % (CNT + 32))
                    a('ds_read_b32 v%d, v9' % VN)
                if (st, ks, mi) == (7, 0, 5) and cfg.cclear and not odd:
                    a.emit('s_waitcnt vmcnt(0)')
                    flag_store(a, 's80')
            toks = ntoks
            cur = 1 - cur
    prof.stamp(2); prof.cyc(6)
    for tt in range(NT_):
        for b in range(NBT):
            x = acc(tt, b)
            o = 16 + (tt * NBT + b) * 4
            for p in range(8):
                a('v_mul_f32 v%d, v%d, v%d' % (x + p, x + p, x + 8 + p))
            for p in range(4):
                a('v_cvt_pk_bf16_f32 v%d, v%d, v%d' % (o + p, x + 2 * p, x + 2 * p + 1))
            a('buffer_store_dwordx4 %s, v10, s[44:47], s%d offen offset:%d sc1' % ((vr(o, 4),) + store(tt, b)))

def c_common(a, cfg):
    g2_scalars(a, 84, 85)
    a('s_mul_i32 s86, s85, 245760')
    a('s_mul_i32 s96, s3, 61440')
    a('s_add_u32 s86, s86, s96')
    a('s_mul_i32 s87, s84, 196608')
    a('s_mul_i32 s96, s3, 49152')
    a('s_add_u32 s87, s87, s96')
    a('s_mul_i32 s88, s3, 10240')
    a('s_mul_i32 s83, s84, 384')
    a('s_mul_i32 s96, s3, 96')
    a('s_add_u32 s83, s83, s96')
    a('s_add_u32 s83, s83, %d' % F_H)
    row_off(a, 244, 245, 84, 85, 3)
    a('v_lshlrev_b32 v240, 4, v1')
    a('v_add_u32 v241, 4096, v240')
    lane_min(a, 246, 24)
    a('v_and_b32 v9, 31, v1')
    a('v_lshlrev_b32 v9, 2, v9')
    a('v_add_u32 v9, %d, v9' % CNT)
    a('v_mov_b32 v12, 0')
    a('ds_write_b32 v9, v12')
    a.emit('s_waitcnt lgkmcnt(0)'); a.lgq = []
    srd(a, 44, P_WS, SZ_H, WS_H)
    srd(a, 48, P_WS, SZ_WD, WS_WD)
    srd(a, 56, P_OUT, SZ_X)
    wave_common(a)
    if cfg.rot2:
        rot_off(a, cfg, 95)
        for k in range(12): kap(a, 16 + k, 95, k)
    if cfg.spf > 2:
        SPF.X, SPF.WG, SPF.WU = P_Q, P_WG, P_WU
        sp = SPF(a, cfg, 3, 62, 66, 64, 65, 2)
        SPF.X, SPF.WG, SPF.WU = 44, 48, 52
        sp.upto(cfg.spf - 1)
    if cfg.cclear:
        srd(a, 60, P_WS, SZ_Y2, WS_Y2)
        a('s_mul_i32 s80, s4, 20')
        a('s_add_u32 s80, s80, s5')
        a('s_lshl_b32 s80, s80, 2')
        a('s_add_u32 s80, s80, s3')
        a('s_lshl_b32 s81, s80, 12')
        a('s_lshl_b32 s80, s80, 2')
        a('s_add_u32 s80, s80, %d' % F_YC)
        a('s_cmp_ge_u32 s5, 20')
        a('s_cselect_b32 s96, 0x%x, 0' % FAR)
        a('s_or_b32 s80, s80, s96')
        a('s_or_b32 s81, s81, s96')
        for i in range(4): a('v_mov_b32 v%d, -1' % (160 + i))
        for i in range(4):
            a('buffer_store_dwordx4 v[160:163], v240, s[60:63], s81 offen offset:%d sc1' % (1024 * i))

def c_wave(a, cfg, prof):
    h0 = list(a.hist)
    a('s_cmp_ge_u32 s5, 30')
    a('s_cbranch_scc1 LCodd')
    c_setup_main(a)
    c_common(a, cfg)
    c_gemm1(a, cfg, prof, False)
    a('s_branch LCjoin')
    a.hist = h0; a.reset_queues()
    a.label('LCodd')
    c_setup_odd(a)
    c_common(a, cfg)
    c_gemm1(a, cfg, prof, True)
    a.label('LCjoin')
    prof.stamp(3)
    a('v_readfirstlane_b32 s%d, v%d' % (NONCE, VN))
    a.wait_all_vm()
    flag_store(a, '0', 249)
    a('s_setprio 0')
    prof.stamp(7); prof.cyc(40)
    NA, NB = cfg.na, cfg.nb
    NL = 6 if cfg.c0 else 4
    L0 = 12 - NL
    LS = cfg.lsteps
    assert not cfg.quiet or LS == 0
    cblocks = ([4, 5] if cfg.c0 else []) + list(range(LS, 4))
    border = cblocks + list(range(LS))
    AB = 240 - 20 * NA; ACC2 = AB - 80 - (8 if NA == 4 else 0); BB = 8
    assert BB + 16 * NB <= ACC2 and not (cfg.areg and NA != 4)
    RD = 160 if NA == 4 else 12
    gtok = {}
    def acc2(dl, sg): return ACC2 + (sg * 5 + dl) * 4
    def wdoff(k):
        if cfg.rot2:
            a('s_mul_i32 s14, s%d, 5120' % (16 + k))
            a('s_add_u32 s14, s14, s86')
        else: a('s_add_u32 s14, s86, %d' % (5120 * k))
    def lbase(off): return ('v4', off) if off < SLOT else ('v7', off - SLOT)
    def issueA(k):
        b = AB + (k % NA) * 20
        if k >= L0:
            i = border[k - L0]
            if i == 0 and LS: lds_word_wait(a, cfg, 3, 16, 5, 6, 'Lwf')
            base, off = lbase(wblk(i))
            for dl in range(5):
                gtok[(k, 'a')] = a.emit('ds_read_b128 %s, %s offset:%d' % (vr(b + 4 * dl, 4), base, off + dl * 1024))
            return
        wdoff(k)
        for dl in range(4):
            a('buffer_load_dwordx4 %s, v240, s[48:51], s14 offen offset:%d sc1' % (vr(b + 4 * dl, 4), 1024 * dl))
        gtok[(k, 'a')] = a.emit('buffer_load_dwordx4 %s, v241, s[48:51], s14 offen sc1' % vr(b + 16, 4))
    def issueB(k):
        b = BB + (k % NB) * 16
        if cfg.rot2:
            a('s_lshl_b32 s15, s%d, 12' % (16 + k))
            a('s_add_u32 s15, s15, s87')
        else: a('s_add_u32 s15, s87, %d' % (4096 * k))
        for sg in range(4):
            gtok[(k, sg)] = a.emit('buffer_load_dwordx4 %s, v240, s[44:47], s15 offen offset:%d sc1' % (vr(b + 4 * sg, 4), 1024 * sg))
    a('v_add_u32 v4, s88, v240')
    a('v_add_u32 v7, %d, v4' % SLOT)
    a('v_mov_b32 v5, %d' % CNT)
    a('v_mov_b32 v6, 1')
    a('v_cmp_eq_u32 vcc, 0, v1')
    a('s_and_saveexec_b64 s[90:91], vcc')
    a('ds_add_u32 v5, v6')
    a('s_mov_b64 exec, s[90:91]')
    lds_spin(a, cfg, 5, 6, 82, 'ge', 4, 'Lcsync')
    lds_word_wait(a, cfg, 3, 48, 5, 6, 'Lwok')
    assert not (cfg.areg and (cfg.ungate or cfg.nine or cfg.rot2))
    for k in range(cfg.areg): gtok[(k, 'a')] = -1
    for k in range(cfg.areg, NA): issueA(k)
    t = None
    for n, i in enumerate(cblocks):
        if n == cfg.pollat: t = poll_issue(a, 246, 's83', 247)
        wdoff(L0 + n)
        a('s_add_u32 m0, s88, %d' % wblk(i))
        for dl in range(4):
            a('buffer_load_dwordx4 v240, s[48:51], s14 offen offset:%d sc1 lds' % (1024 * dl))
        a('s_add_u32 m0, s88, %d' % (wblk(i) + 4096))
        a('buffer_load_dwordx4 v241, s[48:51], s14 offen sc1 lds')
    if t is None: t = poll_issue(a, 246, 's83', 247)
    def group_wait(tok, g):
        if cfg.rot2:
            a('s_lshl_b32 s80, s%d, 1' % (16 + 4 * g))
            a('s_lshl_b64 s[80:81], 0xff, s80') if False else None
            a('s_mov_b32 s81, 0xff')
            a('s_lshl_b32 s82, s81, s80')
            a('s_sub_u32 s80, 24, s80')
            a('s_lshr_b32 s81, s81, s80')
            a('s_or_b32 s82, s82, s81')
            a('s_and_b32 s82, s82, 0xffffff')
        else:
            a('s_mov_b32 s82, 0x%x' % (0xff << (8 * g)))
        a.wait_vm(tok)
        lo, ok = newlabel('Lg'), newlabel('Lg_ok')
        a('s_mov_b32 s94, %d' % cfg.spin)
        a.label(lo)
        a('v_cmp_ne_u32 vcc, s%d, v247' % NONCE)
        a('s_nop 0')
        a('s_and_b32 s81, vcc_lo, s82')
        a('s_cbranch_scc0 %s' % ok)
        a('s_sleep %d' % cfg.hsleep)
        poll_issue(a, 246, 's83', 247)
        a.emit('s_waitcnt vmcnt(0)')
        a.vmq.pop()
        a('s_sub_u32 s94, s94, 1')
        a('s_cmp_lg_u32 s94, 0')
        a('s_cbranch_scc1 %s' % lo)
        a.label(ok)
    if cfg.grp:
        assert NB == 4
        group_wait(t, 0)
    else:
        poll_wait(a, cfg, t, 246, 's83', 247, sleep=cfg.hsleep)
    prof.stamp(8); prof.cyc(41)
    if cfg.grp: gp = {1: poll_issue(a, 246, 's83', 247)}
    for k in range(NB): issueB(k)
    def step(k, sgs, after=None):
        ab_, bb_ = AB + (k % NA) * 20, BB + (k % NB) * 16
        if k >= L0: a.wait_lg(gtok[(k, 'a')])
        else: a.wait_vm(gtok[(k, 'a')])
        for n, sg in enumerate(sgs):
            a.wait_vm(gtok[(k, sg)])
            if n == 0: prof.stamp(10 + k)
            for dl in range(5):
                c = '0' if k == 0 else vr(acc2(dl, sg), 4)
                a('v_mfma_f32_16x16x32_bf16 %s, %s, %s, %s' % (vr(acc2(dl, sg), 4), vr(ab_ + 4 * dl, 4), vr(bb_ + 4 * sg, 4), c))
                if after: after(n, dl)
    NK = 11 if cfg.fin else 12
    for k in range(NK):
        step(k, range(4))
        if cfg.grp and k in (0, 4): group_wait(gp[k // 4 + 1], k // 4 + 1)
        if cfg.grp and k == 2: gp[2] = poll_issue(a, 246, 's83', 247)
        if k + NB < 12: issueB(k + NB)
        if k + NA < 12: issueA(k + NA)
        if k == cfg.ygate: lds_word(a, 3, 64, 5, 6)
    def blk(w, sg): return w * 10240 + wblk(sg if sg < w else sg - 1)
    a('v_add_u32 v7, %d, v240' % SLOT)
    a('v_add_u32 v4, %d, v7' % SLOT)
    if not cfg.fin: a('s_nop 7')
    else:
        a.wait_lg(gtok[(11, 'a')])
        a.wait_all_vm()
    for w in range(3):
        a('s_cmp_eq_u32 s3, %d' % (w + 1))
        a('s_cbranch_scc1 Lfin%d' % (w + 1))
    hist0 = [] if cfg.fin else list(a.hist)
    def ab(off): return ('v7', off - SLOT) if off < 2 * SLOT else ('v4', off - 2 * SLOT)
    for w in range(4):
        a.hist = list(hist0); a.vmq = []; a.lgq = []
        a.label('Lfin%d' % w)
        others = [x for x in range(4) if x != w]
        def wr(sg, dl):
            r, o = ab(blk(w, sg) + dl * 1024)
            a('ds_write_b128 %s, %s offset:%d' % (r, vr(acc2(dl, sg), 4), o))
        if cfg.fin:
            pend = []
            def after(n, dl):
                if n < 3: pend.append((others[n], dl))
                if len(pend) > 6 or (n == 3 and pend): wr(*pend.pop(0))
            step(11, others + [w], after=after)
            while pend: wr(*pend.pop(0))
        else:
            for sg in others:
                for dl in range(5): wr(sg, dl)
        prof.stamp(9); prof.cyc(42)
        a('v_add_u32 v5, %d, v240' % (PA + w * 5120))
        a('v_lshlrev_b32 v3, 2, v1')
        a('v_add_u32 v3, %d, v3' % (QA + w * QSZ + 3072))
        a.wait_all_lg()
        a('s_barrier')
        prof.stamp(30)
        tl = {}
        tl['omg'] = a.emit('ds_read_b32 v6, v3')
        for dl in range(5):
            for si, x in enumerate(others):
                r, o = ab(blk(x, w) + dl * 1024)
                tl[(dl, si)] = a.emit('ds_read_b128 %s, %s offset:%d' % (vr(RD + (dl * 4 + si) * 4, 4), r, o))
            tl[(dl, 3)] = a.emit('ds_read_b128 %s, v5 offset:%d' % (vr(RD + (dl * 4 + 3) * 4, 4), dl * 1024))
        for dl in range(5):
            x = acc2(dl, w)
            for si in range(3):
                a.wait_lg(tl[(dl, si)])
                r = RD + (dl * 4 + si) * 4
                a('v_pk_add_f32 %s, %s, %s' % (P2(x), P2(x), P2(r)))
                a('v_pk_add_f32 %s, %s, %s' % (P2(x + 2), P2(x + 2), P2(r + 2)))
            ga = RD + (dl * 4 + 3) * 4
            t = 8 + (dl & 1) * 2 if NA != 4 else 12 + (dl & 1) * 4
            a.wait_lg(tl[(dl, 3)])
            for i in range(4): a('v_fma_f32 v%d, v6, v%d, v%d' % (x + i, x + i, ga + i))
            a('v_cvt_pk_bf16_f32 v%d, v%d, v%d' % (t, x, x + 1))
            a('v_cvt_pk_bf16_f32 v%d, v%d, v%d' % (t + 1, x + 2, x + 3))
            a('buffer_store_dwordx2 %s, v244, s[56:59], 0 offen offset:%d' % (vr(t, 2), dl * 32))
        prof.stamp(4)
        prof.flush(243)
        a('s_endpgm')

class SPF:
    def __init__(self, a, cfg, wv, pw, px, cur, dst, first):
        self.a, self.cfg, self.pw, self.px, self.cur, self.dst, self.next = a, cfg, pw, px, cur, dst, first
        a('s_lshl_b32 s96, s5, 2')
        a('s_add_u32 s96, s96, s%d' % wv)
        a('s_and_b32 s%d, s4, 1' % cur)
        a('s_mul_i32 s%d, s%d, 10' % (cur, cur))
        a('s_mul_i32 s97, s6, 5')
        a('s_add_u32 s%d, s%d, s97' % (cur, cur))
        a('s_lshr_b32 s%d, s%d, 1' % (cur, cur))
        if cfg.xrot == 0: a('s_mov_b32 s%d, 0' % cur)
        a('s_add_u32 s%d, s%d, %d' % (cur, cur, first))
        for _ in range(2):
            a('s_cmp_ge_u32 s%d, 10' % cur)
            a('s_cselect_b32 s97, 10, 0')
            a('s_sub_u32 s%d, s%d, s97' % (cur, cur))
        a('s_bitcmp1_b32 s96, 0')
        a('s_cselect_b32 s%d, s%d, s%d' % (pw, self.WU, self.WG))
        a('s_cselect_b32 s%d, s%d, s%d' % (pw + 1, self.WU + 1, self.WG + 1))
        a('s_lshr_b32 s97, s96, 1')
        a('s_mul_i32 s97, s97, 3072')
        a('s_mul_i32 s%d, s6, 768' % dst)
        a('s_add_u32 s97, s97, s%d' % dst)
        a('s_mul_i32 s%d, s%d, 196608' % (dst, cur))
        a('s_add_u32 s97, s97, s%d' % dst)
        a('s_add_u32 s%d, s%d, s97' % (pw, pw))
        a('s_addc_u32 s%d, s%d, 0' % (pw + 1, pw + 1))
        a('s_lshr_b32 s97, s96, 3')
        a('s_min_u32 s97, s97, 14')
        a('s_and_b32 s%d, s4, 1' % dst)
        a('s_mul_i32 s%d, s%d, 15' % (dst, dst))
        a('s_add_u32 s97, s97, s%d' % dst)
        a('s_and_b32 s96, s96, 7')
        a('s_lshr_b32 s%d, s97, 3' % dst)
        a('s_lshl_b32 s%d, s%d, 9' % (dst, dst))
        a('s_add_u32 s96, s96, s%d' % dst)
        a('s_and_b32 s97, s97, 7')
        a('s_lshl_b32 s97, s97, 3')
        a('s_add_u32 s96, s96, s97')
        a('s_mul_i32 s96, s96, 1280')
        a('s_lshl_b32 s97, s%d, 7' % cur)
        a('s_add_u32 s96, s96, s97')
        a('s_add_u32 s%d, s%d, s96' % (px, self.X))
        a('s_addc_u32 s%d, s%d, 0' % (px + 1, self.X + 1))
    X, WG, WU = 44, 48, 52
    def upto(self, st):
        a = self.a
        while self.next <= min(st, NSTAGE - 1):
            for i in range(6): a('s_load_dword s%d, s[%d:%d], %d' % (self.dst, self.pw, self.pw + 1, 128 * i))
            for i in range(self.cfg.spfx): a('s_load_dword s%d, s[%d:%d], %d' % (self.dst, self.px, self.px + 1, 81920 * i))
            a('s_add_u32 s%d, s%d, 1' % (self.cur, self.cur))
            a('s_cmp_eq_u32 s%d, 10' % self.cur)
            a('s_cselect_b32 s96, %d, 196608' % 0) if False else None
            a('s_cselect_b32 s96, 1966080, 0')
            a('s_cselect_b32 s97, 1280, 0')
            a('s_sub_u32 s%d, s%d, s96' % (self.pw, self.pw)); a('s_subb_u32 s%d, s%d, 0' % (self.pw + 1, self.pw + 1))
            a('s_add_u32 s%d, s%d, 196608' % (self.pw, self.pw)); a('s_addc_u32 s%d, s%d, 0' % (self.pw + 1, self.pw + 1))
            a('s_sub_u32 s%d, s%d, s97' % (self.px, self.px)); a('s_subb_u32 s%d, s%d, 0' % (self.px + 1, self.px + 1))
            a('s_add_u32 s%d, s%d, 128' % (self.px, self.px)); a('s_addc_u32 s%d, s%d, 0' % (self.px + 1, self.px + 1))
            self.next += 1

class Loader:
    def __init__(self, a, cfg, prof, odd):
        self.a, self.odd, self.tok = a, odd, {}
        if odd:
            a('v_lshrrev_b32 v9, 3, v1')
            a('v_and_b32 v10, 7, v1')
            a('v_lshrrev_b32 v11, 1, v9')
            a('v_xor_b32 v10, v10, v11')
            a('v_lshlrev_b32 v10, 4, v10')
            a('s_mov_b32 s12, 81920')
            a('v_mul_lo_u32 v9, v9, s12')
            a('v_add_u32 v2, v9, v10')
            a('v_xor_b32 v10, 64, v10')
            a('v_add_u32 v3, v9, v10')
            a('v_add_u32 v3, 256, v3')
            a('v_add_u32 v4, 512, v2')
            a('v_add_u32 v5, 512, v3')
            for i in range(3):
                a('v_add_u32 v9, %d, v1' % (64 * i))
                a('v_mul_u32_u24 v10, 5462, v9')
                a('v_lshrrev_b32 v10, 16, v10')
                a('v_mul_u32_u24 v11, 12, v10')
                a('v_sub_u32 v11, v9, v11')
                a('v_mul_u32_u24 v10, 3072, v10')
                a('v_lshl_add_u32 v10, v11, 4, v10')
                a('v_subrev_u32 v%d, %d, v10' % (6 + i, 1024 * i))
            a('s_mov_b32 s12, %d' % (512 * 3 + 16 * 3))
            a('s_lshl_b32 s13, s10, 2')
            a('s_add_u32 s12, s12, s13')
            a('s_mul_i32 s12, s12, 1280')
            a('s_mul_i32 s13, s10, 49152')
            a('s_mul_i32 s14, s8, 192')
            a('s_add_u32 s13, s13, s14')
            a('s_lshl_b32 s14, s10, 12')
            a('s_mul_i32 s15, s10, 3072')
        else:
            a('v_lshrrev_b32 v9, 3, v1')
            a('v_and_b32 v10, 7, v1')
            a('v_lshrrev_b32 v11, 1, v9')
            a('v_xor_b32 v4, v10, v11')
            a('v_lshlrev_b32 v4, 4, v4')
            a('s_mov_b32 s12, 81920')
            a('v_mul_lo_u32 v3, v9, s12')
            a('v_add_u32 v2, v3, v4')
            a('v_xor_b32 v4, 64, v4')
            a('v_add_u32 v3, v3, v4')
            a('v_and_b32 v11, 1, v11')
            a('v_lshlrev_b32 v11, 1, v11')
            a('v_xor_b32 v10, v10, v11')
            a('v_mul_u32_u24 v9, 3072, v9')
            a('v_lshl_add_u32 v4, v10, 4, v9')
            a('v_add_u32 v5, 23552, v4')
            a('v_xor_b32 v6, 64, v4')
            a('v_xor_b32 v7, 64, v5')
            for i in range(6):
                a('s_mul_i32 s12, s10, 6')
                a('s_add_u32 s12, s12, %d' % i)
                a('s_lshr_b32 s13, s12, 3')
                a('s_mul_i32 s14, s7, 3')
                a('s_add_u32 s13, s13, s14')
                a('s_and_b32 s12, s12, 7')
                a('s_lshr_b32 s14, s13, 3')
                a('s_lshl_b32 s14, s14, 9')
                a('s_add_u32 s12, s12, s14')
                a('s_and_b32 s13, s13, 7')
                a('s_lshl_b32 s13, s13, 3')
                a('s_add_u32 s12, s12, s13')
                a('s_mul_i32 s12, s12, 1280')
                a('s_sub_u32 s%d, s12, %d' % (58 + i, 1024 * (i % 3)))
            a('s_mul_i32 s13, s10, 49152')
            a('s_lshl_b32 s14, s8, 7')
            a('s_add_u32 s13, s13, s14')
            a('s_mul_i32 s14, s10, 6144')
            a('s_lshl_b32 s15, s10, 11')
        self.rot = cfg.xrot
        self.alt = cfg.alt
        if cfg.alt and not odd:
            a('s_add_u32 s93, s7, s8')
            a('s_and_b32 s93, s93, 1')
        if cfg.xrot:
            a('s_and_b32 s9, s4, 1')
            a('s_mul_i32 s9, s9, 10')
            a('s_mul_i32 s96, s6, 5')
            a('s_add_u32 s9, s9, s96')
            if cfg.xrot == 2:
                a('s_mul_i32 s96, s5, 3')
                a('s_add_u32 s9, s9, s96')
                a('s_and_b32 s9, s9, 31')
            a('s_lshr_b32 s9, s9, 1')
            a('s_cmp_ge_u32 s9, 10')
            a('s_cselect_b32 s96, 10, 0')
            a('s_sub_u32 s9, s9, s96')
            a('s_lshl_b32 s96, s9, 7')
            if odd: a('s_add_u32 s12, s12, s96')
            else:
                a('v_add_u32 v2, s96, v2')
                a('v_add_u32 v3, s96, v3')
            a('s_mul_i32 s96, s9, 196608')
            a('s_add_u32 s13, s13, s96')
        a.emit('s_waitcnt lgkmcnt(0)')
        prof.stamp(3)
        srd(a, 44, P_Q, SZ_X)
        srd(a, 48, P_WG, SZ_W)
        srd(a, 52, P_WU, SZ_W)
        if not odd:
            for i in range(6): a('s_mov_b32 s%d, s%d' % (28 + i, 58 + i))
    def issue(self, st):
        a = self.a
        base = (st % NSLOT) * SLOT
        if self.odd:
            a('s_add_u32 m0, s14, %d' % base)
            for i in range(4):
                a('buffer_load_dwordx4 v%d, s[44:47], s12 offen offset:%d lds' % (2 + i, 1024 * i))
            a('s_add_u32 m0, s15, %d' % (base + OFF_GATE))
            for i in range(3):
                a('buffer_load_dwordx4 v%d, s[48:51], s13 offen offset:%d lds' % (6 + i, 1024 * i))
            a('s_add_u32 m0, s15, %d' % (base + OFF_UP))
            for i in range(3):
                t = a.emit('buffer_load_dwordx4 v%d, s[52:55], s13 offen offset:%d lds' % (6 + i, 1024 * i))
            a('s_add_u32 s12, s12, 128')
        else:
            def xpart(order):
                for h in order:
                    a('s_add_u32 m0, s14, %d' % (base + 3072 * h))
                    for i in range(3 * h, 3 * h + 3):
                        t = a.emit('buffer_load_dwordx4 v%d, s[44:47], s%d offen offset:%d lds' % (2 + (i & 1), 28 + i, 1024 * (i % 3)))
                return t
            def wpart(order):
                for m in order:
                    a('s_add_u32 m0, s15, %d' % (base + 24576 + 8192 * m))
                    for i in range(2):
                        t = a.emit('buffer_load_dwordx4 v%d, s[%d:%d], s13 offen offset:%d lds' % (4 + 2 * m + i, 48 + 4 * m, 51 + 4 * m, 1024 * i))
                return t
            if self.alt:
                l1, l2 = newlabel('Lalt'), newlabel('Lalt_done')
                a('s_cmp_lg_u32 s93, 0')
                a('s_cbranch_scc1 %s' % l1)
                q0 = list(a.vmq)
                if self.alt == 1: xpart((0, 1)); wpart((0, 1))
                else: xpart((0,)); wpart((0,)); xpart((1,)); wpart((1,))
                a('s_branch %s' % l2)
                a.vmq = q0
                a.label(l1)
                if self.alt == 1: wpart((1, 0)); t = xpart((1, 0))
                else: wpart((1,)); xpart((1,)); wpart((0,)); t = xpart((0,))
                a.label(l2)
            else:
                xpart((0, 1)); t = wpart((0, 1))
            a('v_add_u32 v2, 0x80, v2')
            a('v_add_u32 v3, 0x80, v3')
        a('s_add_u32 s13, s13, 196608')
        if self.rot:
            a('s_add_u32 s9, s9, 1')
            a('s_cmp_eq_u32 s9, 10')
            a('s_cselect_b32 s96, 1280, 0')
            a('s_cselect_b32 s97, 1966080, 0')
            a('s_sub_u32 s13, s13, s97')
            if self.odd: a('s_sub_u32 s12, s12, s96')
            else:
                a('v_subrev_u32 v2, s96, v2')
                a('v_subrev_u32 v3, s96, v3')
        self.tok[st] = t

def l_wave(a, cfg, prof):
    a('s_setprio %d' % cfg.lprio)
    a('s_and_b32 s10, s3, 3')
    h0 = list(a.hist)
    a('s_cmp_ge_u32 s5, 30')
    a('s_cbranch_scc1 LLodd')
    l_body(a, cfg, prof, False)
    a.hist = h0; a.reset_queues()
    a.label('LLodd')
    l_body(a, cfg, prof, True)

def l_body(a, cfg, prof, odd):
    ld = Loader(a, cfg, prof, odd)
    stage_tok = ld.tok
    issue_stage = ld.issue
    issue_stage(0)
    wave_common(a)
    if cfg.drop:
        a('s_mov_b32 s92, 1'); a('v_mov_b32 v250, 1'); a('s_mov_b32 s86, 0')
    if not odd:
        a('s_lshl_b32 s76, s2, 2')
        a('s_add_u32 s76, s76, s10')
        a('s_cmp_lg_u32 s76, 0')
        a('s_cbranch_scc1 Lno_nonce')
        a('s_memrealtime s[76:77]')
        srd(a, 68, P_DBG, 256)
        a.emit('s_waitcnt lgkmcnt(0)')
        a('s_or_b32 s76, s76, 1')
        a('v_mov_b32 v20, s76')
        a('buffer_store_dword v20, v%d, s[68:71], 0 offen sc1' % VZ)
        a.emit('s_waitcnt vmcnt(0)')
        a.vmq.pop()
        a.label('Lno_nonce')
    issue_stage(1)
    spf = SPF(a, cfg, 10, 38, 16, 7, 8, cfg.spf) if cfg.spf else None
    g2_scalars(a, 84, 85)
    a('s_mul_i32 s82, s10, 5120')
    a('s_add_u32 s82, s82, %d' % PA)
    a('s_mul_i32 s83, s10, %d' % QSZ)
    a('s_add_u32 s83, s83, %d' % QA)
    a('s_mul_i32 s88, s85, 48')
    a('s_mul_i32 s96, s10, 12')
    a('s_add_u32 s88, s88, s96')
    a('s_mul_i32 s0, s88, 5120')
    if cfg.rot2: rot_off(a, cfg, 95)
    else: a('s_mov_b32 s95, 0')
    a('s_lshl_b32 s88, s88, 2')
    a('s_add_u32 s88, s88, %d' % F_WD)
    a('s_mul_i32 s1, s10, 10240')
    a('v_lshlrev_b32 v241, 4, v1')
    a('v_add_u32 v245, 4096, v241')
    if not odd:
        a('s_cmp_ge_u32 s5, 20')
        a('s_cbranch_scc1 LtypeB')
    saved = (list(a.vmq), dict(stage_tok), list(a.hist), spf.next if spf else 0)
    tk = {}
    DROP = {1: ('kv_loads', 'wd_loads'), 2: ('f',), 4: ('ut_store', 'wd_part'), 8: ('y_clear',), 16: ('n_issue', 'n_get', 'd_issue')}
    dn = [n for b, ns in DROP.items() if cfg.drop & b for n in ns]
    class _T(dict):
        def __missing__(self, k): return -1
    tk = _T()
    def interval(i, slices, pre={}):
        slices = {k: [f for f in v if f.__name__ not in dn] for k, v in slices.items()}
        pre = {k: [f for f in v if f.__name__ not in dn] for k, v in pre.items()}
        if cfg.nine and i == 8: a.wait_vm(stage_tok[9])
        a.wait_vm(stage_tok[i])
        if a.lgq: a.wait_all_lg()
        if cfg.lstamp: prof.stamp(10 + i)
        if not (cfg.nine and i == 9): a('s_barrier')
        if cfg.lstamp: prof.stamp(20 + i)
        if spf: spf.upto(i + cfg.spf)
        for f in pre.get(i, []): f()
        if i + NSLOT - 1 < NSTAGE: issue_stage(i + NSLOT - 1)
        for f in slices.get(i, []): f()
    def n_issue():
        a('s_load_dword s%d, s[%d:%d], 0' % (NONCE, P_DBG, P_DBG + 1))
    def n_get():
        lo, ok = newlabel('Ln'), newlabel('Ln_ok')
        a.emit('s_waitcnt lgkmcnt(0)'); a.lgq = []
        a('s_cmp_lg_u32 s%d, 0' % NONCE)
        a('s_cbranch_scc1 %s' % ok)
        a('s_mov_b32 s94, %d' % cfg.spin)
        srd(a, 68, P_DBG, 256)
        a('v_mov_b32 v249, 0')
        a.label(lo)
        a('buffer_load_dword v%d, v249, s[68:71], 0 offen sc1' % VN)
        a.emit('s_waitcnt vmcnt(0)')
        a.vmq.pop()
        a('v_readfirstlane_b32 s%d, v%d' % (NONCE, VN))
        a('s_cmp_lg_u32 s%d, 0' % NONCE)
        a('s_cbranch_scc1 %s' % ok)
        a('s_sleep 8')
        a('s_sub_u32 s94, s94, 1')
        a('s_cmp_lg_u32 s94, 0')
        a('s_cbranch_scc1 %s' % lo)
        a.label(ok)
        a('s_nop 1')
        a('v_mov_b32 v%d, s%d' % (VN, NONCE))
        a('v_mov_b32 v9, %d' % (CNT + 32))
        a('ds_write_b32 v9, v%d' % VN)
    def flag_after(key, sreg):
        def f():
            a.wait_vm(tk[key])
            flag_store(a, sreg)
        return f
    def late_srds():
        srd(a, 48, P_WS, SZ_WD, WS_WD)
        srd(a, 52, P_WS, SZ_G, WS_G)
        srd(a, 64, P_WS, SZ_Y2, WS_Y2)
    def wdl_dma():
        for i in range(cfg.lsteps):
            kap(a, 97, 95, 12 - cfg.lsteps + i)
            a('s_mul_i32 s97, s97, 5120')
            a('s_add_u32 s97, s97, s0')
            a('s_add_u32 m0, s1, %d' % wblk(i))
            for dl in range(4):
                a('buffer_load_dwordx4 v241, s[48:51], s97 offen offset:%d sc1 lds' % (1024 * dl))
            a('s_add_u32 m0, s1, %d' % (wblk(i) + 4096))
            tk['wdl'] = a.emit('buffer_load_dwordx4 v245, s[48:51], s97 offen sc1 lds')
    def wdl_publish():
        if not cfg.lsteps: return
        a.wait_vm(tk['wdl'])
        lds_word(a, 10, 16, 236, 237)
    def q_loads():
        row_off(a, 238, 239, 84, 85, 10)
        for dl in range(5):
            a('buffer_load_dwordx2 %s, v238, s[44:47], 0 offen offset:%d' % (vr(QV + 2 * dl, 2), dl * 32))
    def tail_issue():
        if cfg.bclear:
            a('s_lshl_b32 s89, s85, 8')
            a('s_add_u32 s89, s89, %d' % F_YC)
            lane_min(a, 247, 48)
            tk['y1'] = poll_issue(a, 247, 's89', 239)
            return
        a('s_mul_i32 s89, s85, 320')
        a('s_add_u32 s89, s89, %d' % F_YC)
        a('v_lshlrev_b32 v247, 2, v1')
        lane_min(a, 240, 16)
        a('v_add_u32 v240, 256, v240')
        tk['y1'] = poll_issue(a, 247, 's89', 239)
        tk['y2'] = poll_issue(a, 240, 's89', 243)
    def tail_check():
        if not cfg.bclear: poll_wait(a, cfg, tk['y2'], 240, 's89', 243)
        poll_wait(a, cfg, tk['y1'], 247, 's89', 239)

    def type_a():
        KR, VR_, WR = 32, 60, 76
        srd(a, 56, P_K, SZ_X); srd(a, 60, P_V, SZ_X); srd(a, 64, P_SHK, 5120)
        a('s_cmp_ge_u32 s5, 10')
        a('s_cselect_b32 s76, 1, 0')
        a('s_cselect_b32 s77, 10, 0')
        a('s_sub_u32 s77, s5, s77')
        a('s_lshl_b32 s78, s4, 1')
        a('s_add_u32 s76, s76, s78')
        a('s_lshl_b32 s87, s77, 2')
        a('s_add_u32 s87, s87, s10')
        a('s_lshl_b32 s89, s87, 4')
        a('s_add_u32 s89, s89, s76')
        a('s_lshl_b32 s89, s89, 2')
        a('s_lshl_b32 s87, s87, 16')
        a('s_lshl_b32 s78, s76, 8')
        a('s_add_u32 s87, s87, s78')
        a('s_lshl_b32 s76, s76, 7')
        a('s_lshl_b32 s78, s10, 5')
        a('s_add_u32 s76, s76, s78')
        a('v_lshrrev_b32 v9, 3, v1')
        a('v_and_b32 v10, 7, v1')
        a('s_lshl_b32 s78, s10, 3')
        a('v_add_u32 v22, s78, v9')
        a('v_lshlrev_b32 v11, 1, v10')
        a('v_xor_b32 v22, v22, v11')
        a('v_lshlrev_b32 v22, 3, v22')
        a('v_lshl_add_u32 v22, v10, 11, v22')
        a('v_add_u32 v22, %d, v22' % PA)
        a('v_lshlrev_b32 v9, 2, v9')
        a('v_add_u32 v9, s76, v9')
        a('v_mul_u32_u24 v232, 1280, v9')
        a('v_lshl_add_u32 v232, v10, 4, v232')
        a('s_lshl_b32 s78, s77, 7')
        a('v_add_u32 v232, s78, v232')
        a('v_subrev_u32 v233, 3840, v232')
        a('v_subrev_u32 v234, 2560, v232')
        a('v_subrev_u32 v235, 1280, v232')
        a('s_lshl_b32 s78, s77, 9')
        a('v_lshlrev_b32 v236, 6, v10')
        a('v_add_u32 v236, s78, v236')
        a('s_mul_i32 s11, s4, 20')
        a('s_add_u32 s11, s11, s5')
        a('s_lshl_b32 s11, s11, 2')
        a('s_add_u32 s11, s11, s10')
        a('s_lshl_b32 s81, s11, 12')
        a('s_lshl_b32 s80, s11, 2')
        a('s_add_u32 s80, s80, %d' % F_YC)
        a('s_lshr_b32 s76, s11, 4')
        a('s_lshl_b32 s76, s76, 6')
        a('s_sub_u32 s77, s88, 64')
        a('v_min_u32 v240, %d, v1' % (31 if cfg.bclear else 27))
        a('v_lshlrev_b32 v240, 2, v240')
        a('v_mov_b32 v9, s76')
        a('v_mov_b32 v10, s77')
        if cfg.bclear:
            a('s_lshl_b32 s78, s5, 2')
            a('s_add_u32 s78, s78, s10')
            a('s_lshl_b32 s78, s78, 2')
            a('s_mul_i32 s78, s78, 9363')
            a('s_lshr_b32 s78, s78, 16')
            a('s_lshl_b32 s79, s4, 6')
            a('s_add_u32 s78, s78, s79')
            a('s_lshl_b32 s78, s78, 2')
            a('s_add_u32 s78, s78, %d' % (F_YC - 112))
            a('v_min_u32 v240, 29, v1')
            a('v_lshlrev_b32 v240, 2, v240')
            a('v_mov_b32 v11, s78')
            a('v_cmp_gt_u32 vcc, 28, v1')
            a('v_cndmask_b32 v10, v11, v10, vcc')
        a('v_cmp_gt_u32 vcc, 16, v1')
        a('v_cndmask_b32 v9, v10, v9, vcc')
        a('v_add_u32 v240, v240, v9')
        a('s_and_b32 s86, s11, 0xfffffffe')
        a('s_lshl_b32 s86, s86, 1')
        a('s_load_dword s86, s[26:27], s86')
        a('s_mov_b32 s87, s87')
        class _A:
            def __init__(self): self.l = []
            def __call__(self, t): self.l.append(t)
        rec = _A(); conv_setup(rec, cfg)
        for t in rec.l[:-4]: a(t)
        def d_fin():
            for t in rec.l[-4:]: a(t)
        def kv_loads():
            for i in range(4):
                a('buffer_load_dwordx4 %s, v232, s[56:59], 0 offen offset:%d' % (vr(KR + 12 + 4 * i, 4), 1280 * i))
            for i in range(4):
                a('buffer_load_dwordx4 %s, v232, s[60:63], 0 offen offset:%d' % (vr(VR_ + 4 * i, 4), 1280 * i))
            a('buffer_load_dwordx4 %s, v233, s[56:59], 0 offen' % vr(KR, 4))
            a('buffer_load_dwordx4 %s, v234, s[56:59], 0 offen' % vr(KR + 4, 4))
            a('buffer_load_dwordx4 %s, v235, s[56:59], 0 offen' % vr(KR + 8, 4))
            for i in range(4):
                tk['kv'] = a.emit('buffer_load_dwordx4 %s, v236, s[64:67], 0 offen offset:%d' % (vr(WR + 4 * i, 4), 16 * i))
        def ut_srd(): srd(a, 56, P_WS, SZ_UT, WS_UT)
        def kv_part(cp):
            def f():
                a.wait_vm(tk['kv'])
                U = 92
                for r in range(7):
                    unpack_lo(a, U + 2 * r, KR + 4 * r + cp); unpack_hi(a, U + 2 * r + 1, KR + 4 * r + cp)
                for r in range(4):
                    unpack_lo(a, U + 14 + 2 * r, VR_ + 4 * r + cp); unpack_hi(a, U + 15 + 2 * r, VR_ + 4 * r + cp)
                for h in range(2):
                    unpack_lo(a, U + 22 + h, WR + 4 * cp + 2 * h); unpack_hi(a, U + 24 + h, WR + 4 * cp + 2 * h)
                    unpack_lo(a, U + 26 + h, WR + 4 * cp + 2 * h + 1); unpack_hi(a, U + 28 + h, WR + 4 * cp + 2 * h + 1)
                AC = U + 30
                for i in range(8):
                    a('v_mul_f32 v%d, v%d, v%d' % (AC + i, U + i, U + 28 + (i & 1)))
                for tap in (2, 1, 0):
                    for i in range(8):
                        a('v_fmac_f32 v%d, v%d, v%d' % (AC + i, U + 2 * (3 - tap) + i, U + 22 + 2 * tap + (i & 1)))
                for i in range(8):
                    a('v_mul_f32 v%d, v%d, v%d' % (AC + i, AC + i, U + 14 + i))
                O = 24 + (cp & 1) * 4
                for h in range(2):
                    a('v_cvt_pk_bf16_f32 v%d, v%d, v%d' % (O + 2 * h, AC + h, AC + 2 + h))
                    a('v_cvt_pk_bf16_f32 v%d, v%d, v%d' % (O + 2 * h + 1, AC + 4 + h, AC + 6 + h))
                for h in range(2):
                    a('ds_write_b64 v22, %s offset:%d' % (vr(O + 2 * h, 2), 256 * (2 * cp + h)))
            return f
        def ut_store():
            a('v_lshrrev_b32 v9, 4, v1')
            a('v_and_b32 v10, 15, v1')
            a('v_lshlrev_b32 v11, 12, v9')
            a('v_lshl_add_u32 v11, v10, 4, v11')
            a('s_lshl_b32 s76, s10, 1')
            a('s_lshl_b32 s77, s10, 12')
            a('s_add_u32 s77, s77, %d' % PA)
            for hh in range(2):
                a('s_add_u32 s78, s76, %d' % hh)
                a('v_xor_b32 v12, s78, v10')
                a('v_lshlrev_b32 v12, 4, v12')
                a('v_lshl_add_u32 v12, v9, 8, v12')
                a('v_add_u32 v%d, s77, v12' % (24 + hh))
            tl = [a.emit('ds_read_b128 %s, v%d offset:%d' % (vr(40 + 4 * i, 4), 24 + (i >> 1), 1024 * i)) for i in range(4)]
            for i in range(4):
                a.wait_lg(tl[i])
                a('s_add_u32 s76, s87, %d' % (16384 * i))
                tk['ut'] = a.emit('buffer_store_dwordx4 %s, v11, s[56:59], s76 offen sc1' % vr(40 + 4 * i, 4))
        def d_issue():
            a('s_and_b32 s86, s11, 0xfffffffe')
            a('s_lshl_b32 s86, s86, 1')
            a('s_load_dword s86, s[26:27], s86')
        def y_clear():
            srd(a, 64, P_WS, SZ_Y2, WS_Y2)
            for i in range(4): a('v_mov_b32 v%d, -1' % (232 + i))
            for i in range(4):
                tk['yc'] = a.emit('buffer_store_dwordx4 v[232:235], v241, s[64:67], s81 offen offset:%d sc1' % (1024 * i))
        def p_dma():
            srd(a, 60, P_SSMK, SZ_X)
            a('v_bfe_u32 v9, v1, 4, 1')
            a('v_lshlrev_b32 v9, 1, v9')
            a('v_xor_b32 v9, v9, v1')
            a('v_lshlrev_b32 v9, 4, v9')
            a('s_add_u32 m0, s82, 512')
            for i in range(4):
                a('buffer_load_dwordx4 v9, s[60:63], s81 offen offset:%d lds' % (1024 * i))
        def pads():
            for i in range(4): a('v_mov_b32 v%d, 0' % (32 + i))
            a('v_and_b32 v10, 31, v1')
            a('v_lshlrev_b32 v10, 4, v10')
            a('v_add_u32 v10, s82, v10')
            a('ds_write_b128 v10, v[32:35]')
            a('v_and_b32 v10, 3, v1')
            a('v_lshlrev_b32 v10, 4, v10')
            a('v_add_u32 v10, s83, v10')
            a('ds_write_b128 v10, v[32:35]')
        K = cfg.kv_at
        if cfg.early:
            slA = {1: [kv_part(1)], 2: [kv_part(3), n_issue], 3: [ut_srd, ut_store], 5: [flag_after('ut', 's89')], 7: [late_srds]}
        else:
            slA = {K: [kv_loads], K + 2: [kv_part(1)], K + 3: [kv_part(3), n_issue], K + 4: [ut_srd, ut_store], cfg.utf_at: [flag_after('ut', 's89')],
                   7: [late_srds]}
        slA.setdefault(8 if cfg.ungate else 7, [])
        fpoll = lambda: tk.__setitem__('f', poll_issue(a, 240, '0', 243))
        def q_dma():
            poll_wait(a, cfg, tk['f'], 240, '0', 243, sleep=cfg.fsleep)
            a('s_add_u32 m0, s83, 64')
            for i in range(4):
                tk['q'] = a.emit('buffer_load_dwordx4 v241, s[56:59], s81 offen offset:%d sc1 lds' % (1024 * i))
            lds_word(a, 10, 48, 236, 237)
        slA[8] = [p_dma] + ([fpoll] if cfg.ungate else [q_dma])
        if not cfg.ungate:
            if cfg.pollpre8: slA[8].insert(0, fpoll)
            else: slA[7].append(fpoll)
        if not (cfg.cclear or cfg.bclear or cfg.yflag):
            slA.setdefault(cfg.late, []).append(y_clear)
            slA[cfg.late + 2].insert(0, flag_after('yc', 's80'))
        if cfg.kvfirst:
            kv_loads(); slA[0] = []
        prA = {K + 2: [kv_part(0)], K + 3: [kv_part(2)], 5: [n_get, d_fin], 6 + K: [pads]}
        if cfg.early:
            kv_loads()
            prA = {1: [kv_part(0)], 2: [kv_part(2)], 4: [n_get, d_fin], 6: [pads]}
        assert K <= 1
        for i in range(NSTAGE): interval(i, slA, prA)
        if cfg.ungate: q_dma()
        if not cfg.quiet:
            wdl_dma()
            q_loads()
            tail_issue()
        a('s_setprio %d' % cfg.vprio)
        a.wait_vm(tk['q'])
        gen = conv_main(a, cfg, prof)
        if not cfg.quiet:
            for _ in range(cfg.pub_at): next(gen)
            wdl_publish()
        for _ in gen: pass
        if cfg.yflag:
            q_loads()
            a.emit('s_waitcnt vmcnt(5)')
            flag_store(a, 's80')
        else:
            if cfg.quiet:
                q_loads()
                tail_issue()
            tail_check()
        a('s_setprio 0')
        a('s_branch Lfetch')

    if not odd: type_a()

    a.vmq, a.hist = list(saved[0]), list(saved[2])
    stage_tok.clear(); stage_tok.update(saved[1])
    if spf: spf.next = saved[3]
    a.lgq = []
    if not odd: a.label('LtypeB')
    srd(a, 56, P_WD, SZ_W)
    srd(a, 68, P_GW, 1280)
    a('s_mul_i32 s78, s4, 12')
    a('s_add_u32 s78, s78, s5')
    a('s_sub_u32 s78, s78, 20')
    a('s_lshl_b32 s78, s78, 2')
    a('s_add_u32 s78, s78, s10')
    a('s_lshr_b32 s79, s78, 3')
    a('s_and_b32 s78, s78, 7')
    a('s_mul_i32 s89, s78, 48')
    a('s_add_u32 s89, s89, s79')
    a('s_lshl_b32 s89, s89, 2')
    a('s_add_u32 s89, s89, %d' % F_WD)
    a('s_mul_i32 s80, s79, 40960')
    a('s_mul_i32 s77, s78, 160')
    a('s_add_u32 s80, s80, s77')
    a('s_mul_i32 s81, s78, 245760')
    a('s_mul_i32 s77, s79, 5120')
    a('s_add_u32 s81, s81, s77')
    lane_min(a, 240, 12)
    def wd_loads():
        for i in range(5):
            a('v_add_u32 v9, %d, v1' % (64 * i))
            a('v_mul_u32_u24 v10, 6554, v9')
            a('v_lshrrev_b32 v10, 16, v10')
            a('v_mul_u32_u24 v11, 10, v10')
            a('v_sub_u32 v11, v9, v11')
            a('v_mul_u32_u24 v10, 1280, v10')
            a('v_lshl_add_u32 v10, v11, 4, v10')
            a('s_add_u32 m0, s82, %d' % (1024 * i))
            tk['wd'] = a.emit('buffer_load_dwordx4 v10, s[56:59], s80 offen lds')
    def wd_part():
        a('v_lshrrev_b32 v9, 5, v1')
        a('v_lshlrev_b32 v9, 4, v9')
        a('v_bfe_u32 v10, v1, 2, 3')
        a('v_add_u32 v9, v9, v10')
        a('v_mul_u32_u24 v9, 160, v9')
        a('v_and_b32 v10, 3, v1')
        a('v_lshl_add_u32 v9, v10, 3, v9')
        a('v_add_u32 v9, s82, v9')
        srd(a, 60, P_WS, SZ_WD, WS_WD)
        a('s_add_u32 s80, s81, 4096')
        a.wait_vm(tk['wd'])
        for dl in range(5):
            for t in range(2):
                a('ds_read_b64_tr_b16 v[%d:%d], v9 offset:%d' % (32 + 4 * dl + 2 * t, 33 + 4 * dl + 2 * t, t * 1280 + dl * 32))
        a.wait_all_lg()
        for dl in range(4):
            a('buffer_store_dwordx4 %s, v241, s[60:63], s81 offen offset:%d sc1' % (vr(32 + 4 * dl, 4), 1024 * dl))
        tk['wds'] = a.emit('buffer_store_dwordx4 %s, v241, s[60:63], s80 offen sc1' % vr(48, 4))
    GX, GW = 56, 104
    gtk = []
    def g_loads():
        srd(a, 56, P_GW, 1280)
        a('s_sub_u32 s76, s5, 20')
        a('s_lshl_b32 s76, s76, 2')
        a('s_add_u32 s76, s76, s10')
        a('s_cmp_ge_u32 s76, 32')
        a('s_cselect_b32 s86, 0x%x, 0' % FAR)
        a('s_and_b32 s77, s4, 1')
        a('s_lshl_b32 s77, s77, 2')
        a('s_lshr_b32 s78, s76, 3')
        a('s_add_u32 s77, s77, s78')
        a('s_and_b32 s76, s76, 7')
        a('s_lshl_b32 s78, s6, 9')
        a('s_lshl_b32 s79, s77, 3')
        a('s_add_u32 s78, s78, s79')
        a('s_add_u32 s78, s78, s76')
        a('s_mul_i32 s78, s78, 1280')
        a('s_or_b32 s78, s78, s86')
        a('v_lshrrev_b32 v9, 5, v1')
        a('v_and_b32 v10, 31, v1')
        a('v_lshlrev_b32 v11, 4, v10')
        a('s_mov_b32 s79, 81920')
        a('v_mul_lo_u32 v12, v9, s79')
        a('v_add_u32 v12, v12, v11')
        a('v_cmp_gt_u32 vcc, 16, v10')
        a('v_mov_b32 v15, 0x%x' % OOB)
        a('v_cndmask_b32 v13, v15, v12, vcc')
        for i in range(3):
            a('buffer_load_dwordx4 %s, v11, s[56:59], 0 offen offset:%d' % (vr(GW + 4 * i, 4), 512 * i))
        for p in range(4):
            a('buffer_load_dwordx4 %s, v12, s[44:47], s78 offen' % vr(GX + 12 * p, 4))
            a('buffer_load_dwordx4 %s, v12, s[44:47], s78 offen offset:512' % vr(GX + 12 * p + 4, 4))
            gtk.append(a.emit('buffer_load_dwordx4 %s, v13, s[44:47], s78 offen offset:1024' % vr(GX + 12 * p + 8, 4)))
            a('s_add_u32 s78, s78, 163840')
        a('s_lshl_b32 s78, s6, 3')
        a('s_add_u32 s78, s78, s77')
        a('s_lshl_b32 s78, s78, 3')
        a('s_add_u32 s78, s78, s76')
        a('s_lshl_b32 s80, s78, 6')
        a('s_or_b32 s80, s80, s86')
        a('v_lshlrev_b32 v14, 3, v9')
        a('v_cmp_eq_u32 vcc, 31, v10')
        a('v_cndmask_b32 v14, v15, v14, vcc')
    def g_compute():
        for p in range(4):
            a.wait_vm(gtk[p])
            a('v_mov_b32 v%d, 0' % (24 + p))
            for i in range(12):
                a('v_dot2_f32_bf16 v%d, v%d, v%d, v%d' % (24 + p, GX + 12 * p + i, GW + i, 24 + p))
        a('s_nop 2')
        for sh in (1, 2, 4, 8):
            for p in range(4):
                a('v_add_f32_dpp v%d, v%d, v%d row_shr:%d row_mask:0xf bank_mask:0xf bound_ctrl:0' % (24 + p, 24 + p, 24 + p, sh))
        for p in range(4):
            a('v_add_f32_dpp v%d, v%d, v%d row_bcast:15 row_mask:0xa bank_mask:0xf' % (24 + p, 24 + p, 24 + p))
        for p in range(4):
            r = 24 + p
            a('v_cvt_pk_bf16_f32 v%d, v%d, v%d' % (r, r, r))
            a('v_and_b32 v%d, 0xffff0000, v%d' % (r, r))
            a('v_mul_f32 v%d, 0xbfb8aa3b, v%d' % (r, r))
            a('v_exp_f32 v%d, v%d' % (r, r))
            a('v_add_f32 v%d, 1.0, v%d' % (r, r))
            a('v_rcp_f32 v%d, v%d' % (r, r))
            a('v_cvt_pk_bf16_f32 v%d, v%d, v%d' % (r, r, r))
            a('v_and_b32 v%d, 0xffff0000, v%d' % (29 + 2 * p, r))
            a('v_mov_b32 v%d, v%d' % (28 + 2 * p, VN))
            a('buffer_store_dwordx2 v[%d:%d], v14, s[52:55], s80 offen offset:%d sc1' % (28 + 2 * p, 29 + 2 * p, 16 * p))
    def b_clear():
        srd(a, 64, P_WS, SZ_Y2, WS_Y2)
        a('s_sub_u32 s76, s5, 20')
        a('s_lshl_b32 s76, s76, 2')
        a('s_add_u32 s76, s76, s10')
        a('s_lshl_b32 s77, s4, 6')
        a('s_add_u32 s87, s76, s77')
        a('s_lshl_b32 s87, s87, 2')
        a('s_add_u32 s87, s87, %d' % F_YC)
        a('s_mul_i32 s76, s76, 7')
        for i in range(4): a('v_mov_b32 v%d, -1' % (232 + i))
        for i in range(7):
            a('s_add_u32 s77, s76, %d' % i)
            a('s_cmp_ge_u32 s77, 320')
            a('s_cselect_b32 s78, 0x%x, 0' % FAR)
            a('s_lshl_b32 s77, s77, 10')
            a('s_mul_i32 s79, s4, 327680')
            a('s_add_u32 s77, s77, s79')
            a('s_or_b32 s77, s77, s78')
            tk['yc'] = a.emit('buffer_store_dwordx4 v[232:235], v241, s[64:67], s77 offen sc1')
    W = cfg.wd_at
    slB = {}
    for i, f in ((W, wd_loads), (W + 2, wd_part), (1, n_issue), (W + cfg.wdf_d, flag_after('wds', 's89')), (7, late_srds)):
        slB.setdefault(i, []).append(f)
    def wd_touch_issue():
        a('s_and_b32 s76, s4, 1')
        a('s_mul_i32 s79, s76, 768')
        a('s_add_u32 s79, s79, %d' % F_WD)
        a('v_lshlrev_b32 v16, 2, v1')
        a('v_add_u32 v17, 256, v16')
        a('v_add_u32 v18, 512, v16')
        tk['wt'] = [poll_issue(a, 16 + i, 's79', 19 + i) for i in range(3)]
    def wd_touch():
        for i in range(3): poll_wait(a, cfg, tk['wt'][i], 16 + i, 's79', 19 + i)
        a('s_sub_u32 s77, s5, 20')
        a('s_lshl_b32 s77, s77, 2')
        a('s_add_u32 s77, s77, s10')
        a('s_mul_i32 s77, s77, 20480')
        a('s_and_b32 s76, s4, 1')
        a('s_mul_i32 s76, s76, 983040')
        a('s_add_u32 s76, s76, s77')
        a('v_lshlrev_b32 v16, 7, v1')
        a('v_add_u32 v17, 8192, v16')
        a('v_add_u32 v18, 16384, v16')
        a('v_cmp_gt_u32 vcc, 32, v1')
        a('v_mov_b32 v19, 0x%x' % OOB)
        a('v_cndmask_b32 v18, v19, v18, vcc')
        for i in range(3):
            a('buffer_load_dword v252, v%d, s[48:51], s76 offen sc1' % (16 + i))
    fpollB = lambda: tk.__setitem__('f', poll_issue(a, 240, 's88', 243))
    fwaitB = lambda: (poll_wait(a, cfg, tk['f'], 240, 's88', 243), lds_word(a, 10, 48, 236, 237))
    if cfg.ungate: slB[8] = [fpollB]
    elif cfg.pollpre8: slB[8] = [fpollB, g_loads, fwaitB]
    else: slB[7].append(fpollB); slB[8] = [g_loads, fwaitB]
    if cfg.cotouch:
        slB[7].append(wd_touch_issue); slB[8].insert(0, wd_touch)
    if cfg.bclear:
        slB.setdefault(cfg.clr_at, []).append(b_clear)
        slB.setdefault(max(cfg.clr_at + 2, 3), []).append(flag_after('yc', 's87'))
    for i in range(NSTAGE): interval(i, slB, {3: [n_get]})
    if cfg.ungate:
        fwaitB(); g_loads()
    wdl_dma()
    g_compute()
    q_loads()
    if not cfg.yflag: tail_issue()
    a('s_setprio 0')
    wdl_publish()
    lds_word_wait(a, cfg, 10, 0, 236, 237, 'Ldummy') if False else None
    if not cfg.yflag: tail_check()
    if not odd:
        a('s_branch Lfetch')
        return
    a.pad()
    a.label('Lfetch')
    a.reset_queues()
    a('s_mul_i32 s11, s85, 327680')
    a('s_lshr_b32 s12, s84, 3')
    a('s_lshl_b32 s12, s12, 10')
    a('s_add_u32 s11, s11, s12')
    a('s_and_b32 s12, s84, 7')
    a('s_lshl_b32 s12, s12, 7')
    a('s_add_u32 s11, s11, s12')
    a('s_lshl_b32 s12, s10, 5')
    a('s_add_u32 s11, s11, s12')
    a('v_lshrrev_b32 v24, 1, v1')
    a('v_lshlrev_b32 v24, 12, v24')
    a('v_and_b32 v25, 1, v1')
    a('v_lshl_add_u32 v24, v25, 4, v24')
    a('v_add_u32 v25, 0x20000, v24')
    a('v_add_u32 v26, 0x40000, v24')
    a('v_cmp_gt_u32 vcc, 32, v1')
    a('v_mov_b32 v27, 0x%x' % OOB)
    a('v_cndmask_b32 v26, v27, v26, vcc')
    a('v_lshlrev_b32 v28, 2, v1')
    a('s_add_u32 s12, s83, 3072')
    a('v_add_u32 v28, s12, v28')
    a('v_add_u32 v29, s83, v241')
    a('v_lshlrev_b32 v30, 3, v1')
    a('v_add_u32 v30, s83, v30')
    a('v_add_u32 v31, s82, v241')
    a('s_lshl_b32 s96, s84, 6')
    a('s_lshl_b32 s97, s10, 4')
    a('s_add_u32 s96, s96, s97')
    a('v_and_b32 v33, 15, v1')
    a('v_add_u32 v33, s96, v33')
    a('v_lshlrev_b32 v33, 3, v33')
    lds_word_wait(a, cfg, 10, 64, 236, 237, 'Lgate2', sleep=cfg.gsleep)
    if cfg.yflag:
        tail_issue(); tail_check()
    prof.stamp(6)
    YV = 40
    lo, ok = newlabel('Ly'), newlabel('Ly_ok')
    a('s_mov_b32 s94, %d' % cfg.spin)
    a.label(lo)
    for i in range(3):
        a('buffer_load_dwordx4 %s, v%d, s[64:67], s11 offen sc1' % (vr(YV + 4 * i, 4), 24 + i))
    a('buffer_load_dwordx2 v[34:35], v33, s[52:55], 0 offen sc1')
    a.wait_all_vm()
    a('v_max3_u32 v27, v%d, v%d, v%d' % (YV, YV + 1, YV + 2))
    for i in range(3, 11, 2):
        a('v_max3_u32 v27, v27, v%d, v%d' % (YV + i, YV + i + 1))
    a('v_max_u32 v27, v27, v%d' % (YV + 11))
    a('v_cmp_eq_u32 vcc, -1, v27')
    a('v_cmp_ne_u32 s[96:97], s%d, v34' % NONCE)
    a('s_or_b64 vcc, vcc, s[96:97]')
    a('s_cbranch_scc0 %s' % ok)
    a('s_sleep %d' % cfg.ysleep)
    a('s_sub_u32 s94, s94, 1')
    a('s_cmp_lg_u32 s94, 0')
    a('s_cbranch_scc1 %s' % lo)
    a.label(ok)
    prof.stamp(7)
    a('v_mov_b32 v%d, v35' % GV)
    a('ds_write_b128 v29, %s' % vr(YV, 4))
    a('ds_write_b128 v29, %s offset:1024' % vr(YV + 4, 4))
    a('ds_write_b128 v29, %s offset:2048' % vr(YV + 8, 4))
    a('v_sub_f32 v32, 1.0, v%d' % GV)
    a('v_cvt_pk_bf16_f32 v32, v32, v32')
    a('v_and_b32 v32, 0xffff0000, v32')
    a('ds_write_b32 v28, v32')
    for dl in range(5):
        x = 72 + 4 * dl
        unpack_lo(a, x, QV + 2 * dl); unpack_hi(a, x + 1, QV + 2 * dl); unpack_lo(a, x + 2, QV + 2 * dl + 1); unpack_hi(a, x + 3, QV + 2 * dl + 1)
        for i in range(4): a('v_mul_f32 v%d, v%d, v%d' % (x + i, GV, x + i))
    a.wait_all_lg()
    tl = [a.emit('ds_read_b64_tr_b16 %s, v30 offset:%d' % (vr(56 + 2 * dl, 2), dl * 512)) for dl in range(5)]
    for dl in range(5):
        a.wait_lg(tl[dl])
        x = 72 + 4 * dl; y = 96
        unpack_lo(a, y, 56 + 2 * dl); unpack_hi(a, y + 1, 56 + 2 * dl); unpack_lo(a, y + 2, 57 + 2 * dl); unpack_hi(a, y + 3, 57 + 2 * dl)
        for i in range(4): a('v_mul_f32 v%d, v%d, v%d' % (x + i, x + i, y + i))
        a('ds_write_b128 v31, %s offset:%d' % (vr(x, 4), dl * 1024))
    a.wait_all_lg()
    a('s_barrier')
    prof.stamp(8)
    prof.flush(243)

def generate(cfg):
    if cfg.yflag: cfg.bclear = 0; cfg.cclear = 0
    LOCAL[0] = cfg.local
    a = Asm()
    a.raw('.amdgcn_target "amdgcn-amd-amdhsa--gfx950"')
    a.raw('.text')
    kn = NAME + '_kernel'
    kernel_header(a, kn)
    prof = Prof(a, cfg, 0)
    prof.start()
    a('s_cmp_ge_u32 s2, 256')
    a('s_cbranch_scc1 Ldone')
    load_kernargs(a)
    a('v_lshrrev_b32 v2, 6, v0')
    a('v_and_b32 v1, 63, v0')
    a('v_readfirstlane_b32 s3, v2')
    a('s_and_b32 s4, s2, 7')
    a('s_lshr_b32 s5, s2, 3')
    a('s_lshr_b32 s6, s4, 1')
    a('s_mul_i32 s9, s5, 13108')
    a('s_lshr_b32 s9, s9, 16')
    a('s_mul_i32 s7, s9, 5')
    a('s_sub_u32 s7, s5, s7')
    a('s_and_b32 s8, s4, 1')
    a('s_mul_i32 s10, s8, 5')
    a('s_add_u32 s7, s7, s10')
    a('s_lshl_b32 s10, s8, 1')
    a('s_mul_i32 s8, s6, 6')
    a('s_add_u32 s8, s8, s9')
    a('s_lshl_b32 s11, s6, 2')
    a('s_add_u32 s10, s10, s11')
    a('s_add_u32 s10, s10, s5')
    a('s_sub_u32 s10, s10, 30')
    a('s_cmp_ge_u32 s5, 30')
    a('s_cselect_b32 s8, s10, s8')
    a('s_cselect_b32 s7, 15, s7')
    a('s_cmp_lt_u32 s3, 4')
    a('s_cbranch_scc1 Lcwave')
    h0 = list(a.hist)
    l_wave(a, cfg, prof)
    a.label('Ldone')
    a('s_endpgm')
    a.hist = h0; a.reset_queues()
    a.label('Lcwave')
    c_wave(a, cfg, prof)
    hdr = open('cdna_kernels/%s.s.ref' % NAME).read().split('; Override launch')[0]
    hdr += '; generated by dev/gen11.py (hand-written generator)\n'
    hdr += '; @launch grid=(256,1,1) block=(512,1,1) lds=%d\n' % LDS
    return hdr + a.text() + kernel_desc(kn, 256)

if __name__ == '__main__':
    cfg = Cfg()
    out = sys.argv[1]
    for kv in sys.argv[2:]:
        k, v = kv.split('=')
        assert hasattr(cfg, k), k
        setattr(cfg, k, int(v))
    open(out, 'w').write(generate(cfg))
```

```python
import sys
from asmlib import *
from gen2 import (NAME, WS_H, SZ_H, WS_WD, SZ_WD, WS_UT, SZ_UT, WS_Y2, SZ_Y2, WS_G, SZ_G, WS_PROF, SZ_X, SZ_W, OOB,
                  P_Q, P_K, P_V, P_SHK, P_SSMK, P_SSMD, P_BX, P_WG, P_WU, P_WD, P_GW, P_OUT, P_DBG, P_WS,
                  load_kernargs, srd, Prof, kernel_header, kernel_desc, unpack_lo, unpack_hi, P2, u32)
import gen8
from gen8 import (newlabel, row_off, conv_setup, conv_main, FAR, QV, GV, SF, NONCE, VZ, VN, flag_store, poll_issue, poll_wait,
                  lane_min, lds_spin)

SZ_G = 16384
WS_F = WS_G + SZ_G
F_UT, F_H, F_WD, F_G, F_YC = 0, 2560, 14848, 16384, 17408
SZ_F = 19968

class Cfg:
    prof = 0
    lstamp = 1
    spin = 200000
    g1prio = 0
    cprio = 2
    lprio = 2
    vprio = 1
    ysleep = 8
    hsleep = 2
    nb = 4
    pub_at = 24
    local = 0
    dstore = 0
    ygate = 3
    late = 5
    kvfirst = 0
    rot2 = 0
    ungate = 0
    na = 4
    clr_at = 0
    gsleep = 6
    pre_ack = 2
    ptouch = 0
    utf_at = 5
    wdf_d = 3
    fsleep = 4
    pollpre8 = 1
    alt = 0
    yflag = 0
    grp = 0
    spf = 0
    spfx = 8
    cotouch = 0
    pollat = 99
    quiet = 1
    fin = 1
    areg = 4
    nine = 0
    early = 0
    bclear = 1
    xrot = 1
    kv_at = 0
    wd_at = 1
    cclear = 0
    drop = 0
    lsteps = 0
    c0 = 1

SLOT = 41088
OFF_GATE, OFF_UP = 16384, 16384 + 12320
NSTAGE, NSLOT = 10, 3
PA = NSLOT * SLOT
QA = PA + 4 * 5120
QSZ = 4224
CNT = QA + 4 * QSZ
LDS = CNT + 128
def wblk(i): return [SLOT, SLOT + 5120, 2 * SLOT, 2 * SLOT + 5120, 0, 5120][i]

def wave_common(a):
    srd(a, SF, P_WS, SZ_F, WS_F)
    a('v_cmp_eq_u32 vcc, 0, v1')
    a('v_mov_b32 v%d, 0x%x' % (VZ, OOB))
    a('v_cndmask_b32 v%d, v%d, 0, vcc' % (VZ, VZ))

LOCAL = [0]
def g2_scalars(a, st, dt):
    if not LOCAL[0]: return gen8.g2_scalars(a, st, dt)
    a('s_lshl_b32 s%d, s4, 2' % st)
    a('s_and_b32 s%d, s5, 3' % dt)
    a('s_add_u32 s%d, s%d, s%d' % (st, st, dt))
    a('s_lshr_b32 s%d, s5, 2' % dt)

def rot_off(a, cfg, d):
    if cfg.rot2 == 1:
        a('s_and_b32 s%d, s85, 3' % d)
        a('s_mul_i32 s%d, s%d, 6' % (d, d))
        a('s_and_b32 s96, s84, 7')
        a('s_mul_i32 s96, s96, 3')
        a('s_add_u32 s%d, s%d, s96' % (d, d))
        a('s_lshr_b32 s%d, s%d, 1' % (d, d))
    elif cfg.rot2 == 3:
        a('s_and_b32 s%d, s84, 7' % d)
        a('s_mul_i32 s%d, s%d, 3' % (d, d))
        a('s_lshr_b32 s%d, s%d, 1' % (d, d))
    else:
        a('s_and_b32 s%d, s85, 3' % d)
        a('s_mul_i32 s%d, s%d, 3' % (d, d))
    a('s_cmp_ge_u32 s%d, 12' % d)
    a('s_cselect_b32 s96, 12, 0')
    a('s_sub_u32 s%d, s%d, s96' % (d, d))
def kap(a, d, off, k):
    a('s_add_u32 s%d, s%d, %d' % (d, off, k))
    a('s_cmp_ge_u32 s%d, 12' % d)
    a('s_cselect_b32 s96, 12, 0')
    a('s_sub_u32 s%d, s%d, s96' % (d, d))

def lds_word(a, sw, off, t0, t1):
    a('s_lshl_b32 s96, s%d, 2' % sw)
    a('s_add_u32 s96, s96, %d' % (CNT + off))
    a('v_mov_b32 v%d, s96' % t0)
    a('v_mov_b32 v%d, 1' % t1)
    a('ds_write_b32 v%d, v%d' % (t0, t1))
def lds_word_wait(a, cfg, sw, off, t0, t1, name, sleep=1):
    a('s_lshl_b32 s96, s%d, 2' % sw)
    a('s_add_u32 s96, s96, %d' % (CNT + off))
    a('v_mov_b32 v%d, s96' % t0)
    lds_spin(a, cfg, t0, t1, 96, 'eq', 1, name, sleep)

def c_setup_odd(a):
    a('s_and_b32 s10, s3, 1')
    a('s_lshr_b32 s11, s3, 1')
    a('v_and_b32 v2, 31, v1')
    a('v_lshrrev_b32 v3, 5, v1')
    a('v_lshrrev_b32 v9, 1, v2')
    a('v_and_b32 v9, 7, v9')
    a('v_xor_b32 v9, v9, v3')
    a('v_lshlrev_b32 v9, 4, v9')
    a('v_lshl_add_u32 v9, v2, 7, v9')
    a('s_lshl_b32 s12, s11, 13')
    a('v_add_u32 v4, s12, v9')
    a('v_xor_b32 v5, 32, v4')
    a('v_xor_b32 v6, 64, v4')
    a('v_xor_b32 v7, 96, v4')
    a('v_bfe_u32 v9, v1, 4, 1')
    a('v_mul_u32_u24 v8, 12320, v9')
    a('v_bfe_u32 v9, v1, 2, 2')
    a('v_lshl_add_u32 v9, v3, 3, v9')
    a('v_mul_u32_u24 v9, 192, v9')
    a('v_add_u32 v8, v8, v9')
    a('v_and_b32 v9, 3, v1')
    a('v_lshl_add_u32 v8, v9, 3, v8')
    a('s_mul_i32 s12, s10, 96')
    a('s_add_u32 s12, s12, %d' % OFF_GATE)
    a('v_add_u32 v8, s12, v8')
    a('v_lshrrev_b32 v9, 4, v2')
    a('v_lshlrev_b32 v10, 10, v9')
    a('v_lshl_add_u32 v10, v3, 8, v10')
    a('v_and_b32 v9, 15, v2')
    a('v_lshl_add_u32 v10, v9, 4, v10')
    a('s_lshl_b32 s12, s7, 1')
    a('s_add_u32 s12, s12, s11')
    a('s_mul_i32 s13, s8, 6')
    a('s_mul_i32 s14, s10, 3')
    a('s_add_u32 s13, s13, s14')
    a('s_mul_i32 s79, s12, 96')
    a('s_add_u32 s79, s79, s13')
    a('s_lshl_b32 s79, s79, 2')
    a('s_add_u32 s79, s79, %d' % F_H)
    a('s_mul_i32 s12, s12, 196608')
    for tt in range(3):
        a('s_add_u32 s14, s13, %d' % tt)
        a('s_lshr_b32 s15, s14, 1')
        a('s_lshl_b32 s15, s15, 12')
        a('s_and_b32 s14, s14, 1')
        a('s_lshl_b32 s14, s14, 9')
        a('s_add_u32 s14, s14, s15')
        a('s_add_u32 s%d, s14, s12' % (76 + tt))
    a('v_lshlrev_b32 v249, 2, v1')
    a('v_add_u32 v249, s79, v249')
    a('v_cmp_gt_u32 vcc, 3, v1')
    a('v_mov_b32 v9, 0x%x' % OOB)
    a('v_cndmask_b32 v249, v9, v249, vcc')

def c_setup_main(a):
    a('s_and_b32 s10, s3, 1')
    a('s_lshr_b32 s11, s3, 1')
    a('v_and_b32 v2, 31, v1')
    a('v_lshrrev_b32 v3, 5, v1')
    a('v_lshrrev_b32 v9, 1, v2')
    a('v_and_b32 v9, 7, v9')
    a('v_xor_b32 v9, v9, v3')
    a('v_lshlrev_b32 v9, 4, v9')
    a('v_lshl_add_u32 v9, v2, 7, v9')
    a('s_mul_i32 s12, s11, 12288')
    a('v_add_u32 v4, s12, v9')
    a('v_xor_b32 v5, 32, v4')
    a('v_xor_b32 v6, 64, v4')
    a('v_xor_b32 v7, 96, v4')
    a('v_bfe_u32 v9, v1, 4, 1')
    a('v_bfe_u32 v11, v1, 2, 2')
    a('v_lshl_add_u32 v8, v3, 3, v11')
    a('v_lshlrev_b32 v8, 7, v8')
    a('v_lshl_add_u32 v8, v9, 13, v8')
    a('v_xor_b32 v9, s10, v9')
    a('v_lshl_add_u32 v8, v9, 6, v8')
    a('v_lshrrev_b32 v11, 1, v11')
    a('v_lshl_add_u32 v8, v11, 5, v8')
    a('v_and_b32 v9, 3, v1')
    a('v_lshl_add_u32 v8, v9, 3, v8')
    a('v_add_u32 v8, 24576, v8')
    a('v_xor_b32 v11, 32, v8')
    a('v_lshrrev_b32 v9, 4, v2')
    a('v_lshlrev_b32 v10, 10, v9')
    a('v_lshl_add_u32 v10, v3, 8, v10')
    a('v_and_b32 v9, 15, v2')
    a('v_lshl_add_u32 v10, v9, 4, v10')
    a('s_lshl_b32 s13, s8, 1')
    a('s_add_u32 s13, s13, s10')
    a('v_mov_b32 v249, 0x%x' % OOB)
    for b in range(3):
        a('s_mul_i32 s12, s11, 3')
        a('s_add_u32 s12, s12, %d' % b)
        a('s_and_b32 s14, s12, 1')
        a('s_lshr_b32 s12, s12, 1')
        a('s_mul_i32 s15, s7, 3')
        a('s_add_u32 s12, s12, s15')
        a('s_mul_i32 s15, s12, 96')
        a('s_add_u32 s15, s15, s14')
        a('s_lshl_b32 s79, s13, 1')
        a('s_add_u32 s15, s15, s79')
        a('s_lshl_b32 s15, s15, 2')
        a('s_add_u32 s15, s15, %d' % F_H)
        a('v_writelane_b32 v249, s15, %d' % b)
        a('s_mul_i32 s12, s12, 196608')
        a('s_lshl_b32 s14, s14, 11')
        a('s_add_u32 s12, s12, s14')
        a('s_lshl_b32 s14, s13, 12')
        a('s_add_u32 s%d, s12, s14' % (76 + b))

def c_gemm1(a, cfg, prof, odd):
    ACC = 64
    FB = [16, 40]
    if odd:
        NT_, NBT = 3, 2
        def reads(buf, ks):
            f = FB[buf]
            A = lambda tt: ['ds_read_b64_tr_b16 v[%d:%d], v8 offset:%d' % (f + 4 * tt + 2 * t, f + 4 * tt + 2 * t + 1, ks * 3072 + t * 768 + tt * 32) for t in range(2)]
            B = lambda b: ['ds_read_b128 v[%d:%d], v%d offset:%d' % (f + 12 + 4 * b, f + 15 + 4 * b, 4 + ks, b * 4096)]
            return A(0) + B(0) + B(1) + A(1) + A(2)
        order = [(0, 0, 2), (0, 1, 3), (1, 0, 5), (1, 1, 5), (2, 0, 7), (2, 1, 7)]
        s3_, sn = {1: 3, 2: 2, 3: 2, 4: 1}, {0: 2, 1: 2, 2: 2, 3: 2}
        addr = (4, 5, 6, 7, 8)
        store = lambda tt, b: (76 + tt, b * 2048)
    else:
        NT_, NBT = 2, 3
        def reads(buf, ks):
            f = FB[buf]
            A = lambda tt: ['ds_read_b64_tr_b16 v[%d:%d], v%d offset:%d' % (f + 4 * tt + 2 * t, f + 4 * tt + 2 * t + 1, (8, 11)[tt], ks * 2048 + t * 512) for t in range(2)]
            B = lambda b: ['ds_read_b128 v[%d:%d], v%d offset:%d' % (f + 8 + 4 * b, f + 11 + 4 * b, 4 + ks, b * 4096)]
            return A(0) + B(0) + B(1) + B(2) + A(1)
        order = [(0, 0, 2), (0, 1, 3), (0, 2, 4), (1, 0, 6), (1, 1, 6), (1, 2, 6)]
        s3_, sn = {1: 3, 2: 2, 3: 2}, {0: 2, 1: 2, 2: 2, 3: 1}
        addr = (4, 5, 6, 7, 8, 11)
        store = lambda tt, b: (76 + b, tt * 512)
    def acc(tt, b): return ACC + (tt * NBT + b) * 16
    a('s_setprio %d' % cfg.g1prio)
    a('s_barrier')
    prof.stamp(1); prof.cyc(5)
    toks = [a.emit(r) for r in reads(0, 0)]
    cur = 0
    for st in range(NSTAGE):
        for ks in range(4):
            last = (st == NSTAGE - 1 and ks == 3)
            nxt = None if last else reads(1 - cur, (ks + 1) % 4)
            ntoks = []
            f = FB[cur]
            for mi, (tt, b, need_i) in enumerate(order):
                a.wait_lg(toks[need_i])
                c = '0' if (st == 0 and ks == 0) else vr(acc(tt, b), 16)
                a('v_mfma_f32_32x32x16_bf16 %s, %s, %s, %s' % (vr(acc(tt, b), 16), vr(f + 4 * tt, 4), vr(f + 4 * NT_ + 4 * b, 4), c))
                if nxt is not None:
                    if ks == 3:
                        if mi == 0:
                            skip = cfg.nine and st == NSTAGE - 2
                            if not skip: a.wait_all_lg()
                            d = SLOT if (st + 1) % NSLOT else -(NSLOT - 1) * SLOT
                            for r in addr:
                                a('v_add_u32 v%d, 0x%x, v%d' % (r, u32(d), r))
                            if not skip: a('s_barrier')
                            if st == NSTAGE - 2: a('s_setprio %d' % cfg.cprio)
                        sched = s3_
                    else:
                        sched = sn
                    for _ in range(sched.get(mi, 0)):
                        ntoks.append(a.emit(nxt[len(ntoks)]))
                if st == 9 and cfg.areg:
                    n = ks * 6 + mi - 1
                    if 0 <= n < 5 * cfg.areg:
                        k, dl = n // 5, n % 5
                        if dl == 0: a('s_add_u32 s14, s86, %d' % (5120 * k))
                        b_ = 160 + k * 20 + 4 * dl
                        if dl < 4: a('buffer_load_dwordx4 %s, v240, s[48:51], s14 offen offset:%d sc1' % (vr(b_, 4), 1024 * dl))
                        else: a('buffer_load_dwordx4 %s, v241, s[48:51], s14 offen sc1' % vr(b_, 4))
                if (st, ks, mi) == (6, 1, 5):
                    a('v_mov_b32 v9, %d' % (CNT + 32))
                    a('ds_read_b32 v%d, v9' % VN)
                if (st, ks, mi) == (7, 0, 5) and cfg.cclear and not odd:
                    a.emit('s_waitcnt vmcnt(0)')
                    flag_store(a, 's80')
            toks = ntoks
            cur = 1 - cur
    prof.stamp(2); prof.cyc(6)
    for tt in range(NT_):
        for b in range(NBT):
            x = acc(tt, b)
            o = 16 + (tt * NBT + b) * 4
            for p in range(8):
                a('v_mul_f32 v%d, v%d, v%d' % (x + p, x + p, x + 8 + p))
            for p in range(4):
                a('v_cvt_pk_bf16_f32 v%d, v%d, v%d' % (o + p, x + 2 * p, x + 2 * p + 1))
            a('buffer_store_dwordx4 %s, v10, s[44:47], s%d offen offset:%d sc1' % ((vr(o, 4),) + store(tt, b)))

def c_common(a, cfg):
    g2_scalars(a, 84, 85)
    a('s_mul_i32 s86, s85, 245760')
    a('s_mul_i32 s96, s3, 61440')
    a('s_add_u32 s86, s86, s96')
    a('s_mul_i32 s87, s84, 196608')
    a('s_mul_i32 s96, s3, 49152')
    a('s_add_u32 s87, s87, s96')
    a('s_mul_i32 s88, s3, 10240')
    a('s_mul_i32 s83, s84, 384')
    a('s_mul_i32 s96, s3, 96')
    a('s_add_u32 s83, s83, s96')
    a('s_add_u32 s83, s83, %d' % F_H)
    row_off(a, 244, 245, 84, 85, 3)
    a('v_lshlrev_b32 v240, 4, v1')
    a('v_add_u32 v241, 4096, v240')
    lane_min(a, 246, 24)
    a('v_and_b32 v9, 31, v1')
    a('v_lshlrev_b32 v9, 2, v9')
    a('v_add_u32 v9, %d, v9' % CNT)
    a('v_mov_b32 v12, 0')
    a('ds_write_b32 v9, v12')
    a.emit('s_waitcnt lgkmcnt(0)'); a.lgq = []
    srd(a, 44, P_WS, SZ_H, WS_H)
    srd(a, 48, P_WS, SZ_WD, WS_WD)
    srd(a, 56, P_OUT, SZ_X)
    wave_common(a)
    if cfg.ptouch:
        M2 = 2 << 20
        tl_ = [(P_K, 0), (P_K, M2), (P_V, 0), (P_V, M2), (P_WD, 0), (P_SSMK, 0), (P_SSMK, M2), (P_Q, M2), (P_OUT, 0), (P_OUT, M2), (P_GW, 0), (P_SHK, 0)]
        tl_ += [(P_WS, i * M2 + M2 - 64) for i in range(7)]
        a('s_mov_b32 s64, 0x%x' % M2)
        lab = newlabel('Lpt')
        for w in range(4):
            a('s_cmp_lg_u32 s3, %d' % w)
            a('s_cbranch_scc1 %s_%d' % (lab, w))
            for p, off in tl_[w::4]:
                a('s_mov_b32 s64, 0x%x' % off)
                a('s_load_dword s65, s[%d:%d], s64' % (p, p + 1))
            a.label('%s_%d' % (lab, w))
    if cfg.rot2:
        rot_off(a, cfg, 95)
        for k in range(12): kap(a, 16 + k, 95, k)
    if cfg.spf > 2:
        SPF.X, SPF.WG, SPF.WU = P_Q, P_WG, P_WU
        sp = SPF(a, cfg, 3, 62, 66, 64, 65, 2)
        SPF.X, SPF.WG, SPF.WU = 44, 48, 52
        sp.upto(cfg.spf - 1)
    if cfg.cclear:
        srd(a, 60, P_WS, SZ_Y2, WS_Y2)
        a('s_mul_i32 s80, s4, 20')
        a('s_add_u32 s80, s80, s5')
        a('s_lshl_b32 s80, s80, 2')
        a('s_add_u32 s80, s80, s3')
        a('s_lshl_b32 s81, s80, 12')
        a('s_lshl_b32 s80, s80, 2')
        a('s_add_u32 s80, s80, %d' % F_YC)
        a('s_cmp_ge_u32 s5, 20')
        a('s_cselect_b32 s96, 0x%x, 0' % FAR)
        a('s_or_b32 s80, s80, s96')
        a('s_or_b32 s81, s81, s96')
        for i in range(4): a('v_mov_b32 v%d, -1' % (160 + i))
        for i in range(4):
            a('buffer_store_dwordx4 v[160:163], v240, s[60:63], s81 offen offset:%d sc1' % (1024 * i))

def c_wave(a, cfg, prof):
    h0 = list(a.hist)
    a('s_cmp_ge_u32 s5, 30')
    a('s_cbranch_scc1 LCodd')
    c_setup_main(a)
    c_common(a, cfg)
    c_gemm1(a, cfg, prof, False)
    a('s_branch LCjoin')
    a.hist = h0; a.reset_queues()
    a.label('LCodd')
    c_setup_odd(a)
    c_common(a, cfg)
    c_gemm1(a, cfg, prof, True)
    a.label('LCjoin')
    prof.stamp(3)
    a('v_readfirstlane_b32 s%d, v%d' % (NONCE, VN))
    def h_flag(n_younger):
        a.emit('s_waitcnt vmcnt(%d)' % n_younger)
        if not n_younger: a.vmq = []
        flag_store(a, '0', 249)
        a('s_setprio 0')
        prof.stamp(7); prof.cyc(40)
    a.vmq = []
    if not cfg.pre_ack: h_flag(0)
    NA, NB = cfg.na, cfg.nb
    NL = 6 if cfg.c0 else 4
    L0 = 12 - NL
    LS = cfg.lsteps
    assert not cfg.quiet or LS == 0
    cblocks = ([4, 5] if cfg.c0 else []) + list(range(LS, 4))
    border = cblocks + list(range(LS))
    AB = 240 - 20 * NA; ACC2 = AB - 80 - (8 if NA == 4 else 0); BB = 8
    assert BB + 16 * NB <= ACC2 and not (cfg.areg and NA != 4)
    RD = 160 if NA == 4 else 12
    gtok = {}
    def acc2(dl, sg): return ACC2 + (sg * 5 + dl) * 4
    def wdoff(k):
        if cfg.rot2:
            a('s_mul_i32 s14, s%d, 5120' % (16 + k))
            a('s_add_u32 s14, s14, s86')
        else: a('s_add_u32 s14, s86, %d' % (5120 * k))
    def lbase(off): return ('v4', off) if off < SLOT else ('v7', off - SLOT)
    def issueA(k):
        b = AB + (k % NA) * 20
        if k >= L0:
            i = border[k - L0]
            if i == 0 and LS: lds_word_wait(a, cfg, 3, 16, 5, 6, 'Lwf')
            base, off = lbase(wblk(i))
            for dl in range(5):
                gtok[(k, 'a')] = a.emit('ds_read_b128 %s, %s offset:%d' % (vr(b + 4 * dl, 4), base, off + dl * 1024))
            return
        wdoff(k)
        for dl in range(4):
            a('buffer_load_dwordx4 %s, v240, s[48:51], s14 offen offset:%d sc1' % (vr(b + 4 * dl, 4), 1024 * dl))
        gtok[(k, 'a')] = a.emit('buffer_load_dwordx4 %s, v241, s[48:51], s14 offen sc1' % vr(b + 16, 4))
    def issueB(k):
        b = BB + (k % NB) * 16
        if cfg.rot2:
            a('s_lshl_b32 s15, s%d, 12' % (16 + k))
            a('s_add_u32 s15, s15, s87')
        else: a('s_add_u32 s15, s87, %d' % (4096 * k))
        for sg in range(4):
            gtok[(k, sg)] = a.emit('buffer_load_dwordx4 %s, v240, s[44:47], s15 offen offset:%d sc1' % (vr(b + 4 * sg, 4), 1024 * sg))
    a('v_add_u32 v4, s88, v240')
    a('v_add_u32 v7, %d, v4' % SLOT)
    a('v_mov_b32 v5, %d' % CNT)
    a('v_mov_b32 v6, 1')
    a('v_cmp_eq_u32 vcc, 0, v1')
    a('s_and_saveexec_b64 s[90:91], vcc')
    a('ds_add_u32 v5, v6')
    a('s_mov_b64 exec, s[90:91]')
    lds_spin(a, cfg, 5, 6, 82, 'ge', 4, 'Lcsync')
    lds_word_wait(a, cfg, 3, 48, 5, 6, 'Lwok')
    prof.stamp(31)
    assert not (cfg.areg and (cfg.ungate or cfg.nine or cfg.rot2))
    for k in range(cfg.areg): gtok[(k, 'a')] = -1
    done = [0]
    def tick():
        done[0] += 1
        if done[0] == cfg.pre_ack: h_flag(5 * cfg.pre_ack)
    for k in range(cfg.areg, NA): issueA(k); tick()
    t = None
    for n, i in enumerate(cblocks):
        if n == cfg.pollat: t = poll_issue(a, 246, 's83', 247)
        wdoff(L0 + n)
        a('s_add_u32 m0, s88, %d' % wblk(i))
        for dl in range(4):
            a('buffer_load_dwordx4 v240, s[48:51], s14 offen offset:%d sc1 lds' % (1024 * dl))
        a('s_add_u32 m0, s88, %d' % (wblk(i) + 4096))
        a('buffer_load_dwordx4 v241, s[48:51], s14 offen sc1 lds')
        tick()
    if t is None: t = poll_issue(a, 246, 's83', 247)
    prof.stamp(32)
    if cfg.prof:
        a.wait_vm(t); prof.stamp(33)
    def group_wait(tok, g):
        if cfg.rot2:
            a('s_lshl_b32 s80, s%d, 1' % (16 + 4 * g))
            a('s_lshl_b64 s[80:81], 0xff, s80') if False else None
            a('s_mov_b32 s81, 0xff')
            a('s_lshl_b32 s82, s81, s80')
            a('s_sub_u32 s80, 24, s80')
            a('s_lshr_b32 s81, s81, s80')
            a('s_or_b32 s82, s82, s81')
            a('s_and_b32 s82, s82, 0xffffff')
        else:
            a('s_mov_b32 s82, 0x%x' % (0xff << (8 * g)))
        a.wait_vm(tok)
        lo, ok = newlabel('Lg'), newlabel('Lg_ok')
        a('s_mov_b32 s94, %d' % cfg.spin)
        a.label(lo)
        a('v_cmp_ne_u32 vcc, s%d, v247' % NONCE)
        a('s_nop 0')
        a('s_and_b32 s81, vcc_lo, s82')
        a('s_cbranch_scc0 %s' % ok)
        a('s_sleep %d' % cfg.hsleep)
        poll_issue(a, 246, 's83', 247)
        a.emit('s_waitcnt vmcnt(0)')
        a.vmq.pop()
        a('s_sub_u32 s94, s94, 1')
        a('s_cmp_lg_u32 s94, 0')
        a('s_cbranch_scc1 %s' % lo)
        a.label(ok)
    if cfg.grp:
        assert NB == 4
        group_wait(t, 0)
    else:
        poll_wait(a, cfg, t, 246, 's83', 247, sleep=cfg.hsleep)
    prof.stamp(8); prof.cyc(41)
    if cfg.grp: gp = {1: poll_issue(a, 246, 's83', 247)}
    for k in range(NB): issueB(k)
    def step(k, sgs, after=None):
        ab_, bb_ = AB + (k % NA) * 20, BB + (k % NB) * 16
        if k >= L0: a.wait_lg(gtok[(k, 'a')])
        else: a.wait_vm(gtok[(k, 'a')])
        for n, sg in enumerate(sgs):
            a.wait_vm(gtok[(k, sg)])
            if n == 0: prof.stamp(10 + k)
            for dl in range(5):
                c = '0' if k == 0 else vr(acc2(dl, sg), 4)
                a('v_mfma_f32_16x16x32_bf16 %s, %s, %s, %s' % (vr(acc2(dl, sg), 4), vr(ab_ + 4 * dl, 4), vr(bb_ + 4 * sg, 4), c))
                if after: after(n, dl)
    NK = 11 if cfg.fin else 12
    for k in range(NK):
        step(k, range(4))
        if cfg.grp and k in (0, 4): group_wait(gp[k // 4 + 1], k // 4 + 1)
        if cfg.grp and k == 2: gp[2] = poll_issue(a, 246, 's83', 247)
        if k + NB < 12: issueB(k + NB)
        if k + NA < 12: issueA(k + NA)
        if k == cfg.ygate: lds_word(a, 3, 64, 5, 6)
    def blk(w, sg): return w * 10240 + wblk(sg if sg < w else sg - 1)
    a('v_add_u32 v7, %d, v240' % SLOT)
    a('v_add_u32 v4, %d, v7' % SLOT)
    if not cfg.fin: a('s_nop 7')
    else:
        a.wait_lg(gtok[(11, 'a')])
        a.wait_all_vm()
    for w in range(3):
        a('s_cmp_eq_u32 s3, %d' % (w + 1))
        a('s_cbranch_scc1 Lfin%d' % (w + 1))
    hist0 = [] if cfg.fin else list(a.hist)
    def ab(off): return ('v7', off - SLOT) if off < 2 * SLOT else ('v4', off - 2 * SLOT)
    for w in range(4):
        a.hist = list(hist0); a.vmq = []; a.lgq = []
        a.label('Lfin%d' % w)
        others = [x for x in range(4) if x != w]
        def wr(sg, dl):
            r, o = ab(blk(w, sg) + dl * 1024)
            a('ds_write_b128 %s, %s offset:%d' % (r, vr(acc2(dl, sg), 4), o))
        if cfg.fin:
            pend = []
            def after(n, dl):
                if n < 3: pend.append((others[n], dl))
                if len(pend) > 6 or (n == 3 and pend): wr(*pend.pop(0))
            step(11, others + [w], after=after)
            while pend: wr(*pend.pop(0))
        else:
            for sg in others:
                for dl in range(5): wr(sg, dl)
        prof.stamp(9); prof.cyc(42)
        a('v_add_u32 v5, %d, v240' % (PA + w * 5120))
        a('v_lshlrev_b32 v3, 2, v1')
        a('v_add_u32 v3, %d, v3' % (QA + w * QSZ + 3072))
        a.wait_all_lg()
        a('s_barrier')
        prof.stamp(30)
        tl = {}
        tl['omg'] = a.emit('ds_read_b32 v6, v3')
        for dl in range(5):
            for si, x in enumerate(others):
                r, o = ab(blk(x, w) + dl * 1024)
                tl[(dl, si)] = a.emit('ds_read_b128 %s, %s offset:%d' % (vr(RD + (dl * 4 + si) * 4, 4), r, o))
            tl[(dl, 3)] = a.emit('ds_read_b128 %s, v5 offset:%d' % (vr(RD + (dl * 4 + 3) * 4, 4), dl * 1024))
        for dl in range(5):
            x = acc2(dl, w)
            for si in range(3):
                a.wait_lg(tl[(dl, si)])
                r = RD + (dl * 4 + si) * 4
                a('v_pk_add_f32 %s, %s, %s' % (P2(x), P2(x), P2(r)))
                a('v_pk_add_f32 %s, %s, %s' % (P2(x + 2), P2(x + 2), P2(r + 2)))
            ga = RD + (dl * 4 + 3) * 4
            t = 8 + (dl & 1) * 2 if NA != 4 else 12 + (dl & 1) * 4
            a.wait_lg(tl[(dl, 3)])
            for i in range(4): a('v_fma_f32 v%d, v6, v%d, v%d' % (x + i, x + i, ga + i))
            a('v_cvt_pk_bf16_f32 v%d, v%d, v%d' % (t, x, x + 1))
            a('v_cvt_pk_bf16_f32 v%d, v%d, v%d' % (t + 1, x + 2, x + 3))
            a('buffer_store_dwordx2 %s, v244, s[56:59], 0 offen offset:%d' % (vr(t, 2), dl * 32))
        prof.stamp(4)
        prof.flush(243)
        a('s_endpgm')

class SPF:
    def __init__(self, a, cfg, wv, pw, px, cur, dst, first):
        self.a, self.cfg, self.pw, self.px, self.cur, self.dst, self.next = a, cfg, pw, px, cur, dst, first
        a('s_lshl_b32 s96, s5, 2')
        a('s_add_u32 s96, s96, s%d' % wv)
        a('s_and_b32 s%d, s4, 1' % cur)
        a('s_mul_i32 s%d, s%d, 10' % (cur, cur))
        a('s_mul_i32 s97, s6, 5')
        a('s_add_u32 s%d, s%d, s97' % (cur, cur))
        a('s_lshr_b32 s%d, s%d, 1' % (cur, cur))
        if cfg.xrot == 0: a('s_mov_b32 s%d, 0' % cur)
        a('s_add_u32 s%d, s%d, %d' % (cur, cur, first))
        for _ in range(2):
            a('s_cmp_ge_u32 s%d, 10' % cur)
            a('s_cselect_b32 s97, 10, 0')
            a('s_sub_u32 s%d, s%d, s97' % (cur, cur))
        a('s_bitcmp1_b32 s96, 0')
        a('s_cselect_b32 s%d, s%d, s%d' % (pw, self.WU, self.WG))
        a('s_cselect_b32 s%d, s%d, s%d' % (pw + 1, self.WU + 1, self.WG + 1))
        a('s_lshr_b32 s97, s96, 1')
        a('s_mul_i32 s97, s97, 3072')
        a('s_mul_i32 s%d, s6, 768' % dst)
        a('s_add_u32 s97, s97, s%d' % dst)
        a('s_mul_i32 s%d, s%d, 196608' % (dst, cur))
        a('s_add_u32 s97, s97, s%d' % dst)
        a('s_add_u32 s%d, s%d, s97' % (pw, pw))
        a('s_addc_u32 s%d, s%d, 0' % (pw + 1, pw + 1))
        a('s_lshr_b32 s97, s96, 3')
        a('s_min_u32 s97, s97, 14')
        a('s_and_b32 s%d, s4, 1' % dst)
        a('s_mul_i32 s%d, s%d, 15' % (dst, dst))
        a('s_add_u32 s97, s97, s%d' % dst)
        a('s_and_b32 s96, s96, 7')
        a('s_lshr_b32 s%d, s97, 3' % dst)
        a('s_lshl_b32 s%d, s%d, 9' % (dst, dst))
        a('s_add_u32 s96, s96, s%d' % dst)
        a('s_and_b32 s97, s97, 7')
        a('s_lshl_b32 s97, s97, 3')
        a('s_add_u32 s96, s96, s97')
        a('s_mul_i32 s96, s96, 1280')
        a('s_lshl_b32 s97, s%d, 7' % cur)
        a('s_add_u32 s96, s96, s97')
        a('s_add_u32 s%d, s%d, s96' % (px, self.X))
        a('s_addc_u32 s%d, s%d, 0' % (px + 1, self.X + 1))
    X, WG, WU = 44, 48, 52
    def upto(self, st):
        a = self.a
        while self.next <= min(st, NSTAGE - 1):
            for i in range(6): a('s_load_dword s%d, s[%d:%d], %d' % (self.dst, self.pw, self.pw + 1, 128 * i))
            for i in range(self.cfg.spfx): a('s_load_dword s%d, s[%d:%d], %d' % (self.dst, self.px, self.px + 1, 81920 * i))
            a('s_add_u32 s%d, s%d, 1' % (self.cur, self.cur))
            a('s_cmp_eq_u32 s%d, 10' % self.cur)
            a('s_cselect_b32 s96, %d, 196608' % 0) if False else None
            a('s_cselect_b32 s96, 1966080, 0')
            a('s_cselect_b32 s97, 1280, 0')
            a('s_sub_u32 s%d, s%d, s96' % (self.pw, self.pw)); a('s_subb_u32 s%d, s%d, 0' % (self.pw + 1, self.pw + 1))
            a('s_add_u32 s%d, s%d, 196608' % (self.pw, self.pw)); a('s_addc_u32 s%d, s%d, 0' % (self.pw + 1, self.pw + 1))
            a('s_sub_u32 s%d, s%d, s97' % (self.px, self.px)); a('s_subb_u32 s%d, s%d, 0' % (self.px + 1, self.px + 1))
            a('s_add_u32 s%d, s%d, 128' % (self.px, self.px)); a('s_addc_u32 s%d, s%d, 0' % (self.px + 1, self.px + 1))
            self.next += 1

class Loader:
    def __init__(self, a, cfg, prof, odd):
        self.a, self.odd, self.tok = a, odd, {}
        if odd:
            a('v_lshrrev_b32 v9, 3, v1')
            a('v_and_b32 v10, 7, v1')
            a('v_lshrrev_b32 v11, 1, v9')
            a('v_xor_b32 v10, v10, v11')
            a('v_lshlrev_b32 v10, 4, v10')
            a('s_mov_b32 s12, 81920')
            a('v_mul_lo_u32 v9, v9, s12')
            a('v_add_u32 v2, v9, v10')
            a('v_xor_b32 v10, 64, v10')
            a('v_add_u32 v3, v9, v10')
            a('v_add_u32 v3, 256, v3')
            a('v_add_u32 v4, 512, v2')
            a('v_add_u32 v5, 512, v3')
            for i in range(3):
                a('v_add_u32 v9, %d, v1' % (64 * i))
                a('v_mul_u32_u24 v10, 5462, v9')
                a('v_lshrrev_b32 v10, 16, v10')
                a('v_mul_u32_u24 v11, 12, v10')
                a('v_sub_u32 v11, v9, v11')
                a('v_mul_u32_u24 v10, 3072, v10')
                a('v_lshl_add_u32 v10, v11, 4, v10')
                a('v_subrev_u32 v%d, %d, v10' % (6 + i, 1024 * i))
            a('s_mov_b32 s12, %d' % (512 * 3 + 16 * 3))
            a('s_lshl_b32 s13, s10, 2')
            a('s_add_u32 s12, s12, s13')
            a('s_mul_i32 s12, s12, 1280')
            a('s_mul_i32 s13, s10, 49152')
            a('s_mul_i32 s14, s8, 192')
            a('s_add_u32 s13, s13, s14')
            a('s_lshl_b32 s14, s10, 12')
            a('s_mul_i32 s15, s10, 3072')
        else:
            a('v_lshrrev_b32 v9, 3, v1')
            a('v_and_b32 v10, 7, v1')
            a('v_lshrrev_b32 v11, 1, v9')
            a('v_xor_b32 v4, v10, v11')
            a('v_lshlrev_b32 v4, 4, v4')
            a('s_mov_b32 s12, 81920')
            a('v_mul_lo_u32 v3, v9, s12')
            a('v_add_u32 v2, v3, v4')
            a('v_xor_b32 v4, 64, v4')
            a('v_add_u32 v3, v3, v4')
            a('v_and_b32 v11, 1, v11')
            a('v_lshlrev_b32 v11, 1, v11')
            a('v_xor_b32 v10, v10, v11')
            a('v_mul_u32_u24 v9, 3072, v9')
            a('v_lshl_add_u32 v4, v10, 4, v9')
            a('v_add_u32 v5, 23552, v4')
            a('v_xor_b32 v6, 64, v4')
            a('v_xor_b32 v7, 64, v5')
            for i in range(6):
                a('s_mul_i32 s12, s10, 6')
                a('s_add_u32 s12, s12, %d' % i)
                a('s_lshr_b32 s13, s12, 3')
                a('s_mul_i32 s14, s7, 3')
                a('s_add_u32 s13, s13, s14')
                a('s_and_b32 s12, s12, 7')
                a('s_lshr_b32 s14, s13, 3')
                a('s_lshl_b32 s14, s14, 9')
                a('s_add_u32 s12, s12, s14')
                a('s_and_b32 s13, s13, 7')
                a('s_lshl_b32 s13, s13, 3')
                a('s_add_u32 s12, s12, s13')
                a('s_mul_i32 s12, s12, 1280')
                a('s_sub_u32 s%d, s12, %d' % (58 + i, 1024 * (i % 3)))
            a('s_mul_i32 s13, s10, 49152')
            a('s_lshl_b32 s14, s8, 7')
            a('s_add_u32 s13, s13, s14')
            a('s_mul_i32 s14, s10, 6144')
            a('s_lshl_b32 s15, s10, 11')
        self.rot = cfg.xrot
        self.alt = cfg.alt
        if cfg.alt and not odd:
            a('s_add_u32 s93, s7, s8')
            a('s_and_b32 s93, s93, 1')
        if cfg.xrot:
            a('s_and_b32 s9, s4, 1')
            a('s_mul_i32 s9, s9, 10')
            a('s_mul_i32 s96, s6, 5')
            a('s_add_u32 s9, s9, s96')
            if cfg.xrot == 2:
                a('s_mul_i32 s96, s5, 3')
                a('s_add_u32 s9, s9, s96')
                a('s_and_b32 s9, s9, 31')
            a('s_lshr_b32 s9, s9, 1')
            a('s_cmp_ge_u32 s9, 10')
            a('s_cselect_b32 s96, 10, 0')
            a('s_sub_u32 s9, s9, s96')
            a('s_lshl_b32 s96, s9, 7')
            if odd: a('s_add_u32 s12, s12, s96')
            else:
                a('v_add_u32 v2, s96, v2')
                a('v_add_u32 v3, s96, v3')
            a('s_mul_i32 s96, s9, 196608')
            a('s_add_u32 s13, s13, s96')
        a.emit('s_waitcnt lgkmcnt(0)')
        prof.stamp(3)
        srd(a, 44, P_Q, SZ_X)
        srd(a, 48, P_WG, SZ_W)
        srd(a, 52, P_WU, SZ_W)
        if not odd:
            for i in range(6): a('s_mov_b32 s%d, s%d' % (28 + i, 58 + i))
    def issue(self, st):
        a = self.a
        base = (st % NSLOT) * SLOT
        if self.odd:
            a('s_add_u32 m0, s14, %d' % base)
            for i in range(4):
                a('buffer_load_dwordx4 v%d, s[44:47], s12 offen offset:%d lds' % (2 + i, 1024 * i))
            a('s_add_u32 m0, s15, %d' % (base + OFF_GATE))
            for i in range(3):
                a('buffer_load_dwordx4 v%d, s[48:51], s13 offen offset:%d lds' % (6 + i, 1024 * i))
            a('s_add_u32 m0, s15, %d' % (base + OFF_UP))
            for i in range(3):
                t = a.emit('buffer_load_dwordx4 v%d, s[52:55], s13 offen offset:%d lds' % (6 + i, 1024 * i))
            a('s_add_u32 s12, s12, 128')
        else:
            def xpart(order):
                for h in order:
                    a('s_add_u32 m0, s14, %d' % (base + 3072 * h))
                    for i in range(3 * h, 3 * h + 3):
                        t = a.emit('buffer_load_dwordx4 v%d, s[44:47], s%d offen offset:%d lds' % (2 + (i & 1), 28 + i, 1024 * (i % 3)))
                return t
            def wpart(order):
                for m in order:
                    a('s_add_u32 m0, s15, %d' % (base + 24576 + 8192 * m))
                    for i in range(2):
                        t = a.emit('buffer_load_dwordx4 v%d, s[%d:%d], s13 offen offset:%d lds' % (4 + 2 * m + i, 48 + 4 * m, 51 + 4 * m, 1024 * i))
                return t
            if self.alt:
                l1, l2 = newlabel('Lalt'), newlabel('Lalt_done')
                a('s_cmp_lg_u32 s93, 0')
                a('s_cbranch_scc1 %s' % l1)
                q0 = list(a.vmq)
                if self.alt == 1: xpart((0, 1)); wpart((0, 1))
                else: xpart((0,)); wpart((0,)); xpart((1,)); wpart((1,))
                a('s_branch %s' % l2)
                a.vmq = q0
                a.label(l1)
                if self.alt == 1: wpart((1, 0)); t = xpart((1, 0))
                else: wpart((1,)); xpart((1,)); wpart((0,)); t = xpart((0,))
                a.label(l2)
            else:
                xpart((0, 1)); t = wpart((0, 1))
            a('v_add_u32 v2, 0x80, v2')
            a('v_add_u32 v3, 0x80, v3')
        a('s_add_u32 s13, s13, 196608')
        if self.rot:
            a('s_add_u32 s9, s9, 1')
            a('s_cmp_eq_u32 s9, 10')
            a('s_cselect_b32 s96, 1280, 0')
            a('s_cselect_b32 s97, 1966080, 0')
            a('s_sub_u32 s13, s13, s97')
            if self.odd: a('s_sub_u32 s12, s12, s96')
            else:
                a('v_subrev_u32 v2, s96, v2')
                a('v_subrev_u32 v3, s96, v3')
        self.tok[st] = t

def l_wave(a, cfg, prof):
    a('s_setprio %d' % cfg.lprio)
    a('s_and_b32 s10, s3, 3')
    h0 = list(a.hist)
    a('s_cmp_ge_u32 s5, 30')
    a('s_cbranch_scc1 LLodd')
    l_body(a, cfg, prof, False)
    a.hist = h0; a.reset_queues()
    a.label('LLodd')
    l_body(a, cfg, prof, True)

def l_body(a, cfg, prof, odd):
    ld = Loader(a, cfg, prof, odd)
    stage_tok = ld.tok
    issue_stage = ld.issue
    issue_stage(0)
    wave_common(a)
    if cfg.drop:
        a('s_mov_b32 s92, 1'); a('v_mov_b32 v250, 1'); a('s_mov_b32 s86, 0')
    if not odd:
        a('s_lshl_b32 s76, s2, 2')
        a('s_add_u32 s76, s76, s10')
        a('s_cmp_lg_u32 s76, 0')
        a('s_cbranch_scc1 Lno_nonce')
        a('s_memrealtime s[76:77]')
        srd(a, 68, P_DBG, 256)
        a.emit('s_waitcnt lgkmcnt(0)')
        a('s_or_b32 s76, s76, 1')
        a('v_mov_b32 v20, s76')
        a('buffer_store_dword v20, v%d, s[68:71], 0 offen sc1' % VZ)
        a.emit('s_waitcnt vmcnt(0)')
        a.vmq.pop()
        a.label('Lno_nonce')
    issue_stage(1)
    spf = SPF(a, cfg, 10, 38, 16, 7, 8, cfg.spf) if cfg.spf else None
    g2_scalars(a, 84, 85)
    a('s_mul_i32 s82, s10, 5120')
    a('s_add_u32 s82, s82, %d' % PA)
    a('s_mul_i32 s83, s10, %d' % QSZ)
    a('s_add_u32 s83, s83, %d' % QA)
    a('s_mul_i32 s88, s85, 48')
    a('s_mul_i32 s96, s10, 12')
    a('s_add_u32 s88, s88, s96')
    a('s_mul_i32 s0, s88, 5120')
    if cfg.rot2: rot_off(a, cfg, 95)
    else: a('s_mov_b32 s95, 0')
    a('s_lshl_b32 s88, s88, 2')
    a('s_add_u32 s88, s88, %d' % F_WD)
    a('s_mul_i32 s1, s10, 10240')
    a('v_lshlrev_b32 v241, 4, v1')
    a('v_add_u32 v245, 4096, v241')
    if not odd:
        a('s_cmp_ge_u32 s5, 20')
        a('s_cbranch_scc1 LtypeB')
    saved = (list(a.vmq), dict(stage_tok), list(a.hist), spf.next if spf else 0)
    tk = {}
    DROP = {1: ('kv_loads', 'wd_loads'), 2: ('f',), 4: ('ut_store', 'wd_part'), 8: ('y_clear',), 16: ('n_issue', 'n_get', 'd_issue')}
    dn = [n for b, ns in DROP.items() if cfg.drop & b for n in ns]
    class _T(dict):
        def __missing__(self, k): return -1
    tk = _T()
    def interval(i, slices, pre={}):
        slices = {k: [f for f in v if f.__name__ not in dn] for k, v in slices.items()}
        pre = {k: [f for f in v if f.__name__ not in dn] for k, v in pre.items()}
        if cfg.nine and i == 8: a.wait_vm(stage_tok[9])
        a.wait_vm(stage_tok[i])
        if a.lgq: a.wait_all_lg()
        if cfg.lstamp: prof.stamp(10 + i)
        if not (cfg.nine and i == 9): a('s_barrier')
        if cfg.lstamp: prof.stamp(20 + i)
        if spf: spf.upto(i + cfg.spf)
        for f in pre.get(i, []): f()
        if i + NSLOT - 1 < NSTAGE: issue_stage(i + NSLOT - 1)
        for f in slices.get(i, []): f()
    def n_issue():
        a('s_load_dword s%d, s[%d:%d], 0' % (NONCE, P_DBG, P_DBG + 1))
    def n_get():
        lo, ok = newlabel('Ln'), newlabel('Ln_ok')
        a.emit('s_waitcnt lgkmcnt(0)'); a.lgq = []
        a('s_cmp_lg_u32 s%d, 0' % NONCE)
        a('s_cbranch_scc1 %s' % ok)
        a('s_mov_b32 s94, %d' % cfg.spin)
        srd(a, 68, P_DBG, 256)
        a('v_mov_b32 v249, 0')
        a.label(lo)
        a('buffer_load_dword v%d, v249, s[68:71], 0 offen sc1' % VN)
        a.emit('s_waitcnt vmcnt(0)')
        a.vmq.pop()
        a('v_readfirstlane_b32 s%d, v%d' % (NONCE, VN))
        a('s_cmp_lg_u32 s%d, 0' % NONCE)
        a('s_cbranch_scc1 %s' % ok)
        a('s_sleep 8')
        a('s_sub_u32 s94, s94, 1')
        a('s_cmp_lg_u32 s94, 0')
        a('s_cbranch_scc1 %s' % lo)
        a.label(ok)
        a('s_nop 1')
        a('v_mov_b32 v%d, s%d' % (VN, NONCE))
        a('v_mov_b32 v9, %d' % (CNT + 32))
        a('ds_write_b32 v9, v%d' % VN)
    def flag_after(key, sreg):
        def f():
            a.wait_vm(tk[key])
            flag_store(a, sreg)
        return f
    def late_srds():
        srd(a, 48, P_WS, SZ_WD, WS_WD)
        srd(a, 52, P_WS, SZ_G, WS_G)
        srd(a, 64, P_WS, SZ_Y2, WS_Y2)
    def wdl_dma():
        for i in range(cfg.lsteps):
            kap(a, 97, 95, 12 - cfg.lsteps + i)
            a('s_mul_i32 s97, s97, 5120')
            a('s_add_u32 s97, s97, s0')
            a('s_add_u32 m0, s1, %d' % wblk(i))
            for dl in range(4):
                a('buffer_load_dwordx4 v241, s[48:51], s97 offen offset:%d sc1 lds' % (1024 * dl))
            a('s_add_u32 m0, s1, %d' % (wblk(i) + 4096))
            tk['wdl'] = a.emit('buffer_load_dwordx4 v245, s[48:51], s97 offen sc1 lds')
    def wdl_publish():
        if not cfg.lsteps: return
        a.wait_vm(tk['wdl'])
        lds_word(a, 10, 16, 236, 237)
    def q_loads():
        row_off(a, 238, 239, 84, 85, 10)
        for dl in range(5):
            a('buffer_load_dwordx2 %s, v238, s[44:47], 0 offen offset:%d' % (vr(QV + 2 * dl, 2), dl * 32))
    def tail_issue():
        if cfg.bclear:
            a('s_lshl_b32 s89, s85, 8')
            a('s_add_u32 s89, s89, %d' % F_YC)
            lane_min(a, 247, 48)
            tk['y1'] = poll_issue(a, 247, 's89', 239)
            return
        a('s_mul_i32 s89, s85, 320')
        a('s_add_u32 s89, s89, %d' % F_YC)
        a('v_lshlrev_b32 v247, 2, v1')
        lane_min(a, 240, 16)
        a('v_add_u32 v240, 256, v240')
        tk['y1'] = poll_issue(a, 247, 's89', 239)
        tk['y2'] = poll_issue(a, 240, 's89', 243)
    def tail_check():
        if not cfg.bclear: poll_wait(a, cfg, tk['y2'], 240, 's89', 243)
        poll_wait(a, cfg, tk['y1'], 247, 's89', 239)

    def type_a():
        KR, VR_, WR = 32, 60, 76
        srd(a, 56, P_K, SZ_X); srd(a, 60, P_V, SZ_X); srd(a, 64, P_SHK, 5120)
        a('s_cmp_ge_u32 s5, 10')
        a('s_cselect_b32 s76, 1, 0')
        a('s_cselect_b32 s77, 10, 0')
        a('s_sub_u32 s77, s5, s77')
        a('s_lshl_b32 s78, s4, 1')
        a('s_add_u32 s76, s76, s78')
        a('s_lshl_b32 s87, s77, 2')
        a('s_add_u32 s87, s87, s10')
        a('s_lshl_b32 s89, s87, 4')
        a('s_add_u32 s89, s89, s76')
        a('s_lshl_b32 s89, s89, 2')
        a('s_lshl_b32 s87, s87, 16')
        a('s_lshl_b32 s78, s76, 8')
        a('s_add_u32 s87, s87, s78')
        a('s_lshl_b32 s76, s76, 7')
        a('s_lshl_b32 s78, s10, 5')
        a('s_add_u32 s76, s76, s78')
        a('v_lshrrev_b32 v9, 3, v1')
        a('v_and_b32 v10, 7, v1')
        a('s_lshl_b32 s78, s10, 3')
        a('v_add_u32 v22, s78, v9')
        a('v_lshlrev_b32 v11, 1, v10')
        a('v_xor_b32 v22, v22, v11')
        a('v_lshlrev_b32 v22, 3, v22')
        a('v_lshl_add_u32 v22, v10, 11, v22')
        a('v_add_u32 v22, %d, v22' % PA)
        a('v_lshlrev_b32 v9, 2, v9')
        a('v_add_u32 v9, s76, v9')
        a('v_mul_u32_u24 v232, 1280, v9')
        a('v_lshl_add_u32 v232, v10, 4, v232')
        a('s_lshl_b32 s78, s77, 7')
        a('v_add_u32 v232, s78, v232')
        a('v_subrev_u32 v233, 3840, v232')
        a('v_subrev_u32 v234, 2560, v232')
        a('v_subrev_u32 v235, 1280, v232')
        a('s_lshl_b32 s78, s77, 9')
        a('v_lshlrev_b32 v236, 6, v10')
        a('v_add_u32 v236, s78, v236')
        a('s_mul_i32 s11, s4, 20')
        a('s_add_u32 s11, s11, s5')
        a('s_lshl_b32 s11, s11, 2')
        a('s_add_u32 s11, s11, s10')
        a('s_lshl_b32 s81, s11, 12')
        a('s_lshl_b32 s80, s11, 2')
        a('s_add_u32 s80, s80, %d' % F_YC)
        a('s_lshr_b32 s76, s11, 4')
        a('s_lshl_b32 s76, s76, 6')
        a('s_sub_u32 s77, s88, 64')
        a('v_min_u32 v240, %d, v1' % (31 if cfg.bclear else 27))
        a('v_lshlrev_b32 v240, 2, v240')
        a('v_mov_b32 v9, s76')
        a('v_mov_b32 v10, s77')
        if cfg.bclear:
            a('s_lshl_b32 s78, s5, 2')
            a('s_add_u32 s78, s78, s10')
            a('s_lshl_b32 s78, s78, 2')
            a('s_mul_i32 s78, s78, 9363')
            a('s_lshr_b32 s78, s78, 16')
            a('s_lshl_b32 s79, s4, 6')
            a('s_add_u32 s78, s78, s79')
            a('s_lshl_b32 s78, s78, 2')
            a('s_add_u32 s78, s78, %d' % (F_YC - 112))
            a('v_min_u32 v240, 29, v1')
            a('v_lshlrev_b32 v240, 2, v240')
            a('v_mov_b32 v11, s78')
            a('v_cmp_gt_u32 vcc, 28, v1')
            a('v_cndmask_b32 v10, v11, v10, vcc')
        a('v_cmp_gt_u32 vcc, 16, v1')
        a('v_cndmask_b32 v9, v10, v9, vcc')
        a('v_add_u32 v240, v240, v9')
        a('s_and_b32 s86, s11, 0xfffffffe')
        a('s_lshl_b32 s86, s86, 1')
        a('s_load_dword s86, s[26:27], s86')
        a('s_mov_b32 s87, s87')
        class _A:
            def __init__(self): self.l = []
            def __call__(self, t): self.l.append(t)
        rec = _A(); conv_setup(rec, cfg)
        for t in rec.l[:-4]: a(t)
        def d_fin():
            for t in rec.l[-4:]: a(t)
        def kv_loads():
            for i in range(4):
                a('buffer_load_dwordx4 %s, v232, s[56:59], 0 offen offset:%d' % (vr(KR + 12 + 4 * i, 4), 1280 * i))
            for i in range(4):
                a('buffer_load_dwordx4 %s, v232, s[60:63], 0 offen offset:%d' % (vr(VR_ + 4 * i, 4), 1280 * i))
            a('buffer_load_dwordx4 %s, v233, s[56:59], 0 offen' % vr(KR, 4))
            a('buffer_load_dwordx4 %s, v234, s[56:59], 0 offen' % vr(KR + 4, 4))
            a('buffer_load_dwordx4 %s, v235, s[56:59], 0 offen' % vr(KR + 8, 4))
            for i in range(4):
                tk['kv'] = a.emit('buffer_load_dwordx4 %s, v236, s[64:67], 0 offen offset:%d' % (vr(WR + 4 * i, 4), 16 * i))
        def ut_srd(): srd(a, 56, P_WS, SZ_UT, WS_UT)
        def kv_part(cp):
            def f():
                a.wait_vm(tk['kv'])
                U = 92
                for r in range(7):
                    unpack_lo(a, U + 2 * r, KR + 4 * r + cp); unpack_hi(a, U + 2 * r + 1, KR + 4 * r + cp)
                for r in range(4):
                    unpack_lo(a, U + 14 + 2 * r, VR_ + 4 * r + cp); unpack_hi(a, U + 15 + 2 * r, VR_ + 4 * r + cp)
                for h in range(2):
                    unpack_lo(a, U + 22 + h, WR + 4 * cp + 2 * h); unpack_hi(a, U + 24 + h, WR + 4 * cp + 2 * h)
                    unpack_lo(a, U + 26 + h, WR + 4 * cp + 2 * h + 1); unpack_hi(a, U + 28 + h, WR + 4 * cp + 2 * h + 1)
                AC = U + 30
                for i in range(8):
                    a('v_mul_f32 v%d, v%d, v%d' % (AC + i, U + i, U + 28 + (i & 1)))
                for tap in (2, 1, 0):
                    for i in range(8):
                        a('v_fmac_f32 v%d, v%d, v%d' % (AC + i, U + 2 * (3 - tap) + i, U + 22 + 2 * tap + (i & 1)))
                for i in range(8):
                    a('v_mul_f32 v%d, v%d, v%d' % (AC + i, AC + i, U + 14 + i))
                O = 24 + (cp & 1) * 4
                for h in range(2):
                    a('v_cvt_pk_bf16_f32 v%d, v%d, v%d' % (O + 2 * h, AC + h, AC + 2 + h))
                    a('v_cvt_pk_bf16_f32 v%d, v%d, v%d' % (O + 2 * h + 1, AC + 4 + h, AC + 6 + h))
                for h in range(2):
                    a('ds_write_b64 v22, %s offset:%d' % (vr(O + 2 * h, 2), 256 * (2 * cp + h)))
            return f
        def ut_store():
            a('v_lshrrev_b32 v9, 4, v1')
            a('v_and_b32 v10, 15, v1')
            a('v_lshlrev_b32 v11, 12, v9')
            a('v_lshl_add_u32 v11, v10, 4, v11')
            a('s_lshl_b32 s76, s10, 1')
            a('s_lshl_b32 s77, s10, 12')
            a('s_add_u32 s77, s77, %d' % PA)
            for hh in range(2):
                a('s_add_u32 s78, s76, %d' % hh)
                a('v_xor_b32 v12, s78, v10')
                a('v_lshlrev_b32 v12, 4, v12')
                a('v_lshl_add_u32 v12, v9, 8, v12')
                a('v_add_u32 v%d, s77, v12' % (24 + hh))
            tl = [a.emit('ds_read_b128 %s, v%d offset:%d' % (vr(40 + 4 * i, 4), 24 + (i >> 1), 1024 * i)) for i in range(4)]
            for i in range(4):
                a.wait_lg(tl[i])
                a('s_add_u32 s76, s87, %d' % (16384 * i))
                tk['ut'] = a.emit('buffer_store_dwordx4 %s, v11, s[56:59], s76 offen sc1' % vr(40 + 4 * i, 4))
        def d_issue():
            a('s_and_b32 s86, s11, 0xfffffffe')
            a('s_lshl_b32 s86, s86, 1')
            a('s_load_dword s86, s[26:27], s86')
        def y_clear():
            srd(a, 64, P_WS, SZ_Y2, WS_Y2)
            for i in range(4): a('v_mov_b32 v%d, -1' % (232 + i))
            for i in range(4):
                tk['yc'] = a.emit('buffer_store_dwordx4 v[232:235], v241, s[64:67], s81 offen offset:%d sc1' % (1024 * i))
        def p_dma():
            srd(a, 60, P_SSMK, SZ_X)
            a('v_bfe_u32 v9, v1, 4, 1')
            a('v_lshlrev_b32 v9, 1, v9')
            a('v_xor_b32 v9, v9, v1')
            a('v_lshlrev_b32 v9, 4, v9')
            a('s_add_u32 m0, s82, 512')
            for i in range(4):
                a('buffer_load_dwordx4 v9, s[60:63], s81 offen offset:%d lds' % (1024 * i))
        def pads():
            for i in range(4): a('v_mov_b32 v%d, 0' % (32 + i))
            a('v_and_b32 v10, 31, v1')
            a('v_lshlrev_b32 v10, 4, v10')
            a('v_add_u32 v10, s82, v10')
            a('ds_write_b128 v10, v[32:35]')
            a('v_and_b32 v10, 3, v1')
            a('v_lshlrev_b32 v10, 4, v10')
            a('v_add_u32 v10, s83, v10')
            a('ds_write_b128 v10, v[32:35]')
        K = cfg.kv_at
        if cfg.early:
            slA = {1: [kv_part(1)], 2: [kv_part(3), n_issue], 3: [ut_srd, ut_store], 5: [flag_after('ut', 's89')], 7: [late_srds]}
        else:
            slA = {K: [kv_loads], K + 2: [kv_part(1)], K + 3: [kv_part(3), n_issue], K + 4: [ut_srd, ut_store], cfg.utf_at: [flag_after('ut', 's89')],
                   7: [late_srds]}
        slA.setdefault(8 if cfg.ungate else 7, [])
        fpoll = lambda: tk.__setitem__('f', poll_issue(a, 240, '0', 243))
        def q_dma():
            poll_wait(a, cfg, tk['f'], 240, '0', 243, sleep=cfg.fsleep)
            a('s_add_u32 m0, s83, 64')
            for i in range(4):
                tk['q'] = a.emit('buffer_load_dwordx4 v241, s[56:59], s81 offen offset:%d sc1 lds' % (1024 * i))
            lds_word(a, 10, 48, 236, 237)
        slA[8] = [p_dma] + ([fpoll] if cfg.ungate else [q_dma])
        if not cfg.ungate:
            if cfg.pollpre8: slA[8].insert(0, fpoll)
            else: slA[7].append(fpoll)
        if not (cfg.cclear or cfg.bclear or cfg.yflag):
            slA.setdefault(cfg.late, []).append(y_clear)
            slA[cfg.late + 2].insert(0, flag_after('yc', 's80'))
        if cfg.kvfirst:
            kv_loads(); slA[0] = []
        prA = {K + 2: [kv_part(0)], K + 3: [kv_part(2)], 5: [n_get, d_fin], 6 + K: [pads]}
        if cfg.early:
            kv_loads()
            prA = {1: [kv_part(0)], 2: [kv_part(2)], 4: [n_get, d_fin], 6: [pads]}
        assert K <= 1
        for i in range(NSTAGE): interval(i, slA, prA)
        if cfg.ungate: q_dma()
        if not cfg.quiet:
            wdl_dma()
            q_loads()
            tail_issue()
        a('s_setprio %d' % cfg.vprio)
        a.wait_vm(tk['q'])
        gen = conv_main(a, cfg, prof)
        if not cfg.quiet:
            for _ in range(cfg.pub_at): next(gen)
            wdl_publish()
        for _ in gen: pass
        if cfg.yflag:
            q_loads()
            a.emit('s_waitcnt vmcnt(5)')
            flag_store(a, 's80')
        else:
            if cfg.quiet:
                q_loads()
                tail_issue()
            tail_check()
        a('s_setprio 0')
        a('s_branch Lfetch')

    if not odd: type_a()

    a.vmq, a.hist = list(saved[0]), list(saved[2])
    stage_tok.clear(); stage_tok.update(saved[1])
    if spf: spf.next = saved[3]
    a.lgq = []
    if not odd: a.label('LtypeB')
    srd(a, 56, P_WD, SZ_W)
    srd(a, 68, P_GW, 1280)
    a('s_mul_i32 s78, s4, 12')
    a('s_add_u32 s78, s78, s5')
    a('s_sub_u32 s78, s78, 20')
    a('s_lshl_b32 s78, s78, 2')
    a('s_add_u32 s78, s78, s10')
    a('s_lshr_b32 s79, s78, 3')
    a('s_and_b32 s78, s78, 7')
    a('s_mul_i32 s89, s78, 48')
    a('s_add_u32 s89, s89, s79')
    a('s_lshl_b32 s89, s89, 2')
    a('s_add_u32 s89, s89, %d' % F_WD)
    a('s_mul_i32 s80, s79, 40960')
    a('s_mul_i32 s77, s78, 160')
    a('s_add_u32 s80, s80, s77')
    a('s_mul_i32 s81, s78, 245760')
    a('s_mul_i32 s77, s79, 5120')
    a('s_add_u32 s81, s81, s77')
    lane_min(a, 240, 12)
    def wd_loads():
        for i in range(5):
            a('v_add_u32 v9, %d, v1' % (64 * i))
            a('v_mul_u32_u24 v10, 6554, v9')
            a('v_lshrrev_b32 v10, 16, v10')
            a('v_mul_u32_u24 v11, 10, v10')
            a('v_sub_u32 v11, v9, v11')
            a('v_mul_u32_u24 v10, 1280, v10')
            a('v_lshl_add_u32 v10, v11, 4, v10')
            a('s_add_u32 m0, s82, %d' % (1024 * i))
            tk['wd'] = a.emit('buffer_load_dwordx4 v10, s[56:59], s80 offen lds')
    def wd_part():
        a('v_lshrrev_b32 v9, 5, v1')
        a('v_lshlrev_b32 v9, 4, v9')
        a('v_bfe_u32 v10, v1, 2, 3')
        a('v_add_u32 v9, v9, v10')
        a('v_mul_u32_u24 v9, 160, v9')
        a('v_and_b32 v10, 3, v1')
        a('v_lshl_add_u32 v9, v10, 3, v9')
        a('v_add_u32 v9, s82, v9')
        srd(a, 60, P_WS, SZ_WD, WS_WD)
        a('s_add_u32 s80, s81, 4096')
        a.wait_vm(tk['wd'])
        for dl in range(5):
            for t in range(2):
                a('ds_read_b64_tr_b16 v[%d:%d], v9 offset:%d' % (32 + 4 * dl + 2 * t, 33 + 4 * dl + 2 * t, t * 1280 + dl * 32))
        a.wait_all_lg()
        for dl in range(4):
            a('buffer_store_dwordx4 %s, v241, s[60:63], s81 offen offset:%d sc1' % (vr(32 + 4 * dl, 4), 1024 * dl))
        tk['wds'] = a.emit('buffer_store_dwordx4 %s, v241, s[60:63], s80 offen sc1' % vr(48, 4))
    GX, GW = 56, 104
    gtk = []
    def g_loads():
        srd(a, 56, P_GW, 1280)
        a('s_sub_u32 s76, s5, 20')
        a('s_lshl_b32 s76, s76, 2')
        a('s_add_u32 s76, s76, s10')
        a('s_cmp_ge_u32 s76, 32')
        a('s_cselect_b32 s86, 0x%x, 0' % FAR)
        a('s_and_b32 s77, s4, 1')
        a('s_lshl_b32 s77, s77, 2')
        a('s_lshr_b32 s78, s76, 3')
        a('s_add_u32 s77, s77, s78')
        a('s_and_b32 s76, s76, 7')
        a('s_lshl_b32 s78, s6, 9')
        a('s_lshl_b32 s79, s77, 3')
        a('s_add_u32 s78, s78, s79')
        a('s_add_u32 s78, s78, s76')
        a('s_mul_i32 s78, s78, 1280')
        a('s_or_b32 s78, s78, s86')
        a('v_lshrrev_b32 v9, 5, v1')
        a('v_and_b32 v10, 31, v1')
        a('v_lshlrev_b32 v11, 4, v10')
        a('s_mov_b32 s79, 81920')
        a('v_mul_lo_u32 v12, v9, s79')
        a('v_add_u32 v12, v12, v11')
        a('v_cmp_gt_u32 vcc, 16, v10')
        a('v_mov_b32 v15, 0x%x' % OOB)
        a('v_cndmask_b32 v13, v15, v12, vcc')
        for i in range(3):
            a('buffer_load_dwordx4 %s, v11, s[56:59], 0 offen offset:%d' % (vr(GW + 4 * i, 4), 512 * i))
        for p in range(4):
            a('buffer_load_dwordx4 %s, v12, s[44:47], s78 offen' % vr(GX + 12 * p, 4))
            a('buffer_load_dwordx4 %s, v12, s[44:47], s78 offen offset:512' % vr(GX + 12 * p + 4, 4))
            gtk.append(a.emit('buffer_load_dwordx4 %s, v13, s[44:47], s78 offen offset:1024' % vr(GX + 12 * p + 8, 4)))
            a('s_add_u32 s78, s78, 163840')
        a('s_lshl_b32 s78, s6, 3')
        a('s_add_u32 s78, s78, s77')
        a('s_lshl_b32 s78, s78, 3')
        a('s_add_u32 s78, s78, s76')
        a('s_lshl_b32 s80, s78, 6')
        a('s_or_b32 s80, s80, s86')
        a('v_lshlrev_b32 v14, 3, v9')
        a('v_cmp_eq_u32 vcc, 31, v10')
        a('v_cndmask_b32 v14, v15, v14, vcc')
    def g_compute():
        for p in range(4):
            a.wait_vm(gtk[p])
            a('v_mov_b32 v%d, 0' % (24 + p))
            for i in range(12):
                a('v_dot2_f32_bf16 v%d, v%d, v%d, v%d' % (24 + p, GX + 12 * p + i, GW + i, 24 + p))
        a('s_nop 2')
        for sh in (1, 2, 4, 8):
            for p in range(4):
                a('v_add_f32_dpp v%d, v%d, v%d row_shr:%d row_mask:0xf bank_mask:0xf bound_ctrl:0' % (24 + p, 24 + p, 24 + p, sh))
        for p in range(4):
            a('v_add_f32_dpp v%d, v%d, v%d row_bcast:15 row_mask:0xa bank_mask:0xf' % (24 + p, 24 + p, 24 + p))
        for p in range(4):
            r = 24 + p
            a('v_cvt_pk_bf16_f32 v%d, v%d, v%d' % (r, r, r))
            a('v_and_b32 v%d, 0xffff0000, v%d' % (r, r))
            a('v_mul_f32 v%d, 0xbfb8aa3b, v%d' % (r, r))
            a('v_exp_f32 v%d, v%d' % (r, r))
            a('v_add_f32 v%d, 1.0, v%d' % (r, r))
            a('v_rcp_f32 v%d, v%d' % (r, r))
            a('v_cvt_pk_bf16_f32 v%d, v%d, v%d' % (r, r, r))
            a('v_and_b32 v%d, 0xffff0000, v%d' % (29 + 2 * p, r))
            a('v_mov_b32 v%d, v%d' % (28 + 2 * p, VN))
            a('buffer_store_dwordx2 v[%d:%d], v14, s[52:55], s80 offen offset:%d sc1' % (28 + 2 * p, 29 + 2 * p, 16 * p))
    def b_clear():
        srd(a, 64, P_WS, SZ_Y2, WS_Y2)
        a('s_sub_u32 s76, s5, 20')
        a('s_lshl_b32 s76, s76, 2')
        a('s_add_u32 s76, s76, s10')
        a('s_lshl_b32 s77, s4, 6')
        a('s_add_u32 s87, s76, s77')
        a('s_lshl_b32 s87, s87, 2')
        a('s_add_u32 s87, s87, %d' % F_YC)
        a('s_mul_i32 s76, s76, 7')
        for i in range(4): a('v_mov_b32 v%d, -1' % (232 + i))
        for i in range(7):
            a('s_add_u32 s77, s76, %d' % i)
            a('s_cmp_ge_u32 s77, 320')
            a('s_cselect_b32 s78, 0x%x, 0' % FAR)
            a('s_lshl_b32 s77, s77, 10')
            a('s_mul_i32 s79, s4, 327680')
            a('s_add_u32 s77, s77, s79')
            a('s_or_b32 s77, s77, s78')
            tk['yc'] = a.emit('buffer_store_dwordx4 v[232:235], v241, s[64:67], s77 offen sc1')
    W = cfg.wd_at
    slB = {}
    for i, f in ((W, wd_loads), (W + 2, wd_part), (1, n_issue), (W + cfg.wdf_d, flag_after('wds', 's89')), (7, late_srds)):
        slB.setdefault(i, []).append(f)
    def wd_touch_issue():
        a('s_and_b32 s76, s4, 1')
        a('s_mul_i32 s79, s76, 768')
        a('s_add_u32 s79, s79, %d' % F_WD)
        a('v_lshlrev_b32 v16, 2, v1')
        a('v_add_u32 v17, 256, v16')
        a('v_add_u32 v18, 512, v16')
        tk['wt'] = [poll_issue(a, 16 + i, 's79', 19 + i) for i in range(3)]
    def wd_touch():
        for i in range(3): poll_wait(a, cfg, tk['wt'][i], 16 + i, 's79', 19 + i)
        a('s_sub_u32 s77, s5, 20')
        a('s_lshl_b32 s77, s77, 2')
        a('s_add_u32 s77, s77, s10')
        a('s_mul_i32 s77, s77, 20480')
        a('s_and_b32 s76, s4, 1')
        a('s_mul_i32 s76, s76, 983040')
        a('s_add_u32 s76, s76, s77')
        a('v_lshlrev_b32 v16, 7, v1')
        a('v_add_u32 v17, 8192, v16')
        a('v_add_u32 v18, 16384, v16')
        a('v_cmp_gt_u32 vcc, 32, v1')
        a('v_mov_b32 v19, 0x%x' % OOB)
        a('v_cndmask_b32 v18, v19, v18, vcc')
        for i in range(3):
            a('buffer_load_dword v252, v%d, s[48:51], s76 offen sc1' % (16 + i))
    fpollB = lambda: tk.__setitem__('f', poll_issue(a, 240, 's88', 243))
    fwaitB = lambda: (poll_wait(a, cfg, tk['f'], 240, 's88', 243), lds_word(a, 10, 48, 236, 237))
    if cfg.ungate: slB[8] = [fpollB]
    elif cfg.pollpre8: slB[8] = [fpollB, g_loads, fwaitB]
    else: slB[7].append(fpollB); slB[8] = [g_loads, fwaitB]
    if cfg.cotouch == 1:
        slB[7].append(wd_touch_issue); slB[8].insert(0, wd_touch)
    if cfg.cotouch >= 2:
        slB[8].insert(0, wd_touch_issue)
    if cfg.cotouch == 3:
        slB[8].remove(g_loads)
    if cfg.bclear:
        slB.setdefault(cfg.clr_at, []).append(b_clear)
        slB.setdefault(max(cfg.clr_at + 2, 3), []).append(flag_after('yc', 's87'))
    for i in range(NSTAGE): interval(i, slB, {3: [n_get]})
    if cfg.ungate:
        fwaitB(); g_loads()
    wdl_dma()
    if cfg.cotouch >= 2: wd_touch()
    if cfg.cotouch == 3: g_loads()
    g_compute()
    q_loads()
    if not cfg.yflag: tail_issue()
    a('s_setprio 0')
    wdl_publish()
    lds_word_wait(a, cfg, 10, 0, 236, 237, 'Ldummy') if False else None
    if not cfg.yflag: tail_check()
    if not odd:
        a('s_branch Lfetch')
        return
    a.pad()
    a.label('Lfetch')
    a.reset_queues()
    a('s_mul_i32 s11, s85, 327680')
    a('s_lshr_b32 s12, s84, 3')
    a('s_lshl_b32 s12, s12, 10')
    a('s_add_u32 s11, s11, s12')
    a('s_and_b32 s12, s84, 7')
    a('s_lshl_b32 s12, s12, 7')
    a('s_add_u32 s11, s11, s12')
    a('s_lshl_b32 s12, s10, 5')
    a('s_add_u32 s11, s11, s12')
    a('v_lshrrev_b32 v24, 1, v1')
    a('v_lshlrev_b32 v24, 12, v24')
    a('v_and_b32 v25, 1, v1')
    a('v_lshl_add_u32 v24, v25, 4, v24')
    a('v_add_u32 v25, 0x20000, v24')
    a('v_add_u32 v26, 0x40000, v24')
    a('v_cmp_gt_u32 vcc, 32, v1')
    a('v_mov_b32 v27, 0x%x' % OOB)
    a('v_cndmask_b32 v26, v27, v26, vcc')
    a('v_lshlrev_b32 v28, 2, v1')
    a('s_add_u32 s12, s83, 3072')
    a('v_add_u32 v28, s12, v28')
    a('v_add_u32 v29, s83, v241')
    a('v_lshlrev_b32 v30, 3, v1')
    a('v_add_u32 v30, s83, v30')
    a('v_add_u32 v31, s82, v241')
    a('s_lshl_b32 s96, s84, 6')
    a('s_lshl_b32 s97, s10, 4')
    a('s_add_u32 s96, s96, s97')
    a('v_and_b32 v33, 15, v1')
    a('v_add_u32 v33, s96, v33')
    a('v_lshlrev_b32 v33, 3, v33')
    lds_word_wait(a, cfg, 10, 64, 236, 237, 'Lgate2', sleep=cfg.gsleep)
    if cfg.yflag:
        tail_issue(); tail_check()
    prof.stamp(6)
    YV = 40
    lo, ok = newlabel('Ly'), newlabel('Ly_ok')
    a('s_mov_b32 s94, %d' % cfg.spin)
    a.label(lo)
    for i in range(3):
        a('buffer_load_dwordx4 %s, v%d, s[64:67], s11 offen sc1' % (vr(YV + 4 * i, 4), 24 + i))
    a('buffer_load_dwordx2 v[34:35], v33, s[52:55], 0 offen sc1')
    a.wait_all_vm()
    a('v_max3_u32 v27, v%d, v%d, v%d' % (YV, YV + 1, YV + 2))
    for i in range(3, 11, 2):
        a('v_max3_u32 v27, v27, v%d, v%d' % (YV + i, YV + i + 1))
    a('v_max_u32 v27, v27, v%d' % (YV + 11))
    a('v_cmp_eq_u32 vcc, -1, v27')
    a('v_cmp_ne_u32 s[96:97], s%d, v34' % NONCE)
    a('s_or_b64 vcc, vcc, s[96:97]')
    a('s_cbranch_scc0 %s' % ok)
    a('s_sleep %d' % cfg.ysleep)
    a('s_sub_u32 s94, s94, 1')
    a('s_cmp_lg_u32 s94, 0')
    a('s_cbranch_scc1 %s' % lo)
    a.label(ok)
    prof.stamp(7)
    a('v_mov_b32 v%d, v35' % GV)
    a('ds_write_b128 v29, %s' % vr(YV, 4))
    a('ds_write_b128 v29, %s offset:1024' % vr(YV + 4, 4))
    a('ds_write_b128 v29, %s offset:2048' % vr(YV + 8, 4))
    a('v_sub_f32 v32, 1.0, v%d' % GV)
    a('v_cvt_pk_bf16_f32 v32, v32, v32')
    a('v_and_b32 v32, 0xffff0000, v32')
    a('ds_write_b32 v28, v32')
    for dl in range(5):
        x = 72 + 4 * dl
        unpack_lo(a, x, QV + 2 * dl); unpack_hi(a, x + 1, QV + 2 * dl); unpack_lo(a, x + 2, QV + 2 * dl + 1); unpack_hi(a, x + 3, QV + 2 * dl + 1)
        for i in range(4): a('v_mul_f32 v%d, v%d, v%d' % (x + i, GV, x + i))
    a.wait_all_lg()
    tl = [a.emit('ds_read_b64_tr_b16 %s, v30 offset:%d' % (vr(56 + 2 * dl, 2), dl * 512)) for dl in range(5)]
    for dl in range(5):
        a.wait_lg(tl[dl])
        x = 72 + 4 * dl; y = 96
        unpack_lo(a, y, 56 + 2 * dl); unpack_hi(a, y + 1, 56 + 2 * dl); unpack_lo(a, y + 2, 57 + 2 * dl); unpack_hi(a, y + 3, 57 + 2 * dl)
        for i in range(4): a('v_mul_f32 v%d, v%d, v%d' % (x + i, x + i, y + i))
        a('ds_write_b128 v31, %s offset:%d' % (vr(x, 4), dl * 1024))
    a.wait_all_lg()
    a('s_barrier')
    prof.stamp(8)
    prof.flush(243)

def generate(cfg):
    if cfg.yflag: cfg.bclear = 0; cfg.cclear = 0
    LOCAL[0] = cfg.local
    a = Asm()
    a.raw('.amdgcn_target "amdgcn-amd-amdhsa--gfx950"')
    a.raw('.text')
    kn = NAME + '_kernel'
    kernel_header(a, kn)
    prof = Prof(a, cfg, 0)
    prof.start()
    a('s_cmp_ge_u32 s2, 256')
    a('s_cbranch_scc1 Ldone')
    load_kernargs(a)
    a('v_lshrrev_b32 v2, 6, v0')
    a('v_and_b32 v1, 63, v0')
    a('v_readfirstlane_b32 s3, v2')
    a('s_and_b32 s4, s2, 7')
    a('s_lshr_b32 s5, s2, 3')
    a('s_lshr_b32 s6, s4, 1')
    a('s_mul_i32 s9, s5, 13108')
    a('s_lshr_b32 s9, s9, 16')
    a('s_mul_i32 s7, s9, 5')
    a('s_sub_u32 s7, s5, s7')
    a('s_and_b32 s8, s4, 1')
    a('s_mul_i32 s10, s8, 5')
    a('s_add_u32 s7, s7, s10')
    a('s_lshl_b32 s10, s8, 1')
    a('s_mul_i32 s8, s6, 6')
    a('s_add_u32 s8, s8, s9')
    a('s_lshl_b32 s11, s6, 2')
    a('s_add_u32 s10, s10, s11')
    a('s_add_u32 s10, s10, s5')
    a('s_sub_u32 s10, s10, 30')
    a('s_cmp_ge_u32 s5, 30')
    a('s_cselect_b32 s8, s10, s8')
    a('s_cselect_b32 s7, 15, s7')
    a('s_cmp_lt_u32 s3, 4')
    a('s_cbranch_scc1 Lcwave')
    h0 = list(a.hist)
    l_wave(a, cfg, prof)
    a.label('Ldone')
    a('s_endpgm')
    a.hist = h0; a.reset_queues()
    a.label('Lcwave')
    c_wave(a, cfg, prof)
    hdr = open('cdna_kernels/%s.s.ref' % NAME).read().split('; Override launch')[0]
    hdr += """; Generated by my own generator script (dev/gen11.py). One fused launch, 256 workgroups x 8 waves, one per CU.
"""
    hdr += '; @launch grid=(256,1,1) block=(512,1,1) lds=%d\n' % LDS
    return hdr + a.text() + kernel_desc(kn, 256)

if __name__ == '__main__':
    cfg = Cfg()
    out = sys.argv[1]
    for kv in sys.argv[2:]:
        k, v = kv.split('=')
        assert hasattr(cfg, k), k
        setattr(cfg, k, int(v))
    open(out, 'w').write(generate(cfg))
```

```python
import sys
from asmlib import *
from gen2 import (NAME, WS_H, SZ_H, WS_WD, SZ_WD, WS_UT, SZ_UT, WS_Y2, SZ_Y2, WS_G, SZ_G, WS_PROF, SZ_X, SZ_W, OOB,
                  P_Q, P_K, P_V, P_SHK, P_SSMK, P_SSMD, P_BX, P_WG, P_WU, P_WD, P_GW, P_OUT, P_DBG, P_WS,
                  load_kernargs, srd, Prof, kernel_header, kernel_desc, unpack_lo, unpack_hi, P2, u32)
import gen8
from gen8 import (newlabel, row_off, conv_setup, conv_main, FAR, QV, GV, SF, NONCE, VZ, VN, flag_store, poll_issue, poll_wait,
                  lane_min, lds_spin)

SZ_G = 16384
WS_F = WS_G + SZ_G
F_UT, F_H, F_WD, F_G, F_YC = 0, 2560, 14848, 16384, 17408
SZ_F = 19968

class Cfg:
    prof = 0
    lstamp = 1
    spin = 200000
    g1prio = 0
    cprio = 2
    lprio = 2
    vprio = 1
    ysleep = 8
    hsleep = 2
    nb = 4
    pub_at = 24
    local = 0
    dstore = 0
    ygate = 3
    late = 5
    kvfirst = 0
    rot2 = 0
    ungate = 0
    na = 4
    clr_at = 0
    gsleep = 6
    cpf = 2
    pre_ack = 2
    ptouch = 0
    utf_at = 5
    wdf_d = 3
    fsleep = 4
    pollpre8 = 1
    alt = 0
    yflag = 0
    grp = 0
    spf = 0
    spfx = 8
    cotouch = 0
    pollat = 99
    quiet = 1
    fin = 1
    areg = 4
    nine = 0
    early = 0
    bclear = 1
    xrot = 1
    kv_at = 0
    wd_at = 1
    cclear = 0
    drop = 0
    lsteps = 0
    c0 = 1

SLOT = 41088
OFF_GATE, OFF_UP = 16384, 16384 + 12320
NSTAGE, NSLOT = 10, 3
PA = NSLOT * SLOT
QA = PA + 4 * 5120
QSZ = 4224
CNT = QA + 4 * QSZ
LDS = CNT + 128
def wblk(i): return [SLOT, SLOT + 5120, 2 * SLOT, 2 * SLOT + 5120, 0, 5120][i]

def wave_common(a):
    srd(a, SF, P_WS, SZ_F, WS_F)
    a('v_cmp_eq_u32 vcc, 0, v1')
    a('v_mov_b32 v%d, 0x%x' % (VZ, OOB))
    a('v_cndmask_b32 v%d, v%d, 0, vcc' % (VZ, VZ))

LOCAL = [0]
def g2_scalars(a, st, dt):
    if not LOCAL[0]: return gen8.g2_scalars(a, st, dt)
    a('s_lshl_b32 s%d, s4, 2' % st)
    a('s_and_b32 s%d, s5, 3' % dt)
    a('s_add_u32 s%d, s%d, s%d' % (st, st, dt))
    a('s_lshr_b32 s%d, s5, 2' % dt)

def rot_off(a, cfg, d):
    if cfg.rot2 == 1:
        a('s_and_b32 s%d, s85, 3' % d)
        a('s_mul_i32 s%d, s%d, 6' % (d, d))
        a('s_and_b32 s96, s84, 7')
        a('s_mul_i32 s96, s96, 3')
        a('s_add_u32 s%d, s%d, s96' % (d, d))
        a('s_lshr_b32 s%d, s%d, 1' % (d, d))
    elif cfg.rot2 == 3:
        a('s_and_b32 s%d, s84, 7' % d)
        a('s_mul_i32 s%d, s%d, 3' % (d, d))
        a('s_lshr_b32 s%d, s%d, 1' % (d, d))
    else:
        a('s_and_b32 s%d, s85, 3' % d)
        a('s_mul_i32 s%d, s%d, 3' % (d, d))
    a('s_cmp_ge_u32 s%d, 12' % d)
    a('s_cselect_b32 s96, 12, 0')
    a('s_sub_u32 s%d, s%d, s96' % (d, d))
def kap(a, d, off, k):
    a('s_add_u32 s%d, s%d, %d' % (d, off, k))
    a('s_cmp_ge_u32 s%d, 12' % d)
    a('s_cselect_b32 s96, 12, 0')
    a('s_sub_u32 s%d, s%d, s96' % (d, d))

def lds_word(a, sw, off, t0, t1):
    a('s_lshl_b32 s96, s%d, 2' % sw)
    a('s_add_u32 s96, s96, %d' % (CNT + off))
    a('v_mov_b32 v%d, s96' % t0)
    a('v_mov_b32 v%d, 1' % t1)
    a('ds_write_b32 v%d, v%d' % (t0, t1))
def lds_word_wait(a, cfg, sw, off, t0, t1, name, sleep=1):
    a('s_lshl_b32 s96, s%d, 2' % sw)
    a('s_add_u32 s96, s96, %d' % (CNT + off))
    a('v_mov_b32 v%d, s96' % t0)
    lds_spin(a, cfg, t0, t1, 96, 'eq', 1, name, sleep)

def c_setup_odd(a):
    a('s_and_b32 s10, s3, 1')
    a('s_lshr_b32 s11, s3, 1')
    a('v_and_b32 v2, 31, v1')
    a('v_lshrrev_b32 v3, 5, v1')
    a('v_lshrrev_b32 v9, 1, v2')
    a('v_and_b32 v9, 7, v9')
    a('v_xor_b32 v9, v9, v3')
    a('v_lshlrev_b32 v9, 4, v9')
    a('v_lshl_add_u32 v9, v2, 7, v9')
    a('s_lshl_b32 s12, s11, 13')
    a('v_add_u32 v4, s12, v9')
    a('v_xor_b32 v5, 32, v4')
    a('v_xor_b32 v6, 64, v4')
    a('v_xor_b32 v7, 96, v4')
    a('v_bfe_u32 v9, v1, 4, 1')
    a('v_mul_u32_u24 v8, 12320, v9')
    a('v_bfe_u32 v9, v1, 2, 2')
    a('v_lshl_add_u32 v9, v3, 3, v9')
    a('v_mul_u32_u24 v9, 192, v9')
    a('v_add_u32 v8, v8, v9')
    a('v_and_b32 v9, 3, v1')
    a('v_lshl_add_u32 v8, v9, 3, v8')
    a('s_mul_i32 s12, s10, 96')
    a('s_add_u32 s12, s12, %d' % OFF_GATE)
    a('v_add_u32 v8, s12, v8')
    a('v_lshrrev_b32 v9, 4, v2')
    a('v_lshlrev_b32 v10, 10, v9')
    a('v_lshl_add_u32 v10, v3, 8, v10')
    a('v_and_b32 v9, 15, v2')
    a('v_lshl_add_u32 v10, v9, 4, v10')
    a('s_lshl_b32 s12, s7, 1')
    a('s_add_u32 s12, s12, s11')
    a('s_mul_i32 s13, s8, 6')
    a('s_mul_i32 s14, s10, 3')
    a('s_add_u32 s13, s13, s14')
    a('s_mul_i32 s79, s12, 96')
    a('s_add_u32 s79, s79, s13')
    a('s_lshl_b32 s79, s79, 2')
    a('s_add_u32 s79, s79, %d' % F_H)
    a('s_mul_i32 s12, s12, 196608')
    for tt in range(3):
        a('s_add_u32 s14, s13, %d' % tt)
        a('s_lshr_b32 s15, s14, 1')
        a('s_lshl_b32 s15, s15, 12')
        a('s_and_b32 s14, s14, 1')
        a('s_lshl_b32 s14, s14, 9')
        a('s_add_u32 s14, s14, s15')
        a('s_add_u32 s%d, s14, s12' % (76 + tt))
    a('v_lshlrev_b32 v249, 2, v1')
    a('v_add_u32 v249, s79, v249')
    a('v_cmp_gt_u32 vcc, 3, v1')
    a('v_mov_b32 v9, 0x%x' % OOB)
    a('v_cndmask_b32 v249, v9, v249, vcc')

def c_setup_main(a):
    a('s_and_b32 s10, s3, 1')
    a('s_lshr_b32 s11, s3, 1')
    a('v_and_b32 v2, 31, v1')
    a('v_lshrrev_b32 v3, 5, v1')
    a('v_lshrrev_b32 v9, 1, v2')
    a('v_and_b32 v9, 7, v9')
    a('v_xor_b32 v9, v9, v3')
    a('v_lshlrev_b32 v9, 4, v9')
    a('v_lshl_add_u32 v9, v2, 7, v9')
    a('s_mul_i32 s12, s11, 12288')
    a('v_add_u32 v4, s12, v9')
    a('v_xor_b32 v5, 32, v4')
    a('v_xor_b32 v6, 64, v4')
    a('v_xor_b32 v7, 96, v4')
    a('v_bfe_u32 v9, v1, 4, 1')
    a('v_bfe_u32 v11, v1, 2, 2')
    a('v_lshl_add_u32 v8, v3, 3, v11')
    a('v_lshlrev_b32 v8, 7, v8')
    a('v_lshl_add_u32 v8, v9, 13, v8')
    a('v_xor_b32 v9, s10, v9')
    a('v_lshl_add_u32 v8, v9, 6, v8')
    a('v_lshrrev_b32 v11, 1, v11')
    a('v_lshl_add_u32 v8, v11, 5, v8')
    a('v_and_b32 v9, 3, v1')
    a('v_lshl_add_u32 v8, v9, 3, v8')
    a('v_add_u32 v8, 24576, v8')
    a('v_xor_b32 v11, 32, v8')
    a('v_lshrrev_b32 v9, 4, v2')
    a('v_lshlrev_b32 v10, 10, v9')
    a('v_lshl_add_u32 v10, v3, 8, v10')
    a('v_and_b32 v9, 15, v2')
    a('v_lshl_add_u32 v10, v9, 4, v10')
    a('s_lshl_b32 s13, s8, 1')
    a('s_add_u32 s13, s13, s10')
    a('v_mov_b32 v249, 0x%x' % OOB)
    for b in range(3):
        a('s_mul_i32 s12, s11, 3')
        a('s_add_u32 s12, s12, %d' % b)
        a('s_and_b32 s14, s12, 1')
        a('s_lshr_b32 s12, s12, 1')
        a('s_mul_i32 s15, s7, 3')
        a('s_add_u32 s12, s12, s15')
        a('s_mul_i32 s15, s12, 96')
        a('s_add_u32 s15, s15, s14')
        a('s_lshl_b32 s79, s13, 1')
        a('s_add_u32 s15, s15, s79')
        a('s_lshl_b32 s15, s15, 2')
        a('s_add_u32 s15, s15, %d' % F_H)
        a('v_writelane_b32 v249, s15, %d' % b)
        a('s_mul_i32 s12, s12, 196608')
        a('s_lshl_b32 s14, s14, 11')
        a('s_add_u32 s12, s12, s14')
        a('s_lshl_b32 s14, s13, 12')
        a('s_add_u32 s%d, s12, s14' % (76 + b))

def c_gemm1(a, cfg, prof, odd):
    ACC = 64
    FB = [16, 40]
    if odd:
        NT_, NBT = 3, 2
        def reads(buf, ks):
            f = FB[buf]
            A = lambda tt: ['ds_read_b64_tr_b16 v[%d:%d], v8 offset:%d' % (f + 4 * tt + 2 * t, f + 4 * tt + 2 * t + 1, ks * 3072 + t * 768 + tt * 32) for t in range(2)]
            B = lambda b: ['ds_read_b128 v[%d:%d], v%d offset:%d' % (f + 12 + 4 * b, f + 15 + 4 * b, 4 + ks, b * 4096)]
            return A(0) + B(0) + B(1) + A(1) + A(2)
        order = [(0, 0, 2), (0, 1, 3), (1, 0, 5), (1, 1, 5), (2, 0, 7), (2, 1, 7)]
        s3_, sn = {1: 3, 2: 2, 3: 2, 4: 1}, {0: 2, 1: 2, 2: 2, 3: 2}
        addr = (4, 5, 6, 7, 8)
        store = lambda tt, b: (76 + tt, b * 2048)
    else:
        NT_, NBT = 2, 3
        def reads(buf, ks):
            f = FB[buf]
            A = lambda tt: ['ds_read_b64_tr_b16 v[%d:%d], v%d offset:%d' % (f + 4 * tt + 2 * t, f + 4 * tt + 2 * t + 1, (8, 11)[tt], ks * 2048 + t * 512) for t in range(2)]
            B = lambda b: ['ds_read_b128 v[%d:%d], v%d offset:%d' % (f + 8 + 4 * b, f + 11 + 4 * b, 4 + ks, b * 4096)]
            return A(0) + B(0) + B(1) + B(2) + A(1)
        order = [(0, 0, 2), (0, 1, 3), (0, 2, 4), (1, 0, 6), (1, 1, 6), (1, 2, 6)]
        s3_, sn = {1: 3, 2: 2, 3: 2}, {0: 2, 1: 2, 2: 2, 3: 1}
        addr = (4, 5, 6, 7, 8, 11)
        store = lambda tt, b: (76 + b, tt * 512)
    def acc(tt, b): return ACC + (tt * NBT + b) * 16
    a('s_setprio %d' % cfg.g1prio)
    a('s_barrier')
    prof.stamp(1); prof.cyc(5)
    toks = [a.emit(r) for r in reads(0, 0)]
    cur = 0
    for st in range(NSTAGE):
        for ks in range(4):
            last = (st == NSTAGE - 1 and ks == 3)
            nxt = None if last else reads(1 - cur, (ks + 1) % 4)
            ntoks = []
            f = FB[cur]
            for mi, (tt, b, need_i) in enumerate(order):
                a.wait_lg(toks[need_i])
                c = '0' if (st == 0 and ks == 0) else vr(acc(tt, b), 16)
                a('v_mfma_f32_32x32x16_bf16 %s, %s, %s, %s' % (vr(acc(tt, b), 16), vr(f + 4 * tt, 4), vr(f + 4 * NT_ + 4 * b, 4), c))
                if nxt is not None:
                    if ks == 3:
                        if mi == 0:
                            skip = cfg.nine and st == NSTAGE - 2
                            if not skip: a.wait_all_lg()
                            d = SLOT if (st + 1) % NSLOT else -(NSLOT - 1) * SLOT
                            for r in addr:
                                a('v_add_u32 v%d, 0x%x, v%d' % (r, u32(d), r))
                            if not skip: a('s_barrier')
                            if st == NSTAGE - 2: a('s_setprio %d' % cfg.cprio)
                        sched = s3_
                    else:
                        sched = sn
                    for _ in range(sched.get(mi, 0)):
                        ntoks.append(a.emit(nxt[len(ntoks)]))
                if st == 9 and cfg.areg:
                    n = ks * 6 + mi - 1
                    if 0 <= n < 5 * cfg.areg:
                        k, dl = n // 5, n % 5
                        if dl == 0: a('s_add_u32 s14, s86, %d' % (5120 * k))
                        b_ = 160 + k * 20 + 4 * dl
                        if dl < 4: a('buffer_load_dwordx4 %s, v240, s[48:51], s14 offen offset:%d sc1' % (vr(b_, 4), 1024 * dl))
                        else: a('buffer_load_dwordx4 %s, v241, s[48:51], s14 offen sc1' % vr(b_, 4))
                if (st, ks, mi) == (6, 1, 5):
                    a('v_mov_b32 v9, %d' % (CNT + 32))
                    a('ds_read_b32 v%d, v9' % VN)
                if (st, ks, mi) == (7, 0, 5) and cfg.cclear and not odd:
                    a.emit('s_waitcnt vmcnt(0)')
                    flag_store(a, 's80')
            toks = ntoks
            cur = 1 - cur
    prof.stamp(2); prof.cyc(6)
    for tt in range(NT_):
        for b in range(NBT):
            x = acc(tt, b)
            o = 16 + (tt * NBT + b) * 4
            for p in range(8):
                a('v_mul_f32 v%d, v%d, v%d' % (x + p, x + p, x + 8 + p))
            for p in range(4):
                a('v_cvt_pk_bf16_f32 v%d, v%d, v%d' % (o + p, x + 2 * p, x + 2 * p + 1))
            a('buffer_store_dwordx4 %s, v10, s[44:47], s%d offen offset:%d sc1' % ((vr(o, 4),) + store(tt, b)))

def c_common(a, cfg):
    g2_scalars(a, 84, 85)
    a('s_mul_i32 s86, s85, 245760')
    a('s_mul_i32 s96, s3, 61440')
    a('s_add_u32 s86, s86, s96')
    a('s_mul_i32 s87, s84, 196608')
    a('s_mul_i32 s96, s3, 49152')
    a('s_add_u32 s87, s87, s96')
    a('s_mul_i32 s88, s3, 10240')
    a('s_mul_i32 s83, s84, 384')
    a('s_mul_i32 s96, s3, 96')
    a('s_add_u32 s83, s83, s96')
    a('s_add_u32 s83, s83, %d' % F_H)
    row_off(a, 244, 245, 84, 85, 3)
    a('v_lshlrev_b32 v240, 4, v1')
    a('v_add_u32 v241, 4096, v240')
    lane_min(a, 246, 24)
    a('v_and_b32 v9, 31, v1')
    a('v_lshlrev_b32 v9, 2, v9')
    a('v_add_u32 v9, %d, v9' % CNT)
    a('v_mov_b32 v12, 0')
    a('ds_write_b32 v9, v12')
    a.emit('s_waitcnt lgkmcnt(0)'); a.lgq = []
    srd(a, 44, P_WS, SZ_H, WS_H)
    srd(a, 48, P_WS, SZ_WD, WS_WD)
    srd(a, 56, P_OUT, SZ_X)
    wave_common(a)
    if cfg.ptouch:
        M2 = 2 << 20
        tl_ = [(P_K, 0), (P_K, M2), (P_V, 0), (P_V, M2), (P_WD, 0), (P_SSMK, 0), (P_SSMK, M2), (P_Q, M2), (P_OUT, 0), (P_OUT, M2), (P_GW, 0), (P_SHK, 0)]
        tl_ += [(P_WS, i * M2 + M2 - 64) for i in range(7)]
        a('s_mov_b32 s64, 0x%x' % M2)
        lab = newlabel('Lpt')
        for w in range(4):
            a('s_cmp_lg_u32 s3, %d' % w)
            a('s_cbranch_scc1 %s_%d' % (lab, w))
            for p, off in tl_[w::4]:
                a('s_mov_b32 s64, 0x%x' % off)
                a('s_load_dword s65, s[%d:%d], s64' % (p, p + 1))
            a.label('%s_%d' % (lab, w))
    if cfg.rot2:
        rot_off(a, cfg, 95)
        for k in range(12): kap(a, 16 + k, 95, k)
    if cfg.spf > 2:
        SPF.X, SPF.WG, SPF.WU = P_Q, P_WG, P_WU
        sp = SPF(a, cfg, 3, 62, 66, 64, 65, 2)
        SPF.X, SPF.WG, SPF.WU = 44, 48, 52
        sp.upto(cfg.spf - 1)
    if cfg.cclear:
        srd(a, 60, P_WS, SZ_Y2, WS_Y2)
        a('s_mul_i32 s80, s4, 20')
        a('s_add_u32 s80, s80, s5')
        a('s_lshl_b32 s80, s80, 2')
        a('s_add_u32 s80, s80, s3')
        a('s_lshl_b32 s81, s80, 12')
        a('s_lshl_b32 s80, s80, 2')
        a('s_add_u32 s80, s80, %d' % F_YC)
        a('s_cmp_ge_u32 s5, 20')
        a('s_cselect_b32 s96, 0x%x, 0' % FAR)
        a('s_or_b32 s80, s80, s96')
        a('s_or_b32 s81, s81, s96')
        for i in range(4): a('v_mov_b32 v%d, -1' % (160 + i))
        for i in range(4):
            a('buffer_store_dwordx4 v[160:163], v240, s[60:63], s81 offen offset:%d sc1' % (1024 * i))

def c_wave(a, cfg, prof):
    h0 = list(a.hist)
    a('s_cmp_ge_u32 s5, 30')
    a('s_cbranch_scc1 LCodd')
    c_setup_main(a)
    c_common(a, cfg)
    c_gemm1(a, cfg, prof, False)
    a('s_branch LCjoin')
    a.hist = h0; a.reset_queues()
    a.label('LCodd')
    c_setup_odd(a)
    c_common(a, cfg)
    c_gemm1(a, cfg, prof, True)
    a.label('LCjoin')
    prof.stamp(3)
    a('v_readfirstlane_b32 s%d, v%d' % (NONCE, VN))
    def h_flag(n_younger):
        a.emit('s_waitcnt vmcnt(%d)' % n_younger)
        if not n_younger: a.vmq = []
        flag_store(a, '0', 249)
        a('s_setprio 0')
        prof.stamp(7); prof.cyc(40)
    a.vmq = []
    if not cfg.pre_ack: h_flag(0)
    NA, NB = cfg.na, cfg.nb
    NL = 6 if cfg.c0 else 4
    L0 = 12 - NL
    LS = cfg.lsteps
    assert not cfg.quiet or LS == 0
    cblocks = ([4, 5] if cfg.c0 else []) + list(range(LS, 4))
    border = cblocks + list(range(LS))
    AB = 240 - 20 * NA; ACC2 = AB - 80 - (8 if NA == 4 else 0); BB = 8
    assert BB + 16 * NB <= ACC2 and not (cfg.areg and NA != 4)
    RD = 160 if NA == 4 else 12
    gtok = {}
    def acc2(dl, sg): return ACC2 + (sg * 5 + dl) * 4
    def wdoff(k):
        if cfg.rot2:
            a('s_mul_i32 s14, s%d, 5120' % (16 + k))
            a('s_add_u32 s14, s14, s86')
        else: a('s_add_u32 s14, s86, %d' % (5120 * k))
    def lbase(off): return ('v4', off) if off < SLOT else ('v7', off - SLOT)
    def issueA(k):
        b = AB + (k % NA) * 20
        if k >= L0:
            i = border[k - L0]
            if i == 0 and LS: lds_word_wait(a, cfg, 3, 16, 5, 6, 'Lwf')
            base, off = lbase(wblk(i))
            for dl in range(5):
                gtok[(k, 'a')] = a.emit('ds_read_b128 %s, %s offset:%d' % (vr(b + 4 * dl, 4), base, off + dl * 1024))
            return
        wdoff(k)
        for dl in range(4):
            a('buffer_load_dwordx4 %s, v240, s[48:51], s14 offen offset:%d sc1' % (vr(b + 4 * dl, 4), 1024 * dl))
        gtok[(k, 'a')] = a.emit('buffer_load_dwordx4 %s, v241, s[48:51], s14 offen sc1' % vr(b + 16, 4))
    def issueB(k):
        b = BB + (k % NB) * 16
        if cfg.rot2:
            a('s_lshl_b32 s15, s%d, 12' % (16 + k))
            a('s_add_u32 s15, s15, s87')
        else: a('s_add_u32 s15, s87, %d' % (4096 * k))
        for sg in range(4):
            gtok[(k, sg)] = a.emit('buffer_load_dwordx4 %s, v240, s[44:47], s15 offen offset:%d sc1' % (vr(b + 4 * sg, 4), 1024 * sg))
    a('v_add_u32 v4, s88, v240')
    a('v_add_u32 v7, %d, v4' % SLOT)
    a('v_mov_b32 v5, %d' % CNT)
    a('v_mov_b32 v6, 1')
    a('v_cmp_eq_u32 vcc, 0, v1')
    a('s_and_saveexec_b64 s[90:91], vcc')
    a('ds_add_u32 v5, v6')
    a('s_mov_b64 exec, s[90:91]')
    lds_spin(a, cfg, 5, 6, 82, 'ge', 4, 'Lcsync')
    lds_word_wait(a, cfg, 3, 48, 5, 6, 'Lwok')
    prof.stamp(31)
    assert not (cfg.areg and (cfg.ungate or cfg.nine or cfg.rot2))
    for k in range(cfg.areg): gtok[(k, 'a')] = -1
    done = [0]
    def tick():
        done[0] += 1
        if done[0] == cfg.pre_ack: h_flag(5 * cfg.pre_ack)
    for k in range(cfg.areg, NA): issueA(k); tick()
    t = None
    for n, i in enumerate(cblocks):
        if n == cfg.pollat: t = poll_issue(a, 246, 's83', 247)
        wdoff(L0 + n)
        a('s_add_u32 m0, s88, %d' % wblk(i))
        for dl in range(4):
            a('buffer_load_dwordx4 v240, s[48:51], s14 offen offset:%d sc1 lds' % (1024 * dl))
        a('s_add_u32 m0, s88, %d' % (wblk(i) + 4096))
        a('buffer_load_dwordx4 v241, s[48:51], s14 offen sc1 lds')
        tick()
    if t is None: t = poll_issue(a, 246, 's83', 247)
    prof.stamp(32)
    if cfg.prof:
        a.wait_vm(t); prof.stamp(33)
    def group_wait(tok, g):
        if cfg.rot2:
            a('s_lshl_b32 s80, s%d, 1' % (16 + 4 * g))
            a('s_lshl_b64 s[80:81], 0xff, s80') if False else None
            a('s_mov_b32 s81, 0xff')
            a('s_lshl_b32 s82, s81, s80')
            a('s_sub_u32 s80, 24, s80')
            a('s_lshr_b32 s81, s81, s80')
            a('s_or_b32 s82, s82, s81')
            a('s_and_b32 s82, s82, 0xffffff')
        else:
            a('s_mov_b32 s82, 0x%x' % (0xff << (8 * g)))
        a.wait_vm(tok)
        lo, ok = newlabel('Lg'), newlabel('Lg_ok')
        a('s_mov_b32 s94, %d' % cfg.spin)
        a.label(lo)
        a('v_cmp_ne_u32 vcc, s%d, v247' % NONCE)
        a('s_nop 0')
        a('s_and_b32 s81, vcc_lo, s82')
        a('s_cbranch_scc0 %s' % ok)
        a('s_sleep %d' % cfg.hsleep)
        poll_issue(a, 246, 's83', 247)
        a.emit('s_waitcnt vmcnt(0)')
        a.vmq.pop()
        a('s_sub_u32 s94, s94, 1')
        a('s_cmp_lg_u32 s94, 0')
        a('s_cbranch_scc1 %s' % lo)
        a.label(ok)
    if cfg.grp:
        assert NB == 4
        group_wait(t, 0)
    else:
        poll_wait(a, cfg, t, 246, 's83', 247, sleep=cfg.hsleep)
    prof.stamp(8); prof.cyc(41)
    if cfg.grp: gp = {1: poll_issue(a, 246, 's83', 247)}
    for k in range(NB): issueB(k)
    def step(k, sgs, after=None):
        ab_, bb_ = AB + (k % NA) * 20, BB + (k % NB) * 16
        if k >= L0: a.wait_lg(gtok[(k, 'a')])
        else: a.wait_vm(gtok[(k, 'a')])
        for n, sg in enumerate(sgs):
            a.wait_vm(gtok[(k, sg)])
            if n == 0: prof.stamp(10 + k)
            for dl in range(5):
                c = '0' if k == 0 else vr(acc2(dl, sg), 4)
                a('v_mfma_f32_16x16x32_bf16 %s, %s, %s, %s' % (vr(acc2(dl, sg), 4), vr(ab_ + 4 * dl, 4), vr(bb_ + 4 * sg, 4), c))
                if after: after(n, dl)
    NK = 11 if cfg.fin else 12
    for k in range(NK):
        step(k, range(4))
        if cfg.grp and k in (0, 4): group_wait(gp[k // 4 + 1], k // 4 + 1)
        if cfg.grp and k == 2: gp[2] = poll_issue(a, 246, 's83', 247)
        if k + NB < 12: issueB(k + NB)
        if k + NA < 12: issueA(k + NA)
        if k == cfg.ygate: lds_word(a, 3, 64, 5, 6)
    def blk(w, sg): return w * 10240 + wblk(sg if sg < w else sg - 1)
    a('v_add_u32 v7, %d, v240' % SLOT)
    a('v_add_u32 v4, %d, v7' % SLOT)
    if not cfg.fin: a('s_nop 7')
    else:
        a.wait_lg(gtok[(11, 'a')])
        a.wait_all_vm()
    for w in range(3):
        a('s_cmp_eq_u32 s3, %d' % (w + 1))
        a('s_cbranch_scc1 Lfin%d' % (w + 1))
    hist0 = [] if cfg.fin else list(a.hist)
    def ab(off): return ('v7', off - SLOT) if off < 2 * SLOT else ('v4', off - 2 * SLOT)
    for w in range(4):
        a.hist = list(hist0); a.vmq = []; a.lgq = []
        a.label('Lfin%d' % w)
        others = [x for x in range(4) if x != w]
        def wr(sg, dl):
            r, o = ab(blk(w, sg) + dl * 1024)
            a('ds_write_b128 %s, %s offset:%d' % (r, vr(acc2(dl, sg), 4), o))
        if cfg.fin:
            pend = []
            def after(n, dl):
                if n < 3: pend.append((others[n], dl))
                if len(pend) > 6 or (n == 3 and pend): wr(*pend.pop(0))
            step(11, others + [w], after=after)
            while pend: wr(*pend.pop(0))
        else:
            for sg in others:
                for dl in range(5): wr(sg, dl)
        prof.stamp(9); prof.cyc(42)
        a('v_add_u32 v5, %d, v240' % (PA + w * 5120))
        a('v_lshlrev_b32 v3, 2, v1')
        a('v_add_u32 v3, %d, v3' % (QA + w * QSZ + 3072))
        a.wait_all_lg()
        a('s_barrier')
        prof.stamp(30)
        tl = {}
        tl['omg'] = a.emit('ds_read_b32 v6, v3')
        for dl in range(5):
            for si, x in enumerate(others):
                r, o = ab(blk(x, w) + dl * 1024)
                tl[(dl, si)] = a.emit('ds_read_b128 %s, %s offset:%d' % (vr(RD + (dl * 4 + si) * 4, 4), r, o))
            tl[(dl, 3)] = a.emit('ds_read_b128 %s, v5 offset:%d' % (vr(RD + (dl * 4 + 3) * 4, 4), dl * 1024))
        for dl in range(5):
            x = acc2(dl, w)
            for si in range(3):
                a.wait_lg(tl[(dl, si)])
                r = RD + (dl * 4 + si) * 4
                a('v_pk_add_f32 %s, %s, %s' % (P2(x), P2(x), P2(r)))
                a('v_pk_add_f32 %s, %s, %s' % (P2(x + 2), P2(x + 2), P2(r + 2)))
            ga = RD + (dl * 4 + 3) * 4
            t = 8 + (dl & 1) * 2 if NA != 4 else 12 + (dl & 1) * 4
            a.wait_lg(tl[(dl, 3)])
            for i in range(4): a('v_fma_f32 v%d, v6, v%d, v%d' % (x + i, x + i, ga + i))
            a('v_cvt_pk_bf16_f32 v%d, v%d, v%d' % (t, x, x + 1))
            a('v_cvt_pk_bf16_f32 v%d, v%d, v%d' % (t + 1, x + 2, x + 3))
            a('buffer_store_dwordx2 %s, v244, s[56:59], 0 offen offset:%d' % (vr(t, 2), dl * 32))
        prof.stamp(4)
        prof.flush(243)
        a('s_endpgm')

class SPF:
    def __init__(self, a, cfg, wv, pw, px, cur, dst, first):
        self.a, self.cfg, self.pw, self.px, self.cur, self.dst, self.next = a, cfg, pw, px, cur, dst, first
        a('s_lshl_b32 s96, s5, 2')
        a('s_add_u32 s96, s96, s%d' % wv)
        a('s_and_b32 s%d, s4, 1' % cur)
        a('s_mul_i32 s%d, s%d, 10' % (cur, cur))
        a('s_mul_i32 s97, s6, 5')
        a('s_add_u32 s%d, s%d, s97' % (cur, cur))
        a('s_lshr_b32 s%d, s%d, 1' % (cur, cur))
        if cfg.xrot == 0: a('s_mov_b32 s%d, 0' % cur)
        a('s_add_u32 s%d, s%d, %d' % (cur, cur, first))
        for _ in range(2):
            a('s_cmp_ge_u32 s%d, 10' % cur)
            a('s_cselect_b32 s97, 10, 0')
            a('s_sub_u32 s%d, s%d, s97' % (cur, cur))
        a('s_bitcmp1_b32 s96, 0')
        a('s_cselect_b32 s%d, s%d, s%d' % (pw, self.WU, self.WG))
        a('s_cselect_b32 s%d, s%d, s%d' % (pw + 1, self.WU + 1, self.WG + 1))
        a('s_lshr_b32 s97, s96, 1')
        a('s_mul_i32 s97, s97, 3072')
        a('s_mul_i32 s%d, s6, 768' % dst)
        a('s_add_u32 s97, s97, s%d' % dst)
        a('s_mul_i32 s%d, s%d, 196608' % (dst, cur))
        a('s_add_u32 s97, s97, s%d' % dst)
        a('s_add_u32 s%d, s%d, s97' % (pw, pw))
        a('s_addc_u32 s%d, s%d, 0' % (pw + 1, pw + 1))
        a('s_lshr_b32 s97, s96, 3')
        a('s_min_u32 s97, s97, 14')
        a('s_and_b32 s%d, s4, 1' % dst)
        a('s_mul_i32 s%d, s%d, 15' % (dst, dst))
        a('s_add_u32 s97, s97, s%d' % dst)
        a('s_and_b32 s96, s96, 7')
        a('s_lshr_b32 s%d, s97, 3' % dst)
        a('s_lshl_b32 s%d, s%d, 9' % (dst, dst))
        a('s_add_u32 s96, s96, s%d' % dst)
        a('s_and_b32 s97, s97, 7')
        a('s_lshl_b32 s97, s97, 3')
        a('s_add_u32 s96, s96, s97')
        a('s_mul_i32 s96, s96, 1280')
        a('s_lshl_b32 s97, s%d, 7' % cur)
        a('s_add_u32 s96, s96, s97')
        a('s_add_u32 s%d, s%d, s96' % (px, self.X))
        a('s_addc_u32 s%d, s%d, 0' % (px + 1, self.X + 1))
    X, WG, WU = 44, 48, 52
    def upto(self, st):
        a = self.a
        while self.next <= min(st, NSTAGE - 1):
            for i in range(6): a('s_load_dword s%d, s[%d:%d], %d' % (self.dst, self.pw, self.pw + 1, 128 * i))
            for i in range(self.cfg.spfx): a('s_load_dword s%d, s[%d:%d], %d' % (self.dst, self.px, self.px + 1, 81920 * i))
            a('s_add_u32 s%d, s%d, 1' % (self.cur, self.cur))
            a('s_cmp_eq_u32 s%d, 10' % self.cur)
            a('s_cselect_b32 s96, %d, 196608' % 0) if False else None
            a('s_cselect_b32 s96, 1966080, 0')
            a('s_cselect_b32 s97, 1280, 0')
            a('s_sub_u32 s%d, s%d, s96' % (self.pw, self.pw)); a('s_subb_u32 s%d, s%d, 0' % (self.pw + 1, self.pw + 1))
            a('s_add_u32 s%d, s%d, 196608' % (self.pw, self.pw)); a('s_addc_u32 s%d, s%d, 0' % (self.pw + 1, self.pw + 1))
            a('s_sub_u32 s%d, s%d, s97' % (self.px, self.px)); a('s_subb_u32 s%d, s%d, 0' % (self.px + 1, self.px + 1))
            a('s_add_u32 s%d, s%d, 128' % (self.px, self.px)); a('s_addc_u32 s%d, s%d, 0' % (self.px + 1, self.px + 1))
            self.next += 1

SX = [28, 29, 30, 31, 7, 8]
class Loader:
    def __init__(self, a, cfg, prof, odd):
        self.a, self.odd, self.tok = a, odd, {}
        if odd:
            a('v_lshrrev_b32 v9, 3, v1')
            a('v_and_b32 v10, 7, v1')
            a('v_lshrrev_b32 v11, 1, v9')
            a('v_xor_b32 v10, v10, v11')
            a('v_lshlrev_b32 v10, 4, v10')
            a('s_mov_b32 s12, 81920')
            a('v_mul_lo_u32 v9, v9, s12')
            a('v_add_u32 v2, v9, v10')
            a('v_xor_b32 v10, 64, v10')
            a('v_add_u32 v3, v9, v10')
            a('v_add_u32 v3, 256, v3')
            a('v_add_u32 v4, 512, v2')
            a('v_add_u32 v5, 512, v3')
            for i in range(3):
                a('v_add_u32 v9, %d, v1' % (64 * i))
                a('v_mul_u32_u24 v10, 5462, v9')
                a('v_lshrrev_b32 v10, 16, v10')
                a('v_mul_u32_u24 v11, 12, v10')
                a('v_sub_u32 v11, v9, v11')
                a('v_mul_u32_u24 v10, 3072, v10')
                a('v_lshl_add_u32 v10, v11, 4, v10')
                a('v_subrev_u32 v%d, %d, v10' % (6 + i, 1024 * i))
            a('s_mov_b32 s12, %d' % (512 * 3 + 16 * 3))
            a('s_lshl_b32 s13, s10, 2')
            a('s_add_u32 s12, s12, s13')
            a('s_mul_i32 s12, s12, 1280')
            a('s_mul_i32 s13, s10, 49152')
            a('s_mul_i32 s14, s8, 192')
            a('s_add_u32 s13, s13, s14')
            a('s_lshl_b32 s14, s10, 12')
            a('s_mul_i32 s15, s10, 3072')
        else:
            a('v_lshrrev_b32 v9, 3, v1')
            a('v_and_b32 v10, 7, v1')
            a('v_lshrrev_b32 v11, 1, v9')
            a('v_xor_b32 v4, v10, v11')
            a('v_lshlrev_b32 v4, 4, v4')
            a('s_mov_b32 s12, 81920')
            a('v_mul_lo_u32 v3, v9, s12')
            a('v_add_u32 v2, v3, v4')
            a('v_xor_b32 v4, 64, v4')
            a('v_add_u32 v3, v3, v4')
            a('v_and_b32 v11, 1, v11')
            a('v_lshlrev_b32 v11, 1, v11')
            a('v_xor_b32 v10, v10, v11')
            a('v_mul_u32_u24 v9, 3072, v9')
            a('v_lshl_add_u32 v4, v10, 4, v9')
            a('v_add_u32 v5, 23552, v4')
            a('v_xor_b32 v6, 64, v4')
            a('v_xor_b32 v7, 64, v5')
            a('s_mul_i32 s12, s10, 6')
            a('s_mul_i32 s13, s7, 3')
            a('v_add_u32 v9, s12, v1')
            a('v_lshrrev_b32 v10, 3, v9')
            a('v_add_u32 v10, s13, v10')
            a('v_and_b32 v9, 7, v9')
            a('v_and_b32 v11, 7, v10')
            a('v_lshl_add_u32 v9, v11, 3, v9')
            a('v_lshrrev_b32 v10, 3, v10')
            a('v_lshl_add_u32 v9, v10, 9, v9')
            a('v_mul_u32_u24 v9, 1280, v9')
            a('v_subrev_u32 v10, 3, v1')
            a('v_min_u32 v10, v10, v1')
            a('v_lshlrev_b32 v10, 10, v10')
            a('v_sub_u32 v8, v9, v10')
            a('s_mul_i32 s13, s10, 49152')
            a('s_lshl_b32 s14, s8, 7')
            a('s_add_u32 s13, s13, s14')
            a('s_mul_i32 s14, s10, 6144')
            a('s_lshl_b32 s15, s10, 11')
        self.rot = cfg.xrot
        self.alt = cfg.alt
        if cfg.alt and not odd:
            a('s_add_u32 s93, s7, s8')
            a('s_and_b32 s93, s93, 1')
        if cfg.xrot:
            a('s_and_b32 s9, s4, 1')
            a('s_mul_i32 s9, s9, 10')
            a('s_mul_i32 s96, s6, 5')
            a('s_add_u32 s9, s9, s96')
            if cfg.xrot == 2:
                a('s_mul_i32 s96, s5, 3')
                a('s_add_u32 s9, s9, s96')
                a('s_and_b32 s9, s9, 31')
            a('s_lshr_b32 s9, s9, 1')
            a('s_cmp_ge_u32 s9, 10')
            a('s_cselect_b32 s96, 10, 0')
            a('s_sub_u32 s9, s9, s96')
            a('s_lshl_b32 s96, s9, 7')
            if odd: a('s_add_u32 s12, s12, s96')
            else:
                a('v_add_u32 v2, s96, v2')
                a('v_add_u32 v3, s96, v3')
            a('s_mul_i32 s96, s9, 196608')
            a('s_add_u32 s13, s13, s96')
        for d, sz in ((44, SZ_X), (48, SZ_W), (52, SZ_W)):
            a('s_mov_b32 s%d, 0x%x' % (d + 2, sz))
            a('s_mov_b32 s%d, 0x00020000' % (d + 3))
        if not odd:
            for i in range(6): a('v_readlane_b32 s%d, v8, %d' % (SX[i], i))
        a.emit('s_waitcnt lgkmcnt(0)')
        prof.stamp(3)
    def issue(self, st):
        a = self.a
        base = (st % NSLOT) * SLOT
        if self.odd:
            a('s_add_u32 m0, s14, %d' % base)
            for i in range(4):
                a('buffer_load_dwordx4 v%d, s[44:47], s12 offen offset:%d lds' % (2 + i, 1024 * i))
            a('s_add_u32 m0, s15, %d' % (base + OFF_GATE))
            for i in range(3):
                a('buffer_load_dwordx4 v%d, s[48:51], s13 offen offset:%d lds' % (6 + i, 1024 * i))
            a('s_add_u32 m0, s15, %d' % (base + OFF_UP))
            for i in range(3):
                t = a.emit('buffer_load_dwordx4 v%d, s[52:55], s13 offen offset:%d lds' % (6 + i, 1024 * i))
            a('s_add_u32 s12, s12, 128')
        else:
            def xpart(order):
                for h in order:
                    a('s_add_u32 m0, s14, %d' % (base + 3072 * h))
                    for i in range(3 * h, 3 * h + 3):
                        t = a.emit('buffer_load_dwordx4 v%d, s[44:47], s%d offen offset:%d lds' % (2 + (i & 1), SX[i], 1024 * (i % 3)))
                return t
            def wpart(order):
                for m in order:
                    a('s_add_u32 m0, s15, %d' % (base + 24576 + 8192 * m))
                    for i in range(2):
                        t = a.emit('buffer_load_dwordx4 v%d, s[%d:%d], s13 offen offset:%d lds' % (4 + 2 * m + i, 48 + 4 * m, 51 + 4 * m, 1024 * i))
                return t
            if self.alt:
                l1, l2 = newlabel('Lalt'), newlabel('Lalt_done')
                a('s_cmp_lg_u32 s93, 0')
                a('s_cbranch_scc1 %s' % l1)
                q0 = list(a.vmq)
                if self.alt == 1: xpart((0, 1)); wpart((0, 1))
                else: xpart((0,)); wpart((0,)); xpart((1,)); wpart((1,))
                a('s_branch %s' % l2)
                a.vmq = q0
                a.label(l1)
                if self.alt == 1: wpart((1, 0)); t = xpart((1, 0))
                else: wpart((1,)); xpart((1,)); wpart((0,)); t = xpart((0,))
                a.label(l2)
            else:
                xpart((0, 1)); t = wpart((0, 1))
            a('v_add_u32 v2, 0x80, v2')
            a('v_add_u32 v3, 0x80, v3')
        a('s_add_u32 s13, s13, 196608')
        if self.rot:
            a('s_add_u32 s9, s9, 1')
            a('s_cmp_eq_u32 s9, 10')
            a('s_cselect_b32 s96, 1280, 0')
            a('s_cselect_b32 s97, 1966080, 0')
            a('s_sub_u32 s13, s13, s97')
            if self.odd: a('s_sub_u32 s12, s12, s96')
            else:
                a('v_subrev_u32 v2, s96, v2')
                a('v_subrev_u32 v3, s96, v3')
        self.tok[st] = t

def l_wave(a, cfg, prof):
    a('s_setprio %d' % cfg.lprio)
    a('s_and_b32 s10, s3, 3')
    h0 = list(a.hist)
    a('s_cmp_ge_u32 s5, 30')
    a('s_cbranch_scc1 LLodd')
    l_body(a, cfg, prof, False)
    a.hist = h0; a.reset_queues()
    a.label('LLodd')
    l_body(a, cfg, prof, True)

def l_body(a, cfg, prof, odd):
    ld = Loader(a, cfg, prof, odd)
    stage_tok = ld.tok
    issue_stage = ld.issue
    issue_stage(0)
    wave_common(a)
    if cfg.drop:
        a('s_mov_b32 s92, 1'); a('v_mov_b32 v250, 1'); a('s_mov_b32 s86, 0')
    if not odd:
        a('s_lshl_b32 s76, s2, 2')
        a('s_add_u32 s76, s76, s10')
        a('s_cmp_lg_u32 s76, 0')
        a('s_cbranch_scc1 Lno_nonce')
        a('s_memrealtime s[76:77]')
        srd(a, 68, P_DBG, 256)
        a.emit('s_waitcnt lgkmcnt(0)')
        a('s_or_b32 s76, s76, 1')
        a('v_mov_b32 v20, s76')
        a('buffer_store_dword v20, v%d, s[68:71], 0 offen sc1' % VZ)
        a.emit('s_waitcnt vmcnt(0)')
        a.vmq.pop()
        a.label('Lno_nonce')
    issue_stage(1)
    assert not cfg.spf
    spf = None
    g2_scalars(a, 84, 85)
    a('s_mul_i32 s82, s10, 5120')
    a('s_add_u32 s82, s82, %d' % PA)
    a('s_mul_i32 s83, s10, %d' % QSZ)
    a('s_add_u32 s83, s83, %d' % QA)
    a('s_mul_i32 s88, s85, 48')
    a('s_mul_i32 s96, s10, 12')
    a('s_add_u32 s88, s88, s96')
    a('s_mul_i32 s0, s88, 5120')
    if cfg.rot2: rot_off(a, cfg, 95)
    else: a('s_mov_b32 s95, 0')
    a('s_lshl_b32 s88, s88, 2')
    a('s_add_u32 s88, s88, %d' % F_WD)
    a('s_mul_i32 s1, s10, 10240')
    a('v_lshlrev_b32 v241, 4, v1')
    a('v_add_u32 v245, 4096, v241')
    if not odd:
        a('s_cmp_ge_u32 s5, 20')
        a('s_cbranch_scc1 LtypeB')
    saved = (list(a.vmq), dict(stage_tok), list(a.hist), spf.next if spf else 0)
    tk = {}
    DROP = {1: ('kv_loads', 'wd_loads'), 2: ('f',), 4: ('ut_store', 'wd_part'), 8: ('y_clear',), 16: ('n_issue', 'n_get', 'd_issue')}
    dn = [n for b, ns in DROP.items() if cfg.drop & b for n in ns]
    class _T(dict):
        def __missing__(self, k): return -1
    tk = _T()
    def interval(i, slices, pre={}):
        slices = {k: [f for f in v if f.__name__ not in dn] for k, v in slices.items()}
        pre = {k: [f for f in v if f.__name__ not in dn] for k, v in pre.items()}
        if cfg.nine and i == 8: a.wait_vm(stage_tok[9])
        a.wait_vm(stage_tok[i])
        if a.lgq: a.wait_all_lg()
        if cfg.lstamp: prof.stamp(10 + i)
        if not (cfg.nine and i == 9): a('s_barrier')
        if cfg.lstamp: prof.stamp(20 + i)
        if spf: spf.upto(i + cfg.spf)
        for f in pre.get(i, []): f()
        if i + NSLOT - 1 < NSTAGE: issue_stage(i + NSLOT - 1)
        for f in slices.get(i, []): f()
    def n_issue():
        a('s_load_dword s%d, s[%d:%d], 0' % (NONCE, P_DBG, P_DBG + 1))
    def n_get():
        lo, ok = newlabel('Ln'), newlabel('Ln_ok')
        a.emit('s_waitcnt lgkmcnt(0)'); a.lgq = []
        a('s_cmp_lg_u32 s%d, 0' % NONCE)
        a('s_cbranch_scc1 %s' % ok)
        a('s_mov_b32 s94, %d' % cfg.spin)
        srd(a, 68, P_DBG, 256)
        a('v_mov_b32 v249, 0')
        a.label(lo)
        a('buffer_load_dword v%d, v249, s[68:71], 0 offen sc1' % VN)
        a.emit('s_waitcnt vmcnt(0)')
        a.vmq.pop()
        a('v_readfirstlane_b32 s%d, v%d' % (NONCE, VN))
        a('s_cmp_lg_u32 s%d, 0' % NONCE)
        a('s_cbranch_scc1 %s' % ok)
        a('s_sleep 8')
        a('s_sub_u32 s94, s94, 1')
        a('s_cmp_lg_u32 s94, 0')
        a('s_cbranch_scc1 %s' % lo)
        a.label(ok)
        a('s_nop 1')
        a('v_mov_b32 v%d, s%d' % (VN, NONCE))
        a('v_mov_b32 v9, %d' % (CNT + 32))
        a('ds_write_b32 v9, v%d' % VN)
    def flag_after(key, sreg):
        def f():
            a.wait_vm(tk[key])
            flag_store(a, sreg)
        return f
    def late_srds():
        srd(a, 48, P_WS, SZ_WD, WS_WD)
        srd(a, 52, P_WS, SZ_G, WS_G)
        srd(a, 64, P_WS, SZ_Y2, WS_Y2)
    def wdl_dma():
        for i in range(cfg.lsteps):
            kap(a, 97, 95, 12 - cfg.lsteps + i)
            a('s_mul_i32 s97, s97, 5120')
            a('s_add_u32 s97, s97, s0')
            a('s_add_u32 m0, s1, %d' % wblk(i))
            for dl in range(4):
                a('buffer_load_dwordx4 v241, s[48:51], s97 offen offset:%d sc1 lds' % (1024 * dl))
            a('s_add_u32 m0, s1, %d' % (wblk(i) + 4096))
            tk['wdl'] = a.emit('buffer_load_dwordx4 v245, s[48:51], s97 offen sc1 lds')
    def wdl_publish():
        if not cfg.lsteps: return
        a.wait_vm(tk['wdl'])
        lds_word(a, 10, 16, 236, 237)
    def q_loads():
        row_off(a, 238, 239, 84, 85, 10)
        for dl in range(5):
            a('buffer_load_dwordx2 %s, v238, s[44:47], 0 offen offset:%d' % (vr(QV + 2 * dl, 2), dl * 32))
    def tail_issue():
        if cfg.bclear:
            a('s_lshl_b32 s89, s85, 8')
            a('s_add_u32 s89, s89, %d' % F_YC)
            lane_min(a, 247, 48)
            tk['y1'] = poll_issue(a, 247, 's89', 239)
            return
        a('s_mul_i32 s89, s85, 320')
        a('s_add_u32 s89, s89, %d' % F_YC)
        a('v_lshlrev_b32 v247, 2, v1')
        lane_min(a, 240, 16)
        a('v_add_u32 v240, 256, v240')
        tk['y1'] = poll_issue(a, 247, 's89', 239)
        tk['y2'] = poll_issue(a, 240, 's89', 243)
    def tail_check():
        if not cfg.bclear: poll_wait(a, cfg, tk['y2'], 240, 's89', 243)
        poll_wait(a, cfg, tk['y1'], 247, 's89', 239)

    def type_a():
        KR, VR_, WR = 32, 60, 76
        srd(a, 56, P_K, SZ_X); srd(a, 60, P_V, SZ_X); srd(a, 64, P_SHK, 5120)
        a('s_cmp_ge_u32 s5, 10')
        a('s_cselect_b32 s76, 1, 0')
        a('s_cselect_b32 s77, 10, 0')
        a('s_sub_u32 s77, s5, s77')
        a('s_lshl_b32 s78, s4, 1')
        a('s_add_u32 s76, s76, s78')
        a('s_lshl_b32 s87, s77, 2')
        a('s_add_u32 s87, s87, s10')
        a('s_lshl_b32 s89, s87, 4')
        a('s_add_u32 s89, s89, s76')
        a('s_lshl_b32 s89, s89, 2')
        a('s_lshl_b32 s87, s87, 16')
        a('s_lshl_b32 s78, s76, 8')
        a('s_add_u32 s87, s87, s78')
        a('s_lshl_b32 s76, s76, 7')
        a('s_lshl_b32 s78, s10, 5')
        a('s_add_u32 s76, s76, s78')
        a('v_lshrrev_b32 v9, 3, v1')
        a('v_and_b32 v10, 7, v1')
        a('s_lshl_b32 s78, s10, 3')
        a('v_add_u32 v22, s78, v9')
        a('v_lshlrev_b32 v11, 1, v10')
        a('v_xor_b32 v22, v22, v11')
        a('v_lshlrev_b32 v22, 3, v22')
        a('v_lshl_add_u32 v22, v10, 11, v22')
        a('v_add_u32 v22, %d, v22' % PA)
        a('v_lshlrev_b32 v9, 2, v9')
        a('v_add_u32 v9, s76, v9')
        a('v_mul_u32_u24 v232, 1280, v9')
        a('v_lshl_add_u32 v232, v10, 4, v232')
        a('s_lshl_b32 s78, s77, 7')
        a('v_add_u32 v232, s78, v232')
        a('v_subrev_u32 v233, 3840, v232')
        a('v_subrev_u32 v234, 2560, v232')
        a('v_subrev_u32 v235, 1280, v232')
        a('s_lshl_b32 s78, s77, 9')
        a('v_lshlrev_b32 v236, 6, v10')
        a('v_add_u32 v236, s78, v236')
        a('s_mul_i32 s11, s4, 20')
        a('s_add_u32 s11, s11, s5')
        a('s_lshl_b32 s11, s11, 2')
        a('s_add_u32 s11, s11, s10')
        a('s_lshl_b32 s81, s11, 12')
        a('s_lshl_b32 s80, s11, 2')
        a('s_add_u32 s80, s80, %d' % F_YC)
        a('s_lshr_b32 s76, s11, 4')
        a('s_lshl_b32 s76, s76, 6')
        a('s_sub_u32 s77, s88, 64')
        a('v_min_u32 v240, %d, v1' % (31 if cfg.bclear else 27))
        a('v_lshlrev_b32 v240, 2, v240')
        a('v_mov_b32 v9, s76')
        a('v_mov_b32 v10, s77')
        if cfg.bclear:
            a('s_lshl_b32 s78, s5, 2')
            a('s_add_u32 s78, s78, s10')
            a('s_lshl_b32 s78, s78, 2')
            a('s_mul_i32 s78, s78, 9363')
            a('s_lshr_b32 s78, s78, 16')
            a('s_lshl_b32 s79, s4, 6')
            a('s_add_u32 s78, s78, s79')
            a('s_lshl_b32 s78, s78, 2')
            a('s_add_u32 s78, s78, %d' % (F_YC - 112))
            a('v_min_u32 v240, 29, v1')
            a('v_lshlrev_b32 v240, 2, v240')
            a('v_mov_b32 v11, s78')
            a('v_cmp_gt_u32 vcc, 28, v1')
            a('v_cndmask_b32 v10, v11, v10, vcc')
        a('v_cmp_gt_u32 vcc, 16, v1')
        a('v_cndmask_b32 v9, v10, v9, vcc')
        a('v_add_u32 v240, v240, v9')
        a('s_and_b32 s86, s11, 0xfffffffe')
        a('s_lshl_b32 s86, s86, 1')
        a('s_load_dword s86, s[26:27], s86')
        a('s_mov_b32 s87, s87')
        class _A:
            def __init__(self): self.l = []
            def __call__(self, t): self.l.append(t)
        rec = _A(); conv_setup(rec, cfg)
        for t in rec.l[:-4]: a(t)
        def d_fin():
            for t in rec.l[-4:]: a(t)
        def kv_loads():
            for i in range(4):
                a('buffer_load_dwordx4 %s, v232, s[56:59], 0 offen offset:%d' % (vr(KR + 12 + 4 * i, 4), 1280 * i))
            for i in range(4):
                a('buffer_load_dwordx4 %s, v232, s[60:63], 0 offen offset:%d' % (vr(VR_ + 4 * i, 4), 1280 * i))
            a('buffer_load_dwordx4 %s, v233, s[56:59], 0 offen' % vr(KR, 4))
            a('buffer_load_dwordx4 %s, v234, s[56:59], 0 offen' % vr(KR + 4, 4))
            a('buffer_load_dwordx4 %s, v235, s[56:59], 0 offen' % vr(KR + 8, 4))
            for i in range(4):
                tk['kv'] = a.emit('buffer_load_dwordx4 %s, v236, s[64:67], 0 offen offset:%d' % (vr(WR + 4 * i, 4), 16 * i))
        def ut_srd(): srd(a, 56, P_WS, SZ_UT, WS_UT)
        def kv_part(cp):
            def f():
                a.wait_vm(tk['kv'])
                U = 92
                for r in range(7):
                    unpack_lo(a, U + 2 * r, KR + 4 * r + cp); unpack_hi(a, U + 2 * r + 1, KR + 4 * r + cp)
                for r in range(4):
                    unpack_lo(a, U + 14 + 2 * r, VR_ + 4 * r + cp); unpack_hi(a, U + 15 + 2 * r, VR_ + 4 * r + cp)
                for h in range(2):
                    unpack_lo(a, U + 22 + h, WR + 4 * cp + 2 * h); unpack_hi(a, U + 24 + h, WR + 4 * cp + 2 * h)
                    unpack_lo(a, U + 26 + h, WR + 4 * cp + 2 * h + 1); unpack_hi(a, U + 28 + h, WR + 4 * cp + 2 * h + 1)
                AC = U + 30
                for i in range(8):
                    a('v_mul_f32 v%d, v%d, v%d' % (AC + i, U + i, U + 28 + (i & 1)))
                for tap in (2, 1, 0):
                    for i in range(8):
                        a('v_fmac_f32 v%d, v%d, v%d' % (AC + i, U + 2 * (3 - tap) + i, U + 22 + 2 * tap + (i & 1)))
                for i in range(8):
                    a('v_mul_f32 v%d, v%d, v%d' % (AC + i, AC + i, U + 14 + i))
                O = 24 + (cp & 1) * 4
                for h in range(2):
                    a('v_cvt_pk_bf16_f32 v%d, v%d, v%d' % (O + 2 * h, AC + h, AC + 2 + h))
                    a('v_cvt_pk_bf16_f32 v%d, v%d, v%d' % (O + 2 * h + 1, AC + 4 + h, AC + 6 + h))
                for h in range(2):
                    a('ds_write_b64 v22, %s offset:%d' % (vr(O + 2 * h, 2), 256 * (2 * cp + h)))
            return f
        def ut_store():
            a('v_lshrrev_b32 v9, 4, v1')
            a('v_and_b32 v10, 15, v1')
            a('v_lshlrev_b32 v11, 12, v9')
            a('v_lshl_add_u32 v11, v10, 4, v11')
            a('s_lshl_b32 s76, s10, 1')
            a('s_lshl_b32 s77, s10, 12')
            a('s_add_u32 s77, s77, %d' % PA)
            for hh in range(2):
                a('s_add_u32 s78, s76, %d' % hh)
                a('v_xor_b32 v12, s78, v10')
                a('v_lshlrev_b32 v12, 4, v12')
                a('v_lshl_add_u32 v12, v9, 8, v12')
                a('v_add_u32 v%d, s77, v12' % (24 + hh))
            tl = [a.emit('ds_read_b128 %s, v%d offset:%d' % (vr(40 + 4 * i, 4), 24 + (i >> 1), 1024 * i)) for i in range(4)]
            for i in range(4):
                a.wait_lg(tl[i])
                a('s_add_u32 s76, s87, %d' % (16384 * i))
                tk['ut'] = a.emit('buffer_store_dwordx4 %s, v11, s[56:59], s76 offen sc1' % vr(40 + 4 * i, 4))
        def d_issue():
            a('s_and_b32 s86, s11, 0xfffffffe')
            a('s_lshl_b32 s86, s86, 1')
            a('s_load_dword s86, s[26:27], s86')
        def y_clear():
            srd(a, 64, P_WS, SZ_Y2, WS_Y2)
            for i in range(4): a('v_mov_b32 v%d, -1' % (232 + i))
            for i in range(4):
                tk['yc'] = a.emit('buffer_store_dwordx4 v[232:235], v241, s[64:67], s81 offen offset:%d sc1' % (1024 * i))
        def p_dma():
            srd(a, 60, P_SSMK, SZ_X)
            a('v_bfe_u32 v9, v1, 4, 1')
            a('v_lshlrev_b32 v9, 1, v9')
            a('v_xor_b32 v9, v9, v1')
            a('v_lshlrev_b32 v9, 4, v9')
            a('s_add_u32 m0, s82, 512')
            for i in range(4):
                a('buffer_load_dwordx4 v9, s[60:63], s81 offen offset:%d lds' % (1024 * i))
        def pads():
            for i in range(4): a('v_mov_b32 v%d, 0' % (32 + i))
            a('v_and_b32 v10, 31, v1')
            a('v_lshlrev_b32 v10, 4, v10')
            a('v_add_u32 v10, s82, v10')
            a('ds_write_b128 v10, v[32:35]')
            a('v_and_b32 v10, 3, v1')
            a('v_lshlrev_b32 v10, 4, v10')
            a('v_add_u32 v10, s83, v10')
            a('ds_write_b128 v10, v[32:35]')
        K = cfg.kv_at
        if cfg.early:
            slA = {1: [kv_part(1)], 2: [kv_part(3), n_issue], 3: [ut_srd, ut_store], 5: [flag_after('ut', 's89')], 7: [late_srds]}
        else:
            slA = {K: [kv_loads], K + 2: [kv_part(1)], K + 3: [kv_part(3), n_issue], K + 4: [ut_srd, ut_store], cfg.utf_at: [flag_after('ut', 's89')],
                   7: [late_srds]}
        slA.setdefault(8 if cfg.ungate else 7, [])
        fpoll = lambda: tk.__setitem__('f', poll_issue(a, 240, '0', 243))
        def q_dma():
            poll_wait(a, cfg, tk['f'], 240, '0', 243, sleep=cfg.fsleep)
            a('s_add_u32 m0, s83, 64')
            for i in range(4):
                tk['q'] = a.emit('buffer_load_dwordx4 v241, s[56:59], s81 offen offset:%d sc1 lds' % (1024 * i))
            lds_word(a, 10, 48, 236, 237)
        slA[8] = [p_dma] + ([fpoll] if cfg.ungate else [q_dma])
        if not cfg.ungate:
            if cfg.pollpre8: slA[8].insert(0, fpoll)
            else: slA[7].append(fpoll)
        if not (cfg.cclear or cfg.bclear or cfg.yflag):
            slA.setdefault(cfg.late, []).append(y_clear)
            slA[cfg.late + 2].insert(0, flag_after('yc', 's80'))
        if cfg.kvfirst:
            kv_loads(); slA[0] = []
        prA = {K + 2: [kv_part(0)], K + 3: [kv_part(2)], 5: [n_get, d_fin], 6 + K: [pads]}
        if cfg.early:
            kv_loads()
            prA = {1: [kv_part(0)], 2: [kv_part(2)], 4: [n_get, d_fin], 6: [pads]}
        assert K <= 1
        for i in range(NSTAGE): interval(i, slA, prA)
        if cfg.ungate: q_dma()
        if not cfg.quiet:
            wdl_dma()
            q_loads()
            tail_issue()
        a('s_setprio %d' % cfg.vprio)
        a.wait_vm(tk['q'])
        gen = conv_main(a, cfg, prof)
        if not cfg.quiet:
            for _ in range(cfg.pub_at): next(gen)
            wdl_publish()
        for _ in gen: pass
        if cfg.yflag:
            q_loads()
            a.emit('s_waitcnt vmcnt(5)')
            flag_store(a, 's80')
        else:
            if cfg.quiet:
                q_loads()
                tail_issue()
            tail_check()
        a('s_setprio 0')
        a('s_branch Lfetch')

    if not odd: type_a()

    a.vmq, a.hist = list(saved[0]), list(saved[2])
    stage_tok.clear(); stage_tok.update(saved[1])
    if spf: spf.next = saved[3]
    a.lgq = []
    if not odd: a.label('LtypeB')
    srd(a, 56, P_WD, SZ_W)
    srd(a, 68, P_GW, 1280)
    a('s_mul_i32 s78, s4, 12')
    a('s_add_u32 s78, s78, s5')
    a('s_sub_u32 s78, s78, 20')
    a('s_lshl_b32 s78, s78, 2')
    a('s_add_u32 s78, s78, s10')
    a('s_lshr_b32 s79, s78, 3')
    a('s_and_b32 s78, s78, 7')
    a('s_mul_i32 s89, s78, 48')
    a('s_add_u32 s89, s89, s79')
    a('s_lshl_b32 s89, s89, 2')
    a('s_add_u32 s89, s89, %d' % F_WD)
    a('s_mul_i32 s80, s79, 40960')
    a('s_mul_i32 s77, s78, 160')
    a('s_add_u32 s80, s80, s77')
    a('s_mul_i32 s81, s78, 245760')
    a('s_mul_i32 s77, s79, 5120')
    a('s_add_u32 s81, s81, s77')
    lane_min(a, 240, 12)
    def wd_loads():
        for i in range(5):
            a('v_add_u32 v9, %d, v1' % (64 * i))
            a('v_mul_u32_u24 v10, 6554, v9')
            a('v_lshrrev_b32 v10, 16, v10')
            a('v_mul_u32_u24 v11, 10, v10')
            a('v_sub_u32 v11, v9, v11')
            a('v_mul_u32_u24 v10, 1280, v10')
            a('v_lshl_add_u32 v10, v11, 4, v10')
            a('s_add_u32 m0, s82, %d' % (1024 * i))
            tk['wd'] = a.emit('buffer_load_dwordx4 v10, s[56:59], s80 offen lds')
    def wd_part():
        a('v_lshrrev_b32 v9, 5, v1')
        a('v_lshlrev_b32 v9, 4, v9')
        a('v_bfe_u32 v10, v1, 2, 3')
        a('v_add_u32 v9, v9, v10')
        a('v_mul_u32_u24 v9, 160, v9')
        a('v_and_b32 v10, 3, v1')
        a('v_lshl_add_u32 v9, v10, 3, v9')
        a('v_add_u32 v9, s82, v9')
        srd(a, 60, P_WS, SZ_WD, WS_WD)
        a('s_add_u32 s80, s81, 4096')
        a.wait_vm(tk['wd'])
        for dl in range(5):
            for t in range(2):
                a('ds_read_b64_tr_b16 v[%d:%d], v9 offset:%d' % (32 + 4 * dl + 2 * t, 33 + 4 * dl + 2 * t, t * 1280 + dl * 32))
        a.wait_all_lg()
        for dl in range(4):
            a('buffer_store_dwordx4 %s, v241, s[60:63], s81 offen offset:%d sc1' % (vr(32 + 4 * dl, 4), 1024 * dl))
        tk['wds'] = a.emit('buffer_store_dwordx4 %s, v241, s[60:63], s80 offen sc1' % vr(48, 4))
    GX, GW = 56, 104
    gtk = []
    def g_loads():
        srd(a, 56, P_GW, 1280)
        a('s_sub_u32 s76, s5, 20')
        a('s_lshl_b32 s76, s76, 2')
        a('s_add_u32 s76, s76, s10')
        a('s_cmp_ge_u32 s76, 32')
        a('s_cselect_b32 s86, 0x%x, 0' % FAR)
        a('s_and_b32 s77, s4, 1')
        a('s_lshl_b32 s77, s77, 2')
        a('s_lshr_b32 s78, s76, 3')
        a('s_add_u32 s77, s77, s78')
        a('s_and_b32 s76, s76, 7')
        a('s_lshl_b32 s78, s6, 9')
        a('s_lshl_b32 s79, s77, 3')
        a('s_add_u32 s78, s78, s79')
        a('s_add_u32 s78, s78, s76')
        a('s_mul_i32 s78, s78, 1280')
        a('s_or_b32 s78, s78, s86')
        a('v_lshrrev_b32 v9, 5, v1')
        a('v_and_b32 v10, 31, v1')
        a('v_lshlrev_b32 v11, 4, v10')
        a('s_mov_b32 s79, 81920')
        a('v_mul_lo_u32 v12, v9, s79')
        a('v_add_u32 v12, v12, v11')
        a('v_cmp_gt_u32 vcc, 16, v10')
        a('v_mov_b32 v15, 0x%x' % OOB)
        a('v_cndmask_b32 v13, v15, v12, vcc')
        for i in range(3):
            a('buffer_load_dwordx4 %s, v11, s[56:59], 0 offen offset:%d' % (vr(GW + 4 * i, 4), 512 * i))
        for p in range(4):
            a('buffer_load_dwordx4 %s, v12, s[44:47], s78 offen' % vr(GX + 12 * p, 4))
            a('buffer_load_dwordx4 %s, v12, s[44:47], s78 offen offset:512' % vr(GX + 12 * p + 4, 4))
            gtk.append(a.emit('buffer_load_dwordx4 %s, v13, s[44:47], s78 offen offset:1024' % vr(GX + 12 * p + 8, 4)))
            a('s_add_u32 s78, s78, 163840')
        a('s_lshl_b32 s78, s6, 3')
        a('s_add_u32 s78, s78, s77')
        a('s_lshl_b32 s78, s78, 3')
        a('s_add_u32 s78, s78, s76')
        a('s_lshl_b32 s80, s78, 6')
        a('s_or_b32 s80, s80, s86')
        a('v_lshlrev_b32 v14, 3, v9')
        a('v_cmp_eq_u32 vcc, 31, v10')
        a('v_cndmask_b32 v14, v15, v14, vcc')
    def g_compute():
        for p in range(4):
            a.wait_vm(gtk[p])
            a('v_mov_b32 v%d, 0' % (24 + p))
            for i in range(12):
                a('v_dot2_f32_bf16 v%d, v%d, v%d, v%d' % (24 + p, GX + 12 * p + i, GW + i, 24 + p))
        a('s_nop 2')
        for sh in (1, 2, 4, 8):
            for p in range(4):
                a('v_add_f32_dpp v%d, v%d, v%d row_shr:%d row_mask:0xf bank_mask:0xf bound_ctrl:0' % (24 + p, 24 + p, 24 + p, sh))
        for p in range(4):
            a('v_add_f32_dpp v%d, v%d, v%d row_bcast:15 row_mask:0xa bank_mask:0xf' % (24 + p, 24 + p, 24 + p))
        for p in range(4):
            r = 24 + p
            a('v_cvt_pk_bf16_f32 v%d, v%d, v%d' % (r, r, r))
            a('v_and_b32 v%d, 0xffff0000, v%d' % (r, r))
            a('v_mul_f32 v%d, 0xbfb8aa3b, v%d' % (r, r))
            a('v_exp_f32 v%d, v%d' % (r, r))
            a('v_add_f32 v%d, 1.0, v%d' % (r, r))
            a('v_rcp_f32 v%d, v%d' % (r, r))
            a('v_cvt_pk_bf16_f32 v%d, v%d, v%d' % (r, r, r))
            a('v_and_b32 v%d, 0xffff0000, v%d' % (29 + 2 * p, r))
            a('v_mov_b32 v%d, v%d' % (28 + 2 * p, VN))
            a('buffer_store_dwordx2 v[%d:%d], v14, s[52:55], s80 offen offset:%d sc1' % (28 + 2 * p, 29 + 2 * p, 16 * p))
    def b_clear():
        srd(a, 64, P_WS, SZ_Y2, WS_Y2)
        a('s_sub_u32 s76, s5, 20')
        a('s_lshl_b32 s76, s76, 2')
        a('s_add_u32 s76, s76, s10')
        a('s_lshl_b32 s77, s4, 6')
        a('s_add_u32 s87, s76, s77')
        a('s_lshl_b32 s87, s87, 2')
        a('s_add_u32 s87, s87, %d' % F_YC)
        a('s_mul_i32 s76, s76, 7')
        for i in range(4): a('v_mov_b32 v%d, -1' % (232 + i))
        for i in range(7):
            a('s_add_u32 s77, s76, %d' % i)
            a('s_cmp_ge_u32 s77, 320')
            a('s_cselect_b32 s78, 0x%x, 0' % FAR)
            a('s_lshl_b32 s77, s77, 10')
            a('s_mul_i32 s79, s4, 327680')
            a('s_add_u32 s77, s77, s79')
            a('s_or_b32 s77, s77, s78')
            tk['yc'] = a.emit('buffer_store_dwordx4 v[232:235], v241, s[64:67], s77 offen sc1')
    W = cfg.wd_at
    slB = {}
    for i, f in ((W, wd_loads), (W + 2, wd_part), (1, n_issue), (W + cfg.wdf_d, flag_after('wds', 's89')), (7, late_srds)):
        slB.setdefault(i, []).append(f)
    def wd_touch_issue():
        a('s_and_b32 s76, s4, 1')
        a('s_mul_i32 s79, s76, 768')
        a('s_add_u32 s79, s79, %d' % F_WD)
        a('v_lshlrev_b32 v16, 2, v1')
        a('v_add_u32 v17, 256, v16')
        a('v_add_u32 v18, 512, v16')
        tk['wt'] = [poll_issue(a, 16 + i, 's79', 19 + i) for i in range(3)]
    def wd_touch():
        for i in range(3): poll_wait(a, cfg, tk['wt'][i], 16 + i, 's79', 19 + i)
        a('s_sub_u32 s77, s5, 20')
        a('s_lshl_b32 s77, s77, 2')
        a('s_add_u32 s77, s77, s10')
        a('s_mul_i32 s77, s77, 20480')
        a('s_and_b32 s76, s4, 1')
        a('s_mul_i32 s76, s76, 983040')
        a('s_add_u32 s76, s76, s77')
        a('v_lshlrev_b32 v16, 7, v1')
        a('v_add_u32 v17, 8192, v16')
        a('v_add_u32 v18, 16384, v16')
        a('v_cmp_gt_u32 vcc, 32, v1')
        a('v_mov_b32 v19, 0x%x' % OOB)
        a('v_cndmask_b32 v18, v19, v18, vcc')
        for i in range(3):
            a('buffer_load_dword v252, v%d, s[48:51], s76 offen sc1' % (16 + i))
    fpollB = lambda: tk.__setitem__('f', poll_issue(a, 240, 's88', 243))
    fwaitB = lambda: (poll_wait(a, cfg, tk['f'], 240, 's88', 243), lds_word(a, 10, 48, 236, 237))
    if cfg.ungate: slB[8] = [fpollB]
    elif cfg.pollpre8: slB[8] = [fpollB, g_loads, fwaitB]
    else: slB[7].append(fpollB); slB[8] = [g_loads, fwaitB]
    if cfg.cotouch == 1:
        slB[7].append(wd_touch_issue); slB[8].insert(0, wd_touch)
    if cfg.cotouch >= 2:
        slB[8].insert(0, wd_touch_issue)
    if cfg.cotouch == 3:
        slB[8].remove(g_loads)
    if cfg.bclear:
        slB.setdefault(cfg.clr_at, []).append(b_clear)
        slB.setdefault(max(cfg.clr_at + 2, 3), []).append(flag_after('yc', 's87'))
    for i in range(NSTAGE): interval(i, slB, {3: [n_get]})
    if cfg.ungate:
        fwaitB(); g_loads()
    wdl_dma()
    if cfg.cotouch >= 2: wd_touch()
    if cfg.cotouch == 3: g_loads()
    g_compute()
    q_loads()
    if not cfg.yflag: tail_issue()
    a('s_setprio 0')
    wdl_publish()
    lds_word_wait(a, cfg, 10, 0, 236, 237, 'Ldummy') if False else None
    if not cfg.yflag: tail_check()
    if not odd:
        a('s_branch Lfetch')
        return
    a.pad()
    a.label('Lfetch')
    a.reset_queues()
    a('s_mul_i32 s11, s85, 327680')
    a('s_lshr_b32 s12, s84, 3')
    a('s_lshl_b32 s12, s12, 10')
    a('s_add_u32 s11, s11, s12')
    a('s_and_b32 s12, s84, 7')
    a('s_lshl_b32 s12, s12, 7')
    a('s_add_u32 s11, s11, s12')
    a('s_lshl_b32 s12, s10, 5')
    a('s_add_u32 s11, s11, s12')
    a('v_lshrrev_b32 v24, 1, v1')
    a('v_lshlrev_b32 v24, 12, v24')
    a('v_and_b32 v25, 1, v1')
    a('v_lshl_add_u32 v24, v25, 4, v24')
    a('v_add_u32 v25, 0x20000, v24')
    a('v_add_u32 v26, 0x40000, v24')
    a('v_cmp_gt_u32 vcc, 32, v1')
    a('v_mov_b32 v27, 0x%x' % OOB)
    a('v_cndmask_b32 v26, v27, v26, vcc')
    a('v_lshlrev_b32 v28, 2, v1')
    a('s_add_u32 s12, s83, 3072')
    a('v_add_u32 v28, s12, v28')
    a('v_add_u32 v29, s83, v241')
    a('v_lshlrev_b32 v30, 3, v1')
    a('v_add_u32 v30, s83, v30')
    a('v_add_u32 v31, s82, v241')
    a('s_lshl_b32 s96, s84, 6')
    a('s_lshl_b32 s97, s10, 4')
    a('s_add_u32 s96, s96, s97')
    a('v_and_b32 v33, 15, v1')
    a('v_add_u32 v33, s96, v33')
    a('v_lshlrev_b32 v33, 3, v33')
    lds_word_wait(a, cfg, 10, 64, 236, 237, 'Lgate2', sleep=cfg.gsleep)
    if cfg.yflag:
        tail_issue(); tail_check()
    prof.stamp(6)
    YV = 40
    lo, ok = newlabel('Ly'), newlabel('Ly_ok')
    a('s_mov_b32 s94, %d' % cfg.spin)
    a.label(lo)
    for i in range(3):
        a('buffer_load_dwordx4 %s, v%d, s[64:67], s11 offen sc1' % (vr(YV + 4 * i, 4), 24 + i))
    a('buffer_load_dwordx2 v[34:35], v33, s[52:55], 0 offen sc1')
    a.wait_all_vm()
    a('v_max3_u32 v27, v%d, v%d, v%d' % (YV, YV + 1, YV + 2))
    for i in range(3, 11, 2):
        a('v_max3_u32 v27, v27, v%d, v%d' % (YV + i, YV + i + 1))
    a('v_max_u32 v27, v27, v%d' % (YV + 11))
    a('v_cmp_eq_u32 vcc, -1, v27')
    a('v_cmp_ne_u32 s[96:97], s%d, v34' % NONCE)
    a('s_or_b64 vcc, vcc, s[96:97]')
    a('s_cbranch_scc0 %s' % ok)
    a('s_sleep %d' % cfg.ysleep)
    a('s_sub_u32 s94, s94, 1')
    a('s_cmp_lg_u32 s94, 0')
    a('s_cbranch_scc1 %s' % lo)
    a.label(ok)
    prof.stamp(7)
    a('v_mov_b32 v%d, v35' % GV)
    a('ds_write_b128 v29, %s' % vr(YV, 4))
    a('ds_write_b128 v29, %s offset:1024' % vr(YV + 4, 4))
    a('ds_write_b128 v29, %s offset:2048' % vr(YV + 8, 4))
    a('v_sub_f32 v32, 1.0, v%d' % GV)
    a('v_cvt_pk_bf16_f32 v32, v32, v32')
    a('v_and_b32 v32, 0xffff0000, v32')
    a('ds_write_b32 v28, v32')
    for dl in range(5):
        x = 72 + 4 * dl
        unpack_lo(a, x, QV + 2 * dl); unpack_hi(a, x + 1, QV + 2 * dl); unpack_lo(a, x + 2, QV + 2 * dl + 1); unpack_hi(a, x + 3, QV + 2 * dl + 1)
        for i in range(4): a('v_mul_f32 v%d, v%d, v%d' % (x + i, GV, x + i))
    a.wait_all_lg()
    tl = [a.emit('ds_read_b64_tr_b16 %s, v30 offset:%d' % (vr(56 + 2 * dl, 2), dl * 512)) for dl in range(5)]
    for dl in range(5):
        a.wait_lg(tl[dl])
        x = 72 + 4 * dl; y = 96
        unpack_lo(a, y, 56 + 2 * dl); unpack_hi(a, y + 1, 56 + 2 * dl); unpack_lo(a, y + 2, 57 + 2 * dl); unpack_hi(a, y + 3, 57 + 2 * dl)
        for i in range(4): a('v_mul_f32 v%d, v%d, v%d' % (x + i, x + i, y + i))
        a('ds_write_b128 v31, %s offset:%d' % (vr(x, 4), dl * 1024))
    a.wait_all_lg()
    a('s_barrier')
    prof.stamp(8)
    prof.flush(243)

def generate(cfg):
    if cfg.yflag: cfg.bclear = 0; cfg.cclear = 0
    LOCAL[0] = cfg.local
    a = Asm()
    a.raw('.amdgcn_target "amdgcn-amd-amdhsa--gfx950"')
    a.raw('.text')
    kn = NAME + '_kernel'
    kernel_header(a, kn)
    prof = Prof(a, cfg, 0)
    prof.start()
    a('s_cmp_ge_u32 s2, 256')
    a('s_cbranch_scc1 Ldone')
    a('s_load_dwordx2 s[44:45], s[0:1], 0')
    a('s_load_dwordx2 s[48:49], s[0:1], 56')
    a('s_load_dwordx2 s[52:53], s[0:1], 64')
    a('s_load_dwordx8 s[16:23], s[0:1], 0')
    a('s_load_dwordx4 s[24:27], s[0:1], 32')
    a('s_load_dwordx8 s[32:39], s[0:1], 64')
    a('s_load_dwordx4 s[40:43], s[0:1], 96')
    if cfg.cpf:
        a('s_getpc_b64 s[60:61]')
        a.label('Lpc')
        a('s_sub_u32 s60, s60, (Lpc - %s)' % kn)
        a('s_subb_u32 s61, s61, 0')
        a('s_mov_b32 s62, CODE_END - %s' % kn)
        a('s_mov_b32 s63, 0x00020000')
        a('v_lshrrev_b32 v253, 6, v0')
        a('s_and_b32 s59, s2, 0xf8')
        a('v_add_u32 v253, s59, v253')
        a('v_mul_u32_u24 v253, %d, v253' % cfg.cpf)
        a('v_and_b32 v254, 63, v0')
        a('v_add_u32 v253, v253, v254')
        a('v_lshlrev_b32 v253, 7, v253')
        a('v_cmp_gt_u32 vcc, %d, v254' % cfg.cpf)
        a('v_mov_b32 v254, 0x%x' % OOB)
        a('v_cndmask_b32 v253, v254, v253, vcc')
        a('buffer_load_dword v254, v253, s[60:63], 0 offen')
        a.vmq.pop()
    a('v_lshrrev_b32 v2, 6, v0')
    a('v_and_b32 v1, 63, v0')
    a('v_readfirstlane_b32 s3, v2')
    a('s_and_b32 s4, s2, 7')
    a('s_lshr_b32 s5, s2, 3')
    a('s_lshr_b32 s6, s4, 1')
    a('s_mul_i32 s9, s5, 13108')
    a('s_lshr_b32 s9, s9, 16')
    a('s_mul_i32 s7, s9, 5')
    a('s_sub_u32 s7, s5, s7')
    a('s_and_b32 s8, s4, 1')
    a('s_mul_i32 s10, s8, 5')
    a('s_add_u32 s7, s7, s10')
    a('s_lshl_b32 s10, s8, 1')
    a('s_mul_i32 s8, s6, 6')
    a('s_add_u32 s8, s8, s9')
    a('s_lshl_b32 s11, s6, 2')
    a('s_add_u32 s10, s10, s11')
    a('s_add_u32 s10, s10, s5')
    a('s_sub_u32 s10, s10, 30')
    a('s_cmp_ge_u32 s5, 30')
    a('s_cselect_b32 s8, s10, s8')
    a('s_cselect_b32 s7, 15, s7')
    a('s_cmp_lt_u32 s3, 4')
    a('s_cbranch_scc1 Lcwave')
    h0 = list(a.hist)
    l_wave(a, cfg, prof)
    a.label('Ldone')
    a('s_endpgm')
    a.hist = h0; a.reset_queues()
    a.label('Lcwave')
    c_wave(a, cfg, prof)
    a.raw('CODE_END:')
    hdr = open('cdna_kernels/%s.s.ref' % NAME).read().split('; Override launch')[0]
    hdr += """; Generated by my own generator script (dev/gen11.py). One fused launch, 256 workgroups x 8 waves, one per CU.
"""
    hdr += '; @launch grid=(256,1,1) block=(512,1,1) lds=%d\n' % LDS
    return hdr + a.text() + kernel_desc(kn, 256)

if __name__ == '__main__':
    cfg = Cfg()
    out = sys.argv[1]
    for kv in sys.argv[2:]:
        k, v = kv.split('=')
        assert hasattr(cfg, k), k
        setattr(cfg, k, int(v))
    open(out, 'w').write(generate(cfg))
```

```python
import sys
from asmlib import *
from gen2 import (NAME, WS_H, SZ_H, WS_WD, SZ_WD, WS_UT, SZ_UT, WS_Y2, SZ_Y2, WS_G, SZ_G, WS_PROF, SZ_X, SZ_W, OOB,
                  P_Q, P_K, P_V, P_SHK, P_SSMK, P_SSMD, P_BX, P_WG, P_WU, P_WD, P_GW, P_OUT, P_DBG, P_WS,
                  load_kernargs, srd, Prof, kernel_header, kernel_desc, unpack_lo, unpack_hi, P2, u32)
import gen8
from gen8 import (newlabel, row_off, conv_setup, conv_main, FAR, QV, GV, SF, NONCE, VZ, VN, flag_store, poll_issue, poll_wait,
                  lane_min, lds_spin)

SZ_G = 16384
WS_F = WS_G + SZ_G
F_UT, F_H, F_WD, F_G, F_YC = 0, 2560, 14848, 16384, 17408
SZ_F = 19968

class Cfg:
    prof = 0
    lstamp = 1
    spin = 200000
    g1prio = 0
    cprio = 2
    lprio = 2
    vprio = 1
    ysleep = 8
    hsleep = 2
    nb = 4
    pub_at = 24
    local = 0
    dstore = 0
    ygate = 3
    late = 5
    kvfirst = 0
    rot2 = 0
    ungate = 0
    na = 4
    clr_at = 0
    gsleep = 6
    loop1 = 0
    cpf = 2
    pre_ack = 2
    ptouch = 0
    utf_at = 5
    wdf_d = 3
    fsleep = 4
    pollpre8 = 1
    alt = 0
    yflag = 0
    grp = 0
    spf = 0
    spfx = 8
    cotouch = 0
    pollat = 99
    quiet = 1
    fin = 1
    areg = 4
    nine = 0
    early = 0
    bclear = 1
    xrot = 1
    kv_at = 0
    wd_at = 1
    cclear = 0
    drop = 0
    lsteps = 0
    c0 = 1

SLOT = 41088
OFF_GATE, OFF_UP = 16384, 16384 + 12320
NSTAGE, NSLOT = 10, 3
PA = NSLOT * SLOT
QA = PA + 4 * 5120
QSZ = 4224
CNT = QA + 4 * QSZ
LDS = CNT + 128
def wblk(i): return [SLOT, SLOT + 5120, 2 * SLOT, 2 * SLOT + 5120, 0, 5120][i]

def wave_common(a):
    srd(a, SF, P_WS, SZ_F, WS_F)
    a('v_cmp_eq_u32 vcc, 0, v1')
    a('v_mov_b32 v%d, 0x%x' % (VZ, OOB))
    a('v_cndmask_b32 v%d, v%d, 0, vcc' % (VZ, VZ))

LOCAL = [0]
def g2_scalars(a, st, dt):
    if not LOCAL[0]: return gen8.g2_scalars(a, st, dt)
    a('s_lshl_b32 s%d, s4, 2' % st)
    a('s_and_b32 s%d, s5, 3' % dt)
    a('s_add_u32 s%d, s%d, s%d' % (st, st, dt))
    a('s_lshr_b32 s%d, s5, 2' % dt)

def rot_off(a, cfg, d):
    if cfg.rot2 == 1:
        a('s_and_b32 s%d, s85, 3' % d)
        a('s_mul_i32 s%d, s%d, 6' % (d, d))
        a('s_and_b32 s96, s84, 7')
        a('s_mul_i32 s96, s96, 3')
        a('s_add_u32 s%d, s%d, s96' % (d, d))
        a('s_lshr_b32 s%d, s%d, 1' % (d, d))
    elif cfg.rot2 == 3:
        a('s_and_b32 s%d, s84, 7' % d)
        a('s_mul_i32 s%d, s%d, 3' % (d, d))
        a('s_lshr_b32 s%d, s%d, 1' % (d, d))
    else:
        a('s_and_b32 s%d, s85, 3' % d)
        a('s_mul_i32 s%d, s%d, 3' % (d, d))
    a('s_cmp_ge_u32 s%d, 12' % d)
    a('s_cselect_b32 s96, 12, 0')
    a('s_sub_u32 s%d, s%d, s96' % (d, d))
def kap(a, d, off, k):
    a('s_add_u32 s%d, s%d, %d' % (d, off, k))
    a('s_cmp_ge_u32 s%d, 12' % d)
    a('s_cselect_b32 s96, 12, 0')
    a('s_sub_u32 s%d, s%d, s96' % (d, d))

def lds_word(a, sw, off, t0, t1):
    a('s_lshl_b32 s96, s%d, 2' % sw)
    a('s_add_u32 s96, s96, %d' % (CNT + off))
    a('v_mov_b32 v%d, s96' % t0)
    a('v_mov_b32 v%d, 1' % t1)
    a('ds_write_b32 v%d, v%d' % (t0, t1))
def lds_word_wait(a, cfg, sw, off, t0, t1, name, sleep=1):
    a('s_lshl_b32 s96, s%d, 2' % sw)
    a('s_add_u32 s96, s96, %d' % (CNT + off))
    a('v_mov_b32 v%d, s96' % t0)
    lds_spin(a, cfg, t0, t1, 96, 'eq', 1, name, sleep)

def c_setup_odd(a):
    a('s_and_b32 s10, s3, 1')
    a('s_lshr_b32 s11, s3, 1')
    a('v_and_b32 v2, 31, v1')
    a('v_lshrrev_b32 v3, 5, v1')
    a('v_lshrrev_b32 v9, 1, v2')
    a('v_and_b32 v9, 7, v9')
    a('v_xor_b32 v9, v9, v3')
    a('v_lshlrev_b32 v9, 4, v9')
    a('v_lshl_add_u32 v9, v2, 7, v9')
    a('s_lshl_b32 s12, s11, 13')
    a('v_add_u32 v4, s12, v9')
    a('v_xor_b32 v5, 32, v4')
    a('v_xor_b32 v6, 64, v4')
    a('v_xor_b32 v7, 96, v4')
    a('v_bfe_u32 v9, v1, 4, 1')
    a('v_mul_u32_u24 v8, 12320, v9')
    a('v_bfe_u32 v9, v1, 2, 2')
    a('v_lshl_add_u32 v9, v3, 3, v9')
    a('v_mul_u32_u24 v9, 192, v9')
    a('v_add_u32 v8, v8, v9')
    a('v_and_b32 v9, 3, v1')
    a('v_lshl_add_u32 v8, v9, 3, v8')
    a('s_mul_i32 s12, s10, 96')
    a('s_add_u32 s12, s12, %d' % OFF_GATE)
    a('v_add_u32 v8, s12, v8')
    a('v_lshrrev_b32 v9, 4, v2')
    a('v_lshlrev_b32 v10, 10, v9')
    a('v_lshl_add_u32 v10, v3, 8, v10')
    a('v_and_b32 v9, 15, v2')
    a('v_lshl_add_u32 v10, v9, 4, v10')
    a('s_lshl_b32 s12, s7, 1')
    a('s_add_u32 s12, s12, s11')
    a('s_mul_i32 s13, s8, 6')
    a('s_mul_i32 s14, s10, 3')
    a('s_add_u32 s13, s13, s14')
    a('s_mul_i32 s79, s12, 96')
    a('s_add_u32 s79, s79, s13')
    a('s_lshl_b32 s79, s79, 2')
    a('s_add_u32 s79, s79, %d' % F_H)
    a('s_mul_i32 s12, s12, 196608')
    for tt in range(3):
        a('s_add_u32 s14, s13, %d' % tt)
        a('s_lshr_b32 s15, s14, 1')
        a('s_lshl_b32 s15, s15, 12')
        a('s_and_b32 s14, s14, 1')
        a('s_lshl_b32 s14, s14, 9')
        a('s_add_u32 s14, s14, s15')
        a('s_add_u32 s%d, s14, s12' % (76 + tt))
    a('v_lshlrev_b32 v249, 2, v1')
    a('v_add_u32 v249, s79, v249')
    a('v_cmp_gt_u32 vcc, 3, v1')
    a('v_mov_b32 v9, 0x%x' % OOB)
    a('v_cndmask_b32 v249, v9, v249, vcc')

def c_setup_main(a):
    a('s_and_b32 s10, s3, 1')
    a('s_lshr_b32 s11, s3, 1')
    a('v_and_b32 v2, 31, v1')
    a('v_lshrrev_b32 v3, 5, v1')
    a('v_lshrrev_b32 v9, 1, v2')
    a('v_and_b32 v9, 7, v9')
    a('v_xor_b32 v9, v9, v3')
    a('v_lshlrev_b32 v9, 4, v9')
    a('v_lshl_add_u32 v9, v2, 7, v9')
    a('s_mul_i32 s12, s11, 12288')
    a('v_add_u32 v4, s12, v9')
    a('v_xor_b32 v5, 32, v4')
    a('v_xor_b32 v6, 64, v4')
    a('v_xor_b32 v7, 96, v4')
    a('v_bfe_u32 v9, v1, 4, 1')
    a('v_bfe_u32 v11, v1, 2, 2')
    a('v_lshl_add_u32 v8, v3, 3, v11')
    a('v_lshlrev_b32 v8, 7, v8')
    a('v_lshl_add_u32 v8, v9, 13, v8')
    a('v_xor_b32 v9, s10, v9')
    a('v_lshl_add_u32 v8, v9, 6, v8')
    a('v_lshrrev_b32 v11, 1, v11')
    a('v_lshl_add_u32 v8, v11, 5, v8')
    a('v_and_b32 v9, 3, v1')
    a('v_lshl_add_u32 v8, v9, 3, v8')
    a('v_add_u32 v8, 24576, v8')
    a('v_xor_b32 v11, 32, v8')
    a('v_lshrrev_b32 v9, 4, v2')
    a('v_lshlrev_b32 v10, 10, v9')
    a('v_lshl_add_u32 v10, v3, 8, v10')
    a('v_and_b32 v9, 15, v2')
    a('v_lshl_add_u32 v10, v9, 4, v10')
    a('s_lshl_b32 s13, s8, 1')
    a('s_add_u32 s13, s13, s10')
    a('v_mov_b32 v249, 0x%x' % OOB)
    for b in range(3):
        a('s_mul_i32 s12, s11, 3')
        a('s_add_u32 s12, s12, %d' % b)
        a('s_and_b32 s14, s12, 1')
        a('s_lshr_b32 s12, s12, 1')
        a('s_mul_i32 s15, s7, 3')
        a('s_add_u32 s12, s12, s15')
        a('s_mul_i32 s15, s12, 96')
        a('s_add_u32 s15, s15, s14')
        a('s_lshl_b32 s79, s13, 1')
        a('s_add_u32 s15, s15, s79')
        a('s_lshl_b32 s15, s15, 2')
        a('s_add_u32 s15, s15, %d' % F_H)
        a('v_writelane_b32 v249, s15, %d' % b)
        a('s_mul_i32 s12, s12, 196608')
        a('s_lshl_b32 s14, s14, 11')
        a('s_add_u32 s12, s12, s14')
        a('s_lshl_b32 s14, s13, 12')
        a('s_add_u32 s%d, s12, s14' % (76 + b))

def c_gemm1(a, cfg, prof, odd):
    ACC = 64
    FB = [16, 40]
    if odd:
        NT_, NBT = 3, 2
        def reads(buf, ks):
            f = FB[buf]
            A = lambda tt: ['ds_read_b64_tr_b16 v[%d:%d], v8 offset:%d' % (f + 4 * tt + 2 * t, f + 4 * tt + 2 * t + 1, ks * 3072 + t * 768 + tt * 32) for t in range(2)]
            B = lambda b: ['ds_read_b128 v[%d:%d], v%d offset:%d' % (f + 12 + 4 * b, f + 15 + 4 * b, 4 + ks, b * 4096)]
            return A(0) + B(0) + B(1) + A(1) + A(2)
        order = [(0, 0, 2), (0, 1, 3), (1, 0, 5), (1, 1, 5), (2, 0, 7), (2, 1, 7)]
        s3_, sn = {1: 3, 2: 2, 3: 2, 4: 1}, {0: 2, 1: 2, 2: 2, 3: 2}
        addr = (4, 5, 6, 7, 8)
        store = lambda tt, b: (76 + tt, b * 2048)
    else:
        NT_, NBT = 2, 3
        def reads(buf, ks):
            f = FB[buf]
            A = lambda tt: ['ds_read_b64_tr_b16 v[%d:%d], v%d offset:%d' % (f + 4 * tt + 2 * t, f + 4 * tt + 2 * t + 1, (8, 11)[tt], ks * 2048 + t * 512) for t in range(2)]
            B = lambda b: ['ds_read_b128 v[%d:%d], v%d offset:%d' % (f + 8 + 4 * b, f + 11 + 4 * b, 4 + ks, b * 4096)]
            return A(0) + B(0) + B(1) + B(2) + A(1)
        order = [(0, 0, 2), (0, 1, 3), (0, 2, 4), (1, 0, 6), (1, 1, 6), (1, 2, 6)]
        s3_, sn = {1: 3, 2: 2, 3: 2}, {0: 2, 1: 2, 2: 2, 3: 1}
        addr = (4, 5, 6, 7, 8, 11)
        store = lambda tt, b: (76 + b, tt * 512)
    def acc(tt, b): return ACC + (tt * NBT + b) * 16
    if cfg.loop1:
        assert not (cfg.nine or cfg.cclear)
        for r in range(ACC, ACC + 96): a('v_mov_b32 v%d, 0' % r)
        a('s_mov_b32 s64, 0')
        a('s_mov_b32 s65, 9')
    a('s_setprio %d' % cfg.g1prio)
    a('s_barrier')
    prof.stamp(1); prof.cyc(5)
    toks = [a.emit(r) for r in reads(0, 0)]
    cur = 0
    lname = newlabel('Lg1')
    for st in ((0, 9) if cfg.loop1 else range(NSTAGE)):
        if cfg.loop1 and st == 0: a.label(lname)
        if cfg.loop1 and st == 9: a('s_setprio %d' % cfg.cprio)
        for ks in range(4):
            last = (st == NSTAGE - 1 and ks == 3)
            nxt = None if last else reads(1 - cur, (ks + 1) % 4)
            ntoks = []
            f = FB[cur]
            for mi, (tt, b, need_i) in enumerate(order):
                a.wait_lg(toks[need_i])
                c = '0' if (st == 0 and ks == 0 and not cfg.loop1) else vr(acc(tt, b), 16)
                a('v_mfma_f32_32x32x16_bf16 %s, %s, %s, %s' % (vr(acc(tt, b), 16), vr(f + 4 * tt, 4), vr(f + 4 * NT_ + 4 * b, 4), c))
                if nxt is not None:
                    if ks == 3:
                        if mi == 0:
                            skip = cfg.nine and st == NSTAGE - 2
                            if not skip: a.wait_all_lg()
                            if cfg.loop1:
                                for r in addr: a('v_add_u32 v%d, s66, v%d' % (r, r))
                            else:
                                d = SLOT if (st + 1) % NSLOT else -(NSLOT - 1) * SLOT
                                for r in addr:
                                    a('v_add_u32 v%d, 0x%x, v%d' % (r, u32(d), r))
                            if not skip: a('s_barrier')
                            if st == NSTAGE - 2: a('s_setprio %d' % cfg.cprio)
                        sched = s3_
                    else:
                        sched = sn
                    for _ in range(sched.get(mi, 0)):
                        ntoks.append(a.emit(nxt[len(ntoks)]))
                if cfg.loop1 and st == 0 and (ks, mi) == (1, 5):
                    a('s_add_u32 s64, s64, 1')
                    a('s_cmp_eq_u32 s64, 3')
                    a('s_cselect_b32 s64, 0, s64')
                    a('s_cselect_b32 s66, %d, 0' % (3 * SLOT))
                    a('s_sub_u32 s66, %d, s66' % SLOT)
                if st == 9 and cfg.areg:
                    n = ks * 6 + mi - 1
                    if 0 <= n < 5 * cfg.areg:
                        k, dl = n // 5, n % 5
                        if dl == 0: a('s_add_u32 s14, s86, %d' % (5120 * k))
                        b_ = 160 + k * 20 + 4 * dl
                        if dl < 4: a('buffer_load_dwordx4 %s, v240, s[48:51], s14 offen offset:%d sc1' % (vr(b_, 4), 1024 * dl))
                        else: a('buffer_load_dwordx4 %s, v241, s[48:51], s14 offen sc1' % vr(b_, 4))
                if (st, ks, mi) == ((9, 0, 5) if cfg.loop1 else (6, 1, 5)):
                    a('v_mov_b32 v9, %d' % (CNT + 32))
                    a('ds_read_b32 v%d, v9' % VN)
                if (st, ks, mi) == (7, 0, 5) and cfg.cclear and not odd:
                    a.emit('s_waitcnt vmcnt(0)')
                    flag_store(a, 's80')
            toks = ntoks
            cur = 1 - cur
        if cfg.loop1 and st == 0:
            a('s_sub_u32 s65, s65, 1')
            a('s_cmp_lg_u32 s65, 0')
            a('s_cbranch_scc1 %s' % lname)
    prof.stamp(2); prof.cyc(6)
    for tt in range(NT_):
        for b in range(NBT):
            x = acc(tt, b)
            o = 16 + (tt * NBT + b) * 4
            for p in range(8):
                a('v_mul_f32 v%d, v%d, v%d' % (x + p, x + p, x + 8 + p))
            for p in range(4):
                a('v_cvt_pk_bf16_f32 v%d, v%d, v%d' % (o + p, x + 2 * p, x + 2 * p + 1))
            a('buffer_store_dwordx4 %s, v10, s[44:47], s%d offen offset:%d sc1' % ((vr(o, 4),) + store(tt, b)))

def c_common(a, cfg):
    g2_scalars(a, 84, 85)
    a('s_mul_i32 s86, s85, 245760')
    a('s_mul_i32 s96, s3, 61440')
    a('s_add_u32 s86, s86, s96')
    a('s_mul_i32 s87, s84, 196608')
    a('s_mul_i32 s96, s3, 49152')
    a('s_add_u32 s87, s87, s96')
    a('s_mul_i32 s88, s3, 10240')
    a('s_mul_i32 s83, s84, 384')
    a('s_mul_i32 s96, s3, 96')
    a('s_add_u32 s83, s83, s96')
    a('s_add_u32 s83, s83, %d' % F_H)
    row_off(a, 244, 245, 84, 85, 3)
    a('v_lshlrev_b32 v240, 4, v1')
    a('v_add_u32 v241, 4096, v240')
    lane_min(a, 246, 24)
    a('v_and_b32 v9, 31, v1')
    a('v_lshlrev_b32 v9, 2, v9')
    a('v_add_u32 v9, %d, v9' % CNT)
    a('v_mov_b32 v12, 0')
    a('ds_write_b32 v9, v12')
    a.emit('s_waitcnt lgkmcnt(0)'); a.lgq = []
    srd(a, 44, P_WS, SZ_H, WS_H)
    srd(a, 48, P_WS, SZ_WD, WS_WD)
    srd(a, 56, P_OUT, SZ_X)
    wave_common(a)
    if cfg.ptouch:
        M2 = 2 << 20
        tl_ = [(P_K, 0), (P_K, M2), (P_V, 0), (P_V, M2), (P_WD, 0), (P_SSMK, 0), (P_SSMK, M2), (P_Q, M2), (P_OUT, 0), (P_OUT, M2), (P_GW, 0), (P_SHK, 0)]
        tl_ += [(P_WS, i * M2 + M2 - 64) for i in range(7)]
        a('s_mov_b32 s64, 0x%x' % M2)
        lab = newlabel('Lpt')
        for w in range(4):
            a('s_cmp_lg_u32 s3, %d' % w)
            a('s_cbranch_scc1 %s_%d' % (lab, w))
            for p, off in tl_[w::4]:
                a('s_mov_b32 s64, 0x%x' % off)
                a('s_load_dword s65, s[%d:%d], s64' % (p, p + 1))
            a.label('%s_%d' % (lab, w))
    if cfg.rot2:
        rot_off(a, cfg, 95)
        for k in range(12): kap(a, 16 + k, 95, k)
    if cfg.spf > 2:
        SPF.X, SPF.WG, SPF.WU = P_Q, P_WG, P_WU
        sp = SPF(a, cfg, 3, 62, 66, 64, 65, 2)
        SPF.X, SPF.WG, SPF.WU = 44, 48, 52
        sp.upto(cfg.spf - 1)
    if cfg.cclear:
        srd(a, 60, P_WS, SZ_Y2, WS_Y2)
        a('s_mul_i32 s80, s4, 20')
        a('s_add_u32 s80, s80, s5')
        a('s_lshl_b32 s80, s80, 2')
        a('s_add_u32 s80, s80, s3')
        a('s_lshl_b32 s81, s80, 12')
        a('s_lshl_b32 s80, s80, 2')
        a('s_add_u32 s80, s80, %d' % F_YC)
        a('s_cmp_ge_u32 s5, 20')
        a('s_cselect_b32 s96, 0x%x, 0' % FAR)
        a('s_or_b32 s80, s80, s96')
        a('s_or_b32 s81, s81, s96')
        for i in range(4): a('v_mov_b32 v%d, -1' % (160 + i))
        for i in range(4):
            a('buffer_store_dwordx4 v[160:163], v240, s[60:63], s81 offen offset:%d sc1' % (1024 * i))

def c_wave(a, cfg, prof):
    h0 = list(a.hist)
    a('s_cmp_ge_u32 s5, 30')
    a('s_cbranch_scc1 LCodd')
    c_setup_main(a)
    c_common(a, cfg)
    c_gemm1(a, cfg, prof, False)
    a('s_branch LCjoin')
    a.hist = h0; a.reset_queues()
    a.label('LCodd')
    c_setup_odd(a)
    c_common(a, cfg)
    c_gemm1(a, cfg, prof, True)
    a.label('LCjoin')
    prof.stamp(3)
    a('v_readfirstlane_b32 s%d, v%d' % (NONCE, VN))
    def h_flag(n_younger):
        a.emit('s_waitcnt vmcnt(%d)' % n_younger)
        if not n_younger: a.vmq = []
        flag_store(a, '0', 249)
        a('s_setprio 0')
        prof.stamp(7); prof.cyc(40)
    a.vmq = []
    if not cfg.pre_ack: h_flag(0)
    NA, NB = cfg.na, cfg.nb
    NL = 6 if cfg.c0 else 4
    L0 = 12 - NL
    LS = cfg.lsteps
    assert not cfg.quiet or LS == 0
    cblocks = ([4, 5] if cfg.c0 else []) + list(range(LS, 4))
    border = cblocks + list(range(LS))
    AB = 240 - 20 * NA; ACC2 = AB - 80 - (8 if NA == 4 else 0); BB = 8
    assert BB + 16 * NB <= ACC2 and not (cfg.areg and NA != 4)
    RD = 160 if NA == 4 else 12
    gtok = {}
    def acc2(dl, sg): return ACC2 + (sg * 5 + dl) * 4
    def wdoff(k):
        if cfg.rot2:
            a('s_mul_i32 s14, s%d, 5120' % (16 + k))
            a('s_add_u32 s14, s14, s86')
        else: a('s_add_u32 s14, s86, %d' % (5120 * k))
    def lbase(off): return ('v4', off) if off < SLOT else ('v7', off - SLOT)
    def issueA(k):
        b = AB + (k % NA) * 20
        if k >= L0:
            i = border[k - L0]
            if i == 0 and LS: lds_word_wait(a, cfg, 3, 16, 5, 6, 'Lwf')
            base, off = lbase(wblk(i))
            for dl in range(5):
                gtok[(k, 'a')] = a.emit('ds_read_b128 %s, %s offset:%d' % (vr(b + 4 * dl, 4), base, off + dl * 1024))
            return
        wdoff(k)
        for dl in range(4):
            a('buffer_load_dwordx4 %s, v240, s[48:51], s14 offen offset:%d sc1' % (vr(b + 4 * dl, 4), 1024 * dl))
        gtok[(k, 'a')] = a.emit('buffer_load_dwordx4 %s, v241, s[48:51], s14 offen sc1' % vr(b + 16, 4))
    def issueB(k):
        b = BB + (k % NB) * 16
        if cfg.rot2:
            a('s_lshl_b32 s15, s%d, 12' % (16 + k))
            a('s_add_u32 s15, s15, s87')
        else: a('s_add_u32 s15, s87, %d' % (4096 * k))
        for sg in range(4):
            gtok[(k, sg)] = a.emit('buffer_load_dwordx4 %s, v240, s[44:47], s15 offen offset:%d sc1' % (vr(b + 4 * sg, 4), 1024 * sg))
    a('v_add_u32 v4, s88, v240')
    a('v_add_u32 v7, %d, v4' % SLOT)
    a('v_mov_b32 v5, %d' % CNT)
    a('v_mov_b32 v6, 1')
    a('v_cmp_eq_u32 vcc, 0, v1')
    a('s_and_saveexec_b64 s[90:91], vcc')
    a('ds_add_u32 v5, v6')
    a('s_mov_b64 exec, s[90:91]')
    lds_spin(a, cfg, 5, 6, 82, 'ge', 4, 'Lcsync')
    lds_word_wait(a, cfg, 3, 48, 5, 6, 'Lwok')
    prof.stamp(31)
    assert not (cfg.areg and (cfg.ungate or cfg.nine or cfg.rot2))
    for k in range(cfg.areg): gtok[(k, 'a')] = -1
    done = [0]
    def tick():
        done[0] += 1
        if done[0] == cfg.pre_ack: h_flag(5 * cfg.pre_ack)
    for k in range(cfg.areg, NA): issueA(k); tick()
    t = None
    for n, i in enumerate(cblocks):
        if n == cfg.pollat: t = poll_issue(a, 246, 's83', 247)
        wdoff(L0 + n)
        a('s_add_u32 m0, s88, %d' % wblk(i))
        for dl in range(4):
            a('buffer_load_dwordx4 v240, s[48:51], s14 offen offset:%d sc1 lds' % (1024 * dl))
        a('s_add_u32 m0, s88, %d' % (wblk(i) + 4096))
        a('buffer_load_dwordx4 v241, s[48:51], s14 offen sc1 lds')
        tick()
    if t is None: t = poll_issue(a, 246, 's83', 247)
    prof.stamp(32)
    if cfg.prof:
        a.wait_vm(t); prof.stamp(33)
    def group_wait(tok, g):
        if cfg.rot2:
            a('s_lshl_b32 s80, s%d, 1' % (16 + 4 * g))
            a('s_lshl_b64 s[80:81], 0xff, s80') if False else None
            a('s_mov_b32 s81, 0xff')
            a('s_lshl_b32 s82, s81, s80')
            a('s_sub_u32 s80, 24, s80')
            a('s_lshr_b32 s81, s81, s80')
            a('s_or_b32 s82, s82, s81')
            a('s_and_b32 s82, s82, 0xffffff')
        else:
            a('s_mov_b32 s82, 0x%x' % (0xff << (8 * g)))
        a.wait_vm(tok)
        lo, ok = newlabel('Lg'), newlabel('Lg_ok')
        a('s_mov_b32 s94, %d' % cfg.spin)
        a.label(lo)
        a('v_cmp_ne_u32 vcc, s%d, v247' % NONCE)
        a('s_nop 0')
        a('s_and_b32 s81, vcc_lo, s82')
        a('s_cbranch_scc0 %s' % ok)
        a('s_sleep %d' % cfg.hsleep)
        poll_issue(a, 246, 's83', 247)
        a.emit('s_waitcnt vmcnt(0)')
        a.vmq.pop()
        a('s_sub_u32 s94, s94, 1')
        a('s_cmp_lg_u32 s94, 0')
        a('s_cbranch_scc1 %s' % lo)
        a.label(ok)
    if cfg.grp:
        assert NB == 4
        group_wait(t, 0)
    else:
        poll_wait(a, cfg, t, 246, 's83', 247, sleep=cfg.hsleep)
    prof.stamp(8); prof.cyc(41)
    if cfg.grp: gp = {1: poll_issue(a, 246, 's83', 247)}
    for k in range(NB): issueB(k)
    def step(k, sgs, after=None):
        ab_, bb_ = AB + (k % NA) * 20, BB + (k % NB) * 16
        if k >= L0: a.wait_lg(gtok[(k, 'a')])
        else: a.wait_vm(gtok[(k, 'a')])
        for n, sg in enumerate(sgs):
            a.wait_vm(gtok[(k, sg)])
            if n == 0: prof.stamp(10 + k)
            for dl in range(5):
                c = '0' if k == 0 else vr(acc2(dl, sg), 4)
                a('v_mfma_f32_16x16x32_bf16 %s, %s, %s, %s' % (vr(acc2(dl, sg), 4), vr(ab_ + 4 * dl, 4), vr(bb_ + 4 * sg, 4), c))
                if after: after(n, dl)
    NK = 11 if cfg.fin else 12
    for k in range(NK):
        step(k, range(4))
        if cfg.grp and k in (0, 4): group_wait(gp[k // 4 + 1], k // 4 + 1)
        if cfg.grp and k == 2: gp[2] = poll_issue(a, 246, 's83', 247)
        if k + NB < 12: issueB(k + NB)
        if k + NA < 12: issueA(k + NA)
        if k == cfg.ygate: lds_word(a, 3, 64, 5, 6)
    def blk(w, sg): return w * 10240 + wblk(sg if sg < w else sg - 1)
    a('v_add_u32 v7, %d, v240' % SLOT)
    a('v_add_u32 v4, %d, v7' % SLOT)
    if not cfg.fin: a('s_nop 7')
    else:
        a.wait_lg(gtok[(11, 'a')])
        a.wait_all_vm()
    for w in range(3):
        a('s_cmp_eq_u32 s3, %d' % (w + 1))
        a('s_cbranch_scc1 Lfin%d' % (w + 1))
    hist0 = [] if cfg.fin else list(a.hist)
    def ab(off): return ('v7', off - SLOT) if off < 2 * SLOT else ('v4', off - 2 * SLOT)
    for w in range(4):
        a.hist = list(hist0); a.vmq = []; a.lgq = []
        a.label('Lfin%d' % w)
        others = [x for x in range(4) if x != w]
        def wr(sg, dl):
            r, o = ab(blk(w, sg) + dl * 1024)
            a('ds_write_b128 %s, %s offset:%d' % (r, vr(acc2(dl, sg), 4), o))
        if cfg.fin:
            pend = []
            def after(n, dl):
                if n < 3: pend.append((others[n], dl))
                if len(pend) > 6 or (n == 3 and pend): wr(*pend.pop(0))
            step(11, others + [w], after=after)
            while pend: wr(*pend.pop(0))
        else:
            for sg in others:
                for dl in range(5): wr(sg, dl)
        prof.stamp(9); prof.cyc(42)
        a('v_add_u32 v5, %d, v240' % (PA + w * 5120))
        a('v_lshlrev_b32 v3, 2, v1')
        a('v_add_u32 v3, %d, v3' % (QA + w * QSZ + 3072))
        a.wait_all_lg()
        a('s_barrier')
        prof.stamp(30)
        tl = {}
        tl['omg'] = a.emit('ds_read_b32 v6, v3')
        for dl in range(5):
            for si, x in enumerate(others):
                r, o = ab(blk(x, w) + dl * 1024)
                tl[(dl, si)] = a.emit('ds_read_b128 %s, %s offset:%d' % (vr(RD + (dl * 4 + si) * 4, 4), r, o))
            tl[(dl, 3)] = a.emit('ds_read_b128 %s, v5 offset:%d' % (vr(RD + (dl * 4 + 3) * 4, 4), dl * 1024))
        for dl in range(5):
            x = acc2(dl, w)
            for si in range(3):
                a.wait_lg(tl[(dl, si)])
                r = RD + (dl * 4 + si) * 4
                a('v_pk_add_f32 %s, %s, %s' % (P2(x), P2(x), P2(r)))
                a('v_pk_add_f32 %s, %s, %s' % (P2(x + 2), P2(x + 2), P2(r + 2)))
            ga = RD + (dl * 4 + 3) * 4
            t = 8 + (dl & 1) * 2 if NA != 4 else 12 + (dl & 1) * 4
            a.wait_lg(tl[(dl, 3)])
            for i in range(4): a('v_fma_f32 v%d, v6, v%d, v%d' % (x + i, x + i, ga + i))
            a('v_cvt_pk_bf16_f32 v%d, v%d, v%d' % (t, x, x + 1))
            a('v_cvt_pk_bf16_f32 v%d, v%d, v%d' % (t + 1, x + 2, x + 3))
            a('buffer_store_dwordx2 %s, v244, s[56:59], 0 offen offset:%d' % (vr(t, 2), dl * 32))
        prof.stamp(4)
        prof.flush(243)
        a('s_endpgm')

class SPF:
    def __init__(self, a, cfg, wv, pw, px, cur, dst, first):
        self.a, self.cfg, self.pw, self.px, self.cur, self.dst, self.next = a, cfg, pw, px, cur, dst, first
        a('s_lshl_b32 s96, s5, 2')
        a('s_add_u32 s96, s96, s%d' % wv)
        a('s_and_b32 s%d, s4, 1' % cur)
        a('s_mul_i32 s%d, s%d, 10' % (cur, cur))
        a('s_mul_i32 s97, s6, 5')
        a('s_add_u32 s%d, s%d, s97' % (cur, cur))
        a('s_lshr_b32 s%d, s%d, 1' % (cur, cur))
        if cfg.xrot == 0: a('s_mov_b32 s%d, 0' % cur)
        a('s_add_u32 s%d, s%d, %d' % (cur, cur, first))
        for _ in range(2):
            a('s_cmp_ge_u32 s%d, 10' % cur)
            a('s_cselect_b32 s97, 10, 0')
            a('s_sub_u32 s%d, s%d, s97' % (cur, cur))
        a('s_bitcmp1_b32 s96, 0')
        a('s_cselect_b32 s%d, s%d, s%d' % (pw, self.WU, self.WG))
        a('s_cselect_b32 s%d, s%d, s%d' % (pw + 1, self.WU + 1, self.WG + 1))
        a('s_lshr_b32 s97, s96, 1')
        a('s_mul_i32 s97, s97, 3072')
        a('s_mul_i32 s%d, s6, 768' % dst)
        a('s_add_u32 s97, s97, s%d' % dst)
        a('s_mul_i32 s%d, s%d, 196608' % (dst, cur))
        a('s_add_u32 s97, s97, s%d' % dst)
        a('s_add_u32 s%d, s%d, s97' % (pw, pw))
        a('s_addc_u32 s%d, s%d, 0' % (pw + 1, pw + 1))
        a('s_lshr_b32 s97, s96, 3')
        a('s_min_u32 s97, s97, 14')
        a('s_and_b32 s%d, s4, 1' % dst)
        a('s_mul_i32 s%d, s%d, 15' % (dst, dst))
        a('s_add_u32 s97, s97, s%d' % dst)
        a('s_and_b32 s96, s96, 7')
        a('s_lshr_b32 s%d, s97, 3' % dst)
        a('s_lshl_b32 s%d, s%d, 9' % (dst, dst))
        a('s_add_u32 s96, s96, s%d' % dst)
        a('s_and_b32 s97, s97, 7')
        a('s_lshl_b32 s97, s97, 3')
        a('s_add_u32 s96, s96, s97')
        a('s_mul_i32 s96, s96, 1280')
        a('s_lshl_b32 s97, s%d, 7' % cur)
        a('s_add_u32 s96, s96, s97')
        a('s_add_u32 s%d, s%d, s96' % (px, self.X))
        a('s_addc_u32 s%d, s%d, 0' % (px + 1, self.X + 1))
    X, WG, WU = 44, 48, 52
    def upto(self, st):
        a = self.a
        while self.next <= min(st, NSTAGE - 1):
            for i in range(6): a('s_load_dword s%d, s[%d:%d], %d' % (self.dst, self.pw, self.pw + 1, 128 * i))
            for i in range(self.cfg.spfx): a('s_load_dword s%d, s[%d:%d], %d' % (self.dst, self.px, self.px + 1, 81920 * i))
            a('s_add_u32 s%d, s%d, 1' % (self.cur, self.cur))
            a('s_cmp_eq_u32 s%d, 10' % self.cur)
            a('s_cselect_b32 s96, %d, 196608' % 0) if False else None
            a('s_cselect_b32 s96, 1966080, 0')
            a('s_cselect_b32 s97, 1280, 0')
            a('s_sub_u32 s%d, s%d, s96' % (self.pw, self.pw)); a('s_subb_u32 s%d, s%d, 0' % (self.pw + 1, self.pw + 1))
            a('s_add_u32 s%d, s%d, 196608' % (self.pw, self.pw)); a('s_addc_u32 s%d, s%d, 0' % (self.pw + 1, self.pw + 1))
            a('s_sub_u32 s%d, s%d, s97' % (self.px, self.px)); a('s_subb_u32 s%d, s%d, 0' % (self.px + 1, self.px + 1))
            a('s_add_u32 s%d, s%d, 128' % (self.px, self.px)); a('s_addc_u32 s%d, s%d, 0' % (self.px + 1, self.px + 1))
            self.next += 1

SX = [28, 29, 30, 31, 7, 8]
class Loader:
    def __init__(self, a, cfg, prof, odd):
        self.a, self.odd, self.tok = a, odd, {}
        if odd:
            a('v_lshrrev_b32 v9, 3, v1')
            a('v_and_b32 v10, 7, v1')
            a('v_lshrrev_b32 v11, 1, v9')
            a('v_xor_b32 v10, v10, v11')
            a('v_lshlrev_b32 v10, 4, v10')
            a('s_mov_b32 s12, 81920')
            a('v_mul_lo_u32 v9, v9, s12')
            a('v_add_u32 v2, v9, v10')
            a('v_xor_b32 v10, 64, v10')
            a('v_add_u32 v3, v9, v10')
            a('v_add_u32 v3, 256, v3')
            a('v_add_u32 v4, 512, v2')
            a('v_add_u32 v5, 512, v3')
            for i in range(3):
                a('v_add_u32 v9, %d, v1' % (64 * i))
                a('v_mul_u32_u24 v10, 5462, v9')
                a('v_lshrrev_b32 v10, 16, v10')
                a('v_mul_u32_u24 v11, 12, v10')
                a('v_sub_u32 v11, v9, v11')
                a('v_mul_u32_u24 v10, 3072, v10')
                a('v_lshl_add_u32 v10, v11, 4, v10')
                a('v_subrev_u32 v%d, %d, v10' % (6 + i, 1024 * i))
            a('s_mov_b32 s12, %d' % (512 * 3 + 16 * 3))
            a('s_lshl_b32 s13, s10, 2')
            a('s_add_u32 s12, s12, s13')
            a('s_mul_i32 s12, s12, 1280')
            a('s_mul_i32 s13, s10, 49152')
            a('s_mul_i32 s14, s8, 192')
            a('s_add_u32 s13, s13, s14')
            a('s_lshl_b32 s14, s10, 12')
            a('s_mul_i32 s15, s10, 3072')
        else:
            a('v_lshrrev_b32 v9, 3, v1')
            a('v_and_b32 v10, 7, v1')
            a('v_lshrrev_b32 v11, 1, v9')
            a('v_xor_b32 v4, v10, v11')
            a('v_lshlrev_b32 v4, 4, v4')
            a('s_mov_b32 s12, 81920')
            a('v_mul_lo_u32 v3, v9, s12')
            a('v_add_u32 v2, v3, v4')
            a('v_xor_b32 v4, 64, v4')
            a('v_add_u32 v3, v3, v4')
            a('v_and_b32 v11, 1, v11')
            a('v_lshlrev_b32 v11, 1, v11')
            a('v_xor_b32 v10, v10, v11')
            a('v_mul_u32_u24 v9, 3072, v9')
            a('v_lshl_add_u32 v4, v10, 4, v9')
            a('v_add_u32 v5, 23552, v4')
            a('v_xor_b32 v6, 64, v4')
            a('v_xor_b32 v7, 64, v5')
            a('s_mul_i32 s12, s10, 6')
            a('s_mul_i32 s13, s7, 3')
            a('v_add_u32 v9, s12, v1')
            a('v_lshrrev_b32 v10, 3, v9')
            a('v_add_u32 v10, s13, v10')
            a('v_and_b32 v9, 7, v9')
            a('v_and_b32 v11, 7, v10')
            a('v_lshl_add_u32 v9, v11, 3, v9')
            a('v_lshrrev_b32 v10, 3, v10')
            a('v_lshl_add_u32 v9, v10, 9, v9')
            a('v_mul_u32_u24 v9, 1280, v9')
            a('v_subrev_u32 v10, 3, v1')
            a('v_min_u32 v10, v10, v1')
            a('v_lshlrev_b32 v10, 10, v10')
            a('v_sub_u32 v8, v9, v10')
            a('s_mul_i32 s13, s10, 49152')
            a('s_lshl_b32 s14, s8, 7')
            a('s_add_u32 s13, s13, s14')
            a('s_mul_i32 s14, s10, 6144')
            a('s_lshl_b32 s15, s10, 11')
        self.rot = cfg.xrot
        self.alt = cfg.alt
        if cfg.alt and not odd:
            a('s_add_u32 s93, s7, s8')
            a('s_and_b32 s93, s93, 1')
        if cfg.xrot:
            a('s_and_b32 s9, s4, 1')
            a('s_mul_i32 s9, s9, 10')
            a('s_mul_i32 s96, s6, 5')
            a('s_add_u32 s9, s9, s96')
            if cfg.xrot == 2:
                a('s_mul_i32 s96, s5, 3')
                a('s_add_u32 s9, s9, s96')
                a('s_and_b32 s9, s9, 31')
            a('s_lshr_b32 s9, s9, 1')
            a('s_cmp_ge_u32 s9, 10')
            a('s_cselect_b32 s96, 10, 0')
            a('s_sub_u32 s9, s9, s96')
            a('s_lshl_b32 s96, s9, 7')
            if odd: a('s_add_u32 s12, s12, s96')
            else:
                a('v_add_u32 v2, s96, v2')
                a('v_add_u32 v3, s96, v3')
            a('s_mul_i32 s96, s9, 196608')
            a('s_add_u32 s13, s13, s96')
        for d, sz in ((44, SZ_X), (48, SZ_W), (52, SZ_W)):
            a('s_mov_b32 s%d, 0x%x' % (d + 2, sz))
            a('s_mov_b32 s%d, 0x00020000' % (d + 3))
        if not odd:
            for i in range(6): a('v_readlane_b32 s%d, v8, %d' % (SX[i], i))
        a.emit('s_waitcnt lgkmcnt(0)')
        prof.stamp(3)
    def issue(self, st):
        a = self.a
        base = (st % NSLOT) * SLOT
        if self.odd:
            a('s_add_u32 m0, s14, %d' % base)
            for i in range(4):
                a('buffer_load_dwordx4 v%d, s[44:47], s12 offen offset:%d lds' % (2 + i, 1024 * i))
            a('s_add_u32 m0, s15, %d' % (base + OFF_GATE))
            for i in range(3):
                a('buffer_load_dwordx4 v%d, s[48:51], s13 offen offset:%d lds' % (6 + i, 1024 * i))
            a('s_add_u32 m0, s15, %d' % (base + OFF_UP))
            for i in range(3):
                t = a.emit('buffer_load_dwordx4 v%d, s[52:55], s13 offen offset:%d lds' % (6 + i, 1024 * i))
            a('s_add_u32 s12, s12, 128')
        else:
            def xpart(order):
                for h in order:
                    a('s_add_u32 m0, s14, %d' % (base + 3072 * h))
                    for i in range(3 * h, 3 * h + 3):
                        t = a.emit('buffer_load_dwordx4 v%d, s[44:47], s%d offen offset:%d lds' % (2 + (i & 1), SX[i], 1024 * (i % 3)))
                return t
            def wpart(order):
                for m in order:
                    a('s_add_u32 m0, s15, %d' % (base + 24576 + 8192 * m))
                    for i in range(2):
                        t = a.emit('buffer_load_dwordx4 v%d, s[%d:%d], s13 offen offset:%d lds' % (4 + 2 * m + i, 48 + 4 * m, 51 + 4 * m, 1024 * i))
                return t
            if self.alt:
                l1, l2 = newlabel('Lalt'), newlabel('Lalt_done')
                a('s_cmp_lg_u32 s93, 0')
                a('s_cbranch_scc1 %s' % l1)
                q0 = list(a.vmq)
                if self.alt == 1: xpart((0, 1)); wpart((0, 1))
                else: xpart((0,)); wpart((0,)); xpart((1,)); wpart((1,))
                a('s_branch %s' % l2)
                a.vmq = q0
                a.label(l1)
                if self.alt == 1: wpart((1, 0)); t = xpart((1, 0))
                else: wpart((1,)); xpart((1,)); wpart((0,)); t = xpart((0,))
                a.label(l2)
            else:
                xpart((0, 1)); t = wpart((0, 1))
            a('v_add_u32 v2, 0x80, v2')
            a('v_add_u32 v3, 0x80, v3')
        a('s_add_u32 s13, s13, 196608')
        if self.rot:
            a('s_add_u32 s9, s9, 1')
            a('s_cmp_eq_u32 s9, 10')
            a('s_cselect_b32 s96, 1280, 0')
            a('s_cselect_b32 s97, 1966080, 0')
            a('s_sub_u32 s13, s13, s97')
            if self.odd: a('s_sub_u32 s12, s12, s96')
            else:
                a('v_subrev_u32 v2, s96, v2')
                a('v_subrev_u32 v3, s96, v3')
        self.tok[st] = t

def l_wave(a, cfg, prof):
    a('s_setprio %d' % cfg.lprio)
    a('s_and_b32 s10, s3, 3')
    h0 = list(a.hist)
    a('s_cmp_ge_u32 s5, 30')
    a('s_cbranch_scc1 LLodd')
    l_body(a, cfg, prof, False)
    a.hist = h0; a.reset_queues()
    a.label('LLodd')
    l_body(a, cfg, prof, True)

def l_body(a, cfg, prof, odd):
    ld = Loader(a, cfg, prof, odd)
    stage_tok = ld.tok
    issue_stage = ld.issue
    issue_stage(0)
    wave_common(a)
    if cfg.drop:
        a('s_mov_b32 s92, 1'); a('v_mov_b32 v250, 1'); a('s_mov_b32 s86, 0')
    if not odd:
        a('s_lshl_b32 s76, s2, 2')
        a('s_add_u32 s76, s76, s10')
        a('s_cmp_lg_u32 s76, 0')
        a('s_cbranch_scc1 Lno_nonce')
        a('s_memrealtime s[76:77]')
        srd(a, 68, P_DBG, 256)
        a.emit('s_waitcnt lgkmcnt(0)')
        a('s_or_b32 s76, s76, 1')
        a('v_mov_b32 v20, s76')
        a('buffer_store_dword v20, v%d, s[68:71], 0 offen sc1' % VZ)
        a.emit('s_waitcnt vmcnt(0)')
        a.vmq.pop()
        a.label('Lno_nonce')
    issue_stage(1)
    assert not cfg.spf
    spf = None
    g2_scalars(a, 84, 85)
    a('s_mul_i32 s82, s10, 5120')
    a('s_add_u32 s82, s82, %d' % PA)
    a('s_mul_i32 s83, s10, %d' % QSZ)
    a('s_add_u32 s83, s83, %d' % QA)
    a('s_mul_i32 s88, s85, 48')
    a('s_mul_i32 s96, s10, 12')
    a('s_add_u32 s88, s88, s96')
    a('s_mul_i32 s0, s88, 5120')
    if cfg.rot2: rot_off(a, cfg, 95)
    else: a('s_mov_b32 s95, 0')
    a('s_lshl_b32 s88, s88, 2')
    a('s_add_u32 s88, s88, %d' % F_WD)
    a('s_mul_i32 s1, s10, 10240')
    a('v_lshlrev_b32 v241, 4, v1')
    a('v_add_u32 v245, 4096, v241')
    if not odd:
        a('s_cmp_ge_u32 s5, 20')
        a('s_cbranch_scc1 LtypeB')
    saved = (list(a.vmq), dict(stage_tok), list(a.hist), spf.next if spf else 0)
    tk = {}
    DROP = {1: ('kv_loads', 'wd_loads'), 2: ('f',), 4: ('ut_store', 'wd_part'), 8: ('y_clear',), 16: ('n_issue', 'n_get', 'd_issue')}
    dn = [n for b, ns in DROP.items() if cfg.drop & b for n in ns]
    class _T(dict):
        def __missing__(self, k): return -1
    tk = _T()
    def interval(i, slices, pre={}):
        slices = {k: [f for f in v if f.__name__ not in dn] for k, v in slices.items()}
        pre = {k: [f for f in v if f.__name__ not in dn] for k, v in pre.items()}
        if cfg.nine and i == 8: a.wait_vm(stage_tok[9])
        a.wait_vm(stage_tok[i])
        if a.lgq: a.wait_all_lg()
        if cfg.lstamp: prof.stamp(10 + i)
        if not (cfg.nine and i == 9): a('s_barrier')
        if cfg.lstamp: prof.stamp(20 + i)
        if spf: spf.upto(i + cfg.spf)
        for f in pre.get(i, []): f()
        if i + NSLOT - 1 < NSTAGE: issue_stage(i + NSLOT - 1)
        for f in slices.get(i, []): f()
    def n_issue():
        a('s_load_dword s%d, s[%d:%d], 0' % (NONCE, P_DBG, P_DBG + 1))
    def n_get():
        lo, ok = newlabel('Ln'), newlabel('Ln_ok')
        a.emit('s_waitcnt lgkmcnt(0)'); a.lgq = []
        a('s_cmp_lg_u32 s%d, 0' % NONCE)
        a('s_cbranch_scc1 %s' % ok)
        a('s_mov_b32 s94, %d' % cfg.spin)
        srd(a, 68, P_DBG, 256)
        a('v_mov_b32 v249, 0')
        a.label(lo)
        a('buffer_load_dword v%d, v249, s[68:71], 0 offen sc1' % VN)
        a.emit('s_waitcnt vmcnt(0)')
        a.vmq.pop()
        a('v_readfirstlane_b32 s%d, v%d' % (NONCE, VN))
        a('s_cmp_lg_u32 s%d, 0' % NONCE)
        a('s_cbranch_scc1 %s' % ok)
        a('s_sleep 8')
        a('s_sub_u32 s94, s94, 1')
        a('s_cmp_lg_u32 s94, 0')
        a('s_cbranch_scc1 %s' % lo)
        a.label(ok)
        a('s_nop 1')
        a('v_mov_b32 v%d, s%d' % (VN, NONCE))
        a('v_mov_b32 v9, %d' % (CNT + 32))
        a('ds_write_b32 v9, v%d' % VN)
    def flag_after(key, sreg):
        def f():
            a.wait_vm(tk[key])
            flag_store(a, sreg)
        return f
    def late_srds():
        srd(a, 48, P_WS, SZ_WD, WS_WD)
        srd(a, 52, P_WS, SZ_G, WS_G)
        srd(a, 64, P_WS, SZ_Y2, WS_Y2)
    def wdl_dma():
        for i in range(cfg.lsteps):
            kap(a, 97, 95, 12 - cfg.lsteps + i)
            a('s_mul_i32 s97, s97, 5120')
            a('s_add_u32 s97, s97, s0')
            a('s_add_u32 m0, s1, %d' % wblk(i))
            for dl in range(4):
                a('buffer_load_dwordx4 v241, s[48:51], s97 offen offset:%d sc1 lds' % (1024 * dl))
            a('s_add_u32 m0, s1, %d' % (wblk(i) + 4096))
            tk['wdl'] = a.emit('buffer_load_dwordx4 v245, s[48:51], s97 offen sc1 lds')
    def wdl_publish():
        if not cfg.lsteps: return
        a.wait_vm(tk['wdl'])
        lds_word(a, 10, 16, 236, 237)
    def q_loads():
        row_off(a, 238, 239, 84, 85, 10)
        for dl in range(5):
            a('buffer_load_dwordx2 %s, v238, s[44:47], 0 offen offset:%d' % (vr(QV + 2 * dl, 2), dl * 32))
    def tail_issue():
        if cfg.bclear:
            a('s_lshl_b32 s89, s85, 8')
            a('s_add_u32 s89, s89, %d' % F_YC)
            lane_min(a, 247, 48)
            tk['y1'] = poll_issue(a, 247, 's89', 239)
            return
        a('s_mul_i32 s89, s85, 320')
        a('s_add_u32 s89, s89, %d' % F_YC)
        a('v_lshlrev_b32 v247, 2, v1')
        lane_min(a, 240, 16)
        a('v_add_u32 v240, 256, v240')
        tk['y1'] = poll_issue(a, 247, 's89', 239)
        tk['y2'] = poll_issue(a, 240, 's89', 243)
    def tail_check():
        if not cfg.bclear: poll_wait(a, cfg, tk['y2'], 240, 's89', 243)
        poll_wait(a, cfg, tk['y1'], 247, 's89', 239)

    def type_a():
        KR, VR_, WR = 32, 60, 76
        srd(a, 56, P_K, SZ_X); srd(a, 60, P_V, SZ_X); srd(a, 64, P_SHK, 5120)
        a('s_cmp_ge_u32 s5, 10')
        a('s_cselect_b32 s76, 1, 0')
        a('s_cselect_b32 s77, 10, 0')
        a('s_sub_u32 s77, s5, s77')
        a('s_lshl_b32 s78, s4, 1')
        a('s_add_u32 s76, s76, s78')
        a('s_lshl_b32 s87, s77, 2')
        a('s_add_u32 s87, s87, s10')
        a('s_lshl_b32 s89, s87, 4')
        a('s_add_u32 s89, s89, s76')
        a('s_lshl_b32 s89, s89, 2')
        a('s_lshl_b32 s87, s87, 16')
        a('s_lshl_b32 s78, s76, 8')
        a('s_add_u32 s87, s87, s78')
        a('s_lshl_b32 s76, s76, 7')
        a('s_lshl_b32 s78, s10, 5')
        a('s_add_u32 s76, s76, s78')
        a('v_lshrrev_b32 v9, 3, v1')
        a('v_and_b32 v10, 7, v1')
        a('s_lshl_b32 s78, s10, 3')
        a('v_add_u32 v22, s78, v9')
        a('v_lshlrev_b32 v11, 1, v10')
        a('v_xor_b32 v22, v22, v11')
        a('v_lshlrev_b32 v22, 3, v22')
        a('v_lshl_add_u32 v22, v10, 11, v22')
        a('v_add_u32 v22, %d, v22' % PA)
        a('v_lshlrev_b32 v9, 2, v9')
        a('v_add_u32 v9, s76, v9')
        a('v_mul_u32_u24 v232, 1280, v9')
        a('v_lshl_add_u32 v232, v10, 4, v232')
        a('s_lshl_b32 s78, s77, 7')
        a('v_add_u32 v232, s78, v232')
        a('v_subrev_u32 v233, 3840, v232')
        a('v_subrev_u32 v234, 2560, v232')
        a('v_subrev_u32 v235, 1280, v232')
        a('s_lshl_b32 s78, s77, 9')
        a('v_lshlrev_b32 v236, 6, v10')
        a('v_add_u32 v236, s78, v236')
        a('s_mul_i32 s11, s4, 20')
        a('s_add_u32 s11, s11, s5')
        a('s_lshl_b32 s11, s11, 2')
        a('s_add_u32 s11, s11, s10')
        a('s_lshl_b32 s81, s11, 12')
        a('s_lshl_b32 s80, s11, 2')
        a('s_add_u32 s80, s80, %d' % F_YC)
        a('s_lshr_b32 s76, s11, 4')
        a('s_lshl_b32 s76, s76, 6')
        a('s_sub_u32 s77, s88, 64')
        a('v_min_u32 v240, %d, v1' % (31 if cfg.bclear else 27))
        a('v_lshlrev_b32 v240, 2, v240')
        a('v_mov_b32 v9, s76')
        a('v_mov_b32 v10, s77')
        if cfg.bclear:
            a('s_lshl_b32 s78, s5, 2')
            a('s_add_u32 s78, s78, s10')
            a('s_lshl_b32 s78, s78, 2')
            a('s_mul_i32 s78, s78, 9363')
            a('s_lshr_b32 s78, s78, 16')
            a('s_lshl_b32 s79, s4, 6')
            a('s_add_u32 s78, s78, s79')
            a('s_lshl_b32 s78, s78, 2')
            a('s_add_u32 s78, s78, %d' % (F_YC - 112))
            a('v_min_u32 v240, 29, v1')
            a('v_lshlrev_b32 v240, 2, v240')
            a('v_mov_b32 v11, s78')
            a('v_cmp_gt_u32 vcc, 28, v1')
            a('v_cndmask_b32 v10, v11, v10, vcc')
        a('v_cmp_gt_u32 vcc, 16, v1')
        a('v_cndmask_b32 v9, v10, v9, vcc')
        a('v_add_u32 v240, v240, v9')
        a('s_and_b32 s86, s11, 0xfffffffe')
        a('s_lshl_b32 s86, s86, 1')
        a('s_load_dword s86, s[26:27], s86')
        a('s_mov_b32 s87, s87')
        class _A:
            def __init__(self): self.l = []
            def __call__(self, t): self.l.append(t)
        rec = _A(); conv_setup(rec, cfg)
        for t in rec.l[:-4]: a(t)
        def d_fin():
            for t in rec.l[-4:]: a(t)
        def kv_loads():
            for i in range(4):
                a('buffer_load_dwordx4 %s, v232, s[56:59], 0 offen offset:%d' % (vr(KR + 12 + 4 * i, 4), 1280 * i))
            for i in range(4):
                a('buffer_load_dwordx4 %s, v232, s[60:63], 0 offen offset:%d' % (vr(VR_ + 4 * i, 4), 1280 * i))
            a('buffer_load_dwordx4 %s, v233, s[56:59], 0 offen' % vr(KR, 4))
            a('buffer_load_dwordx4 %s, v234, s[56:59], 0 offen' % vr(KR + 4, 4))
            a('buffer_load_dwordx4 %s, v235, s[56:59], 0 offen' % vr(KR + 8, 4))
            for i in range(4):
                tk['kv'] = a.emit('buffer_load_dwordx4 %s, v236, s[64:67], 0 offen offset:%d' % (vr(WR + 4 * i, 4), 16 * i))
        def ut_srd(): srd(a, 56, P_WS, SZ_UT, WS_UT)
        def kv_part(cp):
            def f():
                a.wait_vm(tk['kv'])
                U = 92
                for r in range(7):
                    unpack_lo(a, U + 2 * r, KR + 4 * r + cp); unpack_hi(a, U + 2 * r + 1, KR + 4 * r + cp)
                for r in range(4):
                    unpack_lo(a, U + 14 + 2 * r, VR_ + 4 * r + cp); unpack_hi(a, U + 15 + 2 * r, VR_ + 4 * r + cp)
                for h in range(2):
                    unpack_lo(a, U + 22 + h, WR + 4 * cp + 2 * h); unpack_hi(a, U + 24 + h, WR + 4 * cp + 2 * h)
                    unpack_lo(a, U + 26 + h, WR + 4 * cp + 2 * h + 1); unpack_hi(a, U + 28 + h, WR + 4 * cp + 2 * h + 1)
                AC = U + 30
                for i in range(8):
                    a('v_mul_f32 v%d, v%d, v%d' % (AC + i, U + i, U + 28 + (i & 1)))
                for tap in (2, 1, 0):
                    for i in range(8):
                        a('v_fmac_f32 v%d, v%d, v%d' % (AC + i, U + 2 * (3 - tap) + i, U + 22 + 2 * tap + (i & 1)))
                for i in range(8):
                    a('v_mul_f32 v%d, v%d, v%d' % (AC + i, AC + i, U + 14 + i))
                O = 24 + (cp & 1) * 4
                for h in range(2):
                    a('v_cvt_pk_bf16_f32 v%d, v%d, v%d' % (O + 2 * h, AC + h, AC + 2 + h))
                    a('v_cvt_pk_bf16_f32 v%d, v%d, v%d' % (O + 2 * h + 1, AC + 4 + h, AC + 6 + h))
                for h in range(2):
                    a('ds_write_b64 v22, %s offset:%d' % (vr(O + 2 * h, 2), 256 * (2 * cp + h)))
            return f
        def ut_store():
            a('v_lshrrev_b32 v9, 4, v1')
            a('v_and_b32 v10, 15, v1')
            a('v_lshlrev_b32 v11, 12, v9')
            a('v_lshl_add_u32 v11, v10, 4, v11')
            a('s_lshl_b32 s76, s10, 1')
            a('s_lshl_b32 s77, s10, 12')
            a('s_add_u32 s77, s77, %d' % PA)
            for hh in range(2):
                a('s_add_u32 s78, s76, %d' % hh)
                a('v_xor_b32 v12, s78, v10')
                a('v_lshlrev_b32 v12, 4, v12')
                a('v_lshl_add_u32 v12, v9, 8, v12')
                a('v_add_u32 v%d, s77, v12' % (24 + hh))
            tl = [a.emit('ds_read_b128 %s, v%d offset:%d' % (vr(40 + 4 * i, 4), 24 + (i >> 1), 1024 * i)) for i in range(4)]
            for i in range(4):
                a.wait_lg(tl[i])
                a('s_add_u32 s76, s87, %d' % (16384 * i))
                tk['ut'] = a.emit('buffer_store_dwordx4 %s, v11, s[56:59], s76 offen sc1' % vr(40 + 4 * i, 4))
        def d_issue():
            a('s_and_b32 s86, s11, 0xfffffffe')
            a('s_lshl_b32 s86, s86, 1')
            a('s_load_dword s86, s[26:27], s86')
        def y_clear():
            srd(a, 64, P_WS, SZ_Y2, WS_Y2)
            for i in range(4): a('v_mov_b32 v%d, -1' % (232 + i))
            for i in range(4):
                tk['yc'] = a.emit('buffer_store_dwordx4 v[232:235], v241, s[64:67], s81 offen offset:%d sc1' % (1024 * i))
        def p_dma():
            srd(a, 60, P_SSMK, SZ_X)
            a('v_bfe_u32 v9, v1, 4, 1')
            a('v_lshlrev_b32 v9, 1, v9')
            a('v_xor_b32 v9, v9, v1')
            a('v_lshlrev_b32 v9, 4, v9')
            a('s_add_u32 m0, s82, 512')
            for i in range(4):
                a('buffer_load_dwordx4 v9, s[60:63], s81 offen offset:%d lds' % (1024 * i))
        def pads():
            for i in range(4): a('v_mov_b32 v%d, 0' % (32 + i))
            a('v_and_b32 v10, 31, v1')
            a('v_lshlrev_b32 v10, 4, v10')
            a('v_add_u32 v10, s82, v10')
            a('ds_write_b128 v10, v[32:35]')
            a('v_and_b32 v10, 3, v1')
            a('v_lshlrev_b32 v10, 4, v10')
            a('v_add_u32 v10, s83, v10')
            a('ds_write_b128 v10, v[32:35]')
        K = cfg.kv_at
        if cfg.early:
            slA = {1: [kv_part(1)], 2: [kv_part(3), n_issue], 3: [ut_srd, ut_store], 5: [flag_after('ut', 's89')], 7: [late_srds]}
        else:
            slA = {K: [kv_loads], K + 2: [kv_part(1)], K + 3: [kv_part(3), n_issue], K + 4: [ut_srd, ut_store], cfg.utf_at: [flag_after('ut', 's89')],
                   7: [late_srds]}
        slA.setdefault(8 if cfg.ungate else 7, [])
        fpoll = lambda: tk.__setitem__('f', poll_issue(a, 240, '0', 243))
        def q_dma():
            poll_wait(a, cfg, tk['f'], 240, '0', 243, sleep=cfg.fsleep)
            a('s_add_u32 m0, s83, 64')
            for i in range(4):
                tk['q'] = a.emit('buffer_load_dwordx4 v241, s[56:59], s81 offen offset:%d sc1 lds' % (1024 * i))
            lds_word(a, 10, 48, 236, 237)
        slA[8] = [p_dma] + ([fpoll] if cfg.ungate else [q_dma])
        if not cfg.ungate:
            if cfg.pollpre8: slA[8].insert(0, fpoll)
            else: slA[7].append(fpoll)
        if not (cfg.cclear or cfg.bclear or cfg.yflag):
            slA.setdefault(cfg.late, []).append(y_clear)
            slA[cfg.late + 2].insert(0, flag_after('yc', 's80'))
        if cfg.kvfirst:
            kv_loads(); slA[0] = []
        prA = {K + 2: [kv_part(0)], K + 3: [kv_part(2)], 5: [n_get, d_fin], 6 + K: [pads]}
        if cfg.early:
            kv_loads()
            prA = {1: [kv_part(0)], 2: [kv_part(2)], 4: [n_get, d_fin], 6: [pads]}
        assert K <= 1
        for i in range(NSTAGE): interval(i, slA, prA)
        if cfg.ungate: q_dma()
        if not cfg.quiet:
            wdl_dma()
            q_loads()
            tail_issue()
        a('s_setprio %d' % cfg.vprio)
        a.wait_vm(tk['q'])
        gen = conv_main(a, cfg, prof)
        if not cfg.quiet:
            for _ in range(cfg.pub_at): next(gen)
            wdl_publish()
        for _ in gen: pass
        if cfg.yflag:
            q_loads()
            a.emit('s_waitcnt vmcnt(5)')
            flag_store(a, 's80')
        else:
            if cfg.quiet:
                q_loads()
                tail_issue()
            tail_check()
        a('s_setprio 0')
        a('s_branch Lfetch')

    if not odd: type_a()

    a.vmq, a.hist = list(saved[0]), list(saved[2])
    stage_tok.clear(); stage_tok.update(saved[1])
    if spf: spf.next = saved[3]
    a.lgq = []
    if not odd: a.label('LtypeB')
    srd(a, 56, P_WD, SZ_W)
    srd(a, 68, P_GW, 1280)
    a('s_mul_i32 s78, s4, 12')
    a('s_add_u32 s78, s78, s5')
    a('s_sub_u32 s78, s78, 20')
    a('s_lshl_b32 s78, s78, 2')
    a('s_add_u32 s78, s78, s10')
    a('s_lshr_b32 s79, s78, 3')
    a('s_and_b32 s78, s78, 7')
    a('s_mul_i32 s89, s78, 48')
    a('s_add_u32 s89, s89, s79')
    a('s_lshl_b32 s89, s89, 2')
    a('s_add_u32 s89, s89, %d' % F_WD)
    a('s_mul_i32 s80, s79, 40960')
    a('s_mul_i32 s77, s78, 160')
    a('s_add_u32 s80, s80, s77')
    a('s_mul_i32 s81, s78, 245760')
    a('s_mul_i32 s77, s79, 5120')
    a('s_add_u32 s81, s81, s77')
    lane_min(a, 240, 12)
    def wd_loads():
        for i in range(5):
            a('v_add_u32 v9, %d, v1' % (64 * i))
            a('v_mul_u32_u24 v10, 6554, v9')
            a('v_lshrrev_b32 v10, 16, v10')
            a('v_mul_u32_u24 v11, 10, v10')
            a('v_sub_u32 v11, v9, v11')
            a('v_mul_u32_u24 v10, 1280, v10')
            a('v_lshl_add_u32 v10, v11, 4, v10')
            a('s_add_u32 m0, s82, %d' % (1024 * i))
            tk['wd'] = a.emit('buffer_load_dwordx4 v10, s[56:59], s80 offen lds')
    def wd_part():
        a('v_lshrrev_b32 v9, 5, v1')
        a('v_lshlrev_b32 v9, 4, v9')
        a('v_bfe_u32 v10, v1, 2, 3')
        a('v_add_u32 v9, v9, v10')
        a('v_mul_u32_u24 v9, 160, v9')
        a('v_and_b32 v10, 3, v1')
        a('v_lshl_add_u32 v9, v10, 3, v9')
        a('v_add_u32 v9, s82, v9')
        srd(a, 60, P_WS, SZ_WD, WS_WD)
        a('s_add_u32 s80, s81, 4096')
        a.wait_vm(tk['wd'])
        for dl in range(5):
            for t in range(2):
                a('ds_read_b64_tr_b16 v[%d:%d], v9 offset:%d' % (32 + 4 * dl + 2 * t, 33 + 4 * dl + 2 * t, t * 1280 + dl * 32))
        a.wait_all_lg()
        for dl in range(4):
            a('buffer_store_dwordx4 %s, v241, s[60:63], s81 offen offset:%d sc1' % (vr(32 + 4 * dl, 4), 1024 * dl))
        tk['wds'] = a.emit('buffer_store_dwordx4 %s, v241, s[60:63], s80 offen sc1' % vr(48, 4))
    GX, GW = 56, 104
    gtk = []
    def g_loads():
        srd(a, 56, P_GW, 1280)
        a('s_sub_u32 s76, s5, 20')
        a('s_lshl_b32 s76, s76, 2')
        a('s_add_u32 s76, s76, s10')
        a('s_cmp_ge_u32 s76, 32')
        a('s_cselect_b32 s86, 0x%x, 0' % FAR)
        a('s_and_b32 s77, s4, 1')
        a('s_lshl_b32 s77, s77, 2')
        a('s_lshr_b32 s78, s76, 3')
        a('s_add_u32 s77, s77, s78')
        a('s_and_b32 s76, s76, 7')
        a('s_lshl_b32 s78, s6, 9')
        a('s_lshl_b32 s79, s77, 3')
        a('s_add_u32 s78, s78, s79')
        a('s_add_u32 s78, s78, s76')
        a('s_mul_i32 s78, s78, 1280')
        a('s_or_b32 s78, s78, s86')
        a('v_lshrrev_b32 v9, 5, v1')
        a('v_and_b32 v10, 31, v1')
        a('v_lshlrev_b32 v11, 4, v10')
        a('s_mov_b32 s79, 81920')
        a('v_mul_lo_u32 v12, v9, s79')
        a('v_add_u32 v12, v12, v11')
        a('v_cmp_gt_u32 vcc, 16, v10')
        a('v_mov_b32 v15, 0x%x' % OOB)
        a('v_cndmask_b32 v13, v15, v12, vcc')
        for i in range(3):
            a('buffer_load_dwordx4 %s, v11, s[56:59], 0 offen offset:%d' % (vr(GW + 4 * i, 4), 512 * i))
        for p in range(4):
            a('buffer_load_dwordx4 %s, v12, s[44:47], s78 offen' % vr(GX + 12 * p, 4))
            a('buffer_load_dwordx4 %s, v12, s[44:47], s78 offen offset:512' % vr(GX + 12 * p + 4, 4))
            gtk.append(a.emit('buffer_load_dwordx4 %s, v13, s[44:47], s78 offen offset:1024' % vr(GX + 12 * p + 8, 4)))
            a('s_add_u32 s78, s78, 163840')
        a('s_lshl_b32 s78, s6, 3')
        a('s_add_u32 s78, s78, s77')
        a('s_lshl_b32 s78, s78, 3')
        a('s_add_u32 s78, s78, s76')
        a('s_lshl_b32 s80, s78, 6')
        a('s_or_b32 s80, s80, s86')
        a('v_lshlrev_b32 v14, 3, v9')
        a('v_cmp_eq_u32 vcc, 31, v10')
        a('v_cndmask_b32 v14, v15, v14, vcc')
    def g_compute():
        for p in range(4):
            a.wait_vm(gtk[p])
            a('v_mov_b32 v%d, 0' % (24 + p))
            for i in range(12):
                a('v_dot2_f32_bf16 v%d, v%d, v%d, v%d' % (24 + p, GX + 12 * p + i, GW + i, 24 + p))
        a('s_nop 2')
        for sh in (1, 2, 4, 8):
            for p in range(4):
                a('v_add_f32_dpp v%d, v%d, v%d row_shr:%d row_mask:0xf bank_mask:0xf bound_ctrl:0' % (24 + p, 24 + p, 24 + p, sh))
        for p in range(4):
            a('v_add_f32_dpp v%d, v%d, v%d row_bcast:15 row_mask:0xa bank_mask:0xf' % (24 + p, 24 + p, 24 + p))
        for p in range(4):
            r = 24 + p
            a('v_cvt_pk_bf16_f32 v%d, v%d, v%d' % (r, r, r))
            a('v_and_b32 v%d, 0xffff0000, v%d' % (r, r))
            a('v_mul_f32 v%d, 0xbfb8aa3b, v%d' % (r, r))
            a('v_exp_f32 v%d, v%d' % (r, r))
            a('v_add_f32 v%d, 1.0, v%d' % (r, r))
            a('v_rcp_f32 v%d, v%d' % (r, r))
            a('v_cvt_pk_bf16_f32 v%d, v%d, v%d' % (r, r, r))
            a('v_and_b32 v%d, 0xffff0000, v%d' % (29 + 2 * p, r))
            a('v_mov_b32 v%d, v%d' % (28 + 2 * p, VN))
            a('buffer_store_dwordx2 v[%d:%d], v14, s[52:55], s80 offen offset:%d sc1' % (28 + 2 * p, 29 + 2 * p, 16 * p))
    def b_clear():
        srd(a, 64, P_WS, SZ_Y2, WS_Y2)
        a('s_sub_u32 s76, s5, 20')
        a('s_lshl_b32 s76, s76, 2')
        a('s_add_u32 s76, s76, s10')
        a('s_lshl_b32 s77, s4, 6')
        a('s_add_u32 s87, s76, s77')
        a('s_lshl_b32 s87, s87, 2')
        a('s_add_u32 s87, s87, %d' % F_YC)
        a('s_mul_i32 s76, s76, 7')
        for i in range(4): a('v_mov_b32 v%d, -1' % (232 + i))
        for i in range(7):
            a('s_add_u32 s77, s76, %d' % i)
            a('s_cmp_ge_u32 s77, 320')
            a('s_cselect_b32 s78, 0x%x, 0' % FAR)
            a('s_lshl_b32 s77, s77, 10')
            a('s_mul_i32 s79, s4, 327680')
            a('s_add_u32 s77, s77, s79')
            a('s_or_b32 s77, s77, s78')
            tk['yc'] = a.emit('buffer_store_dwordx4 v[232:235], v241, s[64:67], s77 offen sc1')
    W = cfg.wd_at
    slB = {}
    for i, f in ((W, wd_loads), (W + 2, wd_part), (1, n_issue), (W + cfg.wdf_d, flag_after('wds', 's89')), (7, late_srds)):
        slB.setdefault(i, []).append(f)
    def wd_touch_issue():
        a('s_and_b32 s76, s4, 1')
        a('s_mul_i32 s79, s76, 768')
        a('s_add_u32 s79, s79, %d' % F_WD)
        a('v_lshlrev_b32 v16, 2, v1')
        a('v_add_u32 v17, 256, v16')
        a('v_add_u32 v18, 512, v16')
        tk['wt'] = [poll_issue(a, 16 + i, 's79', 19 + i) for i in range(3)]
    def wd_touch():
        for i in range(3): poll_wait(a, cfg, tk['wt'][i], 16 + i, 's79', 19 + i)
        a('s_sub_u32 s77, s5, 20')
        a('s_lshl_b32 s77, s77, 2')
        a('s_add_u32 s77, s77, s10')
        a('s_mul_i32 s77, s77, 20480')
        a('s_and_b32 s76, s4, 1')
        a('s_mul_i32 s76, s76, 983040')
        a('s_add_u32 s76, s76, s77')
        a('v_lshlrev_b32 v16, 7, v1')
        a('v_add_u32 v17, 8192, v16')
        a('v_add_u32 v18, 16384, v16')
        a('v_cmp_gt_u32 vcc, 32, v1')
        a('v_mov_b32 v19, 0x%x' % OOB)
        a('v_cndmask_b32 v18, v19, v18, vcc')
        for i in range(3):
            a('buffer_load_dword v252, v%d, s[48:51], s76 offen sc1' % (16 + i))
    fpollB = lambda: tk.__setitem__('f', poll_issue(a, 240, 's88', 243))
    fwaitB = lambda: (poll_wait(a, cfg, tk['f'], 240, 's88', 243), lds_word(a, 10, 48, 236, 237))
    if cfg.ungate: slB[8] = [fpollB]
    elif cfg.pollpre8: slB[8] = [fpollB, g_loads, fwaitB]
    else: slB[7].append(fpollB); slB[8] = [g_loads, fwaitB]
    if cfg.cotouch == 1:
        slB[7].append(wd_touch_issue); slB[8].insert(0, wd_touch)
    if cfg.cotouch >= 2:
        slB[8].insert(0, wd_touch_issue)
    if cfg.cotouch == 3:
        slB[8].remove(g_loads)
    if cfg.bclear:
        slB.setdefault(cfg.clr_at, []).append(b_clear)
        slB.setdefault(max(cfg.clr_at + 2, 3), []).append(flag_after('yc', 's87'))
    for i in range(NSTAGE): interval(i, slB, {3: [n_get]})
    if cfg.ungate:
        fwaitB(); g_loads()
    wdl_dma()
    if cfg.cotouch >= 2: wd_touch()
    if cfg.cotouch == 3: g_loads()
    g_compute()
    q_loads()
    if not cfg.yflag: tail_issue()
    a('s_setprio 0')
    wdl_publish()
    lds_word_wait(a, cfg, 10, 0, 236, 237, 'Ldummy') if False else None
    if not cfg.yflag: tail_check()
    if not odd:
        a('s_branch Lfetch')
        return
    a.pad()
    a.label('Lfetch')
    a.reset_queues()
    a('s_mul_i32 s11, s85, 327680')
    a('s_lshr_b32 s12, s84, 3')
    a('s_lshl_b32 s12, s12, 10')
    a('s_add_u32 s11, s11, s12')
    a('s_and_b32 s12, s84, 7')
    a('s_lshl_b32 s12, s12, 7')
    a('s_add_u32 s11, s11, s12')
    a('s_lshl_b32 s12, s10, 5')
    a('s_add_u32 s11, s11, s12')
    a('v_lshrrev_b32 v24, 1, v1')
    a('v_lshlrev_b32 v24, 12, v24')
    a('v_and_b32 v25, 1, v1')
    a('v_lshl_add_u32 v24, v25, 4, v24')
    a('v_add_u32 v25, 0x20000, v24')
    a('v_add_u32 v26, 0x40000, v24')
    a('v_cmp_gt_u32 vcc, 32, v1')
    a('v_mov_b32 v27, 0x%x' % OOB)
    a('v_cndmask_b32 v26, v27, v26, vcc')
    a('v_lshlrev_b32 v28, 2, v1')
    a('s_add_u32 s12, s83, 3072')
    a('v_add_u32 v28, s12, v28')
    a('v_add_u32 v29, s83, v241')
    a('v_lshlrev_b32 v30, 3, v1')
    a('v_add_u32 v30, s83, v30')
    a('v_add_u32 v31, s82, v241')
    a('s_lshl_b32 s96, s84, 6')
    a('s_lshl_b32 s97, s10, 4')
    a('s_add_u32 s96, s96, s97')
    a('v_and_b32 v33, 15, v1')
    a('v_add_u32 v33, s96, v33')
    a('v_lshlrev_b32 v33, 3, v33')
    lds_word_wait(a, cfg, 10, 64, 236, 237, 'Lgate2', sleep=cfg.gsleep)
    if cfg.yflag:
        tail_issue(); tail_check()
    prof.stamp(6)
    YV = 40
    lo, ok = newlabel('Ly'), newlabel('Ly_ok')
    a('s_mov_b32 s94, %d' % cfg.spin)
    a.label(lo)
    for i in range(3):
        a('buffer_load_dwordx4 %s, v%d, s[64:67], s11 offen sc1' % (vr(YV + 4 * i, 4), 24 + i))
    a('buffer_load_dwordx2 v[34:35], v33, s[52:55], 0 offen sc1')
    a.wait_all_vm()
    a('v_max3_u32 v27, v%d, v%d, v%d' % (YV, YV + 1, YV + 2))
    for i in range(3, 11, 2):
        a('v_max3_u32 v27, v27, v%d, v%d' % (YV + i, YV + i + 1))
    a('v_max_u32 v27, v27, v%d' % (YV + 11))
    a('v_cmp_eq_u32 vcc, -1, v27')
    a('v_cmp_ne_u32 s[96:97], s%d, v34' % NONCE)
    a('s_or_b64 vcc, vcc, s[96:97]')
    a('s_cbranch_scc0 %s' % ok)
    a('s_sleep %d' % cfg.ysleep)
    a('s_sub_u32 s94, s94, 1')
    a('s_cmp_lg_u32 s94, 0')
    a('s_cbranch_scc1 %s' % lo)
    a.label(ok)
    prof.stamp(7)
    a('v_mov_b32 v%d, v35' % GV)
    a('ds_write_b128 v29, %s' % vr(YV, 4))
    a('ds_write_b128 v29, %s offset:1024' % vr(YV + 4, 4))
    a('ds_write_b128 v29, %s offset:2048' % vr(YV + 8, 4))
    a('v_sub_f32 v32, 1.0, v%d' % GV)
    a('v_cvt_pk_bf16_f32 v32, v32, v32')
    a('v_and_b32 v32, 0xffff0000, v32')
    a('ds_write_b32 v28, v32')
    for dl in range(5):
        x = 72 + 4 * dl
        unpack_lo(a, x, QV + 2 * dl); unpack_hi(a, x + 1, QV + 2 * dl); unpack_lo(a, x + 2, QV + 2 * dl + 1); unpack_hi(a, x + 3, QV + 2 * dl + 1)
        for i in range(4): a('v_mul_f32 v%d, v%d, v%d' % (x + i, GV, x + i))
    a.wait_all_lg()
    tl = [a.emit('ds_read_b64_tr_b16 %s, v30 offset:%d' % (vr(56 + 2 * dl, 2), dl * 512)) for dl in range(5)]
    for dl in range(5):
        a.wait_lg(tl[dl])
        x = 72 + 4 * dl; y = 96
        unpack_lo(a, y, 56 + 2 * dl); unpack_hi(a, y + 1, 56 + 2 * dl); unpack_lo(a, y + 2, 57 + 2 * dl); unpack_hi(a, y + 3, 57 + 2 * dl)
        for i in range(4): a('v_mul_f32 v%d, v%d, v%d' % (x + i, x + i, y + i))
        a('ds_write_b128 v31, %s offset:%d' % (vr(x, 4), dl * 1024))
    a.wait_all_lg()
    a('s_barrier')
    prof.stamp(8)
    prof.flush(243)

def generate(cfg):
    if cfg.yflag: cfg.bclear = 0; cfg.cclear = 0
    LOCAL[0] = cfg.local
    a = Asm()
    a.raw('.amdgcn_target "amdgcn-amd-amdhsa--gfx950"')
    a.raw('.text')
    kn = NAME + '_kernel'
    kernel_header(a, kn)
    prof = Prof(a, cfg, 0)
    prof.start()
    a('s_cmp_ge_u32 s2, 256')
    a('s_cbranch_scc1 Ldone')
    a('s_load_dwordx2 s[44:45], s[0:1], 0')
    a('s_load_dwordx2 s[48:49], s[0:1], 56')
    a('s_load_dwordx2 s[52:53], s[0:1], 64')
    a('s_load_dwordx8 s[16:23], s[0:1], 0')
    a('s_load_dwordx4 s[24:27], s[0:1], 32')
    a('s_load_dwordx8 s[32:39], s[0:1], 64')
    a('s_load_dwordx4 s[40:43], s[0:1], 96')
    if cfg.cpf:
        a('s_getpc_b64 s[60:61]')
        a.label('Lpc')
        a('s_sub_u32 s60, s60, (Lpc - %s)' % kn)
        a('s_subb_u32 s61, s61, 0')
        a('s_mov_b32 s62, CODE_END - %s' % kn)
        a('s_mov_b32 s63, 0x00020000')
        a('v_lshrrev_b32 v253, 6, v0')
        a('s_and_b32 s59, s2, 0xf8')
        a('v_add_u32 v253, s59, v253')
        a('v_mul_u32_u24 v253, %d, v253' % cfg.cpf)
        a('v_and_b32 v254, 63, v0')
        a('v_add_u32 v253, v253, v254')
        a('v_lshlrev_b32 v253, 7, v253')
        a('v_cmp_gt_u32 vcc, %d, v254' % cfg.cpf)
        a('v_mov_b32 v254, 0x%x' % OOB)
        a('v_cndmask_b32 v253, v254, v253, vcc')
        a('buffer_load_dword v254, v253, s[60:63], 0 offen')
        a.vmq.pop()
    a('v_lshrrev_b32 v2, 6, v0')
    a('v_and_b32 v1, 63, v0')
    a('v_readfirstlane_b32 s3, v2')
    a('s_and_b32 s4, s2, 7')
    a('s_lshr_b32 s5, s2, 3')
    a('s_lshr_b32 s6, s4, 1')
    a('s_mul_i32 s9, s5, 13108')
    a('s_lshr_b32 s9, s9, 16')
    a('s_mul_i32 s7, s9, 5')
    a('s_sub_u32 s7, s5, s7')
    a('s_and_b32 s8, s4, 1')
    a('s_mul_i32 s10, s8, 5')
    a('s_add_u32 s7, s7, s10')
    a('s_lshl_b32 s10, s8, 1')
    a('s_mul_i32 s8, s6, 6')
    a('s_add_u32 s8, s8, s9')
    a('s_lshl_b32 s11, s6, 2')
    a('s_add_u32 s10, s10, s11')
    a('s_add_u32 s10, s10, s5')
    a('s_sub_u32 s10, s10, 30')
    a('s_cmp_ge_u32 s5, 30')
    a('s_cselect_b32 s8, s10, s8')
    a('s_cselect_b32 s7, 15, s7')
    a('s_cmp_lt_u32 s3, 4')
    a('s_cbranch_scc1 Lcwave')
    h0 = list(a.hist)
    l_wave(a, cfg, prof)
    a.label('Ldone')
    a('s_endpgm')
    a.hist = h0; a.reset_queues()
    a.label('Lcwave')
    c_wave(a, cfg, prof)
    a.raw('CODE_END:')
    hdr = open('cdna_kernels/%s.s.ref' % NAME).read().split('; Override launch')[0]
    hdr += """; Generated by my own generator script (dev/gen11.py). One fused launch, 256 workgroups x 8 waves, one per CU.
"""
    hdr += '; @launch grid=(256,1,1) block=(512,1,1) lds=%d\n' % LDS
    return hdr + a.text() + kernel_desc(kn, 256)

if __name__ == '__main__':
    cfg = Cfg()
    out = sys.argv[1]
    for kv in sys.argv[2:]:
        k, v = kv.split('=')
        assert hasattr(cfg, k), k
        setattr(cfg, k, int(v))
    open(out, 'w').write(generate(cfg))
```

```python
import sys
from asmlib import *
from gen2 import (NAME, WS_H, SZ_H, WS_WD, SZ_WD, WS_UT, SZ_UT, WS_Y2, SZ_Y2, WS_G, SZ_G, WS_PROF, SZ_X, SZ_W, OOB,
                  P_Q, P_K, P_V, P_SHK, P_SSMK, P_SSMD, P_BX, P_WG, P_WU, P_WD, P_GW, P_OUT, P_DBG, P_WS,
                  load_kernargs, srd, Prof, kernel_header, kernel_desc, unpack_lo, unpack_hi, P2, u32)
import gen8
from gen8 import (newlabel, row_off, conv_setup, conv_main, FAR, QV, GV, SF, NONCE, VZ, VN, flag_store, poll_issue, poll_wait,
                  lane_min, lds_spin)

SZ_G = 16384
WS_F = WS_G + SZ_G
F_UT, F_H, F_WD, F_G, F_YC = 0, 2560, 14848, 16384, 17408
SZ_F = 19968

class Cfg:
    prof = 0
    lstamp = 1
    spin = 200000
    g1prio = 0
    cprio = 2
    lprio = 2
    vprio = 1
    ysleep = 8
    hsleep = 2
    nb = 4
    pub_at = 24
    local = 0
    dstore = 0
    ygate = 3
    late = 5
    kvfirst = 0
    rot2 = 0
    ungate = 0
    na = 4
    clr_at = 0
    gsleep = 6
    cpfc = 0
    loop1 = 0
    cpf = 2
    pre_ack = 2
    ptouch = 0
    utf_at = 5
    wdf_d = 3
    fsleep = 4
    pollpre8 = 1
    alt = 0
    yflag = 0
    grp = 0
    spf = 0
    spfx = 8
    cotouch = 0
    pollat = 99
    quiet = 1
    fin = 1
    areg = 4
    nine = 0
    early = 0
    bclear = 1
    xrot = 1
    kv_at = 0
    wd_at = 1
    cclear = 0
    drop = 0
    lsteps = 0
    c0 = 1

SLOT = 41088
OFF_GATE, OFF_UP = 16384, 16384 + 12320
NSTAGE, NSLOT = 10, 3
PA = NSLOT * SLOT
QA = PA + 4 * 5120
QSZ = 4224
CNT = QA + 4 * QSZ
LDS = CNT + 128
def wblk(i): return [SLOT, SLOT + 5120, 2 * SLOT, 2 * SLOT + 5120, 0, 5120][i]

def wave_common(a):
    srd(a, SF, P_WS, SZ_F, WS_F)
    a('v_cmp_eq_u32 vcc, 0, v1')
    a('v_mov_b32 v%d, 0x%x' % (VZ, OOB))
    a('v_cndmask_b32 v%d, v%d, 0, vcc' % (VZ, VZ))

LOCAL = [0]
def g2_scalars(a, st, dt):
    if not LOCAL[0]: return gen8.g2_scalars(a, st, dt)
    a('s_lshl_b32 s%d, s4, 2' % st)
    a('s_and_b32 s%d, s5, 3' % dt)
    a('s_add_u32 s%d, s%d, s%d' % (st, st, dt))
    a('s_lshr_b32 s%d, s5, 2' % dt)

def rot_off(a, cfg, d):
    if cfg.rot2 == 1:
        a('s_and_b32 s%d, s85, 3' % d)
        a('s_mul_i32 s%d, s%d, 6' % (d, d))
        a('s_and_b32 s96, s84, 7')
        a('s_mul_i32 s96, s96, 3')
        a('s_add_u32 s%d, s%d, s96' % (d, d))
        a('s_lshr_b32 s%d, s%d, 1' % (d, d))
    elif cfg.rot2 == 3:
        a('s_and_b32 s%d, s84, 7' % d)
        a('s_mul_i32 s%d, s%d, 3' % (d, d))
        a('s_lshr_b32 s%d, s%d, 1' % (d, d))
    else:
        a('s_and_b32 s%d, s85, 3' % d)
        a('s_mul_i32 s%d, s%d, 3' % (d, d))
    a('s_cmp_ge_u32 s%d, 12' % d)
    a('s_cselect_b32 s96, 12, 0')
    a('s_sub_u32 s%d, s%d, s96' % (d, d))
def kap(a, d, off, k):
    a('s_add_u32 s%d, s%d, %d' % (d, off, k))
    a('s_cmp_ge_u32 s%d, 12' % d)
    a('s_cselect_b32 s96, 12, 0')
    a('s_sub_u32 s%d, s%d, s96' % (d, d))

def lds_word(a, sw, off, t0, t1):
    a('s_lshl_b32 s96, s%d, 2' % sw)
    a('s_add_u32 s96, s96, %d' % (CNT + off))
    a('v_mov_b32 v%d, s96' % t0)
    a('v_mov_b32 v%d, 1' % t1)
    a('ds_write_b32 v%d, v%d' % (t0, t1))
def lds_word_wait(a, cfg, sw, off, t0, t1, name, sleep=1):
    a('s_lshl_b32 s96, s%d, 2' % sw)
    a('s_add_u32 s96, s96, %d' % (CNT + off))
    a('v_mov_b32 v%d, s96' % t0)
    lds_spin(a, cfg, t0, t1, 96, 'eq', 1, name, sleep)

def c_setup_odd(a):
    a('s_and_b32 s10, s3, 1')
    a('s_lshr_b32 s11, s3, 1')
    a('v_and_b32 v2, 31, v1')
    a('v_lshrrev_b32 v3, 5, v1')
    a('v_lshrrev_b32 v9, 1, v2')
    a('v_and_b32 v9, 7, v9')
    a('v_xor_b32 v9, v9, v3')
    a('v_lshlrev_b32 v9, 4, v9')
    a('v_lshl_add_u32 v9, v2, 7, v9')
    a('s_lshl_b32 s12, s11, 13')
    a('v_add_u32 v4, s12, v9')
    a('v_xor_b32 v5, 32, v4')
    a('v_xor_b32 v6, 64, v4')
    a('v_xor_b32 v7, 96, v4')
    a('v_bfe_u32 v9, v1, 4, 1')
    a('v_mul_u32_u24 v8, 12320, v9')
    a('v_bfe_u32 v9, v1, 2, 2')
    a('v_lshl_add_u32 v9, v3, 3, v9')
    a('v_mul_u32_u24 v9, 192, v9')
    a('v_add_u32 v8, v8, v9')
    a('v_and_b32 v9, 3, v1')
    a('v_lshl_add_u32 v8, v9, 3, v8')
    a('s_mul_i32 s12, s10, 96')
    a('s_add_u32 s12, s12, %d' % OFF_GATE)
    a('v_add_u32 v8, s12, v8')
    a('v_lshrrev_b32 v9, 4, v2')
    a('v_lshlrev_b32 v10, 10, v9')
    a('v_lshl_add_u32 v10, v3, 8, v10')
    a('v_and_b32 v9, 15, v2')
    a('v_lshl_add_u32 v10, v9, 4, v10')
    a('s_lshl_b32 s12, s7, 1')
    a('s_add_u32 s12, s12, s11')
    a('s_mul_i32 s13, s8, 6')
    a('s_mul_i32 s14, s10, 3')
    a('s_add_u32 s13, s13, s14')
    a('s_mul_i32 s79, s12, 96')
    a('s_add_u32 s79, s79, s13')
    a('s_lshl_b32 s79, s79, 2')
    a('s_add_u32 s79, s79, %d' % F_H)
    a('s_mul_i32 s12, s12, 196608')
    for tt in range(3):
        a('s_add_u32 s14, s13, %d' % tt)
        a('s_lshr_b32 s15, s14, 1')
        a('s_lshl_b32 s15, s15, 12')
        a('s_and_b32 s14, s14, 1')
        a('s_lshl_b32 s14, s14, 9')
        a('s_add_u32 s14, s14, s15')
        a('s_add_u32 s%d, s14, s12' % (76 + tt))
    a('v_lshlrev_b32 v249, 2, v1')
    a('v_add_u32 v249, s79, v249')
    a('v_cmp_gt_u32 vcc, 3, v1')
    a('v_mov_b32 v9, 0x%x' % OOB)
    a('v_cndmask_b32 v249, v9, v249, vcc')

def c_setup_main(a):
    a('s_and_b32 s10, s3, 1')
    a('s_lshr_b32 s11, s3, 1')
    a('v_and_b32 v2, 31, v1')
    a('v_lshrrev_b32 v3, 5, v1')
    a('v_lshrrev_b32 v9, 1, v2')
    a('v_and_b32 v9, 7, v9')
    a('v_xor_b32 v9, v9, v3')
    a('v_lshlrev_b32 v9, 4, v9')
    a('v_lshl_add_u32 v9, v2, 7, v9')
    a('s_mul_i32 s12, s11, 12288')
    a('v_add_u32 v4, s12, v9')
    a('v_xor_b32 v5, 32, v4')
    a('v_xor_b32 v6, 64, v4')
    a('v_xor_b32 v7, 96, v4')
    a('v_bfe_u32 v9, v1, 4, 1')
    a('v_bfe_u32 v11, v1, 2, 2')
    a('v_lshl_add_u32 v8, v3, 3, v11')
    a('v_lshlrev_b32 v8, 7, v8')
    a('v_lshl_add_u32 v8, v9, 13, v8')
    a('v_xor_b32 v9, s10, v9')
    a('v_lshl_add_u32 v8, v9, 6, v8')
    a('v_lshrrev_b32 v11, 1, v11')
    a('v_lshl_add_u32 v8, v11, 5, v8')
    a('v_and_b32 v9, 3, v1')
    a('v_lshl_add_u32 v8, v9, 3, v8')
    a('v_add_u32 v8, 24576, v8')
    a('v_xor_b32 v11, 32, v8')
    a('v_lshrrev_b32 v9, 4, v2')
    a('v_lshlrev_b32 v10, 10, v9')
    a('v_lshl_add_u32 v10, v3, 8, v10')
    a('v_and_b32 v9, 15, v2')
    a('v_lshl_add_u32 v10, v9, 4, v10')
    a('s_lshl_b32 s13, s8, 1')
    a('s_add_u32 s13, s13, s10')
    a('v_mov_b32 v249, 0x%x' % OOB)
    for b in range(3):
        a('s_mul_i32 s12, s11, 3')
        a('s_add_u32 s12, s12, %d' % b)
        a('s_and_b32 s14, s12, 1')
        a('s_lshr_b32 s12, s12, 1')
        a('s_mul_i32 s15, s7, 3')
        a('s_add_u32 s12, s12, s15')
        a('s_mul_i32 s15, s12, 96')
        a('s_add_u32 s15, s15, s14')
        a('s_lshl_b32 s79, s13, 1')
        a('s_add_u32 s15, s15, s79')
        a('s_lshl_b32 s15, s15, 2')
        a('s_add_u32 s15, s15, %d' % F_H)
        a('v_writelane_b32 v249, s15, %d' % b)
        a('s_mul_i32 s12, s12, 196608')
        a('s_lshl_b32 s14, s14, 11')
        a('s_add_u32 s12, s12, s14')
        a('s_lshl_b32 s14, s13, 12')
        a('s_add_u32 s%d, s12, s14' % (76 + b))

def c_gemm1(a, cfg, prof, odd):
    ACC = 64
    FB = [16, 40]
    if odd:
        NT_, NBT = 3, 2
        def reads(buf, ks):
            f = FB[buf]
            A = lambda tt: ['ds_read_b64_tr_b16 v[%d:%d], v8 offset:%d' % (f + 4 * tt + 2 * t, f + 4 * tt + 2 * t + 1, ks * 3072 + t * 768 + tt * 32) for t in range(2)]
            B = lambda b: ['ds_read_b128 v[%d:%d], v%d offset:%d' % (f + 12 + 4 * b, f + 15 + 4 * b, 4 + ks, b * 4096)]
            return A(0) + B(0) + B(1) + A(1) + A(2)
        order = [(0, 0, 2), (0, 1, 3), (1, 0, 5), (1, 1, 5), (2, 0, 7), (2, 1, 7)]
        s3_, sn = {1: 3, 2: 2, 3: 2, 4: 1}, {0: 2, 1: 2, 2: 2, 3: 2}
        addr = (4, 5, 6, 7, 8)
        store = lambda tt, b: (76 + tt, b * 2048)
    else:
        NT_, NBT = 2, 3
        def reads(buf, ks):
            f = FB[buf]
            A = lambda tt: ['ds_read_b64_tr_b16 v[%d:%d], v%d offset:%d' % (f + 4 * tt + 2 * t, f + 4 * tt + 2 * t + 1, (8, 11)[tt], ks * 2048 + t * 512) for t in range(2)]
            B = lambda b: ['ds_read_b128 v[%d:%d], v%d offset:%d' % (f + 8 + 4 * b, f + 11 + 4 * b, 4 + ks, b * 4096)]
            return A(0) + B(0) + B(1) + B(2) + A(1)
        order = [(0, 0, 2), (0, 1, 3), (0, 2, 4), (1, 0, 6), (1, 1, 6), (1, 2, 6)]
        s3_, sn = {1: 3, 2: 2, 3: 2}, {0: 2, 1: 2, 2: 2, 3: 1}
        addr = (4, 5, 6, 7, 8, 11)
        store = lambda tt, b: (76 + b, tt * 512)
    def acc(tt, b): return ACC + (tt * NBT + b) * 16
    if cfg.loop1:
        assert not (cfg.nine or cfg.cclear)
        for r in range(ACC, ACC + 96): a('v_mov_b32 v%d, 0' % r)
        a('s_mov_b32 s64, 0')
        a('s_mov_b32 s65, 9')
    a('s_setprio %d' % cfg.g1prio)
    a('s_barrier')
    prof.stamp(1); prof.cyc(5)
    toks = [a.emit(r) for r in reads(0, 0)]
    cur = 0
    lname = newlabel('Lg1')
    for st in ((0, 9) if cfg.loop1 else range(NSTAGE)):
        if cfg.loop1 and st == 0: a.label(lname)
        if cfg.loop1 and st == 9: a('s_setprio %d' % cfg.cprio)
        for ks in range(4):
            last = (st == NSTAGE - 1 and ks == 3)
            nxt = None if last else reads(1 - cur, (ks + 1) % 4)
            ntoks = []
            f = FB[cur]
            for mi, (tt, b, need_i) in enumerate(order):
                a.wait_lg(toks[need_i])
                c = '0' if (st == 0 and ks == 0 and not cfg.loop1) else vr(acc(tt, b), 16)
                a('v_mfma_f32_32x32x16_bf16 %s, %s, %s, %s' % (vr(acc(tt, b), 16), vr(f + 4 * tt, 4), vr(f + 4 * NT_ + 4 * b, 4), c))
                if nxt is not None:
                    if ks == 3:
                        if mi == 0:
                            skip = cfg.nine and st == NSTAGE - 2
                            if not skip: a.wait_all_lg()
                            if cfg.loop1:
                                for r in addr: a('v_add_u32 v%d, s66, v%d' % (r, r))
                            else:
                                d = SLOT if (st + 1) % NSLOT else -(NSLOT - 1) * SLOT
                                for r in addr:
                                    a('v_add_u32 v%d, 0x%x, v%d' % (r, u32(d), r))
                            if not skip: a('s_barrier')
                            if st == NSTAGE - 2: a('s_setprio %d' % cfg.cprio)
                        sched = s3_
                    else:
                        sched = sn
                    for _ in range(sched.get(mi, 0)):
                        ntoks.append(a.emit(nxt[len(ntoks)]))
                if cfg.loop1 and st == 0 and (ks, mi) == (1, 5):
                    a('s_add_u32 s64, s64, 1')
                    a('s_cmp_eq_u32 s64, 3')
                    a('s_cselect_b32 s64, 0, s64')
                    a('s_cselect_b32 s66, %d, 0' % (3 * SLOT))
                    a('s_sub_u32 s66, %d, s66' % SLOT)
                if st == 9 and cfg.areg:
                    n = ks * 6 + mi - 1
                    if 0 <= n < 5 * cfg.areg:
                        k, dl = n // 5, n % 5
                        if dl == 0: a('s_add_u32 s14, s86, %d' % (5120 * k))
                        b_ = 160 + k * 20 + 4 * dl
                        if dl < 4: a('buffer_load_dwordx4 %s, v240, s[48:51], s14 offen offset:%d sc1' % (vr(b_, 4), 1024 * dl))
                        else: a('buffer_load_dwordx4 %s, v241, s[48:51], s14 offen sc1' % vr(b_, 4))
                if (st, ks, mi) == ((9, 0, 5) if cfg.loop1 else (6, 1, 5)):
                    a('v_mov_b32 v9, %d' % (CNT + 32))
                    a('ds_read_b32 v%d, v9' % VN)
                if (st, ks, mi) == (7, 0, 5) and cfg.cclear and not odd:
                    a.emit('s_waitcnt vmcnt(0)')
                    flag_store(a, 's80')
            toks = ntoks
            cur = 1 - cur
        if cfg.loop1 and st == 0:
            a('s_sub_u32 s65, s65, 1')
            a('s_cmp_lg_u32 s65, 0')
            a('s_cbranch_scc1 %s' % lname)
    prof.stamp(2); prof.cyc(6)
    for tt in range(NT_):
        for b in range(NBT):
            x = acc(tt, b)
            o = 16 + (tt * NBT + b) * 4
            for p in range(8):
                a('v_mul_f32 v%d, v%d, v%d' % (x + p, x + p, x + 8 + p))
            for p in range(4):
                a('v_cvt_pk_bf16_f32 v%d, v%d, v%d' % (o + p, x + 2 * p, x + 2 * p + 1))
            a('buffer_store_dwordx4 %s, v10, s[44:47], s%d offen offset:%d sc1' % ((vr(o, 4),) + store(tt, b)))

def c_common(a, cfg):
    g2_scalars(a, 84, 85)
    a('s_mul_i32 s86, s85, 245760')
    a('s_mul_i32 s96, s3, 61440')
    a('s_add_u32 s86, s86, s96')
    a('s_mul_i32 s87, s84, 196608')
    a('s_mul_i32 s96, s3, 49152')
    a('s_add_u32 s87, s87, s96')
    a('s_mul_i32 s88, s3, 10240')
    a('s_mul_i32 s83, s84, 384')
    a('s_mul_i32 s96, s3, 96')
    a('s_add_u32 s83, s83, s96')
    a('s_add_u32 s83, s83, %d' % F_H)
    row_off(a, 244, 245, 84, 85, 3)
    a('v_lshlrev_b32 v240, 4, v1')
    a('v_add_u32 v241, 4096, v240')
    lane_min(a, 246, 24)
    a('v_and_b32 v9, 31, v1')
    a('v_lshlrev_b32 v9, 2, v9')
    a('v_add_u32 v9, %d, v9' % CNT)
    a('v_mov_b32 v12, 0')
    a('ds_write_b32 v9, v12')
    a.emit('s_waitcnt lgkmcnt(0)'); a.lgq = []
    srd(a, 44, P_WS, SZ_H, WS_H)
    srd(a, 48, P_WS, SZ_WD, WS_WD)
    srd(a, 56, P_OUT, SZ_X)
    wave_common(a)
    if cfg.ptouch:
        M2 = 2 << 20
        tl_ = [(P_K, 0), (P_K, M2), (P_V, 0), (P_V, M2), (P_WD, 0), (P_SSMK, 0), (P_SSMK, M2), (P_Q, M2), (P_OUT, 0), (P_OUT, M2), (P_GW, 0), (P_SHK, 0)]
        tl_ += [(P_WS, i * M2 + M2 - 64) for i in range(7)]
        a('s_mov_b32 s64, 0x%x' % M2)
        lab = newlabel('Lpt')
        for w in range(4):
            a('s_cmp_lg_u32 s3, %d' % w)
            a('s_cbranch_scc1 %s_%d' % (lab, w))
            for p, off in tl_[w::4]:
                a('s_mov_b32 s64, 0x%x' % off)
                a('s_load_dword s65, s[%d:%d], s64' % (p, p + 1))
            a.label('%s_%d' % (lab, w))
    if cfg.rot2:
        rot_off(a, cfg, 95)
        for k in range(12): kap(a, 16 + k, 95, k)
    if cfg.spf > 2:
        SPF.X, SPF.WG, SPF.WU = P_Q, P_WG, P_WU
        sp = SPF(a, cfg, 3, 62, 66, 64, 65, 2)
        SPF.X, SPF.WG, SPF.WU = 44, 48, 52
        sp.upto(cfg.spf - 1)
    if cfg.cclear:
        srd(a, 60, P_WS, SZ_Y2, WS_Y2)
        a('s_mul_i32 s80, s4, 20')
        a('s_add_u32 s80, s80, s5')
        a('s_lshl_b32 s80, s80, 2')
        a('s_add_u32 s80, s80, s3')
        a('s_lshl_b32 s81, s80, 12')
        a('s_lshl_b32 s80, s80, 2')
        a('s_add_u32 s80, s80, %d' % F_YC)
        a('s_cmp_ge_u32 s5, 20')
        a('s_cselect_b32 s96, 0x%x, 0' % FAR)
        a('s_or_b32 s80, s80, s96')
        a('s_or_b32 s81, s81, s96')
        for i in range(4): a('v_mov_b32 v%d, -1' % (160 + i))
        for i in range(4):
            a('buffer_store_dwordx4 v[160:163], v240, s[60:63], s81 offen offset:%d sc1' % (1024 * i))

def c_wave(a, cfg, prof):
    h0 = list(a.hist)
    a('s_cmp_ge_u32 s5, 30')
    a('s_cbranch_scc1 LCodd')
    c_setup_main(a)
    c_common(a, cfg)
    c_gemm1(a, cfg, prof, False)
    a('s_branch LCjoin')
    a.hist = h0; a.reset_queues()
    a.label('LCodd')
    c_setup_odd(a)
    c_common(a, cfg)
    c_gemm1(a, cfg, prof, True)
    a.label('LCjoin')
    prof.stamp(3)
    a('v_readfirstlane_b32 s%d, v%d' % (NONCE, VN))
    def h_flag(n_younger):
        a.emit('s_waitcnt vmcnt(%d)' % n_younger)
        if not n_younger: a.vmq = []
        flag_store(a, '0', 249)
        a('s_setprio 0')
        prof.stamp(7); prof.cyc(40)
    a.vmq = []
    if not cfg.pre_ack: h_flag(0)
    NA, NB = cfg.na, cfg.nb
    NL = 6 if cfg.c0 else 4
    L0 = 12 - NL
    LS = cfg.lsteps
    assert not cfg.quiet or LS == 0
    cblocks = ([4, 5] if cfg.c0 else []) + list(range(LS, 4))
    border = cblocks + list(range(LS))
    AB = 240 - 20 * NA; ACC2 = AB - 80 - (8 if NA == 4 else 0); BB = 8
    assert BB + 16 * NB <= ACC2 and not (cfg.areg and NA != 4)
    RD = 160 if NA == 4 else 12
    gtok = {}
    def acc2(dl, sg): return ACC2 + (sg * 5 + dl) * 4
    def wdoff(k):
        if cfg.rot2:
            a('s_mul_i32 s14, s%d, 5120' % (16 + k))
            a('s_add_u32 s14, s14, s86')
        else: a('s_add_u32 s14, s86, %d' % (5120 * k))
    def lbase(off): return ('v4', off) if off < SLOT else ('v7', off - SLOT)
    def issueA(k):
        b = AB + (k % NA) * 20
        if k >= L0:
            i = border[k - L0]
            if i == 0 and LS: lds_word_wait(a, cfg, 3, 16, 5, 6, 'Lwf')
            base, off = lbase(wblk(i))
            for dl in range(5):
                gtok[(k, 'a')] = a.emit('ds_read_b128 %s, %s offset:%d' % (vr(b + 4 * dl, 4), base, off + dl * 1024))
            return
        wdoff(k)
        for dl in range(4):
            a('buffer_load_dwordx4 %s, v240, s[48:51], s14 offen offset:%d sc1' % (vr(b + 4 * dl, 4), 1024 * dl))
        gtok[(k, 'a')] = a.emit('buffer_load_dwordx4 %s, v241, s[48:51], s14 offen sc1' % vr(b + 16, 4))
    def issueB(k):
        b = BB + (k % NB) * 16
        if cfg.rot2:
            a('s_lshl_b32 s15, s%d, 12' % (16 + k))
            a('s_add_u32 s15, s15, s87')
        else: a('s_add_u32 s15, s87, %d' % (4096 * k))
        for sg in range(4):
            gtok[(k, sg)] = a.emit('buffer_load_dwordx4 %s, v240, s[44:47], s15 offen offset:%d sc1' % (vr(b + 4 * sg, 4), 1024 * sg))
    a('v_add_u32 v4, s88, v240')
    a('v_add_u32 v7, %d, v4' % SLOT)
    a('v_mov_b32 v5, %d' % CNT)
    a('v_mov_b32 v6, 1')
    a('v_cmp_eq_u32 vcc, 0, v1')
    a('s_and_saveexec_b64 s[90:91], vcc')
    a('ds_add_u32 v5, v6')
    a('s_mov_b64 exec, s[90:91]')
    lds_spin(a, cfg, 5, 6, 82, 'ge', 4, 'Lcsync')
    lds_word_wait(a, cfg, 3, 48, 5, 6, 'Lwok')
    prof.stamp(31)
    assert not (cfg.areg and (cfg.ungate or cfg.nine or cfg.rot2))
    for k in range(cfg.areg): gtok[(k, 'a')] = -1
    done = [0]
    def tick():
        done[0] += 1
        if done[0] == cfg.pre_ack: h_flag(5 * cfg.pre_ack)
    for k in range(cfg.areg, NA): issueA(k); tick()
    t = None
    for n, i in enumerate(cblocks):
        if n == cfg.pollat: t = poll_issue(a, 246, 's83', 247)
        wdoff(L0 + n)
        a('s_add_u32 m0, s88, %d' % wblk(i))
        for dl in range(4):
            a('buffer_load_dwordx4 v240, s[48:51], s14 offen offset:%d sc1 lds' % (1024 * dl))
        a('s_add_u32 m0, s88, %d' % (wblk(i) + 4096))
        a('buffer_load_dwordx4 v241, s[48:51], s14 offen sc1 lds')
        tick()
    if t is None: t = poll_issue(a, 246, 's83', 247)
    prof.stamp(32)
    if cfg.prof:
        a.wait_vm(t); prof.stamp(33)
    def group_wait(tok, g):
        if cfg.rot2:
            a('s_lshl_b32 s80, s%d, 1' % (16 + 4 * g))
            a('s_lshl_b64 s[80:81], 0xff, s80') if False else None
            a('s_mov_b32 s81, 0xff')
            a('s_lshl_b32 s82, s81, s80')
            a('s_sub_u32 s80, 24, s80')
            a('s_lshr_b32 s81, s81, s80')
            a('s_or_b32 s82, s82, s81')
            a('s_and_b32 s82, s82, 0xffffff')
        else:
            a('s_mov_b32 s82, 0x%x' % (0xff << (8 * g)))
        a.wait_vm(tok)
        lo, ok = newlabel('Lg'), newlabel('Lg_ok')
        a('s_mov_b32 s94, %d' % cfg.spin)
        a.label(lo)
        a('v_cmp_ne_u32 vcc, s%d, v247' % NONCE)
        a('s_nop 0')
        a('s_and_b32 s81, vcc_lo, s82')
        a('s_cbranch_scc0 %s' % ok)
        a('s_sleep %d' % cfg.hsleep)
        poll_issue(a, 246, 's83', 247)
        a.emit('s_waitcnt vmcnt(0)')
        a.vmq.pop()
        a('s_sub_u32 s94, s94, 1')
        a('s_cmp_lg_u32 s94, 0')
        a('s_cbranch_scc1 %s' % lo)
        a.label(ok)
    if cfg.grp:
        assert NB == 4
        group_wait(t, 0)
    else:
        poll_wait(a, cfg, t, 246, 's83', 247, sleep=cfg.hsleep)
    prof.stamp(8); prof.cyc(41)
    if cfg.grp: gp = {1: poll_issue(a, 246, 's83', 247)}
    for k in range(NB): issueB(k)
    def step(k, sgs, after=None):
        ab_, bb_ = AB + (k % NA) * 20, BB + (k % NB) * 16
        if k >= L0: a.wait_lg(gtok[(k, 'a')])
        else: a.wait_vm(gtok[(k, 'a')])
        for n, sg in enumerate(sgs):
            a.wait_vm(gtok[(k, sg)])
            if n == 0: prof.stamp(10 + k)
            for dl in range(5):
                c = '0' if k == 0 else vr(acc2(dl, sg), 4)
                a('v_mfma_f32_16x16x32_bf16 %s, %s, %s, %s' % (vr(acc2(dl, sg), 4), vr(ab_ + 4 * dl, 4), vr(bb_ + 4 * sg, 4), c))
                if after: after(n, dl)
    NK = 11 if cfg.fin else 12
    for k in range(NK):
        step(k, range(4))
        if cfg.grp and k in (0, 4): group_wait(gp[k // 4 + 1], k // 4 + 1)
        if cfg.grp and k == 2: gp[2] = poll_issue(a, 246, 's83', 247)
        if k + NB < 12: issueB(k + NB)
        if k + NA < 12: issueA(k + NA)
        if k == cfg.ygate: lds_word(a, 3, 64, 5, 6)
    def blk(w, sg): return w * 10240 + wblk(sg if sg < w else sg - 1)
    a('v_add_u32 v7, %d, v240' % SLOT)
    a('v_add_u32 v4, %d, v7' % SLOT)
    if not cfg.fin: a('s_nop 7')
    else:
        a.wait_lg(gtok[(11, 'a')])
        a.wait_all_vm()
    for w in range(3):
        a('s_cmp_eq_u32 s3, %d' % (w + 1))
        a('s_cbranch_scc1 Lfin%d' % (w + 1))
    hist0 = [] if cfg.fin else list(a.hist)
    def ab(off): return ('v7', off - SLOT) if off < 2 * SLOT else ('v4', off - 2 * SLOT)
    for w in range(4):
        a.hist = list(hist0); a.vmq = []; a.lgq = []
        a.label('Lfin%d' % w)
        others = [x for x in range(4) if x != w]
        def wr(sg, dl):
            r, o = ab(blk(w, sg) + dl * 1024)
            a('ds_write_b128 %s, %s offset:%d' % (r, vr(acc2(dl, sg), 4), o))
        if cfg.fin:
            pend = []
            def after(n, dl):
                if n < 3: pend.append((others[n], dl))
                if len(pend) > 6 or (n == 3 and pend): wr(*pend.pop(0))
            step(11, others + [w], after=after)
            while pend: wr(*pend.pop(0))
        else:
            for sg in others:
                for dl in range(5): wr(sg, dl)
        prof.stamp(9); prof.cyc(42)
        a('v_add_u32 v5, %d, v240' % (PA + w * 5120))
        a('v_lshlrev_b32 v3, 2, v1')
        a('v_add_u32 v3, %d, v3' % (QA + w * QSZ + 3072))
        a.wait_all_lg()
        a('s_barrier')
        prof.stamp(30)
        tl = {}
        tl['omg'] = a.emit('ds_read_b32 v6, v3')
        for dl in range(5):
            for si, x in enumerate(others):
                r, o = ab(blk(x, w) + dl * 1024)
                tl[(dl, si)] = a.emit('ds_read_b128 %s, %s offset:%d' % (vr(RD + (dl * 4 + si) * 4, 4), r, o))
            tl[(dl, 3)] = a.emit('ds_read_b128 %s, v5 offset:%d' % (vr(RD + (dl * 4 + 3) * 4, 4), dl * 1024))
        for dl in range(5):
            x = acc2(dl, w)
            for si in range(3):
                a.wait_lg(tl[(dl, si)])
                r = RD + (dl * 4 + si) * 4
                a('v_pk_add_f32 %s, %s, %s' % (P2(x), P2(x), P2(r)))
                a('v_pk_add_f32 %s, %s, %s' % (P2(x + 2), P2(x + 2), P2(r + 2)))
            ga = RD + (dl * 4 + 3) * 4
            t = 8 + (dl & 1) * 2 if NA != 4 else 12 + (dl & 1) * 4
            a.wait_lg(tl[(dl, 3)])
            for i in range(4): a('v_fma_f32 v%d, v6, v%d, v%d' % (x + i, x + i, ga + i))
            a('v_cvt_pk_bf16_f32 v%d, v%d, v%d' % (t, x, x + 1))
            a('v_cvt_pk_bf16_f32 v%d, v%d, v%d' % (t + 1, x + 2, x + 3))
            a('buffer_store_dwordx2 %s, v244, s[56:59], 0 offen offset:%d' % (vr(t, 2), dl * 32))
        prof.stamp(4)
        prof.flush(243)
        a('s_endpgm')

class SPF:
    def __init__(self, a, cfg, wv, pw, px, cur, dst, first):
        self.a, self.cfg, self.pw, self.px, self.cur, self.dst, self.next = a, cfg, pw, px, cur, dst, first
        a('s_lshl_b32 s96, s5, 2')
        a('s_add_u32 s96, s96, s%d' % wv)
        a('s_and_b32 s%d, s4, 1' % cur)
        a('s_mul_i32 s%d, s%d, 10' % (cur, cur))
        a('s_mul_i32 s97, s6, 5')
        a('s_add_u32 s%d, s%d, s97' % (cur, cur))
        a('s_lshr_b32 s%d, s%d, 1' % (cur, cur))
        if cfg.xrot == 0: a('s_mov_b32 s%d, 0' % cur)
        a('s_add_u32 s%d, s%d, %d' % (cur, cur, first))
        for _ in range(2):
            a('s_cmp_ge_u32 s%d, 10' % cur)
            a('s_cselect_b32 s97, 10, 0')
            a('s_sub_u32 s%d, s%d, s97' % (cur, cur))
        a('s_bitcmp1_b32 s96, 0')
        a('s_cselect_b32 s%d, s%d, s%d' % (pw, self.WU, self.WG))
        a('s_cselect_b32 s%d, s%d, s%d' % (pw + 1, self.WU + 1, self.WG + 1))
        a('s_lshr_b32 s97, s96, 1')
        a('s_mul_i32 s97, s97, 3072')
        a('s_mul_i32 s%d, s6, 768' % dst)
        a('s_add_u32 s97, s97, s%d' % dst)
        a('s_mul_i32 s%d, s%d, 196608' % (dst, cur))
        a('s_add_u32 s97, s97, s%d' % dst)
        a('s_add_u32 s%d, s%d, s97' % (pw, pw))
        a('s_addc_u32 s%d, s%d, 0' % (pw + 1, pw + 1))
        a('s_lshr_b32 s97, s96, 3')
        a('s_min_u32 s97, s97, 14')
        a('s_and_b32 s%d, s4, 1' % dst)
        a('s_mul_i32 s%d, s%d, 15' % (dst, dst))
        a('s_add_u32 s97, s97, s%d' % dst)
        a('s_and_b32 s96, s96, 7')
        a('s_lshr_b32 s%d, s97, 3' % dst)
        a('s_lshl_b32 s%d, s%d, 9' % (dst, dst))
        a('s_add_u32 s96, s96, s%d' % dst)
        a('s_and_b32 s97, s97, 7')
        a('s_lshl_b32 s97, s97, 3')
        a('s_add_u32 s96, s96, s97')
        a('s_mul_i32 s96, s96, 1280')
        a('s_lshl_b32 s97, s%d, 7' % cur)
        a('s_add_u32 s96, s96, s97')
        a('s_add_u32 s%d, s%d, s96' % (px, self.X))
        a('s_addc_u32 s%d, s%d, 0' % (px + 1, self.X + 1))
    X, WG, WU = 44, 48, 52
    def upto(self, st):
        a = self.a
        while self.next <= min(st, NSTAGE - 1):
            for i in range(6): a('s_load_dword s%d, s[%d:%d], %d' % (self.dst, self.pw, self.pw + 1, 128 * i))
            for i in range(self.cfg.spfx): a('s_load_dword s%d, s[%d:%d], %d' % (self.dst, self.px, self.px + 1, 81920 * i))
            a('s_add_u32 s%d, s%d, 1' % (self.cur, self.cur))
            a('s_cmp_eq_u32 s%d, 10' % self.cur)
            a('s_cselect_b32 s96, %d, 196608' % 0) if False else None
            a('s_cselect_b32 s96, 1966080, 0')
            a('s_cselect_b32 s97, 1280, 0')
            a('s_sub_u32 s%d, s%d, s96' % (self.pw, self.pw)); a('s_subb_u32 s%d, s%d, 0' % (self.pw + 1, self.pw + 1))
            a('s_add_u32 s%d, s%d, 196608' % (self.pw, self.pw)); a('s_addc_u32 s%d, s%d, 0' % (self.pw + 1, self.pw + 1))
            a('s_sub_u32 s%d, s%d, s97' % (self.px, self.px)); a('s_subb_u32 s%d, s%d, 0' % (self.px + 1, self.px + 1))
            a('s_add_u32 s%d, s%d, 128' % (self.px, self.px)); a('s_addc_u32 s%d, s%d, 0' % (self.px + 1, self.px + 1))
            self.next += 1

SX = [28, 29, 30, 31, 7, 8]
class Loader:
    def __init__(self, a, cfg, prof, odd):
        self.a, self.odd, self.tok = a, odd, {}
        if odd:
            a('v_lshrrev_b32 v9, 3, v1')
            a('v_and_b32 v10, 7, v1')
            a('v_lshrrev_b32 v11, 1, v9')
            a('v_xor_b32 v10, v10, v11')
            a('v_lshlrev_b32 v10, 4, v10')
            a('s_mov_b32 s12, 81920')
            a('v_mul_lo_u32 v9, v9, s12')
            a('v_add_u32 v2, v9, v10')
            a('v_xor_b32 v10, 64, v10')
            a('v_add_u32 v3, v9, v10')
            a('v_add_u32 v3, 256, v3')
            a('v_add_u32 v4, 512, v2')
            a('v_add_u32 v5, 512, v3')
            for i in range(3):
                a('v_add_u32 v9, %d, v1' % (64 * i))
                a('v_mul_u32_u24 v10, 5462, v9')
                a('v_lshrrev_b32 v10, 16, v10')
                a('v_mul_u32_u24 v11, 12, v10')
                a('v_sub_u32 v11, v9, v11')
                a('v_mul_u32_u24 v10, 3072, v10')
                a('v_lshl_add_u32 v10, v11, 4, v10')
                a('v_subrev_u32 v%d, %d, v10' % (6 + i, 1024 * i))
            a('s_mov_b32 s12, %d' % (512 * 3 + 16 * 3))
            a('s_lshl_b32 s13, s10, 2')
            a('s_add_u32 s12, s12, s13')
            a('s_mul_i32 s12, s12, 1280')
            a('s_mul_i32 s13, s10, 49152')
            a('s_mul_i32 s14, s8, 192')
            a('s_add_u32 s13, s13, s14')
            a('s_lshl_b32 s14, s10, 12')
            a('s_mul_i32 s15, s10, 3072')
        else:
            a('v_lshrrev_b32 v9, 3, v1')
            a('v_and_b32 v10, 7, v1')
            a('v_lshrrev_b32 v11, 1, v9')
            a('v_xor_b32 v4, v10, v11')
            a('v_lshlrev_b32 v4, 4, v4')
            a('s_mov_b32 s12, 81920')
            a('v_mul_lo_u32 v3, v9, s12')
            a('v_add_u32 v2, v3, v4')
            a('v_xor_b32 v4, 64, v4')
            a('v_add_u32 v3, v3, v4')
            a('v_and_b32 v11, 1, v11')
            a('v_lshlrev_b32 v11, 1, v11')
            a('v_xor_b32 v10, v10, v11')
            a('v_mul_u32_u24 v9, 3072, v9')
            a('v_lshl_add_u32 v4, v10, 4, v9')
            a('v_add_u32 v5, 23552, v4')
            a('v_xor_b32 v6, 64, v4')
            a('v_xor_b32 v7, 64, v5')
            a('s_mul_i32 s12, s10, 6')
            a('s_mul_i32 s13, s7, 3')
            a('v_add_u32 v9, s12, v1')
            a('v_lshrrev_b32 v10, 3, v9')
            a('v_add_u32 v10, s13, v10')
            a('v_and_b32 v9, 7, v9')
            a('v_and_b32 v11, 7, v10')
            a('v_lshl_add_u32 v9, v11, 3, v9')
            a('v_lshrrev_b32 v10, 3, v10')
            a('v_lshl_add_u32 v9, v10, 9, v9')
            a('v_mul_u32_u24 v9, 1280, v9')
            a('v_subrev_u32 v10, 3, v1')
            a('v_min_u32 v10, v10, v1')
            a('v_lshlrev_b32 v10, 10, v10')
            a('v_sub_u32 v8, v9, v10')
            a('s_mul_i32 s13, s10, 49152')
            a('s_lshl_b32 s14, s8, 7')
            a('s_add_u32 s13, s13, s14')
            a('s_mul_i32 s14, s10, 6144')
            a('s_lshl_b32 s15, s10, 11')
        self.rot = cfg.xrot
        self.alt = cfg.alt
        if cfg.alt and not odd:
            a('s_add_u32 s93, s7, s8')
            a('s_and_b32 s93, s93, 1')
        if cfg.xrot:
            a('s_and_b32 s9, s4, 1')
            a('s_mul_i32 s9, s9, 10')
            a('s_mul_i32 s96, s6, 5')
            a('s_add_u32 s9, s9, s96')
            if cfg.xrot == 2:
                a('s_mul_i32 s96, s5, 3')
                a('s_add_u32 s9, s9, s96')
                a('s_and_b32 s9, s9, 31')
            a('s_lshr_b32 s9, s9, 1')
            a('s_cmp_ge_u32 s9, 10')
            a('s_cselect_b32 s96, 10, 0')
            a('s_sub_u32 s9, s9, s96')
            a('s_lshl_b32 s96, s9, 7')
            if odd: a('s_add_u32 s12, s12, s96')
            else:
                a('v_add_u32 v2, s96, v2')
                a('v_add_u32 v3, s96, v3')
            a('s_mul_i32 s96, s9, 196608')
            a('s_add_u32 s13, s13, s96')
        for d, sz in ((44, SZ_X), (48, SZ_W), (52, SZ_W)):
            a('s_mov_b32 s%d, 0x%x' % (d + 2, sz))
            a('s_mov_b32 s%d, 0x00020000' % (d + 3))
        if not odd:
            for i in range(6): a('v_readlane_b32 s%d, v8, %d' % (SX[i], i))
        a.emit('s_waitcnt lgkmcnt(0)')
        prof.stamp(3)
    def issue(self, st):
        a = self.a
        base = (st % NSLOT) * SLOT
        if self.odd:
            a('s_add_u32 m0, s14, %d' % base)
            for i in range(4):
                a('buffer_load_dwordx4 v%d, s[44:47], s12 offen offset:%d lds' % (2 + i, 1024 * i))
            a('s_add_u32 m0, s15, %d' % (base + OFF_GATE))
            for i in range(3):
                a('buffer_load_dwordx4 v%d, s[48:51], s13 offen offset:%d lds' % (6 + i, 1024 * i))
            a('s_add_u32 m0, s15, %d' % (base + OFF_UP))
            for i in range(3):
                t = a.emit('buffer_load_dwordx4 v%d, s[52:55], s13 offen offset:%d lds' % (6 + i, 1024 * i))
            a('s_add_u32 s12, s12, 128')
        else:
            def xpart(order):
                for h in order:
                    a('s_add_u32 m0, s14, %d' % (base + 3072 * h))
                    for i in range(3 * h, 3 * h + 3):
                        t = a.emit('buffer_load_dwordx4 v%d, s[44:47], s%d offen offset:%d lds' % (2 + (i & 1), SX[i], 1024 * (i % 3)))
                return t
            def wpart(order):
                for m in order:
                    a('s_add_u32 m0, s15, %d' % (base + 24576 + 8192 * m))
                    for i in range(2):
                        t = a.emit('buffer_load_dwordx4 v%d, s[%d:%d], s13 offen offset:%d lds' % (4 + 2 * m + i, 48 + 4 * m, 51 + 4 * m, 1024 * i))
                return t
            if self.alt:
                l1, l2 = newlabel('Lalt'), newlabel('Lalt_done')
                a('s_cmp_lg_u32 s93, 0')
                a('s_cbranch_scc1 %s' % l1)
                q0 = list(a.vmq)
                if self.alt == 1: xpart((0, 1)); wpart((0, 1))
                else: xpart((0,)); wpart((0,)); xpart((1,)); wpart((1,))
                a('s_branch %s' % l2)
                a.vmq = q0
                a.label(l1)
                if self.alt == 1: wpart((1, 0)); t = xpart((1, 0))
                else: wpart((1,)); xpart((1,)); wpart((0,)); t = xpart((0,))
                a.label(l2)
            else:
                xpart((0, 1)); t = wpart((0, 1))
            a('v_add_u32 v2, 0x80, v2')
            a('v_add_u32 v3, 0x80, v3')
        a('s_add_u32 s13, s13, 196608')
        if self.rot:
            a('s_add_u32 s9, s9, 1')
            a('s_cmp_eq_u32 s9, 10')
            a('s_cselect_b32 s96, 1280, 0')
            a('s_cselect_b32 s97, 1966080, 0')
            a('s_sub_u32 s13, s13, s97')
            if self.odd: a('s_sub_u32 s12, s12, s96')
            else:
                a('v_subrev_u32 v2, s96, v2')
                a('v_subrev_u32 v3, s96, v3')
        self.tok[st] = t

def l_wave(a, cfg, prof):
    a('s_setprio %d' % cfg.lprio)
    a('s_and_b32 s10, s3, 3')
    h0 = list(a.hist)
    a('s_cmp_ge_u32 s5, 30')
    a('s_cbranch_scc1 LLodd')
    l_body(a, cfg, prof, False)
    a.hist = h0; a.reset_queues()
    a.label('LLodd')
    l_body(a, cfg, prof, True)

def l_body(a, cfg, prof, odd):
    ld = Loader(a, cfg, prof, odd)
    stage_tok = ld.tok
    issue_stage = ld.issue
    issue_stage(0)
    wave_common(a)
    if cfg.drop:
        a('s_mov_b32 s92, 1'); a('v_mov_b32 v250, 1'); a('s_mov_b32 s86, 0')
    if not odd:
        a('s_lshl_b32 s76, s2, 2')
        a('s_add_u32 s76, s76, s10')
        a('s_cmp_lg_u32 s76, 0')
        a('s_cbranch_scc1 Lno_nonce')
        a('s_memrealtime s[76:77]')
        srd(a, 68, P_DBG, 256)
        a.emit('s_waitcnt lgkmcnt(0)')
        a('s_or_b32 s76, s76, 1')
        a('v_mov_b32 v20, s76')
        a('buffer_store_dword v20, v%d, s[68:71], 0 offen sc1' % VZ)
        a.emit('s_waitcnt vmcnt(0)')
        a.vmq.pop()
        a.label('Lno_nonce')
    issue_stage(1)
    assert not cfg.spf
    spf = None
    g2_scalars(a, 84, 85)
    a('s_mul_i32 s82, s10, 5120')
    a('s_add_u32 s82, s82, %d' % PA)
    a('s_mul_i32 s83, s10, %d' % QSZ)
    a('s_add_u32 s83, s83, %d' % QA)
    a('s_mul_i32 s88, s85, 48')
    a('s_mul_i32 s96, s10, 12')
    a('s_add_u32 s88, s88, s96')
    a('s_mul_i32 s0, s88, 5120')
    if cfg.rot2: rot_off(a, cfg, 95)
    else: a('s_mov_b32 s95, 0')
    a('s_lshl_b32 s88, s88, 2')
    a('s_add_u32 s88, s88, %d' % F_WD)
    a('s_mul_i32 s1, s10, 10240')
    a('v_lshlrev_b32 v241, 4, v1')
    a('v_add_u32 v245, 4096, v241')
    if not odd:
        a('s_cmp_ge_u32 s5, 20')
        a('s_cbranch_scc1 LtypeB')
    saved = (list(a.vmq), dict(stage_tok), list(a.hist), spf.next if spf else 0)
    tk = {}
    DROP = {1: ('kv_loads', 'wd_loads'), 2: ('f',), 4: ('ut_store', 'wd_part'), 8: ('y_clear',), 16: ('n_issue', 'n_get', 'd_issue')}
    dn = [n for b, ns in DROP.items() if cfg.drop & b for n in ns]
    class _T(dict):
        def __missing__(self, k): return -1
    tk = _T()
    def interval(i, slices, pre={}):
        slices = {k: [f for f in v if f.__name__ not in dn] for k, v in slices.items()}
        pre = {k: [f for f in v if f.__name__ not in dn] for k, v in pre.items()}
        if cfg.nine and i == 8: a.wait_vm(stage_tok[9])
        a.wait_vm(stage_tok[i])
        if a.lgq: a.wait_all_lg()
        if cfg.lstamp: prof.stamp(10 + i)
        if not (cfg.nine and i == 9): a('s_barrier')
        if cfg.lstamp: prof.stamp(20 + i)
        if spf: spf.upto(i + cfg.spf)
        for f in pre.get(i, []): f()
        if i + NSLOT - 1 < NSTAGE: issue_stage(i + NSLOT - 1)
        for f in slices.get(i, []): f()
    def n_issue():
        a('s_load_dword s%d, s[%d:%d], 0' % (NONCE, P_DBG, P_DBG + 1))
    def n_get():
        lo, ok = newlabel('Ln'), newlabel('Ln_ok')
        a.emit('s_waitcnt lgkmcnt(0)'); a.lgq = []
        a('s_cmp_lg_u32 s%d, 0' % NONCE)
        a('s_cbranch_scc1 %s' % ok)
        a('s_mov_b32 s94, %d' % cfg.spin)
        srd(a, 68, P_DBG, 256)
        a('v_mov_b32 v249, 0')
        a.label(lo)
        a('buffer_load_dword v%d, v249, s[68:71], 0 offen sc1' % VN)
        a.emit('s_waitcnt vmcnt(0)')
        a.vmq.pop()
        a('v_readfirstlane_b32 s%d, v%d' % (NONCE, VN))
        a('s_cmp_lg_u32 s%d, 0' % NONCE)
        a('s_cbranch_scc1 %s' % ok)
        a('s_sleep 8')
        a('s_sub_u32 s94, s94, 1')
        a('s_cmp_lg_u32 s94, 0')
        a('s_cbranch_scc1 %s' % lo)
        a.label(ok)
        a('s_nop 1')
        a('v_mov_b32 v%d, s%d' % (VN, NONCE))
        a('v_mov_b32 v9, %d' % (CNT + 32))
        a('ds_write_b32 v9, v%d' % VN)
    def flag_after(key, sreg):
        def f():
            a.wait_vm(tk[key])
            flag_store(a, sreg)
        return f
    def late_srds():
        srd(a, 48, P_WS, SZ_WD, WS_WD)
        srd(a, 52, P_WS, SZ_G, WS_G)
        srd(a, 64, P_WS, SZ_Y2, WS_Y2)
    def wdl_dma():
        for i in range(cfg.lsteps):
            kap(a, 97, 95, 12 - cfg.lsteps + i)
            a('s_mul_i32 s97, s97, 5120')
            a('s_add_u32 s97, s97, s0')
            a('s_add_u32 m0, s1, %d' % wblk(i))
            for dl in range(4):
                a('buffer_load_dwordx4 v241, s[48:51], s97 offen offset:%d sc1 lds' % (1024 * dl))
            a('s_add_u32 m0, s1, %d' % (wblk(i) + 4096))
            tk['wdl'] = a.emit('buffer_load_dwordx4 v245, s[48:51], s97 offen sc1 lds')
    def wdl_publish():
        if not cfg.lsteps: return
        a.wait_vm(tk['wdl'])
        lds_word(a, 10, 16, 236, 237)
    def q_loads():
        row_off(a, 238, 239, 84, 85, 10)
        for dl in range(5):
            a('buffer_load_dwordx2 %s, v238, s[44:47], 0 offen offset:%d' % (vr(QV + 2 * dl, 2), dl * 32))
    def tail_issue():
        if cfg.bclear:
            a('s_lshl_b32 s89, s85, 8')
            a('s_add_u32 s89, s89, %d' % F_YC)
            lane_min(a, 247, 48)
            tk['y1'] = poll_issue(a, 247, 's89', 239)
            return
        a('s_mul_i32 s89, s85, 320')
        a('s_add_u32 s89, s89, %d' % F_YC)
        a('v_lshlrev_b32 v247, 2, v1')
        lane_min(a, 240, 16)
        a('v_add_u32 v240, 256, v240')
        tk['y1'] = poll_issue(a, 247, 's89', 239)
        tk['y2'] = poll_issue(a, 240, 's89', 243)
    def tail_check():
        if not cfg.bclear: poll_wait(a, cfg, tk['y2'], 240, 's89', 243)
        poll_wait(a, cfg, tk['y1'], 247, 's89', 239)

    def type_a():
        KR, VR_, WR = 32, 60, 76
        srd(a, 56, P_K, SZ_X); srd(a, 60, P_V, SZ_X); srd(a, 64, P_SHK, 5120)
        a('s_cmp_ge_u32 s5, 10')
        a('s_cselect_b32 s76, 1, 0')
        a('s_cselect_b32 s77, 10, 0')
        a('s_sub_u32 s77, s5, s77')
        a('s_lshl_b32 s78, s4, 1')
        a('s_add_u32 s76, s76, s78')
        a('s_lshl_b32 s87, s77, 2')
        a('s_add_u32 s87, s87, s10')
        a('s_lshl_b32 s89, s87, 4')
        a('s_add_u32 s89, s89, s76')
        a('s_lshl_b32 s89, s89, 2')
        a('s_lshl_b32 s87, s87, 16')
        a('s_lshl_b32 s78, s76, 8')
        a('s_add_u32 s87, s87, s78')
        a('s_lshl_b32 s76, s76, 7')
        a('s_lshl_b32 s78, s10, 5')
        a('s_add_u32 s76, s76, s78')
        a('v_lshrrev_b32 v9, 3, v1')
        a('v_and_b32 v10, 7, v1')
        a('s_lshl_b32 s78, s10, 3')
        a('v_add_u32 v22, s78, v9')
        a('v_lshlrev_b32 v11, 1, v10')
        a('v_xor_b32 v22, v22, v11')
        a('v_lshlrev_b32 v22, 3, v22')
        a('v_lshl_add_u32 v22, v10, 11, v22')
        a('v_add_u32 v22, %d, v22' % PA)
        a('v_lshlrev_b32 v9, 2, v9')
        a('v_add_u32 v9, s76, v9')
        a('v_mul_u32_u24 v232, 1280, v9')
        a('v_lshl_add_u32 v232, v10, 4, v232')
        a('s_lshl_b32 s78, s77, 7')
        a('v_add_u32 v232, s78, v232')
        a('v_subrev_u32 v233, 3840, v232')
        a('v_subrev_u32 v234, 2560, v232')
        a('v_subrev_u32 v235, 1280, v232')
        a('s_lshl_b32 s78, s77, 9')
        a('v_lshlrev_b32 v236, 6, v10')
        a('v_add_u32 v236, s78, v236')
        a('s_mul_i32 s11, s4, 20')
        a('s_add_u32 s11, s11, s5')
        a('s_lshl_b32 s11, s11, 2')
        a('s_add_u32 s11, s11, s10')
        a('s_lshl_b32 s81, s11, 12')
        a('s_lshl_b32 s80, s11, 2')
        a('s_add_u32 s80, s80, %d' % F_YC)
        a('s_lshr_b32 s76, s11, 4')
        a('s_lshl_b32 s76, s76, 6')
        a('s_sub_u32 s77, s88, 64')
        a('v_min_u32 v240, %d, v1' % (31 if cfg.bclear else 27))
        a('v_lshlrev_b32 v240, 2, v240')
        a('v_mov_b32 v9, s76')
        a('v_mov_b32 v10, s77')
        if cfg.bclear:
            a('s_lshl_b32 s78, s5, 2')
            a('s_add_u32 s78, s78, s10')
            a('s_lshl_b32 s78, s78, 2')
            a('s_mul_i32 s78, s78, 9363')
            a('s_lshr_b32 s78, s78, 16')
            a('s_lshl_b32 s79, s4, 6')
            a('s_add_u32 s78, s78, s79')
            a('s_lshl_b32 s78, s78, 2')
            a('s_add_u32 s78, s78, %d' % (F_YC - 112))
            a('v_min_u32 v240, 29, v1')
            a('v_lshlrev_b32 v240, 2, v240')
            a('v_mov_b32 v11, s78')
            a('v_cmp_gt_u32 vcc, 28, v1')
            a('v_cndmask_b32 v10, v11, v10, vcc')
        a('v_cmp_gt_u32 vcc, 16, v1')
        a('v_cndmask_b32 v9, v10, v9, vcc')
        a('v_add_u32 v240, v240, v9')
        a('s_and_b32 s86, s11, 0xfffffffe')
        a('s_lshl_b32 s86, s86, 1')
        a('s_load_dword s86, s[26:27], s86')
        a('s_mov_b32 s87, s87')
        class _A:
            def __init__(self): self.l = []
            def __call__(self, t): self.l.append(t)
        rec = _A(); conv_setup(rec, cfg)
        for t in rec.l[:-4]: a(t)
        def d_fin():
            for t in rec.l[-4:]: a(t)
        def kv_loads():
            for i in range(4):
                a('buffer_load_dwordx4 %s, v232, s[56:59], 0 offen offset:%d' % (vr(KR + 12 + 4 * i, 4), 1280 * i))
            for i in range(4):
                a('buffer_load_dwordx4 %s, v232, s[60:63], 0 offen offset:%d' % (vr(VR_ + 4 * i, 4), 1280 * i))
            a('buffer_load_dwordx4 %s, v233, s[56:59], 0 offen' % vr(KR, 4))
            a('buffer_load_dwordx4 %s, v234, s[56:59], 0 offen' % vr(KR + 4, 4))
            a('buffer_load_dwordx4 %s, v235, s[56:59], 0 offen' % vr(KR + 8, 4))
            for i in range(4):
                tk['kv'] = a.emit('buffer_load_dwordx4 %s, v236, s[64:67], 0 offen offset:%d' % (vr(WR + 4 * i, 4), 16 * i))
        def ut_srd(): srd(a, 56, P_WS, SZ_UT, WS_UT)
        def kv_part(cp):
            def f():
                a.wait_vm(tk['kv'])
                U = 92
                for r in range(7):
                    unpack_lo(a, U + 2 * r, KR + 4 * r + cp); unpack_hi(a, U + 2 * r + 1, KR + 4 * r + cp)
                for r in range(4):
                    unpack_lo(a, U + 14 + 2 * r, VR_ + 4 * r + cp); unpack_hi(a, U + 15 + 2 * r, VR_ + 4 * r + cp)
                for h in range(2):
                    unpack_lo(a, U + 22 + h, WR + 4 * cp + 2 * h); unpack_hi(a, U + 24 + h, WR + 4 * cp + 2 * h)
                    unpack_lo(a, U + 26 + h, WR + 4 * cp + 2 * h + 1); unpack_hi(a, U + 28 + h, WR + 4 * cp + 2 * h + 1)
                AC = U + 30
                for i in range(8):
                    a('v_mul_f32 v%d, v%d, v%d' % (AC + i, U + i, U + 28 + (i & 1)))
                for tap in (2, 1, 0):
                    for i in range(8):
                        a('v_fmac_f32 v%d, v%d, v%d' % (AC + i, U + 2 * (3 - tap) + i, U + 22 + 2 * tap + (i & 1)))
                for i in range(8):
                    a('v_mul_f32 v%d, v%d, v%d' % (AC + i, AC + i, U + 14 + i))
                O = 24 + (cp & 1) * 4
                for h in range(2):
                    a('v_cvt_pk_bf16_f32 v%d, v%d, v%d' % (O + 2 * h, AC + h, AC + 2 + h))
                    a('v_cvt_pk_bf16_f32 v%d, v%d, v%d' % (O + 2 * h + 1, AC + 4 + h, AC + 6 + h))
                for h in range(2):
                    a('ds_write_b64 v22, %s offset:%d' % (vr(O + 2 * h, 2), 256 * (2 * cp + h)))
            return f
        def ut_store():
            a('v_lshrrev_b32 v9, 4, v1')
            a('v_and_b32 v10, 15, v1')
            a('v_lshlrev_b32 v11, 12, v9')
            a('v_lshl_add_u32 v11, v10, 4, v11')
            a('s_lshl_b32 s76, s10, 1')
            a('s_lshl_b32 s77, s10, 12')
            a('s_add_u32 s77, s77, %d' % PA)
            for hh in range(2):
                a('s_add_u32 s78, s76, %d' % hh)
                a('v_xor_b32 v12, s78, v10')
                a('v_lshlrev_b32 v12, 4, v12')
                a('v_lshl_add_u32 v12, v9, 8, v12')
                a('v_add_u32 v%d, s77, v12' % (24 + hh))
            tl = [a.emit('ds_read_b128 %s, v%d offset:%d' % (vr(40 + 4 * i, 4), 24 + (i >> 1), 1024 * i)) for i in range(4)]
            for i in range(4):
                a.wait_lg(tl[i])
                a('s_add_u32 s76, s87, %d' % (16384 * i))
                tk['ut'] = a.emit('buffer_store_dwordx4 %s, v11, s[56:59], s76 offen sc1' % vr(40 + 4 * i, 4))
        def d_issue():
            a('s_and_b32 s86, s11, 0xfffffffe')
            a('s_lshl_b32 s86, s86, 1')
            a('s_load_dword s86, s[26:27], s86')
        def y_clear():
            srd(a, 64, P_WS, SZ_Y2, WS_Y2)
            for i in range(4): a('v_mov_b32 v%d, -1' % (232 + i))
            for i in range(4):
                tk['yc'] = a.emit('buffer_store_dwordx4 v[232:235], v241, s[64:67], s81 offen offset:%d sc1' % (1024 * i))
        def p_dma():
            srd(a, 60, P_SSMK, SZ_X)
            a('v_bfe_u32 v9, v1, 4, 1')
            a('v_lshlrev_b32 v9, 1, v9')
            a('v_xor_b32 v9, v9, v1')
            a('v_lshlrev_b32 v9, 4, v9')
            a('s_add_u32 m0, s82, 512')
            for i in range(4):
                a('buffer_load_dwordx4 v9, s[60:63], s81 offen offset:%d lds' % (1024 * i))
        def pads():
            for i in range(4): a('v_mov_b32 v%d, 0' % (32 + i))
            a('v_and_b32 v10, 31, v1')
            a('v_lshlrev_b32 v10, 4, v10')
            a('v_add_u32 v10, s82, v10')
            a('ds_write_b128 v10, v[32:35]')
            a('v_and_b32 v10, 3, v1')
            a('v_lshlrev_b32 v10, 4, v10')
            a('v_add_u32 v10, s83, v10')
            a('ds_write_b128 v10, v[32:35]')
        K = cfg.kv_at
        if cfg.early:
            slA = {1: [kv_part(1)], 2: [kv_part(3), n_issue], 3: [ut_srd, ut_store], 5: [flag_after('ut', 's89')], 7: [late_srds]}
        else:
            slA = {K: [kv_loads], K + 2: [kv_part(1)], K + 3: [kv_part(3), n_issue], K + 4: [ut_srd, ut_store], cfg.utf_at: [flag_after('ut', 's89')],
                   7: [late_srds]}
        slA.setdefault(8 if cfg.ungate else 7, [])
        fpoll = lambda: tk.__setitem__('f', poll_issue(a, 240, '0', 243))
        def q_dma():
            poll_wait(a, cfg, tk['f'], 240, '0', 243, sleep=cfg.fsleep)
            a('s_add_u32 m0, s83, 64')
            for i in range(4):
                tk['q'] = a.emit('buffer_load_dwordx4 v241, s[56:59], s81 offen offset:%d sc1 lds' % (1024 * i))
            lds_word(a, 10, 48, 236, 237)
        slA[8] = [p_dma] + ([fpoll] if cfg.ungate else [q_dma])
        if not cfg.ungate:
            if cfg.pollpre8: slA[8].insert(0, fpoll)
            else: slA[7].append(fpoll)
        if not (cfg.cclear or cfg.bclear or cfg.yflag):
            slA.setdefault(cfg.late, []).append(y_clear)
            slA[cfg.late + 2].insert(0, flag_after('yc', 's80'))
        if cfg.kvfirst:
            kv_loads(); slA[0] = []
        prA = {K + 2: [kv_part(0)], K + 3: [kv_part(2)], 5: [n_get, d_fin], 6 + K: [pads]}
        if cfg.early:
            kv_loads()
            prA = {1: [kv_part(0)], 2: [kv_part(2)], 4: [n_get, d_fin], 6: [pads]}
        assert K <= 1
        for i in range(NSTAGE): interval(i, slA, prA)
        if cfg.ungate: q_dma()
        if not cfg.quiet:
            wdl_dma()
            q_loads()
            tail_issue()
        a('s_setprio %d' % cfg.vprio)
        a.wait_vm(tk['q'])
        gen = conv_main(a, cfg, prof)
        if not cfg.quiet:
            for _ in range(cfg.pub_at): next(gen)
            wdl_publish()
        for _ in gen: pass
        if cfg.yflag:
            q_loads()
            a.emit('s_waitcnt vmcnt(5)')
            flag_store(a, 's80')
        else:
            if cfg.quiet:
                q_loads()
                tail_issue()
            tail_check()
        a('s_setprio 0')
        a('s_branch Lfetch')

    if not odd: type_a()

    a.vmq, a.hist = list(saved[0]), list(saved[2])
    stage_tok.clear(); stage_tok.update(saved[1])
    if spf: spf.next = saved[3]
    a.lgq = []
    if not odd: a.label('LtypeB')
    srd(a, 56, P_WD, SZ_W)
    srd(a, 68, P_GW, 1280)
    a('s_mul_i32 s78, s4, 12')
    a('s_add_u32 s78, s78, s5')
    a('s_sub_u32 s78, s78, 20')
    a('s_lshl_b32 s78, s78, 2')
    a('s_add_u32 s78, s78, s10')
    a('s_lshr_b32 s79, s78, 3')
    a('s_and_b32 s78, s78, 7')
    a('s_mul_i32 s89, s78, 48')
    a('s_add_u32 s89, s89, s79')
    a('s_lshl_b32 s89, s89, 2')
    a('s_add_u32 s89, s89, %d' % F_WD)
    a('s_mul_i32 s80, s79, 40960')
    a('s_mul_i32 s77, s78, 160')
    a('s_add_u32 s80, s80, s77')
    a('s_mul_i32 s81, s78, 245760')
    a('s_mul_i32 s77, s79, 5120')
    a('s_add_u32 s81, s81, s77')
    lane_min(a, 240, 12)
    def wd_loads():
        for i in range(5):
            a('v_add_u32 v9, %d, v1' % (64 * i))
            a('v_mul_u32_u24 v10, 6554, v9')
            a('v_lshrrev_b32 v10, 16, v10')
            a('v_mul_u32_u24 v11, 10, v10')
            a('v_sub_u32 v11, v9, v11')
            a('v_mul_u32_u24 v10, 1280, v10')
            a('v_lshl_add_u32 v10, v11, 4, v10')
            a('s_add_u32 m0, s82, %d' % (1024 * i))
            tk['wd'] = a.emit('buffer_load_dwordx4 v10, s[56:59], s80 offen lds')
    def wd_part():
        a('v_lshrrev_b32 v9, 5, v1')
        a('v_lshlrev_b32 v9, 4, v9')
        a('v_bfe_u32 v10, v1, 2, 3')
        a('v_add_u32 v9, v9, v10')
        a('v_mul_u32_u24 v9, 160, v9')
        a('v_and_b32 v10, 3, v1')
        a('v_lshl_add_u32 v9, v10, 3, v9')
        a('v_add_u32 v9, s82, v9')
        srd(a, 60, P_WS, SZ_WD, WS_WD)
        a('s_add_u32 s80, s81, 4096')
        a.wait_vm(tk['wd'])
        for dl in range(5):
            for t in range(2):
                a('ds_read_b64_tr_b16 v[%d:%d], v9 offset:%d' % (32 + 4 * dl + 2 * t, 33 + 4 * dl + 2 * t, t * 1280 + dl * 32))
        a.wait_all_lg()
        for dl in range(4):
            a('buffer_store_dwordx4 %s, v241, s[60:63], s81 offen offset:%d sc1' % (vr(32 + 4 * dl, 4), 1024 * dl))
        tk['wds'] = a.emit('buffer_store_dwordx4 %s, v241, s[60:63], s80 offen sc1' % vr(48, 4))
    GX, GW = 56, 104
    gtk = []
    def g_loads():
        srd(a, 56, P_GW, 1280)
        a('s_sub_u32 s76, s5, 20')
        a('s_lshl_b32 s76, s76, 2')
        a('s_add_u32 s76, s76, s10')
        a('s_cmp_ge_u32 s76, 32')
        a('s_cselect_b32 s86, 0x%x, 0' % FAR)
        a('s_and_b32 s77, s4, 1')
        a('s_lshl_b32 s77, s77, 2')
        a('s_lshr_b32 s78, s76, 3')
        a('s_add_u32 s77, s77, s78')
        a('s_and_b32 s76, s76, 7')
        a('s_lshl_b32 s78, s6, 9')
        a('s_lshl_b32 s79, s77, 3')
        a('s_add_u32 s78, s78, s79')
        a('s_add_u32 s78, s78, s76')
        a('s_mul_i32 s78, s78, 1280')
        a('s_or_b32 s78, s78, s86')
        a('v_lshrrev_b32 v9, 5, v1')
        a('v_and_b32 v10, 31, v1')
        a('v_lshlrev_b32 v11, 4, v10')
        a('s_mov_b32 s79, 81920')
        a('v_mul_lo_u32 v12, v9, s79')
        a('v_add_u32 v12, v12, v11')
        a('v_cmp_gt_u32 vcc, 16, v10')
        a('v_mov_b32 v15, 0x%x' % OOB)
        a('v_cndmask_b32 v13, v15, v12, vcc')
        for i in range(3):
            a('buffer_load_dwordx4 %s, v11, s[56:59], 0 offen offset:%d' % (vr(GW + 4 * i, 4), 512 * i))
        for p in range(4):
            a('buffer_load_dwordx4 %s, v12, s[44:47], s78 offen' % vr(GX + 12 * p, 4))
            a('buffer_load_dwordx4 %s, v12, s[44:47], s78 offen offset:512' % vr(GX + 12 * p + 4, 4))
            gtk.append(a.emit('buffer_load_dwordx4 %s, v13, s[44:47], s78 offen offset:1024' % vr(GX + 12 * p + 8, 4)))
            a('s_add_u32 s78, s78, 163840')
        a('s_lshl_b32 s78, s6, 3')
        a('s_add_u32 s78, s78, s77')
        a('s_lshl_b32 s78, s78, 3')
        a('s_add_u32 s78, s78, s76')
        a('s_lshl_b32 s80, s78, 6')
        a('s_or_b32 s80, s80, s86')
        a('v_lshlrev_b32 v14, 3, v9')
        a('v_cmp_eq_u32 vcc, 31, v10')
        a('v_cndmask_b32 v14, v15, v14, vcc')
    def g_compute():
        for p in range(4):
            a.wait_vm(gtk[p])
            a('v_mov_b32 v%d, 0' % (24 + p))
            for i in range(12):
                a('v_dot2_f32_bf16 v%d, v%d, v%d, v%d' % (24 + p, GX + 12 * p + i, GW + i, 24 + p))
        a('s_nop 2')
        for sh in (1, 2, 4, 8):
            for p in range(4):
                a('v_add_f32_dpp v%d, v%d, v%d row_shr:%d row_mask:0xf bank_mask:0xf bound_ctrl:0' % (24 + p, 24 + p, 24 + p, sh))
        for p in range(4):
            a('v_add_f32_dpp v%d, v%d, v%d row_bcast:15 row_mask:0xa bank_mask:0xf' % (24 + p, 24 + p, 24 + p))
        for p in range(4):
            r = 24 + p
            a('v_cvt_pk_bf16_f32 v%d, v%d, v%d' % (r, r, r))
            a('v_and_b32 v%d, 0xffff0000, v%d' % (r, r))
            a('v_mul_f32 v%d, 0xbfb8aa3b, v%d' % (r, r))
            a('v_exp_f32 v%d, v%d' % (r, r))
            a('v_add_f32 v%d, 1.0, v%d' % (r, r))
            a('v_rcp_f32 v%d, v%d' % (r, r))
            a('v_cvt_pk_bf16_f32 v%d, v%d, v%d' % (r, r, r))
            a('v_and_b32 v%d, 0xffff0000, v%d' % (29 + 2 * p, r))
            a('v_mov_b32 v%d, v%d' % (28 + 2 * p, VN))
            a('buffer_store_dwordx2 v[%d:%d], v14, s[52:55], s80 offen offset:%d sc1' % (28 + 2 * p, 29 + 2 * p, 16 * p))
    def b_clear():
        srd(a, 64, P_WS, SZ_Y2, WS_Y2)
        a('s_sub_u32 s76, s5, 20')
        a('s_lshl_b32 s76, s76, 2')
        a('s_add_u32 s76, s76, s10')
        a('s_lshl_b32 s77, s4, 6')
        a('s_add_u32 s87, s76, s77')
        a('s_lshl_b32 s87, s87, 2')
        a('s_add_u32 s87, s87, %d' % F_YC)
        a('s_mul_i32 s76, s76, 7')
        for i in range(4): a('v_mov_b32 v%d, -1' % (232 + i))
        for i in range(7):
            a('s_add_u32 s77, s76, %d' % i)
            a('s_cmp_ge_u32 s77, 320')
            a('s_cselect_b32 s78, 0x%x, 0' % FAR)
            a('s_lshl_b32 s77, s77, 10')
            a('s_mul_i32 s79, s4, 327680')
            a('s_add_u32 s77, s77, s79')
            a('s_or_b32 s77, s77, s78')
            tk['yc'] = a.emit('buffer_store_dwordx4 v[232:235], v241, s[64:67], s77 offen sc1')
    W = cfg.wd_at
    slB = {}
    for i, f in ((W, wd_loads), (W + 2, wd_part), (1, n_issue), (W + cfg.wdf_d, flag_after('wds', 's89')), (7, late_srds)):
        slB.setdefault(i, []).append(f)
    def wd_touch_issue():
        a('s_and_b32 s76, s4, 1')
        a('s_mul_i32 s79, s76, 768')
        a('s_add_u32 s79, s79, %d' % F_WD)
        a('v_lshlrev_b32 v16, 2, v1')
        a('v_add_u32 v17, 256, v16')
        a('v_add_u32 v18, 512, v16')
        tk['wt'] = [poll_issue(a, 16 + i, 's79', 19 + i) for i in range(3)]
    def wd_touch():
        for i in range(3): poll_wait(a, cfg, tk['wt'][i], 16 + i, 's79', 19 + i)
        a('s_sub_u32 s77, s5, 20')
        a('s_lshl_b32 s77, s77, 2')
        a('s_add_u32 s77, s77, s10')
        a('s_mul_i32 s77, s77, 20480')
        a('s_and_b32 s76, s4, 1')
        a('s_mul_i32 s76, s76, 983040')
        a('s_add_u32 s76, s76, s77')
        a('v_lshlrev_b32 v16, 7, v1')
        a('v_add_u32 v17, 8192, v16')
        a('v_add_u32 v18, 16384, v16')
        a('v_cmp_gt_u32 vcc, 32, v1')
        a('v_mov_b32 v19, 0x%x' % OOB)
        a('v_cndmask_b32 v18, v19, v18, vcc')
        for i in range(3):
            a('buffer_load_dword v252, v%d, s[48:51], s76 offen sc1' % (16 + i))
    fpollB = lambda: tk.__setitem__('f', poll_issue(a, 240, 's88', 243))
    fwaitB = lambda: (poll_wait(a, cfg, tk['f'], 240, 's88', 243), lds_word(a, 10, 48, 236, 237))
    if cfg.ungate: slB[8] = [fpollB]
    elif cfg.pollpre8: slB[8] = [fpollB, g_loads, fwaitB]
    else: slB[7].append(fpollB); slB[8] = [g_loads, fwaitB]
    if cfg.cotouch == 1:
        slB[7].append(wd_touch_issue); slB[8].insert(0, wd_touch)
    if cfg.cotouch >= 2:
        slB[8].insert(0, wd_touch_issue)
    if cfg.cotouch == 3:
        slB[8].remove(g_loads)
    if cfg.bclear:
        slB.setdefault(cfg.clr_at, []).append(b_clear)
        slB.setdefault(max(cfg.clr_at + 2, 3), []).append(flag_after('yc', 's87'))
    for i in range(NSTAGE): interval(i, slB, {3: [n_get]})
    if cfg.ungate:
        fwaitB(); g_loads()
    wdl_dma()
    if cfg.cotouch >= 2: wd_touch()
    if cfg.cotouch == 3: g_loads()
    g_compute()
    q_loads()
    if not cfg.yflag: tail_issue()
    a('s_setprio 0')
    wdl_publish()
    lds_word_wait(a, cfg, 10, 0, 236, 237, 'Ldummy') if False else None
    if not cfg.yflag: tail_check()
    if not odd:
        a('s_branch Lfetch')
        return
    a.pad()
    a.label('Lfetch')
    a.reset_queues()
    a('s_mul_i32 s11, s85, 327680')
    a('s_lshr_b32 s12, s84, 3')
    a('s_lshl_b32 s12, s12, 10')
    a('s_add_u32 s11, s11, s12')
    a('s_and_b32 s12, s84, 7')
    a('s_lshl_b32 s12, s12, 7')
    a('s_add_u32 s11, s11, s12')
    a('s_lshl_b32 s12, s10, 5')
    a('s_add_u32 s11, s11, s12')
    a('v_lshrrev_b32 v24, 1, v1')
    a('v_lshlrev_b32 v24, 12, v24')
    a('v_and_b32 v25, 1, v1')
    a('v_lshl_add_u32 v24, v25, 4, v24')
    a('v_add_u32 v25, 0x20000, v24')
    a('v_add_u32 v26, 0x40000, v24')
    a('v_cmp_gt_u32 vcc, 32, v1')
    a('v_mov_b32 v27, 0x%x' % OOB)
    a('v_cndmask_b32 v26, v27, v26, vcc')
    a('v_lshlrev_b32 v28, 2, v1')
    a('s_add_u32 s12, s83, 3072')
    a('v_add_u32 v28, s12, v28')
    a('v_add_u32 v29, s83, v241')
    a('v_lshlrev_b32 v30, 3, v1')
    a('v_add_u32 v30, s83, v30')
    a('v_add_u32 v31, s82, v241')
    a('s_lshl_b32 s96, s84, 6')
    a('s_lshl_b32 s97, s10, 4')
    a('s_add_u32 s96, s96, s97')
    a('v_and_b32 v33, 15, v1')
    a('v_add_u32 v33, s96, v33')
    a('v_lshlrev_b32 v33, 3, v33')
    lds_word_wait(a, cfg, 10, 64, 236, 237, 'Lgate2', sleep=cfg.gsleep)
    if cfg.yflag:
        tail_issue(); tail_check()
    prof.stamp(6)
    YV = 40
    lo, ok = newlabel('Ly'), newlabel('Ly_ok')
    a('s_mov_b32 s94, %d' % cfg.spin)
    a.label(lo)
    for i in range(3):
        a('buffer_load_dwordx4 %s, v%d, s[64:67], s11 offen sc1' % (vr(YV + 4 * i, 4), 24 + i))
    a('buffer_load_dwordx2 v[34:35], v33, s[52:55], 0 offen sc1')
    a.wait_all_vm()
    a('v_max3_u32 v27, v%d, v%d, v%d' % (YV, YV + 1, YV + 2))
    for i in range(3, 11, 2):
        a('v_max3_u32 v27, v27, v%d, v%d' % (YV + i, YV + i + 1))
    a('v_max_u32 v27, v27, v%d' % (YV + 11))
    a('v_cmp_eq_u32 vcc, -1, v27')
    a('v_cmp_ne_u32 s[96:97], s%d, v34' % NONCE)
    a('s_or_b64 vcc, vcc, s[96:97]')
    a('s_cbranch_scc0 %s' % ok)
    a('s_sleep %d' % cfg.ysleep)
    a('s_sub_u32 s94, s94, 1')
    a('s_cmp_lg_u32 s94, 0')
    a('s_cbranch_scc1 %s' % lo)
    a.label(ok)
    prof.stamp(7)
    a('v_mov_b32 v%d, v35' % GV)
    a('ds_write_b128 v29, %s' % vr(YV, 4))
    a('ds_write_b128 v29, %s offset:1024' % vr(YV + 4, 4))
    a('ds_write_b128 v29, %s offset:2048' % vr(YV + 8, 4))
    a('v_sub_f32 v32, 1.0, v%d' % GV)
    a('v_cvt_pk_bf16_f32 v32, v32, v32')
    a('v_and_b32 v32, 0xffff0000, v32')
    a('ds_write_b32 v28, v32')
    for dl in range(5):
        x = 72 + 4 * dl
        unpack_lo(a, x, QV + 2 * dl); unpack_hi(a, x + 1, QV + 2 * dl); unpack_lo(a, x + 2, QV + 2 * dl + 1); unpack_hi(a, x + 3, QV + 2 * dl + 1)
        for i in range(4): a('v_mul_f32 v%d, v%d, v%d' % (x + i, GV, x + i))
    a.wait_all_lg()
    tl = [a.emit('ds_read_b64_tr_b16 %s, v30 offset:%d' % (vr(56 + 2 * dl, 2), dl * 512)) for dl in range(5)]
    for dl in range(5):
        a.wait_lg(tl[dl])
        x = 72 + 4 * dl; y = 96
        unpack_lo(a, y, 56 + 2 * dl); unpack_hi(a, y + 1, 56 + 2 * dl); unpack_lo(a, y + 2, 57 + 2 * dl); unpack_hi(a, y + 3, 57 + 2 * dl)
        for i in range(4): a('v_mul_f32 v%d, v%d, v%d' % (x + i, x + i, y + i))
        a('ds_write_b128 v31, %s offset:%d' % (vr(x, 4), dl * 1024))
    a.wait_all_lg()
    a('s_barrier')
    prof.stamp(8)
    prof.flush(243)

def generate(cfg):
    if cfg.yflag: cfg.bclear = 0; cfg.cclear = 0
    LOCAL[0] = cfg.local
    a = Asm()
    a.raw('.amdgcn_target "amdgcn-amd-amdhsa--gfx950"')
    a.raw('.text')
    kn = NAME + '_kernel'
    kernel_header(a, kn)
    prof = Prof(a, cfg, 0)
    prof.start()
    a('s_cmp_ge_u32 s2, 256')
    a('s_cbranch_scc1 Ldone')
    a('s_load_dwordx2 s[44:45], s[0:1], 0')
    a('s_load_dwordx2 s[48:49], s[0:1], 56')
    a('s_load_dwordx2 s[52:53], s[0:1], 64')
    a('s_load_dwordx8 s[16:23], s[0:1], 0')
    a('s_load_dwordx4 s[24:27], s[0:1], 32')
    a('s_load_dwordx8 s[32:39], s[0:1], 64')
    a('s_load_dwordx4 s[40:43], s[0:1], 96')
    def code_prefetch(nw, n):
        a('s_getpc_b64 s[60:61]')
        a.label('Lpc')
        a('s_sub_u32 s60, s60, (Lpc - %s)' % kn)
        a('s_subb_u32 s61, s61, 0')
        a('s_mov_b32 s62, CODE_END - %s' % kn)
        a('s_mov_b32 s63, 0x00020000')
        a('v_lshrrev_b32 v253, 6, v0')
        a('s_lshr_b32 s59, s2, 3')
        a('s_mul_i32 s59, s59, %d' % nw)
        a('v_add_u32 v253, s59, v253')
        a('v_mul_u32_u24 v253, %d, v253' % n)
        a('v_and_b32 v254, 63, v0')
        a('v_add_u32 v253, v253, v254')
        a('v_lshlrev_b32 v253, 7, v253')
        a('v_cmp_gt_u32 vcc, %d, v254' % n)
        a('v_mov_b32 v254, 0x%x' % OOB)
        a('v_cndmask_b32 v253, v254, v253, vcc')
        a('buffer_load_dword v254, v253, s[60:63], 0 offen')
        a.vmq.pop()
    if cfg.cpf and not cfg.cpfc: code_prefetch(8, cfg.cpf)
    a('v_lshrrev_b32 v2, 6, v0')
    a('v_and_b32 v1, 63, v0')
    a('v_readfirstlane_b32 s3, v2')
    a('s_and_b32 s4, s2, 7')
    a('s_lshr_b32 s5, s2, 3')
    a('s_lshr_b32 s6, s4, 1')
    a('s_mul_i32 s9, s5, 13108')
    a('s_lshr_b32 s9, s9, 16')
    a('s_mul_i32 s7, s9, 5')
    a('s_sub_u32 s7, s5, s7')
    a('s_and_b32 s8, s4, 1')
    a('s_mul_i32 s10, s8, 5')
    a('s_add_u32 s7, s7, s10')
    a('s_lshl_b32 s10, s8, 1')
    a('s_mul_i32 s8, s6, 6')
    a('s_add_u32 s8, s8, s9')
    a('s_lshl_b32 s11, s6, 2')
    a('s_add_u32 s10, s10, s11')
    a('s_add_u32 s10, s10, s5')
    a('s_sub_u32 s10, s10, 30')
    a('s_cmp_ge_u32 s5, 30')
    a('s_cselect_b32 s8, s10, s8')
    a('s_cselect_b32 s7, 15, s7')
    a('s_cmp_lt_u32 s3, 4')
    a('s_cbranch_scc1 Lcwave')
    h0 = list(a.hist)
    l_wave(a, cfg, prof)
    a.label('Ldone')
    a('s_endpgm')
    a.hist = h0; a.reset_queues()
    a.label('Lcwave')
    if cfg.cpf and cfg.cpfc: code_prefetch(4, 3)
    c_wave(a, cfg, prof)
    a.raw('CODE_END:')
    hdr = open('cdna_kernels/%s.s.ref' % NAME).read().split('; Override launch')[0]
    hdr += """; Generated by my own generator script (dev/gen11.py). One fused launch, 256 workgroups x 8 waves, one per CU.
"""
    hdr += '; @launch grid=(256,1,1) block=(512,1,1) lds=%d\n' % LDS
    return hdr + a.text() + kernel_desc(kn, 256)

if __name__ == '__main__':
    cfg = Cfg()
    out = sys.argv[1]
    for kv in sys.argv[2:]:
        k, v = kv.split('=')
        assert hasattr(cfg, k), k
        setattr(cfg, k, int(v))
    open(out, 'w').write(generate(cfg))
```

```python
import sys
from asmlib import *
from gen2 import (NAME, WS_H, SZ_H, WS_WD, SZ_WD, WS_UT, SZ_UT, WS_Y2, SZ_Y2, WS_G, SZ_G, WS_PROF, SZ_X, SZ_W, OOB,
                  P_Q, P_K, P_V, P_SHK, P_SSMK, P_SSMD, P_BX, P_WG, P_WU, P_WD, P_GW, P_OUT, P_DBG, P_WS,
                  load_kernargs, srd, Prof, kernel_header, kernel_desc, unpack_lo, unpack_hi, P2, u32)
import gen8
from gen8 import (newlabel, row_off, conv_setup, conv_main, FAR, QV, GV, SF, NONCE, VZ, VN, flag_store, poll_issue, poll_wait,
                  lane_min, lds_spin)

SZ_G = 16384
WS_F = WS_G + SZ_G
F_UT, F_H, F_WD, F_G, F_YC = 0, 2560, 14848, 16384, 17408
SZ_F = 19968

class Cfg:
    prof = 0
    lstamp = 1
    spin = 200000
    g1prio = 0
    cprio = 2
    lprio = 2
    vprio = 1
    ysleep = 8
    hsleep = 2
    nb = 4
    pub_at = 24
    local = 0
    dstore = 0
    ygate = 2
    late = 5
    kvfirst = 0
    rot2 = 0
    ungate = 0
    na = 4
    clr_at = 0
    gsleep = 6
    ocoal = 1
    oflag = 1
    spre = 0
    pqsplit = 0
    coop = 1
    cpfc = 1
    e8 = 0
    e8ks = 2
    loop1 = 0
    cpf = 2
    pre_ack = 2
    ptouch = 0
    utf_at = 5
    wdf_d = 3
    fsleep = 4
    pollpre8 = 1
    alt = 0
    yflag = 0
    grp = 0
    spf = 0
    spfx = 8
    cotouch = 0
    pollat = 99
    quiet = 1
    fin = 1
    areg = 4
    nine = 0
    early = 0
    bclear = 1
    xrot = 1
    kv_at = 0
    wd_at = 1
    cclear = 0
    drop = 0
    lsteps = 0
    c0 = 1

SLOT = 41088
OFF_GATE, OFF_UP = 16384, 16384 + 12320
NSTAGE, NSLOT = 10, 3
PA = NSLOT * SLOT
QA = PA + 4 * 5120
QSZ = 4224
CNT = QA + 4 * QSZ
LDS = CNT + 128
def wblk(i): return [SLOT, SLOT + 5120, 2 * SLOT, 2 * SLOT + 5120, 0, 5120][i]

def wave_common(a):
    srd(a, SF, P_WS, SZ_F, WS_F)
    a('v_cmp_eq_u32 vcc, 0, v1')
    a('v_mov_b32 v%d, 0x%x' % (VZ, OOB))
    a('v_cndmask_b32 v%d, v%d, 0, vcc' % (VZ, VZ))

LOCAL = [0]
def g2_scalars(a, st, dt):
    if not LOCAL[0]: return gen8.g2_scalars(a, st, dt)
    a('s_lshl_b32 s%d, s4, 2' % st)
    a('s_and_b32 s%d, s5, 3' % dt)
    a('s_add_u32 s%d, s%d, s%d' % (st, st, dt))
    a('s_lshr_b32 s%d, s5, 2' % dt)

def rot_off(a, cfg, d):
    if cfg.rot2 == 1:
        a('s_and_b32 s%d, s85, 3' % d)
        a('s_mul_i32 s%d, s%d, 6' % (d, d))
        a('s_and_b32 s96, s84, 7')
        a('s_mul_i32 s96, s96, 3')
        a('s_add_u32 s%d, s%d, s96' % (d, d))
        a('s_lshr_b32 s%d, s%d, 1' % (d, d))
    elif cfg.rot2 == 3:
        a('s_and_b32 s%d, s84, 7' % d)
        a('s_mul_i32 s%d, s%d, 3' % (d, d))
        a('s_lshr_b32 s%d, s%d, 1' % (d, d))
    else:
        a('s_and_b32 s%d, s85, 3' % d)
        a('s_mul_i32 s%d, s%d, 3' % (d, d))
    a('s_cmp_ge_u32 s%d, 12' % d)
    a('s_cselect_b32 s96, 12, 0')
    a('s_sub_u32 s%d, s%d, s96' % (d, d))
def kap(a, d, off, k):
    a('s_add_u32 s%d, s%d, %d' % (d, off, k))
    a('s_cmp_ge_u32 s%d, 12' % d)
    a('s_cselect_b32 s96, 12, 0')
    a('s_sub_u32 s%d, s%d, s96' % (d, d))

def lds_word(a, sw, off, t0, t1):
    a('s_lshl_b32 s96, s%d, 2' % sw)
    a('s_add_u32 s96, s96, %d' % (CNT + off))
    a('v_mov_b32 v%d, s96' % t0)
    a('v_mov_b32 v%d, 1' % t1)
    a('ds_write_b32 v%d, v%d' % (t0, t1))
def lds_word_wait(a, cfg, sw, off, t0, t1, name, sleep=1):
    a('s_lshl_b32 s96, s%d, 2' % sw)
    a('s_add_u32 s96, s96, %d' % (CNT + off))
    a('v_mov_b32 v%d, s96' % t0)
    lds_spin(a, cfg, t0, t1, 96, 'eq', 1, name, sleep)

def c_setup_odd(a):
    a('s_and_b32 s10, s3, 1')
    a('s_lshr_b32 s11, s3, 1')
    a('v_and_b32 v2, 31, v1')
    a('v_lshrrev_b32 v3, 5, v1')
    a('v_lshrrev_b32 v9, 1, v2')
    a('v_and_b32 v9, 7, v9')
    a('v_xor_b32 v9, v9, v3')
    a('v_lshlrev_b32 v9, 4, v9')
    a('v_lshl_add_u32 v9, v2, 7, v9')
    a('s_lshl_b32 s12, s11, 13')
    a('v_add_u32 v4, s12, v9')
    a('v_xor_b32 v5, 32, v4')
    a('v_xor_b32 v6, 64, v4')
    a('v_xor_b32 v7, 96, v4')
    a('v_bfe_u32 v9, v1, 4, 1')
    a('v_mul_u32_u24 v8, 12320, v9')
    a('v_bfe_u32 v9, v1, 2, 2')
    a('v_lshl_add_u32 v9, v3, 3, v9')
    a('v_mul_u32_u24 v9, 192, v9')
    a('v_add_u32 v8, v8, v9')
    a('v_and_b32 v9, 3, v1')
    a('v_lshl_add_u32 v8, v9, 3, v8')
    a('s_mul_i32 s12, s10, 96')
    a('s_add_u32 s12, s12, %d' % OFF_GATE)
    a('v_add_u32 v8, s12, v8')
    a('v_lshrrev_b32 v9, 4, v2')
    a('v_lshlrev_b32 v10, 10, v9')
    a('v_lshl_add_u32 v10, v3, 8, v10')
    a('v_and_b32 v9, 15, v2')
    a('v_lshl_add_u32 v10, v9, 4, v10')
    a('s_lshl_b32 s12, s7, 1')
    a('s_add_u32 s12, s12, s11')
    a('s_mul_i32 s13, s8, 6')
    a('s_mul_i32 s14, s10, 3')
    a('s_add_u32 s13, s13, s14')
    a('s_mul_i32 s79, s12, 96')
    a('s_add_u32 s79, s79, s13')
    a('s_lshl_b32 s79, s79, 2')
    a('s_add_u32 s79, s79, %d' % F_H)
    a('s_mul_i32 s12, s12, 196608')
    for tt in range(3):
        a('s_add_u32 s14, s13, %d' % tt)
        a('s_lshr_b32 s15, s14, 1')
        a('s_lshl_b32 s15, s15, 12')
        a('s_and_b32 s14, s14, 1')
        a('s_lshl_b32 s14, s14, 9')
        a('s_add_u32 s14, s14, s15')
        a('s_add_u32 s%d, s14, s12' % (76 + tt))
    a('v_lshlrev_b32 v249, 2, v1')
    a('v_add_u32 v249, s79, v249')
    a('v_cmp_gt_u32 vcc, 3, v1')
    a('v_mov_b32 v9, 0x%x' % OOB)
    a('v_cndmask_b32 v249, v9, v249, vcc')

def c_setup_main(a):
    a('s_and_b32 s10, s3, 1')
    a('s_lshr_b32 s11, s3, 1')
    a('v_and_b32 v2, 31, v1')
    a('v_lshrrev_b32 v3, 5, v1')
    a('v_lshrrev_b32 v9, 1, v2')
    a('v_and_b32 v9, 7, v9')
    a('v_xor_b32 v9, v9, v3')
    a('v_lshlrev_b32 v9, 4, v9')
    a('v_lshl_add_u32 v9, v2, 7, v9')
    a('s_mul_i32 s12, s11, 12288')
    a('v_add_u32 v4, s12, v9')
    a('v_xor_b32 v5, 32, v4')
    a('v_xor_b32 v6, 64, v4')
    a('v_xor_b32 v7, 96, v4')
    a('v_bfe_u32 v9, v1, 4, 1')
    a('v_bfe_u32 v11, v1, 2, 2')
    a('v_lshl_add_u32 v8, v3, 3, v11')
    a('v_lshlrev_b32 v8, 7, v8')
    a('v_lshl_add_u32 v8, v9, 13, v8')
    a('v_xor_b32 v9, s10, v9')
    a('v_lshl_add_u32 v8, v9, 6, v8')
    a('v_lshrrev_b32 v11, 1, v11')
    a('v_lshl_add_u32 v8, v11, 5, v8')
    a('v_and_b32 v9, 3, v1')
    a('v_lshl_add_u32 v8, v9, 3, v8')
    a('v_add_u32 v8, 24576, v8')
    a('v_xor_b32 v11, 32, v8')
    a('v_lshrrev_b32 v9, 4, v2')
    a('v_lshlrev_b32 v10, 10, v9')
    a('v_lshl_add_u32 v10, v3, 8, v10')
    a('v_and_b32 v9, 15, v2')
    a('v_lshl_add_u32 v10, v9, 4, v10')
    a('s_lshl_b32 s13, s8, 1')
    a('s_add_u32 s13, s13, s10')
    a('v_mov_b32 v249, 0x%x' % OOB)
    for b in range(3):
        a('s_mul_i32 s12, s11, 3')
        a('s_add_u32 s12, s12, %d' % b)
        a('s_and_b32 s14, s12, 1')
        a('s_lshr_b32 s12, s12, 1')
        a('s_mul_i32 s15, s7, 3')
        a('s_add_u32 s12, s12, s15')
        a('s_mul_i32 s15, s12, 96')
        a('s_add_u32 s15, s15, s14')
        a('s_lshl_b32 s79, s13, 1')
        a('s_add_u32 s15, s15, s79')
        a('s_lshl_b32 s15, s15, 2')
        a('s_add_u32 s15, s15, %d' % F_H)
        a('v_writelane_b32 v249, s15, %d' % b)
        a('s_mul_i32 s12, s12, 196608')
        a('s_lshl_b32 s14, s14, 11')
        a('s_add_u32 s12, s12, s14')
        a('s_lshl_b32 s14, s13, 12')
        a('s_add_u32 s%d, s12, s14' % (76 + b))

def c_gemm1(a, cfg, prof, odd):
    ACC = 64
    FB = [16, 40]
    if odd:
        NT_, NBT = 3, 2
        def reads(buf, ks):
            f = FB[buf]
            A = lambda tt: ['ds_read_b64_tr_b16 v[%d:%d], v8 offset:%d' % (f + 4 * tt + 2 * t, f + 4 * tt + 2 * t + 1, ks * 3072 + t * 768 + tt * 32) for t in range(2)]
            B = lambda b: ['ds_read_b128 v[%d:%d], v%d offset:%d' % (f + 12 + 4 * b, f + 15 + 4 * b, 4 + ks, b * 4096)]
            return A(0) + B(0) + B(1) + A(1) + A(2)
        order = [(0, 0, 2), (0, 1, 3), (1, 0, 5), (1, 1, 5), (2, 0, 7), (2, 1, 7)]
        s3_, sn = {1: 3, 2: 2, 3: 2, 4: 1}, {0: 2, 1: 2, 2: 2, 3: 2}
        addr = (4, 5, 6, 7, 8)
        store = lambda tt, b: (76 + tt, b * 2048)
    else:
        NT_, NBT = 2, 3
        def reads(buf, ks):
            f = FB[buf]
            A = lambda tt: ['ds_read_b64_tr_b16 v[%d:%d], v%d offset:%d' % (f + 4 * tt + 2 * t, f + 4 * tt + 2 * t + 1, (8, 11)[tt], ks * 2048 + t * 512) for t in range(2)]
            B = lambda b: ['ds_read_b128 v[%d:%d], v%d offset:%d' % (f + 8 + 4 * b, f + 11 + 4 * b, 4 + ks, b * 4096)]
            return A(0) + B(0) + B(1) + B(2) + A(1)
        order = [(0, 0, 2), (0, 1, 3), (0, 2, 4), (1, 0, 6), (1, 1, 6), (1, 2, 6)]
        s3_, sn = {1: 3, 2: 2, 3: 2}, {0: 2, 1: 2, 2: 2, 3: 1}
        addr = (4, 5, 6, 7, 8, 11)
        store = lambda tt, b: (76 + b, tt * 512)
    def acc(tt, b): return ACC + (tt * NBT + b) * 16
    if cfg.loop1:
        assert not (cfg.nine or cfg.cclear)
        for r in range(ACC, ACC + 96): a('v_mov_b32 v%d, 0' % r)
        a('s_mov_b32 s64, 0')
        a('s_mov_b32 s65, 9')
    a('s_setprio %d' % cfg.g1prio)
    a('s_barrier')
    prof.stamp(1); prof.cyc(5)
    toks = [a.emit(r) for r in reads(0, 0)]
    cur = 0
    lname = newlabel('Lg1')
    for st in ((0, 9) if cfg.loop1 else range(NSTAGE)):
        if cfg.loop1 and st == 0: a.label(lname)
        if cfg.loop1 and st == 9: a('s_setprio %d' % cfg.cprio)
        for ks in range(4):
            last = (st == NSTAGE - 1 and ks == 3)
            nxt = None if last else reads(1 - cur, (ks + 1) % 4)
            ntoks = []
            f = FB[cur]
            for mi, (tt, b, need_i) in enumerate(order):
                a.wait_lg(toks[need_i])
                c = '0' if (st == 0 and ks == 0 and not cfg.loop1) else vr(acc(tt, b), 16)
                a('v_mfma_f32_32x32x16_bf16 %s, %s, %s, %s' % (vr(acc(tt, b), 16), vr(f + 4 * tt, 4), vr(f + 4 * NT_ + 4 * b, 4), c))
                if nxt is not None:
                    if ks == 3:
                        if mi == 0:
                            skip = cfg.nine and st == NSTAGE - 2
                            if not skip: a.wait_all_lg()
                            if cfg.loop1:
                                for r in addr: a('v_add_u32 v%d, s66, v%d' % (r, r))
                            else:
                                d = SLOT if (st + 1) % NSLOT else -(NSLOT - 1) * SLOT
                                for r in addr:
                                    a('v_add_u32 v%d, 0x%x, v%d' % (r, u32(d), r))
                            if not skip: a('s_barrier')
                            if st == NSTAGE - 2: a('s_setprio %d' % cfg.cprio)
                        sched = s3_
                    else:
                        sched = sn
                    for _ in range(sched.get(mi, 0)):
                        ntoks.append(a.emit(nxt[len(ntoks)]))
                if cfg.loop1 and st == 0 and (ks, mi) == (1, 5):
                    a('s_add_u32 s64, s64, 1')
                    a('s_cmp_eq_u32 s64, 3')
                    a('s_cselect_b32 s64, 0, s64')
                    a('s_cselect_b32 s66, %d, 0' % (3 * SLOT))
                    a('s_sub_u32 s66, %d, s66' % SLOT)
                if st >= 8 and cfg.areg:
                    n = ks * 6 + mi - 1 if not cfg.e8 else (st - 8) * 24 + (ks - cfg.e8ks) * 6 + mi
                    if not cfg.e8 and st == 8: n = -1
                    if 0 <= n < 5 * cfg.areg:
                        k, dl = n // 5, n % 5
                        if dl == 0: a('s_add_u32 s14, s86, %d' % (5120 * k))
                        b_ = 160 + k * 20 + 4 * dl
                        if dl < 4: a('buffer_load_dwordx4 %s, v240, s[48:51], s14 offen offset:%d sc1' % (vr(b_, 4), 1024 * dl))
                        else: a('buffer_load_dwordx4 %s, v241, s[48:51], s14 offen sc1' % vr(b_, 4))
                    elif cfg.e8 and 0 <= n - 5 * cfg.areg < 5 * cfg.e8:
                        i, dl = (n - 5 * cfg.areg) // 5, (n - 5 * cfg.areg) % 5
                        assert i < 2 or st == 9
                        if dl == 0:
                            a('s_add_u32 s14, s86, %d' % (5120 * (8 + i)))
                            a('s_add_u32 m0, s88, %d' % wblk(i))
                        if dl < 4: a('buffer_load_dwordx4 v240, s[48:51], s14 offen offset:%d sc1 lds' % (1024 * dl))
                        else:
                            a('s_add_u32 m0, s88, %d' % (wblk(i) + 4096))
                            a('buffer_load_dwordx4 v241, s[48:51], s14 offen sc1 lds')
                if (st, ks, mi) == ((9, 0, 5) if cfg.loop1 else (6, 1, 5)):
                    a('v_mov_b32 v9, %d' % (CNT + 32))
                    a('ds_read_b32 v%d, v9' % VN)
                if (st, ks, mi) == (7, 0, 5) and cfg.cclear and not odd:
                    a.emit('s_waitcnt vmcnt(0)')
                    flag_store(a, 's80')
            toks = ntoks
            cur = 1 - cur
        if cfg.loop1 and st == 0:
            a('s_sub_u32 s65, s65, 1')
            a('s_cmp_lg_u32 s65, 0')
            a('s_cbranch_scc1 %s' % lname)
    prof.stamp(2); prof.cyc(6)
    for tt in range(NT_):
        for b in range(NBT):
            x = acc(tt, b)
            o = 16 + (tt * NBT + b) * 4
            for p in range(8):
                a('v_mul_f32 v%d, v%d, v%d' % (x + p, x + p, x + 8 + p))
            for p in range(4):
                a('v_cvt_pk_bf16_f32 v%d, v%d, v%d' % (o + p, x + 2 * p, x + 2 * p + 1))
            a('buffer_store_dwordx4 %s, v10, s[44:47], s%d offen offset:%d sc1' % ((vr(o, 4),) + store(tt, b)))

def c_common(a, cfg):
    g2_scalars(a, 84, 85)
    a('s_mul_i32 s86, s85, 245760')
    a('s_mul_i32 s96, s3, 61440')
    a('s_add_u32 s86, s86, s96')
    a('s_mul_i32 s87, s84, 196608')
    a('s_mul_i32 s96, s3, 49152')
    a('s_add_u32 s87, s87, s96')
    a('s_mul_i32 s88, s3, 10240')
    a('s_mul_i32 s83, s84, 384')
    a('s_mul_i32 s96, s3, 96')
    a('s_add_u32 s83, s83, s96')
    a('s_add_u32 s83, s83, %d' % F_H)
    if cfg.ocoal:
        a('s_lshr_b32 s97, s84, 3')
        a('s_lshl_b32 s97, s97, 9')
        a('s_and_b32 s96, s84, 7')
        a('s_lshl_b32 s96, s96, 3')
        a('s_add_u32 s97, s97, s96')
        a('s_lshl_b32 s96, s3, 1')
        a('s_add_u32 s97, s97, s96')
        a('s_mul_i32 s89, s97, 1280')
        a('s_mul_i32 s96, s85, 160')
        a('s_add_u32 s89, s89, s96')
        for i in range(3):
            d = (242, 244, 245)[i]
            a('v_add_u32 v12, %d, v1' % (64 * i))
            a('v_mul_u32_u24 v13, 6554, v12')
            a('v_lshrrev_b32 v13, 16, v13')
            a('v_mul_u32_u24 v14, 10, v13')
            a('v_sub_u32 v14, v12, v14')
            a('v_and_b32 v15, 7, v13')
            a('v_lshlrev_b32 v15, 6, v15')
            a('v_lshrrev_b32 v13, 3, v13')
            a('v_add_u32 v13, v13, v15')
            a('v_mul_u32_u24 v13, 1280, v13')
            a('v_lshl_add_u32 v%d, v14, 4, v13' % d)
        a('v_cmp_gt_u32 vcc, 32, v1')
        a('v_mov_b32 v14, 0x%x' % OOB)
        a('v_cndmask_b32 v245, v14, v245, vcc')
    else:
        row_off(a, 244, 245, 84, 85, 3)
    a('v_lshlrev_b32 v240, 4, v1')
    a('v_add_u32 v241, 4096, v240')
    lane_min(a, 246, 24)
    a('v_and_b32 v9, 31, v1')
    a('v_lshlrev_b32 v9, 2, v9')
    a('v_add_u32 v9, %d, v9' % CNT)
    a('v_mov_b32 v12, 0')
    a('ds_write_b32 v9, v12')
    a.emit('s_waitcnt lgkmcnt(0)'); a.lgq = []
    srd(a, 44, P_WS, SZ_H, WS_H)
    srd(a, 48, P_WS, SZ_WD, WS_WD)
    srd(a, 56, P_OUT, SZ_X)
    wave_common(a)
    if cfg.ptouch:
        M2 = 2 << 20
        tl_ = [(P_K, 0), (P_K, M2), (P_V, 0), (P_V, M2), (P_WD, 0), (P_SSMK, 0), (P_SSMK, M2), (P_Q, M2), (P_OUT, 0), (P_OUT, M2), (P_GW, 0), (P_SHK, 0)]
        tl_ += [(P_WS, i * M2 + M2 - 64) for i in range(7)]
        a('s_mov_b32 s64, 0x%x' % M2)
        lab = newlabel('Lpt')
        for w in range(4):
            a('s_cmp_lg_u32 s3, %d' % w)
            a('s_cbranch_scc1 %s_%d' % (lab, w))
            for p, off in tl_[w::4]:
                a('s_mov_b32 s64, 0x%x' % off)
                a('s_load_dword s65, s[%d:%d], s64' % (p, p + 1))
            a.label('%s_%d' % (lab, w))
    if cfg.rot2:
        rot_off(a, cfg, 95)
        for k in range(12): kap(a, 16 + k, 95, k)
    if cfg.spf > 2:
        SPF.X, SPF.WG, SPF.WU = P_Q, P_WG, P_WU
        sp = SPF(a, cfg, 3, 62, 66, 64, 65, 2)
        SPF.X, SPF.WG, SPF.WU = 44, 48, 52
        sp.upto(cfg.spf - 1)
    if cfg.cclear:
        srd(a, 60, P_WS, SZ_Y2, WS_Y2)
        a('s_mul_i32 s80, s4, 20')
        a('s_add_u32 s80, s80, s5')
        a('s_lshl_b32 s80, s80, 2')
        a('s_add_u32 s80, s80, s3')
        a('s_lshl_b32 s81, s80, 12')
        a('s_lshl_b32 s80, s80, 2')
        a('s_add_u32 s80, s80, %d' % F_YC)
        a('s_cmp_ge_u32 s5, 20')
        a('s_cselect_b32 s96, 0x%x, 0' % FAR)
        a('s_or_b32 s80, s80, s96')
        a('s_or_b32 s81, s81, s96')
        for i in range(4): a('v_mov_b32 v%d, -1' % (160 + i))
        for i in range(4):
            a('buffer_store_dwordx4 v[160:163], v240, s[60:63], s81 offen offset:%d sc1' % (1024 * i))

def c_wave(a, cfg, prof):
    h0 = list(a.hist)
    a('s_cmp_ge_u32 s5, 30')
    a('s_cbranch_scc1 LCodd')
    c_setup_main(a)
    c_common(a, cfg)
    c_gemm1(a, cfg, prof, False)
    a('s_branch LCjoin')
    a.hist = h0; a.reset_queues()
    a.label('LCodd')
    c_setup_odd(a)
    c_common(a, cfg)
    c_gemm1(a, cfg, prof, True)
    a.label('LCjoin')
    prof.stamp(3)
    a('v_readfirstlane_b32 s%d, v%d' % (NONCE, VN))
    def h_flag(n_younger):
        a.emit('s_waitcnt vmcnt(%d)' % n_younger)
        if not n_younger: a.vmq = []
        flag_store(a, '0', 249)
        a('s_setprio 0')
        prof.stamp(7); prof.cyc(40)
    a.vmq = []
    if not cfg.pre_ack: h_flag(0)
    NA, NB = cfg.na, cfg.nb
    NL = 6 if cfg.c0 else 4
    L0 = 12 - NL
    LS = cfg.lsteps
    assert not cfg.quiet or LS == 0
    cblocks = ([4, 5] if cfg.c0 else []) + list(range(LS, 4))
    border = cblocks + list(range(LS))
    AB = 240 - 20 * NA; ACC2 = AB - 80 - (8 if NA == 4 else 0); BB = 8
    assert BB + 16 * NB <= ACC2 and not (cfg.areg and NA != 4)
    RD = 160 if NA == 4 else 12
    gtok = {}
    def acc2(dl, sg): return ACC2 + (sg * 5 + dl) * 4
    def wdoff(k):
        if cfg.rot2:
            a('s_mul_i32 s14, s%d, 5120' % (16 + k))
            a('s_add_u32 s14, s14, s86')
        else: a('s_add_u32 s14, s86, %d' % (5120 * k))
    def lbase(off): return ('v4', off) if off < SLOT else ('v7', off - SLOT)
    def issueA(k):
        b = AB + (k % NA) * 20
        if k >= L0:
            i = border[k - L0]
            if i == 0 and LS: lds_word_wait(a, cfg, 3, 16, 5, 6, 'Lwf')
            base, off = lbase(wblk(i))
            for dl in range(5):
                gtok[(k, 'a')] = a.emit('ds_read_b128 %s, %s offset:%d' % (vr(b + 4 * dl, 4), base, off + dl * 1024))
            return
        wdoff(k)
        for dl in range(4):
            a('buffer_load_dwordx4 %s, v240, s[48:51], s14 offen offset:%d sc1' % (vr(b + 4 * dl, 4), 1024 * dl))
        gtok[(k, 'a')] = a.emit('buffer_load_dwordx4 %s, v241, s[48:51], s14 offen sc1' % vr(b + 16, 4))
    def issueB(k):
        b = BB + (k % NB) * 16
        if cfg.rot2:
            a('s_lshl_b32 s15, s%d, 12' % (16 + k))
            a('s_add_u32 s15, s15, s87')
        else: a('s_add_u32 s15, s87, %d' % (4096 * k))
        for sg in range(4):
            gtok[(k, sg)] = a.emit('buffer_load_dwordx4 %s, v240, s[44:47], s15 offen offset:%d sc1' % (vr(b + 4 * sg, 4), 1024 * sg))
    a('v_add_u32 v4, s88, v240')
    a('v_add_u32 v7, %d, v4' % SLOT)
    a('v_mov_b32 v5, %d' % CNT)
    a('v_mov_b32 v6, 1')
    a('v_cmp_eq_u32 vcc, 0, v1')
    a('s_and_saveexec_b64 s[90:91], vcc')
    a('ds_add_u32 v5, v6')
    a('s_mov_b64 exec, s[90:91]')
    lds_spin(a, cfg, 5, 6, 82, 'ge', 4, 'Lcsync')
    lds_word_wait(a, cfg, 3, 48, 5, 6, 'Lwok')
    prof.stamp(31)
    assert not (cfg.areg and (cfg.ungate or cfg.nine or cfg.rot2))
    for k in range(cfg.areg): gtok[(k, 'a')] = -1
    done = [0]
    def tick():
        done[0] += 1
        if done[0] == cfg.pre_ack: h_flag(5 * cfg.pre_ack)
    for k in range(cfg.areg, NA): issueA(k); tick()
    t = None
    for n, i in enumerate(cblocks):
        if i < cfg.e8: continue
        if n == cfg.pollat: t = poll_issue(a, 246, 's83', 247)
        wdoff(L0 + n)
        a('s_add_u32 m0, s88, %d' % wblk(i))
        for dl in range(4):
            a('buffer_load_dwordx4 v240, s[48:51], s14 offen offset:%d sc1 lds' % (1024 * dl))
        a('s_add_u32 m0, s88, %d' % (wblk(i) + 4096))
        a('buffer_load_dwordx4 v241, s[48:51], s14 offen sc1 lds')
        tick()
    if t is None: t = poll_issue(a, 246, 's83', 247)
    prof.stamp(32)
    if cfg.prof:
        a.wait_vm(t); prof.stamp(33)
    def group_wait(tok, g):
        if cfg.rot2:
            a('s_lshl_b32 s80, s%d, 1' % (16 + 4 * g))
            a('s_lshl_b64 s[80:81], 0xff, s80') if False else None
            a('s_mov_b32 s81, 0xff')
            a('s_lshl_b32 s82, s81, s80')
            a('s_sub_u32 s80, 24, s80')
            a('s_lshr_b32 s81, s81, s80')
            a('s_or_b32 s82, s82, s81')
            a('s_and_b32 s82, s82, 0xffffff')
        else:
            a('s_mov_b32 s82, 0x%x' % (0xff << (8 * g)))
        a.wait_vm(tok)
        lo, ok = newlabel('Lg'), newlabel('Lg_ok')
        a('s_mov_b32 s94, %d' % cfg.spin)
        a.label(lo)
        a('v_cmp_ne_u32 vcc, s%d, v247' % NONCE)
        a('s_nop 0')
        a('s_and_b32 s81, vcc_lo, s82')
        a('s_cbranch_scc0 %s' % ok)
        a('s_sleep %d' % cfg.hsleep)
        poll_issue(a, 246, 's83', 247)
        a.emit('s_waitcnt vmcnt(0)')
        a.vmq.pop()
        a('s_sub_u32 s94, s94, 1')
        a('s_cmp_lg_u32 s94, 0')
        a('s_cbranch_scc1 %s' % lo)
        a.label(ok)
    if cfg.grp:
        assert NB == 4
        group_wait(t, 0)
    else:
        poll_wait(a, cfg, t, 246, 's83', 247, sleep=cfg.hsleep)
    prof.stamp(8); prof.cyc(41)
    if cfg.grp: gp = {1: poll_issue(a, 246, 's83', 247)}
    for k in range(NB): issueB(k)
    def step(k, sgs, after=None):
        ab_, bb_ = AB + (k % NA) * 20, BB + (k % NB) * 16
        if k >= L0: a.wait_lg(gtok[(k, 'a')])
        else: a.wait_vm(gtok[(k, 'a')])
        for n, sg in enumerate(sgs):
            a.wait_vm(gtok[(k, sg)])
            if n == 0: prof.stamp(10 + k)
            for dl in range(5):
                c = '0' if k == 0 else vr(acc2(dl, sg), 4)
                a('v_mfma_f32_16x16x32_bf16 %s, %s, %s, %s' % (vr(acc2(dl, sg), 4), vr(ab_ + 4 * dl, 4), vr(bb_ + 4 * sg, 4), c))
                if after: after(n, dl)
    NK = 11 if cfg.fin else 12
    for k in range(NK):
        step(k, range(4))
        if cfg.grp and k in (0, 4): group_wait(gp[k // 4 + 1], k // 4 + 1)
        if cfg.grp and k == 2: gp[2] = poll_issue(a, 246, 's83', 247)
        if k + NB < 12: issueB(k + NB)
        if k + NA < 12: issueA(k + NA)
        if k == cfg.ygate: lds_word(a, 3, 64, 5, 6)
    def blk(w, sg): return w * 10240 + wblk(sg if sg < w else sg - 1)
    a('v_add_u32 v7, %d, v240' % SLOT)
    a('v_add_u32 v4, %d, v7' % SLOT)
    if not cfg.fin: a('s_nop 7')
    else:
        a.wait_lg(gtok[(11, 'a')])
        a.wait_all_vm()
    for w in range(3):
        a('s_cmp_eq_u32 s3, %d' % (w + 1))
        a('s_cbranch_scc1 Lfin%d' % (w + 1))
    hist0 = [] if cfg.fin else list(a.hist)
    def ab(off): return ('v7', off - SLOT) if off < 2 * SLOT else ('v4', off - 2 * SLOT)
    for w in range(4):
        a.hist = list(hist0); a.vmq = []; a.lgq = []
        a.label('Lfin%d' % w)
        others = [x for x in range(4) if x != w]
        def wr(sg, dl):
            r, o = ab(blk(w, sg) + dl * 1024)
            a('ds_write_b128 %s, %s offset:%d' % (r, vr(acc2(dl, sg), 4), o))
        if cfg.fin:
            pend = []
            def after(n, dl):
                if n < 3: pend.append((others[n], dl))
                if len(pend) > 6 or (n == 3 and pend): wr(*pend.pop(0))
            step(11, others + [w], after=after)
            while pend: wr(*pend.pop(0))
        else:
            for sg in others:
                for dl in range(5): wr(sg, dl)
        prof.stamp(9); prof.cyc(42)
        if cfg.coop:
            a('v_lshlrev_b32 v5, 3, v1')
            a('v_add_u32 v5, %d, v5' % (PA + w * 5120 + 2560))
        else:
            a('v_add_u32 v5, %d, v240' % (PA + w * 5120))
        a('v_lshlrev_b32 v3, 2, v1')
        a('v_add_u32 v3, %d, v3' % (QA + w * QSZ + 3072))
        if cfg.ocoal:
            a('v_and_b32 v2, 15, v1')
            a('v_mul_u32_u24 v2, 160, v2')
            a('v_lshrrev_b32 v8, 4, v1')
            a('v_lshl_add_u32 v2, v8, 3, v2')
            a('v_add_u32 v2, %d, v2' % (PA + w * 5120))
            a('v_add_u32 v8, %d, v240' % (PA + w * 5120))
        a.wait_all_lg()
        a('s_barrier')
        prof.stamp(30)
        tl = {}
        tl['omg'] = a.emit('ds_read_b32 v6, v3')
        for dl in range(5):
            for si, x in enumerate(others):
                r, o = ab(blk(x, w) + dl * 1024)
                tl[(dl, si)] = a.emit('ds_read_b128 %s, %s offset:%d' % (vr(RD + (dl * 4 + si) * 4, 4), r, o))
            if cfg.coop: tl[(dl, 3)] = a.emit('ds_read_b64 %s, v5 offset:%d' % (vr(RD + (dl * 4 + 3) * 4 + 2, 2), dl * 512))
            else: tl[(dl, 3)] = a.emit('ds_read_b128 %s, v5 offset:%d' % (vr(RD + (dl * 4 + 3) * 4, 4), dl * 1024))
        for dl in range(5):
            x = acc2(dl, w)
            for si in range(3):
                a.wait_lg(tl[(dl, si)])
                r = RD + (dl * 4 + si) * 4
                a('v_pk_add_f32 %s, %s, %s' % (P2(x), P2(x), P2(r)))
                a('v_pk_add_f32 %s, %s, %s' % (P2(x + 2), P2(x + 2), P2(r + 2)))
            ga = RD + (dl * 4 + 3) * 4
            t = 8 + (dl & 1) * 2 if NA != 4 else 12 + (dl & 1) * 4
            a.wait_lg(tl[(dl, 3)])
            if cfg.coop:
                unpack_lo(a, ga, ga + 2); unpack_hi(a, ga + 1, ga + 2); unpack_lo(a, ga + 2, ga + 3); unpack_hi(a, ga + 3, ga + 3)
            for i in range(4): a('v_fma_f32 v%d, v6, v%d, v%d' % (x + i, x + i, ga + i))
            a('v_cvt_pk_bf16_f32 v%d, v%d, v%d' % (t, x, x + 1))
            a('v_cvt_pk_bf16_f32 v%d, v%d, v%d' % (t + 1, x + 2, x + 3))
            if cfg.ocoal: a('ds_write_b64 v2, %s offset:%d' % (vr(t, 2), dl * 32))
            else: a('buffer_store_dwordx2 %s, v244, s[56:59], 0 offen offset:%d' % (vr(t, 2), dl * 32))
        if cfg.ocoal:
            a.wait_all_lg()
            to = [a.emit('ds_read_b128 %s, v8 offset:%d' % (vr(24 + 4 * i, 4), 1024 * i)) for i in range(3)]
            for i in range(3):
                a.wait_lg(to[i])
                a('buffer_store_dwordx4 %s, v%d, s[56:59], s89 offen%s' % (vr(24 + 4 * i, 4), (242, 244, 245)[i], ['', ' sc1', ' nt'][cfg.oflag]))
        prof.stamp(4)
        prof.flush(243)
        a('s_endpgm')

class SPF:
    def __init__(self, a, cfg, wv, pw, px, cur, dst, first):
        self.a, self.cfg, self.pw, self.px, self.cur, self.dst, self.next = a, cfg, pw, px, cur, dst, first
        a('s_lshl_b32 s96, s5, 2')
        a('s_add_u32 s96, s96, s%d' % wv)
        a('s_and_b32 s%d, s4, 1' % cur)
        a('s_mul_i32 s%d, s%d, 10' % (cur, cur))
        a('s_mul_i32 s97, s6, 5')
        a('s_add_u32 s%d, s%d, s97' % (cur, cur))
        a('s_lshr_b32 s%d, s%d, 1' % (cur, cur))
        if cfg.xrot == 0: a('s_mov_b32 s%d, 0' % cur)
        a('s_add_u32 s%d, s%d, %d' % (cur, cur, first))
        for _ in range(2):
            a('s_cmp_ge_u32 s%d, 10' % cur)
            a('s_cselect_b32 s97, 10, 0')
            a('s_sub_u32 s%d, s%d, s97' % (cur, cur))
        a('s_bitcmp1_b32 s96, 0')
        a('s_cselect_b32 s%d, s%d, s%d' % (pw, self.WU, self.WG))
        a('s_cselect_b32 s%d, s%d, s%d' % (pw + 1, self.WU + 1, self.WG + 1))
        a('s_lshr_b32 s97, s96, 1')
        a('s_mul_i32 s97, s97, 3072')
        a('s_mul_i32 s%d, s6, 768' % dst)
        a('s_add_u32 s97, s97, s%d' % dst)
        a('s_mul_i32 s%d, s%d, 196608' % (dst, cur))
        a('s_add_u32 s97, s97, s%d' % dst)
        a('s_add_u32 s%d, s%d, s97' % (pw, pw))
        a('s_addc_u32 s%d, s%d, 0' % (pw + 1, pw + 1))
        a('s_lshr_b32 s97, s96, 3')
        a('s_min_u32 s97, s97, 14')
        a('s_and_b32 s%d, s4, 1' % dst)
        a('s_mul_i32 s%d, s%d, 15' % (dst, dst))
        a('s_add_u32 s97, s97, s%d' % dst)
        a('s_and_b32 s96, s96, 7')
        a('s_lshr_b32 s%d, s97, 3' % dst)
        a('s_lshl_b32 s%d, s%d, 9' % (dst, dst))
        a('s_add_u32 s96, s96, s%d' % dst)
        a('s_and_b32 s97, s97, 7')
        a('s_lshl_b32 s97, s97, 3')
        a('s_add_u32 s96, s96, s97')
        a('s_mul_i32 s96, s96, 1280')
        a('s_lshl_b32 s97, s%d, 7' % cur)
        a('s_add_u32 s96, s96, s97')
        a('s_add_u32 s%d, s%d, s96' % (px, self.X))
        a('s_addc_u32 s%d, s%d, 0' % (px + 1, self.X + 1))
    X, WG, WU = 44, 48, 52
    def upto(self, st):
        a = self.a
        while self.next <= min(st, NSTAGE - 1):
            for i in range(6): a('s_load_dword s%d, s[%d:%d], %d' % (self.dst, self.pw, self.pw + 1, 128 * i))
            for i in range(self.cfg.spfx): a('s_load_dword s%d, s[%d:%d], %d' % (self.dst, self.px, self.px + 1, 81920 * i))
            a('s_add_u32 s%d, s%d, 1' % (self.cur, self.cur))
            a('s_cmp_eq_u32 s%d, 10' % self.cur)
            a('s_cselect_b32 s96, %d, 196608' % 0) if False else None
            a('s_cselect_b32 s96, 1966080, 0')
            a('s_cselect_b32 s97, 1280, 0')
            a('s_sub_u32 s%d, s%d, s96' % (self.pw, self.pw)); a('s_subb_u32 s%d, s%d, 0' % (self.pw + 1, self.pw + 1))
            a('s_add_u32 s%d, s%d, 196608' % (self.pw, self.pw)); a('s_addc_u32 s%d, s%d, 0' % (self.pw + 1, self.pw + 1))
            a('s_sub_u32 s%d, s%d, s97' % (self.px, self.px)); a('s_subb_u32 s%d, s%d, 0' % (self.px + 1, self.px + 1))
            a('s_add_u32 s%d, s%d, 128' % (self.px, self.px)); a('s_addc_u32 s%d, s%d, 0' % (self.px + 1, self.px + 1))
            self.next += 1

SX = [28, 29, 30, 31, 7, 8]
class Loader:
    def __init__(self, a, cfg, prof, odd):
        self.a, self.odd, self.tok = a, odd, {}
        if odd:
            a('v_lshrrev_b32 v9, 3, v1')
            a('v_and_b32 v10, 7, v1')
            a('v_lshrrev_b32 v11, 1, v9')
            a('v_xor_b32 v10, v10, v11')
            a('v_lshlrev_b32 v10, 4, v10')
            a('s_mov_b32 s12, 81920')
            a('v_mul_lo_u32 v9, v9, s12')
            a('v_add_u32 v2, v9, v10')
            a('v_xor_b32 v10, 64, v10')
            a('v_add_u32 v3, v9, v10')
            a('v_add_u32 v3, 256, v3')
            a('v_add_u32 v4, 512, v2')
            a('v_add_u32 v5, 512, v3')
            for i in range(3):
                a('v_add_u32 v9, %d, v1' % (64 * i))
                a('v_mul_u32_u24 v10, 5462, v9')
                a('v_lshrrev_b32 v10, 16, v10')
                a('v_mul_u32_u24 v11, 12, v10')
                a('v_sub_u32 v11, v9, v11')
                a('v_mul_u32_u24 v10, 3072, v10')
                a('v_lshl_add_u32 v10, v11, 4, v10')
                a('v_subrev_u32 v%d, %d, v10' % (6 + i, 1024 * i))
            a('s_mov_b32 s12, %d' % (512 * 3 + 16 * 3))
            a('s_lshl_b32 s13, s10, 2')
            a('s_add_u32 s12, s12, s13')
            a('s_mul_i32 s12, s12, 1280')
            a('s_mul_i32 s13, s10, 49152')
            a('s_mul_i32 s14, s8, 192')
            a('s_add_u32 s13, s13, s14')
            a('s_lshl_b32 s14, s10, 12')
            a('s_mul_i32 s15, s10, 3072')
        else:
            a('v_lshrrev_b32 v9, 3, v1')
            a('v_and_b32 v10, 7, v1')
            a('v_lshrrev_b32 v11, 1, v9')
            a('v_xor_b32 v4, v10, v11')
            a('v_lshlrev_b32 v4, 4, v4')
            a('s_mov_b32 s12, 81920')
            a('v_mul_lo_u32 v3, v9, s12')
            a('v_add_u32 v2, v3, v4')
            a('v_xor_b32 v4, 64, v4')
            a('v_add_u32 v3, v3, v4')
            a('v_and_b32 v11, 1, v11')
            a('v_lshlrev_b32 v11, 1, v11')
            a('v_xor_b32 v10, v10, v11')
            a('v_mul_u32_u24 v9, 3072, v9')
            a('v_lshl_add_u32 v4, v10, 4, v9')
            a('v_add_u32 v5, 23552, v4')
            a('v_xor_b32 v6, 64, v4')
            a('v_xor_b32 v7, 64, v5')
            a('s_mul_i32 s12, s10, 6')
            a('s_mul_i32 s13, s7, 3')
            a('v_add_u32 v9, s12, v1')
            a('v_lshrrev_b32 v10, 3, v9')
            a('v_add_u32 v10, s13, v10')
            a('v_and_b32 v9, 7, v9')
            a('v_and_b32 v11, 7, v10')
            a('v_lshl_add_u32 v9, v11, 3, v9')
            a('v_lshrrev_b32 v10, 3, v10')
            a('v_lshl_add_u32 v9, v10, 9, v9')
            a('v_mul_u32_u24 v9, 1280, v9')
            a('v_subrev_u32 v10, 3, v1')
            a('v_min_u32 v10, v10, v1')
            a('v_lshlrev_b32 v10, 10, v10')
            a('v_sub_u32 v8, v9, v10')
            a('s_mul_i32 s13, s10, 49152')
            a('s_lshl_b32 s14, s8, 7')
            a('s_add_u32 s13, s13, s14')
            a('s_mul_i32 s14, s10, 6144')
            a('s_lshl_b32 s15, s10, 11')
        self.rot = cfg.xrot
        self.alt = cfg.alt
        if cfg.alt and not odd:
            a('s_add_u32 s93, s7, s8')
            a('s_and_b32 s93, s93, 1')
        if cfg.xrot:
            a('s_and_b32 s9, s4, 1')
            a('s_mul_i32 s9, s9, 10')
            a('s_mul_i32 s96, s6, 5')
            a('s_add_u32 s9, s9, s96')
            if cfg.xrot == 2:
                a('s_mul_i32 s96, s5, 3')
                a('s_add_u32 s9, s9, s96')
                a('s_and_b32 s9, s9, 31')
            a('s_lshr_b32 s9, s9, 1')
            a('s_cmp_ge_u32 s9, 10')
            a('s_cselect_b32 s96, 10, 0')
            a('s_sub_u32 s9, s9, s96')
            a('s_lshl_b32 s96, s9, 7')
            if odd: a('s_add_u32 s12, s12, s96')
            else:
                a('v_add_u32 v2, s96, v2')
                a('v_add_u32 v3, s96, v3')
            a('s_mul_i32 s96, s9, 196608')
            a('s_add_u32 s13, s13, s96')
        for d, sz in ((44, SZ_X), (48, SZ_W), (52, SZ_W)):
            a('s_mov_b32 s%d, 0x%x' % (d + 2, sz))
            a('s_mov_b32 s%d, 0x00020000' % (d + 3))
        if not odd:
            for i in range(6): a('v_readlane_b32 s%d, v8, %d' % (SX[i], i))
        a.emit('s_waitcnt lgkmcnt(0)')
        prof.stamp(3)
    def issue(self, st):
        a = self.a
        base = (st % NSLOT) * SLOT
        if self.odd:
            a('s_add_u32 m0, s14, %d' % base)
            for i in range(4):
                a('buffer_load_dwordx4 v%d, s[44:47], s12 offen offset:%d lds' % (2 + i, 1024 * i))
            a('s_add_u32 m0, s15, %d' % (base + OFF_GATE))
            for i in range(3):
                a('buffer_load_dwordx4 v%d, s[48:51], s13 offen offset:%d lds' % (6 + i, 1024 * i))
            a('s_add_u32 m0, s15, %d' % (base + OFF_UP))
            for i in range(3):
                t = a.emit('buffer_load_dwordx4 v%d, s[52:55], s13 offen offset:%d lds' % (6 + i, 1024 * i))
            a('s_add_u32 s12, s12, 128')
        else:
            def xpart(order):
                for h in order:
                    a('s_add_u32 m0, s14, %d' % (base + 3072 * h))
                    for i in range(3 * h, 3 * h + 3):
                        t = a.emit('buffer_load_dwordx4 v%d, s[44:47], s%d offen offset:%d lds' % (2 + (i & 1), SX[i], 1024 * (i % 3)))
                return t
            def wpart(order):
                for m in order:
                    a('s_add_u32 m0, s15, %d' % (base + 24576 + 8192 * m))
                    for i in range(2):
                        t = a.emit('buffer_load_dwordx4 v%d, s[%d:%d], s13 offen offset:%d lds' % (4 + 2 * m + i, 48 + 4 * m, 51 + 4 * m, 1024 * i))
                return t
            if self.alt:
                l1, l2 = newlabel('Lalt'), newlabel('Lalt_done')
                a('s_cmp_lg_u32 s93, 0')
                a('s_cbranch_scc1 %s' % l1)
                q0 = list(a.vmq)
                if self.alt == 1: xpart((0, 1)); wpart((0, 1))
                else: xpart((0,)); wpart((0,)); xpart((1,)); wpart((1,))
                a('s_branch %s' % l2)
                a.vmq = q0
                a.label(l1)
                if self.alt == 1: wpart((1, 0)); t = xpart((1, 0))
                else: wpart((1,)); xpart((1,)); wpart((0,)); t = xpart((0,))
                a.label(l2)
            else:
                xpart((0, 1)); t = wpart((0, 1))
            a('v_add_u32 v2, 0x80, v2')
            a('v_add_u32 v3, 0x80, v3')
        a('s_add_u32 s13, s13, 196608')
        if self.rot:
            a('s_add_u32 s9, s9, 1')
            a('s_cmp_eq_u32 s9, 10')
            a('s_cselect_b32 s96, 1280, 0')
            a('s_cselect_b32 s97, 1966080, 0')
            a('s_sub_u32 s13, s13, s97')
            if self.odd: a('s_sub_u32 s12, s12, s96')
            else:
                a('v_subrev_u32 v2, s96, v2')
                a('v_subrev_u32 v3, s96, v3')
        self.tok[st] = t

def l_wave(a, cfg, prof):
    a('s_setprio %d' % cfg.lprio)
    a('s_and_b32 s10, s3, 3')
    h0 = list(a.hist)
    a('s_cmp_ge_u32 s5, 30')
    a('s_cbranch_scc1 LLodd')
    l_body(a, cfg, prof, False)
    a.hist = h0; a.reset_queues()
    a.label('LLodd')
    l_body(a, cfg, prof, True)

def l_body(a, cfg, prof, odd):
    ld = Loader(a, cfg, prof, odd)
    stage_tok = ld.tok
    issue_stage = ld.issue
    issue_stage(0)
    wave_common(a)
    if cfg.drop:
        a('s_mov_b32 s92, 1'); a('v_mov_b32 v250, 1'); a('s_mov_b32 s86, 0')
    if not odd:
        a('s_lshl_b32 s76, s2, 2')
        a('s_add_u32 s76, s76, s10')
        a('s_cmp_lg_u32 s76, 0')
        a('s_cbranch_scc1 Lno_nonce')
        a('s_memrealtime s[76:77]')
        srd(a, 68, P_DBG, 256)
        a.emit('s_waitcnt lgkmcnt(0)')
        a('s_or_b32 s76, s76, 1')
        a('v_mov_b32 v20, s76')
        a('buffer_store_dword v20, v%d, s[68:71], 0 offen sc1' % VZ)
        a.emit('s_waitcnt vmcnt(0)')
        a.vmq.pop()
        a.label('Lno_nonce')
    issue_stage(1)
    assert not cfg.spf
    spf = None
    g2_scalars(a, 84, 85)
    a('s_mul_i32 s82, s10, 5120')
    a('s_add_u32 s82, s82, %d' % PA)
    a('s_mul_i32 s83, s10, %d' % QSZ)
    a('s_add_u32 s83, s83, %d' % QA)
    a('s_mul_i32 s88, s85, 48')
    a('s_mul_i32 s96, s10, 12')
    a('s_add_u32 s88, s88, s96')
    a('s_mul_i32 s0, s88, 5120')
    if cfg.rot2: rot_off(a, cfg, 95)
    else: a('s_mov_b32 s95, 0')
    a('s_lshl_b32 s88, s88, 2')
    a('s_add_u32 s88, s88, %d' % F_WD)
    a('s_mul_i32 s1, s10, 10240')
    a('v_lshlrev_b32 v241, 4, v1')
    a('v_add_u32 v245, 4096, v241')
    if not odd:
        a('s_cmp_ge_u32 s5, 20')
        a('s_cbranch_scc1 LtypeB')
    saved = (list(a.vmq), dict(stage_tok), list(a.hist), spf.next if spf else 0)
    tk = {}
    DROP = {1: ('kv_loads', 'wd_loads'), 2: ('f',), 4: ('ut_store', 'wd_part'), 8: ('y_clear',), 16: ('n_issue', 'n_get', 'd_issue')}
    dn = [n for b, ns in DROP.items() if cfg.drop & b for n in ns]
    class _T(dict):
        def __missing__(self, k): return -1
    tk = _T()
    def interval(i, slices, pre={}):
        slices = {k: [f for f in v if f.__name__ not in dn] for k, v in slices.items()}
        pre = {k: [f for f in v if f.__name__ not in dn] for k, v in pre.items()}
        if cfg.nine and i == 8: a.wait_vm(stage_tok[9])
        a.wait_vm(stage_tok[i])
        if a.lgq: a.wait_all_lg()
        if cfg.lstamp: prof.stamp(10 + i)
        if not (cfg.nine and i == 9): a('s_barrier')
        if cfg.lstamp: prof.stamp(20 + i)
        if spf: spf.upto(i + cfg.spf)
        for f in pre.get(i, []): f()
        if i + NSLOT - 1 < NSTAGE: issue_stage(i + NSLOT - 1)
        for f in slices.get(i, []): f()
    def n_issue():
        a('s_load_dword s%d, s[%d:%d], 0' % (NONCE, P_DBG, P_DBG + 1))
    def n_get():
        lo, ok = newlabel('Ln'), newlabel('Ln_ok')
        a.emit('s_waitcnt lgkmcnt(0)'); a.lgq = []
        a('s_cmp_lg_u32 s%d, 0' % NONCE)
        a('s_cbranch_scc1 %s' % ok)
        a('s_mov_b32 s94, %d' % cfg.spin)
        srd(a, 68, P_DBG, 256)
        a('v_mov_b32 v249, 0')
        a.label(lo)
        a('buffer_load_dword v%d, v249, s[68:71], 0 offen sc1' % VN)
        a.emit('s_waitcnt vmcnt(0)')
        a.vmq.pop()
        a('v_readfirstlane_b32 s%d, v%d' % (NONCE, VN))
        a('s_cmp_lg_u32 s%d, 0' % NONCE)
        a('s_cbranch_scc1 %s' % ok)
        a('s_sleep 8')
        a('s_sub_u32 s94, s94, 1')
        a('s_cmp_lg_u32 s94, 0')
        a('s_cbranch_scc1 %s' % lo)
        a.label(ok)
        a('s_nop 1')
        a('v_mov_b32 v%d, s%d' % (VN, NONCE))
        a('v_mov_b32 v9, %d' % (CNT + 32))
        a('ds_write_b32 v9, v%d' % VN)
    def flag_after(key, sreg):
        def f():
            a.wait_vm(tk[key])
            flag_store(a, sreg)
        return f
    def late_srds():
        srd(a, 48, P_WS, SZ_WD, WS_WD)
        srd(a, 52, P_WS, SZ_G, WS_G)
        srd(a, 64, P_WS, SZ_Y2, WS_Y2)
    def wdl_dma():
        for i in range(cfg.lsteps):
            kap(a, 97, 95, 12 - cfg.lsteps + i)
            a('s_mul_i32 s97, s97, 5120')
            a('s_add_u32 s97, s97, s0')
            a('s_add_u32 m0, s1, %d' % wblk(i))
            for dl in range(4):
                a('buffer_load_dwordx4 v241, s[48:51], s97 offen offset:%d sc1 lds' % (1024 * dl))
            a('s_add_u32 m0, s1, %d' % (wblk(i) + 4096))
            tk['wdl'] = a.emit('buffer_load_dwordx4 v245, s[48:51], s97 offen sc1 lds')
    def wdl_publish():
        if not cfg.lsteps: return
        a.wait_vm(tk['wdl'])
        lds_word(a, 10, 16, 236, 237)
    def q_loads():
        if cfg.coop:
            a('s_lshr_b32 s97, s84, 3')
            a('s_lshl_b32 s97, s97, 9')
            a('s_and_b32 s96, s84, 7')
            a('s_lshl_b32 s96, s96, 3')
            a('s_add_u32 s97, s97, s96')
            a('s_lshl_b32 s96, s10, 1')
            a('s_add_u32 s97, s97, s96')
            a('s_mul_i32 s97, s97, 1280')
            a('s_mul_i32 s96, s85, 160')
            a('s_add_u32 s97, s97, s96')
            for i in range(3):
                a('v_add_u32 v2, %d, v1' % (64 * i))
                a('v_mul_u32_u24 v3, 6554, v2')
                a('v_lshrrev_b32 v3, 16, v3')
                a('v_mul_u32_u24 v4, 10, v3')
                a('v_sub_u32 v4, v2, v4')
                a('v_and_b32 v5, 7, v3')
                a('v_lshlrev_b32 v5, 6, v5')
                a('v_lshrrev_b32 v3, 3, v3')
                a('v_add_u32 v3, v3, v5')
                a('v_mul_u32_u24 v3, 1280, v3')
                a('v_lshl_add_u32 v3, v4, 4, v3')
                if i == 2:
                    a('v_cmp_gt_u32 vcc, 32, v1')
                    a('v_mov_b32 v4, 0x%x' % OOB)
                    a('v_cndmask_b32 v3, v4, v3, vcc')
                a('s_add_u32 m0, s83, %d' % (1024 * i))
                a('buffer_load_dwordx4 v3, s[44:47], s97 offen lds')
            return
        row_off(a, 238, 239, 84, 85, 10)
        for dl in range(5):
            a('buffer_load_dwordx2 %s, v238, s[44:47], 0 offen offset:%d' % (vr(QV + 2 * dl, 2), dl * 32))
    def tail_issue():
        if cfg.bclear:
            a('s_lshl_b32 s89, s85, 8')
            a('s_add_u32 s89, s89, %d' % F_YC)
            lane_min(a, 247, 48)
            tk['y1'] = poll_issue(a, 247, 's89', 239)
            return
        a('s_mul_i32 s89, s85, 320')
        a('s_add_u32 s89, s89, %d' % F_YC)
        a('v_lshlrev_b32 v247, 2, v1')
        lane_min(a, 240, 16)
        a('v_add_u32 v240, 256, v240')
        tk['y1'] = poll_issue(a, 247, 's89', 239)
        tk['y2'] = poll_issue(a, 240, 's89', 243)
    def tail_check():
        if not cfg.bclear: poll_wait(a, cfg, tk['y2'], 240, 's89', 243)
        poll_wait(a, cfg, tk['y1'], 247, 's89', 239)

    def type_a():
        KR, VR_, WR = 32, 60, 76
        srd(a, 56, P_K, SZ_X); srd(a, 60, P_V, SZ_X); srd(a, 64, P_SHK, 5120)
        a('s_cmp_ge_u32 s5, 10')
        a('s_cselect_b32 s76, 1, 0')
        a('s_cselect_b32 s77, 10, 0')
        a('s_sub_u32 s77, s5, s77')
        a('s_lshl_b32 s78, s4, 1')
        a('s_add_u32 s76, s76, s78')
        a('s_lshl_b32 s87, s77, 2')
        a('s_add_u32 s87, s87, s10')
        a('s_lshl_b32 s89, s87, 4')
        a('s_add_u32 s89, s89, s76')
        a('s_lshl_b32 s89, s89, 2')
        a('s_lshl_b32 s87, s87, 16')
        a('s_lshl_b32 s78, s76, 8')
        a('s_add_u32 s87, s87, s78')
        a('s_lshl_b32 s76, s76, 7')
        a('s_lshl_b32 s78, s10, 5')
        a('s_add_u32 s76, s76, s78')
        a('v_lshrrev_b32 v9, 3, v1')
        a('v_and_b32 v10, 7, v1')
        a('s_lshl_b32 s78, s10, 3')
        a('v_add_u32 v22, s78, v9')
        a('v_lshlrev_b32 v11, 1, v10')
        a('v_xor_b32 v22, v22, v11')
        a('v_lshlrev_b32 v22, 3, v22')
        a('v_lshl_add_u32 v22, v10, 11, v22')
        a('v_add_u32 v22, %d, v22' % PA)
        a('v_lshlrev_b32 v9, 2, v9')
        a('v_add_u32 v9, s76, v9')
        a('v_mul_u32_u24 v232, 1280, v9')
        a('v_lshl_add_u32 v232, v10, 4, v232')
        a('s_lshl_b32 s78, s77, 7')
        a('v_add_u32 v232, s78, v232')
        a('v_subrev_u32 v233, 3840, v232')
        a('v_subrev_u32 v234, 2560, v232')
        a('v_subrev_u32 v235, 1280, v232')
        a('s_lshl_b32 s78, s77, 9')
        a('v_lshlrev_b32 v236, 6, v10')
        a('v_add_u32 v236, s78, v236')
        a('s_mul_i32 s11, s4, 20')
        a('s_add_u32 s11, s11, s5')
        a('s_lshl_b32 s11, s11, 2')
        a('s_add_u32 s11, s11, s10')
        a('s_lshl_b32 s81, s11, 12')
        a('s_lshl_b32 s80, s11, 2')
        a('s_add_u32 s80, s80, %d' % F_YC)
        a('s_lshr_b32 s76, s11, 4')
        a('s_lshl_b32 s76, s76, 6')
        a('s_sub_u32 s77, s88, 64')
        a('v_min_u32 v240, %d, v1' % (31 if cfg.bclear else 27))
        a('v_lshlrev_b32 v240, 2, v240')
        a('v_mov_b32 v9, s76')
        a('v_mov_b32 v10, s77')
        if cfg.bclear:
            a('s_lshl_b32 s78, s5, 2')
            a('s_add_u32 s78, s78, s10')
            a('s_lshl_b32 s78, s78, 2')
            a('s_mul_i32 s78, s78, 9363')
            a('s_lshr_b32 s78, s78, 16')
            a('s_lshl_b32 s79, s4, 6')
            a('s_add_u32 s78, s78, s79')
            a('s_lshl_b32 s78, s78, 2')
            a('s_add_u32 s78, s78, %d' % (F_YC - 112))
            a('v_min_u32 v240, 29, v1')
            a('v_lshlrev_b32 v240, 2, v240')
            a('v_mov_b32 v11, s78')
            a('v_cmp_gt_u32 vcc, 28, v1')
            a('v_cndmask_b32 v10, v11, v10, vcc')
        a('v_cmp_gt_u32 vcc, 16, v1')
        a('v_cndmask_b32 v9, v10, v9, vcc')
        a('v_add_u32 v240, v240, v9')
        a('s_and_b32 s86, s11, 0xfffffffe')
        a('s_lshl_b32 s86, s86, 1')
        a('s_load_dword s86, s[26:27], s86')
        a('s_mov_b32 s87, s87')
        class _A:
            def __init__(self): self.l = []
            def __call__(self, t): self.l.append(t)
        rec = _A(); conv_setup(rec, cfg)
        for t in rec.l[:-4]: a(t)
        def d_fin():
            for t in rec.l[-4:]: a(t)
        def kv_loads():
            for i in range(4):
                a('buffer_load_dwordx4 %s, v232, s[56:59], 0 offen offset:%d' % (vr(KR + 12 + 4 * i, 4), 1280 * i))
            for i in range(4):
                a('buffer_load_dwordx4 %s, v232, s[60:63], 0 offen offset:%d' % (vr(VR_ + 4 * i, 4), 1280 * i))
            a('buffer_load_dwordx4 %s, v233, s[56:59], 0 offen' % vr(KR, 4))
            a('buffer_load_dwordx4 %s, v234, s[56:59], 0 offen' % vr(KR + 4, 4))
            a('buffer_load_dwordx4 %s, v235, s[56:59], 0 offen' % vr(KR + 8, 4))
            for i in range(4):
                tk['kv'] = a.emit('buffer_load_dwordx4 %s, v236, s[64:67], 0 offen offset:%d' % (vr(WR + 4 * i, 4), 16 * i))
        def ut_srd(): srd(a, 56, P_WS, SZ_UT, WS_UT)
        def kv_part(cp):
            def f():
                a.wait_vm(tk['kv'])
                U = 92
                for r in range(7):
                    unpack_lo(a, U + 2 * r, KR + 4 * r + cp); unpack_hi(a, U + 2 * r + 1, KR + 4 * r + cp)
                for r in range(4):
                    unpack_lo(a, U + 14 + 2 * r, VR_ + 4 * r + cp); unpack_hi(a, U + 15 + 2 * r, VR_ + 4 * r + cp)
                for h in range(2):
                    unpack_lo(a, U + 22 + h, WR + 4 * cp + 2 * h); unpack_hi(a, U + 24 + h, WR + 4 * cp + 2 * h)
                    unpack_lo(a, U + 26 + h, WR + 4 * cp + 2 * h + 1); unpack_hi(a, U + 28 + h, WR + 4 * cp + 2 * h + 1)
                AC = U + 30
                for i in range(8):
                    a('v_mul_f32 v%d, v%d, v%d' % (AC + i, U + i, U + 28 + (i & 1)))
                for tap in (2, 1, 0):
                    for i in range(8):
                        a('v_fmac_f32 v%d, v%d, v%d' % (AC + i, U + 2 * (3 - tap) + i, U + 22 + 2 * tap + (i & 1)))
                for i in range(8):
                    a('v_mul_f32 v%d, v%d, v%d' % (AC + i, AC + i, U + 14 + i))
                O = 24 + (cp & 1) * 4
                for h in range(2):
                    a('v_cvt_pk_bf16_f32 v%d, v%d, v%d' % (O + 2 * h, AC + h, AC + 2 + h))
                    a('v_cvt_pk_bf16_f32 v%d, v%d, v%d' % (O + 2 * h + 1, AC + 4 + h, AC + 6 + h))
                for h in range(2):
                    a('ds_write_b64 v22, %s offset:%d' % (vr(O + 2 * h, 2), 256 * (2 * cp + h)))
            return f
        def ut_store():
            a('v_lshrrev_b32 v9, 4, v1')
            a('v_and_b32 v10, 15, v1')
            a('v_lshlrev_b32 v11, 12, v9')
            a('v_lshl_add_u32 v11, v10, 4, v11')
            a('s_lshl_b32 s76, s10, 1')
            a('s_lshl_b32 s77, s10, 12')
            a('s_add_u32 s77, s77, %d' % PA)
            for hh in range(2):
                a('s_add_u32 s78, s76, %d' % hh)
                a('v_xor_b32 v12, s78, v10')
                a('v_lshlrev_b32 v12, 4, v12')
                a('v_lshl_add_u32 v12, v9, 8, v12')
                a('v_add_u32 v%d, s77, v12' % (24 + hh))
            tl = [a.emit('ds_read_b128 %s, v%d offset:%d' % (vr(40 + 4 * i, 4), 24 + (i >> 1), 1024 * i)) for i in range(4)]
            for i in range(4):
                a.wait_lg(tl[i])
                a('s_add_u32 s76, s87, %d' % (16384 * i))
                tk['ut'] = a.emit('buffer_store_dwordx4 %s, v11, s[56:59], s76 offen sc1' % vr(40 + 4 * i, 4))
        def d_issue():
            a('s_and_b32 s86, s11, 0xfffffffe')
            a('s_lshl_b32 s86, s86, 1')
            a('s_load_dword s86, s[26:27], s86')
        def y_clear():
            srd(a, 64, P_WS, SZ_Y2, WS_Y2)
            for i in range(4): a('v_mov_b32 v%d, -1' % (232 + i))
            for i in range(4):
                tk['yc'] = a.emit('buffer_store_dwordx4 v[232:235], v241, s[64:67], s81 offen offset:%d sc1' % (1024 * i))
        def p_dma():
            srd(a, 60, P_SSMK, SZ_X)
            a('v_bfe_u32 v9, v1, 4, 1')
            a('v_lshlrev_b32 v9, 1, v9')
            a('v_xor_b32 v9, v9, v1')
            a('v_lshlrev_b32 v9, 4, v9')
            if cfg.pqsplit: return
            a('s_add_u32 m0, s82, 512')
            for i in range(4):
                a('buffer_load_dwordx4 v9, s[60:63], s81 offen offset:%d lds' % (1024 * i))
        def pq_piece(i):
            a('s_add_u32 m0, s83, 64')
            a('buffer_load_dwordx4 v241, s[56:59], s81 offen offset:%d sc1 lds' % (1024 * i))
            a('s_add_u32 m0, s82, 512')
            tk['pq%d' % i] = a.emit('buffer_load_dwordx4 v9, s[60:63], s81 offen offset:%d lds' % (1024 * i))
        def pads():
            for i in range(4): a('v_mov_b32 v%d, 0' % (32 + i))
            a('v_and_b32 v10, 31, v1')
            a('v_lshlrev_b32 v10, 4, v10')
            a('v_add_u32 v10, s82, v10')
            a('ds_write_b128 v10, v[32:35]')
            a('v_and_b32 v10, 3, v1')
            a('v_lshlrev_b32 v10, 4, v10')
            a('v_add_u32 v10, s83, v10')
            a('ds_write_b128 v10, v[32:35]')
        K = cfg.kv_at
        if cfg.early:
            slA = {1: [kv_part(1)], 2: [kv_part(3), n_issue], 3: [ut_srd, ut_store], 5: [flag_after('ut', 's89')], 7: [late_srds]}
        else:
            slA = {K: [kv_loads], K + 2: [kv_part(1)], K + 3: [kv_part(3), n_issue], K + 4: [ut_srd, ut_store], cfg.utf_at: [flag_after('ut', 's89')],
                   7: [late_srds]}
        slA.setdefault(8 if cfg.ungate else 7, [])
        fpoll = lambda: tk.__setitem__('f', poll_issue(a, 240, '0', 243))
        def q_dma():
            poll_wait(a, cfg, tk['f'], 240, '0', 243, sleep=cfg.fsleep)
            if cfg.pqsplit:
                for i in range(cfg.pqsplit): pq_piece(i)
            else:
                a('s_add_u32 m0, s83, 64')
                for i in range(4):
                    tk['q'] = a.emit('buffer_load_dwordx4 v241, s[56:59], s81 offen offset:%d sc1 lds' % (1024 * i))
            lds_word(a, 10, 48, 236, 237)
        if cfg.e8:
            lane_min(a, 246, 12)
            slA.setdefault(6, []).append(lambda: tk.__setitem__('w', poll_issue(a, 246, 's88', 247)))
            slA[7].append(lambda: poll_wait(a, cfg, tk['w'], 246, 's88', 247))
        slA[8] = [p_dma] + ([fpoll] if cfg.ungate else [q_dma])
        if not cfg.ungate:
            if cfg.pollpre8: slA[8].insert(0, fpoll)
            else: slA[7].append(fpoll)
        if not (cfg.cclear or cfg.bclear or cfg.yflag):
            slA.setdefault(cfg.late, []).append(y_clear)
            slA[cfg.late + 2].insert(0, flag_after('yc', 's80'))
        if cfg.kvfirst:
            kv_loads(); slA[0] = []
        prA = {K + 2: [kv_part(0)], K + 3: [kv_part(2)], 5: [n_get, d_fin], 6 + K: [pads]}
        if cfg.early:
            kv_loads()
            prA = {1: [kv_part(0)], 2: [kv_part(2)], 4: [n_get, d_fin], 6: [pads]}
        assert K <= 1
        for i in range(NSTAGE): interval(i, slA, prA)
        if cfg.ungate: q_dma()
        if not cfg.quiet:
            wdl_dma()
            q_loads()
            tail_issue()
        a('s_setprio %d' % cfg.vprio)
        if cfg.pqsplit:
            for i in range(cfg.pqsplit, 4): pq_piece(i)
            a.wait_vm(tk['pq0'])
        else: a.wait_vm(tk['q'])
        gen = conv_main(a, cfg, prof)
        if cfg.pqsplit:
            done_ = 0
            for p_, at in ((1, 4), (2, 20), (3, 44)):
                for _ in range(at - done_): next(gen)
                done_ = at
                a.wait_vm(tk['pq%d' % p_])
        if not cfg.quiet:
            for _ in range(cfg.pub_at): next(gen)
            wdl_publish()
        for _ in gen: pass
        if cfg.yflag:
            q_loads()
            a.emit('s_waitcnt vmcnt(5)')
            flag_store(a, 's80')
        else:
            if cfg.quiet:
                q_loads()
                tail_issue()
            tail_check()
        a('s_setprio 0')
        a('s_branch Lfetch')

    if not odd: type_a()

    a.vmq, a.hist = list(saved[0]), list(saved[2])
    stage_tok.clear(); stage_tok.update(saved[1])
    if spf: spf.next = saved[3]
    a.lgq = []
    if not odd: a.label('LtypeB')
    srd(a, 56, P_WD, SZ_W)
    srd(a, 68, P_GW, 1280)
    a('s_mul_i32 s78, s4, 12')
    a('s_add_u32 s78, s78, s5')
    a('s_sub_u32 s78, s78, 20')
    a('s_lshl_b32 s78, s78, 2')
    a('s_add_u32 s78, s78, s10')
    a('s_lshr_b32 s79, s78, 3')
    a('s_and_b32 s78, s78, 7')
    a('s_mul_i32 s89, s78, 48')
    a('s_add_u32 s89, s89, s79')
    a('s_lshl_b32 s89, s89, 2')
    a('s_add_u32 s89, s89, %d' % F_WD)
    a('s_mul_i32 s80, s79, 40960')
    a('s_mul_i32 s77, s78, 160')
    a('s_add_u32 s80, s80, s77')
    a('s_mul_i32 s81, s78, 245760')
    a('s_mul_i32 s77, s79, 5120')
    a('s_add_u32 s81, s81, s77')
    lane_min(a, 240, 12)
    def wd_loads():
        for i in range(5):
            a('v_add_u32 v9, %d, v1' % (64 * i))
            a('v_mul_u32_u24 v10, 6554, v9')
            a('v_lshrrev_b32 v10, 16, v10')
            a('v_mul_u32_u24 v11, 10, v10')
            a('v_sub_u32 v11, v9, v11')
            a('v_mul_u32_u24 v10, 1280, v10')
            a('v_lshl_add_u32 v10, v11, 4, v10')
            a('s_add_u32 m0, s82, %d' % (1024 * i))
            tk['wd'] = a.emit('buffer_load_dwordx4 v10, s[56:59], s80 offen lds')
    def wd_part():
        a('v_lshrrev_b32 v9, 5, v1')
        a('v_lshlrev_b32 v9, 4, v9')
        a('v_bfe_u32 v10, v1, 2, 3')
        a('v_add_u32 v9, v9, v10')
        a('v_mul_u32_u24 v9, 160, v9')
        a('v_and_b32 v10, 3, v1')
        a('v_lshl_add_u32 v9, v10, 3, v9')
        a('v_add_u32 v9, s82, v9')
        srd(a, 60, P_WS, SZ_WD, WS_WD)
        a('s_add_u32 s80, s81, 4096')
        a.wait_vm(tk['wd'])
        for dl in range(5):
            for t in range(2):
                a('ds_read_b64_tr_b16 v[%d:%d], v9 offset:%d' % (32 + 4 * dl + 2 * t, 33 + 4 * dl + 2 * t, t * 1280 + dl * 32))
        a.wait_all_lg()
        for dl in range(4):
            a('buffer_store_dwordx4 %s, v241, s[60:63], s81 offen offset:%d sc1' % (vr(32 + 4 * dl, 4), 1024 * dl))
        tk['wds'] = a.emit('buffer_store_dwordx4 %s, v241, s[60:63], s80 offen sc1' % vr(48, 4))
    GX, GW = 56, 104
    gtk = []
    def g_loads():
        srd(a, 56, P_GW, 1280)
        a('s_sub_u32 s76, s5, 20')
        a('s_lshl_b32 s76, s76, 2')
        a('s_add_u32 s76, s76, s10')
        a('s_cmp_ge_u32 s76, 32')
        a('s_cselect_b32 s86, 0x%x, 0' % FAR)
        a('s_and_b32 s77, s4, 1')
        a('s_lshl_b32 s77, s77, 2')
        a('s_lshr_b32 s78, s76, 3')
        a('s_add_u32 s77, s77, s78')
        a('s_and_b32 s76, s76, 7')
        a('s_lshl_b32 s78, s6, 9')
        a('s_lshl_b32 s79, s77, 3')
        a('s_add_u32 s78, s78, s79')
        a('s_add_u32 s78, s78, s76')
        a('s_mul_i32 s78, s78, 1280')
        a('s_or_b32 s78, s78, s86')
        a('v_lshrrev_b32 v9, 5, v1')
        a('v_and_b32 v10, 31, v1')
        a('v_lshlrev_b32 v11, 4, v10')
        a('s_mov_b32 s79, 81920')
        a('v_mul_lo_u32 v12, v9, s79')
        a('v_add_u32 v12, v12, v11')
        a('v_cmp_gt_u32 vcc, 16, v10')
        a('v_mov_b32 v15, 0x%x' % OOB)
        a('v_cndmask_b32 v13, v15, v12, vcc')
        for i in range(3):
            a('buffer_load_dwordx4 %s, v11, s[56:59], 0 offen offset:%d' % (vr(GW + 4 * i, 4), 512 * i))
        for p in range(4):
            a('buffer_load_dwordx4 %s, v12, s[44:47], s78 offen' % vr(GX + 12 * p, 4))
            a('buffer_load_dwordx4 %s, v12, s[44:47], s78 offen offset:512' % vr(GX + 12 * p + 4, 4))
            gtk.append(a.emit('buffer_load_dwordx4 %s, v13, s[44:47], s78 offen offset:1024' % vr(GX + 12 * p + 8, 4)))
            a('s_add_u32 s78, s78, 163840')
        a('s_lshl_b32 s78, s6, 3')
        a('s_add_u32 s78, s78, s77')
        a('s_lshl_b32 s78, s78, 3')
        a('s_add_u32 s78, s78, s76')
        a('s_lshl_b32 s80, s78, 6')
        a('s_or_b32 s80, s80, s86')
        a('v_lshlrev_b32 v14, 3, v9')
        a('v_cmp_eq_u32 vcc, 31, v10')
        a('v_cndmask_b32 v14, v15, v14, vcc')
    def g_compute():
        for p in range(4):
            a.wait_vm(gtk[p])
            a('v_mov_b32 v%d, 0' % (24 + p))
            for i in range(12):
                a('v_dot2_f32_bf16 v%d, v%d, v%d, v%d' % (24 + p, GX + 12 * p + i, GW + i, 24 + p))
        a('s_nop 2')
        for sh in (1, 2, 4, 8):
            for p in range(4):
                a('v_add_f32_dpp v%d, v%d, v%d row_shr:%d row_mask:0xf bank_mask:0xf bound_ctrl:0' % (24 + p, 24 + p, 24 + p, sh))
        for p in range(4):
            a('v_add_f32_dpp v%d, v%d, v%d row_bcast:15 row_mask:0xa bank_mask:0xf' % (24 + p, 24 + p, 24 + p))
        for p in range(4):
            r = 24 + p
            a('v_cvt_pk_bf16_f32 v%d, v%d, v%d' % (r, r, r))
            a('v_and_b32 v%d, 0xffff0000, v%d' % (r, r))
            a('v_mul_f32 v%d, 0xbfb8aa3b, v%d' % (r, r))
            a('v_exp_f32 v%d, v%d' % (r, r))
            a('v_add_f32 v%d, 1.0, v%d' % (r, r))
            a('v_rcp_f32 v%d, v%d' % (r, r))
            a('v_cvt_pk_bf16_f32 v%d, v%d, v%d' % (r, r, r))
            a('v_and_b32 v%d, 0xffff0000, v%d' % (29 + 2 * p, r))
            a('v_mov_b32 v%d, v%d' % (28 + 2 * p, VN))
            a('buffer_store_dwordx2 v[%d:%d], v14, s[52:55], s80 offen offset:%d sc1' % (28 + 2 * p, 29 + 2 * p, 16 * p))
    def b_clear():
        srd(a, 64, P_WS, SZ_Y2, WS_Y2)
        a('s_sub_u32 s76, s5, 20')
        a('s_lshl_b32 s76, s76, 2')
        a('s_add_u32 s76, s76, s10')
        a('s_lshl_b32 s77, s4, 6')
        a('s_add_u32 s87, s76, s77')
        a('s_lshl_b32 s87, s87, 2')
        a('s_add_u32 s87, s87, %d' % F_YC)
        a('s_mul_i32 s76, s76, 7')
        for i in range(4): a('v_mov_b32 v%d, -1' % (232 + i))
        for i in range(7):
            a('s_add_u32 s77, s76, %d' % i)
            a('s_cmp_ge_u32 s77, 320')
            a('s_cselect_b32 s78, 0x%x, 0' % FAR)
            a('s_lshl_b32 s77, s77, 10')
            a('s_mul_i32 s79, s4, 327680')
            a('s_add_u32 s77, s77, s79')
            a('s_or_b32 s77, s77, s78')
            tk['yc'] = a.emit('buffer_store_dwordx4 v[232:235], v241, s[64:67], s77 offen sc1')
    W = cfg.wd_at
    slB = {}
    for i, f in ((W, wd_loads), (W + 2, wd_part), (1, n_issue), (W + cfg.wdf_d, flag_after('wds', 's89')), (7, late_srds)):
        slB.setdefault(i, []).append(f)
    def wd_touch_issue():
        a('s_and_b32 s76, s4, 1')
        a('s_mul_i32 s79, s76, 768')
        a('s_add_u32 s79, s79, %d' % F_WD)
        a('v_lshlrev_b32 v16, 2, v1')
        a('v_add_u32 v17, 256, v16')
        a('v_add_u32 v18, 512, v16')
        tk['wt'] = [poll_issue(a, 16 + i, 's79', 19 + i) for i in range(3)]
    def wd_touch():
        for i in range(3): poll_wait(a, cfg, tk['wt'][i], 16 + i, 's79', 19 + i)
        a('s_sub_u32 s77, s5, 20')
        a('s_lshl_b32 s77, s77, 2')
        a('s_add_u32 s77, s77, s10')
        a('s_mul_i32 s77, s77, 20480')
        a('s_and_b32 s76, s4, 1')
        a('s_mul_i32 s76, s76, 983040')
        a('s_add_u32 s76, s76, s77')
        a('v_lshlrev_b32 v16, 7, v1')
        a('v_add_u32 v17, 8192, v16')
        a('v_add_u32 v18, 16384, v16')
        a('v_cmp_gt_u32 vcc, 32, v1')
        a('v_mov_b32 v19, 0x%x' % OOB)
        a('v_cndmask_b32 v18, v19, v18, vcc')
        for i in range(3):
            a('buffer_load_dword v252, v%d, s[48:51], s76 offen sc1' % (16 + i))
    fpollB = lambda: tk.__setitem__('f', poll_issue(a, 240, 's88', 243))
    fwaitB = lambda: (poll_wait(a, cfg, tk['f'], 240, 's88', 243), lds_word(a, 10, 48, 236, 237))
    if cfg.ungate: slB[8] = [fpollB]
    elif cfg.e8:
        slB.setdefault(6, []).append(fpollB); slB[7].append(fwaitB); slB[8] = [g_loads]
    elif cfg.pollpre8: slB[8] = [fpollB, g_loads, fwaitB]
    else: slB[7].append(fpollB); slB[8] = [g_loads, fwaitB]
    def ssm_touch():
        srd(a, 68, P_SSMK, SZ_X)
        a('s_sub_u32 s76, s5, 20')
        a('s_lshl_b32 s76, s76, 2')
        a('s_add_u32 s76, s76, s10')
        a('s_mul_i32 s76, s76, 6912')
        a('s_mul_i32 s77, s4, 327680')
        a('s_add_u32 s76, s76, s77')
        a('v_lshlrev_b32 v16, 7, v1')
        a('v_cmp_gt_u32 vcc, 54, v1')
        a('v_mov_b32 v17, 0x%x' % OOB)
        a('v_cndmask_b32 v16, v17, v16, vcc')
        a('buffer_load_dword v252, v16, s[68:71], s76 offen')
    if cfg.spre: slB.setdefault(cfg.spre, []).append(ssm_touch)
    if cfg.cotouch == 1:
        slB[7].append(wd_touch_issue); slB[8].insert(0, wd_touch)
    if cfg.cotouch >= 2:
        slB[8].insert(0, wd_touch_issue)
    if cfg.cotouch == 3:
        slB[8].remove(g_loads)
    if cfg.bclear:
        slB.setdefault(cfg.clr_at, []).append(b_clear)
        slB.setdefault(max(cfg.clr_at + 2, 3), []).append(flag_after('yc', 's87'))
    for i in range(NSTAGE): interval(i, slB, {3: [n_get]})
    if cfg.ungate:
        fwaitB(); g_loads()
    wdl_dma()
    if cfg.cotouch >= 2: wd_touch()
    if cfg.cotouch == 3: g_loads()
    g_compute()
    q_loads()
    if not cfg.yflag: tail_issue()
    a('s_setprio 0')
    wdl_publish()
    lds_word_wait(a, cfg, 10, 0, 236, 237, 'Ldummy') if False else None
    if not cfg.yflag: tail_check()
    if not odd:
        a('s_branch Lfetch')
        return
    a.pad()
    a.label('Lfetch')
    a.reset_queues()
    if cfg.coop:
        coop_fetch(a, cfg, prof)
        return
    a('s_mul_i32 s11, s85, 327680')
    a('s_lshr_b32 s12, s84, 3')
    a('s_lshl_b32 s12, s12, 10')
    a('s_add_u32 s11, s11, s12')
    a('s_and_b32 s12, s84, 7')
    a('s_lshl_b32 s12, s12, 7')
    a('s_add_u32 s11, s11, s12')
    a('s_lshl_b32 s12, s10, 5')
    a('s_add_u32 s11, s11, s12')
    a('v_lshrrev_b32 v24, 1, v1')
    a('v_lshlrev_b32 v24, 12, v24')
    a('v_and_b32 v25, 1, v1')
    a('v_lshl_add_u32 v24, v25, 4, v24')
    a('v_add_u32 v25, 0x20000, v24')
    a('v_add_u32 v26, 0x40000, v24')
    a('v_cmp_gt_u32 vcc, 32, v1')
    a('v_mov_b32 v27, 0x%x' % OOB)
    a('v_cndmask_b32 v26, v27, v26, vcc')
    a('v_lshlrev_b32 v28, 2, v1')
    a('s_add_u32 s12, s83, 3072')
    a('v_add_u32 v28, s12, v28')
    a('v_add_u32 v29, s83, v241')
    a('v_lshlrev_b32 v30, 3, v1')
    a('v_add_u32 v30, s83, v30')
    a('v_add_u32 v31, s82, v241')
    a('s_lshl_b32 s96, s84, 6')
    a('s_lshl_b32 s97, s10, 4')
    a('s_add_u32 s96, s96, s97')
    a('v_and_b32 v33, 15, v1')
    a('v_add_u32 v33, s96, v33')
    a('v_lshlrev_b32 v33, 3, v33')
    lds_word_wait(a, cfg, 10, 64, 236, 237, 'Lgate2', sleep=cfg.gsleep)
    if cfg.yflag:
        tail_issue(); tail_check()
    prof.stamp(6)
    YV = 40
    lo, ok = newlabel('Ly'), newlabel('Ly_ok')
    a('s_mov_b32 s94, %d' % cfg.spin)
    a.label(lo)
    for i in range(3):
        a('buffer_load_dwordx4 %s, v%d, s[64:67], s11 offen sc1' % (vr(YV + 4 * i, 4), 24 + i))
    a('buffer_load_dwordx2 v[34:35], v33, s[52:55], 0 offen sc1')
    a.wait_all_vm()
    a('v_max3_u32 v27, v%d, v%d, v%d' % (YV, YV + 1, YV + 2))
    for i in range(3, 11, 2):
        a('v_max3_u32 v27, v27, v%d, v%d' % (YV + i, YV + i + 1))
    a('v_max_u32 v27, v27, v%d' % (YV + 11))
    a('v_cmp_eq_u32 vcc, -1, v27')
    a('v_cmp_ne_u32 s[96:97], s%d, v34' % NONCE)
    a('s_or_b64 vcc, vcc, s[96:97]')
    a('s_cbranch_scc0 %s' % ok)
    a('s_sleep %d' % cfg.ysleep)
    a('s_sub_u32 s94, s94, 1')
    a('s_cmp_lg_u32 s94, 0')
    a('s_cbranch_scc1 %s' % lo)
    a.label(ok)
    prof.stamp(7)
    a('v_mov_b32 v%d, v35' % GV)
    a('ds_write_b128 v29, %s' % vr(YV, 4))
    a('ds_write_b128 v29, %s offset:1024' % vr(YV + 4, 4))
    a('ds_write_b128 v29, %s offset:2048' % vr(YV + 8, 4))
    a('v_sub_f32 v32, 1.0, v%d' % GV)
    a('v_cvt_pk_bf16_f32 v32, v32, v32')
    a('v_and_b32 v32, 0xffff0000, v32')
    a('ds_write_b32 v28, v32')
    for dl in range(5):
        x = 72 + 4 * dl
        unpack_lo(a, x, QV + 2 * dl); unpack_hi(a, x + 1, QV + 2 * dl); unpack_lo(a, x + 2, QV + 2 * dl + 1); unpack_hi(a, x + 3, QV + 2 * dl + 1)
        for i in range(4): a('v_mul_f32 v%d, v%d, v%d' % (x + i, GV, x + i))
    a.wait_all_lg()
    tl = [a.emit('ds_read_b64_tr_b16 %s, v30 offset:%d' % (vr(56 + 2 * dl, 2), dl * 512)) for dl in range(5)]
    for dl in range(5):
        a.wait_lg(tl[dl])
        x = 72 + 4 * dl; y = 96
        unpack_lo(a, y, 56 + 2 * dl); unpack_hi(a, y + 1, 56 + 2 * dl); unpack_lo(a, y + 2, 57 + 2 * dl); unpack_hi(a, y + 3, 57 + 2 * dl)
        for i in range(4): a('v_mul_f32 v%d, v%d, v%d' % (x + i, x + i, y + i))
        a('ds_write_b128 v31, %s offset:%d' % (vr(x, 4), dl * 1024))
    a.wait_all_lg()
    a('s_barrier')
    prof.stamp(8)
    prof.flush(243)

def coop_fetch(a, cfg, prof):
    a('s_mul_i32 s11, s85, 327680')
    a('s_mul_i32 s12, s10, 81920')
    a('s_add_u32 s11, s11, s12')
    a('s_lshr_b32 s12, s84, 3')
    a('s_lshl_b32 s12, s12, 10')
    a('s_add_u32 s11, s11, s12')
    a('s_and_b32 s12, s84, 7')
    a('s_lshl_b32 s12, s12, 7')
    a('s_add_u32 s11, s11, s12')
    a('v_lshrrev_b32 v24, 3, v1')
    a('v_lshlrev_b32 v24, 12, v24')
    a('v_and_b32 v25, 7, v1')
    a('v_lshl_add_u32 v24, v25, 4, v24')
    a('v_add_u32 v25, 0x8000, v24')
    a('v_add_u32 v26, 0x10000, v24')
    a('v_cmp_gt_u32 vcc, 32, v1')
    a('v_mov_b32 v27, 0x%x' % OOB)
    a('v_cndmask_b32 v26, v27, v26, vcc')
    a('v_lshlrev_b32 v28, 2, v1')
    a('s_add_u32 s12, s83, 3072')
    a('v_add_u32 v28, s12, v28')
    a('v_add_u32 v29, s82, v241')
    a('v_lshlrev_b32 v31, 3, v1')
    a('s_add_u32 s12, s82, 2560')
    a('v_add_u32 v31, s12, v31')
    a('v_and_b32 v30, 15, v1')
    a('v_mul_u32_u24 v30, 160, v30')
    a('v_lshrrev_b32 v32, 4, v1')
    a('v_lshl_add_u32 v30, v32, 3, v30')
    a('v_add_u32 v30, s83, v30')
    a('v_and_b32 v32, 3, v1')
    a('v_lshlrev_b32 v32, 3, v32')
    a('s_lshl_b32 s12, s10, 5')
    a('s_add_u32 s12, s12, %d' % PA)
    a('v_add_u32 v32, s12, v32')
    for dl in range(5):
        a('v_lshrrev_b32 v36, 2, v1')
        a('v_add_u32 v36, %d, v36' % (16 * dl))
        a('v_mul_u32_u24 v37, 3277, v36')
        a('v_lshrrev_b32 v37, 16, v37')
        a('v_mul_u32_u24 v37, 2560, v37')
        a('v_lshl_add_u32 v36, v36, 7, v37')
        a('v_add_u32 v%d, v36, v32' % (2 + dl))
    a('s_lshl_b32 s96, s84, 6')
    a('s_lshl_b32 s97, s10, 4')
    a('s_add_u32 s96, s96, s97')
    a('v_and_b32 v33, 15, v1')
    a('v_add_u32 v33, s96, v33')
    a('v_lshlrev_b32 v33, 3, v33')
    lds_word_wait(a, cfg, 10, 64, 236, 237, 'Lgate2', sleep=cfg.gsleep)
    prof.stamp(6)
    YV = 40
    lo, ok = newlabel('Ly'), newlabel('Ly_ok')
    a('s_mov_b32 s94, %d' % cfg.spin)
    a.label(lo)
    for i in range(3):
        a('buffer_load_dwordx4 %s, v%d, s[64:67], s11 offen sc1' % (vr(YV + 4 * i, 4), 24 + i))
    a('buffer_load_dwordx2 v[34:35], v33, s[52:55], 0 offen sc1')
    a.wait_all_vm()
    a('v_max3_u32 v27, v%d, v%d, v%d' % (YV, YV + 1, YV + 2))
    for i in range(3, 11, 2):
        a('v_max3_u32 v27, v27, v%d, v%d' % (YV + i, YV + i + 1))
    a('v_max_u32 v27, v27, v%d' % (YV + 11))
    a('v_cmp_eq_u32 vcc, -1, v27')
    a('v_cmp_ne_u32 s[96:97], s%d, v34' % NONCE)
    a('s_or_b64 vcc, vcc, s[96:97]')
    a('s_cbranch_scc0 %s' % ok)
    a('s_sleep %d' % cfg.ysleep)
    a('s_sub_u32 s94, s94, 1')
    a('s_cmp_lg_u32 s94, 0')
    a('s_cbranch_scc1 %s' % lo)
    a.label(ok)
    prof.stamp(7)
    a('ds_write_b128 v29, %s' % vr(YV, 4))
    a('ds_write_b128 v29, %s offset:1024' % vr(YV + 4, 4))
    a('v_cmp_gt_u32 vcc, 32, v1')
    a('s_and_saveexec_b64 s[96:97], vcc')
    a('ds_write_b128 v29, %s offset:2048' % vr(YV + 8, 4))
    a('s_mov_b64 exec, s[96:97]')
    tq = [a.emit('ds_read_b64 %s, v30 offset:%d' % (vr(56 + 2 * dl, 2), dl * 32)) for dl in range(5)]
    a('v_sub_f32 v36, 1.0, v35')
    a('v_cvt_pk_bf16_f32 v36, v36, v36')
    a('v_and_b32 v36, 0xffff0000, v36')
    a('ds_write_b32 v28, v36')
    a('v_mov_b32 v37, %d' % (CNT + 4))
    a('v_mov_b32 v38, 1')
    a.wait_all_lg()
    a('v_cmp_eq_u32 vcc, 0, v1')
    a('s_and_saveexec_b64 s[96:97], vcc')
    a('ds_add_u32 v37, v38')
    a('s_mov_b64 exec, s[96:97]')
    for dl in range(5):
        x = 72 + 4 * dl
        unpack_lo(a, x, 56 + 2 * dl); unpack_hi(a, x + 1, 56 + 2 * dl); unpack_lo(a, x + 2, 57 + 2 * dl); unpack_hi(a, x + 3, 57 + 2 * dl)
        for i in range(4): a('v_mul_f32 v%d, v35, v%d' % (x + i, x + i))
    lds_spin(a, cfg, 37, 38, 12, 'ge', 4, 'Llsync')
    tl = [a.emit('ds_read_b64_tr_b16 %s, v%d' % (vr(56 + 2 * dl, 2), 2 + dl)) for dl in range(5)]
    for dl in range(5):
        a.wait_lg(tl[dl])
        x = 72 + 4 * dl; y = 96
        unpack_lo(a, y, 56 + 2 * dl); unpack_hi(a, y + 1, 56 + 2 * dl); unpack_lo(a, y + 2, 57 + 2 * dl); unpack_hi(a, y + 3, 57 + 2 * dl)
        for i in range(4): a('v_mul_f32 v%d, v%d, v%d' % (x + i, x + i, y + i))
        a('v_cvt_pk_bf16_f32 v%d, v%d, v%d' % (x, x, x + 1))
        a('v_cvt_pk_bf16_f32 v%d, v%d, v%d' % (x + 1, x + 2, x + 3))
        a('ds_write_b64 v31, %s offset:%d' % (vr(x, 2), dl * 512))
    a.wait_all_lg()
    a('s_barrier')
    prof.stamp(8)
    prof.flush(243)

def generate(cfg):
    if cfg.yflag: cfg.bclear = 0; cfg.cclear = 0
    LOCAL[0] = cfg.local
    a = Asm()
    a.raw('.amdgcn_target "amdgcn-amd-amdhsa--gfx950"')
    a.raw('.text')
    kn = NAME + '_kernel'
    kernel_header(a, kn)
    prof = Prof(a, cfg, 0)
    prof.start()
    a('s_cmp_ge_u32 s2, 256')
    a('s_cbranch_scc1 Ldone')
    a('s_load_dwordx2 s[44:45], s[0:1], 0')
    a('s_load_dwordx2 s[48:49], s[0:1], 56')
    a('s_load_dwordx2 s[52:53], s[0:1], 64')
    a('s_load_dwordx8 s[16:23], s[0:1], 0')
    a('s_load_dwordx4 s[24:27], s[0:1], 32')
    a('s_load_dwordx8 s[32:39], s[0:1], 64')
    a('s_load_dwordx4 s[40:43], s[0:1], 96')
    def code_prefetch(nw, n):
        a('s_getpc_b64 s[60:61]')
        a.label('Lpc')
        a('s_sub_u32 s60, s60, (Lpc - %s)' % kn)
        a('s_subb_u32 s61, s61, 0')
        a('s_mov_b32 s62, CODE_END - %s' % kn)
        a('s_mov_b32 s63, 0x00020000')
        a('v_lshrrev_b32 v253, 6, v0')
        a('s_lshr_b32 s59, s2, 3')
        a('s_mul_i32 s59, s59, %d' % nw)
        a('v_add_u32 v253, s59, v253')
        a('v_mul_u32_u24 v253, %d, v253' % n)
        a('v_and_b32 v254, 63, v0')
        a('v_add_u32 v253, v253, v254')
        a('v_lshlrev_b32 v253, 7, v253')
        a('v_cmp_gt_u32 vcc, %d, v254' % n)
        a('v_mov_b32 v254, 0x%x' % OOB)
        a('v_cndmask_b32 v253, v254, v253, vcc')
        a('buffer_load_dword v254, v253, s[60:63], 0 offen')
        a.vmq.pop()
    if cfg.cpf and not cfg.cpfc: code_prefetch(8, cfg.cpf)
    a('v_lshrrev_b32 v2, 6, v0')
    a('v_and_b32 v1, 63, v0')
    a('v_readfirstlane_b32 s3, v2')
    a('s_and_b32 s4, s2, 7')
    a('s_lshr_b32 s5, s2, 3')
    a('s_lshr_b32 s6, s4, 1')
    a('s_mul_i32 s9, s5, 13108')
    a('s_lshr_b32 s9, s9, 16')
    a('s_mul_i32 s7, s9, 5')
    a('s_sub_u32 s7, s5, s7')
    a('s_and_b32 s8, s4, 1')
    a('s_mul_i32 s10, s8, 5')
    a('s_add_u32 s7, s7, s10')
    a('s_lshl_b32 s10, s8, 1')
    a('s_mul_i32 s8, s6, 6')
    a('s_add_u32 s8, s8, s9')
    a('s_lshl_b32 s11, s6, 2')
    a('s_add_u32 s10, s10, s11')
    a('s_add_u32 s10, s10, s5')
    a('s_sub_u32 s10, s10, 30')
    a('s_cmp_ge_u32 s5, 30')
    a('s_cselect_b32 s8, s10, s8')
    a('s_cselect_b32 s7, 15, s7')
    a('s_cmp_lt_u32 s3, 4')
    a('s_cbranch_scc1 Lcwave')
    h0 = list(a.hist)
    l_wave(a, cfg, prof)
    a.label('Ldone')
    a('s_endpgm')
    a.hist = h0; a.reset_queues()
    a.label('Lcwave')
    if cfg.cpf and cfg.cpfc: code_prefetch(4, 3)
    c_wave(a, cfg, prof)
    a.raw('CODE_END:')
    hdr = open('cdna_kernels/%s.s.ref' % NAME).read().split('; Override launch')[0]
    hdr += """; Generated by my own generator script (dev/gen11.py). One fused launch, 256 workgroups x 8 waves, one per CU.
"""
    hdr += '; @launch grid=(256,1,1) block=(512,1,1) lds=%d\n' % LDS
    return hdr + a.text() + kernel_desc(kn, 256)

if __name__ == '__main__':
    cfg = Cfg()
    out = sys.argv[1]
    for kv in sys.argv[2:]:
        k, v = kv.split('=')
        assert hasattr(cfg, k), k
        setattr(cfg, k, int(v))
    open(out, 'w').write(generate(cfg))
```

```python
import sys
from asmlib import *
from gen2 import (NAME, WS_H, SZ_H, WS_WD, SZ_WD, WS_UT, SZ_UT, WS_Y2, SZ_Y2, WS_G, SZ_G, WS_PROF, SZ_X, SZ_W, OOB,
                  P_Q, P_K, P_V, P_SHK, P_SSMK, P_SSMD, P_BX, P_WG, P_WU, P_WD, P_GW, P_OUT, P_DBG, P_WS,
                  load_kernargs, srd, Prof, kernel_header, kernel_desc, unpack_lo, unpack_hi, P2, u32)
import gen8
from gen8 import (newlabel, row_off, conv_setup, conv_main, FAR, QV, GV, SF, NONCE, VZ, VN, flag_store, poll_issue, poll_wait,
                  lane_min, lds_spin)

SZ_G = 16384
WS_F = WS_G + SZ_G
F_UT, F_H, F_WD, F_G, F_YC = 0, 2560, 14848, 16384, 17408
SZ_F = 19968

class Cfg:
    prof = 0
    lstamp = 1
    spin = 200000
    g1prio = 0
    cprio = 2
    lprio = 2
    vprio = 1
    ysleep = 8
    hsleep = 2
    nb = 4
    pub_at = 24
    local = 1
    dstore = 0
    ygate = 2
    late = 5
    kvfirst = 0
    rot2 = 0
    ungate = 0
    na = 4
    clr_at = 0
    gsleep = 6
    eprio = 0
    cearly = 0
    p_at = 8
    qfirst = 0
    ocoal = 1
    oflag = 1
    spre = 0
    pqsplit = 0
    coop = 1
    cpfc = 1
    e8 = 0
    e8ks = 2
    loop1 = 0
    cpf = 2
    pre_ack = 2
    ptouch = 0
    utf_at = 5
    wdf_d = 3
    fsleep = 4
    pollpre8 = 1
    alt = 0
    yflag = 0
    grp = 0
    spf = 0
    spfx = 8
    cotouch = 0
    pollat = 99
    quiet = 1
    fin = 1
    areg = 4
    nine = 0
    early = 0
    bclear = 1
    xrot = 1
    kv_at = 0
    wd_at = 1
    cclear = 0
    drop = 0
    lsteps = 0
    c0 = 1

SLOT = 41088
OFF_GATE, OFF_UP = 16384, 16384 + 12320
NSTAGE, NSLOT = 10, 3
PA = NSLOT * SLOT
QA = PA + 4 * 5120
QSZ = 4224
CNT = QA + 4 * QSZ
LDS = CNT + 128
def wblk(i): return [SLOT, SLOT + 5120, 2 * SLOT, 2 * SLOT + 5120, 0, 5120][i]

def wave_common(a):
    srd(a, SF, P_WS, SZ_F, WS_F)
    a('v_cmp_eq_u32 vcc, 0, v1')
    a('v_mov_b32 v%d, 0x%x' % (VZ, OOB))
    a('v_cndmask_b32 v%d, v%d, 0, vcc' % (VZ, VZ))

LOCAL = [0]
def g2_scalars(a, st, dt):
    if not LOCAL[0]: return gen8.g2_scalars(a, st, dt)
    a('s_lshl_b32 s%d, s4, 2' % st)
    a('s_and_b32 s%d, s5, 3' % dt)
    a('s_add_u32 s%d, s%d, s%d' % (st, st, dt))
    a('s_lshr_b32 s%d, s5, 2' % dt)

def rot_off(a, cfg, d):
    if cfg.rot2 == 1:
        a('s_and_b32 s%d, s85, 3' % d)
        a('s_mul_i32 s%d, s%d, 6' % (d, d))
        a('s_and_b32 s96, s84, 7')
        a('s_mul_i32 s96, s96, 3')
        a('s_add_u32 s%d, s%d, s96' % (d, d))
        a('s_lshr_b32 s%d, s%d, 1' % (d, d))
    elif cfg.rot2 == 4:
        a('s_mul_i32 s%d, s85, 3' % d)
        a('s_lshr_b32 s%d, s%d, 1' % (d, d))
    elif cfg.rot2 == 5:
        a('s_mul_i32 s%d, s85, 3' % d)
        a('s_and_b32 s96, s84, 3')
        a('s_mul_i32 s96, s96, 6')
        a('s_add_u32 s%d, s%d, s96' % (d, d))
        a('s_lshr_b32 s%d, s%d, 1' % (d, d))
    elif cfg.rot2 == 3:
        a('s_and_b32 s%d, s84, 7' % d)
        a('s_mul_i32 s%d, s%d, 3' % (d, d))
        a('s_lshr_b32 s%d, s%d, 1' % (d, d))
    else:
        a('s_and_b32 s%d, s85, 3' % d)
        a('s_mul_i32 s%d, s%d, 3' % (d, d))
    a('s_cmp_ge_u32 s%d, 12' % d)
    a('s_cselect_b32 s96, 12, 0')
    a('s_sub_u32 s%d, s%d, s96' % (d, d))
def kap(a, d, off, k):
    a('s_add_u32 s%d, s%d, %d' % (d, off, k))
    a('s_cmp_ge_u32 s%d, 12' % d)
    a('s_cselect_b32 s96, 12, 0')
    a('s_sub_u32 s%d, s%d, s96' % (d, d))

def lds_word(a, sw, off, t0, t1):
    a('s_lshl_b32 s96, s%d, 2' % sw)
    a('s_add_u32 s96, s96, %d' % (CNT + off))
    a('v_mov_b32 v%d, s96' % t0)
    a('v_mov_b32 v%d, 1' % t1)
    a('ds_write_b32 v%d, v%d' % (t0, t1))
def lds_word_wait(a, cfg, sw, off, t0, t1, name, sleep=1):
    a('s_lshl_b32 s96, s%d, 2' % sw)
    a('s_add_u32 s96, s96, %d' % (CNT + off))
    a('v_mov_b32 v%d, s96' % t0)
    lds_spin(a, cfg, t0, t1, 96, 'eq', 1, name, sleep)

def c_setup_odd(a):
    a('s_and_b32 s10, s3, 1')
    a('s_lshr_b32 s11, s3, 1')
    a('v_and_b32 v2, 31, v1')
    a('v_lshrrev_b32 v3, 5, v1')
    a('v_lshrrev_b32 v9, 1, v2')
    a('v_and_b32 v9, 7, v9')
    a('v_xor_b32 v9, v9, v3')
    a('v_lshlrev_b32 v9, 4, v9')
    a('v_lshl_add_u32 v9, v2, 7, v9')
    a('s_lshl_b32 s12, s11, 13')
    a('v_add_u32 v4, s12, v9')
    a('v_xor_b32 v5, 32, v4')
    a('v_xor_b32 v6, 64, v4')
    a('v_xor_b32 v7, 96, v4')
    a('v_bfe_u32 v9, v1, 4, 1')
    a('v_mul_u32_u24 v8, 12320, v9')
    a('v_bfe_u32 v9, v1, 2, 2')
    a('v_lshl_add_u32 v9, v3, 3, v9')
    a('v_mul_u32_u24 v9, 192, v9')
    a('v_add_u32 v8, v8, v9')
    a('v_and_b32 v9, 3, v1')
    a('v_lshl_add_u32 v8, v9, 3, v8')
    a('s_mul_i32 s12, s10, 96')
    a('s_add_u32 s12, s12, %d' % OFF_GATE)
    a('v_add_u32 v8, s12, v8')
    a('v_lshrrev_b32 v9, 4, v2')
    a('v_lshlrev_b32 v10, 10, v9')
    a('v_lshl_add_u32 v10, v3, 8, v10')
    a('v_and_b32 v9, 15, v2')
    a('v_lshl_add_u32 v10, v9, 4, v10')
    a('s_lshl_b32 s12, s7, 1')
    a('s_add_u32 s12, s12, s11')
    a('s_mul_i32 s13, s8, 6')
    a('s_mul_i32 s14, s10, 3')
    a('s_add_u32 s13, s13, s14')
    a('s_mul_i32 s79, s12, 96')
    a('s_add_u32 s79, s79, s13')
    a('s_lshl_b32 s79, s79, 2')
    a('s_add_u32 s79, s79, %d' % F_H)
    a('s_mul_i32 s12, s12, 196608')
    for tt in range(3):
        a('s_add_u32 s14, s13, %d' % tt)
        a('s_lshr_b32 s15, s14, 1')
        a('s_lshl_b32 s15, s15, 12')
        a('s_and_b32 s14, s14, 1')
        a('s_lshl_b32 s14, s14, 9')
        a('s_add_u32 s14, s14, s15')
        a('s_add_u32 s%d, s14, s12' % (76 + tt))
    a('v_lshlrev_b32 v249, 2, v1')
    a('v_add_u32 v249, s79, v249')
    a('v_cmp_gt_u32 vcc, 3, v1')
    a('v_mov_b32 v9, 0x%x' % OOB)
    a('v_cndmask_b32 v249, v9, v249, vcc')

def c_setup_main(a):
    a('s_and_b32 s10, s3, 1')
    a('s_lshr_b32 s11, s3, 1')
    a('v_and_b32 v2, 31, v1')
    a('v_lshrrev_b32 v3, 5, v1')
    a('v_lshrrev_b32 v9, 1, v2')
    a('v_and_b32 v9, 7, v9')
    a('v_xor_b32 v9, v9, v3')
    a('v_lshlrev_b32 v9, 4, v9')
    a('v_lshl_add_u32 v9, v2, 7, v9')
    a('s_mul_i32 s12, s11, 12288')
    a('v_add_u32 v4, s12, v9')
    a('v_xor_b32 v5, 32, v4')
    a('v_xor_b32 v6, 64, v4')
    a('v_xor_b32 v7, 96, v4')
    a('v_bfe_u32 v9, v1, 4, 1')
    a('v_bfe_u32 v11, v1, 2, 2')
    a('v_lshl_add_u32 v8, v3, 3, v11')
    a('v_lshlrev_b32 v8, 7, v8')
    a('v_lshl_add_u32 v8, v9, 13, v8')
    a('v_xor_b32 v9, s10, v9')
    a('v_lshl_add_u32 v8, v9, 6, v8')
    a('v_lshrrev_b32 v11, 1, v11')
    a('v_lshl_add_u32 v8, v11, 5, v8')
    a('v_and_b32 v9, 3, v1')
    a('v_lshl_add_u32 v8, v9, 3, v8')
    a('v_add_u32 v8, 24576, v8')
    a('v_xor_b32 v11, 32, v8')
    a('v_lshrrev_b32 v9, 4, v2')
    a('v_lshlrev_b32 v10, 10, v9')
    a('v_lshl_add_u32 v10, v3, 8, v10')
    a('v_and_b32 v9, 15, v2')
    a('v_lshl_add_u32 v10, v9, 4, v10')
    a('s_lshl_b32 s13, s8, 1')
    a('s_add_u32 s13, s13, s10')
    a('v_mov_b32 v249, 0x%x' % OOB)
    for b in range(3):
        a('s_mul_i32 s12, s11, 3')
        a('s_add_u32 s12, s12, %d' % b)
        a('s_and_b32 s14, s12, 1')
        a('s_lshr_b32 s12, s12, 1')
        a('s_mul_i32 s15, s7, 3')
        a('s_add_u32 s12, s12, s15')
        a('s_mul_i32 s15, s12, 96')
        a('s_add_u32 s15, s15, s14')
        a('s_lshl_b32 s79, s13, 1')
        a('s_add_u32 s15, s15, s79')
        a('s_lshl_b32 s15, s15, 2')
        a('s_add_u32 s15, s15, %d' % F_H)
        a('v_writelane_b32 v249, s15, %d' % b)
        a('s_mul_i32 s12, s12, 196608')
        a('s_lshl_b32 s14, s14, 11')
        a('s_add_u32 s12, s12, s14')
        a('s_lshl_b32 s14, s13, 12')
        a('s_add_u32 s%d, s12, s14' % (76 + b))

def c_gemm1(a, cfg, prof, odd):
    ACC = 64
    FB = [16, 40]
    if odd:
        NT_, NBT = 3, 2
        def reads(buf, ks):
            f = FB[buf]
            A = lambda tt: ['ds_read_b64_tr_b16 v[%d:%d], v8 offset:%d' % (f + 4 * tt + 2 * t, f + 4 * tt + 2 * t + 1, ks * 3072 + t * 768 + tt * 32) for t in range(2)]
            B = lambda b: ['ds_read_b128 v[%d:%d], v%d offset:%d' % (f + 12 + 4 * b, f + 15 + 4 * b, 4 + ks, b * 4096)]
            return A(0) + B(0) + B(1) + A(1) + A(2)
        order = [(0, 0, 2), (0, 1, 3), (1, 0, 5), (1, 1, 5), (2, 0, 7), (2, 1, 7)]
        s3_, sn = {1: 3, 2: 2, 3: 2, 4: 1}, {0: 2, 1: 2, 2: 2, 3: 2}
        addr = (4, 5, 6, 7, 8)
        store = lambda tt, b: (76 + tt, b * 2048)
    else:
        NT_, NBT = 2, 3
        def reads(buf, ks):
            f = FB[buf]
            A = lambda tt: ['ds_read_b64_tr_b16 v[%d:%d], v%d offset:%d' % (f + 4 * tt + 2 * t, f + 4 * tt + 2 * t + 1, (8, 11)[tt], ks * 2048 + t * 512) for t in range(2)]
            B = lambda b: ['ds_read_b128 v[%d:%d], v%d offset:%d' % (f + 8 + 4 * b, f + 11 + 4 * b, 4 + ks, b * 4096)]
            return A(0) + B(0) + B(1) + B(2) + A(1)
        order = [(0, 0, 2), (0, 1, 3), (0, 2, 4), (1, 0, 6), (1, 1, 6), (1, 2, 6)]
        s3_, sn = {1: 3, 2: 2, 3: 2}, {0: 2, 1: 2, 2: 2, 3: 1}
        addr = (4, 5, 6, 7, 8, 11)
        store = lambda tt, b: (76 + b, tt * 512)
    def acc(tt, b): return ACC + (tt * NBT + b) * 16
    if cfg.loop1:
        assert not (cfg.nine or cfg.cclear)
        for r in range(ACC, ACC + 96): a('v_mov_b32 v%d, 0' % r)
        a('s_mov_b32 s64, 0')
        a('s_mov_b32 s65, 9')
    a('s_setprio %d' % cfg.g1prio)
    a('s_barrier')
    prof.stamp(1); prof.cyc(5)
    toks = [a.emit(r) for r in reads(0, 0)]
    cur = 0
    lname = newlabel('Lg1')
    for st in ((0, 9) if cfg.loop1 else range(NSTAGE)):
        if cfg.loop1 and st == 0: a.label(lname)
        if cfg.loop1 and st == 9: a('s_setprio %d' % cfg.cprio)
        for ks in range(4):
            last = (st == NSTAGE - 1 and ks == 3)
            nxt = None if last else reads(1 - cur, (ks + 1) % 4)
            ntoks = []
            f = FB[cur]
            for mi, (tt, b, need_i) in enumerate(order):
                a.wait_lg(toks[need_i])
                c = '0' if (st == 0 and ks == 0 and not cfg.loop1) else vr(acc(tt, b), 16)
                a('v_mfma_f32_32x32x16_bf16 %s, %s, %s, %s' % (vr(acc(tt, b), 16), vr(f + 4 * tt, 4), vr(f + 4 * NT_ + 4 * b, 4), c))
                if nxt is not None:
                    if ks == 3:
                        if mi == 0:
                            skip = cfg.nine and st == NSTAGE - 2
                            if not skip: a.wait_all_lg()
                            if cfg.loop1:
                                for r in addr: a('v_add_u32 v%d, s66, v%d' % (r, r))
                            else:
                                d = SLOT if (st + 1) % NSLOT else -(NSLOT - 1) * SLOT
                                for r in addr:
                                    a('v_add_u32 v%d, 0x%x, v%d' % (r, u32(d), r))
                            if not skip: a('s_barrier')
                            if st == NSTAGE - 2: a('s_setprio %d' % cfg.cprio)
                        sched = s3_
                    else:
                        sched = sn
                    for _ in range(sched.get(mi, 0)):
                        ntoks.append(a.emit(nxt[len(ntoks)]))
                if cfg.loop1 and st == 0 and (ks, mi) == (1, 5):
                    a('s_add_u32 s64, s64, 1')
                    a('s_cmp_eq_u32 s64, 3')
                    a('s_cselect_b32 s64, 0, s64')
                    a('s_cselect_b32 s66, %d, 0' % (3 * SLOT))
                    a('s_sub_u32 s66, %d, s66' % SLOT)
                if st >= 8 and cfg.areg:
                    n = ks * 6 + mi - 1 if not cfg.e8 else (st - 8) * 24 + (ks - cfg.e8ks) * 6 + mi
                    if not cfg.e8 and st == 8: n = -1
                    if 0 <= n < 5 * cfg.areg:
                        k, dl = n // 5, n % 5
                        if dl == 0:
                            if cfg.rot2:
                                a('s_mul_i32 s14, s%d, 5120' % (16 + k))
                                a('s_add_u32 s14, s14, s86')
                            else: a('s_add_u32 s14, s86, %d' % (5120 * k))
                        b_ = 160 + k * 20 + 4 * dl
                        if dl < 4: a('buffer_load_dwordx4 %s, v240, s[48:51], s14 offen offset:%d sc1' % (vr(b_, 4), 1024 * dl))
                        else: a('buffer_load_dwordx4 %s, v241, s[48:51], s14 offen sc1' % vr(b_, 4))
                    elif cfg.e8 and 0 <= n - 5 * cfg.areg < 5 * cfg.e8:
                        i, dl = (n - 5 * cfg.areg) // 5, (n - 5 * cfg.areg) % 5
                        assert i < 2 or st == 9
                        if dl == 0:
                            a('s_add_u32 s14, s86, %d' % (5120 * (8 + i)))
                            a('s_add_u32 m0, s88, %d' % wblk(i))
                        if dl < 4: a('buffer_load_dwordx4 v240, s[48:51], s14 offen offset:%d sc1 lds' % (1024 * dl))
                        else:
                            a('s_add_u32 m0, s88, %d' % (wblk(i) + 4096))
                            a('buffer_load_dwordx4 v241, s[48:51], s14 offen sc1 lds')
                if (st, ks, mi) == ((9, 0, 5) if cfg.loop1 else (6, 1, 5)):
                    a('v_mov_b32 v9, %d' % (CNT + 32))
                    a('ds_read_b32 v%d, v9' % VN)
                if (st, ks, mi) == (7, 0, 5) and cfg.cclear and not odd:
                    a.emit('s_waitcnt vmcnt(0)')
                    flag_store(a, 's80')
            toks = ntoks
            cur = 1 - cur
        if cfg.loop1 and st == 0:
            a('s_sub_u32 s65, s65, 1')
            a('s_cmp_lg_u32 s65, 0')
            a('s_cbranch_scc1 %s' % lname)
    prof.stamp(2); prof.cyc(6)
    for tt in range(NT_):
        for b in range(NBT):
            x = acc(tt, b)
            o = 16 + (tt * NBT + b) * 4
            for p in range(8):
                a('v_mul_f32 v%d, v%d, v%d' % (x + p, x + p, x + 8 + p))
            for p in range(4):
                a('v_cvt_pk_bf16_f32 v%d, v%d, v%d' % (o + p, x + 2 * p, x + 2 * p + 1))
            a('buffer_store_dwordx4 %s, v10, s[44:47], s%d offen offset:%d sc1' % ((vr(o, 4),) + store(tt, b)))

def c_common(a, cfg):
    g2_scalars(a, 84, 85)
    a('s_mul_i32 s86, s85, 245760')
    a('s_mul_i32 s96, s3, 61440')
    a('s_add_u32 s86, s86, s96')
    a('s_mul_i32 s87, s84, 196608')
    a('s_mul_i32 s96, s3, 49152')
    a('s_add_u32 s87, s87, s96')
    a('s_mul_i32 s88, s3, 10240')
    a('s_mul_i32 s83, s84, 384')
    a('s_mul_i32 s96, s3, 96')
    a('s_add_u32 s83, s83, s96')
    a('s_add_u32 s83, s83, %d' % F_H)
    if cfg.ocoal:
        a('s_lshr_b32 s97, s84, 3')
        a('s_lshl_b32 s97, s97, 9')
        a('s_and_b32 s96, s84, 7')
        a('s_lshl_b32 s96, s96, 3')
        a('s_add_u32 s97, s97, s96')
        a('s_lshl_b32 s96, s3, 1')
        a('s_add_u32 s97, s97, s96')
        a('s_mul_i32 s89, s97, 1280')
        a('s_mul_i32 s96, s85, 160')
        a('s_add_u32 s89, s89, s96')
        for i in range(3):
            d = (242, 244, 245)[i]
            a('v_add_u32 v12, %d, v1' % (64 * i))
            a('v_mul_u32_u24 v13, 6554, v12')
            a('v_lshrrev_b32 v13, 16, v13')
            a('v_mul_u32_u24 v14, 10, v13')
            a('v_sub_u32 v14, v12, v14')
            a('v_and_b32 v15, 7, v13')
            a('v_lshlrev_b32 v15, 6, v15')
            a('v_lshrrev_b32 v13, 3, v13')
            a('v_add_u32 v13, v13, v15')
            a('v_mul_u32_u24 v13, 1280, v13')
            a('v_lshl_add_u32 v%d, v14, 4, v13' % d)
        a('v_cmp_gt_u32 vcc, 32, v1')
        a('v_mov_b32 v14, 0x%x' % OOB)
        a('v_cndmask_b32 v245, v14, v245, vcc')
    else:
        row_off(a, 244, 245, 84, 85, 3)
    a('v_lshlrev_b32 v240, 4, v1')
    a('v_add_u32 v241, 4096, v240')
    lane_min(a, 246, 24)
    a('v_and_b32 v9, 31, v1')
    a('v_lshlrev_b32 v9, 2, v9')
    a('v_add_u32 v9, %d, v9' % CNT)
    a('v_mov_b32 v12, 0')
    a('ds_write_b32 v9, v12')
    a.emit('s_waitcnt lgkmcnt(0)'); a.lgq = []
    srd(a, 44, P_WS, SZ_H, WS_H)
    srd(a, 48, P_WS, SZ_WD, WS_WD)
    srd(a, 56, P_OUT, SZ_X)
    wave_common(a)
    if cfg.ptouch:
        M2 = 2 << 20
        tl_ = [(P_K, 0), (P_K, M2), (P_V, 0), (P_V, M2), (P_WD, 0), (P_SSMK, 0), (P_SSMK, M2), (P_Q, M2), (P_OUT, 0), (P_OUT, M2), (P_GW, 0), (P_SHK, 0)]
        tl_ += [(P_WS, i * M2 + M2 - 64) for i in range(7)]
        a('s_mov_b32 s64, 0x%x' % M2)
        lab = newlabel('Lpt')
        for w in range(4):
            a('s_cmp_lg_u32 s3, %d' % w)
            a('s_cbranch_scc1 %s_%d' % (lab, w))
            for p, off in tl_[w::4]:
                a('s_mov_b32 s64, 0x%x' % off)
                a('s_load_dword s65, s[%d:%d], s64' % (p, p + 1))
            a.label('%s_%d' % (lab, w))
    if cfg.rot2:
        rot_off(a, cfg, 95)
        for k in range(12): kap(a, 16 + k, 95, k)
    if cfg.spf > 2:
        SPF.X, SPF.WG, SPF.WU = P_Q, P_WG, P_WU
        sp = SPF(a, cfg, 3, 62, 66, 64, 65, 2)
        SPF.X, SPF.WG, SPF.WU = 44, 48, 52
        sp.upto(cfg.spf - 1)
    if cfg.cclear:
        srd(a, 60, P_WS, SZ_Y2, WS_Y2)
        a('s_mul_i32 s80, s4, 20')
        a('s_add_u32 s80, s80, s5')
        a('s_lshl_b32 s80, s80, 2')
        a('s_add_u32 s80, s80, s3')
        a('s_lshl_b32 s81, s80, 12')
        a('s_lshl_b32 s80, s80, 2')
        a('s_add_u32 s80, s80, %d' % F_YC)
        a('s_cmp_ge_u32 s5, 20')
        a('s_cselect_b32 s96, 0x%x, 0' % FAR)
        a('s_or_b32 s80, s80, s96')
        a('s_or_b32 s81, s81, s96')
        for i in range(4): a('v_mov_b32 v%d, -1' % (160 + i))
        for i in range(4):
            a('buffer_store_dwordx4 v[160:163], v240, s[60:63], s81 offen offset:%d sc1' % (1024 * i))

def c_wave(a, cfg, prof):
    h0 = list(a.hist)
    a('s_cmp_ge_u32 s5, 30')
    a('s_cbranch_scc1 LCodd')
    c_setup_main(a)
    c_common(a, cfg)
    c_gemm1(a, cfg, prof, False)
    a('s_branch LCjoin')
    a.hist = h0; a.reset_queues()
    a.label('LCodd')
    c_setup_odd(a)
    c_common(a, cfg)
    c_gemm1(a, cfg, prof, True)
    a.label('LCjoin')
    prof.stamp(3)
    a('v_readfirstlane_b32 s%d, v%d' % (NONCE, VN))
    def h_flag(n_younger):
        a.emit('s_waitcnt vmcnt(%d)' % n_younger)
        if not n_younger: a.vmq = []
        flag_store(a, '0', 249)
        a('s_setprio 0')
        prof.stamp(7); prof.cyc(40)
    a.vmq = []
    if not cfg.pre_ack: h_flag(0)
    NA, NB = cfg.na, cfg.nb
    NL = 6 if cfg.c0 else 4
    L0 = 12 - NL
    LS = cfg.lsteps
    assert not cfg.quiet or LS == 0
    cblocks = ([4, 5] if cfg.c0 else []) + list(range(LS, 4))
    border = cblocks + list(range(LS))
    AB = 240 - 20 * NA; ACC2 = AB - 80 - (8 if NA == 4 else 0); BB = 8
    assert BB + 16 * NB <= ACC2 and not (cfg.areg and NA != 4)
    RD = 160 if NA == 4 else 12
    gtok = {}
    def acc2(dl, sg): return ACC2 + (sg * 5 + dl) * 4
    def wdoff(k):
        if cfg.rot2:
            a('s_mul_i32 s14, s%d, 5120' % (16 + k))
            a('s_add_u32 s14, s14, s86')
        else: a('s_add_u32 s14, s86, %d' % (5120 * k))
    def lbase(off): return ('v4', off) if off < SLOT else ('v7', off - SLOT)
    def issueA(k):
        b = AB + (k % NA) * 20
        if k >= L0:
            i = border[k - L0]
            if i == 0 and LS: lds_word_wait(a, cfg, 3, 16, 5, 6, 'Lwf')
            base, off = lbase(wblk(i))
            for dl in range(5):
                gtok[(k, 'a')] = a.emit('ds_read_b128 %s, %s offset:%d' % (vr(b + 4 * dl, 4), base, off + dl * 1024))
            return
        wdoff(k)
        for dl in range(4):
            a('buffer_load_dwordx4 %s, v240, s[48:51], s14 offen offset:%d sc1' % (vr(b + 4 * dl, 4), 1024 * dl))
        gtok[(k, 'a')] = a.emit('buffer_load_dwordx4 %s, v241, s[48:51], s14 offen sc1' % vr(b + 16, 4))
    def issueB(k):
        b = BB + (k % NB) * 16
        if cfg.rot2:
            a('s_lshl_b32 s15, s%d, 12' % (16 + k))
            a('s_add_u32 s15, s15, s87')
        else: a('s_add_u32 s15, s87, %d' % (4096 * k))
        for sg in range(4):
            gtok[(k, sg)] = a.emit('buffer_load_dwordx4 %s, v240, s[44:47], s15 offen offset:%d sc1' % (vr(b + 4 * sg, 4), 1024 * sg))
    a('v_add_u32 v4, s88, v240')
    a('v_add_u32 v7, %d, v4' % SLOT)
    a('v_mov_b32 v5, %d' % CNT)
    a('v_mov_b32 v6, 1')
    a('v_cmp_eq_u32 vcc, 0, v1')
    a('s_and_saveexec_b64 s[90:91], vcc')
    a('ds_add_u32 v5, v6')
    a('s_mov_b64 exec, s[90:91]')
    lds_spin(a, cfg, 5, 6, 82, 'ge', 4, 'Lcsync')
    lds_word_wait(a, cfg, 3, 48, 5, 6, 'Lwok')
    prof.stamp(31)
    assert not (cfg.areg and (cfg.ungate or cfg.nine))
    for k in range(cfg.areg): gtok[(k, 'a')] = -1
    done = [0]
    def tick():
        done[0] += 1
        if done[0] == cfg.pre_ack: h_flag(5 * cfg.pre_ack)
    for k in range(cfg.areg, NA): issueA(k); tick()
    t = None
    for n, i in enumerate(cblocks):
        if i < cfg.e8: continue
        if n == cfg.pollat: t = poll_issue(a, 246, 's83', 247)
        wdoff(L0 + n)
        a('s_add_u32 m0, s88, %d' % wblk(i))
        for dl in range(4):
            a('buffer_load_dwordx4 v240, s[48:51], s14 offen offset:%d sc1 lds' % (1024 * dl))
        a('s_add_u32 m0, s88, %d' % (wblk(i) + 4096))
        a('buffer_load_dwordx4 v241, s[48:51], s14 offen sc1 lds')
        tick()
    if t is None: t = poll_issue(a, 246, 's83', 247)
    prof.stamp(32)
    if cfg.prof:
        a.wait_vm(t); prof.stamp(33)
    def group_wait(tok, g):
        if cfg.rot2:
            a('s_lshl_b32 s80, s%d, 1' % (16 + 4 * g))
            a('s_lshl_b64 s[80:81], 0xff, s80') if False else None
            a('s_mov_b32 s81, 0xff')
            a('s_lshl_b32 s82, s81, s80')
            a('s_sub_u32 s80, 24, s80')
            a('s_lshr_b32 s81, s81, s80')
            a('s_or_b32 s82, s82, s81')
            a('s_and_b32 s82, s82, 0xffffff')
        else:
            a('s_mov_b32 s82, 0x%x' % (0xff << (8 * g)))
        a.wait_vm(tok)
        lo, ok = newlabel('Lg'), newlabel('Lg_ok')
        a('s_mov_b32 s94, %d' % cfg.spin)
        a.label(lo)
        a('v_cmp_ne_u32 vcc, s%d, v247' % NONCE)
        a('s_nop 0')
        a('s_and_b32 s81, vcc_lo, s82')
        a('s_cbranch_scc0 %s' % ok)
        a('s_sleep %d' % cfg.hsleep)
        poll_issue(a, 246, 's83', 247)
        a.emit('s_waitcnt vmcnt(0)')
        a.vmq.pop()
        a('s_sub_u32 s94, s94, 1')
        a('s_cmp_lg_u32 s94, 0')
        a('s_cbranch_scc1 %s' % lo)
        a.label(ok)
    if cfg.grp:
        assert NB == 4
        group_wait(t, 0)
    else:
        poll_wait(a, cfg, t, 246, 's83', 247, sleep=cfg.hsleep)
    prof.stamp(8); prof.cyc(41)
    if cfg.grp: gp = {1: poll_issue(a, 246, 's83', 247)}
    for k in range(NB): issueB(k)
    def step(k, sgs, after=None):
        ab_, bb_ = AB + (k % NA) * 20, BB + (k % NB) * 16
        if k >= L0: a.wait_lg(gtok[(k, 'a')])
        else: a.wait_vm(gtok[(k, 'a')])
        for n, sg in enumerate(sgs):
            a.wait_vm(gtok[(k, sg)])
            if n == 0: prof.stamp(10 + k)
            for dl in range(5):
                c = '0' if k == 0 else vr(acc2(dl, sg), 4)
                a('v_mfma_f32_16x16x32_bf16 %s, %s, %s, %s' % (vr(acc2(dl, sg), 4), vr(ab_ + 4 * dl, 4), vr(bb_ + 4 * sg, 4), c))
                if after: after(n, dl)
    NK = 11 if cfg.fin else 12
    for k in range(NK):
        step(k, range(4))
        if cfg.grp and k in (0, 4): group_wait(gp[k // 4 + 1], k // 4 + 1)
        if cfg.grp and k == 2: gp[2] = poll_issue(a, 246, 's83', 247)
        if k + NB < 12: issueB(k + NB)
        if k + NA < 12: issueA(k + NA)
        if k == cfg.ygate: lds_word(a, 3, 64, 5, 6)
    def blk(w, sg): return w * 10240 + wblk(sg if sg < w else sg - 1)
    a('v_add_u32 v7, %d, v240' % SLOT)
    a('v_add_u32 v4, %d, v7' % SLOT)
    if not cfg.fin: a('s_nop 7')
    else:
        a.wait_lg(gtok[(11, 'a')])
        a.wait_all_vm()
    for w in range(3):
        a('s_cmp_eq_u32 s3, %d' % (w + 1))
        a('s_cbranch_scc1 Lfin%d' % (w + 1))
    hist0 = [] if cfg.fin else list(a.hist)
    def ab(off): return ('v7', off - SLOT) if off < 2 * SLOT else ('v4', off - 2 * SLOT)
    for w in range(4):
        a.hist = list(hist0); a.vmq = []; a.lgq = []
        a.label('Lfin%d' % w)
        others = [x for x in range(4) if x != w]
        def wr(sg, dl):
            r, o = ab(blk(w, sg) + dl * 1024)
            a('ds_write_b128 %s, %s offset:%d' % (r, vr(acc2(dl, sg), 4), o))
        if cfg.fin:
            pend = []
            def after(n, dl):
                if n < 3: pend.append((others[n], dl))
                if len(pend) > 6 or (n == 3 and pend): wr(*pend.pop(0))
            step(11, others + [w], after=after)
            while pend: wr(*pend.pop(0))
        else:
            for sg in others:
                for dl in range(5): wr(sg, dl)
        prof.stamp(9); prof.cyc(42)
        if cfg.coop:
            a('v_lshlrev_b32 v5, 3, v1')
            a('v_add_u32 v5, %d, v5' % (PA + w * 5120 + 2560))
        else:
            a('v_add_u32 v5, %d, v240' % (PA + w * 5120))
        a('v_lshlrev_b32 v3, 2, v1')
        a('v_add_u32 v3, %d, v3' % (QA + w * QSZ + 3072))
        if cfg.ocoal:
            a('v_and_b32 v2, 15, v1')
            a('v_mul_u32_u24 v2, 160, v2')
            a('v_lshrrev_b32 v8, 4, v1')
            a('v_lshl_add_u32 v2, v8, 3, v2')
            a('v_add_u32 v2, %d, v2' % (PA + w * 5120))
            a('v_add_u32 v8, %d, v240' % (PA + w * 5120))
        a.wait_all_lg()
        a('s_barrier')
        prof.stamp(30)
        tl = {}
        tl['omg'] = a.emit('ds_read_b32 v6, v3')
        for dl in range(5):
            for si, x in enumerate(others):
                r, o = ab(blk(x, w) + dl * 1024)
                tl[(dl, si)] = a.emit('ds_read_b128 %s, %s offset:%d' % (vr(RD + (dl * 4 + si) * 4, 4), r, o))
            if cfg.coop: tl[(dl, 3)] = a.emit('ds_read_b64 %s, v5 offset:%d' % (vr(RD + (dl * 4 + 3) * 4 + 2, 2), dl * 512))
            else: tl[(dl, 3)] = a.emit('ds_read_b128 %s, v5 offset:%d' % (vr(RD + (dl * 4 + 3) * 4, 4), dl * 1024))
        for dl in range(5):
            x = acc2(dl, w)
            for si in range(3):
                a.wait_lg(tl[(dl, si)])
                r = RD + (dl * 4 + si) * 4
                a('v_pk_add_f32 %s, %s, %s' % (P2(x), P2(x), P2(r)))
                a('v_pk_add_f32 %s, %s, %s' % (P2(x + 2), P2(x + 2), P2(r + 2)))
            ga = RD + (dl * 4 + 3) * 4
            t = 8 + (dl & 1) * 2 if NA != 4 else 12 + (dl & 1) * 4
            a.wait_lg(tl[(dl, 3)])
            if cfg.coop:
                unpack_lo(a, ga, ga + 2); unpack_hi(a, ga + 1, ga + 2); unpack_lo(a, ga + 2, ga + 3); unpack_hi(a, ga + 3, ga + 3)
            for i in range(4): a('v_fma_f32 v%d, v6, v%d, v%d' % (x + i, x + i, ga + i))
            a('v_cvt_pk_bf16_f32 v%d, v%d, v%d' % (t, x, x + 1))
            a('v_cvt_pk_bf16_f32 v%d, v%d, v%d' % (t + 1, x + 2, x + 3))
            if cfg.ocoal: a('ds_write_b64 v2, %s offset:%d' % (vr(t, 2), dl * 32))
            else: a('buffer_store_dwordx2 %s, v244, s[56:59], 0 offen offset:%d' % (vr(t, 2), dl * 32))
        if cfg.ocoal:
            a.wait_all_lg()
            to = [a.emit('ds_read_b128 %s, v8 offset:%d' % (vr(24 + 4 * i, 4), 1024 * i)) for i in range(3)]
            for i in range(3):
                a.wait_lg(to[i])
                a('buffer_store_dwordx4 %s, v%d, s[56:59], s89 offen%s' % (vr(24 + 4 * i, 4), (242, 244, 245)[i], ['', ' sc1', ' nt'][cfg.oflag]))
        prof.stamp(4)
        prof.flush(243)
        a('s_endpgm')

class SPF:
    def __init__(self, a, cfg, wv, pw, px, cur, dst, first):
        self.a, self.cfg, self.pw, self.px, self.cur, self.dst, self.next = a, cfg, pw, px, cur, dst, first
        a('s_lshl_b32 s96, s5, 2')
        a('s_add_u32 s96, s96, s%d' % wv)
        a('s_and_b32 s%d, s4, 1' % cur)
        a('s_mul_i32 s%d, s%d, 10' % (cur, cur))
        a('s_mul_i32 s97, s6, 5')
        a('s_add_u32 s%d, s%d, s97' % (cur, cur))
        a('s_lshr_b32 s%d, s%d, 1' % (cur, cur))
        if cfg.xrot == 0: a('s_mov_b32 s%d, 0' % cur)
        a('s_add_u32 s%d, s%d, %d' % (cur, cur, first))
        for _ in range(2):
            a('s_cmp_ge_u32 s%d, 10' % cur)
            a('s_cselect_b32 s97, 10, 0')
            a('s_sub_u32 s%d, s%d, s97' % (cur, cur))
        a('s_bitcmp1_b32 s96, 0')
        a('s_cselect_b32 s%d, s%d, s%d' % (pw, self.WU, self.WG))
        a('s_cselect_b32 s%d, s%d, s%d' % (pw + 1, self.WU + 1, self.WG + 1))
        a('s_lshr_b32 s97, s96, 1')
        a('s_mul_i32 s97, s97, 3072')
        a('s_mul_i32 s%d, s6, 768' % dst)
        a('s_add_u32 s97, s97, s%d' % dst)
        a('s_mul_i32 s%d, s%d, 196608' % (dst, cur))
        a('s_add_u32 s97, s97, s%d' % dst)
        a('s_add_u32 s%d, s%d, s97' % (pw, pw))
        a('s_addc_u32 s%d, s%d, 0' % (pw + 1, pw + 1))
        a('s_lshr_b32 s97, s96, 3')
        a('s_min_u32 s97, s97, 14')
        a('s_and_b32 s%d, s4, 1' % dst)
        a('s_mul_i32 s%d, s%d, 15' % (dst, dst))
        a('s_add_u32 s97, s97, s%d' % dst)
        a('s_and_b32 s96, s96, 7')
        a('s_lshr_b32 s%d, s97, 3' % dst)
        a('s_lshl_b32 s%d, s%d, 9' % (dst, dst))
        a('s_add_u32 s96, s96, s%d' % dst)
        a('s_and_b32 s97, s97, 7')
        a('s_lshl_b32 s97, s97, 3')
        a('s_add_u32 s96, s96, s97')
        a('s_mul_i32 s96, s96, 1280')
        a('s_lshl_b32 s97, s%d, 7' % cur)
        a('s_add_u32 s96, s96, s97')
        a('s_add_u32 s%d, s%d, s96' % (px, self.X))
        a('s_addc_u32 s%d, s%d, 0' % (px + 1, self.X + 1))
    X, WG, WU = 44, 48, 52
    def upto(self, st):
        a = self.a
        while self.next <= min(st, NSTAGE - 1):
            for i in range(6): a('s_load_dword s%d, s[%d:%d], %d' % (self.dst, self.pw, self.pw + 1, 128 * i))
            for i in range(self.cfg.spfx): a('s_load_dword s%d, s[%d:%d], %d' % (self.dst, self.px, self.px + 1, 81920 * i))
            a('s_add_u32 s%d, s%d, 1' % (self.cur, self.cur))
            a('s_cmp_eq_u32 s%d, 10' % self.cur)
            a('s_cselect_b32 s96, %d, 196608' % 0) if False else None
            a('s_cselect_b32 s96, 1966080, 0')
            a('s_cselect_b32 s97, 1280, 0')
            a('s_sub_u32 s%d, s%d, s96' % (self.pw, self.pw)); a('s_subb_u32 s%d, s%d, 0' % (self.pw + 1, self.pw + 1))
            a('s_add_u32 s%d, s%d, 196608' % (self.pw, self.pw)); a('s_addc_u32 s%d, s%d, 0' % (self.pw + 1, self.pw + 1))
            a('s_sub_u32 s%d, s%d, s97' % (self.px, self.px)); a('s_subb_u32 s%d, s%d, 0' % (self.px + 1, self.px + 1))
            a('s_add_u32 s%d, s%d, 128' % (self.px, self.px)); a('s_addc_u32 s%d, s%d, 0' % (self.px + 1, self.px + 1))
            self.next += 1

SX = [28, 29, 30, 31, 7, 8]
class Loader:
    def __init__(self, a, cfg, prof, odd):
        self.a, self.odd, self.tok = a, odd, {}
        if odd:
            a('v_lshrrev_b32 v9, 3, v1')
            a('v_and_b32 v10, 7, v1')
            a('v_lshrrev_b32 v11, 1, v9')
            a('v_xor_b32 v10, v10, v11')
            a('v_lshlrev_b32 v10, 4, v10')
            a('s_mov_b32 s12, 81920')
            a('v_mul_lo_u32 v9, v9, s12')
            a('v_add_u32 v2, v9, v10')
            a('v_xor_b32 v10, 64, v10')
            a('v_add_u32 v3, v9, v10')
            a('v_add_u32 v3, 256, v3')
            a('v_add_u32 v4, 512, v2')
            a('v_add_u32 v5, 512, v3')
            for i in range(3):
                a('v_add_u32 v9, %d, v1' % (64 * i))
                a('v_mul_u32_u24 v10, 5462, v9')
                a('v_lshrrev_b32 v10, 16, v10')
                a('v_mul_u32_u24 v11, 12, v10')
                a('v_sub_u32 v11, v9, v11')
                a('v_mul_u32_u24 v10, 3072, v10')
                a('v_lshl_add_u32 v10, v11, 4, v10')
                a('v_subrev_u32 v%d, %d, v10' % (6 + i, 1024 * i))
            a('s_mov_b32 s12, %d' % (512 * 3 + 16 * 3))
            a('s_lshl_b32 s13, s10, 2')
            a('s_add_u32 s12, s12, s13')
            a('s_mul_i32 s12, s12, 1280')
            a('s_mul_i32 s13, s10, 49152')
            a('s_mul_i32 s14, s8, 192')
            a('s_add_u32 s13, s13, s14')
            a('s_lshl_b32 s14, s10, 12')
            a('s_mul_i32 s15, s10, 3072')
        else:
            a('v_lshrrev_b32 v9, 3, v1')
            a('v_and_b32 v10, 7, v1')
            a('v_lshrrev_b32 v11, 1, v9')
            a('v_xor_b32 v4, v10, v11')
            a('v_lshlrev_b32 v4, 4, v4')
            a('s_mov_b32 s12, 81920')
            a('v_mul_lo_u32 v3, v9, s12')
            a('v_add_u32 v2, v3, v4')
            a('v_xor_b32 v4, 64, v4')
            a('v_add_u32 v3, v3, v4')
            a('v_and_b32 v11, 1, v11')
            a('v_lshlrev_b32 v11, 1, v11')
            a('v_xor_b32 v10, v10, v11')
            a('v_mul_u32_u24 v9, 3072, v9')
            a('v_lshl_add_u32 v4, v10, 4, v9')
            a('v_add_u32 v5, 23552, v4')
            a('v_xor_b32 v6, 64, v4')
            a('v_xor_b32 v7, 64, v5')
            a('s_mul_i32 s12, s10, 6')
            a('s_mul_i32 s13, s7, 3')
            a('v_add_u32 v9, s12, v1')
            a('v_lshrrev_b32 v10, 3, v9')
            a('v_add_u32 v10, s13, v10')
            a('v_and_b32 v9, 7, v9')
            a('v_and_b32 v11, 7, v10')
            a('v_lshl_add_u32 v9, v11, 3, v9')
            a('v_lshrrev_b32 v10, 3, v10')
            a('v_lshl_add_u32 v9, v10, 9, v9')
            a('v_mul_u32_u24 v9, 1280, v9')
            a('v_subrev_u32 v10, 3, v1')
            a('v_min_u32 v10, v10, v1')
            a('v_lshlrev_b32 v10, 10, v10')
            a('v_sub_u32 v8, v9, v10')
            a('s_mul_i32 s13, s10, 49152')
            a('s_lshl_b32 s14, s8, 7')
            a('s_add_u32 s13, s13, s14')
            a('s_mul_i32 s14, s10, 6144')
            a('s_lshl_b32 s15, s10, 11')
        self.rot = cfg.xrot
        self.alt = cfg.alt
        if cfg.alt and not odd:
            a('s_add_u32 s93, s7, s8')
            a('s_and_b32 s93, s93, 1')
        if cfg.xrot:
            a('s_and_b32 s9, s4, 1')
            a('s_mul_i32 s9, s9, 10')
            a('s_mul_i32 s96, s6, 5')
            a('s_add_u32 s9, s9, s96')
            if cfg.xrot == 2:
                a('s_mul_i32 s96, s5, 3')
                a('s_add_u32 s9, s9, s96')
                a('s_and_b32 s9, s9, 31')
            a('s_lshr_b32 s9, s9, 1')
            a('s_cmp_ge_u32 s9, 10')
            a('s_cselect_b32 s96, 10, 0')
            a('s_sub_u32 s9, s9, s96')
            a('s_lshl_b32 s96, s9, 7')
            if odd: a('s_add_u32 s12, s12, s96')
            else:
                a('v_add_u32 v2, s96, v2')
                a('v_add_u32 v3, s96, v3')
            a('s_mul_i32 s96, s9, 196608')
            a('s_add_u32 s13, s13, s96')
        for d, sz in ((44, SZ_X), (48, SZ_W), (52, SZ_W)):
            a('s_mov_b32 s%d, 0x%x' % (d + 2, sz))
            a('s_mov_b32 s%d, 0x00020000' % (d + 3))
        if not odd:
            for i in range(6): a('v_readlane_b32 s%d, v8, %d' % (SX[i], i))
        a.emit('s_waitcnt lgkmcnt(0)')
        prof.stamp(3)
    def issue(self, st):
        a = self.a
        base = (st % NSLOT) * SLOT
        if self.odd:
            a('s_add_u32 m0, s14, %d' % base)
            for i in range(4):
                a('buffer_load_dwordx4 v%d, s[44:47], s12 offen offset:%d lds' % (2 + i, 1024 * i))
            a('s_add_u32 m0, s15, %d' % (base + OFF_GATE))
            for i in range(3):
                a('buffer_load_dwordx4 v%d, s[48:51], s13 offen offset:%d lds' % (6 + i, 1024 * i))
            a('s_add_u32 m0, s15, %d' % (base + OFF_UP))
            for i in range(3):
                t = a.emit('buffer_load_dwordx4 v%d, s[52:55], s13 offen offset:%d lds' % (6 + i, 1024 * i))
            a('s_add_u32 s12, s12, 128')
        else:
            def xpart(order):
                for h in order:
                    a('s_add_u32 m0, s14, %d' % (base + 3072 * h))
                    for i in range(3 * h, 3 * h + 3):
                        t = a.emit('buffer_load_dwordx4 v%d, s[44:47], s%d offen offset:%d lds' % (2 + (i & 1), SX[i], 1024 * (i % 3)))
                return t
            def wpart(order):
                for m in order:
                    a('s_add_u32 m0, s15, %d' % (base + 24576 + 8192 * m))
                    for i in range(2):
                        t = a.emit('buffer_load_dwordx4 v%d, s[%d:%d], s13 offen offset:%d lds' % (4 + 2 * m + i, 48 + 4 * m, 51 + 4 * m, 1024 * i))
                return t
            if self.alt:
                l1, l2 = newlabel('Lalt'), newlabel('Lalt_done')
                a('s_cmp_lg_u32 s93, 0')
                a('s_cbranch_scc1 %s' % l1)
                q0 = list(a.vmq)
                if self.alt == 1: xpart((0, 1)); wpart((0, 1))
                else: xpart((0,)); wpart((0,)); xpart((1,)); wpart((1,))
                a('s_branch %s' % l2)
                a.vmq = q0
                a.label(l1)
                if self.alt == 1: wpart((1, 0)); t = xpart((1, 0))
                else: wpart((1,)); xpart((1,)); wpart((0,)); t = xpart((0,))
                a.label(l2)
            else:
                xpart((0, 1)); t = wpart((0, 1))
            a('v_add_u32 v2, 0x80, v2')
            a('v_add_u32 v3, 0x80, v3')
        a('s_add_u32 s13, s13, 196608')
        if self.rot:
            a('s_add_u32 s9, s9, 1')
            a('s_cmp_eq_u32 s9, 10')
            a('s_cselect_b32 s96, 1280, 0')
            a('s_cselect_b32 s97, 1966080, 0')
            a('s_sub_u32 s13, s13, s97')
            if self.odd: a('s_sub_u32 s12, s12, s96')
            else:
                a('v_subrev_u32 v2, s96, v2')
                a('v_subrev_u32 v3, s96, v3')
        self.tok[st] = t

def l_wave(a, cfg, prof):
    a('s_setprio %d' % cfg.lprio)
    a('s_and_b32 s10, s3, 3')
    h0 = list(a.hist)
    a('s_cmp_ge_u32 s5, 30')
    a('s_cbranch_scc1 LLodd')
    l_body(a, cfg, prof, False)
    a.hist = h0; a.reset_queues()
    a.label('LLodd')
    l_body(a, cfg, prof, True)

def l_body(a, cfg, prof, odd):
    ld = Loader(a, cfg, prof, odd)
    stage_tok = ld.tok
    issue_stage = ld.issue
    issue_stage(0)
    wave_common(a)
    if cfg.drop:
        a('s_mov_b32 s92, 1'); a('v_mov_b32 v250, 1'); a('s_mov_b32 s86, 0')
    if not odd:
        a('s_lshl_b32 s76, s2, 2')
        a('s_add_u32 s76, s76, s10')
        a('s_cmp_lg_u32 s76, 0')
        a('s_cbranch_scc1 Lno_nonce')
        a('s_memrealtime s[76:77]')
        srd(a, 68, P_DBG, 256)
        a.emit('s_waitcnt lgkmcnt(0)')
        a('s_or_b32 s76, s76, 1')
        a('v_mov_b32 v20, s76')
        a('buffer_store_dword v20, v%d, s[68:71], 0 offen sc1' % VZ)
        a.emit('s_waitcnt vmcnt(0)')
        a.vmq.pop()
        a.label('Lno_nonce')
    issue_stage(1)
    assert not cfg.spf
    spf = None
    g2_scalars(a, 84, 85)
    a('s_mul_i32 s82, s10, 5120')
    a('s_add_u32 s82, s82, %d' % PA)
    a('s_mul_i32 s83, s10, %d' % QSZ)
    a('s_add_u32 s83, s83, %d' % QA)
    a('s_mul_i32 s88, s85, 48')
    a('s_mul_i32 s96, s10, 12')
    a('s_add_u32 s88, s88, s96')
    a('s_mul_i32 s0, s88, 5120')
    if cfg.rot2: rot_off(a, cfg, 95)
    else: a('s_mov_b32 s95, 0')
    a('s_lshl_b32 s88, s88, 2')
    a('s_add_u32 s88, s88, %d' % F_WD)
    a('s_mul_i32 s1, s10, 10240')
    a('v_lshlrev_b32 v241, 4, v1')
    a('v_add_u32 v245, 4096, v241')
    if not odd:
        a('s_cmp_ge_u32 s5, 20')
        a('s_cbranch_scc1 LtypeB')
    saved = (list(a.vmq), dict(stage_tok), list(a.hist), spf.next if spf else 0)
    tk = {}
    DROP = {1: ('kv_loads', 'wd_loads'), 2: ('f',), 4: ('ut_store', 'wd_part'), 8: ('y_clear',), 16: ('n_issue', 'n_get', 'd_issue')}
    dn = [n for b, ns in DROP.items() if cfg.drop & b for n in ns]
    class _T(dict):
        def __missing__(self, k): return -1
    tk = _T()
    def interval(i, slices, pre={}):
        slices = {k: [f for f in v if f.__name__ not in dn] for k, v in slices.items()}
        pre = {k: [f for f in v if f.__name__ not in dn] for k, v in pre.items()}
        if cfg.nine and i == 8: a.wait_vm(stage_tok[9])
        a.wait_vm(stage_tok[i])
        if a.lgq: a.wait_all_lg()
        if cfg.lstamp: prof.stamp(10 + i)
        if not (cfg.nine and i == 9): a('s_barrier')
        if cfg.lstamp: prof.stamp(20 + i)
        if spf: spf.upto(i + cfg.spf)
        for f in pre.get(i, []): f()
        if i + NSLOT - 1 < NSTAGE: issue_stage(i + NSLOT - 1)
        for f in slices.get(i, []): f()
    def n_issue():
        a('s_load_dword s%d, s[%d:%d], 0' % (NONCE, P_DBG, P_DBG + 1))
    def n_get():
        lo, ok = newlabel('Ln'), newlabel('Ln_ok')
        a.emit('s_waitcnt lgkmcnt(0)'); a.lgq = []
        a('s_cmp_lg_u32 s%d, 0' % NONCE)
        a('s_cbranch_scc1 %s' % ok)
        a('s_mov_b32 s94, %d' % cfg.spin)
        srd(a, 68, P_DBG, 256)
        a('v_mov_b32 v249, 0')
        a.label(lo)
        a('buffer_load_dword v%d, v249, s[68:71], 0 offen sc1' % VN)
        a.emit('s_waitcnt vmcnt(0)')
        a.vmq.pop()
        a('v_readfirstlane_b32 s%d, v%d' % (NONCE, VN))
        a('s_cmp_lg_u32 s%d, 0' % NONCE)
        a('s_cbranch_scc1 %s' % ok)
        a('s_sleep 8')
        a('s_sub_u32 s94, s94, 1')
        a('s_cmp_lg_u32 s94, 0')
        a('s_cbranch_scc1 %s' % lo)
        a.label(ok)
        a('s_nop 1')
        a('v_mov_b32 v%d, s%d' % (VN, NONCE))
        a('v_mov_b32 v9, %d' % (CNT + 32))
        a('ds_write_b32 v9, v%d' % VN)
    def flag_after(key, sreg):
        def f():
            a.wait_vm(tk[key])
            flag_store(a, sreg)
        return f
    def late_srds():
        srd(a, 48, P_WS, SZ_WD, WS_WD)
        srd(a, 52, P_WS, SZ_G, WS_G)
        srd(a, 64, P_WS, SZ_Y2, WS_Y2)
    def wdl_dma():
        for i in range(cfg.lsteps):
            kap(a, 97, 95, 12 - cfg.lsteps + i)
            a('s_mul_i32 s97, s97, 5120')
            a('s_add_u32 s97, s97, s0')
            a('s_add_u32 m0, s1, %d' % wblk(i))
            for dl in range(4):
                a('buffer_load_dwordx4 v241, s[48:51], s97 offen offset:%d sc1 lds' % (1024 * dl))
            a('s_add_u32 m0, s1, %d' % (wblk(i) + 4096))
            tk['wdl'] = a.emit('buffer_load_dwordx4 v245, s[48:51], s97 offen sc1 lds')
    def wdl_publish():
        if not cfg.lsteps: return
        a.wait_vm(tk['wdl'])
        lds_word(a, 10, 16, 236, 237)
    def q_loads():
        if cfg.coop:
            a('s_lshr_b32 s97, s84, 3')
            a('s_lshl_b32 s97, s97, 9')
            a('s_and_b32 s96, s84, 7')
            a('s_lshl_b32 s96, s96, 3')
            a('s_add_u32 s97, s97, s96')
            a('s_lshl_b32 s96, s10, 1')
            a('s_add_u32 s97, s97, s96')
            a('s_mul_i32 s97, s97, 1280')
            a('s_mul_i32 s96, s85, 160')
            a('s_add_u32 s97, s97, s96')
            for i in range(3):
                a('v_add_u32 v2, %d, v1' % (64 * i))
                a('v_mul_u32_u24 v3, 6554, v2')
                a('v_lshrrev_b32 v3, 16, v3')
                a('v_mul_u32_u24 v4, 10, v3')
                a('v_sub_u32 v4, v2, v4')
                a('v_and_b32 v5, 7, v3')
                a('v_lshlrev_b32 v5, 6, v5')
                a('v_lshrrev_b32 v3, 3, v3')
                a('v_add_u32 v3, v3, v5')
                a('v_mul_u32_u24 v3, 1280, v3')
                a('v_lshl_add_u32 v3, v4, 4, v3')
                if i == 2:
                    a('v_cmp_gt_u32 vcc, 32, v1')
                    a('v_mov_b32 v4, 0x%x' % OOB)
                    a('v_cndmask_b32 v3, v4, v3, vcc')
                a('s_add_u32 m0, s83, %d' % (1024 * i))
                a('buffer_load_dwordx4 v3, s[44:47], s97 offen lds')
            return
        row_off(a, 238, 239, 84, 85, 10)
        for dl in range(5):
            a('buffer_load_dwordx2 %s, v238, s[44:47], 0 offen offset:%d' % (vr(QV + 2 * dl, 2), dl * 32))
    def tail_issue():
        if cfg.bclear:
            a('s_lshl_b32 s89, s85, 8')
            a('s_add_u32 s89, s89, %d' % F_YC)
            lane_min(a, 247, 48)
            tk['y1'] = poll_issue(a, 247, 's89', 239)
            return
        a('s_mul_i32 s89, s85, 320')
        a('s_add_u32 s89, s89, %d' % F_YC)
        a('v_lshlrev_b32 v247, 2, v1')
        lane_min(a, 240, 16)
        a('v_add_u32 v240, 256, v240')
        tk['y1'] = poll_issue(a, 247, 's89', 239)
        tk['y2'] = poll_issue(a, 240, 's89', 243)
    def tail_check():
        if not cfg.bclear: poll_wait(a, cfg, tk['y2'], 240, 's89', 243)
        poll_wait(a, cfg, tk['y1'], 247, 's89', 239)

    def type_a():
        KR, VR_, WR = 32, 60, 76
        srd(a, 56, P_K, SZ_X); srd(a, 60, P_V, SZ_X); srd(a, 64, P_SHK, 5120)
        a('s_cmp_ge_u32 s5, 10')
        a('s_cselect_b32 s76, 1, 0')
        a('s_cselect_b32 s77, 10, 0')
        a('s_sub_u32 s77, s5, s77')
        a('s_lshl_b32 s78, s4, 1')
        a('s_add_u32 s76, s76, s78')
        a('s_lshl_b32 s87, s77, 2')
        a('s_add_u32 s87, s87, s10')
        a('s_lshl_b32 s89, s87, 4')
        a('s_add_u32 s89, s89, s76')
        a('s_lshl_b32 s89, s89, 2')
        a('s_lshl_b32 s87, s87, 16')
        a('s_lshl_b32 s78, s76, 8')
        a('s_add_u32 s87, s87, s78')
        a('s_lshl_b32 s76, s76, 7')
        a('s_lshl_b32 s78, s10, 5')
        a('s_add_u32 s76, s76, s78')
        a('v_lshrrev_b32 v9, 3, v1')
        a('v_and_b32 v10, 7, v1')
        a('s_lshl_b32 s78, s10, 3')
        a('v_add_u32 v22, s78, v9')
        a('v_lshlrev_b32 v11, 1, v10')
        a('v_xor_b32 v22, v22, v11')
        a('v_lshlrev_b32 v22, 3, v22')
        a('v_lshl_add_u32 v22, v10, 11, v22')
        a('v_add_u32 v22, %d, v22' % PA)
        a('v_lshlrev_b32 v9, 2, v9')
        a('v_add_u32 v9, s76, v9')
        a('v_mul_u32_u24 v232, 1280, v9')
        a('v_lshl_add_u32 v232, v10, 4, v232')
        a('s_lshl_b32 s78, s77, 7')
        a('v_add_u32 v232, s78, v232')
        a('v_subrev_u32 v233, 3840, v232')
        a('v_subrev_u32 v234, 2560, v232')
        a('v_subrev_u32 v235, 1280, v232')
        a('s_lshl_b32 s78, s77, 9')
        a('v_lshlrev_b32 v236, 6, v10')
        a('v_add_u32 v236, s78, v236')
        a('s_mul_i32 s11, s4, 20')
        a('s_add_u32 s11, s11, s5')
        a('s_lshl_b32 s11, s11, 2')
        a('s_add_u32 s11, s11, s10')
        a('s_lshl_b32 s81, s11, 12')
        a('s_lshl_b32 s80, s11, 2')
        a('s_add_u32 s80, s80, %d' % F_YC)
        a('s_lshr_b32 s76, s11, 4')
        a('s_lshl_b32 s76, s76, 6')
        a('s_sub_u32 s77, s88, 64')
        a('v_min_u32 v240, %d, v1' % (31 if cfg.bclear else 27))
        a('v_lshlrev_b32 v240, 2, v240')
        a('v_mov_b32 v9, s76')
        a('v_mov_b32 v10, s77')
        if cfg.bclear:
            a('s_lshl_b32 s78, s5, 2')
            a('s_add_u32 s78, s78, s10')
            a('s_lshl_b32 s78, s78, 2')
            a('s_mul_i32 s78, s78, 9363')
            a('s_lshr_b32 s78, s78, 16')
            a('s_lshl_b32 s79, s4, 6')
            a('s_add_u32 s78, s78, s79')
            a('s_lshl_b32 s78, s78, 2')
            a('s_add_u32 s78, s78, %d' % (F_YC - 112))
            a('v_min_u32 v240, 29, v1')
            a('v_lshlrev_b32 v240, 2, v240')
            a('v_mov_b32 v11, s78')
            a('v_cmp_gt_u32 vcc, 28, v1')
            a('v_cndmask_b32 v10, v11, v10, vcc')
        a('v_cmp_gt_u32 vcc, 16, v1')
        a('v_cndmask_b32 v9, v10, v9, vcc')
        a('v_add_u32 v240, v240, v9')
        a('s_and_b32 s86, s11, 0xfffffffe')
        a('s_lshl_b32 s86, s86, 1')
        a('s_load_dword s86, s[26:27], s86')
        a('s_mov_b32 s87, s87')
        class _A:
            def __init__(self): self.l = []
            def __call__(self, t): self.l.append(t)
        rec = _A(); conv_setup(rec, cfg)
        for t in rec.l[:-4]: a(t)
        def d_fin():
            for t in rec.l[-4:]: a(t)
        def kv_loads():
            for i in range(4):
                a('buffer_load_dwordx4 %s, v232, s[56:59], 0 offen offset:%d' % (vr(KR + 12 + 4 * i, 4), 1280 * i))
            for i in range(4):
                a('buffer_load_dwordx4 %s, v232, s[60:63], 0 offen offset:%d' % (vr(VR_ + 4 * i, 4), 1280 * i))
            a('buffer_load_dwordx4 %s, v233, s[56:59], 0 offen' % vr(KR, 4))
            a('buffer_load_dwordx4 %s, v234, s[56:59], 0 offen' % vr(KR + 4, 4))
            a('buffer_load_dwordx4 %s, v235, s[56:59], 0 offen' % vr(KR + 8, 4))
            for i in range(4):
                tk['kv'] = a.emit('buffer_load_dwordx4 %s, v236, s[64:67], 0 offen offset:%d' % (vr(WR + 4 * i, 4), 16 * i))
        def ut_srd(): srd(a, 56, P_WS, SZ_UT, WS_UT)
        def kv_part(cp):
            def f():
                a.wait_vm(tk['kv'])
                U = 92
                for r in range(7):
                    unpack_lo(a, U + 2 * r, KR + 4 * r + cp); unpack_hi(a, U + 2 * r + 1, KR + 4 * r + cp)
                for r in range(4):
                    unpack_lo(a, U + 14 + 2 * r, VR_ + 4 * r + cp); unpack_hi(a, U + 15 + 2 * r, VR_ + 4 * r + cp)
                for h in range(2):
                    unpack_lo(a, U + 22 + h, WR + 4 * cp + 2 * h); unpack_hi(a, U + 24 + h, WR + 4 * cp + 2 * h)
                    unpack_lo(a, U + 26 + h, WR + 4 * cp + 2 * h + 1); unpack_hi(a, U + 28 + h, WR + 4 * cp + 2 * h + 1)
                AC = U + 30
                for i in range(8):
                    a('v_mul_f32 v%d, v%d, v%d' % (AC + i, U + i, U + 28 + (i & 1)))
                for tap in (2, 1, 0):
                    for i in range(8):
                        a('v_fmac_f32 v%d, v%d, v%d' % (AC + i, U + 2 * (3 - tap) + i, U + 22 + 2 * tap + (i & 1)))
                for i in range(8):
                    a('v_mul_f32 v%d, v%d, v%d' % (AC + i, AC + i, U + 14 + i))
                O = 24 + (cp & 1) * 4
                for h in range(2):
                    a('v_cvt_pk_bf16_f32 v%d, v%d, v%d' % (O + 2 * h, AC + h, AC + 2 + h))
                    a('v_cvt_pk_bf16_f32 v%d, v%d, v%d' % (O + 2 * h + 1, AC + 4 + h, AC + 6 + h))
                for h in range(2):
                    a('ds_write_b64 v22, %s offset:%d' % (vr(O + 2 * h, 2), 256 * (2 * cp + h)))
            return f
        def ut_store():
            a('v_lshrrev_b32 v9, 4, v1')
            a('v_and_b32 v10, 15, v1')
            a('v_lshlrev_b32 v11, 12, v9')
            a('v_lshl_add_u32 v11, v10, 4, v11')
            a('s_lshl_b32 s76, s10, 1')
            a('s_lshl_b32 s77, s10, 12')
            a('s_add_u32 s77, s77, %d' % PA)
            for hh in range(2):
                a('s_add_u32 s78, s76, %d' % hh)
                a('v_xor_b32 v12, s78, v10')
                a('v_lshlrev_b32 v12, 4, v12')
                a('v_lshl_add_u32 v12, v9, 8, v12')
                a('v_add_u32 v%d, s77, v12' % (24 + hh))
            tl = [a.emit('ds_read_b128 %s, v%d offset:%d' % (vr(40 + 4 * i, 4), 24 + (i >> 1), 1024 * i)) for i in range(4)]
            for i in range(4):
                a.wait_lg(tl[i])
                a('s_add_u32 s76, s87, %d' % (16384 * i))
                tk['ut'] = a.emit('buffer_store_dwordx4 %s, v11, s[56:59], s76 offen sc1' % vr(40 + 4 * i, 4))
        def d_issue():
            a('s_and_b32 s86, s11, 0xfffffffe')
            a('s_lshl_b32 s86, s86, 1')
            a('s_load_dword s86, s[26:27], s86')
        def y_clear():
            srd(a, 64, P_WS, SZ_Y2, WS_Y2)
            for i in range(4): a('v_mov_b32 v%d, -1' % (232 + i))
            for i in range(4):
                tk['yc'] = a.emit('buffer_store_dwordx4 v[232:235], v241, s[64:67], s81 offen offset:%d sc1' % (1024 * i))
        def p_dma():
            srd(a, 60, P_SSMK, SZ_X)
            a('v_bfe_u32 v9, v1, 4, 1')
            a('v_lshlrev_b32 v9, 1, v9')
            a('v_xor_b32 v9, v9, v1')
            a('v_lshlrev_b32 v9, 4, v9')
            if cfg.pqsplit: return
            a('s_add_u32 m0, s82, 512')
            for i in range(4):
                tk['p'] = a.emit('buffer_load_dwordx4 v9, s[60:63], s81 offen offset:%d lds' % (1024 * i))
        def pq_piece(i):
            a('s_add_u32 m0, s83, 64')
            a('buffer_load_dwordx4 v241, s[56:59], s81 offen offset:%d sc1 lds' % (1024 * i))
            a('s_add_u32 m0, s82, 512')
            tk['pq%d' % i] = a.emit('buffer_load_dwordx4 v9, s[60:63], s81 offen offset:%d lds' % (1024 * i))
        def pads():
            for i in range(4): a('v_mov_b32 v%d, 0' % (32 + i))
            a('v_and_b32 v10, 31, v1')
            a('v_lshlrev_b32 v10, 4, v10')
            a('v_add_u32 v10, s82, v10')
            a('ds_write_b128 v10, v[32:35]')
            a('v_and_b32 v10, 3, v1')
            a('v_lshlrev_b32 v10, 4, v10')
            a('v_add_u32 v10, s83, v10')
            a('ds_write_b128 v10, v[32:35]')
        K = cfg.kv_at
        if cfg.early:
            slA = {1: [kv_part(1)], 2: [kv_part(3), n_issue], 3: [ut_srd, ut_store], 5: [flag_after('ut', 's89')], 7: [late_srds]}
        else:
            slA = {K: [kv_loads], K + 2: [kv_part(1)], K + 3: [kv_part(3), n_issue], K + 4: [ut_srd, ut_store], cfg.utf_at: [flag_after('ut', 's89')],
                   7: [late_srds]}
        slA.setdefault(8 if cfg.ungate else 7, [])
        fpoll = lambda: tk.__setitem__('f', poll_issue(a, 240, '0', 243))
        def q_dma():
            poll_wait(a, cfg, tk['f'], 240, '0', 243, sleep=cfg.fsleep)
            if cfg.pqsplit:
                for i in range(cfg.pqsplit): pq_piece(i)
            else:
                a('s_add_u32 m0, s83, 64')
                for i in range(4):
                    tk['q'] = a.emit('buffer_load_dwordx4 v241, s[56:59], s81 offen offset:%d sc1 lds' % (1024 * i))
            lds_word(a, 10, 48, 236, 237)
        if cfg.e8:
            lane_min(a, 246, 12)
            slA.setdefault(6, []).append(lambda: tk.__setitem__('w', poll_issue(a, 246, 's88', 247)))
            slA[7].append(lambda: poll_wait(a, cfg, tk['w'], 246, 's88', 247))
        if cfg.p_at == 8: slA[8] = ([q_dma, p_dma] if cfg.qfirst else [p_dma, q_dma]) if not cfg.ungate else [p_dma, fpoll]
        elif cfg.p_at == 9: slA[8] = [q_dma]; slA[9] = [p_dma]
        else:
            slA[8] = [fpoll] if cfg.ungate else [q_dma]
            slA.setdefault(cfg.p_at, []).append(p_dma)
        if not cfg.ungate:
            if cfg.pollpre8: slA[8].insert(0, fpoll)
            else: slA[7].append(fpoll)
        if not (cfg.cclear or cfg.bclear or cfg.yflag):
            slA.setdefault(cfg.late, []).append(y_clear)
            slA[cfg.late + 2].insert(0, flag_after('yc', 's80'))
        if cfg.kvfirst:
            kv_loads(); slA[0] = []
        prA = {K + 2: [kv_part(0)], K + 3: [kv_part(2)], 5: [n_get, d_fin], 6 + K: [pads]}
        if cfg.early:
            kv_loads()
            prA = {1: [kv_part(0)], 2: [kv_part(2)], 4: [n_get, d_fin], 6: [pads]}
        assert K <= 1
        if cfg.cearly:
            assert cfg.p_at <= 6 and cfg.quiet and not cfg.ungate and not cfg.pqsplit
            slA[8] = []
            slA.setdefault(6, []).append(fpoll)
            prA[7] = [q_dma]
            for i in range(NSTAGE - 1): interval(i, slA, prA)
            a('s_setprio %d' % cfg.eprio)
            a.wait_vm(tk['q'])
            gen = conv_main(a, cfg, prof)
            for _ in range(cfg.cearly): next(gen)
            a.wait_vm(stage_tok[9])
            a('s_barrier')
            a('s_setprio %d' % cfg.vprio)
            for _ in gen: pass
            q_loads(); tail_issue(); tail_check()
            a('s_setprio 0')
            a('s_branch Lfetch')
            return
        for i in range(NSTAGE): interval(i, slA, prA)
        if cfg.ungate: q_dma()
        if not cfg.quiet:
            wdl_dma()
            q_loads()
            tail_issue()
        a('s_setprio %d' % cfg.vprio)
        if cfg.pqsplit:
            for i in range(cfg.pqsplit, 4): pq_piece(i)
            a.wait_vm(tk['pq0'])
        else: a.wait_vm(tk['q']); a.wait_vm(tk['p'])
        gen = conv_main(a, cfg, prof)
        if cfg.pqsplit:
            done_ = 0
            for p_, at in ((1, 4), (2, 20), (3, 44)):
                for _ in range(at - done_): next(gen)
                done_ = at
                a.wait_vm(tk['pq%d' % p_])
        if not cfg.quiet:
            for _ in range(cfg.pub_at): next(gen)
            wdl_publish()
        for _ in gen: pass
        if cfg.yflag:
            q_loads()
            a.emit('s_waitcnt vmcnt(5)')
            flag_store(a, 's80')
        else:
            if cfg.quiet:
                q_loads()
                tail_issue()
            tail_check()
        a('s_setprio 0')
        a('s_branch Lfetch')

    if not odd: type_a()

    a.vmq, a.hist = list(saved[0]), list(saved[2])
    stage_tok.clear(); stage_tok.update(saved[1])
    if spf: spf.next = saved[3]
    a.lgq = []
    if not odd: a.label('LtypeB')
    srd(a, 56, P_WD, SZ_W)
    srd(a, 68, P_GW, 1280)
    a('s_mul_i32 s78, s4, 12')
    a('s_add_u32 s78, s78, s5')
    a('s_sub_u32 s78, s78, 20')
    a('s_lshl_b32 s78, s78, 2')
    a('s_add_u32 s78, s78, s10')
    a('s_lshr_b32 s79, s78, 3')
    a('s_and_b32 s78, s78, 7')
    a('s_mul_i32 s89, s78, 48')
    a('s_add_u32 s89, s89, s79')
    a('s_lshl_b32 s89, s89, 2')
    a('s_add_u32 s89, s89, %d' % F_WD)
    a('s_mul_i32 s80, s79, 40960')
    a('s_mul_i32 s77, s78, 160')
    a('s_add_u32 s80, s80, s77')
    a('s_mul_i32 s81, s78, 245760')
    a('s_mul_i32 s77, s79, 5120')
    a('s_add_u32 s81, s81, s77')
    lane_min(a, 240, 12)
    def wd_loads():
        for i in range(5):
            a('v_add_u32 v9, %d, v1' % (64 * i))
            a('v_mul_u32_u24 v10, 6554, v9')
            a('v_lshrrev_b32 v10, 16, v10')
            a('v_mul_u32_u24 v11, 10, v10')
            a('v_sub_u32 v11, v9, v11')
            a('v_mul_u32_u24 v10, 1280, v10')
            a('v_lshl_add_u32 v10, v11, 4, v10')
            a('s_add_u32 m0, s82, %d' % (1024 * i))
            tk['wd'] = a.emit('buffer_load_dwordx4 v10, s[56:59], s80 offen lds')
    def wd_part():
        a('v_lshrrev_b32 v9, 5, v1')
        a('v_lshlrev_b32 v9, 4, v9')
        a('v_bfe_u32 v10, v1, 2, 3')
        a('v_add_u32 v9, v9, v10')
        a('v_mul_u32_u24 v9, 160, v9')
        a('v_and_b32 v10, 3, v1')
        a('v_lshl_add_u32 v9, v10, 3, v9')
        a('v_add_u32 v9, s82, v9')
        srd(a, 60, P_WS, SZ_WD, WS_WD)
        a('s_add_u32 s80, s81, 4096')
        a.wait_vm(tk['wd'])
        for dl in range(5):
            for t in range(2):
                a('ds_read_b64_tr_b16 v[%d:%d], v9 offset:%d' % (32 + 4 * dl + 2 * t, 33 + 4 * dl + 2 * t, t * 1280 + dl * 32))
        a.wait_all_lg()
        for dl in range(4):
            a('buffer_store_dwordx4 %s, v241, s[60:63], s81 offen offset:%d sc1' % (vr(32 + 4 * dl, 4), 1024 * dl))
        tk['wds'] = a.emit('buffer_store_dwordx4 %s, v241, s[60:63], s80 offen sc1' % vr(48, 4))
    GX, GW = 56, 104
    gtk = []
    def g_loads():
        srd(a, 56, P_GW, 1280)
        a('s_sub_u32 s76, s5, 20')
        a('s_lshl_b32 s76, s76, 2')
        a('s_add_u32 s76, s76, s10')
        a('s_cmp_ge_u32 s76, 32')
        a('s_cselect_b32 s86, 0x%x, 0' % FAR)
        a('s_and_b32 s77, s4, 1')
        a('s_lshl_b32 s77, s77, 2')
        a('s_lshr_b32 s78, s76, 3')
        a('s_add_u32 s77, s77, s78')
        a('s_and_b32 s76, s76, 7')
        a('s_lshl_b32 s78, s6, 9')
        a('s_lshl_b32 s79, s77, 3')
        a('s_add_u32 s78, s78, s79')
        a('s_add_u32 s78, s78, s76')
        a('s_mul_i32 s78, s78, 1280')
        a('s_or_b32 s78, s78, s86')
        a('v_lshrrev_b32 v9, 5, v1')
        a('v_and_b32 v10, 31, v1')
        a('v_lshlrev_b32 v11, 4, v10')
        a('s_mov_b32 s79, 81920')
        a('v_mul_lo_u32 v12, v9, s79')
        a('v_add_u32 v12, v12, v11')
        a('v_cmp_gt_u32 vcc, 16, v10')
        a('v_mov_b32 v15, 0x%x' % OOB)
        a('v_cndmask_b32 v13, v15, v12, vcc')
        for i in range(3):
            a('buffer_load_dwordx4 %s, v11, s[56:59], 0 offen offset:%d' % (vr(GW + 4 * i, 4), 512 * i))
        for p in range(4):
            a('buffer_load_dwordx4 %s, v12, s[44:47], s78 offen' % vr(GX + 12 * p, 4))
            a('buffer_load_dwordx4 %s, v12, s[44:47], s78 offen offset:512' % vr(GX + 12 * p + 4, 4))
            gtk.append(a.emit('buffer_load_dwordx4 %s, v13, s[44:47], s78 offen offset:1024' % vr(GX + 12 * p + 8, 4)))
            a('s_add_u32 s78, s78, 163840')
        a('s_lshl_b32 s78, s6, 3')
        a('s_add_u32 s78, s78, s77')
        a('s_lshl_b32 s78, s78, 3')
        a('s_add_u32 s78, s78, s76')
        a('s_lshl_b32 s80, s78, 6')
        a('s_or_b32 s80, s80, s86')
        a('v_lshlrev_b32 v14, 3, v9')
        a('v_cmp_eq_u32 vcc, 31, v10')
        a('v_cndmask_b32 v14, v15, v14, vcc')
    def g_compute():
        for p in range(4):
            a.wait_vm(gtk[p])
            a('v_mov_b32 v%d, 0' % (24 + p))
            for i in range(12):
                a('v_dot2_f32_bf16 v%d, v%d, v%d, v%d' % (24 + p, GX + 12 * p + i, GW + i, 24 + p))
        a('s_nop 2')
        for sh in (1, 2, 4, 8):
            for p in range(4):
                a('v_add_f32_dpp v%d, v%d, v%d row_shr:%d row_mask:0xf bank_mask:0xf bound_ctrl:0' % (24 + p, 24 + p, 24 + p, sh))
        for p in range(4):
            a('v_add_f32_dpp v%d, v%d, v%d row_bcast:15 row_mask:0xa bank_mask:0xf' % (24 + p, 24 + p, 24 + p))
        for p in range(4):
            r = 24 + p
            a('v_cvt_pk_bf16_f32 v%d, v%d, v%d' % (r, r, r))
            a('v_and_b32 v%d, 0xffff0000, v%d' % (r, r))
            a('v_mul_f32 v%d, 0xbfb8aa3b, v%d' % (r, r))
            a('v_exp_f32 v%d, v%d' % (r, r))
            a('v_add_f32 v%d, 1.0, v%d' % (r, r))
            a('v_rcp_f32 v%d, v%d' % (r, r))
            a('v_cvt_pk_bf16_f32 v%d, v%d, v%d' % (r, r, r))
            a('v_and_b32 v%d, 0xffff0000, v%d' % (29 + 2 * p, r))
            a('v_mov_b32 v%d, v%d' % (28 + 2 * p, VN))
            a('buffer_store_dwordx2 v[%d:%d], v14, s[52:55], s80 offen offset:%d sc1' % (28 + 2 * p, 29 + 2 * p, 16 * p))
    def b_clear():
        srd(a, 64, P_WS, SZ_Y2, WS_Y2)
        a('s_sub_u32 s76, s5, 20')
        a('s_lshl_b32 s76, s76, 2')
        a('s_add_u32 s76, s76, s10')
        a('s_lshl_b32 s77, s4, 6')
        a('s_add_u32 s87, s76, s77')
        a('s_lshl_b32 s87, s87, 2')
        a('s_add_u32 s87, s87, %d' % F_YC)
        a('s_mul_i32 s76, s76, 7')
        for i in range(4): a('v_mov_b32 v%d, -1' % (232 + i))
        for i in range(7):
            a('s_add_u32 s77, s76, %d' % i)
            a('s_cmp_ge_u32 s77, 320')
            a('s_cselect_b32 s78, 0x%x, 0' % FAR)
            a('s_lshl_b32 s77, s77, 10')
            a('s_mul_i32 s79, s4, 327680')
            a('s_add_u32 s77, s77, s79')
            a('s_or_b32 s77, s77, s78')
            tk['yc'] = a.emit('buffer_store_dwordx4 v[232:235], v241, s[64:67], s77 offen sc1')
    W = cfg.wd_at
    slB = {}
    for i, f in ((W, wd_loads), (W + 2, wd_part), (1, n_issue), (W + cfg.wdf_d, flag_after('wds', 's89')), (7, late_srds)):
        slB.setdefault(i, []).append(f)
    def wd_touch_issue():
        a('s_and_b32 s76, s4, 1')
        a('s_mul_i32 s79, s76, 768')
        a('s_add_u32 s79, s79, %d' % F_WD)
        a('v_lshlrev_b32 v16, 2, v1')
        a('v_add_u32 v17, 256, v16')
        a('v_add_u32 v18, 512, v16')
        tk['wt'] = [poll_issue(a, 16 + i, 's79', 19 + i) for i in range(3)]
    def wd_touch():
        for i in range(3): poll_wait(a, cfg, tk['wt'][i], 16 + i, 's79', 19 + i)
        a('s_sub_u32 s77, s5, 20')
        a('s_lshl_b32 s77, s77, 2')
        a('s_add_u32 s77, s77, s10')
        a('s_mul_i32 s77, s77, 20480')
        a('s_and_b32 s76, s4, 1')
        a('s_mul_i32 s76, s76, 983040')
        a('s_add_u32 s76, s76, s77')
        a('v_lshlrev_b32 v16, 7, v1')
        a('v_add_u32 v17, 8192, v16')
        a('v_add_u32 v18, 16384, v16')
        a('v_cmp_gt_u32 vcc, 32, v1')
        a('v_mov_b32 v19, 0x%x' % OOB)
        a('v_cndmask_b32 v18, v19, v18, vcc')
        for i in range(3):
            a('buffer_load_dword v252, v%d, s[48:51], s76 offen sc1' % (16 + i))
    fpollB = lambda: tk.__setitem__('f', poll_issue(a, 240, 's88', 243))
    fwaitB = lambda: (poll_wait(a, cfg, tk['f'], 240, 's88', 243), lds_word(a, 10, 48, 236, 237))
    if cfg.ungate: slB[8] = [fpollB]
    elif cfg.e8:
        slB.setdefault(6, []).append(fpollB); slB[7].append(fwaitB); slB[8] = [g_loads]
    elif cfg.pollpre8: slB[8] = [fpollB, g_loads, fwaitB]
    else: slB[7].append(fpollB); slB[8] = [g_loads, fwaitB]
    def ssm_touch():
        srd(a, 68, P_SSMK, SZ_X)
        a('s_sub_u32 s76, s5, 20')
        a('s_lshl_b32 s76, s76, 2')
        a('s_add_u32 s76, s76, s10')
        a('s_mul_i32 s76, s76, 6912')
        a('s_mul_i32 s77, s4, 327680')
        a('s_add_u32 s76, s76, s77')
        a('v_lshlrev_b32 v16, 7, v1')
        a('v_cmp_gt_u32 vcc, 54, v1')
        a('v_mov_b32 v17, 0x%x' % OOB)
        a('v_cndmask_b32 v16, v17, v16, vcc')
        a('buffer_load_dword v252, v16, s[68:71], s76 offen')
    if cfg.spre: slB.setdefault(cfg.spre, []).append(ssm_touch)
    if cfg.cotouch == 1:
        slB[7].append(wd_touch_issue); slB[8].insert(0, wd_touch)
    if cfg.cotouch >= 2:
        slB[8].insert(0, wd_touch_issue)
    if cfg.cotouch == 3:
        slB[8].remove(g_loads)
    if cfg.bclear:
        slB.setdefault(cfg.clr_at, []).append(b_clear)
        slB.setdefault(max(cfg.clr_at + 2, 3), []).append(flag_after('yc', 's87'))
    for i in range(NSTAGE): interval(i, slB, {3: [n_get]})
    if cfg.ungate:
        fwaitB(); g_loads()
    wdl_dma()
    if cfg.cotouch >= 2: wd_touch()
    if cfg.cotouch == 3: g_loads()
    g_compute()
    q_loads()
    if not cfg.yflag: tail_issue()
    a('s_setprio 0')
    wdl_publish()
    lds_word_wait(a, cfg, 10, 0, 236, 237, 'Ldummy') if False else None
    if not cfg.yflag: tail_check()
    if not odd:
        a('s_branch Lfetch')
        return
    a.pad()
    a.label('Lfetch')
    a.reset_queues()
    if cfg.coop:
        coop_fetch(a, cfg, prof)
        return
    a('s_mul_i32 s11, s85, 327680')
    a('s_lshr_b32 s12, s84, 3')
    a('s_lshl_b32 s12, s12, 10')
    a('s_add_u32 s11, s11, s12')
    a('s_and_b32 s12, s84, 7')
    a('s_lshl_b32 s12, s12, 7')
    a('s_add_u32 s11, s11, s12')
    a('s_lshl_b32 s12, s10, 5')
    a('s_add_u32 s11, s11, s12')
    a('v_lshrrev_b32 v24, 1, v1')
    a('v_lshlrev_b32 v24, 12, v24')
    a('v_and_b32 v25, 1, v1')
    a('v_lshl_add_u32 v24, v25, 4, v24')
    a('v_add_u32 v25, 0x20000, v24')
    a('v_add_u32 v26, 0x40000, v24')
    a('v_cmp_gt_u32 vcc, 32, v1')
    a('v_mov_b32 v27, 0x%x' % OOB)
    a('v_cndmask_b32 v26, v27, v26, vcc')
    a('v_lshlrev_b32 v28, 2, v1')
    a('s_add_u32 s12, s83, 3072')
    a('v_add_u32 v28, s12, v28')
    a('v_add_u32 v29, s83, v241')
    a('v_lshlrev_b32 v30, 3, v1')
    a('v_add_u32 v30, s83, v30')
    a('v_add_u32 v31, s82, v241')
    a('s_lshl_b32 s96, s84, 6')
    a('s_lshl_b32 s97, s10, 4')
    a('s_add_u32 s96, s96, s97')
    a('v_and_b32 v33, 15, v1')
    a('v_add_u32 v33, s96, v33')
    a('v_lshlrev_b32 v33, 3, v33')
    lds_word_wait(a, cfg, 10, 64, 236, 237, 'Lgate2', sleep=cfg.gsleep)
    if cfg.yflag:
        tail_issue(); tail_check()
    prof.stamp(6)
    YV = 40
    lo, ok = newlabel('Ly'), newlabel('Ly_ok')
    a('s_mov_b32 s94, %d' % cfg.spin)
    a.label(lo)
    for i in range(3):
        a('buffer_load_dwordx4 %s, v%d, s[64:67], s11 offen sc1' % (vr(YV + 4 * i, 4), 24 + i))
    a('buffer_load_dwordx2 v[34:35], v33, s[52:55], 0 offen sc1')
    a.wait_all_vm()
    a('v_max3_u32 v27, v%d, v%d, v%d' % (YV, YV + 1, YV + 2))
    for i in range(3, 11, 2):
        a('v_max3_u32 v27, v27, v%d, v%d' % (YV + i, YV + i + 1))
    a('v_max_u32 v27, v27, v%d' % (YV + 11))
    a('v_cmp_eq_u32 vcc, -1, v27')
    a('v_cmp_ne_u32 s[96:97], s%d, v34' % NONCE)
    a('s_or_b64 vcc, vcc, s[96:97]')
    a('s_cbranch_scc0 %s' % ok)
    a('s_sleep %d' % cfg.ysleep)
    a('s_sub_u32 s94, s94, 1')
    a('s_cmp_lg_u32 s94, 0')
    a('s_cbranch_scc1 %s' % lo)
    a.label(ok)
    prof.stamp(7)
    a('v_mov_b32 v%d, v35' % GV)
    a('ds_write_b128 v29, %s' % vr(YV, 4))
    a('ds_write_b128 v29, %s offset:1024' % vr(YV + 4, 4))
    a('ds_write_b128 v29, %s offset:2048' % vr(YV + 8, 4))
    a('v_sub_f32 v32, 1.0, v%d' % GV)
    a('v_cvt_pk_bf16_f32 v32, v32, v32')
    a('v_and_b32 v32, 0xffff0000, v32')
    a('ds_write_b32 v28, v32')
    for dl in range(5):
        x = 72 + 4 * dl
        unpack_lo(a, x, QV + 2 * dl); unpack_hi(a, x + 1, QV + 2 * dl); unpack_lo(a, x + 2, QV + 2 * dl + 1); unpack_hi(a, x + 3, QV + 2 * dl + 1)
        for i in range(4): a('v_mul_f32 v%d, v%d, v%d' % (x + i, GV, x + i))
    a.wait_all_lg()
    tl = [a.emit('ds_read_b64_tr_b16 %s, v30 offset:%d' % (vr(56 + 2 * dl, 2), dl * 512)) for dl in range(5)]
    for dl in range(5):
        a.wait_lg(tl[dl])
        x = 72 + 4 * dl; y = 96
        unpack_lo(a, y, 56 + 2 * dl); unpack_hi(a, y + 1, 56 + 2 * dl); unpack_lo(a, y + 2, 57 + 2 * dl); unpack_hi(a, y + 3, 57 + 2 * dl)
        for i in range(4): a('v_mul_f32 v%d, v%d, v%d' % (x + i, x + i, y + i))
        a('ds_write_b128 v31, %s offset:%d' % (vr(x, 4), dl * 1024))
    a.wait_all_lg()
    a('s_barrier')
    prof.stamp(8)
    prof.flush(243)

def coop_fetch(a, cfg, prof):
    a('s_mul_i32 s11, s85, 327680')
    a('s_mul_i32 s12, s10, 81920')
    a('s_add_u32 s11, s11, s12')
    a('s_lshr_b32 s12, s84, 3')
    a('s_lshl_b32 s12, s12, 10')
    a('s_add_u32 s11, s11, s12')
    a('s_and_b32 s12, s84, 7')
    a('s_lshl_b32 s12, s12, 7')
    a('s_add_u32 s11, s11, s12')
    a('v_lshrrev_b32 v24, 3, v1')
    a('v_lshlrev_b32 v24, 12, v24')
    a('v_and_b32 v25, 7, v1')
    a('v_lshl_add_u32 v24, v25, 4, v24')
    a('v_add_u32 v25, 0x8000, v24')
    a('v_add_u32 v26, 0x10000, v24')
    a('v_cmp_gt_u32 vcc, 32, v1')
    a('v_mov_b32 v27, 0x%x' % OOB)
    a('v_cndmask_b32 v26, v27, v26, vcc')
    a('v_lshlrev_b32 v28, 2, v1')
    a('s_add_u32 s12, s83, 3072')
    a('v_add_u32 v28, s12, v28')
    a('v_add_u32 v29, s82, v241')
    a('v_lshlrev_b32 v31, 3, v1')
    a('s_add_u32 s12, s82, 2560')
    a('v_add_u32 v31, s12, v31')
    a('v_and_b32 v30, 15, v1')
    a('v_mul_u32_u24 v30, 160, v30')
    a('v_lshrrev_b32 v32, 4, v1')
    a('v_lshl_add_u32 v30, v32, 3, v30')
    a('v_add_u32 v30, s83, v30')
    a('v_and_b32 v32, 3, v1')
    a('v_lshlrev_b32 v32, 3, v32')
    a('s_lshl_b32 s12, s10, 5')
    a('s_add_u32 s12, s12, %d' % PA)
    a('v_add_u32 v32, s12, v32')
    for dl in range(5):
        a('v_lshrrev_b32 v36, 2, v1')
        a('v_add_u32 v36, %d, v36' % (16 * dl))
        a('v_mul_u32_u24 v37, 3277, v36')
        a('v_lshrrev_b32 v37, 16, v37')
        a('v_mul_u32_u24 v37, 2560, v37')
        a('v_lshl_add_u32 v36, v36, 7, v37')
        a('v_add_u32 v%d, v36, v32' % (2 + dl))
    a('s_lshl_b32 s96, s84, 6')
    a('s_lshl_b32 s97, s10, 4')
    a('s_add_u32 s96, s96, s97')
    a('v_and_b32 v33, 15, v1')
    a('v_add_u32 v33, s96, v33')
    a('v_lshlrev_b32 v33, 3, v33')
    lds_word_wait(a, cfg, 10, 64, 236, 237, 'Lgate2', sleep=cfg.gsleep)
    prof.stamp(6)
    YV = 40
    lo, ok = newlabel('Ly'), newlabel('Ly_ok')
    a('s_mov_b32 s94, %d' % cfg.spin)
    a.label(lo)
    for i in range(3):
        a('buffer_load_dwordx4 %s, v%d, s[64:67], s11 offen sc1' % (vr(YV + 4 * i, 4), 24 + i))
    a('buffer_load_dwordx2 v[34:35], v33, s[52:55], 0 offen sc1')
    a.wait_all_vm()
    a('v_max3_u32 v27, v%d, v%d, v%d' % (YV, YV + 1, YV + 2))
    for i in range(3, 11, 2):
        a('v_max3_u32 v27, v27, v%d, v%d' % (YV + i, YV + i + 1))
    a('v_max_u32 v27, v27, v%d' % (YV + 11))
    a('v_cmp_eq_u32 vcc, -1, v27')
    a('v_cmp_ne_u32 s[96:97], s%d, v34' % NONCE)
    a('s_or_b64 vcc, vcc, s[96:97]')
    a('s_cbranch_scc0 %s' % ok)
    a('s_sleep %d' % cfg.ysleep)
    a('s_sub_u32 s94, s94, 1')
    a('s_cmp_lg_u32 s94, 0')
    a('s_cbranch_scc1 %s' % lo)
    a.label(ok)
    prof.stamp(7)
    a('ds_write_b128 v29, %s' % vr(YV, 4))
    a('ds_write_b128 v29, %s offset:1024' % vr(YV + 4, 4))
    a('v_cmp_gt_u32 vcc, 32, v1')
    a('s_and_saveexec_b64 s[96:97], vcc')
    a('ds_write_b128 v29, %s offset:2048' % vr(YV + 8, 4))
    a('s_mov_b64 exec, s[96:97]')
    tq = [a.emit('ds_read_b64 %s, v30 offset:%d' % (vr(56 + 2 * dl, 2), dl * 32)) for dl in range(5)]
    a('v_sub_f32 v36, 1.0, v35')
    a('v_cvt_pk_bf16_f32 v36, v36, v36')
    a('v_and_b32 v36, 0xffff0000, v36')
    a('ds_write_b32 v28, v36')
    a('v_mov_b32 v37, %d' % (CNT + 4))
    a('v_mov_b32 v38, 1')
    a.wait_all_lg()
    a('v_cmp_eq_u32 vcc, 0, v1')
    a('s_and_saveexec_b64 s[96:97], vcc')
    a('ds_add_u32 v37, v38')
    a('s_mov_b64 exec, s[96:97]')
    for dl in range(5):
        x = 72 + 4 * dl
        unpack_lo(a, x, 56 + 2 * dl); unpack_hi(a, x + 1, 56 + 2 * dl); unpack_lo(a, x + 2, 57 + 2 * dl); unpack_hi(a, x + 3, 57 + 2 * dl)
        for i in range(4): a('v_mul_f32 v%d, v35, v%d' % (x + i, x + i))
    lds_spin(a, cfg, 37, 38, 12, 'ge', 4, 'Llsync')
    tl = [a.emit('ds_read_b64_tr_b16 %s, v%d' % (vr(56 + 2 * dl, 2), 2 + dl)) for dl in range(5)]
    for dl in range(5):
        a.wait_lg(tl[dl])
        x = 72 + 4 * dl; y = 96
        unpack_lo(a, y, 56 + 2 * dl); unpack_hi(a, y + 1, 56 + 2 * dl); unpack_lo(a, y + 2, 57 + 2 * dl); unpack_hi(a, y + 3, 57 + 2 * dl)
        for i in range(4): a('v_mul_f32 v%d, v%d, v%d' % (x + i, x + i, y + i))
        a('v_cvt_pk_bf16_f32 v%d, v%d, v%d' % (x, x, x + 1))
        a('v_cvt_pk_bf16_f32 v%d, v%d, v%d' % (x + 1, x + 2, x + 3))
        a('ds_write_b64 v31, %s offset:%d' % (vr(x, 2), dl * 512))
    a.wait_all_lg()
    a('s_barrier')
    prof.stamp(8)
    prof.flush(243)

def generate(cfg):
    if cfg.yflag: cfg.bclear = 0; cfg.cclear = 0
    LOCAL[0] = cfg.local
    a = Asm()
    a.raw('.amdgcn_target "amdgcn-amd-amdhsa--gfx950"')
    a.raw('.text')
    kn = NAME + '_kernel'
    kernel_header(a, kn)
    prof = Prof(a, cfg, 0)
    prof.start()
    a('s_cmp_ge_u32 s2, 256')
    a('s_cbranch_scc1 Ldone')
    a('s_load_dwordx2 s[44:45], s[0:1], 0')
    a('s_load_dwordx2 s[48:49], s[0:1], 56')
    a('s_load_dwordx2 s[52:53], s[0:1], 64')
    a('s_load_dwordx8 s[16:23], s[0:1], 0')
    a('s_load_dwordx4 s[24:27], s[0:1], 32')
    a('s_load_dwordx8 s[32:39], s[0:1], 64')
    a('s_load_dwordx4 s[40:43], s[0:1], 96')
    def code_prefetch(nw, n):
        a('s_getpc_b64 s[60:61]')
        a.label('Lpc')
        a('s_sub_u32 s60, s60, (Lpc - %s)' % kn)
        a('s_subb_u32 s61, s61, 0')
        a('s_mov_b32 s62, CODE_END - %s' % kn)
        a('s_mov_b32 s63, 0x00020000')
        a('v_lshrrev_b32 v253, 6, v0')
        a('s_lshr_b32 s59, s2, 3')
        a('s_mul_i32 s59, s59, %d' % nw)
        a('v_add_u32 v253, s59, v253')
        a('v_mul_u32_u24 v253, %d, v253' % n)
        a('v_and_b32 v254, 63, v0')
        a('v_add_u32 v253, v253, v254')
        a('v_lshlrev_b32 v253, 7, v253')
        a('v_cmp_gt_u32 vcc, %d, v254' % n)
        a('v_mov_b32 v254, 0x%x' % OOB)
        a('v_cndmask_b32 v253, v254, v253, vcc')
        a('buffer_load_dword v254, v253, s[60:63], 0 offen')
        a.vmq.pop()
    if cfg.cpf and not cfg.cpfc: code_prefetch(8, cfg.cpf)
    a('v_lshrrev_b32 v2, 6, v0')
    a('v_and_b32 v1, 63, v0')
    a('v_readfirstlane_b32 s3, v2')
    a('s_and_b32 s4, s2, 7')
    a('s_lshr_b32 s5, s2, 3')
    a('s_lshr_b32 s6, s4, 1')
    a('s_mul_i32 s9, s5, 13108')
    a('s_lshr_b32 s9, s9, 16')
    a('s_mul_i32 s7, s9, 5')
    a('s_sub_u32 s7, s5, s7')
    a('s_and_b32 s8, s4, 1')
    a('s_mul_i32 s10, s8, 5')
    a('s_add_u32 s7, s7, s10')
    a('s_lshl_b32 s10, s8, 1')
    a('s_mul_i32 s8, s6, 6')
    a('s_add_u32 s8, s8, s9')
    a('s_lshl_b32 s11, s6, 2')
    a('s_add_u32 s10, s10, s11')
    a('s_add_u32 s10, s10, s5')
    a('s_sub_u32 s10, s10, 30')
    a('s_cmp_ge_u32 s5, 30')
    a('s_cselect_b32 s8, s10, s8')
    a('s_cselect_b32 s7, 15, s7')
    a('s_cmp_lt_u32 s3, 4')
    a('s_cbranch_scc1 Lcwave')
    h0 = list(a.hist)
    l_wave(a, cfg, prof)
    a.label('Ldone')
    a('s_endpgm')
    a.hist = h0; a.reset_queues()
    a.label('Lcwave')
    if cfg.cpf and cfg.cpfc: code_prefetch(4, 3)
    c_wave(a, cfg, prof)
    a.raw('CODE_END:')
    hdr = open('cdna_kernels/%s.s.ref' % NAME).read().split('; Override launch')[0]
    hdr += """; Generated by my own generator script (dev/gen11.py). One fused launch, 256 workgroups x 8 waves, one per CU.
"""
    hdr += '; @launch grid=(256,1,1) block=(512,1,1) lds=%d\n' % LDS
    return hdr + a.text() + kernel_desc(kn, 256).replace('.end_amdhsa_kernel', '  .amdhsa_float_denorm_mode_32 3\n.end_amdhsa_kernel')

if __name__ == '__main__':
    cfg = Cfg()
    out = sys.argv[1]
    for kv in sys.argv[2:]:
        k, v = kv.split('=')
        assert hasattr(cfg, k), k
        setattr(cfg, k, int(v))
    open(out, 'w').write(generate(cfg))
```

```python
import sys
from asmlib import *
from gen2 import (NAME, WS_H, SZ_H, WS_WD, SZ_WD, WS_UT, SZ_UT, WS_Y2, SZ_Y2, WS_G, SZ_G, WS_PROF, SZ_X, SZ_W, OOB,
                  P_Q, P_K, P_V, P_SHK, P_SSMK, P_SSMD, P_BX, P_WG, P_WU, P_WD, P_GW, P_OUT, P_DBG, P_WS,
                  load_kernargs, srd, Prof, kernel_header, kernel_desc, unpack_lo, unpack_hi, P2, u32)
import gen8
from gen8 import (newlabel, row_off, conv_setup, conv_main, FAR, QV, GV, SF, NONCE, VZ, VN, flag_store, poll_issue, poll_wait,
                  lane_min, lds_spin)

SZ_G = 16384
WS_F = WS_G + SZ_G
F_UT, F_H, F_WD, F_G, F_YC = 0, 2560, 14848, 16384, 17408
SZ_F = 19968

class Cfg:
    prof = 0
    lstamp = 1
    spin = 200000
    g1prio = 0
    cprio = 2
    lprio = 2
    vprio = 1
    ysleep = 8
    hsleep = 2
    nb = 4
    pub_at = 24
    local = 1
    dstore = 0
    ygate = 2
    late = 5
    kvfirst = 0
    rot2 = 0
    ungate = 0
    na = 4
    clr_at = 0
    gsleep = 6
    gtouch = 0
    gdelay = 0
    eprio = 0
    cearly = 0
    p_at = 8
    qfirst = 0
    ocoal = 1
    oflag = 1
    spre = 0
    pqsplit = 0
    coop = 1
    cpfc = 1
    e8 = 0
    e8ks = 2
    loop1 = 0
    cpf = 2
    pre_ack = 2
    ptouch = 0
    utf_at = 5
    wdf_d = 3
    fsleep = 4
    pollpre8 = 1
    alt = 0
    yflag = 0
    grp = 0
    spf = 0
    spfx = 8
    cotouch = 0
    pollat = 99
    quiet = 1
    fin = 1
    areg = 4
    nine = 0
    early = 0
    bclear = 1
    xrot = 1
    kv_at = 0
    wd_at = 1
    cclear = 0
    drop = 0
    lsteps = 0
    c0 = 1

SLOT = 41088
OFF_GATE, OFF_UP = 16384, 16384 + 12320
NSTAGE, NSLOT = 10, 3
PA = NSLOT * SLOT
QA = PA + 4 * 5120
QSZ = 4224
CNT = QA + 4 * QSZ
LDS = CNT + 128
def wblk(i): return [SLOT, SLOT + 5120, 2 * SLOT, 2 * SLOT + 5120, 0, 5120][i]

def wave_common(a):
    srd(a, SF, P_WS, SZ_F, WS_F)
    a('v_cmp_eq_u32 vcc, 0, v1')
    a('v_mov_b32 v%d, 0x%x' % (VZ, OOB))
    a('v_cndmask_b32 v%d, v%d, 0, vcc' % (VZ, VZ))

LOCAL = [0]
def g2_scalars(a, st, dt):
    if not LOCAL[0]: return gen8.g2_scalars(a, st, dt)
    a('s_lshl_b32 s%d, s4, 2' % st)
    a('s_and_b32 s%d, s5, 3' % dt)
    a('s_add_u32 s%d, s%d, s%d' % (st, st, dt))
    a('s_lshr_b32 s%d, s5, 2' % dt)

def rot_off(a, cfg, d):
    if cfg.rot2 == 1:
        a('s_and_b32 s%d, s85, 3' % d)
        a('s_mul_i32 s%d, s%d, 6' % (d, d))
        a('s_and_b32 s96, s84, 7')
        a('s_mul_i32 s96, s96, 3')
        a('s_add_u32 s%d, s%d, s96' % (d, d))
        a('s_lshr_b32 s%d, s%d, 1' % (d, d))
    elif cfg.rot2 == 4:
        a('s_mul_i32 s%d, s85, 3' % d)
        a('s_lshr_b32 s%d, s%d, 1' % (d, d))
    elif cfg.rot2 == 5:
        a('s_mul_i32 s%d, s85, 3' % d)
        a('s_and_b32 s96, s84, 3')
        a('s_mul_i32 s96, s96, 6')
        a('s_add_u32 s%d, s%d, s96' % (d, d))
        a('s_lshr_b32 s%d, s%d, 1' % (d, d))
    elif cfg.rot2 == 3:
        a('s_and_b32 s%d, s84, 7' % d)
        a('s_mul_i32 s%d, s%d, 3' % (d, d))
        a('s_lshr_b32 s%d, s%d, 1' % (d, d))
    else:
        a('s_and_b32 s%d, s85, 3' % d)
        a('s_mul_i32 s%d, s%d, 3' % (d, d))
    a('s_cmp_ge_u32 s%d, 12' % d)
    a('s_cselect_b32 s96, 12, 0')
    a('s_sub_u32 s%d, s%d, s96' % (d, d))
def kap(a, d, off, k):
    a('s_add_u32 s%d, s%d, %d' % (d, off, k))
    a('s_cmp_ge_u32 s%d, 12' % d)
    a('s_cselect_b32 s96, 12, 0')
    a('s_sub_u32 s%d, s%d, s96' % (d, d))

def lds_word(a, sw, off, t0, t1):
    a('s_lshl_b32 s96, s%d, 2' % sw)
    a('s_add_u32 s96, s96, %d' % (CNT + off))
    a('v_mov_b32 v%d, s96' % t0)
    a('v_mov_b32 v%d, 1' % t1)
    a('ds_write_b32 v%d, v%d' % (t0, t1))
def lds_word_wait(a, cfg, sw, off, t0, t1, name, sleep=1):
    a('s_lshl_b32 s96, s%d, 2' % sw)
    a('s_add_u32 s96, s96, %d' % (CNT + off))
    a('v_mov_b32 v%d, s96' % t0)
    lds_spin(a, cfg, t0, t1, 96, 'eq', 1, name, sleep)

def c_setup_odd(a):
    a('s_and_b32 s10, s3, 1')
    a('s_lshr_b32 s11, s3, 1')
    a('v_and_b32 v2, 31, v1')
    a('v_lshrrev_b32 v3, 5, v1')
    a('v_lshrrev_b32 v9, 1, v2')
    a('v_and_b32 v9, 7, v9')
    a('v_xor_b32 v9, v9, v3')
    a('v_lshlrev_b32 v9, 4, v9')
    a('v_lshl_add_u32 v9, v2, 7, v9')
    a('s_lshl_b32 s12, s11, 13')
    a('v_add_u32 v4, s12, v9')
    a('v_xor_b32 v5, 32, v4')
    a('v_xor_b32 v6, 64, v4')
    a('v_xor_b32 v7, 96, v4')
    a('v_bfe_u32 v9, v1, 4, 1')
    a('v_mul_u32_u24 v8, 12320, v9')
    a('v_bfe_u32 v9, v1, 2, 2')
    a('v_lshl_add_u32 v9, v3, 3, v9')
    a('v_mul_u32_u24 v9, 192, v9')
    a('v_add_u32 v8, v8, v9')
    a('v_and_b32 v9, 3, v1')
    a('v_lshl_add_u32 v8, v9, 3, v8')
    a('s_mul_i32 s12, s10, 96')
    a('s_add_u32 s12, s12, %d' % OFF_GATE)
    a('v_add_u32 v8, s12, v8')
    a('v_lshrrev_b32 v9, 4, v2')
    a('v_lshlrev_b32 v10, 10, v9')
    a('v_lshl_add_u32 v10, v3, 8, v10')
    a('v_and_b32 v9, 15, v2')
    a('v_lshl_add_u32 v10, v9, 4, v10')
    a('s_lshl_b32 s12, s7, 1')
    a('s_add_u32 s12, s12, s11')
    a('s_mul_i32 s13, s8, 6')
    a('s_mul_i32 s14, s10, 3')
    a('s_add_u32 s13, s13, s14')
    a('s_mul_i32 s79, s12, 96')
    a('s_add_u32 s79, s79, s13')
    a('s_lshl_b32 s79, s79, 2')
    a('s_add_u32 s79, s79, %d' % F_H)
    a('s_mul_i32 s12, s12, 196608')
    for tt in range(3):
        a('s_add_u32 s14, s13, %d' % tt)
        a('s_lshr_b32 s15, s14, 1')
        a('s_lshl_b32 s15, s15, 12')
        a('s_and_b32 s14, s14, 1')
        a('s_lshl_b32 s14, s14, 9')
        a('s_add_u32 s14, s14, s15')
        a('s_add_u32 s%d, s14, s12' % (76 + tt))
    a('v_lshlrev_b32 v249, 2, v1')
    a('v_add_u32 v249, s79, v249')
    a('v_cmp_gt_u32 vcc, 3, v1')
    a('v_mov_b32 v9, 0x%x' % OOB)
    a('v_cndmask_b32 v249, v9, v249, vcc')

def c_setup_main(a):
    a('s_and_b32 s10, s3, 1')
    a('s_lshr_b32 s11, s3, 1')
    a('v_and_b32 v2, 31, v1')
    a('v_lshrrev_b32 v3, 5, v1')
    a('v_lshrrev_b32 v9, 1, v2')
    a('v_and_b32 v9, 7, v9')
    a('v_xor_b32 v9, v9, v3')
    a('v_lshlrev_b32 v9, 4, v9')
    a('v_lshl_add_u32 v9, v2, 7, v9')
    a('s_mul_i32 s12, s11, 12288')
    a('v_add_u32 v4, s12, v9')
    a('v_xor_b32 v5, 32, v4')
    a('v_xor_b32 v6, 64, v4')
    a('v_xor_b32 v7, 96, v4')
    a('v_bfe_u32 v9, v1, 4, 1')
    a('v_bfe_u32 v11, v1, 2, 2')
    a('v_lshl_add_u32 v8, v3, 3, v11')
    a('v_lshlrev_b32 v8, 7, v8')
    a('v_lshl_add_u32 v8, v9, 13, v8')
    a('v_xor_b32 v9, s10, v9')
    a('v_lshl_add_u32 v8, v9, 6, v8')
    a('v_lshrrev_b32 v11, 1, v11')
    a('v_lshl_add_u32 v8, v11, 5, v8')
    a('v_and_b32 v9, 3, v1')
    a('v_lshl_add_u32 v8, v9, 3, v8')
    a('v_add_u32 v8, 24576, v8')
    a('v_xor_b32 v11, 32, v8')
    a('v_lshrrev_b32 v9, 4, v2')
    a('v_lshlrev_b32 v10, 10, v9')
    a('v_lshl_add_u32 v10, v3, 8, v10')
    a('v_and_b32 v9, 15, v2')
    a('v_lshl_add_u32 v10, v9, 4, v10')
    a('s_lshl_b32 s13, s8, 1')
    a('s_add_u32 s13, s13, s10')
    a('v_mov_b32 v249, 0x%x' % OOB)
    for b in range(3):
        a('s_mul_i32 s12, s11, 3')
        a('s_add_u32 s12, s12, %d' % b)
        a('s_and_b32 s14, s12, 1')
        a('s_lshr_b32 s12, s12, 1')
        a('s_mul_i32 s15, s7, 3')
        a('s_add_u32 s12, s12, s15')
        a('s_mul_i32 s15, s12, 96')
        a('s_add_u32 s15, s15, s14')
        a('s_lshl_b32 s79, s13, 1')
        a('s_add_u32 s15, s15, s79')
        a('s_lshl_b32 s15, s15, 2')
        a('s_add_u32 s15, s15, %d' % F_H)
        a('v_writelane_b32 v249, s15, %d' % b)
        a('s_mul_i32 s12, s12, 196608')
        a('s_lshl_b32 s14, s14, 11')
        a('s_add_u32 s12, s12, s14')
        a('s_lshl_b32 s14, s13, 12')
        a('s_add_u32 s%d, s12, s14' % (76 + b))

def c_gemm1(a, cfg, prof, odd):
    ACC = 64
    FB = [16, 40]
    if odd:
        NT_, NBT = 3, 2
        def reads(buf, ks):
            f = FB[buf]
            A = lambda tt: ['ds_read_b64_tr_b16 v[%d:%d], v8 offset:%d' % (f + 4 * tt + 2 * t, f + 4 * tt + 2 * t + 1, ks * 3072 + t * 768 + tt * 32) for t in range(2)]
            B = lambda b: ['ds_read_b128 v[%d:%d], v%d offset:%d' % (f + 12 + 4 * b, f + 15 + 4 * b, 4 + ks, b * 4096)]
            return A(0) + B(0) + B(1) + A(1) + A(2)
        order = [(0, 0, 2), (0, 1, 3), (1, 0, 5), (1, 1, 5), (2, 0, 7), (2, 1, 7)]
        s3_, sn = {1: 3, 2: 2, 3: 2, 4: 1}, {0: 2, 1: 2, 2: 2, 3: 2}
        addr = (4, 5, 6, 7, 8)
        store = lambda tt, b: (76 + tt, b * 2048)
    else:
        NT_, NBT = 2, 3
        def reads(buf, ks):
            f = FB[buf]
            A = lambda tt: ['ds_read_b64_tr_b16 v[%d:%d], v%d offset:%d' % (f + 4 * tt + 2 * t, f + 4 * tt + 2 * t + 1, (8, 11)[tt], ks * 2048 + t * 512) for t in range(2)]
            B = lambda b: ['ds_read_b128 v[%d:%d], v%d offset:%d' % (f + 8 + 4 * b, f + 11 + 4 * b, 4 + ks, b * 4096)]
            return A(0) + B(0) + B(1) + B(2) + A(1)
        order = [(0, 0, 2), (0, 1, 3), (0, 2, 4), (1, 0, 6), (1, 1, 6), (1, 2, 6)]
        s3_, sn = {1: 3, 2: 2, 3: 2}, {0: 2, 1: 2, 2: 2, 3: 1}
        addr = (4, 5, 6, 7, 8, 11)
        store = lambda tt, b: (76 + b, tt * 512)
    def acc(tt, b): return ACC + (tt * NBT + b) * 16
    if cfg.loop1:
        assert not (cfg.nine or cfg.cclear)
        for r in range(ACC, ACC + 96): a('v_mov_b32 v%d, 0' % r)
        a('s_mov_b32 s64, 0')
        a('s_mov_b32 s65, 9')
    a('s_setprio %d' % cfg.g1prio)
    if cfg.gtouch and cfg.gdelay == 1: a('buffer_load_dword v252, v253, s[60:63], s65 offen'); a.vmq.pop()
    a('s_barrier')
    if cfg.gtouch and cfg.gdelay == 2: a('buffer_load_dword v252, v253, s[60:63], s65 offen'); a.vmq.pop()
    prof.stamp(1); prof.cyc(5)
    toks = [a.emit(r) for r in reads(0, 0)]
    cur = 0
    lname = newlabel('Lg1')
    for st in ((0, 9) if cfg.loop1 else range(NSTAGE)):
        if cfg.loop1 and st == 0: a.label(lname)
        if cfg.loop1 and st == 9: a('s_setprio %d' % cfg.cprio)
        for ks in range(4):
            last = (st == NSTAGE - 1 and ks == 3)
            nxt = None if last else reads(1 - cur, (ks + 1) % 4)
            ntoks = []
            f = FB[cur]
            for mi, (tt, b, need_i) in enumerate(order):
                a.wait_lg(toks[need_i])
                c = '0' if (st == 0 and ks == 0 and not cfg.loop1) else vr(acc(tt, b), 16)
                a('v_mfma_f32_32x32x16_bf16 %s, %s, %s, %s' % (vr(acc(tt, b), 16), vr(f + 4 * tt, 4), vr(f + 4 * NT_ + 4 * b, 4), c))
                if nxt is not None:
                    if ks == 3:
                        if mi == 0:
                            skip = cfg.nine and st == NSTAGE - 2
                            if not skip: a.wait_all_lg()
                            if cfg.loop1:
                                for r in addr: a('v_add_u32 v%d, s66, v%d' % (r, r))
                            else:
                                d = SLOT if (st + 1) % NSLOT else -(NSLOT - 1) * SLOT
                                for r in addr:
                                    a('v_add_u32 v%d, 0x%x, v%d' % (r, u32(d), r))
                            if not skip: a('s_barrier')
                            if st == NSTAGE - 2: a('s_setprio %d' % cfg.cprio)
                        sched = s3_
                    else:
                        sched = sn
                    for _ in range(sched.get(mi, 0)):
                        ntoks.append(a.emit(nxt[len(ntoks)]))
                if cfg.loop1 and st == 0 and (ks, mi) == (1, 5):
                    a('s_add_u32 s64, s64, 1')
                    a('s_cmp_eq_u32 s64, 3')
                    a('s_cselect_b32 s64, 0, s64')
                    a('s_cselect_b32 s66, %d, 0' % (3 * SLOT))
                    a('s_sub_u32 s66, %d, s66' % SLOT)
                if st >= 8 and cfg.areg:
                    n = ks * 6 + mi - 1 if not cfg.e8 else (st - 8) * 24 + (ks - cfg.e8ks) * 6 + mi
                    if not cfg.e8 and st == 8: n = -1
                    if 0 <= n < 5 * cfg.areg:
                        k, dl = n // 5, n % 5
                        if dl == 0:
                            if cfg.rot2:
                                a('s_mul_i32 s14, s%d, 5120' % (16 + k))
                                a('s_add_u32 s14, s14, s86')
                            else: a('s_add_u32 s14, s86, %d' % (5120 * k))
                        b_ = 160 + k * 20 + 4 * dl
                        if dl < 4: a('buffer_load_dwordx4 %s, v240, s[48:51], s14 offen offset:%d sc1' % (vr(b_, 4), 1024 * dl))
                        else: a('buffer_load_dwordx4 %s, v241, s[48:51], s14 offen sc1' % vr(b_, 4))
                    elif cfg.e8 and 0 <= n - 5 * cfg.areg < 5 * cfg.e8:
                        i, dl = (n - 5 * cfg.areg) // 5, (n - 5 * cfg.areg) % 5
                        assert i < 2 or st == 9
                        if dl == 0:
                            a('s_add_u32 s14, s86, %d' % (5120 * (8 + i)))
                            a('s_add_u32 m0, s88, %d' % wblk(i))
                        if dl < 4: a('buffer_load_dwordx4 v240, s[48:51], s14 offen offset:%d sc1 lds' % (1024 * dl))
                        else:
                            a('s_add_u32 m0, s88, %d' % (wblk(i) + 4096))
                            a('buffer_load_dwordx4 v241, s[48:51], s14 offen sc1 lds')
                if (st, ks, mi) == ((9, 0, 5) if cfg.loop1 else (6, 1, 5)):
                    a('v_mov_b32 v9, %d' % (CNT + 32))
                    a('ds_read_b32 v%d, v9' % VN)
                if (st, ks, mi) == (7, 0, 5) and cfg.cclear and not odd:
                    a.emit('s_waitcnt vmcnt(0)')
                    flag_store(a, 's80')
            toks = ntoks
            cur = 1 - cur
        if cfg.loop1 and st == 0:
            a('s_sub_u32 s65, s65, 1')
            a('s_cmp_lg_u32 s65, 0')
            a('s_cbranch_scc1 %s' % lname)
    prof.stamp(2); prof.cyc(6)
    for tt in range(NT_):
        for b in range(NBT):
            x = acc(tt, b)
            o = 16 + (tt * NBT + b) * 4
            for p in range(8):
                a('v_mul_f32 v%d, v%d, v%d' % (x + p, x + p, x + 8 + p))
            for p in range(4):
                a('v_cvt_pk_bf16_f32 v%d, v%d, v%d' % (o + p, x + 2 * p, x + 2 * p + 1))
            a('buffer_store_dwordx4 %s, v10, s[44:47], s%d offen offset:%d sc1' % ((vr(o, 4),) + store(tt, b)))

def c_common(a, cfg):
    g2_scalars(a, 84, 85)
    a('s_mul_i32 s86, s85, 245760')
    a('s_mul_i32 s96, s3, 61440')
    a('s_add_u32 s86, s86, s96')
    a('s_mul_i32 s87, s84, 196608')
    a('s_mul_i32 s96, s3, 49152')
    a('s_add_u32 s87, s87, s96')
    a('s_mul_i32 s88, s3, 10240')
    a('s_mul_i32 s83, s84, 384')
    a('s_mul_i32 s96, s3, 96')
    a('s_add_u32 s83, s83, s96')
    a('s_add_u32 s83, s83, %d' % F_H)
    if cfg.ocoal:
        a('s_lshr_b32 s97, s84, 3')
        a('s_lshl_b32 s97, s97, 9')
        a('s_and_b32 s96, s84, 7')
        a('s_lshl_b32 s96, s96, 3')
        a('s_add_u32 s97, s97, s96')
        a('s_lshl_b32 s96, s3, 1')
        a('s_add_u32 s97, s97, s96')
        a('s_mul_i32 s89, s97, 1280')
        a('s_mul_i32 s96, s85, 160')
        a('s_add_u32 s89, s89, s96')
        for i in range(3):
            d = (242, 244, 245)[i]
            a('v_add_u32 v12, %d, v1' % (64 * i))
            a('v_mul_u32_u24 v13, 6554, v12')
            a('v_lshrrev_b32 v13, 16, v13')
            a('v_mul_u32_u24 v14, 10, v13')
            a('v_sub_u32 v14, v12, v14')
            a('v_and_b32 v15, 7, v13')
            a('v_lshlrev_b32 v15, 6, v15')
            a('v_lshrrev_b32 v13, 3, v13')
            a('v_add_u32 v13, v13, v15')
            a('v_mul_u32_u24 v13, 1280, v13')
            a('v_lshl_add_u32 v%d, v14, 4, v13' % d)
        a('v_cmp_gt_u32 vcc, 32, v1')
        a('v_mov_b32 v14, 0x%x' % OOB)
        a('v_cndmask_b32 v245, v14, v245, vcc')
    else:
        row_off(a, 244, 245, 84, 85, 3)
    a('v_lshlrev_b32 v240, 4, v1')
    a('v_add_u32 v241, 4096, v240')
    lane_min(a, 246, 24)
    a('v_and_b32 v9, 31, v1')
    a('v_lshlrev_b32 v9, 2, v9')
    a('v_add_u32 v9, %d, v9' % CNT)
    a('v_mov_b32 v12, 0')
    a('ds_write_b32 v9, v12')
    a.emit('s_waitcnt lgkmcnt(0)'); a.lgq = []
    srd(a, 44, P_WS, SZ_H, WS_H)
    srd(a, 48, P_WS, SZ_WD, WS_WD)
    srd(a, 56, P_OUT, SZ_X)
    wave_common(a)
    if cfg.ptouch:
        M2 = 2 << 20
        tl_ = [(P_K, 0), (P_K, M2), (P_V, 0), (P_V, M2), (P_WD, 0), (P_SSMK, 0), (P_SSMK, M2), (P_Q, M2), (P_OUT, 0), (P_OUT, M2), (P_GW, 0), (P_SHK, 0)]
        tl_ += [(P_WS, i * M2 + M2 - 64) for i in range(7)]
        a('s_mov_b32 s64, 0x%x' % M2)
        lab = newlabel('Lpt')
        for w in range(4):
            a('s_cmp_lg_u32 s3, %d' % w)
            a('s_cbranch_scc1 %s_%d' % (lab, w))
            for p, off in tl_[w::4]:
                a('s_mov_b32 s64, 0x%x' % off)
                a('s_load_dword s65, s[%d:%d], s64' % (p, p + 1))
            a.label('%s_%d' % (lab, w))
    if cfg.rot2:
        rot_off(a, cfg, 95)
        for k in range(12): kap(a, 16 + k, 95, k)
    if cfg.spf > 2:
        SPF.X, SPF.WG, SPF.WU = P_Q, P_WG, P_WU
        sp = SPF(a, cfg, 3, 62, 66, 64, 65, 2)
        SPF.X, SPF.WG, SPF.WU = 44, 48, 52
        sp.upto(cfg.spf - 1)
    if cfg.cclear:
        srd(a, 60, P_WS, SZ_Y2, WS_Y2)
        a('s_mul_i32 s80, s4, 20')
        a('s_add_u32 s80, s80, s5')
        a('s_lshl_b32 s80, s80, 2')
        a('s_add_u32 s80, s80, s3')
        a('s_lshl_b32 s81, s80, 12')
        a('s_lshl_b32 s80, s80, 2')
        a('s_add_u32 s80, s80, %d' % F_YC)
        a('s_cmp_ge_u32 s5, 20')
        a('s_cselect_b32 s96, 0x%x, 0' % FAR)
        a('s_or_b32 s80, s80, s96')
        a('s_or_b32 s81, s81, s96')
        for i in range(4): a('v_mov_b32 v%d, -1' % (160 + i))
        for i in range(4):
            a('buffer_store_dwordx4 v[160:163], v240, s[60:63], s81 offen offset:%d sc1' % (1024 * i))

def c_wave(a, cfg, prof):
    h0 = list(a.hist)
    a('s_cmp_ge_u32 s5, 30')
    a('s_cbranch_scc1 LCodd')
    c_setup_main(a)
    c_common(a, cfg)
    c_gemm1(a, cfg, prof, False)
    a('s_branch LCjoin')
    a.hist = h0; a.reset_queues()
    a.label('LCodd')
    c_setup_odd(a)
    c_common(a, cfg)
    c_gemm1(a, cfg, prof, True)
    a.label('LCjoin')
    prof.stamp(3)
    a('v_readfirstlane_b32 s%d, v%d' % (NONCE, VN))
    def h_flag(n_younger):
        a.emit('s_waitcnt vmcnt(%d)' % n_younger)
        if not n_younger: a.vmq = []
        flag_store(a, '0', 249)
        a('s_setprio 0')
        prof.stamp(7); prof.cyc(40)
    a.vmq = []
    if not cfg.pre_ack: h_flag(0)
    NA, NB = cfg.na, cfg.nb
    NL = 6 if cfg.c0 else 4
    L0 = 12 - NL
    LS = cfg.lsteps
    assert not cfg.quiet or LS == 0
    cblocks = ([4, 5] if cfg.c0 else []) + list(range(LS, 4))
    border = cblocks + list(range(LS))
    AB = 240 - 20 * NA; ACC2 = AB - 80 - (8 if NA == 4 else 0); BB = 8
    assert BB + 16 * NB <= ACC2 and not (cfg.areg and NA != 4)
    RD = 160 if NA == 4 else 12
    gtok = {}
    def acc2(dl, sg): return ACC2 + (sg * 5 + dl) * 4
    def wdoff(k):
        if cfg.rot2:
            a('s_mul_i32 s14, s%d, 5120' % (16 + k))
            a('s_add_u32 s14, s14, s86')
        else: a('s_add_u32 s14, s86, %d' % (5120 * k))
    def lbase(off): return ('v4', off) if off < SLOT else ('v7', off - SLOT)
    def issueA(k):
        b = AB + (k % NA) * 20
        if k >= L0:
            i = border[k - L0]
            if i == 0 and LS: lds_word_wait(a, cfg, 3, 16, 5, 6, 'Lwf')
            base, off = lbase(wblk(i))
            for dl in range(5):
                gtok[(k, 'a')] = a.emit('ds_read_b128 %s, %s offset:%d' % (vr(b + 4 * dl, 4), base, off + dl * 1024))
            return
        wdoff(k)
        for dl in range(4):
            a('buffer_load_dwordx4 %s, v240, s[48:51], s14 offen offset:%d sc1' % (vr(b + 4 * dl, 4), 1024 * dl))
        gtok[(k, 'a')] = a.emit('buffer_load_dwordx4 %s, v241, s[48:51], s14 offen sc1' % vr(b + 16, 4))
    def issueB(k):
        b = BB + (k % NB) * 16
        if cfg.rot2:
            a('s_lshl_b32 s15, s%d, 12' % (16 + k))
            a('s_add_u32 s15, s15, s87')
        else: a('s_add_u32 s15, s87, %d' % (4096 * k))
        for sg in range(4):
            gtok[(k, sg)] = a.emit('buffer_load_dwordx4 %s, v240, s[44:47], s15 offen offset:%d sc1' % (vr(b + 4 * sg, 4), 1024 * sg))
    a('v_add_u32 v4, s88, v240')
    a('v_add_u32 v7, %d, v4' % SLOT)
    a('v_mov_b32 v5, %d' % CNT)
    a('v_mov_b32 v6, 1')
    a('v_cmp_eq_u32 vcc, 0, v1')
    a('s_and_saveexec_b64 s[90:91], vcc')
    a('ds_add_u32 v5, v6')
    a('s_mov_b64 exec, s[90:91]')
    lds_spin(a, cfg, 5, 6, 82, 'ge', 4, 'Lcsync')
    lds_word_wait(a, cfg, 3, 48, 5, 6, 'Lwok')
    prof.stamp(31)
    assert not (cfg.areg and (cfg.ungate or cfg.nine))
    for k in range(cfg.areg): gtok[(k, 'a')] = -1
    done = [0]
    def tick():
        done[0] += 1
        if done[0] == cfg.pre_ack: h_flag(5 * cfg.pre_ack)
    for k in range(cfg.areg, NA): issueA(k); tick()
    t = None
    for n, i in enumerate(cblocks):
        if i < cfg.e8: continue
        if n == cfg.pollat: t = poll_issue(a, 246, 's83', 247)
        wdoff(L0 + n)
        a('s_add_u32 m0, s88, %d' % wblk(i))
        for dl in range(4):
            a('buffer_load_dwordx4 v240, s[48:51], s14 offen offset:%d sc1 lds' % (1024 * dl))
        a('s_add_u32 m0, s88, %d' % (wblk(i) + 4096))
        a('buffer_load_dwordx4 v241, s[48:51], s14 offen sc1 lds')
        tick()
    if t is None: t = poll_issue(a, 246, 's83', 247)
    prof.stamp(32)
    if cfg.prof:
        a.wait_vm(t); prof.stamp(33)
    def group_wait(tok, g):
        if cfg.rot2:
            a('s_lshl_b32 s80, s%d, 1' % (16 + 4 * g))
            a('s_lshl_b64 s[80:81], 0xff, s80') if False else None
            a('s_mov_b32 s81, 0xff')
            a('s_lshl_b32 s82, s81, s80')
            a('s_sub_u32 s80, 24, s80')
            a('s_lshr_b32 s81, s81, s80')
            a('s_or_b32 s82, s82, s81')
            a('s_and_b32 s82, s82, 0xffffff')
        else:
            a('s_mov_b32 s82, 0x%x' % (0xff << (8 * g)))
        a.wait_vm(tok)
        lo, ok = newlabel('Lg'), newlabel('Lg_ok')
        a('s_mov_b32 s94, %d' % cfg.spin)
        a.label(lo)
        a('v_cmp_ne_u32 vcc, s%d, v247' % NONCE)
        a('s_nop 0')
        a('s_and_b32 s81, vcc_lo, s82')
        a('s_cbranch_scc0 %s' % ok)
        a('s_sleep %d' % cfg.hsleep)
        poll_issue(a, 246, 's83', 247)
        a.emit('s_waitcnt vmcnt(0)')
        a.vmq.pop()
        a('s_sub_u32 s94, s94, 1')
        a('s_cmp_lg_u32 s94, 0')
        a('s_cbranch_scc1 %s' % lo)
        a.label(ok)
    if cfg.grp:
        assert NB == 4
        group_wait(t, 0)
    else:
        poll_wait(a, cfg, t, 246, 's83', 247, sleep=cfg.hsleep)
    prof.stamp(8); prof.cyc(41)
    if cfg.grp: gp = {1: poll_issue(a, 246, 's83', 247)}
    for k in range(NB): issueB(k)
    def step(k, sgs, after=None):
        ab_, bb_ = AB + (k % NA) * 20, BB + (k % NB) * 16
        if k >= L0: a.wait_lg(gtok[(k, 'a')])
        else: a.wait_vm(gtok[(k, 'a')])
        for n, sg in enumerate(sgs):
            a.wait_vm(gtok[(k, sg)])
            if n == 0: prof.stamp(10 + k)
            for dl in range(5):
                c = '0' if k == 0 else vr(acc2(dl, sg), 4)
                a('v_mfma_f32_16x16x32_bf16 %s, %s, %s, %s' % (vr(acc2(dl, sg), 4), vr(ab_ + 4 * dl, 4), vr(bb_ + 4 * sg, 4), c))
                if after: after(n, dl)
    NK = 11 if cfg.fin else 12
    for k in range(NK):
        step(k, range(4))
        if cfg.grp and k in (0, 4): group_wait(gp[k // 4 + 1], k // 4 + 1)
        if cfg.grp and k == 2: gp[2] = poll_issue(a, 246, 's83', 247)
        if k + NB < 12: issueB(k + NB)
        if k + NA < 12: issueA(k + NA)
        if k == cfg.ygate: lds_word(a, 3, 64, 5, 6)
    def blk(w, sg): return w * 10240 + wblk(sg if sg < w else sg - 1)
    a('v_add_u32 v7, %d, v240' % SLOT)
    a('v_add_u32 v4, %d, v7' % SLOT)
    if not cfg.fin: a('s_nop 7')
    else:
        a.wait_lg(gtok[(11, 'a')])
        a.wait_all_vm()
    for w in range(3):
        a('s_cmp_eq_u32 s3, %d' % (w + 1))
        a('s_cbranch_scc1 Lfin%d' % (w + 1))
    hist0 = [] if cfg.fin else list(a.hist)
    def ab(off): return ('v7', off - SLOT) if off < 2 * SLOT else ('v4', off - 2 * SLOT)
    for w in range(4):
        a.hist = list(hist0); a.vmq = []; a.lgq = []
        a.label('Lfin%d' % w)
        others = [x for x in range(4) if x != w]
        def wr(sg, dl):
            r, o = ab(blk(w, sg) + dl * 1024)
            a('ds_write_b128 %s, %s offset:%d' % (r, vr(acc2(dl, sg), 4), o))
        if cfg.fin:
            pend = []
            def after(n, dl):
                if n < 3: pend.append((others[n], dl))
                if len(pend) > 6 or (n == 3 and pend): wr(*pend.pop(0))
            step(11, others + [w], after=after)
            while pend: wr(*pend.pop(0))
        else:
            for sg in others:
                for dl in range(5): wr(sg, dl)
        prof.stamp(9); prof.cyc(42)
        if cfg.coop:
            a('v_lshlrev_b32 v5, 3, v1')
            a('v_add_u32 v5, %d, v5' % (PA + w * 5120 + 2560))
        else:
            a('v_add_u32 v5, %d, v240' % (PA + w * 5120))
        a('v_lshlrev_b32 v3, 2, v1')
        a('v_add_u32 v3, %d, v3' % (QA + w * QSZ + 3072))
        if cfg.ocoal:
            a('v_and_b32 v2, 15, v1')
            a('v_mul_u32_u24 v2, 160, v2')
            a('v_lshrrev_b32 v8, 4, v1')
            a('v_lshl_add_u32 v2, v8, 3, v2')
            a('v_add_u32 v2, %d, v2' % (PA + w * 5120))
            a('v_add_u32 v8, %d, v240' % (PA + w * 5120))
        a.wait_all_lg()
        a('s_barrier')
        prof.stamp(30)
        tl = {}
        tl['omg'] = a.emit('ds_read_b32 v6, v3')
        for dl in range(5):
            for si, x in enumerate(others):
                r, o = ab(blk(x, w) + dl * 1024)
                tl[(dl, si)] = a.emit('ds_read_b128 %s, %s offset:%d' % (vr(RD + (dl * 4 + si) * 4, 4), r, o))
            if cfg.coop: tl[(dl, 3)] = a.emit('ds_read_b64 %s, v5 offset:%d' % (vr(RD + (dl * 4 + 3) * 4 + 2, 2), dl * 512))
            else: tl[(dl, 3)] = a.emit('ds_read_b128 %s, v5 offset:%d' % (vr(RD + (dl * 4 + 3) * 4, 4), dl * 1024))
        for dl in range(5):
            x = acc2(dl, w)
            for si in range(3):
                a.wait_lg(tl[(dl, si)])
                r = RD + (dl * 4 + si) * 4
                a('v_pk_add_f32 %s, %s, %s' % (P2(x), P2(x), P2(r)))
                a('v_pk_add_f32 %s, %s, %s' % (P2(x + 2), P2(x + 2), P2(r + 2)))
            ga = RD + (dl * 4 + 3) * 4
            t = 8 + (dl & 1) * 2 if NA != 4 else 12 + (dl & 1) * 4
            a.wait_lg(tl[(dl, 3)])
            if cfg.coop:
                unpack_lo(a, ga, ga + 2); unpack_hi(a, ga + 1, ga + 2); unpack_lo(a, ga + 2, ga + 3); unpack_hi(a, ga + 3, ga + 3)
            for i in range(4): a('v_fma_f32 v%d, v6, v%d, v%d' % (x + i, x + i, ga + i))
            a('v_cvt_pk_bf16_f32 v%d, v%d, v%d' % (t, x, x + 1))
            a('v_cvt_pk_bf16_f32 v%d, v%d, v%d' % (t + 1, x + 2, x + 3))
            if cfg.ocoal: a('ds_write_b64 v2, %s offset:%d' % (vr(t, 2), dl * 32))
            else: a('buffer_store_dwordx2 %s, v244, s[56:59], 0 offen offset:%d' % (vr(t, 2), dl * 32))
        if cfg.ocoal:
            a.wait_all_lg()
            to = [a.emit('ds_read_b128 %s, v8 offset:%d' % (vr(24 + 4 * i, 4), 1024 * i)) for i in range(3)]
            for i in range(3):
                a.wait_lg(to[i])
                a('buffer_store_dwordx4 %s, v%d, s[56:59], s89 offen%s' % (vr(24 + 4 * i, 4), (242, 244, 245)[i], ['', ' sc1', ' nt'][cfg.oflag]))
        prof.stamp(4)
        prof.flush(243)
        a('s_endpgm')

class SPF:
    def __init__(self, a, cfg, wv, pw, px, cur, dst, first):
        self.a, self.cfg, self.pw, self.px, self.cur, self.dst, self.next = a, cfg, pw, px, cur, dst, first
        a('s_lshl_b32 s96, s5, 2')
        a('s_add_u32 s96, s96, s%d' % wv)
        a('s_and_b32 s%d, s4, 1' % cur)
        a('s_mul_i32 s%d, s%d, 10' % (cur, cur))
        a('s_mul_i32 s97, s6, 5')
        a('s_add_u32 s%d, s%d, s97' % (cur, cur))
        a('s_lshr_b32 s%d, s%d, 1' % (cur, cur))
        if cfg.xrot == 0: a('s_mov_b32 s%d, 0' % cur)
        a('s_add_u32 s%d, s%d, %d' % (cur, cur, first))
        for _ in range(2):
            a('s_cmp_ge_u32 s%d, 10' % cur)
            a('s_cselect_b32 s97, 10, 0')
            a('s_sub_u32 s%d, s%d, s97' % (cur, cur))
        a('s_bitcmp1_b32 s96, 0')
        a('s_cselect_b32 s%d, s%d, s%d' % (pw, self.WU, self.WG))
        a('s_cselect_b32 s%d, s%d, s%d' % (pw + 1, self.WU + 1, self.WG + 1))
        a('s_lshr_b32 s97, s96, 1')
        a('s_mul_i32 s97, s97, 3072')
        a('s_mul_i32 s%d, s6, 768' % dst)
        a('s_add_u32 s97, s97, s%d' % dst)
        a('s_mul_i32 s%d, s%d, 196608' % (dst, cur))
        a('s_add_u32 s97, s97, s%d' % dst)
        a('s_add_u32 s%d, s%d, s97' % (pw, pw))
        a('s_addc_u32 s%d, s%d, 0' % (pw + 1, pw + 1))
        a('s_lshr_b32 s97, s96, 3')
        a('s_min_u32 s97, s97, 14')
        a('s_and_b32 s%d, s4, 1' % dst)
        a('s_mul_i32 s%d, s%d, 15' % (dst, dst))
        a('s_add_u32 s97, s97, s%d' % dst)
        a('s_and_b32 s96, s96, 7')
        a('s_lshr_b32 s%d, s97, 3' % dst)
        a('s_lshl_b32 s%d, s%d, 9' % (dst, dst))
        a('s_add_u32 s96, s96, s%d' % dst)
        a('s_and_b32 s97, s97, 7')
        a('s_lshl_b32 s97, s97, 3')
        a('s_add_u32 s96, s96, s97')
        a('s_mul_i32 s96, s96, 1280')
        a('s_lshl_b32 s97, s%d, 7' % cur)
        a('s_add_u32 s96, s96, s97')
        a('s_add_u32 s%d, s%d, s96' % (px, self.X))
        a('s_addc_u32 s%d, s%d, 0' % (px + 1, self.X + 1))
    X, WG, WU = 44, 48, 52
    def upto(self, st):
        a = self.a
        while self.next <= min(st, NSTAGE - 1):
            for i in range(6): a('s_load_dword s%d, s[%d:%d], %d' % (self.dst, self.pw, self.pw + 1, 128 * i))
            for i in range(self.cfg.spfx): a('s_load_dword s%d, s[%d:%d], %d' % (self.dst, self.px, self.px + 1, 81920 * i))
            a('s_add_u32 s%d, s%d, 1' % (self.cur, self.cur))
            a('s_cmp_eq_u32 s%d, 10' % self.cur)
            a('s_cselect_b32 s96, %d, 196608' % 0) if False else None
            a('s_cselect_b32 s96, 1966080, 0')
            a('s_cselect_b32 s97, 1280, 0')
            a('s_sub_u32 s%d, s%d, s96' % (self.pw, self.pw)); a('s_subb_u32 s%d, s%d, 0' % (self.pw + 1, self.pw + 1))
            a('s_add_u32 s%d, s%d, 196608' % (self.pw, self.pw)); a('s_addc_u32 s%d, s%d, 0' % (self.pw + 1, self.pw + 1))
            a('s_sub_u32 s%d, s%d, s97' % (self.px, self.px)); a('s_subb_u32 s%d, s%d, 0' % (self.px + 1, self.px + 1))
            a('s_add_u32 s%d, s%d, 128' % (self.px, self.px)); a('s_addc_u32 s%d, s%d, 0' % (self.px + 1, self.px + 1))
            self.next += 1

SX = [28, 29, 30, 31, 7, 8]
class Loader:
    def __init__(self, a, cfg, prof, odd):
        self.a, self.odd, self.tok = a, odd, {}
        if odd:
            a('v_lshrrev_b32 v9, 3, v1')
            a('v_and_b32 v10, 7, v1')
            a('v_lshrrev_b32 v11, 1, v9')
            a('v_xor_b32 v10, v10, v11')
            a('v_lshlrev_b32 v10, 4, v10')
            a('s_mov_b32 s12, 81920')
            a('v_mul_lo_u32 v9, v9, s12')
            a('v_add_u32 v2, v9, v10')
            a('v_xor_b32 v10, 64, v10')
            a('v_add_u32 v3, v9, v10')
            a('v_add_u32 v3, 256, v3')
            a('v_add_u32 v4, 512, v2')
            a('v_add_u32 v5, 512, v3')
            for i in range(3):
                a('v_add_u32 v9, %d, v1' % (64 * i))
                a('v_mul_u32_u24 v10, 5462, v9')
                a('v_lshrrev_b32 v10, 16, v10')
                a('v_mul_u32_u24 v11, 12, v10')
                a('v_sub_u32 v11, v9, v11')
                a('v_mul_u32_u24 v10, 3072, v10')
                a('v_lshl_add_u32 v10, v11, 4, v10')
                a('v_subrev_u32 v%d, %d, v10' % (6 + i, 1024 * i))
            a('s_mov_b32 s12, %d' % (512 * 3 + 16 * 3))
            a('s_lshl_b32 s13, s10, 2')
            a('s_add_u32 s12, s12, s13')
            a('s_mul_i32 s12, s12, 1280')
            a('s_mul_i32 s13, s10, 49152')
            a('s_mul_i32 s14, s8, 192')
            a('s_add_u32 s13, s13, s14')
            a('s_lshl_b32 s14, s10, 12')
            a('s_mul_i32 s15, s10, 3072')
        else:
            a('v_lshrrev_b32 v9, 3, v1')
            a('v_and_b32 v10, 7, v1')
            a('v_lshrrev_b32 v11, 1, v9')
            a('v_xor_b32 v4, v10, v11')
            a('v_lshlrev_b32 v4, 4, v4')
            a('s_mov_b32 s12, 81920')
            a('v_mul_lo_u32 v3, v9, s12')
            a('v_add_u32 v2, v3, v4')
            a('v_xor_b32 v4, 64, v4')
            a('v_add_u32 v3, v3, v4')
            a('v_and_b32 v11, 1, v11')
            a('v_lshlrev_b32 v11, 1, v11')
            a('v_xor_b32 v10, v10, v11')
            a('v_mul_u32_u24 v9, 3072, v9')
            a('v_lshl_add_u32 v4, v10, 4, v9')
            a('v_add_u32 v5, 23552, v4')
            a('v_xor_b32 v6, 64, v4')
            a('v_xor_b32 v7, 64, v5')
            a('s_mul_i32 s12, s10, 6')
            a('s_mul_i32 s13, s7, 3')
            a('v_add_u32 v9, s12, v1')
            a('v_lshrrev_b32 v10, 3, v9')
            a('v_add_u32 v10, s13, v10')
            a('v_and_b32 v9, 7, v9')
            a('v_and_b32 v11, 7, v10')
            a('v_lshl_add_u32 v9, v11, 3, v9')
            a('v_lshrrev_b32 v10, 3, v10')
            a('v_lshl_add_u32 v9, v10, 9, v9')
            a('v_mul_u32_u24 v9, 1280, v9')
            a('v_subrev_u32 v10, 3, v1')
            a('v_min_u32 v10, v10, v1')
            a('v_lshlrev_b32 v10, 10, v10')
            a('v_sub_u32 v8, v9, v10')
            a('s_mul_i32 s13, s10, 49152')
            a('s_lshl_b32 s14, s8, 7')
            a('s_add_u32 s13, s13, s14')
            a('s_mul_i32 s14, s10, 6144')
            a('s_lshl_b32 s15, s10, 11')
        self.rot = cfg.xrot
        self.alt = cfg.alt
        if cfg.alt and not odd:
            a('s_add_u32 s93, s7, s8')
            a('s_and_b32 s93, s93, 1')
        if cfg.xrot:
            a('s_and_b32 s9, s4, 1')
            a('s_mul_i32 s9, s9, 10')
            a('s_mul_i32 s96, s6, 5')
            a('s_add_u32 s9, s9, s96')
            if cfg.xrot == 2:
                a('s_mul_i32 s96, s5, 3')
                a('s_add_u32 s9, s9, s96')
                a('s_and_b32 s9, s9, 31')
            a('s_lshr_b32 s9, s9, 1')
            a('s_cmp_ge_u32 s9, 10')
            a('s_cselect_b32 s96, 10, 0')
            a('s_sub_u32 s9, s9, s96')
            a('s_lshl_b32 s96, s9, 7')
            if odd: a('s_add_u32 s12, s12, s96')
            else:
                a('v_add_u32 v2, s96, v2')
                a('v_add_u32 v3, s96, v3')
            a('s_mul_i32 s96, s9, 196608')
            a('s_add_u32 s13, s13, s96')
        for d, sz in ((44, SZ_X), (48, SZ_W), (52, SZ_W)):
            a('s_mov_b32 s%d, 0x%x' % (d + 2, sz))
            a('s_mov_b32 s%d, 0x00020000' % (d + 3))
        if not odd:
            for i in range(6): a('v_readlane_b32 s%d, v8, %d' % (SX[i], i))
        a.emit('s_waitcnt lgkmcnt(0)')
        prof.stamp(3)
    def issue(self, st):
        a = self.a
        base = (st % NSLOT) * SLOT
        if self.odd:
            a('s_add_u32 m0, s14, %d' % base)
            for i in range(4):
                a('buffer_load_dwordx4 v%d, s[44:47], s12 offen offset:%d lds' % (2 + i, 1024 * i))
            a('s_add_u32 m0, s15, %d' % (base + OFF_GATE))
            for i in range(3):
                a('buffer_load_dwordx4 v%d, s[48:51], s13 offen offset:%d lds' % (6 + i, 1024 * i))
            a('s_add_u32 m0, s15, %d' % (base + OFF_UP))
            for i in range(3):
                t = a.emit('buffer_load_dwordx4 v%d, s[52:55], s13 offen offset:%d lds' % (6 + i, 1024 * i))
            a('s_add_u32 s12, s12, 128')
        else:
            def xpart(order):
                for h in order:
                    a('s_add_u32 m0, s14, %d' % (base + 3072 * h))
                    for i in range(3 * h, 3 * h + 3):
                        t = a.emit('buffer_load_dwordx4 v%d, s[44:47], s%d offen offset:%d lds' % (2 + (i & 1), SX[i], 1024 * (i % 3)))
                return t
            def wpart(order):
                for m in order:
                    a('s_add_u32 m0, s15, %d' % (base + 24576 + 8192 * m))
                    for i in range(2):
                        t = a.emit('buffer_load_dwordx4 v%d, s[%d:%d], s13 offen offset:%d lds' % (4 + 2 * m + i, 48 + 4 * m, 51 + 4 * m, 1024 * i))
                return t
            if self.alt:
                l1, l2 = newlabel('Lalt'), newlabel('Lalt_done')
                a('s_cmp_lg_u32 s93, 0')
                a('s_cbranch_scc1 %s' % l1)
                q0 = list(a.vmq)
                if self.alt == 1: xpart((0, 1)); wpart((0, 1))
                else: xpart((0,)); wpart((0,)); xpart((1,)); wpart((1,))
                a('s_branch %s' % l2)
                a.vmq = q0
                a.label(l1)
                if self.alt == 1: wpart((1, 0)); t = xpart((1, 0))
                else: wpart((1,)); xpart((1,)); wpart((0,)); t = xpart((0,))
                a.label(l2)
            else:
                xpart((0, 1)); t = wpart((0, 1))
            a('v_add_u32 v2, 0x80, v2')
            a('v_add_u32 v3, 0x80, v3')
        a('s_add_u32 s13, s13, 196608')
        if self.rot:
            a('s_add_u32 s9, s9, 1')
            a('s_cmp_eq_u32 s9, 10')
            a('s_cselect_b32 s96, 1280, 0')
            a('s_cselect_b32 s97, 1966080, 0')
            a('s_sub_u32 s13, s13, s97')
            if self.odd: a('s_sub_u32 s12, s12, s96')
            else:
                a('v_subrev_u32 v2, s96, v2')
                a('v_subrev_u32 v3, s96, v3')
        self.tok[st] = t

def l_wave(a, cfg, prof):
    a('s_setprio %d' % cfg.lprio)
    a('s_and_b32 s10, s3, 3')
    h0 = list(a.hist)
    a('s_cmp_ge_u32 s5, 30')
    a('s_cbranch_scc1 LLodd')
    l_body(a, cfg, prof, False)
    a.hist = h0; a.reset_queues()
    a.label('LLodd')
    l_body(a, cfg, prof, True)

def l_body(a, cfg, prof, odd):
    ld = Loader(a, cfg, prof, odd)
    stage_tok = ld.tok
    issue_stage = ld.issue
    issue_stage(0)
    wave_common(a)
    if cfg.drop:
        a('s_mov_b32 s92, 1'); a('v_mov_b32 v250, 1'); a('s_mov_b32 s86, 0')
    if not odd:
        a('s_lshl_b32 s76, s2, 2')
        a('s_add_u32 s76, s76, s10')
        a('s_cmp_lg_u32 s76, 0')
        a('s_cbranch_scc1 Lno_nonce')
        a('s_memrealtime s[76:77]')
        srd(a, 68, P_DBG, 256)
        a.emit('s_waitcnt lgkmcnt(0)')
        a('s_or_b32 s76, s76, 1')
        a('v_mov_b32 v20, s76')
        a('buffer_store_dword v20, v%d, s[68:71], 0 offen sc1' % VZ)
        a.emit('s_waitcnt vmcnt(0)')
        a.vmq.pop()
        a.label('Lno_nonce')
    issue_stage(1)
    assert not cfg.spf
    spf = None
    g2_scalars(a, 84, 85)
    a('s_mul_i32 s82, s10, 5120')
    a('s_add_u32 s82, s82, %d' % PA)
    a('s_mul_i32 s83, s10, %d' % QSZ)
    a('s_add_u32 s83, s83, %d' % QA)
    a('s_mul_i32 s88, s85, 48')
    a('s_mul_i32 s96, s10, 12')
    a('s_add_u32 s88, s88, s96')
    a('s_mul_i32 s0, s88, 5120')
    if cfg.rot2: rot_off(a, cfg, 95)
    else: a('s_mov_b32 s95, 0')
    a('s_lshl_b32 s88, s88, 2')
    a('s_add_u32 s88, s88, %d' % F_WD)
    a('s_mul_i32 s1, s10, 10240')
    a('v_lshlrev_b32 v241, 4, v1')
    a('v_add_u32 v245, 4096, v241')
    if not odd:
        a('s_cmp_ge_u32 s5, 20')
        a('s_cbranch_scc1 LtypeB')
    saved = (list(a.vmq), dict(stage_tok), list(a.hist), spf.next if spf else 0)
    tk = {}
    DROP = {1: ('kv_loads', 'wd_loads'), 2: ('f',), 4: ('ut_store', 'wd_part'), 8: ('y_clear',), 16: ('n_issue', 'n_get', 'd_issue')}
    dn = [n for b, ns in DROP.items() if cfg.drop & b for n in ns]
    class _T(dict):
        def __missing__(self, k): return -1
    tk = _T()
    def interval(i, slices, pre={}):
        slices = {k: [f for f in v if f.__name__ not in dn] for k, v in slices.items()}
        pre = {k: [f for f in v if f.__name__ not in dn] for k, v in pre.items()}
        if cfg.nine and i == 8: a.wait_vm(stage_tok[9])
        a.wait_vm(stage_tok[i])
        if a.lgq: a.wait_all_lg()
        if cfg.lstamp: prof.stamp(10 + i)
        if not (cfg.nine and i == 9): a('s_barrier')
        if cfg.lstamp: prof.stamp(20 + i)
        if spf: spf.upto(i + cfg.spf)
        for f in pre.get(i, []): f()
        if i + NSLOT - 1 < NSTAGE: issue_stage(i + NSLOT - 1)
        for f in slices.get(i, []): f()
    def n_issue():
        a('s_load_dword s%d, s[%d:%d], 0' % (NONCE, P_DBG, P_DBG + 1))
    def n_get():
        lo, ok = newlabel('Ln'), newlabel('Ln_ok')
        a.emit('s_waitcnt lgkmcnt(0)'); a.lgq = []
        a('s_cmp_lg_u32 s%d, 0' % NONCE)
        a('s_cbranch_scc1 %s' % ok)
        a('s_mov_b32 s94, %d' % cfg.spin)
        srd(a, 68, P_DBG, 256)
        a('v_mov_b32 v249, 0')
        a.label(lo)
        a('buffer_load_dword v%d, v249, s[68:71], 0 offen sc1' % VN)
        a.emit('s_waitcnt vmcnt(0)')
        a.vmq.pop()
        a('v_readfirstlane_b32 s%d, v%d' % (NONCE, VN))
        a('s_cmp_lg_u32 s%d, 0' % NONCE)
        a('s_cbranch_scc1 %s' % ok)
        a('s_sleep 8')
        a('s_sub_u32 s94, s94, 1')
        a('s_cmp_lg_u32 s94, 0')
        a('s_cbranch_scc1 %s' % lo)
        a.label(ok)
        a('s_nop 1')
        a('v_mov_b32 v%d, s%d' % (VN, NONCE))
        a('v_mov_b32 v9, %d' % (CNT + 32))
        a('ds_write_b32 v9, v%d' % VN)
    def flag_after(key, sreg):
        def f():
            a.wait_vm(tk[key])
            flag_store(a, sreg)
        return f
    def late_srds():
        srd(a, 48, P_WS, SZ_WD, WS_WD)
        srd(a, 52, P_WS, SZ_G, WS_G)
        srd(a, 64, P_WS, SZ_Y2, WS_Y2)
    def wdl_dma():
        for i in range(cfg.lsteps):
            kap(a, 97, 95, 12 - cfg.lsteps + i)
            a('s_mul_i32 s97, s97, 5120')
            a('s_add_u32 s97, s97, s0')
            a('s_add_u32 m0, s1, %d' % wblk(i))
            for dl in range(4):
                a('buffer_load_dwordx4 v241, s[48:51], s97 offen offset:%d sc1 lds' % (1024 * dl))
            a('s_add_u32 m0, s1, %d' % (wblk(i) + 4096))
            tk['wdl'] = a.emit('buffer_load_dwordx4 v245, s[48:51], s97 offen sc1 lds')
    def wdl_publish():
        if not cfg.lsteps: return
        a.wait_vm(tk['wdl'])
        lds_word(a, 10, 16, 236, 237)
    def q_loads():
        if cfg.coop:
            a('s_lshr_b32 s97, s84, 3')
            a('s_lshl_b32 s97, s97, 9')
            a('s_and_b32 s96, s84, 7')
            a('s_lshl_b32 s96, s96, 3')
            a('s_add_u32 s97, s97, s96')
            a('s_lshl_b32 s96, s10, 1')
            a('s_add_u32 s97, s97, s96')
            a('s_mul_i32 s97, s97, 1280')
            a('s_mul_i32 s96, s85, 160')
            a('s_add_u32 s97, s97, s96')
            for i in range(3):
                a('v_add_u32 v2, %d, v1' % (64 * i))
                a('v_mul_u32_u24 v3, 6554, v2')
                a('v_lshrrev_b32 v3, 16, v3')
                a('v_mul_u32_u24 v4, 10, v3')
                a('v_sub_u32 v4, v2, v4')
                a('v_and_b32 v5, 7, v3')
                a('v_lshlrev_b32 v5, 6, v5')
                a('v_lshrrev_b32 v3, 3, v3')
                a('v_add_u32 v3, v3, v5')
                a('v_mul_u32_u24 v3, 1280, v3')
                a('v_lshl_add_u32 v3, v4, 4, v3')
                if i == 2:
                    a('v_cmp_gt_u32 vcc, 32, v1')
                    a('v_mov_b32 v4, 0x%x' % OOB)
                    a('v_cndmask_b32 v3, v4, v3, vcc')
                a('s_add_u32 m0, s83, %d' % (1024 * i))
                a('buffer_load_dwordx4 v3, s[44:47], s97 offen lds')
            return
        row_off(a, 238, 239, 84, 85, 10)
        for dl in range(5):
            a('buffer_load_dwordx2 %s, v238, s[44:47], 0 offen offset:%d' % (vr(QV + 2 * dl, 2), dl * 32))
    def tail_issue():
        if cfg.bclear:
            a('s_lshl_b32 s89, s85, 8')
            a('s_add_u32 s89, s89, %d' % F_YC)
            lane_min(a, 247, 48)
            tk['y1'] = poll_issue(a, 247, 's89', 239)
            return
        a('s_mul_i32 s89, s85, 320')
        a('s_add_u32 s89, s89, %d' % F_YC)
        a('v_lshlrev_b32 v247, 2, v1')
        lane_min(a, 240, 16)
        a('v_add_u32 v240, 256, v240')
        tk['y1'] = poll_issue(a, 247, 's89', 239)
        tk['y2'] = poll_issue(a, 240, 's89', 243)
    def tail_check():
        if not cfg.bclear: poll_wait(a, cfg, tk['y2'], 240, 's89', 243)
        poll_wait(a, cfg, tk['y1'], 247, 's89', 239)

    def type_a():
        KR, VR_, WR = 32, 60, 76
        srd(a, 56, P_K, SZ_X); srd(a, 60, P_V, SZ_X); srd(a, 64, P_SHK, 5120)
        a('s_cmp_ge_u32 s5, 10')
        a('s_cselect_b32 s76, 1, 0')
        a('s_cselect_b32 s77, 10, 0')
        a('s_sub_u32 s77, s5, s77')
        a('s_lshl_b32 s78, s4, 1')
        a('s_add_u32 s76, s76, s78')
        a('s_lshl_b32 s87, s77, 2')
        a('s_add_u32 s87, s87, s10')
        a('s_lshl_b32 s89, s87, 4')
        a('s_add_u32 s89, s89, s76')
        a('s_lshl_b32 s89, s89, 2')
        a('s_lshl_b32 s87, s87, 16')
        a('s_lshl_b32 s78, s76, 8')
        a('s_add_u32 s87, s87, s78')
        a('s_lshl_b32 s76, s76, 7')
        a('s_lshl_b32 s78, s10, 5')
        a('s_add_u32 s76, s76, s78')
        a('v_lshrrev_b32 v9, 3, v1')
        a('v_and_b32 v10, 7, v1')
        a('s_lshl_b32 s78, s10, 3')
        a('v_add_u32 v22, s78, v9')
        a('v_lshlrev_b32 v11, 1, v10')
        a('v_xor_b32 v22, v22, v11')
        a('v_lshlrev_b32 v22, 3, v22')
        a('v_lshl_add_u32 v22, v10, 11, v22')
        a('v_add_u32 v22, %d, v22' % PA)
        a('v_lshlrev_b32 v9, 2, v9')
        a('v_add_u32 v9, s76, v9')
        a('v_mul_u32_u24 v232, 1280, v9')
        a('v_lshl_add_u32 v232, v10, 4, v232')
        a('s_lshl_b32 s78, s77, 7')
        a('v_add_u32 v232, s78, v232')
        a('v_subrev_u32 v233, 3840, v232')
        a('v_subrev_u32 v234, 2560, v232')
        a('v_subrev_u32 v235, 1280, v232')
        a('s_lshl_b32 s78, s77, 9')
        a('v_lshlrev_b32 v236, 6, v10')
        a('v_add_u32 v236, s78, v236')
        a('s_mul_i32 s11, s4, 20')
        a('s_add_u32 s11, s11, s5')
        a('s_lshl_b32 s11, s11, 2')
        a('s_add_u32 s11, s11, s10')
        a('s_lshl_b32 s81, s11, 12')
        a('s_lshl_b32 s80, s11, 2')
        a('s_add_u32 s80, s80, %d' % F_YC)
        a('s_lshr_b32 s76, s11, 4')
        a('s_lshl_b32 s76, s76, 6')
        a('s_sub_u32 s77, s88, 64')
        a('v_min_u32 v240, %d, v1' % (31 if cfg.bclear else 27))
        a('v_lshlrev_b32 v240, 2, v240')
        a('v_mov_b32 v9, s76')
        a('v_mov_b32 v10, s77')
        if cfg.bclear:
            a('s_lshl_b32 s78, s5, 2')
            a('s_add_u32 s78, s78, s10')
            a('s_lshl_b32 s78, s78, 2')
            a('s_mul_i32 s78, s78, 9363')
            a('s_lshr_b32 s78, s78, 16')
            a('s_lshl_b32 s79, s4, 6')
            a('s_add_u32 s78, s78, s79')
            a('s_lshl_b32 s78, s78, 2')
            a('s_add_u32 s78, s78, %d' % (F_YC - 112))
            a('v_min_u32 v240, 29, v1')
            a('v_lshlrev_b32 v240, 2, v240')
            a('v_mov_b32 v11, s78')
            a('v_cmp_gt_u32 vcc, 28, v1')
            a('v_cndmask_b32 v10, v11, v10, vcc')
        a('v_cmp_gt_u32 vcc, 16, v1')
        a('v_cndmask_b32 v9, v10, v9, vcc')
        a('v_add_u32 v240, v240, v9')
        a('s_and_b32 s86, s11, 0xfffffffe')
        a('s_lshl_b32 s86, s86, 1')
        a('s_load_dword s86, s[26:27], s86')
        a('s_mov_b32 s87, s87')
        class _A:
            def __init__(self): self.l = []
            def __call__(self, t): self.l.append(t)
        rec = _A(); conv_setup(rec, cfg)
        for t in rec.l[:-4]: a(t)
        def d_fin():
            for t in rec.l[-4:]: a(t)
        def kv_loads():
            for i in range(4):
                a('buffer_load_dwordx4 %s, v232, s[56:59], 0 offen offset:%d' % (vr(KR + 12 + 4 * i, 4), 1280 * i))
            for i in range(4):
                a('buffer_load_dwordx4 %s, v232, s[60:63], 0 offen offset:%d' % (vr(VR_ + 4 * i, 4), 1280 * i))
            a('buffer_load_dwordx4 %s, v233, s[56:59], 0 offen' % vr(KR, 4))
            a('buffer_load_dwordx4 %s, v234, s[56:59], 0 offen' % vr(KR + 4, 4))
            a('buffer_load_dwordx4 %s, v235, s[56:59], 0 offen' % vr(KR + 8, 4))
            for i in range(4):
                tk['kv'] = a.emit('buffer_load_dwordx4 %s, v236, s[64:67], 0 offen offset:%d' % (vr(WR + 4 * i, 4), 16 * i))
        def ut_srd(): srd(a, 56, P_WS, SZ_UT, WS_UT)
        def kv_part(cp):
            def f():
                a.wait_vm(tk['kv'])
                U = 92
                for r in range(7):
                    unpack_lo(a, U + 2 * r, KR + 4 * r + cp); unpack_hi(a, U + 2 * r + 1, KR + 4 * r + cp)
                for r in range(4):
                    unpack_lo(a, U + 14 + 2 * r, VR_ + 4 * r + cp); unpack_hi(a, U + 15 + 2 * r, VR_ + 4 * r + cp)
                for h in range(2):
                    unpack_lo(a, U + 22 + h, WR + 4 * cp + 2 * h); unpack_hi(a, U + 24 + h, WR + 4 * cp + 2 * h)
                    unpack_lo(a, U + 26 + h, WR + 4 * cp + 2 * h + 1); unpack_hi(a, U + 28 + h, WR + 4 * cp + 2 * h + 1)
                AC = U + 30
                for i in range(8):
                    a('v_mul_f32 v%d, v%d, v%d' % (AC + i, U + i, U + 28 + (i & 1)))
                for tap in (2, 1, 0):
                    for i in range(8):
                        a('v_fmac_f32 v%d, v%d, v%d' % (AC + i, U + 2 * (3 - tap) + i, U + 22 + 2 * tap + (i & 1)))
                for i in range(8):
                    a('v_mul_f32 v%d, v%d, v%d' % (AC + i, AC + i, U + 14 + i))
                O = 24 + (cp & 1) * 4
                for h in range(2):
                    a('v_cvt_pk_bf16_f32 v%d, v%d, v%d' % (O + 2 * h, AC + h, AC + 2 + h))
                    a('v_cvt_pk_bf16_f32 v%d, v%d, v%d' % (O + 2 * h + 1, AC + 4 + h, AC + 6 + h))
                for h in range(2):
                    a('ds_write_b64 v22, %s offset:%d' % (vr(O + 2 * h, 2), 256 * (2 * cp + h)))
            return f
        def ut_store():
            a('v_lshrrev_b32 v9, 4, v1')
            a('v_and_b32 v10, 15, v1')
            a('v_lshlrev_b32 v11, 12, v9')
            a('v_lshl_add_u32 v11, v10, 4, v11')
            a('s_lshl_b32 s76, s10, 1')
            a('s_lshl_b32 s77, s10, 12')
            a('s_add_u32 s77, s77, %d' % PA)
            for hh in range(2):
                a('s_add_u32 s78, s76, %d' % hh)
                a('v_xor_b32 v12, s78, v10')
                a('v_lshlrev_b32 v12, 4, v12')
                a('v_lshl_add_u32 v12, v9, 8, v12')
                a('v_add_u32 v%d, s77, v12' % (24 + hh))
            tl = [a.emit('ds_read_b128 %s, v%d offset:%d' % (vr(40 + 4 * i, 4), 24 + (i >> 1), 1024 * i)) for i in range(4)]
            for i in range(4):
                a.wait_lg(tl[i])
                a('s_add_u32 s76, s87, %d' % (16384 * i))
                tk['ut'] = a.emit('buffer_store_dwordx4 %s, v11, s[56:59], s76 offen sc1' % vr(40 + 4 * i, 4))
        def d_issue():
            a('s_and_b32 s86, s11, 0xfffffffe')
            a('s_lshl_b32 s86, s86, 1')
            a('s_load_dword s86, s[26:27], s86')
        def y_clear():
            srd(a, 64, P_WS, SZ_Y2, WS_Y2)
            for i in range(4): a('v_mov_b32 v%d, -1' % (232 + i))
            for i in range(4):
                tk['yc'] = a.emit('buffer_store_dwordx4 v[232:235], v241, s[64:67], s81 offen offset:%d sc1' % (1024 * i))
        def p_dma():
            srd(a, 60, P_SSMK, SZ_X)
            a('v_bfe_u32 v9, v1, 4, 1')
            a('v_lshlrev_b32 v9, 1, v9')
            a('v_xor_b32 v9, v9, v1')
            a('v_lshlrev_b32 v9, 4, v9')
            if cfg.pqsplit: return
            a('s_add_u32 m0, s82, 512')
            for i in range(4):
                tk['p'] = a.emit('buffer_load_dwordx4 v9, s[60:63], s81 offen offset:%d lds' % (1024 * i))
        def pq_piece(i):
            a('s_add_u32 m0, s83, 64')
            a('buffer_load_dwordx4 v241, s[56:59], s81 offen offset:%d sc1 lds' % (1024 * i))
            a('s_add_u32 m0, s82, 512')
            tk['pq%d' % i] = a.emit('buffer_load_dwordx4 v9, s[60:63], s81 offen offset:%d lds' % (1024 * i))
        def pads():
            for i in range(4): a('v_mov_b32 v%d, 0' % (32 + i))
            a('v_and_b32 v10, 31, v1')
            a('v_lshlrev_b32 v10, 4, v10')
            a('v_add_u32 v10, s82, v10')
            a('ds_write_b128 v10, v[32:35]')
            a('v_and_b32 v10, 3, v1')
            a('v_lshlrev_b32 v10, 4, v10')
            a('v_add_u32 v10, s83, v10')
            a('ds_write_b128 v10, v[32:35]')
        K = cfg.kv_at
        if cfg.early:
            slA = {1: [kv_part(1)], 2: [kv_part(3), n_issue], 3: [ut_srd, ut_store], 5: [flag_after('ut', 's89')], 7: [late_srds]}
        else:
            slA = {K: [kv_loads], K + 2: [kv_part(1)], K + 3: [kv_part(3), n_issue], K + 4: [ut_srd, ut_store], cfg.utf_at: [flag_after('ut', 's89')],
                   7: [late_srds]}
        slA.setdefault(8 if cfg.ungate else 7, [])
        fpoll = lambda: tk.__setitem__('f', poll_issue(a, 240, '0', 243))
        def q_dma():
            poll_wait(a, cfg, tk['f'], 240, '0', 243, sleep=cfg.fsleep)
            if cfg.pqsplit:
                for i in range(cfg.pqsplit): pq_piece(i)
            else:
                a('s_add_u32 m0, s83, 64')
                for i in range(4):
                    tk['q'] = a.emit('buffer_load_dwordx4 v241, s[56:59], s81 offen offset:%d sc1 lds' % (1024 * i))
            lds_word(a, 10, 48, 236, 237)
        if cfg.e8:
            lane_min(a, 246, 12)
            slA.setdefault(6, []).append(lambda: tk.__setitem__('w', poll_issue(a, 246, 's88', 247)))
            slA[7].append(lambda: poll_wait(a, cfg, tk['w'], 246, 's88', 247))
        if cfg.p_at == 8: slA[8] = ([q_dma, p_dma] if cfg.qfirst else [p_dma, q_dma]) if not cfg.ungate else [p_dma, fpoll]
        elif cfg.p_at == 9: slA[8] = [q_dma]; slA[9] = [p_dma]
        else:
            slA[8] = [fpoll] if cfg.ungate else [q_dma]
            slA.setdefault(cfg.p_at, []).append(p_dma)
        if not cfg.ungate:
            if cfg.pollpre8: slA[8].insert(0, fpoll)
            else: slA[7].append(fpoll)
        if not (cfg.cclear or cfg.bclear or cfg.yflag):
            slA.setdefault(cfg.late, []).append(y_clear)
            slA[cfg.late + 2].insert(0, flag_after('yc', 's80'))
        if cfg.kvfirst:
            kv_loads(); slA[0] = []
        prA = {K + 2: [kv_part(0)], K + 3: [kv_part(2)], 5: [n_get, d_fin], 6 + K: [pads]}
        if cfg.early:
            kv_loads()
            prA = {1: [kv_part(0)], 2: [kv_part(2)], 4: [n_get, d_fin], 6: [pads]}
        assert K <= 1
        if cfg.cearly:
            assert cfg.p_at <= 6 and cfg.quiet and not cfg.ungate and not cfg.pqsplit
            slA[8] = []
            slA.setdefault(6, []).append(fpoll)
            prA[7] = [q_dma]
            for i in range(NSTAGE - 1): interval(i, slA, prA)
            a('s_setprio %d' % cfg.eprio)
            a.wait_vm(tk['q'])
            gen = conv_main(a, cfg, prof)
            for _ in range(cfg.cearly): next(gen)
            a.wait_vm(stage_tok[9])
            a('s_barrier')
            a('s_setprio %d' % cfg.vprio)
            for _ in gen: pass
            q_loads(); tail_issue(); tail_check()
            a('s_setprio 0')
            a('s_branch Lfetch')
            return
        for i in range(NSTAGE): interval(i, slA, prA)
        if cfg.ungate: q_dma()
        if not cfg.quiet:
            wdl_dma()
            q_loads()
            tail_issue()
        a('s_setprio %d' % cfg.vprio)
        if cfg.pqsplit:
            for i in range(cfg.pqsplit, 4): pq_piece(i)
            a.wait_vm(tk['pq0'])
        else: a.wait_vm(tk['q']); a.wait_vm(tk['p'])
        gen = conv_main(a, cfg, prof)
        if cfg.pqsplit:
            done_ = 0
            for p_, at in ((1, 4), (2, 20), (3, 44)):
                for _ in range(at - done_): next(gen)
                done_ = at
                a.wait_vm(tk['pq%d' % p_])
        if not cfg.quiet:
            for _ in range(cfg.pub_at): next(gen)
            wdl_publish()
        for _ in gen: pass
        if cfg.yflag:
            q_loads()
            a.emit('s_waitcnt vmcnt(5)')
            flag_store(a, 's80')
        else:
            if cfg.quiet:
                q_loads()
                tail_issue()
            tail_check()
        a('s_setprio 0')
        a('s_branch Lfetch')

    if not odd: type_a()

    a.vmq, a.hist = list(saved[0]), list(saved[2])
    stage_tok.clear(); stage_tok.update(saved[1])
    if spf: spf.next = saved[3]
    a.lgq = []
    if not odd: a.label('LtypeB')
    srd(a, 56, P_WD, SZ_W)
    srd(a, 68, P_GW, 1280)
    a('s_mul_i32 s78, s4, 12')
    a('s_add_u32 s78, s78, s5')
    a('s_sub_u32 s78, s78, 20')
    a('s_lshl_b32 s78, s78, 2')
    a('s_add_u32 s78, s78, s10')
    a('s_lshr_b32 s79, s78, 3')
    a('s_and_b32 s78, s78, 7')
    a('s_mul_i32 s89, s78, 48')
    a('s_add_u32 s89, s89, s79')
    a('s_lshl_b32 s89, s89, 2')
    a('s_add_u32 s89, s89, %d' % F_WD)
    a('s_mul_i32 s80, s79, 40960')
    a('s_mul_i32 s77, s78, 160')
    a('s_add_u32 s80, s80, s77')
    a('s_mul_i32 s81, s78, 245760')
    a('s_mul_i32 s77, s79, 5120')
    a('s_add_u32 s81, s81, s77')
    lane_min(a, 240, 12)
    def wd_loads():
        for i in range(5):
            a('v_add_u32 v9, %d, v1' % (64 * i))
            a('v_mul_u32_u24 v10, 6554, v9')
            a('v_lshrrev_b32 v10, 16, v10')
            a('v_mul_u32_u24 v11, 10, v10')
            a('v_sub_u32 v11, v9, v11')
            a('v_mul_u32_u24 v10, 1280, v10')
            a('v_lshl_add_u32 v10, v11, 4, v10')
            a('s_add_u32 m0, s82, %d' % (1024 * i))
            tk['wd'] = a.emit('buffer_load_dwordx4 v10, s[56:59], s80 offen lds')
    def wd_part():
        a('v_lshrrev_b32 v9, 5, v1')
        a('v_lshlrev_b32 v9, 4, v9')
        a('v_bfe_u32 v10, v1, 2, 3')
        a('v_add_u32 v9, v9, v10')
        a('v_mul_u32_u24 v9, 160, v9')
        a('v_and_b32 v10, 3, v1')
        a('v_lshl_add_u32 v9, v10, 3, v9')
        a('v_add_u32 v9, s82, v9')
        srd(a, 60, P_WS, SZ_WD, WS_WD)
        a('s_add_u32 s80, s81, 4096')
        a.wait_vm(tk['wd'])
        for dl in range(5):
            for t in range(2):
                a('ds_read_b64_tr_b16 v[%d:%d], v9 offset:%d' % (32 + 4 * dl + 2 * t, 33 + 4 * dl + 2 * t, t * 1280 + dl * 32))
        a.wait_all_lg()
        for dl in range(4):
            a('buffer_store_dwordx4 %s, v241, s[60:63], s81 offen offset:%d sc1' % (vr(32 + 4 * dl, 4), 1024 * dl))
        tk['wds'] = a.emit('buffer_store_dwordx4 %s, v241, s[60:63], s80 offen sc1' % vr(48, 4))
    GX, GW = 56, 104
    gtk = []
    def g_loads():
        srd(a, 56, P_GW, 1280)
        a('s_sub_u32 s76, s5, 20')
        a('s_lshl_b32 s76, s76, 2')
        a('s_add_u32 s76, s76, s10')
        a('s_cmp_ge_u32 s76, 32')
        a('s_cselect_b32 s86, 0x%x, 0' % FAR)
        a('s_and_b32 s77, s4, 1')
        a('s_lshl_b32 s77, s77, 2')
        a('s_lshr_b32 s78, s76, 3')
        a('s_add_u32 s77, s77, s78')
        a('s_and_b32 s76, s76, 7')
        a('s_lshl_b32 s78, s6, 9')
        a('s_lshl_b32 s79, s77, 3')
        a('s_add_u32 s78, s78, s79')
        a('s_add_u32 s78, s78, s76')
        a('s_mul_i32 s78, s78, 1280')
        a('s_or_b32 s78, s78, s86')
        a('v_lshrrev_b32 v9, 5, v1')
        a('v_and_b32 v10, 31, v1')
        a('v_lshlrev_b32 v11, 4, v10')
        a('s_mov_b32 s79, 81920')
        a('v_mul_lo_u32 v12, v9, s79')
        a('v_add_u32 v12, v12, v11')
        a('v_cmp_gt_u32 vcc, 16, v10')
        a('v_mov_b32 v15, 0x%x' % OOB)
        a('v_cndmask_b32 v13, v15, v12, vcc')
        for i in range(3):
            a('buffer_load_dwordx4 %s, v11, s[56:59], 0 offen offset:%d' % (vr(GW + 4 * i, 4), 512 * i))
        for p in range(4):
            a('buffer_load_dwordx4 %s, v12, s[44:47], s78 offen' % vr(GX + 12 * p, 4))
            a('buffer_load_dwordx4 %s, v12, s[44:47], s78 offen offset:512' % vr(GX + 12 * p + 4, 4))
            gtk.append(a.emit('buffer_load_dwordx4 %s, v13, s[44:47], s78 offen offset:1024' % vr(GX + 12 * p + 8, 4)))
            a('s_add_u32 s78, s78, 163840')
        a('s_lshl_b32 s78, s6, 3')
        a('s_add_u32 s78, s78, s77')
        a('s_lshl_b32 s78, s78, 3')
        a('s_add_u32 s78, s78, s76')
        a('s_lshl_b32 s80, s78, 6')
        a('s_or_b32 s80, s80, s86')
        a('v_lshlrev_b32 v14, 3, v9')
        a('v_cmp_eq_u32 vcc, 31, v10')
        a('v_cndmask_b32 v14, v15, v14, vcc')
    def g_compute():
        for p in range(4):
            a.wait_vm(gtk[p])
            a('v_mov_b32 v%d, 0' % (24 + p))
            for i in range(12):
                a('v_dot2_f32_bf16 v%d, v%d, v%d, v%d' % (24 + p, GX + 12 * p + i, GW + i, 24 + p))
        a('s_nop 2')
        for sh in (1, 2, 4, 8):
            for p in range(4):
                a('v_add_f32_dpp v%d, v%d, v%d row_shr:%d row_mask:0xf bank_mask:0xf bound_ctrl:0' % (24 + p, 24 + p, 24 + p, sh))
        for p in range(4):
            a('v_add_f32_dpp v%d, v%d, v%d row_bcast:15 row_mask:0xa bank_mask:0xf' % (24 + p, 24 + p, 24 + p))
        for p in range(4):
            r = 24 + p
            a('v_cvt_pk_bf16_f32 v%d, v%d, v%d' % (r, r, r))
            a('v_and_b32 v%d, 0xffff0000, v%d' % (r, r))
            a('v_mul_f32 v%d, 0xbfb8aa3b, v%d' % (r, r))
            a('v_exp_f32 v%d, v%d' % (r, r))
            a('v_add_f32 v%d, 1.0, v%d' % (r, r))
            a('v_rcp_f32 v%d, v%d' % (r, r))
            a('v_cvt_pk_bf16_f32 v%d, v%d, v%d' % (r, r, r))
            a('v_and_b32 v%d, 0xffff0000, v%d' % (29 + 2 * p, r))
            a('v_mov_b32 v%d, v%d' % (28 + 2 * p, VN))
            a('buffer_store_dwordx2 v[%d:%d], v14, s[52:55], s80 offen offset:%d sc1' % (28 + 2 * p, 29 + 2 * p, 16 * p))
    def b_clear():
        srd(a, 64, P_WS, SZ_Y2, WS_Y2)
        a('s_sub_u32 s76, s5, 20')
        a('s_lshl_b32 s76, s76, 2')
        a('s_add_u32 s76, s76, s10')
        a('s_lshl_b32 s77, s4, 6')
        a('s_add_u32 s87, s76, s77')
        a('s_lshl_b32 s87, s87, 2')
        a('s_add_u32 s87, s87, %d' % F_YC)
        a('s_mul_i32 s76, s76, 7')
        for i in range(4): a('v_mov_b32 v%d, -1' % (232 + i))
        for i in range(7):
            a('s_add_u32 s77, s76, %d' % i)
            a('s_cmp_ge_u32 s77, 320')
            a('s_cselect_b32 s78, 0x%x, 0' % FAR)
            a('s_lshl_b32 s77, s77, 10')
            a('s_mul_i32 s79, s4, 327680')
            a('s_add_u32 s77, s77, s79')
            a('s_or_b32 s77, s77, s78')
            tk['yc'] = a.emit('buffer_store_dwordx4 v[232:235], v241, s[64:67], s77 offen sc1')
    W = cfg.wd_at
    slB = {}
    for i, f in ((W, wd_loads), (W + 2, wd_part), (1, n_issue), (W + cfg.wdf_d, flag_after('wds', 's89')), (7, late_srds)):
        slB.setdefault(i, []).append(f)
    def wd_touch_issue():
        a('s_and_b32 s76, s4, 1')
        a('s_mul_i32 s79, s76, 768')
        a('s_add_u32 s79, s79, %d' % F_WD)
        a('v_lshlrev_b32 v16, 2, v1')
        a('v_add_u32 v17, 256, v16')
        a('v_add_u32 v18, 512, v16')
        tk['wt'] = [poll_issue(a, 16 + i, 's79', 19 + i) for i in range(3)]
    def wd_touch():
        for i in range(3): poll_wait(a, cfg, tk['wt'][i], 16 + i, 's79', 19 + i)
        a('s_sub_u32 s77, s5, 20')
        a('s_lshl_b32 s77, s77, 2')
        a('s_add_u32 s77, s77, s10')
        a('s_mul_i32 s77, s77, 20480')
        a('s_and_b32 s76, s4, 1')
        a('s_mul_i32 s76, s76, 983040')
        a('s_add_u32 s76, s76, s77')
        a('v_lshlrev_b32 v16, 7, v1')
        a('v_add_u32 v17, 8192, v16')
        a('v_add_u32 v18, 16384, v16')
        a('v_cmp_gt_u32 vcc, 32, v1')
        a('v_mov_b32 v19, 0x%x' % OOB)
        a('v_cndmask_b32 v18, v19, v18, vcc')
        for i in range(3):
            a('buffer_load_dword v252, v%d, s[48:51], s76 offen sc1' % (16 + i))
    fpollB = lambda: tk.__setitem__('f', poll_issue(a, 240, 's88', 243))
    fwaitB = lambda: (poll_wait(a, cfg, tk['f'], 240, 's88', 243), lds_word(a, 10, 48, 236, 237))
    if cfg.ungate: slB[8] = [fpollB]
    elif cfg.e8:
        slB.setdefault(6, []).append(fpollB); slB[7].append(fwaitB); slB[8] = [g_loads]
    elif cfg.pollpre8: slB[8] = [fpollB, g_loads, fwaitB]
    else: slB[7].append(fpollB); slB[8] = [g_loads, fwaitB]
    def ssm_touch():
        srd(a, 68, P_SSMK, SZ_X)
        a('s_sub_u32 s76, s5, 20')
        a('s_lshl_b32 s76, s76, 2')
        a('s_add_u32 s76, s76, s10')
        a('s_mul_i32 s76, s76, 6912')
        a('s_mul_i32 s77, s4, 327680')
        a('s_add_u32 s76, s76, s77')
        a('v_lshlrev_b32 v16, 7, v1')
        a('v_cmp_gt_u32 vcc, 54, v1')
        a('v_mov_b32 v17, 0x%x' % OOB)
        a('v_cndmask_b32 v16, v17, v16, vcc')
        a('buffer_load_dword v252, v16, s[68:71], s76 offen')
    if cfg.spre: slB.setdefault(cfg.spre, []).append(ssm_touch)
    if cfg.cotouch == 1:
        slB[7].append(wd_touch_issue); slB[8].insert(0, wd_touch)
    if cfg.cotouch >= 2:
        slB[8].insert(0, wd_touch_issue)
    if cfg.cotouch == 3:
        slB[8].remove(g_loads)
    if cfg.bclear:
        slB.setdefault(cfg.clr_at, []).append(b_clear)
        slB.setdefault(max(cfg.clr_at + 2, 3), []).append(flag_after('yc', 's87'))
    for i in range(NSTAGE): interval(i, slB, {3: [n_get]})
    if cfg.ungate:
        fwaitB(); g_loads()
    wdl_dma()
    if cfg.cotouch >= 2: wd_touch()
    if cfg.cotouch == 3: g_loads()
    g_compute()
    q_loads()
    if not cfg.yflag: tail_issue()
    a('s_setprio 0')
    wdl_publish()
    lds_word_wait(a, cfg, 10, 0, 236, 237, 'Ldummy') if False else None
    if not cfg.yflag: tail_check()
    if not odd:
        a('s_branch Lfetch')
        return
    a.pad()
    a.label('Lfetch')
    a.reset_queues()
    if cfg.coop:
        coop_fetch(a, cfg, prof)
        return
    a('s_mul_i32 s11, s85, 327680')
    a('s_lshr_b32 s12, s84, 3')
    a('s_lshl_b32 s12, s12, 10')
    a('s_add_u32 s11, s11, s12')
    a('s_and_b32 s12, s84, 7')
    a('s_lshl_b32 s12, s12, 7')
    a('s_add_u32 s11, s11, s12')
    a('s_lshl_b32 s12, s10, 5')
    a('s_add_u32 s11, s11, s12')
    a('v_lshrrev_b32 v24, 1, v1')
    a('v_lshlrev_b32 v24, 12, v24')
    a('v_and_b32 v25, 1, v1')
    a('v_lshl_add_u32 v24, v25, 4, v24')
    a('v_add_u32 v25, 0x20000, v24')
    a('v_add_u32 v26, 0x40000, v24')
    a('v_cmp_gt_u32 vcc, 32, v1')
    a('v_mov_b32 v27, 0x%x' % OOB)
    a('v_cndmask_b32 v26, v27, v26, vcc')
    a('v_lshlrev_b32 v28, 2, v1')
    a('s_add_u32 s12, s83, 3072')
    a('v_add_u32 v28, s12, v28')
    a('v_add_u32 v29, s83, v241')
    a('v_lshlrev_b32 v30, 3, v1')
    a('v_add_u32 v30, s83, v30')
    a('v_add_u32 v31, s82, v241')
    a('s_lshl_b32 s96, s84, 6')
    a('s_lshl_b32 s97, s10, 4')
    a('s_add_u32 s96, s96, s97')
    a('v_and_b32 v33, 15, v1')
    a('v_add_u32 v33, s96, v33')
    a('v_lshlrev_b32 v33, 3, v33')
    lds_word_wait(a, cfg, 10, 64, 236, 237, 'Lgate2', sleep=cfg.gsleep)
    if cfg.yflag:
        tail_issue(); tail_check()
    prof.stamp(6)
    YV = 40
    lo, ok = newlabel('Ly'), newlabel('Ly_ok')
    a('s_mov_b32 s94, %d' % cfg.spin)
    a.label(lo)
    for i in range(3):
        a('buffer_load_dwordx4 %s, v%d, s[64:67], s11 offen sc1' % (vr(YV + 4 * i, 4), 24 + i))
    a('buffer_load_dwordx2 v[34:35], v33, s[52:55], 0 offen sc1')
    a.wait_all_vm()
    a('v_max3_u32 v27, v%d, v%d, v%d' % (YV, YV + 1, YV + 2))
    for i in range(3, 11, 2):
        a('v_max3_u32 v27, v27, v%d, v%d' % (YV + i, YV + i + 1))
    a('v_max_u32 v27, v27, v%d' % (YV + 11))
    a('v_cmp_eq_u32 vcc, -1, v27')
    a('v_cmp_ne_u32 s[96:97], s%d, v34' % NONCE)
    a('s_or_b64 vcc, vcc, s[96:97]')
    a('s_cbranch_scc0 %s' % ok)
    a('s_sleep %d' % cfg.ysleep)
    a('s_sub_u32 s94, s94, 1')
    a('s_cmp_lg_u32 s94, 0')
    a('s_cbranch_scc1 %s' % lo)
    a.label(ok)
    prof.stamp(7)
    a('v_mov_b32 v%d, v35' % GV)
    a('ds_write_b128 v29, %s' % vr(YV, 4))
    a('ds_write_b128 v29, %s offset:1024' % vr(YV + 4, 4))
    a('ds_write_b128 v29, %s offset:2048' % vr(YV + 8, 4))
    a('v_sub_f32 v32, 1.0, v%d' % GV)
    a('v_cvt_pk_bf16_f32 v32, v32, v32')
    a('v_and_b32 v32, 0xffff0000, v32')
    a('ds_write_b32 v28, v32')
    for dl in range(5):
        x = 72 + 4 * dl
        unpack_lo(a, x, QV + 2 * dl); unpack_hi(a, x + 1, QV + 2 * dl); unpack_lo(a, x + 2, QV + 2 * dl + 1); unpack_hi(a, x + 3, QV + 2 * dl + 1)
        for i in range(4): a('v_mul_f32 v%d, v%d, v%d' % (x + i, GV, x + i))
    a.wait_all_lg()
    tl = [a.emit('ds_read_b64_tr_b16 %s, v30 offset:%d' % (vr(56 + 2 * dl, 2), dl * 512)) for dl in range(5)]
    for dl in range(5):
        a.wait_lg(tl[dl])
        x = 72 + 4 * dl; y = 96
        unpack_lo(a, y, 56 + 2 * dl); unpack_hi(a, y + 1, 56 + 2 * dl); unpack_lo(a, y + 2, 57 + 2 * dl); unpack_hi(a, y + 3, 57 + 2 * dl)
        for i in range(4): a('v_mul_f32 v%d, v%d, v%d' % (x + i, x + i, y + i))
        a('ds_write_b128 v31, %s offset:%d' % (vr(x, 4), dl * 1024))
    a.wait_all_lg()
    a('s_barrier')
    prof.stamp(8)
    prof.flush(243)

def coop_fetch(a, cfg, prof):
    a('s_mul_i32 s11, s85, 327680')
    a('s_mul_i32 s12, s10, 81920')
    a('s_add_u32 s11, s11, s12')
    a('s_lshr_b32 s12, s84, 3')
    a('s_lshl_b32 s12, s12, 10')
    a('s_add_u32 s11, s11, s12')
    a('s_and_b32 s12, s84, 7')
    a('s_lshl_b32 s12, s12, 7')
    a('s_add_u32 s11, s11, s12')
    a('v_lshrrev_b32 v24, 3, v1')
    a('v_lshlrev_b32 v24, 12, v24')
    a('v_and_b32 v25, 7, v1')
    a('v_lshl_add_u32 v24, v25, 4, v24')
    a('v_add_u32 v25, 0x8000, v24')
    a('v_add_u32 v26, 0x10000, v24')
    a('v_cmp_gt_u32 vcc, 32, v1')
    a('v_mov_b32 v27, 0x%x' % OOB)
    a('v_cndmask_b32 v26, v27, v26, vcc')
    a('v_lshlrev_b32 v28, 2, v1')
    a('s_add_u32 s12, s83, 3072')
    a('v_add_u32 v28, s12, v28')
    a('v_add_u32 v29, s82, v241')
    a('v_lshlrev_b32 v31, 3, v1')
    a('s_add_u32 s12, s82, 2560')
    a('v_add_u32 v31, s12, v31')
    a('v_and_b32 v30, 15, v1')
    a('v_mul_u32_u24 v30, 160, v30')
    a('v_lshrrev_b32 v32, 4, v1')
    a('v_lshl_add_u32 v30, v32, 3, v30')
    a('v_add_u32 v30, s83, v30')
    a('v_and_b32 v32, 3, v1')
    a('v_lshlrev_b32 v32, 3, v32')
    a('s_lshl_b32 s12, s10, 5')
    a('s_add_u32 s12, s12, %d' % PA)
    a('v_add_u32 v32, s12, v32')
    for dl in range(5):
        a('v_lshrrev_b32 v36, 2, v1')
        a('v_add_u32 v36, %d, v36' % (16 * dl))
        a('v_mul_u32_u24 v37, 3277, v36')
        a('v_lshrrev_b32 v37, 16, v37')
        a('v_mul_u32_u24 v37, 2560, v37')
        a('v_lshl_add_u32 v36, v36, 7, v37')
        a('v_add_u32 v%d, v36, v32' % (2 + dl))
    a('s_lshl_b32 s96, s84, 6')
    a('s_lshl_b32 s97, s10, 4')
    a('s_add_u32 s96, s96, s97')
    a('v_and_b32 v33, 15, v1')
    a('v_add_u32 v33, s96, v33')
    a('v_lshlrev_b32 v33, 3, v33')
    lds_word_wait(a, cfg, 10, 64, 236, 237, 'Lgate2', sleep=cfg.gsleep)
    prof.stamp(6)
    YV = 40
    lo, ok = newlabel('Ly'), newlabel('Ly_ok')
    a('s_mov_b32 s94, %d' % cfg.spin)
    a.label(lo)
    for i in range(3):
        a('buffer_load_dwordx4 %s, v%d, s[64:67], s11 offen sc1' % (vr(YV + 4 * i, 4), 24 + i))
    a('buffer_load_dwordx2 v[34:35], v33, s[52:55], 0 offen sc1')
    a.wait_all_vm()
    a('v_max3_u32 v27, v%d, v%d, v%d' % (YV, YV + 1, YV + 2))
    for i in range(3, 11, 2):
        a('v_max3_u32 v27, v27, v%d, v%d' % (YV + i, YV + i + 1))
    a('v_max_u32 v27, v27, v%d' % (YV + 11))
    a('v_cmp_eq_u32 vcc, -1, v27')
    a('v_cmp_ne_u32 s[96:97], s%d, v34' % NONCE)
    a('s_or_b64 vcc, vcc, s[96:97]')
    a('s_cbranch_scc0 %s' % ok)
    a('s_sleep %d' % cfg.ysleep)
    a('s_sub_u32 s94, s94, 1')
    a('s_cmp_lg_u32 s94, 0')
    a('s_cbranch_scc1 %s' % lo)
    a.label(ok)
    prof.stamp(7)
    a('ds_write_b128 v29, %s' % vr(YV, 4))
    a('ds_write_b128 v29, %s offset:1024' % vr(YV + 4, 4))
    a('v_cmp_gt_u32 vcc, 32, v1')
    a('s_and_saveexec_b64 s[96:97], vcc')
    a('ds_write_b128 v29, %s offset:2048' % vr(YV + 8, 4))
    a('s_mov_b64 exec, s[96:97]')
    tq = [a.emit('ds_read_b64 %s, v30 offset:%d' % (vr(56 + 2 * dl, 2), dl * 32)) for dl in range(5)]
    a('v_sub_f32 v36, 1.0, v35')
    a('v_cvt_pk_bf16_f32 v36, v36, v36')
    a('v_and_b32 v36, 0xffff0000, v36')
    a('ds_write_b32 v28, v36')
    a('v_mov_b32 v37, %d' % (CNT + 4))
    a('v_mov_b32 v38, 1')
    a.wait_all_lg()
    a('v_cmp_eq_u32 vcc, 0, v1')
    a('s_and_saveexec_b64 s[96:97], vcc')
    a('ds_add_u32 v37, v38')
    a('s_mov_b64 exec, s[96:97]')
    for dl in range(5):
        x = 72 + 4 * dl
        unpack_lo(a, x, 56 + 2 * dl); unpack_hi(a, x + 1, 56 + 2 * dl); unpack_lo(a, x + 2, 57 + 2 * dl); unpack_hi(a, x + 3, 57 + 2 * dl)
        for i in range(4): a('v_mul_f32 v%d, v35, v%d' % (x + i, x + i))
    lds_spin(a, cfg, 37, 38, 12, 'ge', 4, 'Llsync')
    tl = [a.emit('ds_read_b64_tr_b16 %s, v%d' % (vr(56 + 2 * dl, 2), 2 + dl)) for dl in range(5)]
    for dl in range(5):
        a.wait_lg(tl[dl])
        x = 72 + 4 * dl; y = 96
        unpack_lo(a, y, 56 + 2 * dl); unpack_hi(a, y + 1, 56 + 2 * dl); unpack_lo(a, y + 2, 57 + 2 * dl); unpack_hi(a, y + 3, 57 + 2 * dl)
        for i in range(4): a('v_mul_f32 v%d, v%d, v%d' % (x + i, x + i, y + i))
        a('v_cvt_pk_bf16_f32 v%d, v%d, v%d' % (x, x, x + 1))
        a('v_cvt_pk_bf16_f32 v%d, v%d, v%d' % (x + 1, x + 2, x + 3))
        a('ds_write_b64 v31, %s offset:%d' % (vr(x, 2), dl * 512))
    a.wait_all_lg()
    a('s_barrier')
    prof.stamp(8)
    prof.flush(243)

def generate(cfg):
    if cfg.yflag: cfg.bclear = 0; cfg.cclear = 0
    LOCAL[0] = cfg.local
    a = Asm()
    a.raw('.amdgcn_target "amdgcn-amd-amdhsa--gfx950"')
    a.raw('.text')
    kn = NAME + '_kernel'
    kernel_header(a, kn)
    prof = Prof(a, cfg, 0)
    prof.start()
    a('s_cmp_ge_u32 s2, 256')
    a('s_cbranch_scc1 Ldone')
    a('s_load_dwordx2 s[44:45], s[0:1], 0')
    a('s_load_dwordx2 s[48:49], s[0:1], 56')
    a('s_load_dwordx2 s[52:53], s[0:1], 64')
    a('s_load_dwordx8 s[16:23], s[0:1], 0')
    a('s_load_dwordx4 s[24:27], s[0:1], 32')
    a('s_load_dwordx8 s[32:39], s[0:1], 64')
    a('s_load_dwordx4 s[40:43], s[0:1], 96')
    def code_prefetch(nw, n):
        a('s_getpc_b64 s[60:61]')
        a.label('Lpc')
        a('s_sub_u32 s60, s60, (Lpc - %s)' % kn)
        a('s_subb_u32 s61, s61, 0')
        a('s_mov_b32 s62, CODE_END - %s' % kn)
        a('s_mov_b32 s63, 0x00020000')
        a('v_lshrrev_b32 v253, 6, v0')
        a('s_lshr_b32 s59, s2, 3')
        a('s_mul_i32 s59, s59, %d' % nw)
        a('v_add_u32 v253, s59, v253')
        a('v_mul_u32_u24 v253, %d, v253' % n)
        a('v_and_b32 v254, 63, v0')
        a('v_add_u32 v253, v253, v254')
        a('v_lshlrev_b32 v253, 7, v253')
        a('v_cmp_gt_u32 vcc, %d, v254' % n)
        a('v_mov_b32 v254, 0x%x' % OOB)
        a('v_cndmask_b32 v253, v254, v253, vcc')
        a('buffer_load_dword v254, v253, s[60:63], 0 offen')
        a.vmq.pop()
    if cfg.cpf and not cfg.cpfc: code_prefetch(8, cfg.cpf)
    a('v_lshrrev_b32 v2, 6, v0')
    a('v_and_b32 v1, 63, v0')
    a('v_readfirstlane_b32 s3, v2')
    a('s_and_b32 s4, s2, 7')
    a('s_lshr_b32 s5, s2, 3')
    a('s_lshr_b32 s6, s4, 1')
    a('s_mul_i32 s9, s5, 13108')
    a('s_lshr_b32 s9, s9, 16')
    a('s_mul_i32 s7, s9, 5')
    a('s_sub_u32 s7, s5, s7')
    a('s_and_b32 s8, s4, 1')
    a('s_mul_i32 s10, s8, 5')
    a('s_add_u32 s7, s7, s10')
    a('s_lshl_b32 s10, s8, 1')
    a('s_mul_i32 s8, s6, 6')
    a('s_add_u32 s8, s8, s9')
    a('s_lshl_b32 s11, s6, 2')
    a('s_add_u32 s10, s10, s11')
    a('s_add_u32 s10, s10, s5')
    a('s_sub_u32 s10, s10, 30')
    a('s_cmp_ge_u32 s5, 30')
    a('s_cselect_b32 s8, s10, s8')
    a('s_cselect_b32 s7, 15, s7')
    a('s_cmp_lt_u32 s3, 4')
    a('s_cbranch_scc1 Lcwave')
    h0 = list(a.hist)
    l_wave(a, cfg, prof)
    a.label('Ldone')
    a('s_endpgm')
    a.hist = h0; a.reset_queues()
    a.label('Lcwave')
    if cfg.cpf and cfg.cpfc: code_prefetch(4, 3)
    if cfg.gtouch:
        a('s_cmp_lt_u32 s3, 2')
        a('s_cselect_b32 s64, 40, 60')
        a('s_lshl_b32 s65, s2, 1')
        a('s_add_u32 s65, s65, s3')
        a('s_cselect_b32 s65, s65, s2') if False else None
        a('s_cmp_lt_u32 s3, 2')
        a('s_cselect_b32 s65, s65, s2')
        a('s_mul_i32 s65, s65, s64')
        a('s_lshl_b32 s65, s65, 7')
        a('v_lshlrev_b32 v253, 7, v1')
        a('v_cmp_gt_u32 vcc, s64, v1')
        a('v_mov_b32 v252, 0x%x' % OOB)
        a('v_cndmask_b32 v253, v252, v253, vcc')
        a.emit('s_waitcnt lgkmcnt(0)')
        a('s_cmp_eq_u32 s3, 3')
        a('s_cselect_b32 s60, s52, s48')
        a('s_cselect_b32 s61, s53, s49')
        a('s_cmp_lt_u32 s3, 2')
        a('s_cselect_b32 s60, s44, s60')
        a('s_cselect_b32 s61, s45, s61')
        a('s_mov_b32 s62, 0x%x' % SZ_X)
        a('s_cselect_b32 s62, s62, 0x%x' % SZ_W)
        a('s_mov_b32 s63, 0x00020000')
        cfg._gt = True
        if not cfg.gdelay:
            a('buffer_load_dword v252, v253, s[60:63], s65 offen')
            a.vmq.pop()
    c_wave(a, cfg, prof)
    a.raw('CODE_END:')
    hdr = open('cdna_kernels/%s.s.ref' % NAME).read().split('; Override launch')[0]
    hdr += """; Generated by my own generator script (dev/gen11.py). One fused launch, 256 workgroups x 8 waves, one per CU.
"""
    hdr += '; @launch grid=(256,1,1) block=(512,1,1) lds=%d\n' % LDS
    return hdr + a.text() + kernel_desc(kn, 256).replace('.end_amdhsa_kernel', '  .amdhsa_float_denorm_mode_32 3\n.end_amdhsa_kernel')

if __name__ == '__main__':
    cfg = Cfg()
    out = sys.argv[1]
    for kv in sys.argv[2:]:
        k, v = kv.split('=')
        assert hasattr(cfg, k), k
        setattr(cfg, k, int(v))
    open(out, 'w').write(generate(cfg))
```
